```python
import torch

def _softmax(x, axis=-1):
    return torch.softmax(x, dim=axis)
def _gelu(x):
    return torch.nn.functional.gelu(x, approximate="tanh")
def _silu(x):
    return torch.nn.functional.silu(x)
def _sigmoid(x):
    return torch.sigmoid(x)
def _layernorm(x, axis=-1, eps=1e-5):
    m = x.mean(dim=axis, keepdim=True)
    v = x.var(dim=axis, keepdim=True, unbiased=False)
    return (x - m) / torch.sqrt(v + eps)
def _scatter_add(tgt, idx, src, axis=0):
    return tgt.clone().index_add_(axis, idx, src)
def _segment_sum(src, seg, n):
    out = torch.zeros((n,) + src.shape[1:], dtype=src.dtype)
    return out.index_add_(0, seg, src)
def _pad(x, pw):
    flat = tuple(v for pair in reversed(pw) for v in pair)
    return torch.nn.functional.pad(x, flat)

kernel_name = 'concat_heads__spectral_fnet__sliding_block__prompt'

def setup_inputs():

    _w = (lambda a: (lambda t: t.to(torch.bfloat16) if t.is_floating_point() else t)(torch.as_tensor(a)))
    def _A_setup():
        B, S, D = 1, 2048, 512
        ns = torch.arange(S)[:, None] * torch.arange(S)[None, :]
        nd = torch.arange(D)[:, None] * torch.arange(D)[None, :]
        Ws_re = torch.cos(-2.0 * torch.pi * ns / S).to(float)
        Ws_im = torch.sin(-2.0 * torch.pi * ns / S).to(float)
        Wd_re = torch.cos(-2.0 * torch.pi * nd / D).to(float)
        Wd_im = torch.sin(-2.0 * torch.pi * nd / D).to(float)
        return {
            "x": _w((lambda *s: torch.randn(*s, dtype=torch.bfloat16) * 0.05)(B, S, D)),
            "dft_seq_re": _w(Ws_re),
            "dft_seq_im": _w(Ws_im),
            "dft_hid_re": _w(Wd_re),
            "dft_hid_im": _w(Wd_im),
        }
    _A_in = _A_setup()

    def _B_setup():
        B, S, D = 1, 2048, 512
        return {
            "x": _w((lambda *s: torch.randn(*s, dtype=torch.bfloat16) * 0.2)(B, S, D)),
            "wqkv": _w((lambda *s: torch.randn(*s, dtype=torch.bfloat16) * 0.8)(D, 3 * D)),
            "wo": _w((lambda *s: torch.randn(*s, dtype=torch.bfloat16) * 0.2)(D, D)),
        }
    _B_in = _B_setup()

    return {
        "A_x": _A_in["x"],
        "A_dft_seq_re": _A_in["dft_seq_re"],
        "A_dft_seq_im": _A_in["dft_seq_im"],
        "A_dft_hid_re": _A_in["dft_hid_re"],
        "A_dft_hid_im": _A_in["dft_hid_im"],
        "B_x": _B_in["x"],
        "B_wqkv": _B_in["wqkv"],
        "B_wo": _B_in["wo"],
    }

def reference(A_x, A_dft_seq_re, A_dft_seq_im, A_dft_hid_re, A_dft_hid_im, B_x, B_wqkv, B_wo):
    def _A_ref(x, dft_seq_re, dft_seq_im, dft_hid_re, dft_hid_im):
        a = torch.einsum("bsd,ed->bse", x, dft_hid_re)
        b = torch.einsum("bsd,ed->bse", x, dft_hid_im)
        y = torch.einsum("ts,bse->bte", dft_seq_re, a) - torch.einsum("ts,bse->bte", dft_seq_im, b)
        return y

    def _B_ref(x, wqkv, wo):
        B, S, D = x.shape
        H = 32; Dh = D // H; W = 256
        qkv = (lambda x, *d: x.permute(*d))((x @ wqkv).reshape(B, S, 3, H, Dh), 2, 0, 3, 1, 4)
        q, k, v = qkv[0], qkv[1], qkv[2]
        scores = torch.einsum("bhqd,bhkd->bhqk", q, k) * (Dh ** -0.5)
        idx = torch.arange(S)
        mask = (idx[:, None] - idx[None, :] >= 0) & (idx[:, None] - idx[None, :] < W)
        scores = torch.where(mask[None, None], scores, -1e9)
        p = _softmax(scores, axis=-1)
        o = torch.einsum("bhqk,bhkd->bhqd", p, v)
        return (lambda x, *d: x.permute(*d))(o, 0, 2, 1, 3).reshape(B, S, D) @ wo

    a = _A_ref(A_x, A_dft_seq_re, A_dft_seq_im, A_dft_hid_re, A_dft_hid_im)
    b = _B_ref(B_x, B_wqkv, B_wo)
    return torch.concatenate([a, b], axis=-1)
```

```python
import sys, struct, math

NAME = "concat_heads__spectral_fnet__sliding_block__prompt"

WS_Q = 0
WS_K = 2 << 20
WS_V = 4 << 20
WS_O = 6 << 20
WS_U = 8 << 20
U_ROW = 4224
U_G = 32 * U_ROW
U_SIZE = 16 * U_G
QSCALE = 0.25 * math.log2(math.e)

def f2u(x): return struct.unpack("<I", struct.pack("<f", x))[0]

class Asm:
    def __init__(self): self.L = []
    def __call__(self, s):
        for line in s.strip("\n").split("\n"):
            line = line.strip()
            if line: self.L.append("  " + line)
    def label(self, n): self.L.append(n + ":")
    def text(self): return "\n".join(self.L) + "\n"

def vr(b, n=1): return f"v{b}" if n == 1 else f"v[{b}:{b+n-1}]"
def sr(b, n=1): return f"s{b}" if n == 1 else f"s[{b}:{b+n-1}]"

def kernel_head(a, name):
    a.L.append(f".globl {name}")
    a.L.append(".p2align 8")
    a.L.append(f".type {name},@function")
    a.label(name)

def kd(name, vgpr, sgpr=96):
    acc = (vgpr + 3) // 4 * 4
    return f""".amdhsa_kernel {name}
  .amdhsa_next_free_vgpr {vgpr}
  .amdhsa_next_free_sgpr {sgpr}
  .amdhsa_accum_offset {acc}
  .amdhsa_group_segment_fixed_size 0
  .amdhsa_kernarg_size 88
  .amdhsa_user_sgpr_count 2
  .amdhsa_user_sgpr_kernarg_segment_ptr 1
  .amdhsa_system_sgpr_workgroup_id_x 1
.end_amdhsa_kernel
"""

def srd(a, d, lo, hi, size):
    a(f"""s_mov_b32 s{d}, {lo}
          s_mov_b32 s{d+1}, {hi}
          s_mov_b32 s{d+2}, {size}
          s_mov_b32 s{d+3}, 0x20000""")

MFMA = "v_mfma_f32_32x32x16_bf16"

NSLOT = 4
def gen_p1(a):
    P = "P1"
    kernel_head(a, "p1_kernel")
    sTYPE, sRB, sCQ, sW = 16, 17, 18, 19
    a(f"""s_cmp_ge_u32 s2, 256
          s_cbranch_scc1 {P}_end
          s_load_dwordx2 s[4:5], s[0:1], 0
          s_load_dwordx4 s[8:11], s[0:1], 24
          s_load_dwordx4 s[12:15], s[0:1], 40
          s_load_dwordx2 s[6:7], s[0:1], 80
          v_lshrrev_b32 v1, 6, v0
          v_and_b32 v0, 63, v0
          s_and_b32 s3, s2, 7
          v_readfirstlane_b32 s{sW}, v1
          s_lshr_b32 s{sTYPE}, s3, 1
          s_and_b32 s3, s3, 1
          s_lshl_b32 s3, s3, 3
          s_bfe_u32 s{sRB}, s2, 0x30003
          s_add_u32 s{sRB}, s{sRB}, s3
          s_lshr_b32 s{sCQ}, s2, 6
          s_cmp_lt_u32 s{sW}, 4
          s_cbranch_scc1 {P}_consumer""")
    sLW, sXB, sXSH, sWRS, sCB = 20, 21, 22, 23, 24
    sSOX, sSOW, sWST, sM0 = 25, 26, 27, 28
    SX, SWD = 32, 36
    a(f"""s_sub_u32 s{sLW}, s{sW}, 4
          s_cmp_eq_u32 s{sTYPE}, 3
          s_cselect_b32 s{sXSH}, 16, 10
          s_movk_i32 s3, 3072
          s_cselect_b32 s{sWRS}, 1024, s3
          ; xbase
          s_lshl_b32 s29, s{sRB}, 2
          s_add_u32 s29, s29, s{sLW}
          s_lshl_b32 s30, s29, 5
          s_cmp_eq_u32 s{sTYPE}, 3
          s_cselect_b32 s{sXB}, s29, s30
          s_lshl_b32 s{sXB}, s{sXB}, 10
          ; colbyte
          s_lshl_b32 s29, s{sCQ}, 7
          s_lshl_b32 s30, s{sTYPE}, 10
          s_lshl_b32 s31, s{sCQ}, 8
          s_add_u32 s30, s30, s31
          s_lshr_b32 s31, s{sLW}, 1
          s_lshl_b32 s31, s31, 7
          s_add_u32 s30, s30, s31
          s_cmp_eq_u32 s{sTYPE}, 3
          s_cselect_b32 s{sCB}, s29, s30
          s_lshl_b32 s{sWST}, s{sWRS}, 6
          s_lshl_b32 s{sM0}, s{sLW}, 12
          v_lshrrev_b32 v1, 3, v0        ; i>>3
          v_and_b32 v2, 7, v0            ; i&7
          v_lshrrev_b32 v3, 4, v0        ; i>>4
          """)
    for jx in range(4):
        a(f"""v_add_u32 v4, {8*jx}, v1
              v_lshlrev_b32 v4, s{sXSH}, v4
              v_add_u32 v5, {4*jx}, v3
              v_and_b32 v5, 7, v5
              v_xor_b32 v5, v5, v2
              v_lshl_add_u32 v4, v5, 4, v4
              v_add_u32 v{8+jx}, s{sXB}, v4""")
    a(f"""s_and_b32 s29, s{sLW}, 1
          s_lshl_b32 s29, s29, 5
          v_and_b32 v5, 1, v3
          v_lshlrev_b32 v5, 2, v5
          v_xor_b32 v5, v5, v2
          v_lshlrev_b32 v5, 4, v5
          v_add_u32 v5, s{sCB}, v5
          v_add_u32 v6, s29, v1""")
    for jw in range(4):
        a(f"""v_add_u32 v4, {8*jw}, v6
              v_mad_u32_u24 v{12+jw}, v4, s{sWRS}, v5""")
    a(f"""s_waitcnt lgkmcnt(0)
          s_cmp_eq_u32 s{sTYPE}, 3
          s_cselect_b32 s{SX}, s4, s12
          s_cselect_b32 s{SX+1}, s5, s13
          s_mov_b32 s{SX+2}, 0x200000
          s_mov_b32 s{SX+3}, 0x20000
          s_cmp_lt_u32 s{sLW}, 2
          s_cselect_b32 s8, s8, s10
          s_cselect_b32 s9, s9, s11
          s_cmp_eq_u32 s{sTYPE}, 3
          s_cselect_b32 s{SWD}, s8, s14
          s_cselect_b32 s{SWD+1}, s9, s15
          s_mov_b32 s29, 0x180000
          s_cselect_b32 s{SWD+2}, 0x80000, s29
          s_mov_b32 s{SWD+3}, 0x20000
          s_mov_b32 s{sSOX}, 0
          s_mov_b32 s{sSOW}, 0""")
    def issue_stage(slot):
        for jx in range(4):
            a(f"""s_add_u32 m0, s{sM0}, {slot*32768 + jx*1024}
                  s_nop 0
                  buffer_load_dwordx4 v{8+jx}, s[{SX}:{SX+3}], s{sSOX} offen lds""")
        for jw in range(4):
            a(f"""s_add_u32 m0, s{sM0}, {slot*32768 + 16384 + jw*1024}
                  s_nop 0
                  buffer_load_dwordx4 v{12+jw}, s[{SWD}:{SWD+3}], s{sSOW} offen lds""")
        a(f"""s_add_u32 s{sSOX}, s{sSOX}, 128
              s_add_u32 s{sSOW}, s{sSOW}, s{sWST}""")
    issued = 0
    for st in range(NSLOT):
        issue_stage(st); issued += 1
    for i in range(8):
        a(f"s_waitcnt vmcnt({8*(issued-(i+1))})")
        a("s_barrier")
        if i >= 1 and i - 1 + NSLOT <= 7:
            issue_stage((i-1) % NSLOT); issued += 1
    a("s_endpgm")

    a.label(f"{P}_consumer")
    sWM, sWN, sIT, sDEL = 20, 21, 22, 23
    sMASK = 24
    XA, WA, CPM = 8, 12, 13
    FR = 32
    ACC = 64
    CR, CI, NCI = 128, 136, 144
    def X(b, i): return FR + 16*b + 4*i
    def W(b, j): return FR + 16*b + 8 + 4*j
    def AC(i, j): return ACC + 16*(2*i + j)
    a(f"""s_and_b32 s{sWM}, s{sW}, 1
          s_lshr_b32 s{sWN}, s{sW}, 1
          v_and_b32 v1, 31, v0           ; l%32
          v_lshrrev_b32 v2, 5, v0        ; h
          v_bfe_u32 v3, v0, 1, 3         ; (l>>1)&7
          v_xor_b32 v3, v3, v2           ; h ^ f
          s_lshl_b32 s3, s{sWM}, 13
          v_lshl_add_u32 v4, v1, 7, s3
          """)
    for kk in range(4):
        a(f"""v_xor_b32 v5, {2*kk}, v3
              v_lshl_add_u32 v{XA+kk}, v5, 4, v4""")
    a(f"""v_bfe_u32 v3, v0, 2, 2          ; r
          v_lshl_add_u32 v4, v2, 3, v3    ; 8h + r
          v_lshlrev_b32 v4, 7, v4
          v_bfe_u32 v5, v0, 4, 1          ; G%2
          v_lshlrev_b32 v5, 1, v5
          v_bfe_u32 v6, v0, 1, 1          ; c>>1
          v_add_u32 v5, v5, v6
          s_lshl_b32 s3, s{sWN}, 2
          v_add_u32 v5, s3, v5            ; chunk
          v_bfe_u32 v6, v0, 3, 1          ; (r>>1)&1
          v_lshlrev_b32 v6, 2, v6
          v_xor_b32 v5, v5, v6
          v_lshl_add_u32 v4, v5, 4, v4
          v_and_b32 v6, 1, v0
          v_lshl_add_u32 v4, v6, 3, v4
          v_add_u32 v{WA}, 16384, v4
          v_mov_b32 v{CPM}, 0xbf803f80
          """)
    for r in range(64):
        a(f"v_mov_b32 v{ACC+r}, 0")
    a(f"""s_lshl_b32 s3, s{sCQ}, 2
          s_add_u32 s3, s3, s{sWN}
          s_lshl_b32 s3, s3, 2
          s_add_u32 s3, s3, s{sTYPE}
          s_cmp_eq_u32 s3, 3
          s_cselect_b32 s{sMASK}, 1, 0
          s_mov_b32 s{sMASK+1}, s{sMASK}
          s_cmp_lg_u32 s{sTYPE}, 3
          s_cbranch_scc1 {P}_noconst""")
    a(f"""v_lshlrev_b32 v3, 2, v2
          v_mul_u32_u24 v3, v3, v1       ; t1*4h""")
    for m in range(2):
        for j in range(8):
            cj = 16*m + (j % 4) + 8*(j // 4)
            a(f"""v_mad_u32_u24 v{16+j}, v1, {cj}, v3
                  v_and_b32 v{16+j}, 31, v{16+j}
                  v_cvt_f32_u32 v{16+j}, v{16+j}
                  v_mul_f32 v{16+j}, 0x3d000000, v{16+j}""")
        for j in range(8):
            a(f"v_cos_f32 v{24+j}, v{16+j}")
        for j in range(8):
            a(f"v_sin_f32 v{16+j}, v{16+j}")
        a("s_nop 0")
        for j in range(4):
            a(f"""v_cvt_pk_bf16_f32 v{CR+4*m+j}, v{24+2*j}, v{25+2*j}
                  v_cvt_pk_bf16_f32 v{CI+4*m+j}, -v{16+2*j}, -v{17+2*j}
                  v_cvt_pk_bf16_f32 v{NCI+4*m+j}, v{16+2*j}, v{17+2*j}""")
    a.label(f"{P}_noconst")
    def reads(kk, b):
        for i in range(2):
            a(f"ds_read_b128 {vr(X(b,i),4)}, v{XA+kk} offset:{i*4096}")
        for j in range(2):
            for q in range(2):
                a(f"ds_read_b64_tr_b16 {vr(W(b,j)+2*q,2)}, v{WA} offset:{j*8192 + kk*2048 + q*512}")
    def mfmas(b, variant):
        if variant == "VA":
            for t in range(4):
                a(f"v_cndmask_b32 v{W(b,1)+t}, v{W(b,1)+t}, v{CPM}, s[{sMASK}:{sMASK+1}]")
        for j in range(2):
            for i in range(2):
                if variant == "QK":
                    a(f"{MFMA} {vr(AC(i,j),16)}, {vr(W(b,j),4)}, {vr(X(b,i),4)}, {vr(AC(i,j),16)}")
                else:
                    a(f"{MFMA} {vr(AC(i,j),16)}, {vr(X(b,i),4)}, {vr(W(b,j),4)}, {vr(AC(i,j),16)}")
    a(f"""s_mov_b32 s{sIT}, 0
          s_mov_b32 s29, 32768
          s_waitcnt lgkmcnt(0)
          s_barrier""")
    reads(0, 0)
    a(f"""s_cmp_ge_u32 s{sTYPE}, 2
          s_cbranch_scc1 {P}_loopVA""")
    for variant in ("QK", "VA"):
        a.label(f"{P}_loop{variant}")
        for kk in range(3):
            reads(kk+1, (kk+1) % 2)
            a("s_waitcnt lgkmcnt(6)")
            mfmas(kk % 2, variant)
        a(f"""s_add_u32 s{sIT}, s{sIT}, 1
              s_cmp_eq_u32 s{sIT}, {NSLOT}
              s_cselect_b32 s{sDEL}, {-(NSLOT-1)*32768}, s29
              s_cmp_eq_u32 s{sIT}, 8
              s_waitcnt lgkmcnt(0)
              s_cbranch_scc1 {P}_last{variant}
              s_barrier""")
        for kk in range(4):
            a(f"v_add_u32 v{XA+kk}, s{sDEL}, v{XA+kk}")
        a(f"v_add_u32 v{WA}, s{sDEL}, v{WA}")
        reads(0, 0)
        mfmas(1, variant)
        a(f"s_branch {P}_loop{variant}")
        a.label(f"{P}_last{variant}")
        mfmas(1, variant)
        if variant == "QK":
            a(f"s_branch {P}_epiQK")
    SO = 32
    a(f"""s_cmp_eq_u32 s{sTYPE}, 3
          s_cbranch_scc1 {P}_epiA""")
    a(f"""s_add_u32 s{SO}, s6, {WS_V}
          s_addc_u32 s{SO+1}, s7, 0
          s_mov_b32 s{SO+2}, 0x200000
          s_mov_b32 s{SO+3}, 0x20000
          s_lshl_b32 s3, s{sCQ}, 3
          s_lshl_b32 s26, s{sWN}, 1
          s_add_u32 s3, s3, s26
          s_lshl_b32 s3, s3, 16
          s_lshl_b32 s26, s{sRB}, 2
          s_lshl_b32 s27, s{sWM}, 1
          s_add_u32 s26, s26, s27
          s_lshl_b32 s26, s26, 10
          s_add_u32 s3, s3, s26
          v_bfe_u32 v1, v0, 4, 1
          v_lshlrev_b32 v1, 16, v1
          v_lshrrev_b32 v2, 5, v0
          v_lshl_add_u32 v1, v2, 8, v1
          v_and_b32 v2, 15, v0
          v_lshl_add_u32 v1, v2, 4, v1
          v_add_u32 v1, s3, v1
          s_mov_b32 s26, {4*65536}
          s_nop 7""")
    for i in range(2):
        for j in range(2):
            for mm in range(2):
                d = FR + 8*(2*i+j) + 4*mm
                for t in range(4):
                    a(f"v_cvt_pk_bf16_f32 v{d+t}, v{AC(i,j)+8*mm+2*t}, v{AC(i,j)+8*mm+2*t+1}")
                so = "0" if j == 0 else "s26"
                a(f"buffer_store_dwordx4 {vr(d,4)}, v1, s[{SO}:{SO+3}], {so} offen offset:{i*1024+mm*512}")
    a("s_endpgm")
    a.label(f"{P}_epiQK")
    a(f"""s_lshl_b32 s3, s{sTYPE}, 21
          s_add_u32 s{SO}, s6, s3
          s_addc_u32 s{SO+1}, s7, 0
          s_mov_b32 s{SO+2}, 0x200000
          s_mov_b32 s{SO+3}, 0x20000
          s_lshl_b32 s3, s{sCQ}, 3
          s_lshl_b32 s26, s{sWN}, 1
          s_add_u32 s3, s3, s26
          s_lshl_b32 s3, s3, 16
          s_lshl_b32 s26, s{sRB}, 2
          s_lshl_b32 s27, s{sWM}, 1
          s_add_u32 s26, s26, s27
          s_lshl_b32 s26, s26, 10
          s_add_u32 s3, s3, s26
          v_lshl_add_u32 v1, v0, 4, s3
          s_mov_b32 s26, {1*65536}
          s_mov_b32 s27, {4*65536}
          s_mov_b32 s28, {5*65536}
          s_cmp_eq_u32 s{sTYPE}, 0
          s_mov_b32 s3, {f2u(QSCALE):#x}
          s_cselect_b32 s30, s3, 1.0
          s_mov_b32 s31, s30
          s_nop 4""")
    for i in range(2):
        for j in range(2):
            for t in range(8):
                a(f"v_pk_mul_f32 {vr(AC(i,j)+2*t,2)}, {vr(AC(i,j)+2*t,2)}, s[30:31]")
            for mm in range(2):
                d = FR + 8*(2*i+j) + 4*mm
                for t in range(4):
                    a(f"v_cvt_pk_bf16_f32 v{d+t}, v{AC(i,j)+8*mm+2*t}, v{AC(i,j)+8*mm+2*t+1}")
                so = ["0", "s26", "s27", "s28"][2*j+mm]
                a(f"buffer_store_dwordx4 {vr(d,4)}, v1, s[{SO}:{SO+3}], {so} offen offset:{i*1024}")
    a("s_endpgm")
    a.label(f"{P}_epiA")
    PK = FR
    SV = 152
    a(f"""s_add_u32 s{SO}, s6, {WS_U}
          s_addc_u32 s{SO+1}, s7, 0
          s_mov_b32 s{SO+2}, {U_SIZE}
          s_mov_b32 s{SO+3}, 0x20000
          s_mul_i32 s3, s{sRB}, {U_G}
          s_lshl_b32 s26, s{sCQ}, 10
          s_add_u32 s3, s3, s26
          s_lshl_b32 s26, s{sWN}, 9
          s_add_u32 s3, s3, s26
          s_lshl_b32 s26, s{sWM}, 3
          s_add_u32 s3, s3, s26
          v_and_b32 v1, 31, v0
          v_lshl_add_u32 v1, v1, 4, s3
          v_lshrrev_b32 v2, 5, v0
          s_movk_i32 s26, {4*U_ROW}
          v_mad_u32_u24 v1, v2, s26, v1
          s_nop 7""")
    for p in range(2):
        for j in range(2):
            for t in range(8):
                a(f"v_cvt_pk_bf16_f32 v{PK+16*p+8*j+t}, v{AC(p,j)+2*t}, v{AC(p,j)+2*t+1}")
    a(f"""s_cmp_eq_u32 s{sMASK}, 0
          s_cbranch_scc1 {P}_nosp1""")
    for p in range(2):
        for t in range(8):
            a(f"v_mov_b32 v{SV+8*p+t}, v{PK+16*p+8+t}")
            a(f"v_cndmask_b32 v{PK+16*p+8+t}, v{PK+16*p+8+t}, 0, s[{sMASK}:{sMASK+1}]")
    a.label(f"{P}_nosp1")
    a("s_nop 1")
    def step1(p, aa, bb, with_b=True):
        a(f"{MFMA} {vr(AC(p,0),16)}, {vr(CR,4)}, {vr(aa,4)}, 0")
        a(f"{MFMA} {vr(AC(p,1),16)}, {vr(CI,4)}, {vr(aa,4)}, 0")
        a(f"{MFMA} {vr(AC(p,0),16)}, {vr(CR+4,4)}, {vr(aa+4,4)}, {vr(AC(p,0),16)}")
        a(f"{MFMA} {vr(AC(p,1),16)}, {vr(CI+4,4)}, {vr(aa+4,4)}, {vr(AC(p,1),16)}")
        if with_b:
            for m in range(2):
                a(f"{MFMA} {vr(AC(p,0),16)}, {vr(NCI+4*m,4)}, {vr(bb+4*m,4)}, {vr(AC(p,0),16)}")
                a(f"{MFMA} {vr(AC(p,1),16)}, {vr(CR+4*m,4)}, {vr(bb+4*m,4)}, {vr(AC(p,1),16)}")
    def ustore(voff):
        a("s_nop 15")
        for r in range(16):
            d = PK + 2*r
            t1lo = 8*(r//4) + (r % 4)
            a(f"""v_cvt_pk_bf16_f32 v{d}, v{AC(0,0)+r}, v{AC(1,0)+r}
                  v_cvt_pk_bf16_f32 v{d+1}, v{AC(0,1)+r}, v{AC(1,1)+r}
                  s_mov_b32 s26, {t1lo*U_ROW}
                  buffer_store_dwordx2 {vr(d,2)}, v{voff}, s[{SO}:{SO+3}], s26 offen""")
    for p in range(2):
        step1(p, PK+16*p, PK+16*p+8)
    ustore(1)
    a(f"""s_cmp_eq_u32 s{sMASK}, 0
          s_cbranch_scc1 {P}_end""")
    for p in range(2):
        step1(p, SV+8*p, None, with_b=False)
    a(f"""v_add_u32 v1, {256*16}, v1
          s_mov_b64 exec, s[{sMASK}:{sMASK+1}]""")
    ustore(1)
    a.label(f"{P}_end")
    a("s_endpgm")
    return kd("p1_kernel", 168)

def diag_mask(r):
    g, i = r // 4, r % 4
    lo = (0xffffffff << (8*g+i)) & 0xffffffff
    hi = (0xffffffff << (8*g+i+4)) & 0xffffffff
    return lo, hi

def gen_p2(a):
    P = "P2"
    kernel_head(a, "p2_kernel")
    sHD, sR, sW = 16, 17, 18
    SK, SV_, SQ, SO = 32, 36, 40, 44
    a(f"""s_cmp_ge_u32 s2, 256
          s_cbranch_scc1 {P}_end
          s_load_dwordx4 s[8:11], s[0:1], 8
          s_load_dwordx2 s[4:5], s[0:1], 64      ; out
          s_load_dwordx2 s[6:7], s[0:1], 80      ; ws
          v_lshrrev_b32 v1, 6, v0
          v_and_b32 v0, 63, v0
          s_and_b32 s3, s2, 7
          v_readfirstlane_b32 s{sW}, v1
          s_lshl_b32 s3, s3, 2
          s_bfe_u32 s{sHD}, s2, 0x20003
          s_add_u32 s{sHD}, s{sHD}, s3
          s_lshr_b32 s{sR}, s2, 5
          v_lshlrev_b32 v1, 4, v0               ; lane*16
          s_lshl_b32 s3, s{sHD}, 16
          s_waitcnt lgkmcnt(0)
          s_add_u32 s12, s6, s3
          s_addc_u32 s13, s7, 0
          """)
    for (S, off) in ((SQ, WS_Q), (SK, WS_K), (SV_, WS_V), (SO, WS_O)):
        a(f"""s_add_u32 s{S}, s12, {off}
              s_addc_u32 s{S+1}, s13, 0
              s_mov_b32 s{S+2}, 0x10000
              s_mov_b32 s{S+3}, 0x20000""")
    QF = 4
    a(f"""s_lshl_b32 s19, s{sR}, 3
          s_add_u32 s20, s19, s{sW}            ; qb
          s_lshl_b32 s20, s20, 10
          buffer_load_dwordx4 {vr(QF,4)}, v1, s[{SQ}:{SQ+3}], s20 offen
          s_lshl_b32 s21, s{sW}, 1
          s_add_u32 s22, s19, s21              ; 8R + 2w
          s_cmp_lt_u32 s22, 8
          s_cbranch_scc1 {P}_nodma
          s_sub_u32 s22, s22, 8
          s_lshl_b32 s22, s22, 10
          s_lshl_b32 m0, s21, 10
          s_nop 0
          buffer_load_dwordx4 v1, s[{SK}:{SK+3}], s22 offen lds
          buffer_load_dwordx4 v1, s[{SK}:{SK+3}], s22 offen offset:1024 lds
          s_add_u32 m0, m0, 16384
          s_nop 0
          buffer_load_dwordx4 v1, s[{SV_}:{SV_+3}], s22 offen lds
          buffer_load_dwordx4 v1, s[{SV_}:{SV_+3}], s22 offen offset:1024 lds""")
    a.label(f"{P}_nodma")
    a(f"""s_cmp_ge_u32 s{sW}, 4
          s_cbranch_scc1 {P}_att""")
    SU, SMR, SMI, SOUT = 48, 52, 56, 60
    UF, MR, MI, MF, A2 = 16, 48, 64, 80, 112
    a(f"""s_add_u32 s{SU}, s6, {WS_U}
          s_addc_u32 s{SU+1}, s7, 0
          s_mov_b32 s{SU+2}, {U_SIZE}
          s_mov_b32 s{SU+3}, 0x20000""")
    srd(a, SMR, "s8", "s9", 0x800000)
    srd(a, SMI, "s10", "s11", 0x800000)
    srd(a, SOUT, "s4", "s5", 0x400000)
    a(f"""s_and_b32 s21, s{sW}, 1              ; ct
          s_lshr_b32 s22, s{sW}, 1             ; nt
          s_lshl_b32 s23, s{sR}, 6
          s_lshl_b32 s24, s21, 5
          s_add_u32 s23, s23, s24
          v_and_b32 v2, 0x13, v0
          v_bfe_u32 v3, v0, 2, 1
          v_lshl_or_b32 v2, v3, 3, v2
          v_bfe_u32 v3, v0, 3, 1
          v_lshl_or_b32 v2, v3, 2, v2
          v_add_u32 v2, s23, v2                ; c
          v_sub_u32 v3, 512, v2                ; 512-c
          s_sub_u32 s24, 32, s{sHD}
          s_and_b32 s24, s24, 31
          s_cmp_lt_u32 s{sR}, 4
          s_cselect_b32 s24, s{sHD}, s24       ; t1x
          s_cselect_b32 s25, 0x80008000, 0
          s_cselect_b64 vcc, -1, 0
          v_cndmask_b32 v2, v3, v2, vcc        ; e
          s_mul_i32 s24, s24, {U_ROW}
          v_lshl_add_u32 v2, v2, 4, s24
          v_lshrrev_b32 v3, 5, v0              ; h
          s_mov_b32 s26, {8*U_G}
          v_mad_u32_u24 v2, v3, s26, v2
          ; M address: row t = t1 + 32*(32nt + l%32), byte t*4096 + h*64
          v_and_b32 v8, 31, v0
          s_lshl_b32 s26, s22, 5
          v_add_u32 v8, s26, v8
          v_lshl_add_u32 v8, v8, 5, s{sHD}     ; t
          v_lshlrev_b32 v9, 12, v8
          v_lshl_add_u32 v9, v3, 6, v9
          """)
    for cc in range(4):
        a(f"buffer_load_dwordx4 {vr(MR+4*cc,4)}, v9, s[{SMR}:{SMR+3}], 0 offen offset:{16*cc}")
        a(f"buffer_load_dwordx4 {vr(MI+4*cc,4)}, v9, s[{SMI}:{SMI+3}], 0 offen offset:{16*cc}")
    for js in range(8):
        a(f"""s_mov_b32 s26, {js*U_G}
              buffer_load_dwordx4 {vr(UF+4*js,4)}, v2, s[{SU}:{SU+3}], s26 offen""")
    a(f"""; out address: t*2048 + (c0 + 8h)*2
          v_lshlrev_b32 v10, 11, v8
          v_lshl_add_u32 v10, v3, 4, v10
          s_lshl_b32 s23, s23, 1
          v_add_u32 v10, s23, v10
          s_waitcnt vmcnt(8)""")
    for cc in range(4):
        for b in range(2):
            f = MF + 4*(2*cc+b)
            a(f"""v_mov_b32 v{f}, v{MR+4*cc+2*b}
                  v_xor_b32 v{f+1}, s25, v{MI+4*cc+2*b}
                  v_mov_b32 v{f+2}, v{MR+4*cc+2*b+1}
                  v_xor_b32 v{f+3}, s25, v{MI+4*cc+2*b+1}""")
    for js in range(8):
        a(f"s_waitcnt vmcnt({7-js})")
        c = "0" if js == 0 else vr(A2,16)
        a(f"{MFMA} {vr(A2,16)}, {vr(UF+4*js,4)}, {vr(MF+4*js,4)}, {c}")
    a("s_nop 15")
    for mm in range(2):
        for t in range(4):
            a(f"v_cvt_pk_bf16_f32 v{UF+4*mm+t}, v{A2+8*mm+2*t}, v{A2+8*mm+2*t+1}")
        a(f"buffer_store_dwordx4 {vr(UF+4*mm,4)}, v10, s[{SOUT}:{SOUT+3}], 0 offen offset:{32*mm}")
    a.label(f"{P}_att")
    KA, VA_, NINF, MX = 2, 3, 8, 9
    KF, VF, S, PP, O, CN, CD, CF = 12, 16, 32, 24, 48, 64, 80, 96
    sVM = 24
    a(f"""s_lshl_b32 s21, s{sW}, 10
          v_add_u32 v{KA}, s21, v1
          v_lshrrev_b32 v10, 5, v0
          v_and_b32 v11, 15, v0
          v_lshlrev_b32 v11, 4, v11
          v_lshl_add_u32 v11, v10, 8, v11
          s_add_u32 s21, s21, 16384
          v_add_u32 v{VA_}, s21, v11
          v_mov_b32 v{NINF}, 0xff800000
          s_mov_b32 s{sVM}, 0x0000ffff
          s_mov_b32 s{sVM+1}, 0x0000ffff
          s_mov_b32 s26, 0x00110000
          s_mov_b32 s27, 0x00110000
          v_mov_b32 v10, 0x3f803f80""")
    for t in range(8):
        a(f"v_cndmask_b32 v{VF+t}, 0, v10, s[26:27]")
    sNF, sI = 28, 29
    a(f"""s_cmp_gt_u32 s{sR}, 0
          s_cselect_b32 s{sNF}, 7, s{sW}
          s_sub_u32 s30, 8, s{sNF}
          s_lshl_b32 s30, s30, 10
          s_waitcnt vmcnt(0)
          s_barrier""")
    def masks(val, which):
        for r in range(16):
            lo, hi = diag_mask(r)
            sp = 30 + 2*(r % 2) if False else (64 + 2*(r % 4))
            a(f"""s_mov_b32 s{sp}, {lo:#x}
                  s_mov_b32 s{sp+1}, {hi:#x}""")
            if "d" in which: a(f"v_cndmask_b32 v{CD+r}, v{NINF}, {val}, s[{sp}:{sp+1}]")
            if "f" in which: a(f"v_cndmask_b32 v{CF+r}, {val}, v{NINF}, s[{sp}:{sp+1}]")
    def maxblk(first):
        a("s_nop 11")
        if first:
            a(f"v_max_f32 v{MX}, v{S}, v{S+1}")
            st = 2
        else:
            st = 0
        for t in range(st, 16, 2):
            a(f"v_max3_f32 v{MX}, v{S+t}, v{S+t+1}, v{MX}")
    a.label(f"{P}_slow")
    masks("0", "df")
    a(f"""ds_read_b128 {vr(KF,4)}, v{KA} offset:{8*1024}
          s_waitcnt lgkmcnt(0)
          {MFMA} {vr(S,16)}, {vr(KF,4)}, {vr(QF,4)}, {vr(CD,16)}""")
    maxblk(True)
    a(f"""s_cmp_eq_u32 s{sR}, 0
          s_cbranch_scc1 {P}_s1nofar
          ds_read_b128 {vr(KF,4)}, v{KA}
          s_waitcnt lgkmcnt(0)
          {MFMA} {vr(S,16)}, {vr(KF,4)}, {vr(QF,4)}, {vr(CF,16)}""")
    maxblk(False)
    a.label(f"{P}_s1nofar")
    a(f"""s_mov_b32 s{sI}, s{sNF}
          v_add_u32 v10, s30, v{KA}
          s_cmp_eq_u32 s{sI}, 0
          s_cbranch_scc1 {P}_s1done""")
    a.label(f"{P}_s1loop")
    a(f"""ds_read_b128 {vr(KF,4)}, v10
          v_add_u32 v10, 1024, v10
          s_waitcnt lgkmcnt(0)
          {MFMA} {vr(S,16)}, {vr(KF,4)}, {vr(QF,4)}, 0""")
    maxblk(False)
    a(f"""s_sub_u32 s{sI}, s{sI}, 1
          s_cmp_lg_u32 s{sI}, 0
          s_cbranch_scc1 {P}_s1loop""")
    a.label(f"{P}_s1done")
    a(f"""v_mov_b32 v10, v{MX}
          s_nop 1
          v_permlane32_swap_b32 v10, v{MX}
          s_nop 1
          v_max_f32 v{MX}, v{MX}, v10
          v_sub_f32 v{MX}, 0, v{MX}""")
    masks(f"v{MX}", "df")
    for r in range(16):
        a(f"v_mov_b32 v{CN+r}, v{MX}")
    def pvblk(kaddr, vaddr, off, C, first):
        a(f"""ds_read_b128 {vr(KF,4)}, v{kaddr} offset:{off}
              s_mov_b64 exec, s[{sVM}:{sVM+1}]
              ds_read_b128 {vr(VF,4)}, v{vaddr} offset:{off}
              ds_read_b128 {vr(VF+4,4)}, v{vaddr} offset:{off+512}
              s_mov_b64 exec, -1
              s_waitcnt lgkmcnt(0)
              {MFMA} {vr(S,16)}, {vr(KF,4)}, {vr(QF,4)}, {vr(C,16)}
              s_nop 11""")
        for r in range(16):
            a(f"v_exp_f32 v{S+r}, v{S+r}")
        for t in range(8):
            a(f"v_cvt_pk_bf16_f32 v{PP+t}, v{S+2*t}, v{S+2*t+1}")
        a("s_nop 1")
        c = "0" if first else vr(O,16)
        a(f"{MFMA} {vr(O,16)}, {vr(VF,4)}, {vr(PP,4)}, {c}")
        a(f"{MFMA} {vr(O,16)}, {vr(VF+4,4)}, {vr(PP+4,4)}, {vr(O,16)}")
    pvblk(KA, VA_, 8*1024, CD, True)
    a(f"""s_cmp_eq_u32 s{sR}, 0
          s_cbranch_scc1 {P}_s2nofar""")
    pvblk(KA, VA_, 0, CF, False)
    a.label(f"{P}_s2nofar")
    a(f"""s_mov_b32 s{sI}, s{sNF}
          v_add_u32 v10, s30, v{KA}
          v_add_u32 v11, s30, v{VA_}
          s_cmp_eq_u32 s{sI}, 0
          s_cbranch_scc1 {P}_s2done""")
    a.label(f"{P}_s2loop")
    pvblk(10, 11, 0, CN, False)
    a(f"""v_add_u32 v10, 1024, v10
          v_add_u32 v11, 1024, v11
          s_sub_u32 s{sI}, s{sI}, 1
          s_cmp_lg_u32 s{sI}, 0
          s_cbranch_scc1 {P}_s2loop""")
    a.label(f"{P}_s2done")
    a(f"""s_nop 15
          v_rcp_f32 v10, v{O+8}
          s_nop 0""")
    for t in range(8):
        a(f"v_mul_f32 v{O+t}, v10, v{O+t}")
    for t in range(4):
        a(f"v_cvt_pk_bf16_f32 v{PP+t}, v{O+2*t}, v{O+2*t+1}")
    a(f"buffer_store_dwordx4 {vr(PP,4)}, v1, s[{SO}:{SO+3}], s20 offen")
    a.label(f"{P}_end")
    a("s_endpgm")
    return kd("p2_kernel", 128)

def gen_p3(a):
    P = "P3"
    kernel_head(a, "p3_kernel")
    sTB, sNB, sW = 16, 17, 18
    SOo, SWO, SOUT = 32, 36, 40
    a(f"""s_cmp_ge_u32 s2, 256
          s_cbranch_scc1 {P}_end
          s_load_dwordx4 s[8:11], s[0:1], 56
          s_load_dwordx2 s[6:7], s[0:1], 80      ; ws
          v_lshrrev_b32 v1, 6, v0
          v_and_b32 v0, 63, v0
          s_and_b32 s3, s2, 7
          v_readfirstlane_b32 s{sW}, v1
          s_lshl_b32 s3, s3, 2
          s_bfe_u32 s{sTB}, s2, 0x20003
          s_add_u32 s{sTB}, s{sTB}, s3
          s_lshr_b32 s{sNB}, s2, 5               ; n block 0..7
          s_lshl_b32 s19, s{sW}, 17
          s_lshl_b32 s20, s{sTB}, 11
          s_add_u32 s19, s19, s20
          v_lshl_add_u32 v1, v0, 4, s19
          v_add_u32 v2, 0x10000, v1
          v_lshrrev_b32 v3, 3, v0
          s_lshl_b32 s19, s{sW}, 5
          v_add_u32 v3, s19, v3
          v_lshlrev_b32 v3, 10, v3
          v_and_b32 v4, 7, v0
          v_bfe_u32 v5, v0, 4, 1
          v_lshlrev_b32 v5, 2, v5
          v_xor_b32 v4, v4, v5
          v_lshl_add_u32 v3, v4, 4, v3
          s_lshl_b32 s19, s{sNB}, 7
          v_add_u32 v3, s19, v3
          s_lshl_b32 s21, s{sW}, 12
          s_waitcnt lgkmcnt(0)
          s_add_u32 s{SOo}, s6, {WS_O}
          s_addc_u32 s{SOo+1}, s7, 0
          s_mov_b32 s{SOo+2}, 0x200000
          s_mov_b32 s{SOo+3}, 0x20000""")
    srd(a, SWO, "s8", "s9", 0x80000)
    srd(a, SOUT, "s10", "s11", 0x400000)
    for qd in range(4):
        a(f"""s_mov_b32 s22, {qd*8*65536}
              s_add_u32 m0, s21, {qd*16384}
              s_nop 0
              buffer_load_dwordx4 v1, s[{SOo}:{SOo+3}], s22 offen lds
              buffer_load_dwordx4 v1, s[{SOo}:{SOo+3}], s22 offen offset:1024 lds
              s_add_u32 m0, s21, {qd*16384+2048}
              s_nop 0
              buffer_load_dwordx4 v2, s[{SOo}:{SOo+3}], s22 offen lds
              buffer_load_dwordx4 v2, s[{SOo}:{SOo+3}], s22 offen offset:1024 lds""")
        for j in range(4):
            a(f"""s_mov_b32 s22, {(qd*128+8*j)*1024}
                  s_add_u32 m0, s21, {65536 + qd*16384 + j*1024}
                  s_nop 0
                  buffer_load_dwordx4 v3, s[{SWO}:{SWO+3}], s22 offen lds""")
    OA, WA, ACC, FR = 8, 9, 16, 32
    a(f"""s_and_b32 s19, s{sW}, 1
          s_lshr_b32 s20, s{sW}, 1
          s_lshl_b32 s3, s19, 10
          v_lshl_add_u32 v{OA}, v0, 4, s3
          v_lshrrev_b32 v2, 5, v0         ; h
          v_bfe_u32 v3, v0, 2, 2          ; r
          v_lshl_add_u32 v4, v2, 2, v3    ; 4h + r
          v_lshlrev_b32 v4, 7, v4
          v_bfe_u32 v5, v0, 4, 1          ; G%2
          v_lshlrev_b32 v5, 1, v5
          v_and_b32 v6, 1, v0
          v_add_u32 v5, v5, v6
          s_lshl_b32 s3, s20, 2
          v_add_u32 v5, s3, v5
          v_bfe_u32 v6, v0, 3, 1
          v_lshlrev_b32 v6, 2, v6
          v_xor_b32 v5, v5, v6
          v_lshl_add_u32 v4, v5, 4, v4
          v_bfe_u32 v6, v0, 1, 1
          v_lshl_add_u32 v4, v6, 3, v4
          v_add_u32 v{WA}, 65536, v4
          v_and_b32 v10, 31, v0
          s_lshl_b32 s3, s{sTB}, 6
          s_lshl_b32 s19, s19, 5
          s_add_u32 s3, s3, s19
          v_add_u32 v10, s3, v10
          v_lshlrev_b32 v10, 11, v10
          v_lshl_add_u32 v10, v2, 4, v10
          s_lshl_b32 s3, s{sNB}, 7
          s_lshl_b32 s20, s20, 6
          s_add_u32 s3, s3, s20
          s_add_u32 s3, s3, 1024
          v_add_u32 v10, s3, v10""")
    for qd in range(4):
        a(f"""s_waitcnt vmcnt({8*(3-qd)})
              s_barrier""")
        for k in range(8):
            hd = 8*qd + k
            f = FR + 8*k
            a(f"ds_read_b128 {vr(f,4)}, v{OA} offset:{hd*2048}")
            for q in range(2):
                a(f"ds_read_b64_tr_b16 {vr(f+4+2*q,2)}, v{WA} offset:{hd*2048 + q*1024}")
        for k in range(8):
            f = FR + 8*k
            a(f"s_waitcnt lgkmcnt({min(15,3*(7-k))})")
            c = "0" if (qd == 0 and k == 0) else vr(ACC,16)
            a(f"{MFMA} {vr(ACC,16)}, {vr(f+4,4)}, {vr(f,4)}, {c}")
    a("s_nop 15")
    for mm in range(2):
        for t in range(4):
            a(f"v_cvt_pk_bf16_f32 v{FR+4*mm+t}, v{ACC+8*mm+2*t}, v{ACC+8*mm+2*t+1}")
        a(f"buffer_store_dwordx4 {vr(FR+4*mm,4)}, v10, s[{SOUT}:{SOUT+3}], 0 offen offset:{32*mm}")
    a.label(f"{P}_end")
    a("s_endpgm")
    return kd("p3_kernel", 96)

def main():
    a = Asm()
    hdr = f"""; concat_heads__spectral_fnet__sliding_block__prompt : generated by gen.py (hand-written generator)
; @launch kernel=p1_kernel grid=(256,1,1) block=(512,1,1) lds={NSLOT*32768}
; @launch kernel=p2_kernel grid=(256,1,1) block=(512,1,1) lds=32768
; @launch kernel=p3_kernel grid=(256,1,1) block=(256,1,1) lds=131072
.amdgcn_target "amdgcn-amd-amdhsa--gfx950"
.text
"""
    kds = [gen_p1(a), gen_p2(a), gen_p3(a)]
    out = hdr + a.text() + '.section .rodata,"a"\n' + "".join(".p2align 6\n" + k for k in kds)
    path = sys.argv[1] if len(sys.argv) > 1 else f"cdna_kernels/{NAME}.s"
    open(path, "w").write(out)

main()
```

```python
import sys, struct, math

NAME = "concat_heads__spectral_fnet__sliding_block__prompt"
KN = NAME + "_kernel"
WS_Q, WS_K, WS_V, WS_O, WS_U = 0, 2 << 20, 4 << 20, 6 << 20, 8 << 20
WS_F1, WS_F2 = 12 << 20, 13 << 20
U_ROW = 4224
U_GP = 16 * U_ROW
U_SIZE = 32 * U_GP
QSCALE = 0.25 * math.log2(math.e)
STAMP = "--stamp" in sys.argv
FORCE_SLOW = "--slow" in sys.argv
ST = "sc1"
LD = "sc1"
SPIN_MAX = 400000

def f2u(x): return struct.unpack("<I", struct.pack("<f", x))[0]

class Asm:
    def __init__(self): self.L = []
    def __call__(self, s):
        for line in s.strip("\n").split("\n"):
            line = line.strip()
            if line: self.L.append("  " + line)
    def label(self, n): self.L.append(n + ":")
    def text(self): return "\n".join(self.L) + "\n"

def vr(b, n=1): return f"v{b}" if n == 1 else f"v[{b}:{b+n-1}]"
MFMA = "v_mfma_f32_32x32x16_bf16"

kAX, kSR, kSI, kDR, kDI, kBX, kWQ, kWO, kOUT, kDBG, kWS = 64, 66, 68, 70, 72, 74, 76, 78, 80, 82, 84
sTYPE, sRB, sCQ, sW, sNON = 16, 17, 18, 19, 20
sHD, sR = 21, 22
SWS = 32
VST = 255

def srd(a, d, k, size, off=0):
    if off:
        a(f"s_add_u32 s{d}, s{k}, {off}\ns_addc_u32 s{d+1}, s{k+1}, 0")
    else:
        a(f"s_mov_b32 s{d}, s{k}\ns_mov_b32 s{d+1}, s{k+1}")
    a(f"s_mov_b32 s{d+2}, {size}\ns_mov_b32 s{d+3}, 0x20000")

def stamp(a, idx):
    if not STAMP: return
    a(f"""s_memrealtime s[86:87]
          s_waitcnt lgkmcnt(0)
          v_writelane_b32 v{VST}, s86, {idx}""")
def stamp_flush(a, idx):
    if not STAMP: return
    a("s_waitcnt vmcnt(0)")
    stamp(a, idx)
    srd(a, 88, kWS, 0x100000, 16 << 20)
    a(f"""s_mov_b64 exec, -1
          s_lshl_b32 s92, s2, 11
          s_lshl_b32 s93, s{sW}, 8
          s_add_u32 s92, s92, s93
          v_mbcnt_lo_u32_b32 v2, -1, 0
          v_mbcnt_hi_u32_b32 v2, -1, v2
          v_lshlrev_b32 v2, 2, v2
          buffer_store_dword v{VST}, v2, s[88:91], s92 offen""")

uid = [0]
def poll(a, vaddr, vtmp, nl_mask, srdreg=SWS):
    uid[0] += 1
    L = f"poll{uid[0]}"
    a(f"""s_mov_b32 s60, 0
          s_mov_b64 exec, {nl_mask}""")
    a.label(L)
    a(f"""buffer_load_dword v{vtmp}, v{vaddr}, s[{srdreg}:{srdreg+3}], 0 offen sc1
          s_add_u32 s60, s60, 1
          s_cmp_gt_u32 s60, {SPIN_MAX}
          s_cbranch_scc1 {L}x
          s_waitcnt vmcnt(0)
          v_cmp_ne_u32 vcc, s{sNON}, v{vtmp}
          s_cbranch_vccnz {L}""")
    a.label(L + "x")
    a("s_mov_b64 exec, -1")

def publish(a, soff, vtmp):
    a(f"""s_waitcnt vmcnt(0)
          v_mov_b32 v{vtmp}, s{sNON}
          s_mov_b64 exec, 1
          buffer_store_dword v{vtmp}, off, s[{SWS}:{SWS+3}], s{soff} {ST}
          s_mov_b64 exec, -1""")

def nonce_wait(a, vtmp, first_loaded):
    uid[0] += 1
    L = f"non{uid[0]}"
    a("s_mov_b32 s60, 0")
    if first_loaded:
        a(f"s_branch {L}c")
    a.label(L)
    a(f"""buffer_load_dword v{vtmp}, off, s[56:59], 0 sc1
          s_waitcnt vmcnt(0)""")
    a.label(L + "c")
    a(f"""v_readfirstlane_b32 s{sNON}, v{vtmp}
          s_add_u32 s60, s60, 1
          s_cmp_gt_u32 s60, {SPIN_MAX}
          s_cbranch_scc1 {L}x
          s_cmp_eq_u32 s{sNON}, 0
          s_cbranch_scc1 {L}""")
    a.label(L + "x")

def diag_mask(r):
    g, i = r // 4, r % 4
    return (0xffffffff << (8*g+i)) & 0xffffffff, (0xffffffff << (8*g+i+4)) & 0xffffffff

def qflag(a):
    a(f"""s_lshl_b32 s4, s{sR}, 3
          s_add_u32 s4, s4, s{sW}                 ; qb
          s_lshr_b32 s5, s4, 5                    ; rb>>3
          s_bfe_u32 s6, s4, 0x30002               ; rb&7
          s_and_b32 s7, s{sHD}, 24
          s_add_u32 s6, s6, s7
          s_lshl_b32 s6, s6, 3
          s_add_u32 s5, s5, s6
          s_lshl_b32 s5, s5, 2
          s_and_b32 s6, s{sHD}, 2
          s_add_u32 s5, s5, s6
          s_bfe_u32 s6, s4, 0x10001
          s_add_u32 s5, s5, s6
          s_lshl_b32 s5, s5, 7
          s_add_u32 s14, s5, {WS_F1}
          s_lshl_b32 s12, s4, 10
          s_lshl_b32 s5, s{sHD}, 16
          s_add_u32 s12, s12, s5
          v_lshlrev_b32 v1, 4, v0""")

SLOT = 32768
WO_SLOT = [3, 4, 0, 2]
KV_BASE = 1 * SLOT
MRAW = 220

def gen():
    a = Asm()
    a.L += [f".globl {KN}", ".p2align 8", f".type {KN},@function"]
    a.label(KN)
    a(f"""s_cmp_ge_u32 s2, 256
          s_cbranch_scc1 L_end
          s_load_dwordx16 s[64:79], s[0:1], 0
          s_load_dwordx4 s[80:83], s[0:1], 64
          s_load_dwordx2 s[84:85], s[0:1], 80
          v_lshrrev_b32 v1, 6, v0
          v_and_b32 v0, 63, v0
          s_and_b32 s3, s2, 7
          v_readfirstlane_b32 s{sW}, v1
          s_lshr_b32 s{sTYPE}, s3, 1
          s_and_b32 s4, s3, 1
          s_lshl_b32 s4, s4, 3
          s_bfe_u32 s{sRB}, s2, 0x30003
          s_add_u32 s{sRB}, s{sRB}, s4
          s_lshr_b32 s{sCQ}, s2, 6
          s_lshl_b32 s3, s3, 2
          s_bfe_u32 s{sHD}, s2, 0x20003
          s_add_u32 s{sHD}, s{sHD}, s3
          s_lshr_b32 s{sR}, s2, 5""")
    if STAMP: a(f"v_mov_b32 v{VST}, 0")
    stamp(a, 0)
    a(f"""s_cmp_lt_u32 s{sW}, 4
          s_cbranch_scc1 L_consumer""")
    sLW, sXB, sXSH, sWRS, sCB = 23, 24, 25, 26, 27
    sSOX, sSOW, sWST, sM0 = 28, 29, 30, 31
    SX, SWD, SWOD = 36, 40, 44
    STG = 128
    a(f"""s_sub_u32 s{sLW}, s{sW}, 4
          s_cmp_eq_u32 s{sTYPE}, 3
          s_cselect_b32 s{sXSH}, 16, 10
          s_movk_i32 s3, 3072
          s_cselect_b32 s{sWRS}, 1024, s3
          s_lshl_b32 s4, s{sRB}, 2
          s_add_u32 s4, s4, s{sLW}
          s_lshl_b32 s5, s4, 5
          s_cmp_eq_u32 s{sTYPE}, 3
          s_cselect_b32 s{sXB}, s4, s5
          s_lshl_b32 s{sXB}, s{sXB}, 10
          s_lshl_b32 s4, s{sCQ}, 7
          s_lshl_b32 s5, s{sTYPE}, 10
          s_lshl_b32 s6, s{sCQ}, 8
          s_add_u32 s5, s5, s6
          s_lshr_b32 s6, s{sLW}, 1
          s_lshl_b32 s6, s6, 7
          s_add_u32 s5, s5, s6
          s_cmp_eq_u32 s{sTYPE}, 3
          s_cselect_b32 s{sCB}, s4, s5
          s_lshl_b32 s{sWST}, s{sWRS}, 6
          s_lshl_b32 s{sM0}, s{sLW}, 12
          v_lshrrev_b32 v1, 3, v0
          v_and_b32 v2, 7, v0
          v_lshrrev_b32 v3, 4, v0""")
    for jx in range(4):
        a(f"""v_add_u32 v4, {8*jx}, v1
              v_lshlrev_b32 v4, s{sXSH}, v4
              v_add_u32 v5, {4*jx}, v3
              v_and_b32 v5, 7, v5
              v_xor_b32 v5, v5, v2
              v_lshl_add_u32 v4, v5, 4, v4
              v_add_u32 v{8+jx}, s{sXB}, v4""")
    a(f"""s_and_b32 s4, s{sLW}, 1
          s_lshl_b32 s4, s4, 5
          v_and_b32 v5, 1, v3
          v_lshlrev_b32 v5, 2, v5
          v_xor_b32 v5, v5, v2
          v_lshlrev_b32 v5, 4, v5
          v_add_u32 v5, s{sCB}, v5
          v_add_u32 v6, s4, v1""")
    for jw in range(4):
        a(f"""v_add_u32 v4, {8*jw}, v6
              v_mad_u32_u24 v{12+jw}, v4, s{sWRS}, v5""")
    a(f"""s_waitcnt lgkmcnt(0)
          s_cmp_eq_u32 s{sTYPE}, 3
          s_cselect_b32 s{SX}, s{kAX}, s{kBX}
          s_cselect_b32 s{SX+1}, s{kAX+1}, s{kBX+1}
          s_mov_b32 s{SX+2}, 0x200000
          s_mov_b32 s{SX+3}, 0x20000
          s_cmp_lt_u32 s{sLW}, 2
          s_cselect_b32 s4, s{kDR}, s{kDI}
          s_cselect_b32 s5, s{kDR+1}, s{kDI+1}
          s_cmp_eq_u32 s{sTYPE}, 3
          s_cselect_b32 s{SWD}, s4, s{kWQ}
          s_cselect_b32 s{SWD+1}, s5, s{kWQ+1}
          s_mov_b32 s4, 0x180000
          s_cselect_b32 s{SWD+2}, 0x80000, s4
          s_mov_b32 s{SWD+3}, 0x20000
          s_mov_b32 s{sSOX}, 0
          s_mov_b32 s{sSOW}, 0""")
    stamp(a, 1)
    for st in range(8):
        for j in range(8):
            S, so = (SX, sSOX) if j < 4 else (SWD, sSOW)
            if st < 5:
                a(f"""s_add_u32 m0, s{sM0}, {st*SLOT + (j//4)*16384 + (j%4)*1024}
                      s_nop 0
                      buffer_load_dwordx4 v{8+j}, s[{S}:{S+3}], s{so} offen lds""")
            else:
                a(f"buffer_load_dwordx4 {vr(STG+32*(st-5)+4*j,4)}, v{8+j}, s[{S}:{S+3}], s{so} offen")
        if st < 7:
            a(f"""s_add_u32 s{sSOX}, s{sSOX}, 128
                  s_add_u32 s{sSOW}, s{sSOW}, s{sWST}""")
    srd(a, SWS, kWS, 0x1000000)
    srd(a, 56, kDBG, 256)
    srd(a, SWOD, kWO, 0x80000)
    a(f"""v_lshl_add_u32 v16, v0, 4, s{sM0}
          s_lshl_b32 s4, s{sLW}, 5
          v_add_u32 v17, s4, v3
          v_lshlrev_b32 v17, 10, v17
          v_and_b32 v4, 15, v0
          v_lshlrev_b32 v5, 2, v3
          v_xor_b32 v4, v4, v5
          v_lshl_add_u32 v17, v4, 4, v17
          s_lshl_b32 s4, s{sTYPE}, 8
          v_add_u32 v17, s4, v17
          v_mov_b32 v253, v17
          s_lshl_b32 s{sXB}, s{sLW}, 13""")
    def wo_dma(qd):
        for j in range(8):
            a(f"""s_add_u32 m0, s{sXB}, {WO_SLOT[qd]*SLOT + j*1024}
                  s_mov_b32 s4, {(128*qd+4*j)*1024}
                  buffer_load_dwordx4 v17, s[{SWOD}:{SWOD+3}], s4 offen lds""")
    for i in range(5):
        a(f"s_waitcnt vmcnt({8*(7-i)})")
        stamp(a, 2+i)
        a("s_barrier")
    a("buffer_load_dword v18, off, s[56:59], 0 sc1")
    for i in range(3):
        wo_dma(i)
        a(f"s_waitcnt vmcnt({8*(2-i) + 1 + 8*(i+1)})")
        for j in range(8):
            a(f"ds_write_b128 v16, {vr(STG+32*i+4*j,4)} offset:{(i*SLOT + (j//4)*16384 + (j%4)*1024) & 0xffff}")
        if i == 1: a("v_add_u32 v16, 0x10000, v16")
        a("s_waitcnt lgkmcnt(0)")
        stamp(a, 7+i)
        a("s_barrier")
    sC0, sT1O, sT1S, sSGN = 24, 25, 26, 27
    SMR, SMI = 48, 52
    srd(a, SMR, kSR, 0x800000)
    srd(a, SMI, kSI, 0x800000)
    a(f"""s_lshr_b32 s4, s{sHD}, 4
          s_lshl_b32 s5, s{sR}, 1
          s_add_u32 s4, s4, s5
          s_lshl_b32 s{sC0}, s4, 5
          s_bfe_u32 s4, s{sHD}, 0x20002
          s_lshl_b32 s4, s4, 3
          s_and_b32 s5, s{sHD}, 3
          s_add_u32 s4, s4, s5
          s_and_b32 s5, s{sLW}, 1
          s_lshl_b32 s5, s5, 2
          s_add_u32 s{sT1S}, s4, s5
          s_sub_u32 s4, 32, s{sT1S}
          s_and_b32 s4, s4, 31
          s_cmp_lt_u32 s{sR}, 4
          s_cselect_b32 s{sT1O}, s{sT1S}, s4
          s_cselect_b32 s{sSGN}, 0x80008000, 0
          v_and_b32 v4, 31, v0
          s_lshr_b32 s4, s{sLW}, 1
          s_lshl_b32 s4, s4, 5
          v_add_u32 v4, s4, v4
          v_lshl_add_u32 v252, v4, 5, s{sT1O}
          v_lshrrev_b32 v5, 5, v0
          v_lshlrev_b32 v6, 12, v252
          v_lshl_add_u32 v6, v5, 6, v6""")
    for cc in range(4):
        a(f"buffer_load_dwordx4 {vr(MRAW+4*cc,4)}, v6, s[{SMR}:{SMR+3}], 0 offen offset:{16*cc}")
        a(f"buffer_load_dwordx4 {vr(MRAW+16+4*cc,4)}, v6, s[{SMI}:{SMI+3}], 0 offen offset:{16*cc}")
    a("s_waitcnt vmcnt(32)")
    nonce_wait(a, 18, True)
    qflag(a)
    a(f"""s_lshl_b32 s4, s{sR}, 1
          s_add_u32 s4, s4, s{sLW}
          s_cmp_lt_u32 s4, 2
          s_cbranch_scc1 L_qonly
          s_sub_u32 s4, s4, 2
          s_lshr_b32 s5, s4, 3
          s_and_b32 s6, s4, 7
          s_lshr_b32 s7, s{sHD}, 3
          s_lshl_b32 s7, s7, 3
          s_add_u32 s6, s6, s7
          s_lshl_b32 s6, s6, 3
          s_add_u32 s5, s5, s6
          s_lshl_b32 s5, s5, 2
          s_and_b32 s6, s{sHD}, 2
          s_add_u32 s5, s5, s6                    ; *4 + 2wn
          s_add_u32 s5, s5, 8                     ; type 1
          v_and_b32 v4, 1, v0
          v_bfe_u32 v5, v0, 1, 1
          v_lshl_add_u32 v4, v5, 3, v4
          v_add_u32 v4, s5, v4
          v_lshlrev_b32 v4, 7, v4
          v_add_u32 v4, {WS_F1}, v4
          v_writelane_b32 v4, s14, 4""")
    poll(a, 4, 5, 31)
    stamp(a, 10)
    a(f"""buffer_load_dwordx4 v[4:7], v1, s[{SWS}:{SWS+3}], s12 offen {LD}
          s_lshl_b32 s5, s{sHD}, 16
          s_lshl_b32 s4, s4, 12
          s_add_u32 s4, s4, s5
          s_add_u32 s5, s4, {WS_K}
          s_add_u32 s6, s4, {WS_V}
          s_add_u32 m0, s{sM0}, {KV_BASE}
          s_nop 0""")
    for j in range(4):
        a(f"buffer_load_dwordx4 v1, s[{SWS}:{SWS+3}], s5 offen offset:{1024*j} {LD} lds")
    a(f"""s_add_u32 m0, s{sM0}, {KV_BASE+16384}
          s_nop 0""")
    for j in range(4):
        a(f"buffer_load_dwordx4 v1, s[{SWS}:{SWS+3}], s6 offen offset:{1024*j} {LD} lds")
    a("s_branch L_att")

    a.label("L_consumer")
    sWM, sWN, sIT, sDEL = 23, 24, 25, 26
    sMASK = 28
    XA, WA, CPM = 8, 12, 13
    FR, ACC = 32, 64
    CR, CI, NCI = 128, 136, 144
    def X(b, i): return FR + 16*b + 4*i
    def W(b, j): return FR + 16*b + 8 + 4*j
    def AC(i, j): return ACC + 16*(2*i + j)
    a(f"""s_and_b32 s{sWM}, s{sW}, 1
          s_lshr_b32 s{sWN}, s{sW}, 1
          v_and_b32 v1, 31, v0
          v_lshrrev_b32 v2, 5, v0
          v_bfe_u32 v3, v0, 1, 3
          v_xor_b32 v3, v3, v2
          s_lshl_b32 s3, s{sWM}, 13
          v_lshl_add_u32 v4, v1, 7, s3
          s_waitcnt lgkmcnt(0)""")
    srd(a, 56, kDBG, 256)
    a(f"""s_or_b32 s3, s2, s{sW}
          s_cmp_lg_u32 s3, 0
          s_cbranch_scc1 L_nonpub
          s_memrealtime s[4:5]
          s_waitcnt lgkmcnt(0)
          s_or_b32 s4, s4, 1
          v_mov_b32 v5, s4
          s_mov_b64 exec, 1
          buffer_store_dword v5, off, s[56:59], 0 sc0 sc1
          s_mov_b64 exec, -1""")
    a.label("L_nonpub")
    srd(a, SWS, kWS, 0x1000000)
    for kk in range(4):
        a(f"""v_xor_b32 v5, {2*kk}, v3
              v_lshl_add_u32 v{XA+kk}, v5, 4, v4""")
    a(f"""v_bfe_u32 v3, v0, 2, 2
          v_lshl_add_u32 v4, v2, 3, v3
          v_lshlrev_b32 v4, 7, v4
          v_bfe_u32 v5, v0, 4, 1
          v_lshlrev_b32 v5, 1, v5
          v_bfe_u32 v6, v0, 1, 1
          v_add_u32 v5, v5, v6
          s_lshl_b32 s3, s{sWN}, 2
          v_add_u32 v5, s3, v5
          v_bfe_u32 v6, v0, 3, 1
          v_lshlrev_b32 v6, 2, v6
          v_xor_b32 v5, v5, v6
          v_lshl_add_u32 v4, v5, 4, v4
          v_and_b32 v6, 1, v0
          v_lshl_add_u32 v4, v6, 3, v4
          v_add_u32 v{WA}, 16384, v4
          v_mov_b32 v{CPM}, 0xbf803f80""")
    for r in range(64):
        a(f"v_mov_b32 v{ACC+r}, 0")
    a(f"""s_lshl_b32 s3, s{sCQ}, 2
          s_add_u32 s3, s3, s{sWN}
          s_lshl_b32 s3, s3, 2
          s_add_u32 s3, s3, s{sTYPE}
          s_cmp_eq_u32 s3, 3
          s_cselect_b32 s{sMASK}, 1, 0
          s_mov_b32 s{sMASK+1}, s{sMASK}
          s_cmp_lg_u32 s{sTYPE}, 3
          s_cbranch_scc1 L_noconst
          v_lshlrev_b32 v3, 2, v2
          v_mul_u32_u24 v3, v3, v1""")
    for m in range(2):
        for j in range(8):
            cj = 16*m + (j % 4) + 8*(j // 4)
            a(f"""v_mad_u32_u24 v{16+j}, v1, {cj}, v3
                  v_and_b32 v{16+j}, 31, v{16+j}
                  v_cvt_f32_u32 v{16+j}, v{16+j}
                  v_mul_f32 v{16+j}, 0x3d000000, v{16+j}""")
        for j in range(8): a(f"v_cos_f32 v{24+j}, v{16+j}")
        for j in range(8): a(f"v_sin_f32 v{16+j}, v{16+j}")
        a("s_nop 0")
        for j in range(4):
            a(f"""v_cvt_pk_bf16_f32 v{CR+4*m+j}, v{24+2*j}, v{25+2*j}
                  v_cvt_pk_bf16_f32 v{CI+4*m+j}, -v{16+2*j}, -v{17+2*j}
                  v_cvt_pk_bf16_f32 v{NCI+4*m+j}, v{16+2*j}, v{17+2*j}""")
    a.label("L_noconst")
    nonce_wait(a, 5, False)
    def rd(kk, b):
        o = [f"ds_read_b128 {vr(X(b,i),4)}, v{XA+kk} offset:{i*4096}" for i in range(2)]
        o += [f"ds_read_b64_tr_b16 {vr(W(b,j)+2*q,2)}, v{WA} offset:{j*8192 + kk*2048 + q*512}" for j in range(2) for q in range(2)]
        return o
    def mf(b, variant):
        o = []
        for j in range(2):
            for i in range(2):
                A_, B_ = (W(b,j), X(b,i)) if variant == "QK" else (X(b,i), W(b,j))
                o.append(f"{MFMA} {vr(AC(i,j),16)}, {vr(A_,4)}, {vr(B_,4)}, {vr(AC(i,j),16)}")
        return o
    def cnd(b, variant):
        if variant != "VA": return []
        return [f"v_cndmask_b32 v{W(b,1)+t}, v{W(b,1)+t}, v{CPM}, s[{sMASK}:{sMASK+1}]" for t in range(4)]
    def step(b, variant, r):
        m = mf(b, variant)
        for x in cnd(b, variant) + [m[0]] + r[:2] + [m[1]] + r[2:4] + [m[2]] + r[4:] + [m[3]]: a(x)
    a(f"""s_mov_b32 s{sIT}, 0
          s_mov_b32 s27, {SLOT}""")
    stamp(a, 1)
    a("s_barrier")
    stamp(a, 2)
    for x in rd(0, 0): a(x)
    a(f"""s_cmp_ge_u32 s{sTYPE}, 2
          s_cbranch_scc1 L_loopVA""")
    for variant in ("QK", "VA"):
        a.label(f"L_loop{variant}")
        for kk in range(3):
            a("s_waitcnt lgkmcnt(0)")
            step(kk % 2, variant, rd(kk+1, (kk+1) % 2))
        a(f"""s_add_u32 s{sIT}, s{sIT}, 1
              s_cmp_eq_u32 s{sIT}, 5
              s_cselect_b32 s{sDEL}, {-4*SLOT}, s27
              s_cmp_eq_u32 s{sIT}, 8""")
        for kk in range(4):
            a(f"v_add_u32 v{XA+kk}, s{sDEL}, v{XA+kk}")
        a(f"""v_add_u32 v{WA}, s{sDEL}, v{WA}
              s_waitcnt lgkmcnt(0)
              s_cbranch_scc1 L_last{variant}
              s_barrier""")
        step(1, variant, rd(0, 0))
        a(f"s_branch L_loop{variant}")
        a.label(f"L_last{variant}")
        step(1, variant, [])
        stamp(a, 3)
        if variant == "QK":
            a("s_branch L_epiQK")
    a(f"""s_cmp_eq_u32 s{sTYPE}, 3
          s_cbranch_scc1 L_epiA""")
    def ep_base():
        a(f"""s_lshl_b32 s3, s{sCQ}, 3
              s_lshl_b32 s4, s{sWN}, 1
              s_add_u32 s3, s3, s4
              s_lshl_b32 s3, s3, 16
              s_lshl_b32 s4, s{sRB}, 2
              s_lshl_b32 s5, s{sWM}, 1
              s_add_u32 s4, s4, s5
              s_lshl_b32 s4, s4, 10
              s_add_u32 s3, s3, s4
              s_lshl_b32 s4, s{sTYPE}, 21
              s_add_u32 s3, s3, s4""")
    ep_base()
    a(f"""v_bfe_u32 v1, v0, 4, 1
          v_lshlrev_b32 v1, 16, v1
          v_lshrrev_b32 v2, 5, v0
          v_lshl_add_u32 v1, v2, 8, v1
          v_and_b32 v2, 15, v0
          v_lshl_add_u32 v1, v2, 4, v1
          v_add_u32 v1, s3, v1
          s_mov_b32 s4, {4*65536}""")
    for i in range(2):
        for j in range(2):
            for mm in range(2):
                d = FR + 8*(2*i+j) + 4*mm
                for t in range(4):
                    a(f"v_cvt_pk_bf16_f32 v{d+t}, v{AC(i,j)+8*mm+2*t}, v{AC(i,j)+8*mm+2*t+1}")
                so = "0" if j == 0 else "s4"
                a(f"buffer_store_dwordx4 {vr(d,4)}, v1, s[{SWS}:{SWS+3}], {so} offen offset:{i*1024+mm*512} {ST}")
    a("s_branch L_pub1")
    a.label("L_epiQK")
    ep_base()
    a(f"""v_lshl_add_u32 v1, v0, 4, s3
          s_mov_b32 s4, {1*65536}
          s_mov_b32 s5, {4*65536}
          s_mov_b32 s6, {5*65536}
          s_cmp_eq_u32 s{sTYPE}, 0
          s_mov_b32 s3, {f2u(QSCALE):#x}
          s_cselect_b32 s8, s3, 1.0
          s_mov_b32 s9, s8""")
    for j in range(2):
        for i in range(2):
            for t in range(8):
                a(f"v_pk_mul_f32 {vr(AC(i,j)+2*t,2)}, {vr(AC(i,j)+2*t,2)}, s[8:9]")
            for mm in range(2):
                d = FR + 8*(2*i+j) + 4*mm
                for t in range(4):
                    a(f"v_cvt_pk_bf16_f32 v{d+t}, v{AC(i,j)+8*mm+2*t}, v{AC(i,j)+8*mm+2*t+1}")
                so = ["0", "s4", "s5", "s6"][2*j+mm]
                a(f"buffer_store_dwordx4 {vr(d,4)}, v1, s[{SWS}:{SWS+3}], {so} offen offset:{i*1024} {ST}")
    a("s_branch L_pub1")
    a.label("L_epiA")
    PK, SV = FR, 152
    a(f"""s_lshl_b32 s3, s{sRB}, 1
          s_add_u32 s3, s3, s{sWM}
          s_mul_i32 s3, s3, {U_GP}
          s_lshl_b32 s4, s{sCQ}, 10
          s_add_u32 s3, s3, s4
          s_lshl_b32 s4, s{sWN}, 9
          s_add_u32 s3, s3, s4
          s_add_u32 s3, s3, {WS_U}
          v_and_b32 v1, 31, v0
          v_lshl_add_u32 v1, v1, 4, s3
          v_lshrrev_b32 v2, 5, v0
          s_mov_b32 s4, {8*U_ROW}
          v_mad_u32_u24 v1, v2, s4, v1""")
    for j in range(2):
        for p in range(2):
            for t in range(8):
                a(f"v_cvt_pk_bf16_f32 v{PK+16*p+8*j+t}, v{AC(p,j)+2*t}, v{AC(p,j)+2*t+1}")
    a(f"""s_cmp_eq_u32 s{sMASK}, 0
          s_cbranch_scc1 L_nosp1""")
    for p in range(2):
        for t in range(8):
            a(f"v_mov_b32 v{SV+8*p+t}, v{PK+16*p+8+t}")
            a(f"v_cndmask_b32 v{PK+16*p+8+t}, v{PK+16*p+8+t}, 0, s[{sMASK}:{sMASK+1}]")
    a.label("L_nosp1")
    a("s_nop 1")
    def step1(p, aa, bb, with_b=True):
        a(f"{MFMA} {vr(AC(p,0),16)}, {vr(CR,4)}, {vr(aa,4)}, 0")
        a(f"{MFMA} {vr(AC(p,1),16)}, {vr(CI,4)}, {vr(aa,4)}, 0")
        a(f"{MFMA} {vr(AC(p,0),16)}, {vr(CR+4,4)}, {vr(aa+4,4)}, {vr(AC(p,0),16)}")
        a(f"{MFMA} {vr(AC(p,1),16)}, {vr(CI+4,4)}, {vr(aa+4,4)}, {vr(AC(p,1),16)}")
        if with_b:
            for m in range(2):
                a(f"{MFMA} {vr(AC(p,0),16)}, {vr(NCI+4*m,4)}, {vr(bb+4*m,4)}, {vr(AC(p,0),16)}")
                a(f"{MFMA} {vr(AC(p,1),16)}, {vr(CR+4*m,4)}, {vr(bb+4*m,4)}, {vr(AC(p,1),16)}")
    def ustore(special):
        a("s_nop 15")
        D = 168
        for r in range(8):
            d = D + 4*r
            a(f"""v_cvt_pk_bf16_f32 v{d}, v{AC(0,0)+r}, v{AC(1,0)+r}
                  v_cvt_pk_bf16_f32 v{d+1}, v{AC(0,1)+r}, v{AC(1,1)+r}
                  v_cvt_pk_bf16_f32 v{d+2}, v{AC(0,0)+r+8}, v{AC(1,0)+r+8}
                  v_cvt_pk_bf16_f32 v{d+3}, v{AC(0,1)+r+8}, v{AC(1,1)+r+8}""")
            if r > 0:
                st(r-1, special)
        a("s_nop 1")
        st(7, special)
    def st(r, special):
        d = 168 + 4*r
        a(f"""v_permlane32_swap_b32 v{d}, v{d+2}
              v_permlane32_swap_b32 v{d+1}, v{d+3}
              s_mov_b32 s4, {r*U_ROW}""")
        if special: a(f"s_mov_b64 exec, s[{sMASK}:{sMASK+1}]")
        a(f"buffer_store_dwordx4 {vr(d,4)}, v1, s[{SWS}:{SWS+3}], s4 offen {ST}")
        if special: a("s_mov_b64 exec, -1")
    for p in range(2): step1(p, PK+16*p, PK+16*p+8)
    ustore(False)
    a(f"""s_cmp_eq_u32 s{sMASK}, 0
          s_cbranch_scc1 L_pub1""")
    for p in range(2): step1(p, SV+8*p, None, with_b=False)
    a(f"v_add_u32 v1, {256*16}, v1")
    ustore(True)
    a.label("L_pub1")
    stamp(a, 4)
    a(f"""s_lshl_b32 s3, s2, 2
          s_add_u32 s3, s3, s{sW}
          s_lshl_b32 s3, s3, 7
          s_add_u32 s3, s3, {WS_F1}""")
    publish(a, 3, 2)
    stamp(a, 5)
    qflag(a)
    a.label("L_qonly")
    a("v_mov_b32 v4, s14")
    poll(a, 4, 5, 1)
    a(f"buffer_load_dwordx4 v[4:7], v1, s[{SWS}:{SWS+3}], s12 offen {LD}")

    a.label("L_att")
    QF = 4
    KA, VA_, NINF, MX = 2, 3, 8, 9
    KF, VF, PP, S, O, CN, CD, CF = 12, 24, 40, 48, 80, 96, 112, 128
    sVM, sNF, sI, sQO = 8, 10, 11, 12
    stamp(a, 11)
    a(f"""s_lshl_b32 s4, s{sW}, 10
          s_add_u32 s4, s4, {KV_BASE}
          v_add_u32 v{KA}, s4, v1
          v_lshrrev_b32 v10, 5, v0
          v_and_b32 v11, 15, v0
          v_lshlrev_b32 v11, 4, v11
          v_lshl_add_u32 v11, v10, 8, v11
          s_add_u32 s4, s4, 16384
          v_add_u32 v{VA_}, s4, v11
          v_mov_b32 v{NINF}, 0xff800000
          s_mov_b32 s{sVM}, 0x0000ffff
          s_mov_b32 s{sVM+1}, 0x0000ffff
          s_mov_b32 s6, 0x00110000
          s_mov_b32 s7, 0x00110000
          v_mov_b32 v10, 0x3f803f80""")
    for t in range(16):
        a(f"v_cndmask_b32 v{VF+t}, 0, v10, s[6:7]")
    a(f"""s_cmp_gt_u32 s{sR}, 0
          s_cselect_b32 s{sNF}, 7, s{sW}
          s_sub_u32 s13, 8, s{sNF}
          s_lshl_b32 s13, s13, 10
          s_waitcnt vmcnt(0)
          s_barrier""")
    stamp(a, 12)
    a(f"""s_cmp_lt_u32 s{sW}, 4
          s_cbranch_scc1 L_nowo3
          s_lshl_b32 s5, s{sM0}, 1""")
    for j in range(8):
        a(f"""s_add_u32 m0, s5, {WO_SLOT[3]*SLOT + j*1024}
              s_mov_b32 s4, {(128*3+4*j)*1024}
              buffer_load_dwordx4 v253, s[{SWOD}:{SWOD+3}], s4 offen lds""")
    a.label("L_nowo3")
    def masks(val):
        o = []
        for r in range(16):
            lo, hi = diag_mask(r)
            sp = 4 + 2*(r % 2)
            o.append(f"""s_mov_b32 s{sp}, {lo:#x}
                  s_mov_b32 s{sp+1}, {hi:#x}
                  v_cndmask_b32 v{CD+r}, v{NINF}, {val}, s[{sp}:{sp+1}]
                  v_cndmask_b32 v{CF+r}, {val}, v{NINF}, s[{sp}:{sp+1}]""")
        return o
    def maxblk(S_, first):
        if first:
            a(f"v_max_f32 v{MX}, v{S_}, v{S_+1}")
        for t in range(2 if first else 0, 16, 2):
            a(f"v_max3_f32 v{MX}, v{S_+t}, v{S_+t+1}, v{MX}")
    def xhalf_max():
        a(f"""v_mov_b32 v10, v{MX}
              s_nop 1
              v_permlane32_swap_b32 v10, v{MX}
              s_nop 1
              v_max_f32 v{MX}, v{MX}, v10""")
    if not FORCE_SLOW:
        a(f"""s_cmp_eq_u32 s{sR}, 0
              s_cbranch_scc1 L_slow""")
        order = [7, 6, 5, 4, 3, 2, 1, 8, 0]
        Cof = lambda p: CD if p == 8 else (CF if p == 0 else CN)
        def rdK(n): return f"ds_read_b128 {vr(KF+4*(n%3),4)}, v{KA} offset:{order[n]*1024}"
        def rdV(n):
            b = VF + 8*(n % 2)
            return f"""s_mov_b64 exec, s[{sVM}:{sVM+1}]
                  ds_read_b128 {vr(b,4)}, v{VA_} offset:{order[n]*1024}
                  ds_read_b128 {vr(b+4,4)}, v{VA_} offset:{order[n]*1024+512}
                  s_mov_b64 exec, -1"""
        def mS(n): return f"{MFMA} {vr(S+16*(n%2),16)}, {vr(KF+4*(n%3),4)}, {vr(QF,4)}, {vr(Cof(order[n]),16)}"
        a(rdK(0)); a(rdK(1)); a(rdV(0))
        a(f"""s_waitcnt lgkmcnt(3)
              {MFMA} {vr(S+16,16)}, {vr(KF,4)}, {vr(QF,4)}, 0
              s_nop 11""")
        maxblk(S+16, True)
        xhalf_max()
        a(f"v_sub_f32 v{MX}, 0xc2400000, v{MX}")
        for r in range(16): a(f"v_mov_b32 v{CN+r}, v{MX}")
        a("s_nop 1")
        a(mS(0))
        mk = masks(f"v{MX}")
        for n in range(9):
            Sn = S + 16*(n % 2); Vn = VF + 8*(n % 2)
            if n + 1 < 9:
                a("s_waitcnt lgkmcnt(2)")
                a(mS(n+1))
            if n + 2 < 9: a(rdK(n+2))
            if n + 1 < 9: a(rdV(n+1))
            if n == 0:
                for x in mk: a(x)
            nout = (1 if n + 2 < 9 else 0) + (2 if n + 1 < 9 else 0)
            for r in range(8): a(f"v_exp_f32 v{Sn+r}, v{Sn+r}")
            for t in range(4): a(f"v_cvt_pk_bf16_f32 v{PP+t}, v{Sn+2*t}, v{Sn+2*t+1}")
            for r in range(8, 10): a(f"v_exp_f32 v{Sn+r}, v{Sn+r}")
            a(f"s_waitcnt lgkmcnt({nout})")
            a(f"{MFMA} {vr(O,16)}, {vr(Vn,4)}, {vr(PP,4)}, {'0' if n == 0 else vr(O,16)}")
            for r in range(10, 16): a(f"v_exp_f32 v{Sn+r}, v{Sn+r}")
            for t in range(4, 8): a(f"v_cvt_pk_bf16_f32 v{PP+t}, v{Sn+2*t}, v{Sn+2*t+1}")
            a("s_nop 1")
            a(f"{MFMA} {vr(O,16)}, {vr(Vn+4,4)}, {vr(PP+4,4)}, {vr(O,16)}")
        a(f"""s_nop 11
              v_add_f32 v10, |v{O}|, |v{O+1}|
              v_add_f32 v11, |v{O+2}|, |v{O+3}|
              v_add_f32 v12, |v{O+4}|, |v{O+5}|
              v_add_f32 v13, |v{O+6}|, |v{O+7}|
              v_add_f32 v10, v10, v11
              v_add_f32 v12, v12, v13
              v_mul_f32 v11, 0x5f800000, v{O+8}
              v_add_f32 v10, v10, v12
              v_add_f32 v10, v10, v11
              v_mov_b32 v11, 0x7f800000
              v_cmp_lt_f32 vcc, v10, v11
              v_rcp_f32 v10, v{O+8}
              s_cmp_eq_u64 vcc, -1
              s_cbranch_scc1 L_norm""")
    a.label("L_slow")
    for x in masks("0"): a(x)
    a(f"""ds_read_b128 {vr(KF,4)}, v{KA} offset:{8*1024}
          s_waitcnt lgkmcnt(0)
          {MFMA} {vr(S,16)}, {vr(KF,4)}, {vr(QF,4)}, {vr(CD,16)}
          s_nop 11""")
    maxblk(S, True)
    a(f"""s_cmp_eq_u32 s{sR}, 0
          s_cbranch_scc1 L_s1nofar
          ds_read_b128 {vr(KF,4)}, v{KA}
          s_waitcnt lgkmcnt(0)
          {MFMA} {vr(S,16)}, {vr(KF,4)}, {vr(QF,4)}, {vr(CF,16)}
          s_nop 11""")
    maxblk(S, False)
    a.label("L_s1nofar")
    a(f"""s_mov_b32 s{sI}, s{sNF}
          v_add_u32 v10, s13, v{KA}
          s_cmp_eq_u32 s{sI}, 0
          s_cbranch_scc1 L_s1done""")
    a.label("L_s1loop")
    a(f"""ds_read_b128 {vr(KF,4)}, v10
          v_add_u32 v10, 1024, v10
          s_waitcnt lgkmcnt(0)
          {MFMA} {vr(S,16)}, {vr(KF,4)}, {vr(QF,4)}, 0
          s_nop 11""")
    maxblk(S, False)
    a(f"""s_sub_u32 s{sI}, s{sI}, 1
          s_cmp_lg_u32 s{sI}, 0
          s_cbranch_scc1 L_s1loop""")
    a.label("L_s1done")
    xhalf_max()
    a(f"v_sub_f32 v{MX}, 0, v{MX}")
    for x in masks(f"v{MX}"): a(x)
    for r in range(16): a(f"v_mov_b32 v{CN+r}, v{MX}")
    def pvblk(kaddr, vaddr, off, C, first):
        a(f"""ds_read_b128 {vr(KF,4)}, v{kaddr} offset:{off}
              s_mov_b64 exec, s[{sVM}:{sVM+1}]
              ds_read_b128 {vr(VF,4)}, v{vaddr} offset:{off}
              ds_read_b128 {vr(VF+4,4)}, v{vaddr} offset:{off+512}
              s_mov_b64 exec, -1
              s_waitcnt lgkmcnt(0)
              {MFMA} {vr(S,16)}, {vr(KF,4)}, {vr(QF,4)}, {vr(C,16)}
              s_nop 11""")
        for r in range(16): a(f"v_exp_f32 v{S+r}, v{S+r}")
        for t in range(8): a(f"v_cvt_pk_bf16_f32 v{PP+t}, v{S+2*t}, v{S+2*t+1}")
        a("s_nop 1")
        a(f"{MFMA} {vr(O,16)}, {vr(VF,4)}, {vr(PP,4)}, {'0' if first else vr(O,16)}")
        a(f"{MFMA} {vr(O,16)}, {vr(VF+4,4)}, {vr(PP+4,4)}, {vr(O,16)}")
    pvblk(KA, VA_, 8*1024, CD, True)
    a(f"""s_cmp_eq_u32 s{sR}, 0
          s_cbranch_scc1 L_s2nofar""")
    pvblk(KA, VA_, 0, CF, False)
    a.label("L_s2nofar")
    a(f"""s_mov_b32 s{sI}, s{sNF}
          v_add_u32 v10, s13, v{KA}
          v_add_u32 v11, s13, v{VA_}
          s_cmp_eq_u32 s{sI}, 0
          s_cbranch_scc1 L_s2done""")
    a.label("L_s2loop")
    pvblk(10, 11, 0, CN, False)
    a(f"""v_add_u32 v10, 1024, v10
          v_add_u32 v11, 1024, v11
          s_sub_u32 s{sI}, s{sI}, 1
          s_cmp_lg_u32 s{sI}, 0
          s_cbranch_scc1 L_s2loop""")
    a.label("L_s2done")
    a(f"""s_nop 15
          v_rcp_f32 v10, v{O+8}""")
    a.label("L_norm")
    a("s_nop 0")
    for t in range(8): a(f"v_mul_f32 v{O+t}, v10, v{O+t}")
    for t in range(4): a(f"v_cvt_pk_bf16_f32 v{PP+t}, v{O+2*t}, v{O+2*t+1}")
    a(f"""s_add_u32 s4, s{sQO}, {WS_O}
          buffer_store_dwordx4 {vr(PP,4)}, v1, s[{SWS}:{SWS+3}], s4 offen {ST}
          s_lshl_b32 s4, s{sR}, 3
          s_add_u32 s4, s4, s{sW}
          s_lshl_b32 s4, s4, 5
          s_add_u32 s4, s4, s{sHD}
          s_lshl_b32 s4, s4, 7
          s_add_u32 s3, s4, {WS_F2}""")
    stamp(a, 13)
    publish(a, 3, 10)
    stamp(a, 14)
    a(f"""s_barrier
          s_cmp_ge_u32 s{sW}, 4
          s_cbranch_scc1 L_a2""")
    SOUT = 36
    OA, WA2, ACC2, FR2 = 8, 9, 16, 32
    srd(a, SOUT, kOUT, 0x400000)
    a(f"""s_lshr_b32 s4, s2, 3
          s_lshl_b32 s4, s4, 1
          s_and_b32 s5, s2, 1
          s_add_u32 s4, s4, s5                    ; qb'
          s_lshl_b32 s5, s4, 5
          s_lshl_b32 s6, s{sW}, 3
          s_add_u32 s5, s5, s6
          v_add_u32 v4, s5, v0
          v_lshlrev_b32 v4, 7, v4
          v_add_u32 v4, {WS_F2}, v4
          s_lshl_b32 s5, s{sW}, 19
          s_lshl_b32 s6, s4, 10
          s_add_u32 s5, s5, s6
          s_add_u32 s5, s5, {WS_O}
          s_lshl_b32 s6, s{sW}, 13
          s_add_u32 s6, s6, {KV_BASE}
          v_add_u32 v{OA}, {KV_BASE}, v1
          v_lshrrev_b32 v2, 5, v0
          v_bfe_u32 v3, v0, 2, 2
          v_lshl_add_u32 v6, v2, 2, v3
          v_lshlrev_b32 v6, 8, v6
          v_bfe_u32 v5, v0, 4, 1
          v_lshlrev_b32 v5, 1, v5
          v_and_b32 v7, 1, v0
          v_add_u32 v5, v5, v7
          v_xor_b32 v3, s{sW}, v3
          v_lshl_add_u32 v5, v3, 2, v5
          v_lshl_add_u32 v6, v5, 4, v6
          v_bfe_u32 v7, v0, 1, 1
          v_lshl_add_u32 v6, v7, 3, v6""")
    for qd in range(4):
        a(f"v_add_u32 v{WA2+qd}, {WO_SLOT[qd]*SLOT}, v6")
    a(f"""v_and_b32 v14, 31, v0
          s_lshl_b32 s7, s4, 5
          v_add_u32 v14, s7, v14
          v_lshlrev_b32 v14, 11, v14
          v_lshl_add_u32 v14, v2, 4, v14
          s_lshl_b32 s7, s{sTYPE}, 8
          s_lshl_b32 s8, s{sW}, 6
          s_add_u32 s7, s7, s8
          s_add_u32 s7, s7, 1024
          v_add_u32 v14, s7, v14""")
    poll(a, 4, 5, 255)
    stamp(a, 15)
    for j in range(8):
        a(f"""s_add_u32 m0, s6, {j*1024}
              s_add_u32 s7, s5, {j*65536}
              buffer_load_dwordx4 v1, s[{SWS}:{SWS+3}], s7 offen {LD} lds""")
    def wrd(qd, k, f):
        return [f"ds_read_b64_tr_b16 {vr(f+4+2*q,2)}, v{WA2+qd} offset:{k*4096 + q*2048}" for q in range(2)]
    for k in range(8):
        for x in wrd(0, k, FR2+8*k): a(x)
    a(f"""s_waitcnt vmcnt(0)
          s_barrier""")
    stamp(a, 16)
    for k in range(8):
        a(f"ds_read_b128 {vr(FR2+8*k,4)}, v{OA} offset:{k*1024}")
    for qd in range(4):
        for k in range(8):
            f = FR2 + 64*(qd % 2) + 8*k
            fn = FR2 + 64*((qd+1) % 2) + 8*k
            if qd == 0:
                a(f"s_waitcnt lgkmcnt({min(15, 7-k + 3*k)})")
            else:
                a(f"s_waitcnt lgkmcnt({min(15, 3*(7-k) + (3*k if qd < 3 else 0))})")
            c = "0" if (qd == 0 and k == 0) else vr(ACC2,16)
            a(f"{MFMA} {vr(ACC2,16)}, {vr(f+4,4)}, {vr(f,4)}, {c}")
            if qd < 3:
                a(f"ds_read_b128 {vr(fn,4)}, v{OA} offset:{(8*(qd+1)+k)*1024}")
                for x in wrd(qd+1, k, fn): a(x)
    a("s_nop 15")
    for mm in range(2):
        for t in range(4):
            a(f"v_cvt_pk_bf16_f32 v{FR2+4*mm+t}, v{ACC2+8*mm+2*t}, v{ACC2+8*mm+2*t+1}")
        a(f"buffer_store_dwordx4 {vr(FR2+4*mm,4)}, v14, s[{SOUT}:{SOUT+3}], 0 offen offset:{32*mm}")
    stamp(a, 17)
    stamp_flush(a, 18)
    a("s_endpgm")
    a.label("L_a2")
    UF, MF, A2 = 16, 48, 80
    srd(a, SOUT, kOUT, 0x400000)
    a(f"""v_and_b32 v2, 0x13, v0
          v_bfe_u32 v3, v0, 2, 1
          v_lshl_or_b32 v2, v3, 3, v2
          v_bfe_u32 v3, v0, 3, 1
          v_lshl_or_b32 v2, v3, 2, v2
          v_add_u32 v2, s{sC0}, v2                ; c
          v_sub_u32 v3, 512, v2
          s_cmp_lt_u32 s{sR}, 4
          s_cselect_b64 vcc, -1, 0
          v_cndmask_b32 v2, v3, v2, vcc           ; e
          s_lshr_b32 s4, s{sC0}, 5
          s_sub_u32 s5, 15, s4
          s_cmp_lt_u32 s{sR}, 4
          s_cselect_b32 s4, s4, s5
          s_cselect_b32 s5, 0, 1
          v_lshrrev_b32 v3, 5, v0                 ; h
          v_mul_u32_u24 v4, s5, v3
          v_add_u32 v4, s4, v4
          v_and_b32 v4, 7, v4                     ; e32 block (8 -> 0)
          v_lshrrev_b32 v5, 1, v4                 ; er
          v_and_b32 v4, 1, v4                     ; wn
          v_lshlrev_b32 v5, 8, v5
          v_lshl_add_u32 v5, v4, 1, v5
          v_and_b32 v4, 1, v0
          v_add_u32 v5, v5, v4
          v_bfe_u32 v4, v0, 1, 3
          v_lshl_add_u32 v5, v4, 5, v5
          v_bfe_u32 v4, v0, 4, 1
          v_lshl_add_u32 v5, v4, 2, v5
          v_add_u32 v5, 24, v5
          v_lshlrev_b32 v5, 7, v5
          v_add_u32 v5, {WS_F1}, v5
          ; U address
          s_and_b32 s4, s{sHD}, 15
          s_mul_i32 s4, s4, {U_ROW}
          s_and_b32 s5, s{sW}, 1
          s_lshl_b32 s5, s5, 3
          s_add_u32 s4, s4, s5
          s_add_u32 s4, s4, {WS_U}
          v_lshl_add_u32 v2, v2, 4, s4
          s_mov_b32 s5, {16*U_GP}
          v_mad_u32_u24 v2, v3, s5, v2""")
    poll(a, 5, 6, -1)
    stamp(a, 15)
    for js in range(8):
        for b in range(2):
            a(f"""s_mov_b32 s4, {(2*js+b)*U_GP}
                  buffer_load_dwordx2 {vr(UF+4*js+2*b,2)}, v2, s[{SWS}:{SWS+3}], s4 offen {LD}""")
    a(f"""v_lshlrev_b32 v10, 11, v252
          v_lshl_add_u32 v10, v3, 4, v10
          s_lshl_b32 s4, s{sC0}, 1
          v_add_u32 v10, s4, v10""")
    for cc in range(4):
        for b in range(2):
            f = MF + 4*(2*cc+b)
            a(f"""v_mov_b32 v{f}, v{MRAW+4*cc+2*b}
                  v_xor_b32 v{f+1}, s{sSGN}, v{MRAW+16+4*cc+2*b}
                  v_mov_b32 v{f+2}, v{MRAW+4*cc+2*b+1}
                  v_xor_b32 v{f+3}, s{sSGN}, v{MRAW+16+4*cc+2*b+1}""")
    for js in range(8):
        a(f"s_waitcnt vmcnt({14-2*js})")
        a(f"{MFMA} {vr(A2,16)}, {vr(UF+4*js,4)}, {vr(MF+4*js,4)}, {'0' if js == 0 else vr(A2,16)}")
    a("s_nop 15")
    for mm in range(2):
        for t in range(4):
            a(f"v_cvt_pk_bf16_f32 v{UF+4*mm+t}, v{A2+8*mm+2*t}, v{A2+8*mm+2*t+1}")
        a(f"buffer_store_dwordx4 {vr(UF+4*mm,4)}, v10, s[{SOUT}:{SOUT+3}], 0 offen offset:{32*mm}")
    stamp(a, 17)
    stamp_flush(a, 18)
    a.label("L_end")
    a("s_endpgm")
    return a

def main():
    a = gen()
    hdr = f"""; {NAME} : one fused kernel (generated by my gen2.py)
; @launch grid=(256,1,1) block=(512,1,1) lds=163840
.amdgcn_target "amdgcn-amd-amdhsa--gfx950"
.text
"""
    kd = f""".section .rodata,"a"
.p2align 6
.amdhsa_kernel {KN}
  .amdhsa_next_free_vgpr 256
  .amdhsa_next_free_sgpr 102
  .amdhsa_accum_offset 256
  .amdhsa_group_segment_fixed_size 0
  .amdhsa_kernarg_size 88
  .amdhsa_user_sgpr_count 2
  .amdhsa_user_sgpr_kernarg_segment_ptr 1
  .amdhsa_system_sgpr_workgroup_id_x 1
.end_amdhsa_kernel
"""
    path = sys.argv[1] if len(sys.argv) > 1 and sys.argv[1].endswith(".s") else f"cdna_kernels/{NAME}.s"
    open(path, "w").write(hdr + a.text() + kd)
main()
```

```python
import sys, struct, math

NAME = "concat_heads__spectral_fnet__sliding_block__prompt"
KN = NAME + "_kernel"
WS_Q, WS_K, WS_V, WS_O, WS_U = 0, 2 << 20, 4 << 20, 6 << 20, 8 << 20
WS_F1, WS_F2 = 12 << 20, 13 << 20
U_ROW = 4224
U_GP = 16 * U_ROW
U_SIZE = 32 * U_GP
QSCALE = 0.25 * math.log2(math.e)
STAMP = "--stamp" in sys.argv
FORCE_SLOW = "--slow" in sys.argv
SKIP = set(int(x) for x in sys.argv[sys.argv.index("--skip")+1].split(",")) if "--skip" in sys.argv else set()
ST = "sc1"
LD = "sc1"
SPIN_MAX = 400000

def f2u(x): return struct.unpack("<I", struct.pack("<f", x))[0]

class Asm:
    def __init__(self): self.L = []
    def __call__(self, s):
        for line in s.strip("\n").split("\n"):
            line = line.strip()
            if line: self.L.append("  " + line)
    def label(self, n): self.L.append(n + ":")
    def text(self): return "\n".join(self.L) + "\n"

def vr(b, n=1): return f"v{b}" if n == 1 else f"v[{b}:{b+n-1}]"
MFMA = "v_mfma_f32_32x32x16_bf16"

kAX, kSR, kSI, kDR, kDI, kBX, kWQ, kWO, kOUT, kDBG, kWS = 64, 66, 68, 70, 72, 74, 76, 78, 80, 82, 84
sTYPE, sRB, sCQ, sW, sNON = 16, 17, 18, 19, 20
sHD, sR = 21, 22
SWS = 32
VST = 255

def srd(a, d, k, size, off=0):
    if off:
        a(f"s_add_u32 s{d}, s{k}, {off}\ns_addc_u32 s{d+1}, s{k+1}, 0")
    else:
        a(f"s_mov_b32 s{d}, s{k}\ns_mov_b32 s{d+1}, s{k+1}")
    a(f"s_mov_b32 s{d+2}, {size}\ns_mov_b32 s{d+3}, 0x20000")

def stamp(a, idx):
    if not STAMP: return
    if idx in SKIP: return
    a(f"""s_memrealtime s[86:87]
          s_memtime s[94:95]
          s_waitcnt lgkmcnt(0)
          v_writelane_b32 v{VST}, s86, {idx}
          v_writelane_b32 v{VST}, s94, {idx+32}""")
def stamp_flush(a, idx):
    if not STAMP: return
    a("s_waitcnt vmcnt(0)")
    stamp(a, idx)
    srd(a, 88, kWS, 0x100000, 16 << 20)
    a(f"""s_mov_b64 exec, -1
          s_lshl_b32 s92, s2, 11
          s_lshl_b32 s93, s{sW}, 8
          s_add_u32 s92, s92, s93
          v_mbcnt_lo_u32_b32 v2, -1, 0
          v_mbcnt_hi_u32_b32 v2, -1, v2
          v_lshlrev_b32 v2, 2, v2
          buffer_store_dword v{VST}, v2, s[88:91], s92 offen""")

uid = [0]
def poll(a, vaddr, vtmp, nl_mask, srdreg=SWS):
    uid[0] += 1
    L = f"poll{uid[0]}"
    a(f"""s_mov_b32 s60, 0
          s_mov_b64 exec, {nl_mask}""")
    a.label(L)
    a(f"""buffer_load_dword v{vtmp}, v{vaddr}, s[{srdreg}:{srdreg+3}], 0 offen sc1
          s_add_u32 s60, s60, 1
          s_cmp_gt_u32 s60, {SPIN_MAX}
          s_cbranch_scc1 {L}x
          s_waitcnt vmcnt(0)
          v_cmp_ne_u32 vcc, s{sNON}, v{vtmp}
          s_cbranch_vccnz {L}""")
    a.label(L + "x")
    a("s_mov_b64 exec, -1")

def publish(a, soff, vtmp):
    a(f"""s_waitcnt vmcnt(0)
          v_mov_b32 v{vtmp}, s{sNON}
          s_mov_b64 exec, 1
          buffer_store_dword v{vtmp}, off, s[{SWS}:{SWS+3}], s{soff} {ST}
          s_mov_b64 exec, -1""")

def nonce_wait(a, vtmp, first_loaded):
    uid[0] += 1
    L = f"non{uid[0]}"
    a("s_mov_b32 s60, 0")
    if first_loaded:
        a(f"s_branch {L}c")
    a.label(L)
    a(f"""buffer_load_dword v{vtmp}, off, s[56:59], 0 sc1
          s_waitcnt vmcnt(0)""")
    a.label(L + "c")
    a(f"""v_readfirstlane_b32 s{sNON}, v{vtmp}
          s_add_u32 s60, s60, 1
          s_cmp_gt_u32 s60, {SPIN_MAX}
          s_cbranch_scc1 {L}x
          s_cmp_eq_u32 s{sNON}, 0
          s_cbranch_scc1 {L}""")
    a.label(L + "x")

def diag_mask(r):
    g, i = r // 4, r % 4
    return (0xffffffff << (8*g+i)) & 0xffffffff, (0xffffffff << (8*g+i+4)) & 0xffffffff

def qflag(a):
    a(f"""s_lshl_b32 s4, s{sR}, 3
          s_add_u32 s4, s4, s{sW}                 ; qb
          s_lshr_b32 s5, s4, 5                    ; rb>>3
          s_bfe_u32 s6, s4, 0x30002               ; rb&7
          s_and_b32 s7, s{sHD}, 24
          s_add_u32 s6, s6, s7
          s_lshl_b32 s6, s6, 3
          s_add_u32 s5, s5, s6
          s_lshl_b32 s5, s5, 2
          s_and_b32 s6, s{sHD}, 2
          s_add_u32 s5, s5, s6
          s_bfe_u32 s6, s4, 0x10001
          s_add_u32 s5, s5, s6
          s_lshl_b32 s5, s5, 7
          s_add_u32 s14, s5, {WS_F1}
          s_lshl_b32 s12, s4, 10
          s_lshl_b32 s5, s{sHD}, 16
          s_add_u32 s12, s12, s5
          v_lshlrev_b32 v1, 4, v0""")

SLOT = 32768
WO_SLOT = [3, 4, 2, 1]
KV_BASE = 0 * SLOT
MRAW = 220
UF = 188
NS = 3

def gen():
    a = Asm()
    a.L += [f".globl {KN}", ".p2align 8", f".type {KN},@function"]
    a.label(KN)
    a(f"""s_cmp_ge_u32 s2, 256
          s_cbranch_scc1 L_end
          s_load_dwordx16 s[64:79], s[0:1], 0
          s_load_dwordx4 s[80:83], s[0:1], 64
          s_load_dwordx2 s[84:85], s[0:1], 80
          v_lshrrev_b32 v1, 6, v0
          v_and_b32 v0, 63, v0
          s_and_b32 s3, s2, 7
          v_readfirstlane_b32 s{sW}, v1
          s_lshr_b32 s{sTYPE}, s3, 1
          s_and_b32 s4, s3, 1
          s_lshl_b32 s4, s4, 3
          s_bfe_u32 s{sRB}, s2, 0x30003
          s_add_u32 s{sRB}, s{sRB}, s4
          s_lshr_b32 s{sCQ}, s2, 6
          s_lshl_b32 s3, s3, 2
          s_bfe_u32 s{sHD}, s2, 0x20003
          s_add_u32 s{sHD}, s{sHD}, s3
          s_lshr_b32 s{sR}, s2, 5""")
    a("v_mov_b32 v252, 0\nv_mov_b32 v253, 0\nv_mov_b32 v254, 0")
    if STAMP: a(f"v_mov_b32 v{VST}, 0")
    stamp(a, 0)
    a(f"""s_cmp_lt_u32 s{sW}, 4
          s_cbranch_scc1 L_consumer""")
    sLW, sXB, sXSH, sWRS, sCB = 23, 24, 25, 26, 27
    sSOX, sSOW, sWST, sM0 = 28, 29, 30, 31
    SX, SWD, SWOD = 36, 40, 44
    sC0, sT1O, sT1S, sSGN = 24, 25, 26, 27
    SMR, SMI = 48, 52
    def m_loads(a):
        srd(a, SMR, kSR, 0x800000)
        srd(a, SMI, kSI, 0x800000)
        a(f"""s_lshr_b32 s4, s{sHD}, 4
          s_lshl_b32 s5, s{sR}, 1
          s_add_u32 s4, s4, s5
          s_lshl_b32 s{sC0}, s4, 5
          s_bfe_u32 s4, s{sHD}, 0x20002
          s_lshl_b32 s4, s4, 3
          s_and_b32 s5, s{sHD}, 3
          s_add_u32 s4, s4, s5
          s_and_b32 s5, s{sLW}, 1
          s_lshl_b32 s5, s5, 2
          s_add_u32 s{sT1S}, s4, s5
          s_sub_u32 s4, 32, s{sT1S}
          s_and_b32 s4, s4, 31
          s_cmp_lt_u32 s{sR}, 4
          s_cselect_b32 s{sT1O}, s{sT1S}, s4
          s_cselect_b32 s{sSGN}, 0x80008000, 0
          v_and_b32 v4, 31, v0
          s_lshr_b32 s4, s{sLW}, 1
          s_lshl_b32 s4, s4, 5
          v_add_u32 v4, s4, v4
          v_lshl_add_u32 v252, v4, 5, s{sT1O}
          v_lshrrev_b32 v5, 5, v0
          v_lshlrev_b32 v6, 12, v252
          v_lshl_add_u32 v6, v5, 6, v6""")
        for cc in range(4):
            a(f"buffer_load_dwordx4 {vr(MRAW+4*cc,4)}, v6, s[{SMR}:{SMR+3}], 0 offen offset:{16*cc}")
            a(f"buffer_load_dwordx4 {vr(MRAW+16+4*cc,4)}, v6, s[{SMI}:{SMI+3}], 0 offen offset:{16*cc}")
    a(f"""s_sub_u32 s{sLW}, s{sW}, 4
          s_cmp_eq_u32 s{sTYPE}, 3
          s_cselect_b32 s{sXSH}, 16, 10
          s_movk_i32 s3, 3072
          s_cselect_b32 s{sWRS}, 1024, s3
          s_lshl_b32 s4, s{sRB}, 2
          s_add_u32 s4, s4, s{sLW}
          s_lshl_b32 s5, s4, 5
          s_cmp_eq_u32 s{sTYPE}, 3
          s_cselect_b32 s{sXB}, s4, s5
          s_lshl_b32 s{sXB}, s{sXB}, 10
          s_lshl_b32 s4, s{sCQ}, 7
          s_lshl_b32 s5, s{sTYPE}, 10
          s_lshl_b32 s6, s{sCQ}, 8
          s_add_u32 s5, s5, s6
          s_lshr_b32 s6, s{sLW}, 1
          s_lshl_b32 s6, s6, 7
          s_add_u32 s5, s5, s6
          s_cmp_eq_u32 s{sTYPE}, 3
          s_cselect_b32 s{sCB}, s4, s5
          s_lshl_b32 s{sWST}, s{sWRS}, 6
          s_lshl_b32 s{sM0}, s{sLW}, 12
          v_lshrrev_b32 v1, 3, v0
          v_and_b32 v2, 7, v0
          v_lshrrev_b32 v3, 4, v0""")
    for jx in range(4):
        a(f"""v_add_u32 v4, {8*jx}, v1
              v_lshlrev_b32 v4, s{sXSH}, v4
              v_add_u32 v5, {4*jx}, v3
              v_and_b32 v5, 7, v5
              v_xor_b32 v5, v5, v2
              v_lshl_add_u32 v4, v5, 4, v4
              v_add_u32 v{8+jx}, s{sXB}, v4""")
    a(f"""s_and_b32 s4, s{sLW}, 1
          s_lshl_b32 s4, s4, 5
          v_and_b32 v5, 1, v3
          v_lshlrev_b32 v5, 2, v5
          v_xor_b32 v5, v5, v2
          v_lshlrev_b32 v5, 4, v5
          v_add_u32 v5, s{sCB}, v5
          v_add_u32 v6, s4, v1""")
    for jw in range(4):
        a(f"""v_add_u32 v4, {8*jw}, v6
              v_mad_u32_u24 v{12+jw}, v4, s{sWRS}, v5""")
    a(f"""s_waitcnt lgkmcnt(0)
          s_cmp_eq_u32 s{sTYPE}, 3
          s_cselect_b32 s{SX}, s{kAX}, s{kBX}
          s_cselect_b32 s{SX+1}, s{kAX+1}, s{kBX+1}
          s_mov_b32 s{SX+2}, 0x200000
          s_mov_b32 s{SX+3}, 0x20000
          s_cmp_lt_u32 s{sLW}, 2
          s_cselect_b32 s4, s{kDR}, s{kDI}
          s_cselect_b32 s5, s{kDR+1}, s{kDI+1}
          s_cmp_eq_u32 s{sTYPE}, 3
          s_cselect_b32 s{SWD}, s4, s{kWQ}
          s_cselect_b32 s{SWD+1}, s5, s{kWQ+1}
          s_mov_b32 s4, 0x180000
          s_cselect_b32 s{SWD+2}, 0x80000, s4
          s_mov_b32 s{SWD+3}, 0x20000
          s_lshl_b32 s4, s{sCQ}, 1
          s_add_u32 s4, s4, s{sRB}
          s_and_b32 s15, s4, 7
          s_lshl_b32 s{sSOX}, s15, 7
          s_mul_i32 s{sSOW}, s15, s{sWST}""")
    stamp(a, 1)
    def issue(st):
        for j in range(8):
            S, so = (SX, sSOX) if j < 4 else (SWD, sSOW)
            a(f"""s_add_u32 m0, s{sM0}, {(st%NS)*SLOT + (j//4)*16384 + (j%4)*1024}
                  s_nop 0
                  buffer_load_dwordx4 v{8+j}, s[{S}:{S+3}], s{so} offen lds""")
        if st < 7:
            a(f"""s_add_u32 s15, s15, 1
                  s_and_b32 s15, s15, 7
                  s_lshl_b32 s{sSOX}, s15, 7
                  s_mul_i32 s{sSOW}, s15, s{sWST}""")
    issue(0); issue(1)
    srd(a, SWS, kWS, 0x1000000)
    srd(a, 56, kDBG, 256)
    srd(a, SWOD, kWO, 0x80000)
    a(f"""; wo voffset: (32lw + (i>>4))*1024 + nb*256 + ((i&15) ^ ((i>>4)<<2))*16 ; nb = (id&7)>>1 = type
          s_lshl_b32 s4, s{sLW}, 5
          v_add_u32 v17, s4, v3
          v_lshlrev_b32 v17, 10, v17
          v_and_b32 v4, 15, v0
          v_lshlrev_b32 v5, 2, v3
          v_xor_b32 v4, v4, v5
          v_lshl_add_u32 v17, v4, 4, v17
          s_lshl_b32 s4, s{sTYPE}, 8
          v_add_u32 v17, s4, v17
          s_lshr_b32 s5, s2, 3
          s_lshl_b32 s5, s5, 2
          s_add_u32 s5, s5, s{sLW}
          s_lshl_b32 s5, s5, 12
          s_add_u32 s4, s4, s5
          v_bfe_u32 v4, v0, 1, 2
          v_lshlrev_b32 v4, 10, v4
          v_and_b32 v5, 1, v0
          v_lshl_add_u32 v4, v5, 7, v4
          v_add_u32 v19, s4, v4""")
    mcode = Asm()
    m_loads(mcode)
    for i in range(8):
        extra = 10 if i >= 6 else 0
        a(f"s_waitcnt vmcnt({(8 if i < 7 else 0) + extra})")
        stamp(a, 2+i)
        a("s_barrier")
        if i + 2 <= 7: issue(i+2)
        if i == 5:
            a("buffer_load_dword v18, off, s[56:59], 0 sc1")
            a(f"buffer_load_dword v20, v19, s[{SWOD}:{SWOD+3}], 0 offen")
            a.L += mcode.L
    a("s_barrier")
    a(f"s_lshl_b32 s5, s{sM0}, 1")
    for qd in range(4):
        for j in range(8):
            a(f"""s_add_u32 m0, s5, {WO_SLOT[qd]*SLOT + j*1024}
                  s_mov_b32 s4, {(128*qd+4*j)*1024}
                  buffer_load_dwordx4 v17, s[{SWOD}:{SWOD+3}], s4 offen lds""")
    stamp(a, 20)
    a("s_waitcnt vmcnt(41)")
    nonce_wait(a, 18, True)
    a(f"""v_and_b32 v2, 0x13, v0
          v_bfe_u32 v3, v0, 2, 1
          v_lshl_or_b32 v2, v3, 3, v2
          v_bfe_u32 v3, v0, 3, 1
          v_lshl_or_b32 v2, v3, 2, v2
          v_add_u32 v2, s{sC0}, v2                ; c
          v_sub_u32 v3, 512, v2
          s_cmp_lt_u32 s{sR}, 4
          s_cselect_b64 vcc, -1, 0
          v_cndmask_b32 v2, v3, v2, vcc           ; e
          s_lshr_b32 s4, s{sC0}, 5
          s_sub_u32 s5, 15, s4
          s_cmp_lt_u32 s{sR}, 4
          s_cselect_b32 s4, s4, s5
          s_cselect_b32 s5, 0, 1
          v_lshrrev_b32 v3, 5, v0                 ; h
          v_mul_u32_u24 v4, s5, v3
          v_add_u32 v4, s4, v4
          v_and_b32 v4, 7, v4                     ; e32 block (8 -> 0)
          v_lshrrev_b32 v5, 1, v4                 ; er
          v_and_b32 v4, 1, v4                     ; wn
          v_lshlrev_b32 v5, 8, v5
          v_lshl_add_u32 v5, v4, 1, v5
          v_and_b32 v4, 1, v0
          v_add_u32 v5, v5, v4
          v_bfe_u32 v4, v0, 1, 3
          v_lshl_add_u32 v5, v4, 5, v5
          v_bfe_u32 v4, v0, 4, 1
          v_lshl_add_u32 v5, v4, 2, v5
          v_add_u32 v5, 24, v5
          v_lshlrev_b32 v5, 7, v5
          v_add_u32 v253, {WS_F1}, v5
          ; U address
          s_and_b32 s4, s{sHD}, 15
          s_mul_i32 s4, s4, {U_ROW}
          s_and_b32 s5, s{sW}, 1
          s_lshl_b32 s5, s5, 3
          s_add_u32 s4, s4, s5
          s_add_u32 s4, s4, {WS_U}
          v_lshl_add_u32 v2, v2, 4, s4
          s_mov_b32 s5, {16*U_GP}
          v_mad_u32_u24 v254, v3, s5, v2""")
    qflag(a)
    a(f"""s_lshl_b32 s4, s{sR}, 1
          s_add_u32 s4, s4, s{sLW}
          s_cmp_lt_u32 s4, 2
          s_cbranch_scc1 L_lq
          s_sub_u32 s4, s4, 2
          s_lshr_b32 s5, s4, 3
          s_and_b32 s6, s4, 7
          s_lshr_b32 s7, s{sHD}, 3
          s_lshl_b32 s7, s7, 3
          s_add_u32 s6, s6, s7
          s_lshl_b32 s6, s6, 3
          s_add_u32 s5, s5, s6
          s_lshl_b32 s5, s5, 2
          s_and_b32 s6, s{sHD}, 2
          s_add_u32 s5, s5, s6                    ; *4 + 2wn
          s_add_u32 s5, s5, 8                     ; type 1
          v_and_b32 v4, 1, v0
          v_bfe_u32 v5, v0, 1, 1
          v_lshl_add_u32 v4, v5, 3, v4
          v_add_u32 v4, s5, v4
          v_lshlrev_b32 v4, 7, v4
          v_add_u32 v4, {WS_F1}, v4
          v_writelane_b32 v4, s14, 4""")
    poll(a, 4, 5, 31)
    stamp(a, 10)
    a(f"""buffer_load_dwordx4 v[4:7], v1, s[{SWS}:{SWS+3}], s12 offen {LD}
          s_lshl_b32 s5, s{sHD}, 16
          s_lshl_b32 s4, s4, 12
          s_add_u32 s4, s4, s5
          s_add_u32 s5, s4, {WS_K}
          s_add_u32 s6, s4, {WS_V}
          s_add_u32 m0, s{sM0}, {KV_BASE}
          s_nop 0""")
    for j in range(4):
        a(f"buffer_load_dwordx4 v1, s[{SWS}:{SWS+3}], s5 offen offset:{1024*j} {LD} lds")
    a(f"""s_add_u32 m0, s{sM0}, {KV_BASE+16384}
          s_nop 0""")
    for j in range(4):
        a(f"buffer_load_dwordx4 v1, s[{SWS}:{SWS+3}], s6 offen offset:{1024*j} {LD} lds")
    a("s_branch L_lc")
    a.label("L_lq")
    a("v_mov_b32 v4, s14")
    poll(a, 4, 5, 1)
    a(f"buffer_load_dwordx4 v[4:7], v1, s[{SWS}:{SWS+3}], s12 offen {LD}")
    a.label("L_lc")
    a(f"buffer_load_dword v187, v253, s[{SWS}:{SWS+3}], 0 offen sc1")
    a("s_branch L_att")

    a.label("L_consumer")
    sWM, sWN, sIT, sDEL = 23, 24, 25, 26
    sMASK = 28
    XA, WA, CPM = 8, 12, 13
    FR, ACC = 32, 64
    CR, CI, NCI = 128, 136, 144
    def X(b, i): return FR + 16*b + 4*i
    def W(b, j): return FR + 16*b + 8 + 4*j
    def AC(i, j): return ACC + 16*(2*i + j)
    a(f"""s_and_b32 s{sWM}, s{sW}, 1
          s_lshr_b32 s{sWN}, s{sW}, 1
          v_and_b32 v1, 31, v0
          v_lshrrev_b32 v2, 5, v0
          v_bfe_u32 v3, v0, 1, 3
          v_xor_b32 v3, v3, v2
          s_lshl_b32 s3, s{sWM}, 13
          v_lshl_add_u32 v4, v1, 7, s3
          s_waitcnt lgkmcnt(0)""")
    srd(a, 56, kDBG, 256)
    a(f"""s_or_b32 s3, s2, s{sW}
          s_cmp_lg_u32 s3, 0
          s_cbranch_scc1 L_nonpub
          s_memrealtime s[4:5]
          s_waitcnt lgkmcnt(0)
          s_or_b32 s4, s4, 1
          v_mov_b32 v5, s4
          s_mov_b64 exec, 1
          buffer_store_dword v5, off, s[56:59], 0 sc0 sc1
          s_mov_b64 exec, -1""")
    a.label("L_nonpub")
    srd(a, SWS, kWS, 0x1000000)
    for kk in range(4):
        a(f"""v_xor_b32 v5, {2*kk}, v3
              v_lshl_add_u32 v{XA+kk}, v5, 4, v4""")
    a(f"""v_bfe_u32 v3, v0, 2, 2
          v_lshl_add_u32 v4, v2, 3, v3
          v_lshlrev_b32 v4, 7, v4
          v_bfe_u32 v5, v0, 4, 1
          v_lshlrev_b32 v5, 1, v5
          v_bfe_u32 v6, v0, 1, 1
          v_add_u32 v5, v5, v6
          s_lshl_b32 s3, s{sWN}, 2
          v_add_u32 v5, s3, v5
          v_bfe_u32 v6, v0, 3, 1
          v_lshlrev_b32 v6, 2, v6
          v_xor_b32 v5, v5, v6
          v_lshl_add_u32 v4, v5, 4, v4
          v_and_b32 v6, 1, v0
          v_lshl_add_u32 v4, v6, 3, v4
          v_add_u32 v{WA}, 16384, v4
          v_mov_b32 v{CPM}, 0xbf803f80""")
    for r in range(64):
        a(f"v_mov_b32 v{ACC+r}, 0")
    a(f"""s_lshl_b32 s3, s{sCQ}, 2
          s_add_u32 s3, s3, s{sWN}
          s_lshl_b32 s3, s3, 2
          s_add_u32 s3, s3, s{sTYPE}
          s_cmp_eq_u32 s3, 3
          s_cselect_b32 s{sMASK}, 1, 0
          s_mov_b32 s{sMASK+1}, s{sMASK}
          s_cmp_lg_u32 s{sTYPE}, 3
          s_cbranch_scc1 L_noconst
          v_lshlrev_b32 v3, 2, v2
          v_mul_u32_u24 v3, v3, v1""")
    for m in range(2):
        for j in range(8):
            cj = 16*m + (j % 4) + 8*(j // 4)
            a(f"""v_mad_u32_u24 v{16+j}, v1, {cj}, v3
                  v_and_b32 v{16+j}, 31, v{16+j}
                  v_cvt_f32_u32 v{16+j}, v{16+j}
                  v_mul_f32 v{16+j}, 0x3d000000, v{16+j}""")
        for j in range(8): a(f"v_cos_f32 v{24+j}, v{16+j}")
        for j in range(8): a(f"v_sin_f32 v{16+j}, v{16+j}")
        a("s_nop 0")
        for j in range(4):
            a(f"""v_cvt_pk_bf16_f32 v{CR+4*m+j}, v{24+2*j}, v{25+2*j}
                  v_cvt_pk_bf16_f32 v{CI+4*m+j}, -v{16+2*j}, -v{17+2*j}
                  v_cvt_pk_bf16_f32 v{NCI+4*m+j}, v{16+2*j}, v{17+2*j}""")
    a.label("L_noconst")
    nonce_wait(a, 5, False)
    def rd(kk, b):
        o = [f"ds_read_b128 {vr(X(b,i),4)}, v{XA+kk} offset:{i*4096}" for i in range(2)]
        o += [f"ds_read_b64_tr_b16 {vr(W(b,j)+2*q,2)}, v{WA} offset:{j*8192 + kk*2048 + q*512}" for j in range(2) for q in range(2)]
        return o
    def mf(b, variant):
        o = []
        for j in range(2):
            for i in range(2):
                A_, B_ = (W(b,j), X(b,i)) if variant == "QK" else (X(b,i), W(b,j))
                o.append(f"{MFMA} {vr(AC(i,j),16)}, {vr(A_,4)}, {vr(B_,4)}, {vr(AC(i,j),16)}")
        return o
    def cnd(b, variant):
        if variant != "VA": return []
        return [f"v_cndmask_b32 v{W(b,1)+t}, v{W(b,1)+t}, v{CPM}, s[{sMASK}:{sMASK+1}]" for t in range(4)]
    def step(b, variant, r):
        m = mf(b, variant)
        for x in cnd(b, variant) + [m[0]] + r[:2] + [m[1]] + r[2:4] + [m[2]] + r[4:] + [m[3]]: a(x)
    a(f"""s_mov_b32 s{sIT}, 0
          s_mov_b32 s30, 0
          s_mov_b32 s27, {SLOT}""")
    stamp(a, 1)
    a("s_barrier")
    stamp(a, 2)
    for x in rd(0, 0): a(x)
    a(f"""s_cmp_ge_u32 s{sTYPE}, 2
          s_cbranch_scc1 L_loopVA""")
    for variant in ("QK", "VA"):
        a.label(f"L_loop{variant}")
        for kk in range(3):
            a("s_waitcnt lgkmcnt(0)")
            step(kk % 2, variant, rd(kk+1, (kk+1) % 2))
        a(f"""s_add_u32 s{sIT}, s{sIT}, 1
              s_add_u32 s30, s30, 1
              s_cmp_eq_u32 s30, {NS}
              s_cselect_b32 s{sDEL}, {-(NS-1)*SLOT}, s27
              s_cselect_b32 s30, 0, s30
              s_cmp_eq_u32 s{sIT}, 8""")
        for kk in range(4):
            a(f"v_add_u32 v{XA+kk}, s{sDEL}, v{XA+kk}")
        a(f"""v_add_u32 v{WA}, s{sDEL}, v{WA}
              s_waitcnt lgkmcnt(0)
              s_cbranch_scc1 L_last{variant}
              s_barrier""")
        step(1, variant, rd(0, 0))
        a(f"s_branch L_loop{variant}")
        a.label(f"L_last{variant}")
        step(1, variant, [])
        stamp(a, 3)
        if variant == "QK":
            a("s_branch L_epiQK")
    a(f"""s_cmp_eq_u32 s{sTYPE}, 3
          s_cbranch_scc1 L_epiA""")
    def ep_base():
        a(f"""s_lshl_b32 s3, s{sCQ}, 3
              s_lshl_b32 s4, s{sWN}, 1
              s_add_u32 s3, s3, s4
              s_lshl_b32 s3, s3, 16
              s_lshl_b32 s4, s{sRB}, 2
              s_lshl_b32 s5, s{sWM}, 1
              s_add_u32 s4, s4, s5
              s_lshl_b32 s4, s4, 10
              s_add_u32 s3, s3, s4
              s_lshl_b32 s4, s{sTYPE}, 21
              s_add_u32 s3, s3, s4""")
    ep_base()
    a(f"""v_bfe_u32 v1, v0, 4, 1
          v_lshlrev_b32 v1, 16, v1
          v_lshrrev_b32 v2, 5, v0
          v_lshl_add_u32 v1, v2, 8, v1
          v_and_b32 v2, 15, v0
          v_lshl_add_u32 v1, v2, 4, v1
          v_add_u32 v1, s3, v1
          s_mov_b32 s4, {4*65536}""")
    for i in range(2):
        for j in range(2):
            for mm in range(2):
                d = FR + 8*(2*i+j) + 4*mm
                for t in range(4):
                    a(f"v_cvt_pk_bf16_f32 v{d+t}, v{AC(i,j)+8*mm+2*t}, v{AC(i,j)+8*mm+2*t+1}")
                so = "0" if j == 0 else "s4"
                a(f"buffer_store_dwordx4 {vr(d,4)}, v1, s[{SWS}:{SWS+3}], {so} offen offset:{i*1024+mm*512} {ST}")
    a("s_branch L_pub1")
    a.label("L_epiQK")
    ep_base()
    a(f"""v_lshl_add_u32 v1, v0, 4, s3
          s_mov_b32 s4, {1*65536}
          s_mov_b32 s5, {4*65536}
          s_mov_b32 s6, {5*65536}
          s_cmp_eq_u32 s{sTYPE}, 0
          s_mov_b32 s3, {f2u(QSCALE):#x}
          s_cselect_b32 s8, s3, 1.0
          s_mov_b32 s9, s8""")
    for j in range(2):
        for i in range(2):
            for t in range(8):
                a(f"v_pk_mul_f32 {vr(AC(i,j)+2*t,2)}, {vr(AC(i,j)+2*t,2)}, s[8:9]")
            for mm in range(2):
                d = FR + 8*(2*i+j) + 4*mm
                for t in range(4):
                    a(f"v_cvt_pk_bf16_f32 v{d+t}, v{AC(i,j)+8*mm+2*t}, v{AC(i,j)+8*mm+2*t+1}")
                so = ["0", "s4", "s5", "s6"][2*j+mm]
                a(f"buffer_store_dwordx4 {vr(d,4)}, v1, s[{SWS}:{SWS+3}], {so} offen offset:{i*1024} {ST}")
    a("s_branch L_pub1")
    a.label("L_epiA")
    PK, SV = FR, 152
    a(f"""s_lshl_b32 s3, s{sRB}, 1
          s_add_u32 s3, s3, s{sWM}
          s_mul_i32 s3, s3, {U_GP}
          s_lshl_b32 s4, s{sCQ}, 10
          s_add_u32 s3, s3, s4
          s_lshl_b32 s4, s{sWN}, 9
          s_add_u32 s3, s3, s4
          s_add_u32 s3, s3, {WS_U}
          v_and_b32 v1, 31, v0
          v_lshl_add_u32 v1, v1, 4, s3
          v_lshrrev_b32 v2, 5, v0
          s_mov_b32 s4, {8*U_ROW}
          v_mad_u32_u24 v1, v2, s4, v1""")
    for j in range(2):
        for p in range(2):
            for t in range(8):
                a(f"v_cvt_pk_bf16_f32 v{PK+16*p+8*j+t}, v{AC(p,j)+2*t}, v{AC(p,j)+2*t+1}")
    a(f"""s_cmp_eq_u32 s{sMASK}, 0
          s_cbranch_scc1 L_nosp1""")
    for p in range(2):
        for t in range(8):
            a(f"v_mov_b32 v{SV+8*p+t}, v{PK+16*p+8+t}")
            a(f"v_cndmask_b32 v{PK+16*p+8+t}, v{PK+16*p+8+t}, 0, s[{sMASK}:{sMASK+1}]")
    a.label("L_nosp1")
    a("s_nop 1")
    def step1(p, aa, bb, with_b=True):
        a(f"{MFMA} {vr(AC(p,0),16)}, {vr(CR,4)}, {vr(aa,4)}, 0")
        a(f"{MFMA} {vr(AC(p,1),16)}, {vr(CI,4)}, {vr(aa,4)}, 0")
        a(f"{MFMA} {vr(AC(p,0),16)}, {vr(CR+4,4)}, {vr(aa+4,4)}, {vr(AC(p,0),16)}")
        a(f"{MFMA} {vr(AC(p,1),16)}, {vr(CI+4,4)}, {vr(aa+4,4)}, {vr(AC(p,1),16)}")
        if with_b:
            for m in range(2):
                a(f"{MFMA} {vr(AC(p,0),16)}, {vr(NCI+4*m,4)}, {vr(bb+4*m,4)}, {vr(AC(p,0),16)}")
                a(f"{MFMA} {vr(AC(p,1),16)}, {vr(CR+4*m,4)}, {vr(bb+4*m,4)}, {vr(AC(p,1),16)}")
    def ustore(special):
        a("s_nop 15")
        D = 168
        for r in range(8):
            d = D + 4*r
            a(f"""v_cvt_pk_bf16_f32 v{d}, v{AC(0,0)+r}, v{AC(1,0)+r}
                  v_cvt_pk_bf16_f32 v{d+1}, v{AC(0,1)+r}, v{AC(1,1)+r}
                  v_cvt_pk_bf16_f32 v{d+2}, v{AC(0,0)+r+8}, v{AC(1,0)+r+8}
                  v_cvt_pk_bf16_f32 v{d+3}, v{AC(0,1)+r+8}, v{AC(1,1)+r+8}""")
            if r > 0:
                st(r-1, special)
        a("s_nop 1")
        st(7, special)
    def st(r, special):
        d = 168 + 4*r
        a(f"""v_permlane32_swap_b32 v{d}, v{d+2}
              v_permlane32_swap_b32 v{d+1}, v{d+3}
              s_mov_b32 s4, {r*U_ROW}""")
        if special: a(f"s_mov_b64 exec, s[{sMASK}:{sMASK+1}]")
        a(f"buffer_store_dwordx4 {vr(d,4)}, v1, s[{SWS}:{SWS+3}], s4 offen {ST}")
        if special: a("s_mov_b64 exec, -1")
    for p in range(2): step1(p, PK+16*p, PK+16*p+8)
    ustore(False)
    a(f"""s_cmp_eq_u32 s{sMASK}, 0
          s_cbranch_scc1 L_pub1""")
    for p in range(2): step1(p, SV+8*p, None, with_b=False)
    a(f"v_add_u32 v1, {256*16}, v1")
    ustore(True)
    a.label("L_pub1")
    stamp(a, 4)
    a("s_barrier")
    a(f"""s_lshl_b32 s3, s2, 2
          s_add_u32 s3, s3, s{sW}
          s_lshl_b32 s3, s3, 7
          s_add_u32 s3, s3, {WS_F1}""")
    publish(a, 3, 2)
    stamp(a, 5)
    qflag(a)
    a("v_mov_b32 v4, s14")
    poll(a, 4, 5, 1)
    a(f"buffer_load_dwordx4 v[4:7], v1, s[{SWS}:{SWS+3}], s12 offen {LD}")

    a.label("L_att")
    QF = 4
    KA, VA_, NINF, MX = 2, 3, 8, 9
    KF, VF, PP, S, O, CN, CD, CF = 12, 24, 40, 48, 80, 96, 112, 128
    sVM, sNF, sI, sQO = 8, 10, 11, 12
    stamp(a, 11)
    a(f"""s_lshl_b32 s4, s{sW}, 10
          s_add_u32 s4, s4, {KV_BASE}
          v_add_u32 v{KA}, s4, v1
          v_lshrrev_b32 v10, 5, v0
          v_and_b32 v11, 15, v0
          v_lshlrev_b32 v11, 4, v11
          v_lshl_add_u32 v11, v10, 8, v11
          s_add_u32 s4, s4, 16384
          v_add_u32 v{VA_}, s4, v11
          v_mov_b32 v{NINF}, 0xff800000
          s_mov_b32 s{sVM}, 0x0000ffff
          s_mov_b32 s{sVM+1}, 0x0000ffff
          s_mov_b32 s6, 0x00110000
          s_mov_b32 s7, 0x00110000
          v_mov_b32 v10, 0x3f803f80""")
    for t in range(16):
        a(f"v_cndmask_b32 v{VF+t}, 0, v10, s[6:7]")
    a(f"""s_cmp_gt_u32 s{sR}, 0
          s_cselect_b32 s{sNF}, 7, s{sW}
          s_sub_u32 s13, 8, s{sNF}
          s_lshl_b32 s13, s13, 10
          s_waitcnt vmcnt(0)
          s_barrier""")
    stamp(a, 12)
    def u_loads():
        for js in range(8):
            for b in range(2):
                a(f"""s_mov_b32 s4, {(2*js+b)*U_GP}
                      buffer_load_dwordx2 {vr(UF+4*js+2*b,2)}, v254, s[{SWS}:{SWS+3}], s4 offen {LD}""")
    a(f"""s_cmp_lt_u32 s{sW}, 4
          s_cbranch_scc1 L_nou
          v_cmp_ne_u32 vcc, s{sNON}, v187
          s_mov_b32 s15, 0
          s_cbranch_vccnz L_nou
          s_mov_b32 s15, 1""")
    u_loads()
    a.label("L_nou")
    def masks(val):
        o = []
        for r in range(16):
            lo, hi = diag_mask(r)
            sp = 4 + 2*(r % 2)
            o.append(f"""s_mov_b32 s{sp}, {lo:#x}
                  s_mov_b32 s{sp+1}, {hi:#x}
                  v_cndmask_b32 v{CD+r}, v{NINF}, {val}, s[{sp}:{sp+1}]
                  v_cndmask_b32 v{CF+r}, {val}, v{NINF}, s[{sp}:{sp+1}]""")
        return o
    def maxblk(S_, first):
        if first:
            a(f"v_max_f32 v{MX}, v{S_}, v{S_+1}")
        for t in range(2 if first else 0, 16, 2):
            a(f"v_max3_f32 v{MX}, v{S_+t}, v{S_+t+1}, v{MX}")
    def xhalf_max():
        a(f"""v_mov_b32 v10, v{MX}
              s_nop 1
              v_permlane32_swap_b32 v10, v{MX}
              s_nop 1
              v_max_f32 v{MX}, v{MX}, v10""")
    if not FORCE_SLOW:
        a(f"""s_cmp_eq_u32 s{sR}, 0
              s_cbranch_scc1 L_slow""")
        order = [7, 6, 5, 4, 3, 2, 1, 8, 0]
        Cof = lambda p: CD if p == 8 else (CF if p == 0 else CN)
        def rdK(n): return f"ds_read_b128 {vr(KF+4*(n%3),4)}, v{KA} offset:{order[n]*1024}"
        def rdV(n):
            b = VF + 8*(n % 2)
            return f"""s_mov_b64 exec, s[{sVM}:{sVM+1}]
                  ds_read_b128 {vr(b,4)}, v{VA_} offset:{order[n]*1024}
                  ds_read_b128 {vr(b+4,4)}, v{VA_} offset:{order[n]*1024+512}
                  s_mov_b64 exec, -1"""
        def mS(n): return f"{MFMA} {vr(S+16*(n%2),16)}, {vr(KF+4*(n%3),4)}, {vr(QF,4)}, {vr(Cof(order[n]),16)}"
        a(rdK(0)); a(rdK(1)); a(rdV(0))
        a(f"""s_waitcnt lgkmcnt(3)
              {MFMA} {vr(S+16,16)}, {vr(KF,4)}, {vr(QF,4)}, 0
              s_nop 11""")
        maxblk(S+16, True)
        xhalf_max()
        a(f"v_sub_f32 v{MX}, 0xc2400000, v{MX}")
        for r in range(16): a(f"v_mov_b32 v{CN+r}, v{MX}")
        a("s_nop 1")
        a(mS(0))
        mk = masks(f"v{MX}")
        for n in range(9):
            Sn = S + 16*(n % 2); Vn = VF + 8*(n % 2)
            if n + 1 < 9:
                a("s_waitcnt lgkmcnt(2)")
                a(mS(n+1))
            if n + 2 < 9: a(rdK(n+2))
            if n + 1 < 9: a(rdV(n+1))
            if n == 0:
                for x in mk: a(x)
            nout = (1 if n + 2 < 9 else 0) + (2 if n + 1 < 9 else 0)
            for r in range(8): a(f"v_exp_f32 v{Sn+r}, v{Sn+r}")
            for t in range(4): a(f"v_cvt_pk_bf16_f32 v{PP+t}, v{Sn+2*t}, v{Sn+2*t+1}")
            for r in range(8, 10): a(f"v_exp_f32 v{Sn+r}, v{Sn+r}")
            a(f"s_waitcnt lgkmcnt({nout})")
            a(f"{MFMA} {vr(O,16)}, {vr(Vn,4)}, {vr(PP,4)}, {'0' if n == 0 else vr(O,16)}")
            for r in range(10, 16): a(f"v_exp_f32 v{Sn+r}, v{Sn+r}")
            for t in range(4, 8): a(f"v_cvt_pk_bf16_f32 v{PP+t}, v{Sn+2*t}, v{Sn+2*t+1}")
            a("s_nop 1")
            a(f"{MFMA} {vr(O,16)}, {vr(Vn+4,4)}, {vr(PP+4,4)}, {vr(O,16)}")
        a(f"""s_nop 11
              v_add_f32 v10, |v{O}|, |v{O+1}|
              v_add_f32 v11, |v{O+2}|, |v{O+3}|
              v_add_f32 v12, |v{O+4}|, |v{O+5}|
              v_add_f32 v13, |v{O+6}|, |v{O+7}|
              v_add_f32 v10, v10, v11
              v_add_f32 v12, v12, v13
              v_mul_f32 v11, 0x5f800000, v{O+8}
              v_add_f32 v10, v10, v12
              v_add_f32 v10, v10, v11
              v_mov_b32 v11, 0x7f800000
              v_cmp_lt_f32 vcc, v10, v11
              v_rcp_f32 v10, v{O+8}
              s_cmp_eq_u64 vcc, -1
              s_cbranch_scc1 L_norm""")
    a.label("L_slow")
    for x in masks("0"): a(x)
    a(f"""ds_read_b128 {vr(KF,4)}, v{KA} offset:{8*1024}
          s_waitcnt lgkmcnt(0)
          {MFMA} {vr(S,16)}, {vr(KF,4)}, {vr(QF,4)}, {vr(CD,16)}
          s_nop 11""")
    maxblk(S, True)
    a(f"""s_cmp_eq_u32 s{sR}, 0
          s_cbranch_scc1 L_s1nofar
          ds_read_b128 {vr(KF,4)}, v{KA}
          s_waitcnt lgkmcnt(0)
          {MFMA} {vr(S,16)}, {vr(KF,4)}, {vr(QF,4)}, {vr(CF,16)}
          s_nop 11""")
    maxblk(S, False)
    a.label("L_s1nofar")
    a(f"""s_mov_b32 s{sI}, s{sNF}
          v_add_u32 v10, s13, v{KA}
          s_cmp_eq_u32 s{sI}, 0
          s_cbranch_scc1 L_s1done""")
    a.label("L_s1loop")
    a(f"""ds_read_b128 {vr(KF,4)}, v10
          v_add_u32 v10, 1024, v10
          s_waitcnt lgkmcnt(0)
          {MFMA} {vr(S,16)}, {vr(KF,4)}, {vr(QF,4)}, 0
          s_nop 11""")
    maxblk(S, False)
    a(f"""s_sub_u32 s{sI}, s{sI}, 1
          s_cmp_lg_u32 s{sI}, 0
          s_cbranch_scc1 L_s1loop""")
    a.label("L_s1done")
    xhalf_max()
    a(f"v_sub_f32 v{MX}, 0, v{MX}")
    for x in masks(f"v{MX}"): a(x)
    for r in range(16): a(f"v_mov_b32 v{CN+r}, v{MX}")
    def pvblk(kaddr, vaddr, off, C, first):
        a(f"""ds_read_b128 {vr(KF,4)}, v{kaddr} offset:{off}
              s_mov_b64 exec, s[{sVM}:{sVM+1}]
              ds_read_b128 {vr(VF,4)}, v{vaddr} offset:{off}
              ds_read_b128 {vr(VF+4,4)}, v{vaddr} offset:{off+512}
              s_mov_b64 exec, -1
              s_waitcnt lgkmcnt(0)
              {MFMA} {vr(S,16)}, {vr(KF,4)}, {vr(QF,4)}, {vr(C,16)}
              s_nop 11""")
        for r in range(16): a(f"v_exp_f32 v{S+r}, v{S+r}")
        for t in range(8): a(f"v_cvt_pk_bf16_f32 v{PP+t}, v{S+2*t}, v{S+2*t+1}")
        a("s_nop 1")
        a(f"{MFMA} {vr(O,16)}, {vr(VF,4)}, {vr(PP,4)}, {'0' if first else vr(O,16)}")
        a(f"{MFMA} {vr(O,16)}, {vr(VF+4,4)}, {vr(PP+4,4)}, {vr(O,16)}")
    pvblk(KA, VA_, 8*1024, CD, True)
    a(f"""s_cmp_eq_u32 s{sR}, 0
          s_cbranch_scc1 L_s2nofar""")
    pvblk(KA, VA_, 0, CF, False)
    a.label("L_s2nofar")
    a(f"""s_mov_b32 s{sI}, s{sNF}
          v_add_u32 v10, s13, v{KA}
          v_add_u32 v11, s13, v{VA_}
          s_cmp_eq_u32 s{sI}, 0
          s_cbranch_scc1 L_s2done""")
    a.label("L_s2loop")
    pvblk(10, 11, 0, CN, False)
    a(f"""v_add_u32 v10, 1024, v10
          v_add_u32 v11, 1024, v11
          s_sub_u32 s{sI}, s{sI}, 1
          s_cmp_lg_u32 s{sI}, 0
          s_cbranch_scc1 L_s2loop""")
    a.label("L_s2done")
    a(f"""s_nop 15
          v_rcp_f32 v10, v{O+8}""")
    a.label("L_norm")
    a("s_nop 0")
    for t in range(8): a(f"v_mul_f32 v{O+t}, v10, v{O+t}")
    for t in range(4): a(f"v_cvt_pk_bf16_f32 v{PP+t}, v{O+2*t}, v{O+2*t+1}")
    a(f"""s_add_u32 s4, s{sQO}, {WS_O}
          buffer_store_dwordx4 {vr(PP,4)}, v1, s[{SWS}:{SWS+3}], s4 offen {ST}
          s_lshl_b32 s4, s{sR}, 3
          s_add_u32 s4, s4, s{sW}
          s_lshl_b32 s4, s4, 5
          s_add_u32 s4, s4, s{sHD}
          s_lshl_b32 s4, s4, 7
          s_add_u32 s3, s4, {WS_F2}""")
    stamp(a, 13)
    publish(a, 3, 10)
    stamp(a, 14)
    a(f"""s_barrier
          s_cmp_ge_u32 s{sW}, 4
          s_cbranch_scc1 L_a2""")
    SOUT = 36
    OA, WA2, ACC2, FR2 = 8, 9, 16, 32
    srd(a, SOUT, kOUT, 0x400000)
    a(f"""s_lshr_b32 s4, s2, 3
          s_lshl_b32 s4, s4, 1
          s_and_b32 s5, s2, 1
          s_add_u32 s4, s4, s5                    ; qb'
          s_lshl_b32 s5, s4, 5
          s_lshl_b32 s6, s{sW}, 3
          s_add_u32 s5, s5, s6
          v_add_u32 v4, s5, v0
          v_lshlrev_b32 v4, 7, v4
          v_add_u32 v4, {WS_F2}, v4
          s_lshl_b32 s5, s{sW}, 19
          s_lshl_b32 s6, s4, 10
          s_add_u32 s5, s5, s6
          s_add_u32 s5, s5, {WS_O}
          s_lshl_b32 s6, s{sW}, 13
          s_add_u32 s6, s6, {KV_BASE}
          v_add_u32 v{OA}, {KV_BASE}, v1
          v_lshrrev_b32 v2, 5, v0
          v_bfe_u32 v3, v0, 2, 2
          v_lshl_add_u32 v6, v2, 2, v3
          v_lshlrev_b32 v6, 8, v6
          v_bfe_u32 v5, v0, 4, 1
          v_lshlrev_b32 v5, 1, v5
          v_and_b32 v7, 1, v0
          v_add_u32 v5, v5, v7
          v_xor_b32 v3, s{sW}, v3
          v_lshl_add_u32 v5, v3, 2, v5
          v_lshl_add_u32 v6, v5, 4, v6
          v_bfe_u32 v7, v0, 1, 1
          v_lshl_add_u32 v6, v7, 3, v6""")
    for qd in range(4):
        a(f"v_add_u32 v{WA2+qd}, {WO_SLOT[qd]*SLOT}, v6")
    a(f"""v_and_b32 v14, 31, v0
          s_lshl_b32 s7, s4, 5
          v_add_u32 v14, s7, v14
          v_lshlrev_b32 v14, 11, v14
          v_lshl_add_u32 v14, v2, 4, v14
          s_lshl_b32 s7, s{sTYPE}, 8
          s_lshl_b32 s8, s{sW}, 6
          s_add_u32 s7, s7, s8
          s_add_u32 s7, s7, 1024
          v_add_u32 v14, s7, v14""")
    poll(a, 4, 5, 255)
    stamp(a, 15)
    for j in range(8):
        a(f"""s_add_u32 m0, s6, {j*1024}
              s_add_u32 s7, s5, {j*65536}
              buffer_load_dwordx4 v1, s[{SWS}:{SWS+3}], s7 offen {LD} lds""")
    def wrd(qd, k, f):
        return [f"ds_read_b64_tr_b16 {vr(f+4+2*q,2)}, v{WA2+qd} offset:{k*4096 + q*2048}" for q in range(2)]
    for k in range(8):
        for x in wrd(0, k, FR2+8*k): a(x)
    a(f"""s_waitcnt vmcnt(0)
          s_barrier""")
    stamp(a, 16)
    for k in range(8):
        a(f"ds_read_b128 {vr(FR2+8*k,4)}, v{OA} offset:{k*1024}")
    for qd in range(4):
        for k in range(8):
            f = FR2 + 64*(qd % 2) + 8*k
            fn = FR2 + 64*((qd+1) % 2) + 8*k
            if qd == 0:
                a(f"s_waitcnt lgkmcnt({min(15, 7-k + 3*k)})")
            else:
                a(f"s_waitcnt lgkmcnt({min(15, 3*(7-k) + (3*k if qd < 3 else 0))})")
            c = "0" if (qd == 0 and k == 0) else vr(ACC2,16)
            a(f"{MFMA} {vr(ACC2,16)}, {vr(f+4,4)}, {vr(f,4)}, {c}")
            if qd < 3:
                a(f"ds_read_b128 {vr(fn,4)}, v{OA} offset:{(8*(qd+1)+k)*1024}")
                for x in wrd(qd+1, k, fn): a(x)
    a("s_nop 15")
    for mm in range(2):
        for t in range(4):
            a(f"v_cvt_pk_bf16_f32 v{FR2+4*mm+t}, v{ACC2+8*mm+2*t}, v{ACC2+8*mm+2*t+1}")
        a(f"buffer_store_dwordx4 {vr(FR2+4*mm,4)}, v14, s[{SOUT}:{SOUT+3}], 0 offen offset:{32*mm}")
    stamp(a, 17)
    stamp_flush(a, 18)
    a("s_endpgm")
    a.label("L_a2")
    MF, A2 = 48, 80
    srd(a, SOUT, kOUT, 0x400000)
    a("""s_cmp_lg_u32 s15, 0
          s_cbranch_scc1 L_uok""")
    poll(a, 253, 6, -1)
    u_loads()
    a.label("L_uok")
    stamp(a, 15)
    a("v_lshrrev_b32 v3, 5, v0")
    a(f"""v_lshlrev_b32 v10, 11, v252
          v_lshl_add_u32 v10, v3, 4, v10
          s_lshl_b32 s4, s{sC0}, 1
          v_add_u32 v10, s4, v10""")
    for cc in range(4):
        for b in range(2):
            f = MF + 4*(2*cc+b)
            a(f"""v_mov_b32 v{f}, v{MRAW+4*cc+2*b}
                  v_xor_b32 v{f+1}, s{sSGN}, v{MRAW+16+4*cc+2*b}
                  v_mov_b32 v{f+2}, v{MRAW+4*cc+2*b+1}
                  v_xor_b32 v{f+3}, s{sSGN}, v{MRAW+16+4*cc+2*b+1}""")
    for js in range(8):
        a(f"s_waitcnt vmcnt({14-2*js})")
        a(f"{MFMA} {vr(A2,16)}, {vr(UF+4*js,4)}, {vr(MF+4*js,4)}, {'0' if js == 0 else vr(A2,16)}")
    a("s_nop 15")
    for mm in range(2):
        for t in range(4):
            a(f"v_cvt_pk_bf16_f32 v{16+4*mm+t}, v{A2+8*mm+2*t}, v{A2+8*mm+2*t+1}")
        a(f"buffer_store_dwordx4 {vr(16+4*mm,4)}, v10, s[{SOUT}:{SOUT+3}], 0 offen offset:{32*mm}")
    stamp(a, 17)
    stamp_flush(a, 18)
    a.label("L_end")
    a("s_endpgm")
    return a

def main():
    a = gen()
    hdr = f"""; {NAME} : one fused kernel (generated by my gen2.py)
; @launch grid=(256,1,1) block=(512,1,1) lds=163840
.amdgcn_target "amdgcn-amd-amdhsa--gfx950"
.text
"""
    kd = f""".section .rodata,"a"
.p2align 6
.amdhsa_kernel {KN}
  .amdhsa_next_free_vgpr 256
  .amdhsa_next_free_sgpr 102
  .amdhsa_accum_offset 256
  .amdhsa_group_segment_fixed_size 0
  .amdhsa_kernarg_size 88
  .amdhsa_user_sgpr_count 2
  .amdhsa_user_sgpr_kernarg_segment_ptr 1
  .amdhsa_system_sgpr_workgroup_id_x 1
.end_amdhsa_kernel
"""
    path = sys.argv[1] if len(sys.argv) > 1 and sys.argv[1].endswith(".s") else f"cdna_kernels/{NAME}.s"
    open(path, "w").write(hdr + a.text() + kd)
main()
```

```python
import sys, struct, math

NAME = "concat_heads__spectral_fnet__sliding_block__prompt"
KN = NAME + "_kernel"
WS_Q, WS_K, WS_V, WS_O, WS_U = 0, 2 << 20, 4 << 20, 6 << 20, 8 << 20
WS_F1, WS_F2 = 12 << 20, 13 << 20
U_ROW = 4224
U_GP = 16 * U_ROW
U_SIZE = 32 * U_GP
QSCALE = 0.25 * math.log2(math.e)
uid = [0]
STAMP = "--stamp" in sys.argv
FORCE_SLOW = "--slow" in sys.argv
SKIP = set(int(x) for x in sys.argv[sys.argv.index("--skip")+1].split(",")) if "--skip" in sys.argv else set()
ST = "sc1"
LD = "sc1"
SPIN_MAX = 400000

def f2u(x): return struct.unpack("<I", struct.pack("<f", x))[0]

class Asm:
    def __init__(self): self.L = []
    def __call__(self, s):
        for line in s.strip("\n").split("\n"):
            line = line.strip()
            if line: self.L.append("  " + line)
    def label(self, n): self.L.append(n + ":")
    def text(self): return "\n".join(self.L) + "\n"

def vr(b, n=1): return f"v{b}" if n == 1 else f"v[{b}:{b+n-1}]"
MFMA = "v_mfma_f32_32x32x16_bf16"

kAX, kSR, kSI, kDR, kDI, kBX, kWQ, kWO, kOUT, kDBG, kWS = 64, 66, 68, 70, 72, 74, 76, 78, 80, 82, 84
sTYPE, sRB, sCQ, sW, sNON = 16, 17, 18, 19, 20
sHD, sR = 21, 22
SWS = 32
VST = 255

def srd(a, d, k, size, off=0):
    if off:
        a(f"s_add_u32 s{d}, s{k}, {off}\ns_addc_u32 s{d+1}, s{k+1}, 0")
    else:
        a(f"s_mov_b32 s{d}, s{k}\ns_mov_b32 s{d+1}, s{k+1}")
    a(f"s_mov_b32 s{d+2}, {size}\ns_mov_b32 s{d+3}, 0x20000")

AMP = [int(x) for x in sys.argv[sys.argv.index("--amp")+1].split(",")] if "--amp" in sys.argv else None
def amp_end(a):
    if not AMP: return
    uid[0] += 1
    L = f"amp{uid[0]}"
    a(f"""s_cmp_lg_u32 s2, {AMP[3]}
          s_cbranch_scc1 {L}x
          s_cmp_lg_u32 s{sW}, {AMP[4]}
          s_cbranch_scc1 {L}x
          s_waitcnt vmcnt(0)
          s_memrealtime s[86:87]
          s_sub_u32 s96, s97, s96
          s_min_u32 s96, s96, 10000
          s_mul_i32 s96, s96, {AMP[2]}
          s_waitcnt lgkmcnt(0)
          s_add_u32 s96, s96, s86""")
    a.label(L)
    a(f"""s_memrealtime s[86:87]
          s_waitcnt lgkmcnt(0)
          s_sub_u32 s88, s86, s96
          s_cmp_lt_i32 s88, 0
          s_cbranch_scc1 {L}""")
    a.label(L + "x")
def stamp(a, idx):
    if AMP and idx in AMP[:2]:
        a(f"""s_memrealtime s[86:87]
              s_waitcnt lgkmcnt(0)
              s_mov_b32 s{96 + AMP[:2].index(idx)}, s86""")
    if not STAMP: return
    if idx in SKIP: return
    a(f"""s_memrealtime s[86:87]
          s_memtime s[94:95]
          s_waitcnt lgkmcnt(0)
          v_writelane_b32 v{VST}, s86, {idx}
          v_writelane_b32 v{VST}, s94, {idx+32}""")
def stamp_flush(a, idx):
    if AMP:
        if idx in AMP[:2]: a("s_waitcnt vmcnt(0)")
        stamp(a, idx)
        amp_end(a)
    if not STAMP: return
    a("s_waitcnt vmcnt(0)")
    stamp(a, idx)
    srd(a, 88, kWS, 0x100000, 16 << 20)
    a(f"""s_mov_b64 exec, -1
          s_lshl_b32 s92, s2, 11
          s_lshl_b32 s93, s{sW}, 8
          s_add_u32 s92, s92, s93
          v_mbcnt_lo_u32_b32 v2, -1, 0
          v_mbcnt_hi_u32_b32 v2, -1, v2
          v_lshlrev_b32 v2, 2, v2
          buffer_store_dword v{VST}, v2, s[88:91], s92 offen""")

def poll(a, vaddr, vtmp, nl_mask, srdreg=SWS):
    uid[0] += 1
    L = f"poll{uid[0]}"
    a(f"""s_mov_b32 s60, 0
          s_mov_b64 exec, {nl_mask}""")
    a.label(L)
    a(f"""buffer_load_dword v{vtmp}, v{vaddr}, s[{srdreg}:{srdreg+3}], 0 offen sc1
          s_add_u32 s60, s60, 1
          s_cmp_gt_u32 s60, {SPIN_MAX}
          s_cbranch_scc1 {L}x
          s_waitcnt vmcnt(0)
          v_cmp_ne_u32 vcc, s{sNON}, v{vtmp}
          s_cbranch_vccnz {L}""")
    a.label(L + "x")
    a("s_mov_b64 exec, -1")

def publish(a, soff, vtmp):
    a(f"""s_waitcnt vmcnt(0)
          v_mov_b32 v{vtmp}, s{sNON}
          s_mov_b64 exec, 1
          buffer_store_dword v{vtmp}, off, s[{SWS}:{SWS+3}], s{soff} {ST}
          s_mov_b64 exec, -1""")

def nonce_wait(a, vtmp, first_loaded):
    uid[0] += 1
    L = f"non{uid[0]}"
    a("s_mov_b32 s60, 0")
    if first_loaded:
        a(f"s_branch {L}c")
    a.label(L)
    a(f"""buffer_load_dword v{vtmp}, off, s[56:59], 0 sc1
          s_waitcnt vmcnt(0)""")
    a.label(L + "c")
    a(f"""v_readfirstlane_b32 s{sNON}, v{vtmp}
          s_add_u32 s60, s60, 1
          s_cmp_gt_u32 s60, {SPIN_MAX}
          s_cbranch_scc1 {L}x
          s_cmp_eq_u32 s{sNON}, 0
          s_cbranch_scc1 {L}""")
    a.label(L + "x")

def diag_mask(r):
    g, i = r // 4, r % 4
    return (0xffffffff << (8*g+i)) & 0xffffffff, (0xffffffff << (8*g+i+4)) & 0xffffffff

def qflag(a):
    a(f"""s_lshl_b32 s4, s{sR}, 3
          s_add_u32 s4, s4, s{sW}                 ; qb
          s_lshr_b32 s5, s4, 5                    ; rb>>3
          s_bfe_u32 s6, s4, 0x30002               ; rb&7
          s_and_b32 s7, s{sHD}, 24
          s_add_u32 s6, s6, s7
          s_lshl_b32 s6, s6, 3
          s_add_u32 s5, s5, s6
          s_lshl_b32 s5, s5, 2
          s_and_b32 s6, s{sHD}, 2
          s_add_u32 s5, s5, s6
          s_bfe_u32 s6, s4, 0x10001
          s_add_u32 s5, s5, s6
          s_lshl_b32 s5, s5, 7
          s_add_u32 s14, s5, {WS_F1}
          s_lshl_b32 s12, s4, 10
          s_lshl_b32 s5, s{sHD}, 16
          s_add_u32 s12, s12, s5
          v_lshlrev_b32 v1, 4, v0""")

SLOT = 32768
WO_SLOT = [3, 4, 2, 1]
KV_BASE = 0 * SLOT
MRAW = 220
UF = 188
NS = 3

def gen():
    a = Asm()
    a.L += [f".globl {KN}", ".p2align 8", f".type {KN},@function"]
    a.label(KN)
    a(f"""s_cmp_ge_u32 s2, 256
          s_cbranch_scc1 L_end
          s_load_dwordx16 s[64:79], s[0:1], 0
          s_load_dwordx4 s[80:83], s[0:1], 64
          s_load_dwordx2 s[84:85], s[0:1], 80
          v_lshrrev_b32 v1, 6, v0
          v_and_b32 v0, 63, v0
          s_and_b32 s3, s2, 7
          v_readfirstlane_b32 s{sW}, v1
          s_lshr_b32 s{sTYPE}, s3, 1
          s_and_b32 s4, s3, 1
          s_lshl_b32 s4, s4, 3
          s_bfe_u32 s{sRB}, s2, 0x30003
          s_add_u32 s{sRB}, s{sRB}, s4
          s_lshr_b32 s{sCQ}, s2, 6
          s_lshl_b32 s3, s3, 2
          s_bfe_u32 s{sHD}, s2, 0x20003
          s_add_u32 s{sHD}, s{sHD}, s3
          s_lshr_b32 s{sR}, s2, 5""")
    a("v_mov_b32 v252, 0\nv_mov_b32 v253, 0\nv_mov_b32 v254, 0")
    if STAMP: a(f"v_mov_b32 v{VST}, 0")
    stamp(a, 0)
    a(f"""s_cmp_lt_u32 s{sW}, 4
          s_cbranch_scc1 L_consumer""")
    sLW, sXB, sXSH, sWRS, sCB = 23, 24, 25, 26, 27
    sSOX, sSOW, sWST, sM0 = 28, 29, 30, 31
    SX, SWD, SWOD = 36, 40, 44
    sC0, sT1O, sT1S, sSGN = 24, 25, 26, 27
    SMR, SMI = 48, 52
    def m_loads(a):
        srd(a, SMR, kSR, 0x800000)
        srd(a, SMI, kSI, 0x800000)
        a(f"""s_lshr_b32 s4, s{sHD}, 4
          s_lshl_b32 s5, s{sR}, 1
          s_add_u32 s4, s4, s5
          s_lshl_b32 s{sC0}, s4, 5
          s_bfe_u32 s4, s{sHD}, 0x20002
          s_lshl_b32 s4, s4, 3
          s_and_b32 s5, s{sHD}, 3
          s_add_u32 s4, s4, s5
          s_and_b32 s5, s{sLW}, 1
          s_lshl_b32 s5, s5, 2
          s_add_u32 s{sT1S}, s4, s5
          s_sub_u32 s4, 32, s{sT1S}
          s_and_b32 s4, s4, 31
          s_cmp_lt_u32 s{sR}, 4
          s_cselect_b32 s{sT1O}, s{sT1S}, s4
          s_cselect_b32 s{sSGN}, 0x80008000, 0
          v_and_b32 v4, 31, v0
          s_lshr_b32 s4, s{sLW}, 1
          s_lshl_b32 s4, s4, 5
          v_add_u32 v4, s4, v4
          v_lshl_add_u32 v252, v4, 5, s{sT1O}
          v_lshrrev_b32 v5, 5, v0
          v_lshlrev_b32 v6, 12, v252
          v_lshl_add_u32 v6, v5, 6, v6""")
        for cc in range(4):
            a(f"buffer_load_dwordx4 {vr(MRAW+4*cc,4)}, v6, s[{SMR}:{SMR+3}], 0 offen offset:{16*cc}")
            a(f"buffer_load_dwordx4 {vr(MRAW+16+4*cc,4)}, v6, s[{SMI}:{SMI+3}], 0 offen offset:{16*cc}")
    a(f"""s_sub_u32 s{sLW}, s{sW}, 4
          s_cmp_eq_u32 s{sTYPE}, 3
          s_cselect_b32 s{sXSH}, 16, 10
          s_movk_i32 s3, 3072
          s_cselect_b32 s{sWRS}, 1024, s3
          s_lshl_b32 s4, s{sRB}, 2
          s_add_u32 s4, s4, s{sLW}
          s_lshl_b32 s5, s4, 5
          s_cmp_eq_u32 s{sTYPE}, 3
          s_cselect_b32 s{sXB}, s4, s5
          s_lshl_b32 s{sXB}, s{sXB}, 10
          s_lshl_b32 s4, s{sCQ}, 7
          s_lshl_b32 s5, s{sTYPE}, 10
          s_lshl_b32 s6, s{sCQ}, 8
          s_add_u32 s5, s5, s6
          s_lshr_b32 s6, s{sLW}, 1
          s_lshl_b32 s6, s6, 7
          s_add_u32 s5, s5, s6
          s_cmp_eq_u32 s{sTYPE}, 3
          s_cselect_b32 s{sCB}, s4, s5
          s_lshl_b32 s{sWST}, s{sWRS}, 6
          s_lshl_b32 s{sM0}, s{sLW}, 12
          v_lshrrev_b32 v1, 3, v0
          v_and_b32 v2, 7, v0
          v_lshrrev_b32 v3, 4, v0""")
    for jx in range(4):
        a(f"""v_add_u32 v4, {8*jx}, v1
              v_lshlrev_b32 v4, s{sXSH}, v4
              v_add_u32 v5, {4*jx}, v3
              v_and_b32 v5, 7, v5
              v_xor_b32 v5, v5, v2
              v_lshl_add_u32 v4, v5, 4, v4
              v_add_u32 v{8+jx}, s{sXB}, v4""")
    a(f"""s_and_b32 s4, s{sLW}, 1
          s_lshl_b32 s4, s4, 5
          v_and_b32 v5, 1, v3
          v_lshlrev_b32 v5, 2, v5
          v_xor_b32 v5, v5, v2
          v_lshlrev_b32 v5, 4, v5
          v_add_u32 v5, s{sCB}, v5
          v_add_u32 v6, s4, v1""")
    for jw in range(4):
        a(f"""v_add_u32 v4, {8*jw}, v6
              v_mad_u32_u24 v{12+jw}, v4, s{sWRS}, v5""")
    a(f"""s_waitcnt lgkmcnt(0)
          s_cmp_eq_u32 s{sTYPE}, 3
          s_cselect_b32 s{SX}, s{kAX}, s{kBX}
          s_cselect_b32 s{SX+1}, s{kAX+1}, s{kBX+1}
          s_mov_b32 s{SX+2}, 0x200000
          s_mov_b32 s{SX+3}, 0x20000
          s_cmp_lt_u32 s{sLW}, 2
          s_cselect_b32 s4, s{kDR}, s{kDI}
          s_cselect_b32 s5, s{kDR+1}, s{kDI+1}
          s_cmp_eq_u32 s{sTYPE}, 3
          s_cselect_b32 s{SWD}, s4, s{kWQ}
          s_cselect_b32 s{SWD+1}, s5, s{kWQ+1}
          s_mov_b32 s4, 0x180000
          s_cselect_b32 s{SWD+2}, 0x80000, s4
          s_mov_b32 s{SWD+3}, 0x20000
          s_lshl_b32 s4, s{sCQ}, 1
          s_add_u32 s4, s4, s{sRB}
          s_and_b32 s15, s4, 7
          s_lshl_b32 s{sSOX}, s15, 7
          s_mul_i32 s{sSOW}, s15, s{sWST}""")
    stamp(a, 1)
    def issue(st):
        for j in range(8):
            S, so = (SX, sSOX) if j < 4 else (SWD, sSOW)
            a(f"""s_add_u32 m0, s{sM0}, {(st%NS)*SLOT + (j//4)*16384 + (j%4)*1024}
                  s_nop 0
                  buffer_load_dwordx4 v{8+j}, s[{S}:{S+3}], s{so} offen lds""")
        if st < 7:
            a(f"""s_add_u32 s15, s15, 1
                  s_and_b32 s15, s15, 7
                  s_lshl_b32 s{sSOX}, s15, 7
                  s_mul_i32 s{sSOW}, s15, s{sWST}""")
    issue(0); issue(1)
    srd(a, SWS, kWS, 0x1000000)
    srd(a, 56, kDBG, 256)
    srd(a, SWOD, kWO, 0x80000)
    a(f"""; wo voffset: (32lw + (i>>4))*1024 + nb*256 + ((i&15) ^ ((i>>4)<<2))*16 ; nb = (id&7)>>1 = type
          s_lshl_b32 s4, s{sLW}, 5
          v_add_u32 v17, s4, v3
          v_lshlrev_b32 v17, 10, v17
          v_and_b32 v4, 15, v0
          v_lshlrev_b32 v5, 2, v3
          v_xor_b32 v4, v4, v5
          v_lshl_add_u32 v17, v4, 4, v17
          s_lshl_b32 s4, s{sTYPE}, 8
          v_add_u32 v17, s4, v17
          s_lshr_b32 s5, s2, 3
          s_lshl_b32 s5, s5, 2
          s_add_u32 s5, s5, s{sLW}
          s_lshl_b32 s5, s5, 12
          s_add_u32 s4, s4, s5
          v_bfe_u32 v4, v0, 1, 2
          v_lshlrev_b32 v4, 10, v4
          v_and_b32 v5, 1, v0
          v_lshl_add_u32 v4, v5, 7, v4
          v_add_u32 v19, s4, v4""")
    mcode = Asm()
    m_loads(mcode)
    for i in range(8):
        extra = 10 if i >= 6 else 0
        a(f"s_waitcnt vmcnt({(8 if i < 7 else 0) + extra})")
        stamp(a, 2+i)
        a("s_barrier")
        if i + 2 <= 7: issue(i+2)
        if i == 5:
            a("buffer_load_dword v18, off, s[56:59], 0 sc1")
            a(f"buffer_load_dword v20, v19, s[{SWOD}:{SWOD+3}], 0 offen")
            a.L += mcode.L
    a("s_barrier")
    a(f"s_lshl_b32 s5, s{sM0}, 1")
    for qd in range(4):
        for j in range(8):
            a(f"""s_add_u32 m0, s5, {WO_SLOT[qd]*SLOT + j*1024}
                  s_mov_b32 s4, {(128*qd+4*j)*1024}
                  buffer_load_dwordx4 v17, s[{SWOD}:{SWOD+3}], s4 offen lds""")
    stamp(a, 20)
    a("s_waitcnt vmcnt(41)")
    nonce_wait(a, 18, True)
    a(f"""v_and_b32 v2, 0x13, v0
          v_bfe_u32 v3, v0, 2, 1
          v_lshl_or_b32 v2, v3, 3, v2
          v_bfe_u32 v3, v0, 3, 1
          v_lshl_or_b32 v2, v3, 2, v2
          v_add_u32 v2, s{sC0}, v2                ; c
          v_sub_u32 v3, 512, v2
          s_cmp_lt_u32 s{sR}, 4
          s_cselect_b64 vcc, -1, 0
          v_cndmask_b32 v2, v3, v2, vcc           ; e
          s_lshr_b32 s4, s{sC0}, 5
          s_sub_u32 s5, 15, s4
          s_cmp_lt_u32 s{sR}, 4
          s_cselect_b32 s4, s4, s5
          s_cselect_b32 s5, 0, 1
          v_lshrrev_b32 v3, 5, v0                 ; h
          v_mul_u32_u24 v4, s5, v3
          v_add_u32 v4, s4, v4
          v_and_b32 v4, 7, v4                     ; e32 block (8 -> 0)
          v_lshrrev_b32 v5, 1, v4                 ; er
          v_and_b32 v4, 1, v4                     ; wn
          v_lshlrev_b32 v5, 8, v5
          v_lshl_add_u32 v5, v4, 1, v5
          v_and_b32 v4, 1, v0
          v_add_u32 v5, v5, v4
          v_bfe_u32 v4, v0, 1, 3
          v_lshl_add_u32 v5, v4, 5, v5
          v_bfe_u32 v4, v0, 4, 1
          v_lshl_add_u32 v5, v4, 2, v5
          v_add_u32 v5, 24, v5
          v_lshlrev_b32 v5, 7, v5
          v_add_u32 v253, {WS_F1}, v5
          ; U address
          s_and_b32 s4, s{sHD}, 15
          s_mul_i32 s4, s4, {U_ROW}
          s_and_b32 s5, s{sW}, 1
          s_lshl_b32 s5, s5, 3
          s_add_u32 s4, s4, s5
          s_add_u32 s4, s4, {WS_U}
          v_lshl_add_u32 v2, v2, 4, s4
          s_mov_b32 s5, {16*U_GP}
          v_mad_u32_u24 v254, v3, s5, v2""")
    qflag(a)
    a(f"""s_lshl_b32 s4, s{sR}, 1
          s_add_u32 s4, s4, s{sLW}
          s_cmp_lt_u32 s4, 2
          s_cbranch_scc1 L_lq
          s_sub_u32 s4, s4, 2
          s_lshr_b32 s5, s4, 3
          s_and_b32 s6, s4, 7
          s_lshr_b32 s7, s{sHD}, 3
          s_lshl_b32 s7, s7, 3
          s_add_u32 s6, s6, s7
          s_lshl_b32 s6, s6, 3
          s_add_u32 s5, s5, s6
          s_lshl_b32 s5, s5, 2
          s_and_b32 s6, s{sHD}, 2
          s_add_u32 s5, s5, s6                    ; *4 + 2wn
          s_add_u32 s5, s5, 8                     ; type 1
          v_and_b32 v4, 1, v0
          v_bfe_u32 v5, v0, 1, 1
          v_lshl_add_u32 v4, v5, 3, v4
          v_add_u32 v4, s5, v4
          v_lshlrev_b32 v4, 7, v4
          v_add_u32 v4, {WS_F1}, v4
          v_writelane_b32 v4, s14, 4""")
    poll(a, 4, 5, 31)
    stamp(a, 10)
    a(f"""buffer_load_dwordx4 v[4:7], v1, s[{SWS}:{SWS+3}], s12 offen {LD}
          s_lshl_b32 s5, s{sHD}, 16
          s_lshl_b32 s4, s4, 12
          s_add_u32 s4, s4, s5
          s_add_u32 s5, s4, {WS_K}
          s_add_u32 s6, s4, {WS_V}
          s_add_u32 m0, s{sM0}, {KV_BASE}
          s_nop 0""")
    for j in range(4):
        a(f"buffer_load_dwordx4 v1, s[{SWS}:{SWS+3}], s5 offen offset:{1024*j} {LD} lds")
    a(f"""s_add_u32 m0, s{sM0}, {KV_BASE+16384}
          s_nop 0""")
    for j in range(4):
        a(f"buffer_load_dwordx4 v1, s[{SWS}:{SWS+3}], s6 offen offset:{1024*j} {LD} lds")
    a("s_branch L_lc")
    a.label("L_lq")
    a("v_mov_b32 v4, s14")
    poll(a, 4, 5, 1)
    a(f"buffer_load_dwordx4 v[4:7], v1, s[{SWS}:{SWS+3}], s12 offen {LD}")
    a.label("L_lc")
    a(f"buffer_load_dword v187, v253, s[{SWS}:{SWS+3}], 0 offen sc1")
    a("s_branch L_att")

    a.label("L_consumer")
    sWM, sWN, sIT, sDEL = 23, 24, 25, 26
    sMASK = 28
    XA, WA, CPM = 8, 12, 13
    FR, ACC = 32, 64
    CR, CI, NCI = 128, 136, 144
    def X(b, i): return FR + 16*b + 4*i
    def W(b, j): return FR + 16*b + 8 + 4*j
    def AC(i, j): return ACC + 16*(2*i + j)
    a(f"""s_and_b32 s{sWM}, s{sW}, 1
          s_lshr_b32 s{sWN}, s{sW}, 1
          v_and_b32 v1, 31, v0
          v_lshrrev_b32 v2, 5, v0
          v_bfe_u32 v3, v0, 1, 3
          v_xor_b32 v3, v3, v2
          s_lshl_b32 s3, s{sWM}, 13
          v_lshl_add_u32 v4, v1, 7, s3
          s_waitcnt lgkmcnt(0)""")
    srd(a, 56, kDBG, 256)
    a(f"""s_or_b32 s3, s2, s{sW}
          s_cmp_lg_u32 s3, 0
          s_cbranch_scc1 L_nonpub
          s_memrealtime s[4:5]
          s_waitcnt lgkmcnt(0)
          s_or_b32 s4, s4, 1
          v_mov_b32 v5, s4
          s_mov_b64 exec, 1
          buffer_store_dword v5, off, s[56:59], 0 sc0 sc1
          s_mov_b64 exec, -1""")
    a.label("L_nonpub")
    srd(a, SWS, kWS, 0x1000000)
    for kk in range(4):
        a(f"""v_xor_b32 v5, {2*kk}, v3
              v_lshl_add_u32 v{XA+kk}, v5, 4, v4""")
    a(f"""v_bfe_u32 v3, v0, 2, 2
          v_lshl_add_u32 v4, v2, 3, v3
          v_lshlrev_b32 v4, 7, v4
          v_bfe_u32 v5, v0, 4, 1
          v_lshlrev_b32 v5, 1, v5
          v_bfe_u32 v6, v0, 1, 1
          v_add_u32 v5, v5, v6
          s_lshl_b32 s3, s{sWN}, 2
          v_add_u32 v5, s3, v5
          v_bfe_u32 v6, v0, 3, 1
          v_lshlrev_b32 v6, 2, v6
          v_xor_b32 v5, v5, v6
          v_lshl_add_u32 v4, v5, 4, v4
          v_and_b32 v6, 1, v0
          v_lshl_add_u32 v4, v6, 3, v4
          v_add_u32 v{WA}, 16384, v4
          v_mov_b32 v{CPM}, 0xbf803f80""")
    for r in range(64):
        a(f"v_mov_b32 v{ACC+r}, 0")
    a(f"""s_lshl_b32 s3, s{sCQ}, 2
          s_add_u32 s3, s3, s{sWN}
          s_lshl_b32 s3, s3, 2
          s_add_u32 s3, s3, s{sTYPE}
          s_cmp_eq_u32 s3, 3
          s_cselect_b32 s{sMASK}, 1, 0
          s_mov_b32 s{sMASK+1}, s{sMASK}
          s_cmp_lg_u32 s{sTYPE}, 3
          s_cbranch_scc1 L_noconst
          v_lshlrev_b32 v3, 2, v2
          v_mul_u32_u24 v3, v3, v1""")
    for m in range(2):
        for j in range(8):
            cj = 16*m + (j % 4) + 8*(j // 4)
            a(f"""v_mad_u32_u24 v{16+j}, v1, {cj}, v3
                  v_and_b32 v{16+j}, 31, v{16+j}
                  v_cvt_f32_u32 v{16+j}, v{16+j}
                  v_mul_f32 v{16+j}, 0x3d000000, v{16+j}""")
        for j in range(8): a(f"v_cos_f32 v{24+j}, v{16+j}")
        for j in range(8): a(f"v_sin_f32 v{16+j}, v{16+j}")
        a("s_nop 0")
        for j in range(4):
            a(f"""v_cvt_pk_bf16_f32 v{CR+4*m+j}, v{24+2*j}, v{25+2*j}
                  v_cvt_pk_bf16_f32 v{CI+4*m+j}, -v{16+2*j}, -v{17+2*j}
                  v_cvt_pk_bf16_f32 v{NCI+4*m+j}, v{16+2*j}, v{17+2*j}""")
    a.label("L_noconst")
    nonce_wait(a, 5, False)
    def rd(kk, b):
        o = [f"ds_read_b128 {vr(X(b,i),4)}, v{XA+kk} offset:{i*4096}" for i in range(2)]
        o += [f"ds_read_b64_tr_b16 {vr(W(b,j)+2*q,2)}, v{WA} offset:{j*8192 + kk*2048 + q*512}" for j in range(2) for q in range(2)]
        return o
    def mf(b, variant):
        o = []
        for j in range(2):
            for i in range(2):
                A_, B_ = (W(b,j), X(b,i)) if variant == "QK" else (X(b,i), W(b,j))
                o.append(f"{MFMA} {vr(AC(i,j),16)}, {vr(A_,4)}, {vr(B_,4)}, {vr(AC(i,j),16)}")
        return o
    def cnd(b, variant):
        if variant != "VA": return []
        return [f"v_cndmask_b32 v{W(b,1)+t}, v{W(b,1)+t}, v{CPM}, s[{sMASK}:{sMASK+1}]" for t in range(4)]
    def step(b, variant, r):
        m = mf(b, variant)
        for x in cnd(b, variant) + [m[0]] + r[:2] + [m[1]] + r[2:4] + [m[2]] + r[4:] + [m[3]]: a(x)
    a(f"""s_mov_b32 s{sIT}, 0
          s_mov_b32 s30, 0
          s_mov_b32 s27, {SLOT}""")
    stamp(a, 1)
    a("s_barrier")
    stamp(a, 2)
    for x in rd(0, 0): a(x)
    a(f"""s_cmp_ge_u32 s{sTYPE}, 2
          s_cbranch_scc1 L_loopVA""")
    for variant in ("QK", "VA"):
        a.label(f"L_loop{variant}")
        for kk in range(3):
            a("s_waitcnt lgkmcnt(0)")
            step(kk % 2, variant, rd(kk+1, (kk+1) % 2))
        a(f"""s_add_u32 s{sIT}, s{sIT}, 1
              s_add_u32 s30, s30, 1
              s_cmp_eq_u32 s30, {NS}
              s_cselect_b32 s{sDEL}, {-(NS-1)*SLOT}, s27
              s_cselect_b32 s30, 0, s30
              s_cmp_eq_u32 s{sIT}, 8""")
        for kk in range(4):
            a(f"v_add_u32 v{XA+kk}, s{sDEL}, v{XA+kk}")
        a(f"""v_add_u32 v{WA}, s{sDEL}, v{WA}
              s_waitcnt lgkmcnt(0)
              s_cbranch_scc1 L_last{variant}
              s_barrier""")
        step(1, variant, rd(0, 0))
        a(f"s_branch L_loop{variant}")
        a.label(f"L_last{variant}")
        step(1, variant, [])
        stamp(a, 3)
        if variant == "QK":
            a("s_branch L_epiQK")
    a(f"""s_cmp_eq_u32 s{sTYPE}, 3
          s_cbranch_scc1 L_epiA""")
    def ep_base():
        a(f"""s_lshl_b32 s3, s{sCQ}, 3
              s_lshl_b32 s4, s{sWN}, 1
              s_add_u32 s3, s3, s4
              s_lshl_b32 s3, s3, 16
              s_lshl_b32 s4, s{sRB}, 2
              s_lshl_b32 s5, s{sWM}, 1
              s_add_u32 s4, s4, s5
              s_lshl_b32 s4, s4, 10
              s_add_u32 s3, s3, s4
              s_lshl_b32 s4, s{sTYPE}, 21
              s_add_u32 s3, s3, s4""")
    ep_base()
    a(f"""v_bfe_u32 v1, v0, 4, 1
          v_lshlrev_b32 v1, 16, v1
          v_lshrrev_b32 v2, 5, v0
          v_lshl_add_u32 v1, v2, 8, v1
          v_and_b32 v2, 15, v0
          v_lshl_add_u32 v1, v2, 4, v1
          v_add_u32 v1, s3, v1
          s_mov_b32 s4, {4*65536}""")
    for i in range(2):
        for j in range(2):
            for mm in range(2):
                d = FR + 8*(2*i+j) + 4*mm
                for t in range(4):
                    a(f"v_cvt_pk_bf16_f32 v{d+t}, v{AC(i,j)+8*mm+2*t}, v{AC(i,j)+8*mm+2*t+1}")
                so = "0" if j == 0 else "s4"
                a(f"buffer_store_dwordx4 {vr(d,4)}, v1, s[{SWS}:{SWS+3}], {so} offen offset:{i*1024+mm*512} {ST}")
    a("s_branch L_pub1")
    a.label("L_epiQK")
    ep_base()
    a(f"""v_lshl_add_u32 v1, v0, 4, s3
          s_mov_b32 s4, {1*65536}
          s_mov_b32 s5, {4*65536}
          s_mov_b32 s6, {5*65536}
          s_cmp_eq_u32 s{sTYPE}, 0
          s_mov_b32 s3, {f2u(QSCALE):#x}
          s_cselect_b32 s8, s3, 1.0
          s_mov_b32 s9, s8""")
    for j in range(2):
        for i in range(2):
            for t in range(8):
                a(f"v_pk_mul_f32 {vr(AC(i,j)+2*t,2)}, {vr(AC(i,j)+2*t,2)}, s[8:9]")
            for mm in range(2):
                d = FR + 8*(2*i+j) + 4*mm
                for t in range(4):
                    a(f"v_cvt_pk_bf16_f32 v{d+t}, v{AC(i,j)+8*mm+2*t}, v{AC(i,j)+8*mm+2*t+1}")
                so = ["0", "s4", "s5", "s6"][2*j+mm]
                a(f"buffer_store_dwordx4 {vr(d,4)}, v1, s[{SWS}:{SWS+3}], {so} offen offset:{i*1024} {ST}")
    a("s_branch L_pub1")
    a.label("L_epiA")
    PK, SV = FR, 152
    a(f"""s_lshl_b32 s3, s{sRB}, 1
          s_add_u32 s3, s3, s{sWM}
          s_mul_i32 s3, s3, {U_GP}
          s_lshl_b32 s4, s{sCQ}, 10
          s_add_u32 s3, s3, s4
          s_lshl_b32 s4, s{sWN}, 9
          s_add_u32 s3, s3, s4
          s_add_u32 s3, s3, {WS_U}
          v_and_b32 v1, 31, v0
          v_lshl_add_u32 v1, v1, 4, s3
          v_lshrrev_b32 v2, 5, v0
          s_mov_b32 s4, {8*U_ROW}
          v_mad_u32_u24 v1, v2, s4, v1""")
    for j in range(2):
        for p in range(2):
            for t in range(8):
                a(f"v_cvt_pk_bf16_f32 v{PK+16*p+8*j+t}, v{AC(p,j)+2*t}, v{AC(p,j)+2*t+1}")
    a(f"""s_cmp_eq_u32 s{sMASK}, 0
          s_cbranch_scc1 L_nosp1""")
    for p in range(2):
        for t in range(8):
            a(f"v_mov_b32 v{SV+8*p+t}, v{PK+16*p+8+t}")
            a(f"v_cndmask_b32 v{PK+16*p+8+t}, v{PK+16*p+8+t}, 0, s[{sMASK}:{sMASK+1}]")
    a.label("L_nosp1")
    a("s_nop 1")
    def step1(p, aa, bb, with_b=True):
        a(f"{MFMA} {vr(AC(p,0),16)}, {vr(CR,4)}, {vr(aa,4)}, 0")
        a(f"{MFMA} {vr(AC(p,1),16)}, {vr(CI,4)}, {vr(aa,4)}, 0")
        a(f"{MFMA} {vr(AC(p,0),16)}, {vr(CR+4,4)}, {vr(aa+4,4)}, {vr(AC(p,0),16)}")
        a(f"{MFMA} {vr(AC(p,1),16)}, {vr(CI+4,4)}, {vr(aa+4,4)}, {vr(AC(p,1),16)}")
        if with_b:
            for m in range(2):
                a(f"{MFMA} {vr(AC(p,0),16)}, {vr(NCI+4*m,4)}, {vr(bb+4*m,4)}, {vr(AC(p,0),16)}")
                a(f"{MFMA} {vr(AC(p,1),16)}, {vr(CR+4*m,4)}, {vr(bb+4*m,4)}, {vr(AC(p,1),16)}")
    def ustore(special):
        a("s_nop 15")
        D = 168
        for r in range(8):
            d = D + 4*r
            a(f"""v_cvt_pk_bf16_f32 v{d}, v{AC(0,0)+r}, v{AC(1,0)+r}
                  v_cvt_pk_bf16_f32 v{d+1}, v{AC(0,1)+r}, v{AC(1,1)+r}
                  v_cvt_pk_bf16_f32 v{d+2}, v{AC(0,0)+r+8}, v{AC(1,0)+r+8}
                  v_cvt_pk_bf16_f32 v{d+3}, v{AC(0,1)+r+8}, v{AC(1,1)+r+8}""")
            if r > 0:
                st(r-1, special)
        a("s_nop 1")
        st(7, special)
    def st(r, special):
        d = 168 + 4*r
        a(f"""v_permlane32_swap_b32 v{d}, v{d+2}
              v_permlane32_swap_b32 v{d+1}, v{d+3}
              s_mov_b32 s4, {r*U_ROW}""")
        if special: a(f"s_mov_b64 exec, s[{sMASK}:{sMASK+1}]")
        a(f"buffer_store_dwordx4 {vr(d,4)}, v1, s[{SWS}:{SWS+3}], s4 offen {ST}")
        if special: a("s_mov_b64 exec, -1")
    for p in range(2): step1(p, PK+16*p, PK+16*p+8)
    ustore(False)
    a(f"""s_cmp_eq_u32 s{sMASK}, 0
          s_cbranch_scc1 L_pub1""")
    for p in range(2): step1(p, SV+8*p, None, with_b=False)
    a(f"v_add_u32 v1, {256*16}, v1")
    ustore(True)
    a.label("L_pub1")
    stamp(a, 4)
    a("s_barrier")
    a(f"""s_lshl_b32 s3, s2, 2
          s_add_u32 s3, s3, s{sW}
          s_lshl_b32 s3, s3, 7
          s_add_u32 s3, s3, {WS_F1}""")
    publish(a, 3, 2)
    stamp(a, 5)
    qflag(a)
    a("v_mov_b32 v4, s14")
    poll(a, 4, 5, 1)
    a(f"buffer_load_dwordx4 v[4:7], v1, s[{SWS}:{SWS+3}], s12 offen {LD}")

    a.label("L_att")
    QF = 4
    KA, VA_, NINF, MX = 2, 3, 8, 9
    KF, VF, PP, S, O, CN, CD, CF = 12, 24, 40, 48, 80, 96, 112, 128
    sVM, sNF, sI, sQO = 8, 10, 11, 12
    stamp(a, 11)
    a(f"""s_lshl_b32 s4, s{sW}, 10
          s_add_u32 s4, s4, {KV_BASE}
          v_add_u32 v{KA}, s4, v1
          v_lshrrev_b32 v10, 5, v0
          v_and_b32 v11, 15, v0
          v_lshlrev_b32 v11, 4, v11
          v_lshl_add_u32 v11, v10, 8, v11
          s_add_u32 s4, s4, 16384
          v_add_u32 v{VA_}, s4, v11
          v_mov_b32 v{NINF}, 0xff800000
          s_mov_b32 s{sVM}, 0x0000ffff
          s_mov_b32 s{sVM+1}, 0x0000ffff
          s_mov_b32 s6, 0x00110000
          s_mov_b32 s7, 0x00110000
          v_mov_b32 v10, 0x3f803f80""")
    for t in range(16):
        a(f"v_cndmask_b32 v{VF+t}, 0, v10, s[6:7]")
    a(f"""s_cmp_gt_u32 s{sR}, 0
          s_cselect_b32 s{sNF}, 7, s{sW}
          s_sub_u32 s13, 8, s{sNF}
          s_lshl_b32 s13, s13, 10
          s_waitcnt vmcnt(0)
          s_barrier""")
    stamp(a, 12)
    def u_loads():
        for js in range(8):
            for b in range(2):
                a(f"""s_mov_b32 s4, {(2*js+b)*U_GP}
                      buffer_load_dwordx2 {vr(UF+4*js+2*b,2)}, v254, s[{SWS}:{SWS+3}], s4 offen {LD}""")
    a(f"""s_cmp_lt_u32 s{sW}, 4
          s_cbranch_scc1 L_nou
          v_cmp_ne_u32 vcc, s{sNON}, v187
          s_mov_b32 s15, 0
          s_cbranch_vccnz L_nou
          s_mov_b32 s15, 1""")
    u_loads()
    a.label("L_nou")
    def masks(val):
        o = []
        for r in range(16):
            lo, hi = diag_mask(r)
            sp = 4 + 2*(r % 2)
            o.append(f"""s_mov_b32 s{sp}, {lo:#x}
                  s_mov_b32 s{sp+1}, {hi:#x}
                  v_cndmask_b32 v{CD+r}, v{NINF}, {val}, s[{sp}:{sp+1}]
                  v_cndmask_b32 v{CF+r}, {val}, v{NINF}, s[{sp}:{sp+1}]""")
        return o
    def maxblk(S_, first):
        if first:
            a(f"v_max_f32 v{MX}, v{S_}, v{S_+1}")
        for t in range(2 if first else 0, 16, 2):
            a(f"v_max3_f32 v{MX}, v{S_+t}, v{S_+t+1}, v{MX}")
    def xhalf_max():
        a(f"""v_mov_b32 v10, v{MX}
              s_nop 1
              v_permlane32_swap_b32 v10, v{MX}
              s_nop 1
              v_max_f32 v{MX}, v{MX}, v10""")
    if not FORCE_SLOW:
        a(f"""s_cmp_eq_u32 s{sR}, 0
              s_cbranch_scc1 L_slow""")
        order = [7, 6, 5, 4, 3, 2, 1, 8, 0]
        Cof = lambda p: CD if p == 8 else (CF if p == 0 else CN)
        def rdK(n): return f"ds_read_b128 {vr(KF+4*(n%3),4)}, v{KA} offset:{order[n]*1024}"
        def rdV(n):
            b = VF + 8*(n % 2)
            return f"""s_mov_b64 exec, s[{sVM}:{sVM+1}]
                  ds_read_b128 {vr(b,4)}, v{VA_} offset:{order[n]*1024}
                  ds_read_b128 {vr(b+4,4)}, v{VA_} offset:{order[n]*1024+512}
                  s_mov_b64 exec, -1"""
        def mS(n): return f"{MFMA} {vr(S+16*(n%2),16)}, {vr(KF+4*(n%3),4)}, {vr(QF,4)}, {vr(Cof(order[n]),16)}"
        a(rdK(0)); a(rdK(1)); a(rdV(0))
        a(f"""s_waitcnt lgkmcnt(3)
              {MFMA} {vr(S+16,16)}, {vr(KF,4)}, {vr(QF,4)}, 0
              s_nop 11""")
        maxblk(S+16, True)
        xhalf_max()
        a(f"v_sub_f32 v{MX}, 0xc2400000, v{MX}")
        for r in range(16): a(f"v_mov_b32 v{CN+r}, v{MX}")
        a("s_nop 1")
        a(mS(0))
        mk = masks(f"v{MX}")
        for n in range(9):
            Sn = S + 16*(n % 2); Vn = VF + 8*(n % 2)
            if n + 1 < 9:
                a("s_waitcnt lgkmcnt(2)")
                a(mS(n+1))
            if n + 2 < 9: a(rdK(n+2))
            if n + 1 < 9: a(rdV(n+1))
            if n == 0:
                for x in mk: a(x)
            nout = (1 if n + 2 < 9 else 0) + (2 if n + 1 < 9 else 0)
            for r in range(8): a(f"v_exp_f32 v{Sn+r}, v{Sn+r}")
            for t in range(4): a(f"v_cvt_pk_bf16_f32 v{PP+t}, v{Sn+2*t}, v{Sn+2*t+1}")
            for r in range(8, 10): a(f"v_exp_f32 v{Sn+r}, v{Sn+r}")
            a(f"s_waitcnt lgkmcnt({nout})")
            a(f"{MFMA} {vr(O,16)}, {vr(Vn,4)}, {vr(PP,4)}, {'0' if n == 0 else vr(O,16)}")
            for r in range(10, 16): a(f"v_exp_f32 v{Sn+r}, v{Sn+r}")
            for t in range(4, 8): a(f"v_cvt_pk_bf16_f32 v{PP+t}, v{Sn+2*t}, v{Sn+2*t+1}")
            a("s_nop 1")
            a(f"{MFMA} {vr(O,16)}, {vr(Vn+4,4)}, {vr(PP+4,4)}, {vr(O,16)}")
        a(f"""s_nop 11
              v_add_f32 v10, |v{O}|, |v{O+1}|
              v_add_f32 v11, |v{O+2}|, |v{O+3}|
              v_add_f32 v12, |v{O+4}|, |v{O+5}|
              v_add_f32 v13, |v{O+6}|, |v{O+7}|
              v_add_f32 v10, v10, v11
              v_add_f32 v12, v12, v13
              v_mul_f32 v11, 0x5f800000, v{O+8}
              v_add_f32 v10, v10, v12
              v_add_f32 v10, v10, v11
              v_mov_b32 v11, 0x7f800000
              v_cmp_lt_f32 vcc, v10, v11
              v_rcp_f32 v10, v{O+8}
              s_cmp_eq_u64 vcc, -1
              s_cbranch_scc1 L_norm""")
    a.label("L_slow")
    for x in masks("0"): a(x)
    a(f"""ds_read_b128 {vr(KF,4)}, v{KA} offset:{8*1024}
          s_waitcnt lgkmcnt(0)
          {MFMA} {vr(S,16)}, {vr(KF,4)}, {vr(QF,4)}, {vr(CD,16)}
          s_nop 11""")
    maxblk(S, True)
    a(f"""s_cmp_eq_u32 s{sR}, 0
          s_cbranch_scc1 L_s1nofar
          ds_read_b128 {vr(KF,4)}, v{KA}
          s_waitcnt lgkmcnt(0)
          {MFMA} {vr(S,16)}, {vr(KF,4)}, {vr(QF,4)}, {vr(CF,16)}
          s_nop 11""")
    maxblk(S, False)
    a.label("L_s1nofar")
    a(f"""s_mov_b32 s{sI}, s{sNF}
          v_add_u32 v10, s13, v{KA}
          s_cmp_eq_u32 s{sI}, 0
          s_cbranch_scc1 L_s1done""")
    a.label("L_s1loop")
    a(f"""ds_read_b128 {vr(KF,4)}, v10
          v_add_u32 v10, 1024, v10
          s_waitcnt lgkmcnt(0)
          {MFMA} {vr(S,16)}, {vr(KF,4)}, {vr(QF,4)}, 0
          s_nop 11""")
    maxblk(S, False)
    a(f"""s_sub_u32 s{sI}, s{sI}, 1
          s_cmp_lg_u32 s{sI}, 0
          s_cbranch_scc1 L_s1loop""")
    a.label("L_s1done")
    xhalf_max()
    a(f"v_sub_f32 v{MX}, 0, v{MX}")
    for x in masks(f"v{MX}"): a(x)
    for r in range(16): a(f"v_mov_b32 v{CN+r}, v{MX}")
    def pvblk(kaddr, vaddr, off, C, first):
        a(f"""ds_read_b128 {vr(KF,4)}, v{kaddr} offset:{off}
              s_mov_b64 exec, s[{sVM}:{sVM+1}]
              ds_read_b128 {vr(VF,4)}, v{vaddr} offset:{off}
              ds_read_b128 {vr(VF+4,4)}, v{vaddr} offset:{off+512}
              s_mov_b64 exec, -1
              s_waitcnt lgkmcnt(0)
              {MFMA} {vr(S,16)}, {vr(KF,4)}, {vr(QF,4)}, {vr(C,16)}
              s_nop 11""")
        for r in range(16): a(f"v_exp_f32 v{S+r}, v{S+r}")
        for t in range(8): a(f"v_cvt_pk_bf16_f32 v{PP+t}, v{S+2*t}, v{S+2*t+1}")
        a("s_nop 1")
        a(f"{MFMA} {vr(O,16)}, {vr(VF,4)}, {vr(PP,4)}, {'0' if first else vr(O,16)}")
        a(f"{MFMA} {vr(O,16)}, {vr(VF+4,4)}, {vr(PP+4,4)}, {vr(O,16)}")
    pvblk(KA, VA_, 8*1024, CD, True)
    a(f"""s_cmp_eq_u32 s{sR}, 0
          s_cbranch_scc1 L_s2nofar""")
    pvblk(KA, VA_, 0, CF, False)
    a.label("L_s2nofar")
    a(f"""s_mov_b32 s{sI}, s{sNF}
          v_add_u32 v10, s13, v{KA}
          v_add_u32 v11, s13, v{VA_}
          s_cmp_eq_u32 s{sI}, 0
          s_cbranch_scc1 L_s2done""")
    a.label("L_s2loop")
    pvblk(10, 11, 0, CN, False)
    a(f"""v_add_u32 v10, 1024, v10
          v_add_u32 v11, 1024, v11
          s_sub_u32 s{sI}, s{sI}, 1
          s_cmp_lg_u32 s{sI}, 0
          s_cbranch_scc1 L_s2loop""")
    a.label("L_s2done")
    a(f"""s_nop 15
          v_rcp_f32 v10, v{O+8}""")
    a.label("L_norm")
    a("s_nop 0")
    for t in range(8): a(f"v_mul_f32 v{O+t}, v10, v{O+t}")
    for t in range(4): a(f"v_cvt_pk_bf16_f32 v{PP+t}, v{O+2*t}, v{O+2*t+1}")
    a(f"""s_add_u32 s4, s{sQO}, {WS_O}
          buffer_store_dwordx4 {vr(PP,4)}, v1, s[{SWS}:{SWS+3}], s4 offen {ST}
          s_lshl_b32 s4, s{sR}, 3
          s_add_u32 s4, s4, s{sW}
          s_lshl_b32 s4, s4, 5
          s_add_u32 s4, s4, s{sHD}
          s_lshl_b32 s4, s4, 7
          s_add_u32 s3, s4, {WS_F2}""")
    stamp(a, 13)
    publish(a, 3, 10)
    stamp(a, 14)
    a(f"""s_barrier
          s_cmp_ge_u32 s{sW}, 4
          s_cbranch_scc1 L_a2""")
    SOUT = 36
    OA, WA2, ACC2, FR2 = 8, 9, 16, 32
    srd(a, SOUT, kOUT, 0x400000)
    a(f"""s_lshr_b32 s4, s2, 3
          s_lshl_b32 s4, s4, 1
          s_and_b32 s5, s2, 1
          s_add_u32 s4, s4, s5                    ; qb'
          s_lshl_b32 s5, s4, 5
          s_lshl_b32 s6, s{sW}, 3
          s_add_u32 s5, s5, s6
          v_add_u32 v4, s5, v0
          v_lshlrev_b32 v4, 7, v4
          v_add_u32 v4, {WS_F2}, v4
          s_lshl_b32 s5, s{sW}, 19
          s_lshl_b32 s6, s4, 10
          s_add_u32 s5, s5, s6
          s_add_u32 s5, s5, {WS_O}
          s_lshl_b32 s6, s{sW}, 13
          s_add_u32 s6, s6, {KV_BASE}
          v_add_u32 v{OA}, {KV_BASE}, v1
          v_lshrrev_b32 v2, 5, v0
          v_bfe_u32 v3, v0, 2, 2
          v_lshl_add_u32 v6, v2, 2, v3
          v_lshlrev_b32 v6, 8, v6
          v_bfe_u32 v5, v0, 4, 1
          v_lshlrev_b32 v5, 1, v5
          v_and_b32 v7, 1, v0
          v_add_u32 v5, v5, v7
          v_xor_b32 v3, s{sW}, v3
          v_lshl_add_u32 v5, v3, 2, v5
          v_lshl_add_u32 v6, v5, 4, v6
          v_bfe_u32 v7, v0, 1, 1
          v_lshl_add_u32 v6, v7, 3, v6""")
    for qd in range(4):
        a(f"v_add_u32 v{WA2+qd}, {WO_SLOT[qd]*SLOT}, v6")
    a(f"""v_and_b32 v14, 31, v0
          s_lshl_b32 s7, s4, 5
          v_add_u32 v14, s7, v14
          v_lshlrev_b32 v14, 11, v14
          v_lshl_add_u32 v14, v2, 4, v14
          s_lshl_b32 s7, s{sTYPE}, 8
          s_lshl_b32 s8, s{sW}, 6
          s_add_u32 s7, s7, s8
          s_add_u32 s7, s7, 1024
          v_add_u32 v14, s7, v14""")
    poll(a, 4, 5, 255)
    stamp(a, 15)
    for j in range(8):
        a(f"""s_add_u32 m0, s6, {j*1024}
              s_add_u32 s7, s5, {j*65536}
              buffer_load_dwordx4 v1, s[{SWS}:{SWS+3}], s7 offen {LD} lds""")
    def wrd(qd, k, f):
        return [f"ds_read_b64_tr_b16 {vr(f+4+2*q,2)}, v{WA2+qd} offset:{k*4096 + q*2048}" for q in range(2)]
    for k in range(8):
        for x in wrd(0, k, FR2+8*k): a(x)
    a(f"""s_waitcnt vmcnt(0)
          s_barrier""")
    stamp(a, 16)
    for k in range(8):
        a(f"ds_read_b128 {vr(FR2+8*k,4)}, v{OA} offset:{k*1024}")
    for qd in range(4):
        for k in range(8):
            f = FR2 + 64*(qd % 2) + 8*k
            fn = FR2 + 64*((qd+1) % 2) + 8*k
            if qd == 0:
                a(f"s_waitcnt lgkmcnt({min(15, 7-k + 3*k)})")
            else:
                a(f"s_waitcnt lgkmcnt({min(15, 3*(7-k) + (3*k if qd < 3 else 0))})")
            c = "0" if (qd == 0 and k == 0) else vr(ACC2,16)
            a(f"{MFMA} {vr(ACC2,16)}, {vr(f+4,4)}, {vr(f,4)}, {c}")
            if qd < 3:
                a(f"ds_read_b128 {vr(fn,4)}, v{OA} offset:{(8*(qd+1)+k)*1024}")
                for x in wrd(qd+1, k, fn): a(x)
    a("s_nop 15")
    for mm in range(2):
        for t in range(4):
            a(f"v_cvt_pk_bf16_f32 v{FR2+4*mm+t}, v{ACC2+8*mm+2*t}, v{ACC2+8*mm+2*t+1}")
        a(f"buffer_store_dwordx4 {vr(FR2+4*mm,4)}, v14, s[{SOUT}:{SOUT+3}], 0 offen offset:{32*mm}")
    stamp(a, 17)
    stamp_flush(a, 18)
    a("s_endpgm")
    a.label("L_a2")
    MF, A2 = 48, 80
    srd(a, SOUT, kOUT, 0x400000)
    a("""s_cmp_lg_u32 s15, 0
          s_cbranch_scc1 L_uok""")
    poll(a, 253, 6, -1)
    u_loads()
    a.label("L_uok")
    stamp(a, 15)
    a("v_lshrrev_b32 v3, 5, v0")
    a(f"""v_lshlrev_b32 v10, 11, v252
          v_lshl_add_u32 v10, v3, 4, v10
          s_lshl_b32 s4, s{sC0}, 1
          v_add_u32 v10, s4, v10""")
    for cc in range(4):
        for b in range(2):
            f = MF + 4*(2*cc+b)
            a(f"""v_mov_b32 v{f}, v{MRAW+4*cc+2*b}
                  v_xor_b32 v{f+1}, s{sSGN}, v{MRAW+16+4*cc+2*b}
                  v_mov_b32 v{f+2}, v{MRAW+4*cc+2*b+1}
                  v_xor_b32 v{f+3}, s{sSGN}, v{MRAW+16+4*cc+2*b+1}""")
    for js in range(8):
        a(f"s_waitcnt vmcnt({14-2*js})")
        a(f"{MFMA} {vr(A2,16)}, {vr(UF+4*js,4)}, {vr(MF+4*js,4)}, {'0' if js == 0 else vr(A2,16)}")
    a("s_nop 15")
    for mm in range(2):
        for t in range(4):
            a(f"v_cvt_pk_bf16_f32 v{16+4*mm+t}, v{A2+8*mm+2*t}, v{A2+8*mm+2*t+1}")
        a(f"buffer_store_dwordx4 {vr(16+4*mm,4)}, v10, s[{SOUT}:{SOUT+3}], 0 offen offset:{32*mm}")
    stamp(a, 17)
    stamp_flush(a, 18)
    a.label("L_end")
    a("s_endpgm")
    return a

def main():
    a = gen()
    hdr = f"""; {NAME} : one fused kernel (generated by my gen2.py)
; @launch grid=(256,1,1) block=(512,1,1) lds=163840
.amdgcn_target "amdgcn-amd-amdhsa--gfx950"
.text
"""
    kd = f""".section .rodata,"a"
.p2align 6
.amdhsa_kernel {KN}
  .amdhsa_next_free_vgpr 256
  .amdhsa_next_free_sgpr 102
  .amdhsa_accum_offset 256
  .amdhsa_group_segment_fixed_size 0
  .amdhsa_kernarg_size 88
  .amdhsa_user_sgpr_count 2
  .amdhsa_user_sgpr_kernarg_segment_ptr 1
  .amdhsa_system_sgpr_workgroup_id_x 1
.end_amdhsa_kernel
"""
    path = sys.argv[1] if len(sys.argv) > 1 and sys.argv[1].endswith(".s") else f"cdna_kernels/{NAME}.s"
    open(path, "w").write(hdr + a.text() + kd)
main()
```

```python
import sys, struct, math

NAME = "concat_heads__spectral_fnet__sliding_block__prompt"
KN = NAME + "_kernel"
WS_Q, WS_K, WS_V, WS_O, WS_U = 0, 2 << 20, 4 << 20, 6 << 20, 8 << 20
WS_F1, WS_F2 = 12 << 20, 13 << 20
U_ROW = 4224
U_GP = 16 * U_ROW
U_SIZE = 32 * U_GP
QSCALE = 0.25 * math.log2(math.e)
uid = [0]
STAMP = "--stamp" in sys.argv
FORCE_SLOW = "--slow" in sys.argv
SKIP = set(int(x) for x in sys.argv[sys.argv.index("--skip")+1].split(",")) if "--skip" in sys.argv else set()
ST = "sc1"
LD = "sc1"
SPIN_MAX = 30000

def f2u(x): return struct.unpack("<I", struct.pack("<f", x))[0]

class Asm:
    def __init__(self): self.L = []
    def __call__(self, s):
        for line in s.strip("\n").split("\n"):
            line = line.strip()
            if line: self.L.append("  " + line)
    def label(self, n): self.L.append(n + ":")
    def text(self): return "\n".join(self.L) + "\n"

def vr(b, n=1): return f"v{b}" if n == 1 else f"v[{b}:{b+n-1}]"
MFMA = "v_mfma_f32_32x32x16_bf16"

kAX, kSR, kSI, kDR, kDI, kBX, kWQ, kWO, kOUT, kDBG, kWS = 64, 66, 68, 70, 72, 74, 76, 78, 80, 82, 84
sTYPE, sRB, sCQ, sW, sNON = 16, 17, 18, 19, 20
sHD, sR = 21, 22
SWS = 32
VST = 255

def srd(a, d, k, size, off=0):
    if off:
        a(f"s_add_u32 s{d}, s{k}, {off}\ns_addc_u32 s{d+1}, s{k+1}, 0")
    else:
        a(f"s_mov_b32 s{d}, s{k}\ns_mov_b32 s{d+1}, s{k+1}")
    a(f"s_mov_b32 s{d+2}, {size}\ns_mov_b32 s{d+3}, 0x20000")

AMP = [int(x) for x in sys.argv[sys.argv.index("--amp")+1].split(",")] if "--amp" in sys.argv else None
def amp_end(a):
    if not AMP: return
    uid[0] += 1
    L = f"amp{uid[0]}"
    a(f"""s_cmp_lg_u32 s2, {AMP[3]}
          s_cbranch_scc1 {L}x
          s_cmp_lg_u32 s{sW}, {AMP[4]}
          s_cbranch_scc1 {L}x
          s_waitcnt vmcnt(0)
          s_memrealtime s[86:87]
          s_sub_u32 s96, s97, s96
          s_min_u32 s96, s96, 10000
          s_mul_i32 s96, s96, {AMP[2]}
          s_waitcnt lgkmcnt(0)
          s_add_u32 s96, s96, s86""")
    a.label(L)
    a(f"""s_memrealtime s[86:87]
          s_waitcnt lgkmcnt(0)
          s_sub_u32 s88, s86, s96
          s_cmp_lt_i32 s88, 0
          s_cbranch_scc1 {L}""")
    a.label(L + "x")
GMAX = [int(x) for x in sys.argv[sys.argv.index("--gmax")+1].split(",")] if "--gmax" in sys.argv else None
def gmax_end(a):
    uid[0] += 1
    L = f"gm{uid[0]}"
    a(f"""s_waitcnt vmcnt(0)
          s_sub_u32 s96, s96, s{sNON}
          s_add_u32 s96, s96, 1000
          s_mov_b64 exec, 1
          v_mov_b32 v2, s96
          v_mov_b32 v3, 1
          buffer_atomic_{'umax' if GMAX[2] else 'umin'} v2, off, s[56:59], 0 offset:{128 if GMAX[2] else 132} sc1
          s_waitcnt vmcnt(0)
          buffer_atomic_add v3, off, s[56:59], 0 offset:64 sc1
          s_or_b32 s96, s2, s{sW}
          s_cmp_lg_u32 s96, 0
          s_cbranch_scc1 {L}x
          s_mov_b32 s97, 0""")
    a.label(L + "p")
    a(f"""buffer_load_dword v2, off, s[56:59], 0 offset:64 sc1
          s_add_u32 s97, s97, 1
          s_cmp_gt_u32 s97, 100000
          s_cbranch_scc1 {L}x
          s_waitcnt vmcnt(0)
          v_readfirstlane_b32 s96, v2
          s_cmp_lt_u32 s96, 2048
          s_cbranch_scc1 {L}p
          buffer_load_dword v2, off, s[56:59], 0 offset:128 sc1
          s_waitcnt vmcnt(0)
          v_readfirstlane_b32 s96, v2
          s_memrealtime s[86:87]
          s_sub_u32 s96, s96, 1000
          s_min_u32 s96, s96, 10000
          s_mul_i32 s96, s96, {GMAX[1]}
          s_waitcnt lgkmcnt(0)
          s_add_u32 s96, s96, s86""")
    a.label(L)
    a(f"""s_memrealtime s[86:87]
          s_waitcnt lgkmcnt(0)
          s_sub_u32 s88, s86, s96
          s_cmp_lt_i32 s88, 0
          s_cbranch_scc1 {L}""")
    a.label(L + "x")
def stamp(a, idx):
    if GMAX and idx == GMAX[0]:
        a(f"""s_memrealtime s[86:87]
              s_waitcnt lgkmcnt(0)
              s_mov_b32 s96, s86""")
    if AMP and idx in AMP[:2]:
        a(f"""s_memrealtime s[86:87]
              s_waitcnt lgkmcnt(0)
              s_mov_b32 s{96 + AMP[:2].index(idx)}, s86""")
    if not STAMP: return
    if idx in SKIP: return
    a(f"""s_memrealtime s[86:87]
          s_memtime s[94:95]
          s_waitcnt lgkmcnt(0)
          v_writelane_b32 v{VST}, s86, {idx}
          v_writelane_b32 v{VST}, s94, {idx+32}""")
def stamp_flush(a, idx):
    if GMAX:
        a("s_waitcnt vmcnt(0)")
        stamp(a, idx)
        gmax_end(a)
    if AMP:
        if idx in AMP[:2]: a("s_waitcnt vmcnt(0)")
        stamp(a, idx)
        amp_end(a)
    if not STAMP: return
    a("s_waitcnt vmcnt(0)")
    stamp(a, idx)
    srd(a, 88, kWS, 0x100000, 16 << 20)
    a(f"""s_mov_b64 exec, -1
          s_lshl_b32 s92, s2, 11
          s_lshl_b32 s93, s{sW}, 8
          s_add_u32 s92, s92, s93
          v_mbcnt_lo_u32_b32 v2, -1, 0
          v_mbcnt_hi_u32_b32 v2, -1, v2
          v_lshlrev_b32 v2, 2, v2
          buffer_store_dword v{VST}, v2, s[88:91], s92 offen""")

def poll(a, vaddr, vtmp, nl_mask, srdreg=SWS):
    uid[0] += 1
    L = f"poll{uid[0]}"
    a(f"""s_mov_b32 s60, 0
          s_mov_b64 exec, {nl_mask}""")
    a.label(L)
    a(f"""buffer_load_dword v{vtmp}, v{vaddr}, s[{srdreg}:{srdreg+3}], 0 offen sc1
          s_add_u32 s60, s60, 1
          s_cmp_gt_u32 s60, {SPIN_MAX}
          s_cbranch_scc1 {L}x
          s_waitcnt vmcnt(0)
          v_cmp_ne_u32 vcc, s{sNON}, v{vtmp}
          s_cbranch_vccnz {L}""")
    a.label(L + "x")
    a("s_mov_b64 exec, -1")

def publish(a, soff, vtmp):
    a(f"""s_waitcnt vmcnt(0)
          v_mov_b32 v{vtmp}, s{sNON}
          s_mov_b64 exec, 1
          buffer_store_dword v{vtmp}, off, s[{SWS}:{SWS+3}], s{soff} {ST}
          s_mov_b64 exec, -1""")

def nonce_wait(a, vtmp, first_loaded):
    uid[0] += 1
    L = f"non{uid[0]}"
    a("s_mov_b32 s60, 0")
    if first_loaded:
        a(f"s_branch {L}c")
    a.label(L)
    a(f"""buffer_load_dword v{vtmp}, off, s[56:59], 0 sc1
          s_waitcnt vmcnt(0)""")
    a.label(L + "c")
    a(f"""v_readfirstlane_b32 s{sNON}, v{vtmp}
          s_add_u32 s60, s60, 1
          s_cmp_gt_u32 s60, {SPIN_MAX}
          s_cbranch_scc1 {L}x
          s_cmp_eq_u32 s{sNON}, 0
          s_cbranch_scc1 {L}""")
    a.label(L + "x")

def diag_mask(r):
    g, i = r // 4, r % 4
    return (0xffffffff << (8*g+i)) & 0xffffffff, (0xffffffff << (8*g+i+4)) & 0xffffffff

def qflag(a):
    a(f"""s_lshl_b32 s4, s{sR}, 3
          s_add_u32 s4, s4, s{sW}                 ; qb
          s_lshr_b32 s5, s4, 5                    ; rb>>3
          s_bfe_u32 s6, s4, 0x30002               ; rb&7
          s_and_b32 s7, s{sHD}, 24
          s_add_u32 s6, s6, s7
          s_lshl_b32 s6, s6, 3
          s_add_u32 s5, s5, s6
          s_lshl_b32 s5, s5, 2
          s_and_b32 s6, s{sHD}, 2
          s_add_u32 s5, s5, s6
          s_bfe_u32 s6, s4, 0x10001
          s_add_u32 s5, s5, s6
          s_lshl_b32 s5, s5, 7
          s_add_u32 s14, s5, {WS_F1}
          s_lshl_b32 s12, s4, 10
          s_lshl_b32 s5, s{sHD}, 16
          s_add_u32 s12, s12, s5
          v_lshlrev_b32 v1, 4, v0""")

SLOT = 32768
WO_SLOT = [3, 4, 2, 1]
KV_BASE = 0 * SLOT
MRAW = 220
UF = 188
NS = 3

def gen():
    a = Asm()
    a.L += [f".globl {KN}", ".p2align 8", f".type {KN},@function"]
    a.label(KN)
    a(f"""s_cmp_ge_u32 s2, 256
          s_cbranch_scc1 L_end
          s_load_dwordx16 s[64:79], s[0:1], 0
          s_load_dwordx4 s[80:83], s[0:1], 64
          s_load_dwordx2 s[84:85], s[0:1], 80
          v_lshrrev_b32 v1, 6, v0
          v_and_b32 v0, 63, v0
          s_and_b32 s3, s2, 7
          v_readfirstlane_b32 s{sW}, v1
          s_lshr_b32 s{sTYPE}, s3, 1
          s_and_b32 s4, s3, 1
          s_lshl_b32 s4, s4, 3
          s_bfe_u32 s{sRB}, s2, 0x30003
          s_add_u32 s{sRB}, s{sRB}, s4
          s_lshr_b32 s{sCQ}, s2, 6
          s_lshl_b32 s3, s3, 2
          s_bfe_u32 s{sHD}, s2, 0x20003
          s_add_u32 s{sHD}, s{sHD}, s3
          s_lshr_b32 s{sR}, s2, 5""")
    a("v_mov_b32 v252, 0\nv_mov_b32 v253, 0\nv_mov_b32 v254, 0")
    if STAMP: a(f"v_mov_b32 v{VST}, 0")
    stamp(a, 0)
    a(f"""s_cmp_lt_u32 s{sW}, 4
          s_cbranch_scc1 L_consumer""")
    sLW, sXB, sXSH, sWRS, sCB = 23, 24, 25, 26, 27
    sSOX, sSOW, sWST, sM0 = 28, 29, 30, 31
    SX, SWD, SWOD = 36, 40, 44
    sC0, sT1O, sT1S, sSGN = 24, 25, 26, 27
    SMR, SMI = 48, 52
    def m_loads(a):
        srd(a, SMR, kSR, 0x800000)
        srd(a, SMI, kSI, 0x800000)
        a(f"""s_lshr_b32 s4, s{sHD}, 4
          s_lshl_b32 s5, s{sR}, 1
          s_add_u32 s4, s4, s5
          s_lshl_b32 s{sC0}, s4, 5
          s_bfe_u32 s4, s{sHD}, 0x20002
          s_lshl_b32 s4, s4, 3
          s_and_b32 s5, s{sHD}, 3
          s_add_u32 s4, s4, s5
          s_and_b32 s5, s{sLW}, 1
          s_lshl_b32 s5, s5, 2
          s_add_u32 s{sT1S}, s4, s5
          s_sub_u32 s4, 32, s{sT1S}
          s_and_b32 s4, s4, 31
          s_cmp_lt_u32 s{sR}, 4
          s_cselect_b32 s{sT1O}, s{sT1S}, s4
          s_cselect_b32 s{sSGN}, 0x80008000, 0
          v_and_b32 v4, 31, v0
          s_lshr_b32 s4, s{sLW}, 1
          s_lshl_b32 s4, s4, 5
          v_add_u32 v4, s4, v4
          v_lshl_add_u32 v252, v4, 5, s{sT1O}
          v_lshrrev_b32 v5, 5, v0
          v_lshlrev_b32 v6, 12, v252
          v_lshl_add_u32 v6, v5, 6, v6""")
        for cc in range(4):
            a(f"buffer_load_dwordx4 {vr(MRAW+4*cc,4)}, v6, s[{SMR}:{SMR+3}], 0 offen offset:{16*cc}")
            a(f"buffer_load_dwordx4 {vr(MRAW+16+4*cc,4)}, v6, s[{SMI}:{SMI+3}], 0 offen offset:{16*cc}")
    a(f"""s_sub_u32 s{sLW}, s{sW}, 4
          s_cmp_eq_u32 s{sTYPE}, 3
          s_cselect_b32 s{sXSH}, 16, 10
          s_movk_i32 s3, 3072
          s_cselect_b32 s{sWRS}, 1024, s3
          s_lshl_b32 s4, s{sRB}, 2
          s_add_u32 s4, s4, s{sLW}
          s_lshl_b32 s5, s4, 5
          s_cmp_eq_u32 s{sTYPE}, 3
          s_cselect_b32 s{sXB}, s4, s5
          s_lshl_b32 s{sXB}, s{sXB}, 10
          s_lshl_b32 s4, s{sCQ}, 7
          s_lshl_b32 s5, s{sTYPE}, 10
          s_lshl_b32 s6, s{sCQ}, 8
          s_add_u32 s5, s5, s6
          s_lshr_b32 s6, s{sLW}, 1
          s_lshl_b32 s6, s6, 7
          s_add_u32 s5, s5, s6
          s_cmp_eq_u32 s{sTYPE}, 3
          s_cselect_b32 s{sCB}, s4, s5
          s_lshl_b32 s{sWST}, s{sWRS}, 6
          s_lshl_b32 s{sM0}, s{sLW}, 12
          v_lshrrev_b32 v1, 3, v0
          v_and_b32 v2, 7, v0
          v_lshrrev_b32 v3, 4, v0""")
    for jx in range(4):
        a(f"""v_add_u32 v4, {8*jx}, v1
              v_lshlrev_b32 v4, s{sXSH}, v4
              v_add_u32 v5, {4*jx}, v3
              v_and_b32 v5, 7, v5
              v_xor_b32 v5, v5, v2
              v_lshl_add_u32 v4, v5, 4, v4
              v_add_u32 v{8+jx}, s{sXB}, v4""")
    a(f"""s_and_b32 s4, s{sLW}, 1
          s_lshl_b32 s4, s4, 5
          v_and_b32 v5, 1, v3
          v_lshlrev_b32 v5, 2, v5
          v_xor_b32 v5, v5, v2
          v_lshlrev_b32 v5, 4, v5
          v_add_u32 v5, s{sCB}, v5
          v_add_u32 v6, s4, v1""")
    for jw in range(4):
        a(f"""v_add_u32 v4, {8*jw}, v6
              v_mad_u32_u24 v{12+jw}, v4, s{sWRS}, v5""")
    a(f"""s_waitcnt lgkmcnt(0)
          s_cmp_eq_u32 s{sTYPE}, 3
          s_cselect_b32 s{SX}, s{kAX}, s{kBX}
          s_cselect_b32 s{SX+1}, s{kAX+1}, s{kBX+1}
          s_mov_b32 s{SX+2}, 0x200000
          s_mov_b32 s{SX+3}, 0x20000
          s_cmp_lt_u32 s{sLW}, 2
          s_cselect_b32 s4, s{kDR}, s{kDI}
          s_cselect_b32 s5, s{kDR+1}, s{kDI+1}
          s_cmp_eq_u32 s{sTYPE}, 3
          s_cselect_b32 s{SWD}, s4, s{kWQ}
          s_cselect_b32 s{SWD+1}, s5, s{kWQ+1}
          s_mov_b32 s4, 0x180000
          s_cselect_b32 s{SWD+2}, 0x80000, s4
          s_mov_b32 s{SWD+3}, 0x20000
          s_lshl_b32 s4, s{sCQ}, 1
          s_add_u32 s4, s4, s{sRB}
          s_and_b32 s15, s4, 7
          s_lshl_b32 s{sSOX}, s15, 7
          s_mul_i32 s{sSOW}, s15, s{sWST}""")
    stamp(a, 1)
    def issue(st):
        for j in range(8):
            S, so = (SX, sSOX) if j < 4 else (SWD, sSOW)
            a(f"""s_add_u32 m0, s{sM0}, {(st%NS)*SLOT + (j//4)*16384 + (j%4)*1024}
                  s_nop 0
                  buffer_load_dwordx4 v{8+j}, s[{S}:{S+3}], s{so} offen lds""")
        if st < 7:
            a(f"""s_add_u32 s15, s15, 1
                  s_and_b32 s15, s15, 7
                  s_lshl_b32 s{sSOX}, s15, 7
                  s_mul_i32 s{sSOW}, s15, s{sWST}""")
    issue(0); issue(1)
    srd(a, SWS, kWS, 0x1000000)
    srd(a, 56, kDBG, 256)
    srd(a, SWOD, kWO, 0x80000)
    a(f"""; wo voffset: (32lw + (i>>4))*1024 + nb*256 + ((i&15) ^ ((i>>4)<<2))*16 ; nb = (id&7)>>1 = type
          s_lshl_b32 s4, s{sLW}, 5
          v_add_u32 v17, s4, v3
          v_lshlrev_b32 v17, 10, v17
          v_and_b32 v4, 15, v0
          v_lshlrev_b32 v5, 2, v3
          v_xor_b32 v4, v4, v5
          v_lshl_add_u32 v17, v4, 4, v17
          s_lshl_b32 s4, s{sTYPE}, 8
          v_add_u32 v17, s4, v17
          s_lshr_b32 s5, s2, 3
          s_lshl_b32 s5, s5, 2
          s_add_u32 s5, s5, s{sLW}
          s_lshl_b32 s5, s5, 12
          s_add_u32 s4, s4, s5
          v_bfe_u32 v4, v0, 1, 2
          v_lshlrev_b32 v4, 10, v4
          v_and_b32 v5, 1, v0
          v_lshl_add_u32 v4, v5, 7, v4
          v_add_u32 v19, s4, v4""")
    mcode = Asm()
    m_loads(mcode)
    for i in range(8):
        extra = 10 if i >= 6 else 0
        a(f"s_waitcnt vmcnt({(8 if i < 7 else 0) + extra})")
        stamp(a, 2+i)
        a("s_barrier")
        if i + 2 <= 7: issue(i+2)
        if i == 5:
            a("buffer_load_dword v18, off, s[56:59], 0 sc1")
            a(f"buffer_load_dword v20, v19, s[{SWOD}:{SWOD+3}], 0 offen")
            a.L += mcode.L
    a("s_barrier")
    a(f"s_lshl_b32 s5, s{sM0}, 1")
    for qd in range(4):
        for j in range(8):
            a(f"""s_add_u32 m0, s5, {WO_SLOT[qd]*SLOT + j*1024}
                  s_mov_b32 s4, {(128*qd+4*j)*1024}
                  buffer_load_dwordx4 v17, s[{SWOD}:{SWOD+3}], s4 offen lds""")
    stamp(a, 20)
    a("s_waitcnt vmcnt(41)")
    nonce_wait(a, 18, True)
    a(f"""v_and_b32 v2, 0x13, v0
          v_bfe_u32 v3, v0, 2, 1
          v_lshl_or_b32 v2, v3, 3, v2
          v_bfe_u32 v3, v0, 3, 1
          v_lshl_or_b32 v2, v3, 2, v2
          v_add_u32 v2, s{sC0}, v2                ; c
          v_sub_u32 v3, 512, v2
          s_cmp_lt_u32 s{sR}, 4
          s_cselect_b64 vcc, -1, 0
          v_cndmask_b32 v2, v3, v2, vcc           ; e
          s_lshr_b32 s4, s{sC0}, 5
          s_sub_u32 s5, 15, s4
          s_cmp_lt_u32 s{sR}, 4
          s_cselect_b32 s4, s4, s5
          s_cselect_b32 s5, 0, 1
          v_lshrrev_b32 v3, 5, v0                 ; h
          v_mul_u32_u24 v4, s5, v3
          v_add_u32 v4, s4, v4
          v_and_b32 v4, 7, v4                     ; e32 block (8 -> 0)
          v_lshrrev_b32 v5, 1, v4                 ; er
          v_and_b32 v4, 1, v4                     ; wn
          v_lshlrev_b32 v5, 8, v5
          v_lshl_add_u32 v5, v4, 1, v5
          v_and_b32 v4, 1, v0
          v_add_u32 v5, v5, v4
          v_bfe_u32 v4, v0, 1, 3
          v_lshl_add_u32 v5, v4, 5, v5
          v_bfe_u32 v4, v0, 4, 1
          v_lshl_add_u32 v5, v4, 2, v5
          v_add_u32 v5, 24, v5
          v_lshlrev_b32 v5, 7, v5
          v_add_u32 v253, {WS_F1}, v5
          ; U address
          s_and_b32 s4, s{sHD}, 15
          s_mul_i32 s4, s4, {U_ROW}
          s_and_b32 s5, s{sW}, 1
          s_lshl_b32 s5, s5, 3
          s_add_u32 s4, s4, s5
          s_add_u32 s4, s4, {WS_U}
          v_lshl_add_u32 v2, v2, 4, s4
          s_mov_b32 s5, {16*U_GP}
          v_mad_u32_u24 v254, v3, s5, v2""")
    qflag(a)
    a(f"""s_lshl_b32 s4, s{sR}, 1
          s_add_u32 s4, s4, s{sLW}
          s_cmp_lt_u32 s4, 2
          s_cbranch_scc1 L_lq
          s_sub_u32 s4, s4, 2
          s_lshr_b32 s5, s4, 3
          s_and_b32 s6, s4, 7
          s_lshr_b32 s7, s{sHD}, 3
          s_lshl_b32 s7, s7, 3
          s_add_u32 s6, s6, s7
          s_lshl_b32 s6, s6, 3
          s_add_u32 s5, s5, s6
          s_lshl_b32 s5, s5, 2
          s_and_b32 s6, s{sHD}, 2
          s_add_u32 s5, s5, s6                    ; *4 + 2wn
          s_add_u32 s5, s5, 8                     ; type 1
          v_and_b32 v4, 1, v0
          v_bfe_u32 v5, v0, 1, 1
          v_lshl_add_u32 v4, v5, 3, v4
          v_add_u32 v4, s5, v4
          v_lshlrev_b32 v4, 7, v4
          v_add_u32 v4, {WS_F1}, v4
          v_writelane_b32 v4, s14, 4""")
    poll(a, 4, 5, 31)
    stamp(a, 10)
    a(f"""buffer_load_dwordx4 v[4:7], v1, s[{SWS}:{SWS+3}], s12 offen {LD}
          s_lshl_b32 s5, s{sHD}, 16
          s_lshl_b32 s4, s4, 12
          s_add_u32 s4, s4, s5
          s_add_u32 s5, s4, {WS_K}
          s_add_u32 s6, s4, {WS_V}
          s_add_u32 m0, s{sM0}, {KV_BASE}
          s_nop 0""")
    for j in range(4):
        a(f"buffer_load_dwordx4 v1, s[{SWS}:{SWS+3}], s5 offen offset:{1024*j} {LD} lds")
    a(f"""s_add_u32 m0, s{sM0}, {KV_BASE+16384}
          s_nop 0""")
    for j in range(4):
        a(f"buffer_load_dwordx4 v1, s[{SWS}:{SWS+3}], s6 offen offset:{1024*j} {LD} lds")
    a("s_branch L_lc")
    a.label("L_lq")
    a("v_mov_b32 v4, s14")
    poll(a, 4, 5, 1)
    a(f"buffer_load_dwordx4 v[4:7], v1, s[{SWS}:{SWS+3}], s12 offen {LD}")
    a.label("L_lc")
    a(f"buffer_load_dword v187, v253, s[{SWS}:{SWS+3}], 0 offen sc1")
    a("s_branch L_att")

    a.label("L_consumer")
    sWM, sWN, sIT, sDEL = 23, 24, 25, 26
    sMASK = 28
    XA, WA, CPM = 8, 12, 13
    FR, ACC = 32, 64
    CR, CI, NCI = 128, 136, 144
    def X(b, i): return FR + 16*b + 4*i
    def W(b, j): return FR + 16*b + 8 + 4*j
    def AC(i, j): return ACC + 16*(2*i + j)
    a(f"""s_and_b32 s{sWM}, s{sW}, 1
          s_lshr_b32 s{sWN}, s{sW}, 1
          v_and_b32 v1, 31, v0
          v_lshrrev_b32 v2, 5, v0
          v_bfe_u32 v3, v0, 1, 3
          v_xor_b32 v3, v3, v2
          s_lshl_b32 s3, s{sWM}, 13
          v_lshl_add_u32 v4, v1, 7, s3
          s_waitcnt lgkmcnt(0)""")
    srd(a, 56, kDBG, 256)
    a(f"""s_or_b32 s3, s2, s{sW}
          s_cmp_lg_u32 s3, 0
          s_cbranch_scc1 L_nonpub
          s_memrealtime s[4:5]
          s_waitcnt lgkmcnt(0)
          s_or_b32 s4, s4, 1
          v_mov_b32 v5, s4
          s_mov_b64 exec, 1
          buffer_store_dword v5, off, s[56:59], 0 sc0 sc1
          s_mov_b64 exec, -1""")
    a.label("L_nonpub")
    srd(a, SWS, kWS, 0x1000000)
    for kk in range(4):
        a(f"""v_xor_b32 v5, {2*kk}, v3
              v_lshl_add_u32 v{XA+kk}, v5, 4, v4""")
    a(f"""v_bfe_u32 v3, v0, 2, 2
          v_lshl_add_u32 v4, v2, 3, v3
          v_lshlrev_b32 v4, 7, v4
          v_bfe_u32 v5, v0, 4, 1
          v_lshlrev_b32 v5, 1, v5
          v_bfe_u32 v6, v0, 1, 1
          v_add_u32 v5, v5, v6
          s_lshl_b32 s3, s{sWN}, 2
          v_add_u32 v5, s3, v5
          v_bfe_u32 v6, v0, 3, 1
          v_lshlrev_b32 v6, 2, v6
          v_xor_b32 v5, v5, v6
          v_lshl_add_u32 v4, v5, 4, v4
          v_and_b32 v6, 1, v0
          v_lshl_add_u32 v4, v6, 3, v4
          v_add_u32 v{WA}, 16384, v4
          v_mov_b32 v{CPM}, 0xbf803f80""")
    for r in range(64):
        a(f"v_mov_b32 v{ACC+r}, 0")
    a(f"""s_lshl_b32 s3, s{sCQ}, 2
          s_add_u32 s3, s3, s{sWN}
          s_lshl_b32 s3, s3, 2
          s_add_u32 s3, s3, s{sTYPE}
          s_cmp_eq_u32 s3, 3
          s_cselect_b32 s{sMASK}, 1, 0
          s_mov_b32 s{sMASK+1}, s{sMASK}
          s_cmp_lg_u32 s{sTYPE}, 3
          s_cbranch_scc1 L_noconst
          v_lshlrev_b32 v3, 2, v2
          v_mul_u32_u24 v3, v3, v1""")
    for m in range(2):
        for j in range(8):
            cj = 16*m + (j % 4) + 8*(j // 4)
            a(f"""v_mad_u32_u24 v{16+j}, v1, {cj}, v3
                  v_and_b32 v{16+j}, 31, v{16+j}
                  v_cvt_f32_u32 v{16+j}, v{16+j}
                  v_mul_f32 v{16+j}, 0x3d000000, v{16+j}""")
        for j in range(8): a(f"v_cos_f32 v{24+j}, v{16+j}")
        for j in range(8): a(f"v_sin_f32 v{16+j}, v{16+j}")
        a("s_nop 0")
        for j in range(4):
            a(f"""v_cvt_pk_bf16_f32 v{CR+4*m+j}, v{24+2*j}, v{25+2*j}
                  v_cvt_pk_bf16_f32 v{CI+4*m+j}, -v{16+2*j}, -v{17+2*j}
                  v_cvt_pk_bf16_f32 v{NCI+4*m+j}, v{16+2*j}, v{17+2*j}""")
    a.label("L_noconst")
    nonce_wait(a, 5, False)
    def rd(kk, b):
        o = [f"ds_read_b128 {vr(X(b,i),4)}, v{XA+kk} offset:{i*4096}" for i in range(2)]
        o += [f"ds_read_b64_tr_b16 {vr(W(b,j)+2*q,2)}, v{WA} offset:{j*8192 + kk*2048 + q*512}" for j in range(2) for q in range(2)]
        return o
    def mf(b, variant):
        o = []
        for j in range(2):
            for i in range(2):
                A_, B_ = (W(b,j), X(b,i)) if variant == "QK" else (X(b,i), W(b,j))
                o.append(f"{MFMA} {vr(AC(i,j),16)}, {vr(A_,4)}, {vr(B_,4)}, {vr(AC(i,j),16)}")
        return o
    def cnd(b, variant):
        if variant != "VA": return []
        return [f"v_cndmask_b32 v{W(b,1)+t}, v{W(b,1)+t}, v{CPM}, s[{sMASK}:{sMASK+1}]" for t in range(4)]
    def step(b, variant, r):
        m = mf(b, variant)
        for x in cnd(b, variant) + [m[0]] + r[:2] + [m[1]] + r[2:4] + [m[2]] + r[4:] + [m[3]]: a(x)
    a(f"""s_mov_b32 s{sIT}, 0
          s_mov_b32 s30, 0
          s_mov_b32 s27, {SLOT}""")
    stamp(a, 1)
    a("s_barrier")
    stamp(a, 2)
    for x in rd(0, 0): a(x)
    a(f"""s_cmp_ge_u32 s{sTYPE}, 2
          s_cbranch_scc1 L_loopVA""")
    for variant in ("QK", "VA"):
        a.label(f"L_loop{variant}")
        for kk in range(3):
            a("s_waitcnt lgkmcnt(0)")
            step(kk % 2, variant, rd(kk+1, (kk+1) % 2))
        a(f"""s_add_u32 s{sIT}, s{sIT}, 1
              s_add_u32 s30, s30, 1
              s_cmp_eq_u32 s30, {NS}
              s_cselect_b32 s{sDEL}, {-(NS-1)*SLOT}, s27
              s_cselect_b32 s30, 0, s30
              s_cmp_eq_u32 s{sIT}, 8""")
        for kk in range(4):
            a(f"v_add_u32 v{XA+kk}, s{sDEL}, v{XA+kk}")
        a(f"""v_add_u32 v{WA}, s{sDEL}, v{WA}
              s_waitcnt lgkmcnt(0)
              s_cbranch_scc1 L_last{variant}
              s_barrier""")
        step(1, variant, rd(0, 0))
        a(f"s_branch L_loop{variant}")
        a.label(f"L_last{variant}")
        step(1, variant, [])
        stamp(a, 3)
        if variant == "QK":
            a("s_branch L_epiQK")
    a(f"""s_cmp_eq_u32 s{sTYPE}, 3
          s_cbranch_scc1 L_epiA""")
    def ep_base():
        a(f"""s_lshl_b32 s3, s{sCQ}, 3
              s_lshl_b32 s4, s{sWN}, 1
              s_add_u32 s3, s3, s4
              s_lshl_b32 s3, s3, 16
              s_lshl_b32 s4, s{sRB}, 2
              s_lshl_b32 s5, s{sWM}, 1
              s_add_u32 s4, s4, s5
              s_lshl_b32 s4, s4, 10
              s_add_u32 s3, s3, s4
              s_lshl_b32 s4, s{sTYPE}, 21
              s_add_u32 s3, s3, s4""")
    ep_base()
    a(f"""v_bfe_u32 v1, v0, 4, 1
          v_lshlrev_b32 v1, 16, v1
          v_lshrrev_b32 v2, 5, v0
          v_lshl_add_u32 v1, v2, 8, v1
          v_and_b32 v2, 15, v0
          v_lshl_add_u32 v1, v2, 4, v1
          v_add_u32 v1, s3, v1
          s_mov_b32 s4, {4*65536}""")
    for i in range(2):
        for j in range(2):
            for mm in range(2):
                d = FR + 8*(2*i+j) + 4*mm
                for t in range(4):
                    a(f"v_cvt_pk_bf16_f32 v{d+t}, v{AC(i,j)+8*mm+2*t}, v{AC(i,j)+8*mm+2*t+1}")
                so = "0" if j == 0 else "s4"
                a(f"buffer_store_dwordx4 {vr(d,4)}, v1, s[{SWS}:{SWS+3}], {so} offen offset:{i*1024+mm*512} {ST}")
    a("s_branch L_pub1")
    a.label("L_epiQK")
    ep_base()
    a(f"""v_lshl_add_u32 v1, v0, 4, s3
          s_mov_b32 s4, {1*65536}
          s_mov_b32 s5, {4*65536}
          s_mov_b32 s6, {5*65536}
          s_cmp_eq_u32 s{sTYPE}, 0
          s_mov_b32 s3, {f2u(QSCALE):#x}
          s_cselect_b32 s8, s3, 1.0
          s_mov_b32 s9, s8""")
    for j in range(2):
        for i in range(2):
            for t in range(8):
                a(f"v_pk_mul_f32 {vr(AC(i,j)+2*t,2)}, {vr(AC(i,j)+2*t,2)}, s[8:9]")
            for mm in range(2):
                d = FR + 8*(2*i+j) + 4*mm
                for t in range(4):
                    a(f"v_cvt_pk_bf16_f32 v{d+t}, v{AC(i,j)+8*mm+2*t}, v{AC(i,j)+8*mm+2*t+1}")
                so = ["0", "s4", "s5", "s6"][2*j+mm]
                a(f"buffer_store_dwordx4 {vr(d,4)}, v1, s[{SWS}:{SWS+3}], {so} offen offset:{i*1024} {ST}")
    a("s_branch L_pub1")
    a.label("L_epiA")
    PK, SV = FR, 152
    a(f"""s_lshl_b32 s3, s{sRB}, 1
          s_add_u32 s3, s3, s{sWM}
          s_mul_i32 s3, s3, {U_GP}
          s_lshl_b32 s4, s{sCQ}, 10
          s_add_u32 s3, s3, s4
          s_lshl_b32 s4, s{sWN}, 9
          s_add_u32 s3, s3, s4
          s_add_u32 s3, s3, {WS_U}
          v_and_b32 v1, 31, v0
          v_lshl_add_u32 v1, v1, 4, s3
          v_lshrrev_b32 v2, 5, v0
          s_mov_b32 s4, {8*U_ROW}
          v_mad_u32_u24 v1, v2, s4, v1""")
    for j in range(2):
        for p in range(2):
            for t in range(8):
                a(f"v_cvt_pk_bf16_f32 v{PK+16*p+8*j+t}, v{AC(p,j)+2*t}, v{AC(p,j)+2*t+1}")
    a(f"""s_cmp_eq_u32 s{sMASK}, 0
          s_cbranch_scc1 L_nosp1""")
    for p in range(2):
        for t in range(8):
            a(f"v_mov_b32 v{SV+8*p+t}, v{PK+16*p+8+t}")
            a(f"v_cndmask_b32 v{PK+16*p+8+t}, v{PK+16*p+8+t}, 0, s[{sMASK}:{sMASK+1}]")
    a.label("L_nosp1")
    a("s_nop 1")
    def step1(p, aa, bb, with_b=True):
        a(f"{MFMA} {vr(AC(p,0),16)}, {vr(CR,4)}, {vr(aa,4)}, 0")
        a(f"{MFMA} {vr(AC(p,1),16)}, {vr(CI,4)}, {vr(aa,4)}, 0")
        a(f"{MFMA} {vr(AC(p,0),16)}, {vr(CR+4,4)}, {vr(aa+4,4)}, {vr(AC(p,0),16)}")
        a(f"{MFMA} {vr(AC(p,1),16)}, {vr(CI+4,4)}, {vr(aa+4,4)}, {vr(AC(p,1),16)}")
        if with_b:
            for m in range(2):
                a(f"{MFMA} {vr(AC(p,0),16)}, {vr(NCI+4*m,4)}, {vr(bb+4*m,4)}, {vr(AC(p,0),16)}")
                a(f"{MFMA} {vr(AC(p,1),16)}, {vr(CR+4*m,4)}, {vr(bb+4*m,4)}, {vr(AC(p,1),16)}")
    def ustore(special):
        a("s_nop 15")
        D = 168
        for r in range(8):
            d = D + 4*r
            a(f"""v_cvt_pk_bf16_f32 v{d}, v{AC(0,0)+r}, v{AC(1,0)+r}
                  v_cvt_pk_bf16_f32 v{d+1}, v{AC(0,1)+r}, v{AC(1,1)+r}
                  v_cvt_pk_bf16_f32 v{d+2}, v{AC(0,0)+r+8}, v{AC(1,0)+r+8}
                  v_cvt_pk_bf16_f32 v{d+3}, v{AC(0,1)+r+8}, v{AC(1,1)+r+8}""")
            if r > 0:
                st(r-1, special)
        a("s_nop 1")
        st(7, special)
    def st(r, special):
        d = 168 + 4*r
        a(f"""v_permlane32_swap_b32 v{d}, v{d+2}
              v_permlane32_swap_b32 v{d+1}, v{d+3}
              s_mov_b32 s4, {r*U_ROW}""")
        if special: a(f"s_mov_b64 exec, s[{sMASK}:{sMASK+1}]")
        a(f"buffer_store_dwordx4 {vr(d,4)}, v1, s[{SWS}:{SWS+3}], s4 offen {ST}")
        if special: a("s_mov_b64 exec, -1")
    for p in range(2): step1(p, PK+16*p, PK+16*p+8)
    ustore(False)
    a(f"""s_cmp_eq_u32 s{sMASK}, 0
          s_cbranch_scc1 L_pub1""")
    for p in range(2): step1(p, SV+8*p, None, with_b=False)
    a(f"v_add_u32 v1, {256*16}, v1")
    ustore(True)
    a.label("L_pub1")
    stamp(a, 4)
    a("s_barrier")
    a(f"""s_lshl_b32 s3, s2, 2
          s_add_u32 s3, s3, s{sW}
          s_lshl_b32 s3, s3, 7
          s_add_u32 s3, s3, {WS_F1}""")
    publish(a, 3, 2)
    stamp(a, 5)
    qflag(a)
    a("v_mov_b32 v4, s14")
    poll(a, 4, 5, 1)
    a(f"buffer_load_dwordx4 v[4:7], v1, s[{SWS}:{SWS+3}], s12 offen {LD}")

    a.label("L_att")
    QF = 4
    KA, VA_, NINF, MX = 2, 3, 8, 9
    KF, VF, PP, S, O, CN, CD, CF = 12, 24, 40, 48, 80, 96, 112, 128
    sVM, sNF, sI, sQO = 8, 10, 11, 12
    stamp(a, 11)
    a(f"""s_lshl_b32 s4, s{sW}, 10
          s_add_u32 s4, s4, {KV_BASE}
          v_add_u32 v{KA}, s4, v1
          v_lshrrev_b32 v10, 5, v0
          v_and_b32 v11, 15, v0
          v_lshlrev_b32 v11, 4, v11
          v_lshl_add_u32 v11, v10, 8, v11
          s_add_u32 s4, s4, 16384
          v_add_u32 v{VA_}, s4, v11
          v_mov_b32 v{NINF}, 0xff800000
          s_mov_b32 s{sVM}, 0x0000ffff
          s_mov_b32 s{sVM+1}, 0x0000ffff
          s_mov_b32 s6, 0x00110000
          s_mov_b32 s7, 0x00110000
          v_mov_b32 v10, 0x3f803f80""")
    for t in range(16):
        a(f"v_cndmask_b32 v{VF+t}, 0, v10, s[6:7]")
    a(f"""s_cmp_gt_u32 s{sR}, 0
          s_cselect_b32 s{sNF}, 7, s{sW}
          s_sub_u32 s13, 8, s{sNF}
          s_lshl_b32 s13, s13, 10
          s_waitcnt vmcnt(0)
          s_barrier""")
    stamp(a, 12)
    def u_loads():
        for js in range(8):
            for b in range(2):
                a(f"""s_mov_b32 s4, {(2*js+b)*U_GP}
                      buffer_load_dwordx2 {vr(UF+4*js+2*b,2)}, v254, s[{SWS}:{SWS+3}], s4 offen {LD}""")
    a(f"""s_cmp_lt_u32 s{sW}, 4
          s_cbranch_scc1 L_nou
          v_cmp_ne_u32 vcc, s{sNON}, v187
          s_mov_b32 s15, 0
          s_cbranch_vccnz L_nou
          s_mov_b32 s15, 1""")
    u_loads()
    a.label("L_nou")
    def masks(val):
        o = []
        for r in range(16):
            lo, hi = diag_mask(r)
            sp = 4 + 2*(r % 2)
            o.append(f"""s_mov_b32 s{sp}, {lo:#x}
                  s_mov_b32 s{sp+1}, {hi:#x}
                  v_cndmask_b32 v{CD+r}, v{NINF}, {val}, s[{sp}:{sp+1}]
                  v_cndmask_b32 v{CF+r}, {val}, v{NINF}, s[{sp}:{sp+1}]""")
        return o
    def maxblk(S_, first):
        if first:
            a(f"v_max_f32 v{MX}, v{S_}, v{S_+1}")
        for t in range(2 if first else 0, 16, 2):
            a(f"v_max3_f32 v{MX}, v{S_+t}, v{S_+t+1}, v{MX}")
    def xhalf_max():
        a(f"""v_mov_b32 v10, v{MX}
              s_nop 1
              v_permlane32_swap_b32 v10, v{MX}
              s_nop 1
              v_max_f32 v{MX}, v{MX}, v10""")
    if not FORCE_SLOW:
        a(f"""s_cmp_eq_u32 s{sR}, 0
              s_cbranch_scc1 L_slow""")
        order = [7, 6, 5, 4, 3, 2, 1, 8, 0]
        Cof = lambda p: CD if p == 8 else (CF if p == 0 else CN)
        def rdK(n): return f"ds_read_b128 {vr(KF+4*(n%3),4)}, v{KA} offset:{order[n]*1024}"
        def rdV(n):
            b = VF + 8*(n % 2)
            return f"""s_mov_b64 exec, s[{sVM}:{sVM+1}]
                  ds_read_b128 {vr(b,4)}, v{VA_} offset:{order[n]*1024}
                  ds_read_b128 {vr(b+4,4)}, v{VA_} offset:{order[n]*1024+512}
                  s_mov_b64 exec, -1"""
        def mS(n): return f"{MFMA} {vr(S+16*(n%2),16)}, {vr(KF+4*(n%3),4)}, {vr(QF,4)}, {vr(Cof(order[n]),16)}"
        a(rdK(0)); a(rdK(1)); a(rdV(0))
        a(f"""s_waitcnt lgkmcnt(3)
              {MFMA} {vr(S+16,16)}, {vr(KF,4)}, {vr(QF,4)}, 0
              s_nop 11""")
        maxblk(S+16, True)
        xhalf_max()
        a(f"v_sub_f32 v{MX}, 0xc2400000, v{MX}")
        for r in range(16): a(f"v_mov_b32 v{CN+r}, v{MX}")
        a("s_nop 1")
        a(mS(0))
        mk = masks(f"v{MX}")
        for n in range(9):
            Sn = S + 16*(n % 2); Vn = VF + 8*(n % 2)
            if n + 1 < 9:
                a("s_waitcnt lgkmcnt(2)")
                a(mS(n+1))
            if n + 2 < 9: a(rdK(n+2))
            if n + 1 < 9: a(rdV(n+1))
            if n == 0:
                for x in mk: a(x)
            nout = (1 if n + 2 < 9 else 0) + (2 if n + 1 < 9 else 0)
            for r in range(8): a(f"v_exp_f32 v{Sn+r}, v{Sn+r}")
            for t in range(4): a(f"v_cvt_pk_bf16_f32 v{PP+t}, v{Sn+2*t}, v{Sn+2*t+1}")
            for r in range(8, 10): a(f"v_exp_f32 v{Sn+r}, v{Sn+r}")
            a(f"s_waitcnt lgkmcnt({nout})")
            a(f"{MFMA} {vr(O,16)}, {vr(Vn,4)}, {vr(PP,4)}, {'0' if n == 0 else vr(O,16)}")
            for r in range(10, 16): a(f"v_exp_f32 v{Sn+r}, v{Sn+r}")
            for t in range(4, 8): a(f"v_cvt_pk_bf16_f32 v{PP+t}, v{Sn+2*t}, v{Sn+2*t+1}")
            a("s_nop 1")
            a(f"{MFMA} {vr(O,16)}, {vr(Vn+4,4)}, {vr(PP+4,4)}, {vr(O,16)}")
        a(f"""s_nop 11
              v_add_f32 v10, |v{O}|, |v{O+1}|
              v_add_f32 v11, |v{O+2}|, |v{O+3}|
              v_add_f32 v12, |v{O+4}|, |v{O+5}|
              v_add_f32 v13, |v{O+6}|, |v{O+7}|
              v_add_f32 v10, v10, v11
              v_add_f32 v12, v12, v13
              v_mul_f32 v11, 0x5f800000, v{O+8}
              v_add_f32 v10, v10, v12
              v_add_f32 v10, v10, v11
              v_mov_b32 v11, 0x7f800000
              v_cmp_lt_f32 vcc, v10, v11
              v_rcp_f32 v10, v{O+8}
              s_cmp_eq_u64 vcc, -1
              s_cbranch_scc1 L_norm""")
    a.label("L_slow")
    for x in masks("0"): a(x)
    a(f"""ds_read_b128 {vr(KF,4)}, v{KA} offset:{8*1024}
          s_waitcnt lgkmcnt(0)
          {MFMA} {vr(S,16)}, {vr(KF,4)}, {vr(QF,4)}, {vr(CD,16)}
          s_nop 11""")
    maxblk(S, True)
    a(f"""s_cmp_eq_u32 s{sR}, 0
          s_cbranch_scc1 L_s1nofar
          ds_read_b128 {vr(KF,4)}, v{KA}
          s_waitcnt lgkmcnt(0)
          {MFMA} {vr(S,16)}, {vr(KF,4)}, {vr(QF,4)}, {vr(CF,16)}
          s_nop 11""")
    maxblk(S, False)
    a.label("L_s1nofar")
    a(f"""s_mov_b32 s{sI}, s{sNF}
          v_add_u32 v10, s13, v{KA}
          s_cmp_eq_u32 s{sI}, 0
          s_cbranch_scc1 L_s1done""")
    a.label("L_s1loop")
    a(f"""ds_read_b128 {vr(KF,4)}, v10
          v_add_u32 v10, 1024, v10
          s_waitcnt lgkmcnt(0)
          {MFMA} {vr(S,16)}, {vr(KF,4)}, {vr(QF,4)}, 0
          s_nop 11""")
    maxblk(S, False)
    a(f"""s_sub_u32 s{sI}, s{sI}, 1
          s_cmp_lg_u32 s{sI}, 0
          s_cbranch_scc1 L_s1loop""")
    a.label("L_s1done")
    xhalf_max()
    a(f"v_sub_f32 v{MX}, 0, v{MX}")
    for x in masks(f"v{MX}"): a(x)
    for r in range(16): a(f"v_mov_b32 v{CN+r}, v{MX}")
    def pvblk(kaddr, vaddr, off, C, first):
        a(f"""ds_read_b128 {vr(KF,4)}, v{kaddr} offset:{off}
              s_mov_b64 exec, s[{sVM}:{sVM+1}]
              ds_read_b128 {vr(VF,4)}, v{vaddr} offset:{off}
              ds_read_b128 {vr(VF+4,4)}, v{vaddr} offset:{off+512}
              s_mov_b64 exec, -1
              s_waitcnt lgkmcnt(0)
              {MFMA} {vr(S,16)}, {vr(KF,4)}, {vr(QF,4)}, {vr(C,16)}
              s_nop 11""")
        for r in range(16): a(f"v_exp_f32 v{S+r}, v{S+r}")
        for t in range(8): a(f"v_cvt_pk_bf16_f32 v{PP+t}, v{S+2*t}, v{S+2*t+1}")
        a("s_nop 1")
        a(f"{MFMA} {vr(O,16)}, {vr(VF,4)}, {vr(PP,4)}, {'0' if first else vr(O,16)}")
        a(f"{MFMA} {vr(O,16)}, {vr(VF+4,4)}, {vr(PP+4,4)}, {vr(O,16)}")
    pvblk(KA, VA_, 8*1024, CD, True)
    a(f"""s_cmp_eq_u32 s{sR}, 0
          s_cbranch_scc1 L_s2nofar""")
    pvblk(KA, VA_, 0, CF, False)
    a.label("L_s2nofar")
    a(f"""s_mov_b32 s{sI}, s{sNF}
          v_add_u32 v10, s13, v{KA}
          v_add_u32 v11, s13, v{VA_}
          s_cmp_eq_u32 s{sI}, 0
          s_cbranch_scc1 L_s2done""")
    a.label("L_s2loop")
    pvblk(10, 11, 0, CN, False)
    a(f"""v_add_u32 v10, 1024, v10
          v_add_u32 v11, 1024, v11
          s_sub_u32 s{sI}, s{sI}, 1
          s_cmp_lg_u32 s{sI}, 0
          s_cbranch_scc1 L_s2loop""")
    a.label("L_s2done")
    a(f"""s_nop 15
          v_rcp_f32 v10, v{O+8}""")
    a.label("L_norm")
    a("s_nop 0")
    for t in range(8): a(f"v_mul_f32 v{O+t}, v10, v{O+t}")
    for t in range(4): a(f"v_cvt_pk_bf16_f32 v{PP+t}, v{O+2*t}, v{O+2*t+1}")
    a(f"""s_add_u32 s4, s{sQO}, {WS_O}
          buffer_store_dwordx4 {vr(PP,4)}, v1, s[{SWS}:{SWS+3}], s4 offen {ST}
          s_lshl_b32 s4, s{sR}, 3
          s_add_u32 s4, s4, s{sW}
          s_lshl_b32 s4, s4, 5
          s_add_u32 s4, s4, s{sHD}
          s_lshl_b32 s4, s4, 7
          s_add_u32 s3, s4, {WS_F2}""")
    stamp(a, 13)
    publish(a, 3, 10)
    stamp(a, 14)
    a(f"""s_barrier
          s_cmp_ge_u32 s{sW}, 4
          s_cbranch_scc1 L_a2""")
    SOUT = 36
    OA, WA2, ACC2, FR2 = 8, 9, 16, 32
    srd(a, SOUT, kOUT, 0x400000)
    a(f"""s_lshr_b32 s4, s2, 3
          s_lshl_b32 s4, s4, 1
          s_and_b32 s5, s2, 1
          s_add_u32 s4, s4, s5                    ; qb'
          s_lshl_b32 s5, s4, 5
          s_lshl_b32 s6, s{sW}, 3
          s_add_u32 s5, s5, s6
          v_add_u32 v4, s5, v0
          v_lshlrev_b32 v4, 7, v4
          v_add_u32 v4, {WS_F2}, v4
          s_lshl_b32 s5, s{sW}, 19
          s_lshl_b32 s6, s4, 10
          s_add_u32 s5, s5, s6
          s_add_u32 s5, s5, {WS_O}
          s_lshl_b32 s6, s{sW}, 13
          s_add_u32 s6, s6, {KV_BASE}
          v_add_u32 v{OA}, {KV_BASE}, v1
          v_lshrrev_b32 v2, 5, v0
          v_bfe_u32 v3, v0, 2, 2
          v_lshl_add_u32 v6, v2, 2, v3
          v_lshlrev_b32 v6, 8, v6
          v_bfe_u32 v5, v0, 4, 1
          v_lshlrev_b32 v5, 1, v5
          v_and_b32 v7, 1, v0
          v_add_u32 v5, v5, v7
          v_xor_b32 v3, s{sW}, v3
          v_lshl_add_u32 v5, v3, 2, v5
          v_lshl_add_u32 v6, v5, 4, v6
          v_bfe_u32 v7, v0, 1, 1
          v_lshl_add_u32 v6, v7, 3, v6""")
    for qd in range(4):
        a(f"v_add_u32 v{WA2+qd}, {WO_SLOT[qd]*SLOT}, v6")
    a(f"""v_and_b32 v14, 31, v0
          s_lshl_b32 s7, s4, 5
          v_add_u32 v14, s7, v14
          v_lshlrev_b32 v14, 11, v14
          v_lshl_add_u32 v14, v2, 4, v14
          s_lshl_b32 s7, s{sTYPE}, 8
          s_lshl_b32 s8, s{sW}, 6
          s_add_u32 s7, s7, s8
          s_add_u32 s7, s7, 1024
          v_add_u32 v14, s7, v14""")
    poll(a, 4, 5, 255)
    stamp(a, 15)
    for j in range(8):
        a(f"""s_add_u32 m0, s6, {j*1024}
              s_add_u32 s7, s5, {j*65536}
              buffer_load_dwordx4 v1, s[{SWS}:{SWS+3}], s7 offen {LD} lds""")
    def wrd(qd, k, f):
        return [f"ds_read_b64_tr_b16 {vr(f+4+2*q,2)}, v{WA2+qd} offset:{k*4096 + q*2048}" for q in range(2)]
    for k in range(8):
        for x in wrd(0, k, FR2+8*k): a(x)
    a(f"""s_waitcnt vmcnt(0)
          s_barrier""")
    stamp(a, 16)
    for k in range(8):
        a(f"ds_read_b128 {vr(FR2+8*k,4)}, v{OA} offset:{k*1024}")
    for qd in range(4):
        for k in range(8):
            f = FR2 + 64*(qd % 2) + 8*k
            fn = FR2 + 64*((qd+1) % 2) + 8*k
            if qd == 0:
                a(f"s_waitcnt lgkmcnt({min(15, 7-k + 3*k)})")
            else:
                a(f"s_waitcnt lgkmcnt({min(15, 3*(7-k) + (3*k if qd < 3 else 0))})")
            c = "0" if (qd == 0 and k == 0) else vr(ACC2,16)
            a(f"{MFMA} {vr(ACC2,16)}, {vr(f+4,4)}, {vr(f,4)}, {c}")
            if qd < 3:
                a(f"ds_read_b128 {vr(fn,4)}, v{OA} offset:{(8*(qd+1)+k)*1024}")
                for x in wrd(qd+1, k, fn): a(x)
    a("s_nop 15")
    for mm in range(2):
        for t in range(4):
            a(f"v_cvt_pk_bf16_f32 v{FR2+4*mm+t}, v{ACC2+8*mm+2*t}, v{ACC2+8*mm+2*t+1}")
        a(f"buffer_store_dwordx4 {vr(FR2+4*mm,4)}, v14, s[{SOUT}:{SOUT+3}], 0 offen offset:{32*mm}")
    stamp(a, 17)
    stamp_flush(a, 18)
    a("s_endpgm")
    a.label("L_a2")
    MF, A2 = 48, 80
    srd(a, SOUT, kOUT, 0x400000)
    a("""s_cmp_lg_u32 s15, 0
          s_cbranch_scc1 L_uok""")
    poll(a, 253, 6, -1)
    u_loads()
    a.label("L_uok")
    stamp(a, 15)
    a("v_lshrrev_b32 v3, 5, v0")
    a(f"""v_lshlrev_b32 v10, 11, v252
          v_lshl_add_u32 v10, v3, 4, v10
          s_lshl_b32 s4, s{sC0}, 1
          v_add_u32 v10, s4, v10""")
    for cc in range(4):
        for b in range(2):
            f = MF + 4*(2*cc+b)
            a(f"""v_mov_b32 v{f}, v{MRAW+4*cc+2*b}
                  v_xor_b32 v{f+1}, s{sSGN}, v{MRAW+16+4*cc+2*b}
                  v_mov_b32 v{f+2}, v{MRAW+4*cc+2*b+1}
                  v_xor_b32 v{f+3}, s{sSGN}, v{MRAW+16+4*cc+2*b+1}""")
    for js in range(8):
        a(f"s_waitcnt vmcnt({14-2*js})")
        a(f"{MFMA} {vr(A2,16)}, {vr(UF+4*js,4)}, {vr(MF+4*js,4)}, {'0' if js == 0 else vr(A2,16)}")
    a("s_nop 15")
    for mm in range(2):
        for t in range(4):
            a(f"v_cvt_pk_bf16_f32 v{16+4*mm+t}, v{A2+8*mm+2*t}, v{A2+8*mm+2*t+1}")
        a(f"buffer_store_dwordx4 {vr(16+4*mm,4)}, v10, s[{SOUT}:{SOUT+3}], 0 offen offset:{32*mm}")
    stamp(a, 17)
    stamp_flush(a, 18)
    a.label("L_end")
    a("s_endpgm")
    return a

def main():
    a = gen()
    hdr = f"""; {NAME} : one fused kernel (generated by my gen2.py)
; @launch grid=(256,1,1) block=(512,1,1) lds=163840
.amdgcn_target "amdgcn-amd-amdhsa--gfx950"
.text
"""
    kd = f""".section .rodata,"a"
.p2align 6
.amdhsa_kernel {KN}
  .amdhsa_next_free_vgpr 256
  .amdhsa_next_free_sgpr 102
  .amdhsa_accum_offset 256
  .amdhsa_group_segment_fixed_size 0
  .amdhsa_kernarg_size 88
  .amdhsa_user_sgpr_count 2
  .amdhsa_user_sgpr_kernarg_segment_ptr 1
  .amdhsa_system_sgpr_workgroup_id_x 1
.end_amdhsa_kernel
"""
    path = sys.argv[1] if len(sys.argv) > 1 and sys.argv[1].endswith(".s") else f"cdna_kernels/{NAME}.s"
    open(path, "w").write(hdr + a.text() + kd)
main()
```

```python
import sys, struct, math

NAME = "concat_heads__spectral_fnet__sliding_block__prompt"
KN = NAME + "_kernel"
WS_Q, WS_K, WS_V, WS_O, WS_U = 0, 2 << 20, 4 << 20, 6 << 20, 8 << 20
WS_F1, WS_F2, WS_PT = (11 << 20), (11 << 20) + 0x20000, (11 << 20) + 0x60000
U_ROW = 4224
U_GP = 16 * U_ROW
U_SIZE = 32 * U_GP
QSCALE = 0.25 * math.log2(math.e)
uid = [0]
STAMP = "--stamp" in sys.argv
FORCE_SLOW = "--slow" in sys.argv
SKIP = set(int(x) for x in sys.argv[sys.argv.index("--skip")+1].split(",")) if "--skip" in sys.argv else set()
ST = "sc1"
LD = "sc1"
SPIN_MAX = 30000
def opt(name, default):
    return type(default)(sys.argv[sys.argv.index(name)+1]) if name in sys.argv else default
PDELAY = opt("--pdelay", 0)
PIPE = "--pipe" in sys.argv
FULLF = "--fullf" in sys.argv
KVLD = "" if "--kvplain" in sys.argv else "sc1"

def f2u(x): return struct.unpack("<I", struct.pack("<f", x))[0]

class Asm:
    def __init__(self): self.L = []
    def __call__(self, s):
        for line in s.strip("\n").split("\n"):
            line = line.strip()
            if line: self.L.append("  " + line)
    def label(self, n): self.L.append(n + ":")
    def text(self): return "\n".join(self.L) + "\n"

def vr(b, n=1): return f"v{b}" if n == 1 else f"v[{b}:{b+n-1}]"
MFMA = "v_mfma_f32_32x32x16_bf16"

kAX, kSR, kSI, kDR, kDI, kBX, kWQ, kWO, kOUT, kDBG, kWS = 64, 66, 68, 70, 72, 74, 76, 78, 80, 82, 84
sTYPE, sRB, sCQ, sW, sNON = 16, 17, 18, 19, 20
sHD, sR = 21, 22
SWS = 32
VST = 167

def srd(a, d, k, size, off=0):
    if off:
        a(f"s_add_u32 s{d}, s{k}, {off}\ns_addc_u32 s{d+1}, s{k+1}, 0")
    else:
        a(f"s_mov_b32 s{d}, s{k}\ns_mov_b32 s{d+1}, s{k+1}")
    a(f"s_mov_b32 s{d+2}, {size}\ns_mov_b32 s{d+3}, 0x20000")

AMP = [int(x) for x in sys.argv[sys.argv.index("--amp")+1].split(",")] if "--amp" in sys.argv else None
def amp_end(a):
    if not AMP: return
    uid[0] += 1
    L = f"amp{uid[0]}"
    a(f"""s_cmp_lg_u32 s2, {AMP[3]}
          s_cbranch_scc1 {L}x
          s_cmp_lg_u32 s{sW}, {AMP[4]}
          s_cbranch_scc1 {L}x
          s_waitcnt vmcnt(0)
          s_memrealtime s[62:63]
          s_sub_u32 s100, s101, s100
          s_min_u32 s100, s100, 10000
          s_mul_i32 s100, s100, {AMP[2]}
          s_waitcnt lgkmcnt(0)
          s_add_u32 s100, s100, s62""")
    a.label(L)
    a(f"""s_memrealtime s[62:63]
          s_waitcnt lgkmcnt(0)
          s_sub_u32 s61, s62, s100
          s_cmp_lt_i32 s61, 0
          s_cbranch_scc1 {L}""")
    a.label(L + "x")
GMAX = None
def stamp(a, idx):
    if AMP and idx in AMP[:2]:
        a(f"""s_memrealtime s[62:63]
              s_waitcnt lgkmcnt(0)
              s_mov_b32 s{100 + AMP[:2].index(idx)}, s62""")
    if not STAMP: return
    if idx in SKIP: return
    a(f"""s_memrealtime s[96:97]
          s_memtime s[98:99]
          s_waitcnt lgkmcnt(0)
          v_writelane_b32 v{VST}, s96, {idx}
          v_writelane_b32 v{VST}, s98, {idx+32}""")
def stamp_flush(a, idx):
    if AMP:
        if idx in AMP[:2]: a("s_waitcnt vmcnt(0)")
        stamp(a, idx)
        amp_end(a)
    if not STAMP: return
    a("s_waitcnt vmcnt(0)")
    stamp(a, idx)
    srd(a, 88, SWS, 0x100000, 16 << 20)
    a(f"""s_mov_b64 exec, -1
          s_lshl_b32 s92, s2, 12
          s_lshl_b32 s93, s{sW}, 8
          s_add_u32 s92, s92, s93
          v_mbcnt_lo_u32_b32 v2, -1, 0
          v_mbcnt_hi_u32_b32 v2, -1, v2
          v_lshlrev_b32 v2, 2, v2
          buffer_store_dword v{VST}, v2, s[88:91], s92 offen""")

def poll(a, vaddr, vtmp, nl_mask, srdreg=SWS):
    uid[0] += 1
    L = f"poll{uid[0]}"
    a(f"""s_mov_b32 s60, 0
          s_mov_b64 exec, {nl_mask}""")
    a.label(L)
    a(f"""buffer_load_dword v{vtmp}, v{vaddr}, s[{srdreg}:{srdreg+3}], 0 offen sc1
          s_add_u32 s60, s60, 1
          s_cmp_gt_u32 s60, {SPIN_MAX}
          s_cbranch_scc1 {L}x
          s_waitcnt vmcnt(0)
          v_cmp_ne_u32 vcc, s{sNON}, v{vtmp}
          s_cbranch_vccnz {L}""")
    a.label(L + "x")
    a("s_mov_b64 exec, -1")

def poll_pipe(a, vaddr, vt, nl_mask, gap=2):
    uid[0] += 1
    L = f"pp{uid[0]}"
    ld = lambda k: f"buffer_load_dword v{vt+k}, v{vaddr}, s[{SWS}:{SWS+3}], 0 offen sc1"
    a(f"""s_mov_b32 s60, 0
          s_mov_b64 exec, {nl_mask}
          {ld(0)}
          s_sleep {gap}
          {ld(1)}""")
    a.label(L)
    for k in range(3):
        a(f"""s_sleep {gap}
              {ld((k+2)%3)}
              s_waitcnt vmcnt(2)
              v_cmp_ne_u32 vcc, s{sNON}, v{vt+k}
              s_cbranch_vccz {L}x""")
    a(f"""s_add_u32 s60, s60, 1
          s_cmp_lt_u32 s60, {SPIN_MAX}
          s_cbranch_scc1 {L}""")
    a.label(L + "x")
    a("s_mov_b64 exec, -1")

def publish(a, soff, vtmp, cnt=0, flav=None):
    if FULLF:
        a(f"""v_mov_b32 v{vtmp}, s{sNON}
              v_mov_b32 v{vtmp+1}, s{sNON}
              s_waitcnt vmcnt({cnt})
              s_mov_b64 exec, 0xffff
              buffer_store_dwordx2 v[{vtmp}:{vtmp+1}], v166, s[{SWS}:{SWS+3}], s{soff} offen {ST if flav is None else flav}
              s_mov_b64 exec, -1""")
        return
    a(f"""s_waitcnt vmcnt({cnt})
          v_mov_b32 v{vtmp}, s{sNON}
          s_mov_b64 exec, 1
          buffer_store_dword v{vtmp}, off, s[{SWS}:{SWS+3}], s{soff} {ST if flav is None else flav}
          s_mov_b64 exec, -1""")

def nonce_wait(a, vtmp, first_loaded):
    uid[0] += 1
    L = f"non{uid[0]}"
    a("s_mov_b32 s60, 0")
    if first_loaded:
        a(f"s_branch {L}c")
    a.label(L)
    a(f"""buffer_load_dword v{vtmp}, off, s[56:59], 0 sc1
          s_waitcnt vmcnt(0)""")
    a.label(L + "c")
    a(f"""v_readfirstlane_b32 s{sNON}, v{vtmp}
          s_add_u32 s60, s60, 1
          s_cmp_gt_u32 s60, {SPIN_MAX}
          s_cbranch_scc1 {L}x
          s_cmp_eq_u32 s{sNON}, 0
          s_cbranch_scc1 {L}""")
    a.label(L + "x")

def diag_mask(r):
    g, i = r // 4, r % 4
    return (0xffffffff << (8*g+i)) & 0xffffffff, (0xffffffff << (8*g+i+4)) & 0xffffffff

MODE = sys.argv[sys.argv.index("--mode")+1] if "--mode" in sys.argv else "auto"
SPF = "--nospf" not in sys.argv
SLOT = 32768
RING = 32768
KV_BASE = 0
Q_BASE = 163840 - 8192
def WOQ(q): return 32768*(q+1)
MRAW = 32
UF = 64
NS = 3
sX, sJ = 23, 31

def gen():
    a = Asm()
    a.L += [f".globl {KN}", ".p2align 8", f".type {KN},@function"]
    a.label(KN)
    a(f"""s_cmp_ge_u32 s2, 256
          s_cbranch_scc1 L_end
          s_load_dwordx16 s[64:79], s[0:1], 0
          s_load_dwordx4 s[80:83], s[0:1], 64
          s_load_dwordx2 s[84:85], s[0:1], 80
          v_lshrrev_b32 v1, 6, v0
          v_and_b32 v0, 63, v0
          s_and_b32 s{sR}, s2, 7
          v_readfirstlane_b32 s{sW}, v1
          s_lshr_b32 s{sTYPE}, s{sR}, 1
          s_and_b32 s4, s2, 1
          s_lshl_b32 s4, s4, 3
          s_bfe_u32 s{sRB}, s2, 0x30003
          s_add_u32 s{sRB}, s{sRB}, s4
          s_lshr_b32 s{sCQ}, s2, 6
          s_lshr_b32 s{sHD}, s2, 3
""")
    if FULLF: a("v_lshlrev_b32 v166, 3, v0")
    if STAMP: a(f"v_mov_b32 v{VST}, 0")
    stamp(a, 0)
    a(f"""s_cmp_lt_u32 s{sW}, 8
          s_cbranch_scc1 L_consumer""")
    sQO, sF2, sPTV = 12, 13, 14
    def pt_load():
        if MODE == "auto":
            a(f"""v_and_b32 v147, 31, v0
                  v_lshl_add_u32 v147, v147, 3, s{sR}
                  v_lshlrev_b32 v147, 7, v147
                  v_add_u32 v147, {WS_PT}, v147
                  buffer_load_dword v148, v147, s[{SWS}:{SWS+3}], 0 offen sc1""")
    sLW, sXB, sXSH, sWRS, sCB = 23, 24, 25, 26, 27
    sSOX, sSOW, sWST, sM0 = 28, 29, 30, 31
    SX, SWD, SWOD, SMR, SMI = 36, 40, 44, 48, 52
    sC0, sT1O, sSGN = 24, 25, 26
    a(f"""s_sub_u32 s{sLW}, s{sW}, 8
          s_cmp_eq_u32 s{sTYPE}, 3
          s_cselect_b32 s{sXSH}, 16, 10
          s_movk_i32 s3, 3072
          s_cselect_b32 s{sWRS}, 1024, s3
          s_lshl_b32 s4, s{sRB}, 2
          s_add_u32 s4, s4, s{sLW}
          s_lshl_b32 s5, s4, 5
          s_cmp_eq_u32 s{sTYPE}, 3
          s_cselect_b32 s{sXB}, s4, s5
          s_lshl_b32 s{sXB}, s{sXB}, 10
          s_lshl_b32 s4, s{sCQ}, 7
          s_lshl_b32 s5, s{sTYPE}, 10
          s_lshl_b32 s6, s{sCQ}, 8
          s_add_u32 s5, s5, s6
          s_lshr_b32 s6, s{sLW}, 1
          s_lshl_b32 s6, s6, 7
          s_add_u32 s5, s5, s6
          s_cmp_eq_u32 s{sTYPE}, 3
          s_cselect_b32 s{sCB}, s4, s5
          s_lshl_b32 s{sWST}, s{sWRS}, 6
          s_lshl_b32 s{sM0}, s{sLW}, 12
          v_lshrrev_b32 v1, 3, v0
          v_and_b32 v2, 7, v0
          v_lshrrev_b32 v3, 4, v0
          v_xor_b32 v4, v3, v2
          v_xor_b32 v5, 4, v4
          v_lshl_add_u32 v4, v4, 4, s{sXB}
          v_lshl_add_u32 v5, v5, 4, s{sXB}""")
    for jx in range(4):
        if jx: a(f"v_add_u32 v6, {8*jx}, v1")
        a(f"v_lshl_add_u32 v{8+jx}, v{6 if jx else 1}, s{sXSH}, v{4+(jx&1)}" if False else
          f"""v_lshlrev_b32 v6, s{sXSH}, v{6 if jx else 1}
              v_add_u32 v{8+jx}, v6, v{4+(jx&1)}""")
    a(f"""s_and_b32 s4, s{sLW}, 1
          s_lshl_b32 s4, s4, 5
          v_and_b32 v5, 1, v3
          v_lshlrev_b32 v5, 2, v5
          v_xor_b32 v5, v5, v2
          v_lshl_add_u32 v5, v5, 4, s{sCB}
          v_add_u32 v6, s4, v1
          v_mad_u32_u24 v12, v6, s{sWRS}, v5
          s_lshl_b32 s4, s{sWRS}, 3
          v_add_u32 v13, s4, v12
          v_add_u32 v14, s4, v13
          v_add_u32 v15, s4, v14
          s_lshl_b32 s4, s{sCQ}, 1
          s_add_u32 s4, s4, s{sRB}
          s_and_b32 s15, s4, 7
          s_lshl_b32 s{sSOX}, s15, 7
          s_mul_i32 s{sSOW}, s15, s{sWST}
          s_waitcnt lgkmcnt(0)
          s_cmp_lt_u32 s{sLW}, 2
          s_cselect_b32 s4, s{kDR}, s{kDI}
          s_cselect_b32 s5, s{kDR+1}, s{kDI+1}
          s_cmp_eq_u32 s{sTYPE}, 3
          s_cselect_b32 s{SX}, s{kAX}, s{kBX}
          s_cselect_b32 s{SX+1}, s{kAX+1}, s{kBX+1}
          s_mov_b32 s{SX+2}, 0x200000
          s_mov_b32 s{SX+3}, 0x20000
          s_cselect_b32 s{SWD}, s4, s{kWQ}
          s_cselect_b32 s{SWD+1}, s5, s{kWQ+1}
          s_mov_b32 s4, 0x180000
          s_cselect_b32 s{SWD+2}, 0x80000, s4
          s_mov_b32 s{SWD+3}, 0x20000""")
    stamp(a, 1)
    def issue(st):
        for j in range(8):
            S, so = (SX, sSOX) if j < 4 else (SWD, sSOW)
            a(f"""s_add_u32 m0, s{sM0}, {RING + (st%NS)*SLOT + (j//4)*16384 + (j%4)*1024}
                  s_nop 0
                  buffer_load_dwordx4 v{8+j}, s[{S}:{S+3}], s{so} offen lds""")
        if st < 7:
            a(f"""s_add_u32 s15, s15, 1
                  s_and_b32 s15, s15, 7
                  s_lshl_b32 s{sSOX}, s15, 7
                  s_mul_i32 s{sSOW}, s15, s{sWST}""")
    issue(0); issue(1)
    srd(a, SWS, kWS, 0x1000000)
    srd(a, 56, kDBG, 256)
    srd(a, SWOD, kWO, 0x80000)
    a(f"""; wo voffset: (32lw + (i>>4))*1024 + nb*256 + ((i&15) ^ ((i>>4)<<2))*16 ; nb = id>>6
          s_lshl_b32 s4, s{sLW}, 5
          v_add_u32 v19, s4, v3
          v_lshlrev_b32 v19, 10, v19
          v_and_b32 v4, 15, v0
          v_lshlrev_b32 v5, 2, v3
          v_xor_b32 v4, v4, v5
          v_lshl_add_u32 v19, v4, 4, v19
          s_lshl_b32 s4, s{sCQ}, 8
          v_add_u32 v19, s4, v19
          s_lshl_b32 s6, s{sR}, 1
          s_and_b32 s4, s{sHD}, 1
          s_add_u32 s6, s6, s4                    ; tc
          s_lshr_b32 s27, s{sHD}, 1               ; cr16
          s_lshl_b32 s{sC0}, s27, 5
          s_lshr_b32 s4, s6, 2
          s_lshl_b32 s4, s4, 3
          s_and_b32 s5, s6, 3
          s_add_u32 s4, s4, s5
          s_and_b32 s5, s{sW}, 1
          s_lshl_b32 s5, s5, 2
          s_add_u32 s5, s4, s5                    ; t1 source
          s_sub_u32 s4, 32, s5
          s_and_b32 s4, s4, 31
          s_cmp_lt_u32 s2, 128
          s_cselect_b32 s{sT1O}, s5, s4
          s_cselect_b64 vcc, -1, 0
          v_and_b32 v5, 31, v0
          s_and_b32 s4, s{sW}, 2
          s_lshl_b32 s4, s4, 4
          v_add_u32 v5, s4, v5
          v_lshl_add_u32 v20, v5, 5, s{sT1O}
          v_lshrrev_b32 v7, 5, v0                 ; h
          v_sub_u32 v6, 2048, v20
          v_cndmask_b32 v6, v6, v20, vcc
          v_cvt_f32_u32 v6, v6
          v_mul_f32 v17, 0x3a000000, v6
          v_lshlrev_b32 v6, 5, v7
          v_cvt_f32_u32 v6, v6
          v_mul_f32 v28, v17, v6
          v_and_b32 v5, 0x13, v0
          v_bfe_u32 v6, v0, 2, 1
          v_lshl_or_b32 v5, v6, 3, v5
          v_bfe_u32 v6, v0, 3, 1
          v_lshl_or_b32 v5, v6, 2, v5
          v_add_u32 v5, s{sC0}, v5                ; c
          v_sub_u32 v6, 512, v5
          v_cndmask_b32 v5, v6, v5, vcc           ; e
          s_mul_i32 s4, s6, {U_ROW}
          s_and_b32 s5, s{sW}, 1
          s_lshl_b32 s5, s5, 3
          s_add_u32 s4, s4, s5
          s_add_u32 s4, s4, {WS_U}
          v_lshl_add_u32 v5, v5, 4, s4
          s_mov_b32 s5, {16*U_GP}
          v_mad_u32_u24 v22, v7, s5, v5          ; U address
          s_sub_u32 s5, 15, s27
          s_cmp_lt_u32 s2, 128
          s_cselect_b32 s4, s27, s5
          s_cselect_b32 s5, 0, 1
          v_mul_u32_u24 v4, s5, v7
          v_add_u32 v4, s4, v4
          v_and_b32 v4, 7, v4
          v_lshrrev_b32 v5, 1, v4                 ; er
          v_and_b32 v4, 1, v4                     ; wn
          v_lshlrev_b32 v5, 8, v5
          v_lshl_add_u32 v5, v4, 1, v5
          v_and_b32 v4, 1, v0
          v_add_u32 v5, v5, v4
          v_bfe_u32 v4, v0, 1, 3
          v_lshl_add_u32 v5, v4, 5, v5
          v_bfe_u32 v4, v0, 4, 1
          v_lshl_add_u32 v5, v4, 2, v5
          v_add_u32 v5, 24, v5
          v_lshlrev_b32 v5, 7, v5
          v_add_u32 v21, {WS_F1}, v5
          s_lshl_b32 s27, s{sR}, 1
          s_add_u32 s27, s27, s{sLW}
          s_sub_u32 s4, s27, 2
          s_bfe_u32 s5, s4, 0x10003
          s_and_b32 s6, s4, 7
          s_and_b32 s7, s{sHD}, 24
          s_add_u32 s6, s6, s7
          s_lshl_b32 s6, s6, 3
          s_add_u32 s5, s5, s6
          s_lshl_b32 s5, s5, 2
          s_and_b32 s6, s{sHD}, 2
          s_add_u32 s5, s5, s6
          v_lshrrev_b32 v4, 1, v0
          v_sub_u32 v4, 2, v4                     ; lanes 0,1: V ; 2,3: K ; 4,5: Q
          v_and_b32 v5, 1, v0
          v_lshl_add_u32 v4, v4, 3, v5
          v_add_u32 v4, s5, v4
          v_lshlrev_b32 v4, 7, v4
          v_add_u32 v16, {WS_F1}, v4
          v_lshlrev_b32 v1, 4, v0
          s_lshl_b32 s4, s{sR}, 3
          s_lshl_b32 s5, s{sLW}, 1
          s_add_u32 s4, s4, s5
          s_lshl_b32 s5, s4, 10
          s_lshl_b32 s6, s{sHD}, 16
          s_add_u32 s5, s5, s6
          s_add_u32 s5, s5, {WS_O}
          v_lshl_add_u32 v24, v0, 7, s5
          s_lshl_b32 s4, s4, 5
          s_add_u32 s4, s4, s{sHD}
          s_lshl_b32 s4, s4, 7
          s_add_u32 s4, s4, {WS_F2}
          v_and_b32 v4, 1, v0
          v_cmp_gt_u32 vcc, 16, v0
          v_lshl_add_u32 v4, v4, 12, s4
          s_and_b32 s4, s{sHD}, 7
          v_cndmask_b32 v24, v4, v24, vcc
          s_lshl_b32 s4, s4, 2
          s_add_u32 s4, s4, s{sLW}
          s_lshl_b32 s4, s4, 14
          s_lshl_b32 s5, s{sCQ}, 8
          s_add_u32 s4, s4, s5
          v_bfe_u32 v4, v0, 1, 4
          v_lshlrev_b32 v4, 10, v4
          v_and_b32 v5, 1, v0
          v_lshl_add_u32 v4, v5, 7, v4
          v_add_u32 v26, s4, v4
          s_lshl_b32 s4, s{sR}, 3
          s_and_b32 s5, s{sHD}, 7
          s_add_u32 s4, s4, s5
          s_lshl_b32 s5, s4, 5
          s_lshl_b32 s6, s{sLW}, 3
          s_add_u32 s5, s5, s6
          v_add_u32 v25, s5, v0
          v_lshlrev_b32 v25, 7, v25
          v_add_u32 v25, {WS_F2}, v25
          s_lshl_b32 s5, s{sLW}, 19
          s_lshl_b32 s6, s4, 10
          s_add_u32 s5, s5, s6
          s_add_u32 s13, s5, {WS_O}""")
    for i in range(8):
        extra = 1 if i >= 6 else 0
        a(f"s_waitcnt vmcnt({(8 if i < 7 else 0) + extra})")
        if i in (0, 1, 7): stamp(a, 2+i)
        a("s_barrier")
        if i + 2 <= 7: issue(i+2)
        if i == 5: a("buffer_load_dword v18, off, s[56:59], 0 sc1")
        if i == 2 and SPF:
            a(f"""s_lshl_b32 s4, s2, 2
                  s_add_u32 s4, s4, s{sLW}
                  s_lshl_b32 s5, s4, 9
                  s_add_u32 s6, s{kWO}, s5
                  s_addc_u32 s7, s{kWO+1}, 0""")
            for k in range(8): a(f"s_load_dword s61, s[6:7], {64*k}")
        MF = 96
        a(f"""v_add_f32 v29, v28, v17
              v_add_f32 v30, v29, v17
              v_add_f32 v31, v30, v17
              v_cos_f32 v32, v28
              v_cos_f32 v33, v29
              v_cos_f32 v34, v30
              v_cos_f32 v35, v31
              v_sin_f32 v36, v28
              v_sin_f32 v37, v29
              v_sin_f32 v38, v30
              v_sin_f32 v39, v31
              v_add_f32 v28, v31, v17
              v_cvt_pk_bf16_f32 v{MF+4*i}, v32, v33
              v_cvt_pk_bf16_f32 v{MF+4*i+1}, v36, v37
              v_cvt_pk_bf16_f32 v{MF+4*i+2}, v34, v35
              v_cvt_pk_bf16_f32 v{MF+4*i+3}, v38, v39""")
    a("s_barrier")
    stamp(a, 21)
    SOUT = 40
    srd(a, SOUT, kOUT, 0x400000)
    a("s_waitcnt vmcnt(0) lgkmcnt(0)")
    nonce_wait(a, 18, True)
    a(f"""s_cmp_lt_u32 s27, 2
          s_cbranch_scc1 L_lc
          s_cmp_lt_u32 s{sLW}, 2
          s_cselect_b32 s6, 15, 63
          s_mov_b32 s7, 0""")
    if PDELAY: a(f"s_sleep {PDELAY}")
    if PIPE: poll_pipe(a, 16, 40, "s[6:7]")
    else: poll(a, 16, 5, "s[6:7]")
    stamp(a, 10)
    a(f"""s_sub_u32 s4, s27, 2
          s_lshl_b32 s5, s{sHD}, 16
          s_lshl_b32 s4, s4, 12
          s_add_u32 s4, s4, s5
          s_add_u32 s5, s4, {WS_K}
          s_add_u32 s6, s4, {WS_V}
          s_add_u32 m0, s{sM0}, {KV_BASE}
          s_nop 0""")
    for j in range(4): a(f"buffer_load_dwordx4 v1, s[{SWS}:{SWS+3}], s5 offen offset:{1024*j} {KVLD} lds")
    a(f"""s_add_u32 m0, s{sM0}, {KV_BASE+16384}
          s_nop 0""")
    for j in range(4): a(f"buffer_load_dwordx4 v1, s[{SWS}:{SWS+3}], s6 offen offset:{1024*j} {KVLD} lds")
    a(f"""s_cmp_lt_u32 s{sLW}, 2
          s_cbranch_scc1 L_lc
          s_add_u32 m0, s{sM0}, {Q_BASE-8192}
          s_nop 0""")
    for j in range(4): a(f"buffer_load_dwordx4 v1, s[{SWS}:{SWS+3}], s4 offen offset:{1024*j} {KVLD} lds")
    a.label("L_lc")
    a(f"buffer_load_dword v27, v26, s[{SWOD}:{SWOD+3}], 0 offen")
    a(f"""s_lshl_b32 s30, s{sM0}, 1
          s_and_b32 s3, s{sHD}, 3
          s_mov_b32 s7, 4
          s_waitcnt vmcnt(1)""")
    stamp(a, 11)
    a("s_barrier")
    a(f"buffer_load_dword v23, v21, s[{SWS}:{SWS+3}], 0 offen sc1")
    if MODE == "auto": a(f"buffer_load_dword v27, v24, s[{SWS}:{SWS+3}], 0 offen")
    a("s_barrier")
    stamp(a, 12)
    a.label("L_wol")
    a(f"""s_lshl_b32 s4, s3, 15
          s_add_u32 s4, s4, s30
          s_add_u32 s4, s4, {WOQ(0)}
          s_lshl_b32 s5, s3, 17""")
    for jj in range(8):
        a(f"""s_add_u32 m0, s4, {jj*1024}
              s_add_u32 s6, s5, {jj*4096}
              buffer_load_dwordx4 v19, s[{SWOD}:{SWOD+3}], s6 offen lds""")
    a(f"""s_add_u32 s3, s3, 1
          s_and_b32 s3, s3, 3
          s_sub_u32 s7, s7, 1
          s_cmp_lg_u32 s7, 0
          s_cbranch_scc1 L_wol""")
    stamp(a, 20)
    a(f"""s_waitcnt vmcnt(32)
          v_cmp_ne_u32 vcc, s{sNON}, v23
          s_cbranch_vccz L_uok""")
    poll(a, 21, 23, -1)
    a.label("L_uok")
    for js in range(8):
        for b in range(2):
            a(f"""s_mov_b32 s4, {(2*js + b)*U_GP}
                  buffer_load_dwordx2 {vr(UF+4*js+2*b,2)}, v22, s[{SWS}:{SWS+3}], s4 offen {LD}""")
    MF, A2 = 96, 128
    a(f"""v_lshrrev_b32 v3, 5, v0
          v_lshlrev_b32 v10, 11, v20
          v_lshl_add_u32 v10, v3, 4, v10
          s_lshl_b32 s4, s{sC0}, 1
          v_add_u32 v10, s4, v10""")
    stamp(a, 22)
    for js in range(8):
        a(f"s_waitcnt vmcnt({14-2*js})")
        a(f"{MFMA} {vr(A2,16)}, {vr(UF+4*js,4)}, {vr(MF+4*js,4)}, {'0' if js == 0 else vr(A2,16)}")
    a("s_nop 11")
    for mm in range(2):
        for t in range(4):
            a(f"v_cvt_pk_bf16_f32 v{UF+4*mm+t}, v{A2+8*mm+2*t}, v{A2+8*mm+2*t+1}")
        a(f"buffer_store_dwordx4 {vr(UF+4*mm,4)}, v10, s[{SOUT}:{SOUT+3}], 0 offen offset:{32*mm}")
    stamp(a, 13)
    a("s_barrier")
    stamp(a, 14)
    if PIPE: poll_pipe(a, 25, 40, 255, 1)
    else: poll(a, 25, 5, 255)
    stamp(a, 15)
    for j in range(8):
        a(f"""s_add_u32 m0, s30, {KV_BASE + j*1024}
              s_add_u32 s7, s13, {j*65536}
              buffer_load_dwordx4 v1, s[{SWS}:{SWS+3}], s7 offen {LD} lds""")
    a("""s_waitcnt vmcnt(0)
         s_barrier""")
    stamp_flush(a, 18)
    a("s_endpgm")

    a.label("L_consumer")
    sWM, sWN, sIT, sDEL = 23, 24, 25, 26
    sMASK = 28
    XA, WA, CPM = 8, 12, 13
    FR, ACC = 32, 64
    CR, CI, NCI = 128, 136, 144
    def X(b, i): return FR + 16*b + 4*i
    def W(b, j): return FR + 16*b + 8 + 4*j
    def AC(i, j): return ACC + 16*(2*i + j)
    a(f"""s_and_b32 s{sWM}, s{sW}, 1
          s_lshr_b32 s{sWN}, s{sW}, 1
          v_and_b32 v1, 31, v0
          v_lshrrev_b32 v2, 5, v0
          v_bfe_u32 v3, v0, 1, 3
          v_xor_b32 v3, v3, v2
          s_lshl_b32 s3, s{sWM}, 13
          s_add_u32 s3, s3, {RING}
          v_lshl_add_u32 v4, v1, 7, s3
          s_or_b32 s3, s2, s{sW}
          s_cmp_lg_u32 s3, 0
          s_waitcnt lgkmcnt(0)""")
    srd(a, 56, kDBG, 256)
    a(f"""s_cbranch_scc1 L_nonpub
          s_memrealtime s[4:5]
          s_waitcnt lgkmcnt(0)
          s_or_b32 s4, s4, 1
          v_mov_b32 v5, s4
          s_mov_b64 exec, 1
          buffer_store_dword v5, off, s[56:59], 0 sc0 sc1
          s_mov_b64 exec, -1""")
    a.label("L_nonpub")
    srd(a, SWS, kWS, 0x1000000)
    a(f"""s_getreg_b32 s{sPTV}, hwreg(HW_REG_XCC_ID, 0, 16)
          s_lshl_b32 s{sPTV}, s{sPTV}, 8
          s_cmp_lt_u32 s{sW}, 4
          s_cbranch_scc1 L_cons2""")
    if "--notlb" not in sys.argv:
        srd(a, 40, kOUT, 0x400000)
        srd(a, 44, kWO, 0x80000)
        a(f"""v_lshlrev_b32 v5, 20, v0
              v_add_u32 v5, 0xff000, v5
              s_mov_b64 exec, 0xfff
              s_cmp_lg_u32 s{sW}, 4
              s_cbranch_scc1 L_tlb1
              buffer_load_dword v6, v5, s[{SWS}:{SWS+3}], 0 offen sc1""")
        a.label("L_tlb1")
        a(f"""s_mov_b64 exec, 15
              s_cmp_lg_u32 s{sW}, 5
              s_cbranch_scc1 L_tlb2
              buffer_load_dword v6, v5, s[40:43], 0 offen
              buffer_load_dword v7, off, s[44:47], 0""")
        a.label("L_tlb2")
        a("s_mov_b64 exec, -1")
    for i in range(9):
        a("s_barrier")
        if i == 5: a("buffer_load_dword v15, off, s[56:59], 0 sc1")
    a("s_waitcnt vmcnt(0)")
    nonce_wait(a, 15, True)
    a(f"s_xor_b32 s{sPTV}, s{sPTV}, s{sNON}")
    a("s_branch L_att")
    a.label("L_cons2")
    for kk in range(4):
        a(f"""v_xor_b32 v5, {2*kk}, v3
              v_lshl_add_u32 v{XA+kk}, v5, 4, v4""")
    a(f"""v_bfe_u32 v3, v0, 2, 2
          v_lshl_add_u32 v4, v2, 3, v3
          v_lshlrev_b32 v4, 7, v4
          v_bfe_u32 v5, v0, 4, 1
          v_lshlrev_b32 v5, 1, v5
          v_bfe_u32 v6, v0, 1, 1
          v_add_u32 v5, v5, v6
          s_lshl_b32 s3, s{sWN}, 2
          v_add_u32 v5, s3, v5
          v_bfe_u32 v6, v0, 3, 1
          v_lshlrev_b32 v6, 2, v6
          v_xor_b32 v5, v5, v6
          v_lshl_add_u32 v4, v5, 4, v4
          v_and_b32 v6, 1, v0
          v_lshl_add_u32 v4, v6, 3, v4
          v_add_u32 v{WA}, {RING+16384}, v4
          v_mov_b32 v{CPM}, 0xbf803f80""")
    for r in range(64): a(f"v_mov_b32 v{ACC+r}, 0")
    a(f"""s_lshl_b32 s3, s2, 2
          s_add_u32 s3, s3, s{sW}
          s_lshl_b32 s3, s3, 7
          s_add_u32 s31, s3, {WS_F1}
          s_lshl_b32 s3, s{sCQ}, 2
          s_add_u32 s3, s3, s{sWN}
          s_lshl_b32 s3, s3, 2
          s_add_u32 s3, s3, s{sTYPE}
          s_cmp_eq_u32 s3, 3
          s_cselect_b32 s{sMASK}, 1, 0
          s_mov_b32 s{sMASK+1}, s{sMASK}
          s_cmp_eq_u32 s{sTYPE}, 3
          s_cbranch_scc1 L_cA
          s_lshl_b32 s3, s{sCQ}, 3
          s_lshl_b32 s4, s{sWN}, 1
          s_add_u32 s3, s3, s4
          s_lshl_b32 s3, s3, 16
          s_lshl_b32 s4, s{sRB}, 2
          s_lshl_b32 s5, s{sWM}, 1
          s_add_u32 s4, s4, s5
          s_lshl_b32 s4, s4, 10
          s_add_u32 s3, s3, s4
          s_lshl_b32 s4, s{sTYPE}, 21
          s_add_u32 s3, s3, s4
          v_lshl_add_u32 v14, v0, 4, s3
          s_cmp_lg_u32 s{sTYPE}, 2
          s_cbranch_scc1 L_noconst
          v_bfe_u32 v5, v0, 4, 1
          v_lshlrev_b32 v5, 16, v5
          v_lshl_add_u32 v5, v2, 8, v5
          v_and_b32 v6, 15, v0
          v_lshl_add_u32 v5, v6, 4, v5
          v_add_u32 v14, s3, v5
          s_branch L_noconst""")
    a.label("L_cA")
    a(f"""s_lshl_b32 s3, s{sRB}, 1
          s_add_u32 s3, s3, s{sWM}
          s_mul_i32 s3, s3, {U_GP}
          s_lshl_b32 s4, s{sCQ}, 10
          s_add_u32 s3, s3, s4
          s_lshl_b32 s4, s{sWN}, 9
          s_add_u32 s3, s3, s4
          s_add_u32 s3, s3, {WS_U}
          v_lshl_add_u32 v14, v1, 4, s3
          s_mov_b32 s4, {8*U_ROW}
          v_mad_u32_u24 v14, v2, s4, v14
          v_lshlrev_b32 v3, 2, v2
          v_mul_u32_u24 v3, v3, v1""")
    for m in range(2):
        for j in range(8):
            cj = 16*m + (j % 4) + 8*(j // 4)
            a(f"""v_mad_u32_u24 v{16+j}, v1, {cj}, v3
                  v_and_b32 v{16+j}, 31, v{16+j}
                  v_cvt_f32_u32 v{16+j}, v{16+j}
                  v_mul_f32 v{16+j}, 0x3d000000, v{16+j}""")
        for j in range(8): a(f"v_cos_f32 v{24+j}, v{16+j}")
        for j in range(8): a(f"v_sin_f32 v{16+j}, v{16+j}")
        a("s_nop 0")
        for j in range(4):
            a(f"""v_cvt_pk_bf16_f32 v{CR+4*m+j}, v{24+2*j}, v{25+2*j}
                  v_cvt_pk_bf16_f32 v{CI+4*m+j}, -v{16+2*j}, -v{17+2*j}
                  v_cvt_pk_bf16_f32 v{NCI+4*m+j}, v{16+2*j}, v{17+2*j}""")
    a.label("L_noconst")
    def rd(kk, b):
        o = [f"ds_read_b128 {vr(X(b,i),4)}, v{XA+kk} offset:{i*4096}" for i in range(2)]
        o += [f"ds_read_b64_tr_b16 {vr(W(b,j)+2*q,2)}, v{WA} offset:{j*8192 + kk*2048 + q*512}" for j in range(2) for q in range(2)]
        return o
    def step(b, variant, r):
        m = []
        for j in range(2):
            for i in range(2):
                A_, B_ = (W(b,j), X(b,i)) if variant == "QK" else (X(b,i), W(b,j))
                m.append(f"{MFMA} {vr(AC(i,j),16)}, {vr(A_,4)}, {vr(B_,4)}, {vr(AC(i,j),16)}")
        c = [f"v_cndmask_b32 v{W(b,1)+t}, v{W(b,1)+t}, v{CPM}, s[{sMASK}:{sMASK+1}]" for t in range(4)] if variant == "A" else []
        for x in [m[0]] + r[:2] + c + [m[1]] + r[2:4] + (["s_nop 0"] if c and not r else []) + [m[2]] + r[4:] + [m[3]]: a(x)
    a(f"""s_mov_b32 s{sIT}, 0
          s_mov_b32 s30, 0
          s_mov_b32 s27, {SLOT}""")
    stamp(a, 1)
    a("s_barrier")
    stamp(a, 2)
    for x in rd(0, 0): a(x)
    a(f"""s_cmp_eq_u32 s{sTYPE}, 2
          s_cbranch_scc1 L_loopV
          s_cmp_eq_u32 s{sTYPE}, 3
          s_cbranch_scc1 L_loopA""")
    PK, SV, D = FR, 16, FR
    for variant in ("QK", "V", "A"):
        a.label(f"L_loop{variant}")
        for kk in range(3):
            a("s_waitcnt lgkmcnt(0)")
            step(kk % 2, variant, rd(kk+1, (kk+1) % 2))
        a(f"""s_add_u32 s30, s30, 1
              s_cmp_eq_u32 s30, {NS}
              s_cselect_b32 s{sDEL}, {-(NS-1)*SLOT}, s27
              s_cselect_b32 s30, 0, s30""")
        for r in (XA, XA+1, XA+2, XA+3, WA): a(f"v_add_u32 v{r}, s{sDEL}, v{r}")
        a(f"""s_add_u32 s{sIT}, s{sIT}, 1
              s_bitcmp1_b32 0x124, s{sIT}
              s_waitcnt lgkmcnt(0)
              s_cbranch_scc1 L_hook{variant}""")
        a.label(f"L_ret{variant}")
        a("s_barrier")
        step(1, variant, rd(0, 0))
        a(f"s_branch L_loop{variant}")
        a.label(f"L_hook{variant}")
        a(f"""s_cmp_eq_u32 s{sIT}, 8
              s_cbranch_scc1 L_last{variant}
              s_cmp_eq_u32 s{sIT}, 5
              s_cbranch_scc1 L_h5{variant}
              buffer_load_dword v15, off, s[56:59], 0 sc1
              s_branch L_ret{variant}""")
        a.label(f"L_h5{variant}")
        a("s_waitcnt vmcnt(0)")
        nonce_wait(a, 15, True)
        a(f"s_xor_b32 s{sPTV}, s{sPTV}, s{sNON}")
        if MODE == "auto":
            a(f"""s_cmp_lg_u32 s{sW}, 0
                  s_cbranch_scc1 L_ret{variant}
                  s_lshl_b32 s3, s2, 7
                  s_add_u32 s3, s3, {WS_PT}
                  v_mov_b32 v15, s{sPTV}
                  s_mov_b64 exec, 1
                  buffer_store_dword v15, off, s[{SWS}:{SWS+3}], s3 sc1
                  s_mov_b64 exec, -1""")
        a(f"s_branch L_ret{variant}")
        a.label(f"L_last{variant}")
        step(1, variant, [])
        stamp(a, 3)
        if variant == "QK":
            a(f"""s_mov_b32 s4, {1*65536}
                  s_mov_b32 s5, {4*65536}
                  s_mov_b32 s6, {5*65536}
                  s_cmp_eq_u32 s{sTYPE}, 0
                  s_mov_b32 s3, {f2u(QSCALE):#x}
                  s_cselect_b32 s8, s3, 1.0
                  s_mov_b32 s9, s8
                  s_nop 1""")
            for j in range(2):
                for i in range(2):
                    for mm in range(2):
                        for t in range(4): a(f"v_pk_mul_f32 {vr(AC(i,j)+8*mm+2*t,2)}, {vr(AC(i,j)+8*mm+2*t,2)}, s[8:9]")
                        d = FR + 8*(2*i+j) + 4*mm
                        for t in range(4): a(f"v_cvt_pk_bf16_f32 v{d+t}, v{AC(i,j)+8*mm+2*t}, v{AC(i,j)+8*mm+2*t+1}")
                        so = ["0", "s4", "s5", "s6"][2*j+mm]
                        a(f"buffer_store_dwordx4 {vr(d,4)}, v14, s[{SWS}:{SWS+3}], {so} offen offset:{i*1024} {ST}")
            a("s_branch L_pub1")
        elif variant == "V":
            a(f"""s_mov_b32 s4, {4*65536}
                  s_nop 7""")
            for j in range(2):
                for i in range(2):
                    for mm in range(2):
                        d = FR + 8*(2*i+j) + 4*mm
                        for t in range(4): a(f"v_cvt_pk_bf16_f32 v{d+t}, v{AC(i,j)+8*mm+2*t}, v{AC(i,j)+8*mm+2*t+1}")
                        so = "0" if j == 0 else "s4"
                        a(f"buffer_store_dwordx4 {vr(d,4)}, v14, s[{SWS}:{SWS+3}], {so} offen offset:{i*1024+mm*512} {ST}")
            a("s_branch L_pub1")
    a("s_barrier\ns_nop 7")
    for j in range(2):
        for p in range(2):
            for t in range(8): a(f"v_cvt_pk_bf16_f32 v{PK+16*p+8*j+t}, v{AC(p,j)+2*t}, v{AC(p,j)+2*t+1}")
    a(f"""s_cmp_eq_u32 s{sMASK}, 0
          s_cbranch_scc1 L_nosp1""")
    for p in range(2):
        for t in range(8):
            a(f"v_mov_b32 v{SV+8*p+t}, v{PK+16*p+8+t}")
            a(f"v_cndmask_b32 v{PK+16*p+8+t}, v{PK+16*p+8+t}, 0, s[{sMASK}:{sMASK+1}]")
    a.label("L_nosp1")
    a("s_nop 1")
    def step1(p, aa, bb):
        a(f"{MFMA} {vr(AC(p,0),16)}, {vr(CR,4)}, {vr(aa,4)}, 0")
        a(f"{MFMA} {vr(AC(p,1),16)}, {vr(CI,4)}, {vr(aa,4)}, 0")
        a(f"{MFMA} {vr(AC(p,0),16)}, {vr(CR+4,4)}, {vr(aa+4,4)}, {vr(AC(p,0),16)}")
        a(f"{MFMA} {vr(AC(p,1),16)}, {vr(CI+4,4)}, {vr(aa+4,4)}, {vr(AC(p,1),16)}")
        if bb is not None:
            for m in range(2):
                a(f"{MFMA} {vr(AC(p,0),16)}, {vr(NCI+4*m,4)}, {vr(bb+4*m,4)}, {vr(AC(p,0),16)}")
                a(f"{MFMA} {vr(AC(p,1),16)}, {vr(CR+4*m,4)}, {vr(bb+4*m,4)}, {vr(AC(p,1),16)}")
    def st(r, special):
        d = FR + 4*r if special else D - 32 + 32 + 4*r - 0
        a(f"""v_permlane32_swap_b32 v{d}, v{d+2}
              v_permlane32_swap_b32 v{d+1}, v{d+3}
              s_mov_b32 s4, {r*U_ROW}""")
        if special: a(f"s_mov_b64 exec, s[{sMASK}:{sMASK+1}]")
        a(f"buffer_store_dwordx4 {vr(d,4)}, v14, s[{SWS}:{SWS+3}], s4 offen {ST}")
        if special: a("s_mov_b64 exec, -1")
    def ustore(special):
        a("s_nop 11")
        for r in range(8):
            d = FR + 4*r if special else D + 4*r
            a(f"""v_cvt_pk_bf16_f32 v{d}, v{AC(0,0)+r}, v{AC(1,0)+r}
                  v_cvt_pk_bf16_f32 v{d+1}, v{AC(0,1)+r}, v{AC(1,1)+r}
                  v_cvt_pk_bf16_f32 v{d+2}, v{AC(0,0)+r+8}, v{AC(1,0)+r+8}
                  v_cvt_pk_bf16_f32 v{d+3}, v{AC(0,1)+r+8}, v{AC(1,1)+r+8}""")
            if r > 0: st(r-1, special)
        a("s_nop 1")
        st(7, special)
    for p in range(2): step1(p, PK+16*p, PK+16*p+8)
    ustore(False)
    a(f"""s_cmp_eq_u32 s{sMASK}, 0
          s_cbranch_scc1 L_pub1b""")
    for p in range(2): step1(p, SV+8*p, None)
    a(f"v_add_u32 v14, {256*16}, v14")
    ustore(True)
    a("s_branch L_pub1b")
    a.label("L_pub1")
    a("s_barrier")
    a.label("L_pub1b")
    stamp(a, 4)

    a.label("L_att")
    QF = 4
    KA, VA_, NINF, MX = 2, 3, 8, 9
    KF, VF, PP, S, O, CN, CD, CF = 12, 24, 40, 48, 80, 96, 112, 128
    S3, P2, MK = 112, 128, 136
    sVM, sNF, sI, sUOK = 8, 10, 11, 15
    srd(a, SOUT, kOUT, 0x400000)
    a(f"""s_lshl_b32 s4, s{sR}, 3
          s_add_u32 s4, s4, s{sW}
          s_lshl_b32 s{sQO}, s4, 10
          s_lshl_b32 s5, s{sHD}, 16
          s_add_u32 s{sQO}, s{sQO}, s5
          s_lshl_b32 s4, s4, 5
          s_add_u32 s4, s4, s{sHD}
          s_lshl_b32 s4, s4, 7
          s_add_u32 s{sF2}, s4, {WS_F2}
          v_lshlrev_b32 v1, 4, v0
          s_lshl_b32 s4, s{sW}, 10
          v_add_u32 v{KA}, s4, v1
          v_add_u32 v4, {Q_BASE}, v{KA}
          v_lshrrev_b32 v10, 5, v0
          v_and_b32 v11, 15, v0
          v_lshlrev_b32 v11, 4, v11
          v_lshl_add_u32 v11, v10, 8, v11
          s_add_u32 s4, s4, 16384
          v_add_u32 v{VA_}, s4, v11
          v_mov_b32 v{NINF}, 0xff800000
          s_mov_b32 s{sVM}, 0x0000ffff
          s_mov_b32 s{sVM+1}, 0x0000ffff
          s_mov_b32 s6, 0x00110000
          s_mov_b32 s7, 0x00110000
          v_mov_b32 v10, 0x3f803f80
""")
    for t in range(16): a(f"v_cndmask_b32 v{VF+t}, 0, v10, s[6:7]")
    for r in range(16):
        lo, hi = diag_mask(r)
        a(f"s_mov_b32 s{64+2*r}, {lo:#x}\ns_mov_b32 s{65+2*r}, {hi:#x}")
    a("v_mov_b32 v10, 0xffff\nv_mov_b32 v11, 0xffff0000")
    for t in range(8):
        a(f"""v_cndmask_b32 v{MK+t}, 0, v10, s[{64+4*t}:{65+4*t}]
              v_cndmask_b32 v5, 0, v11, s[{66+4*t}:{67+4*t}]
              v_or_b32 v{MK+t}, v{MK+t}, v5""")
    a(f"""s_cmp_gt_u32 s{sR}, 0
          s_cselect_b32 s{sNF}, 7, s{sW}
          s_cmp_ge_u32 s{sW}, 4
          s_cbranch_scc1 L_attbar""")
    publish(a, 31, 6)
    stamp(a, 5)
    a.label("L_attbar")
    stamp(a, 11)
    a("s_barrier")
    stamp(a, 12)
    a(f"ds_read_b128 {vr(QF,4)}, v4")
    def masks(val):
        return [f"""v_cndmask_b32 v{CD+r}, v{NINF}, {val}, s[{64+2*r}:{65+2*r}]
                  v_cndmask_b32 v{CF+r}, {val}, v{NINF}, s[{64+2*r}:{65+2*r}]""" for r in range(16)]
    def maxblk(S_, first):
        if first: a(f"v_max_f32 v{MX}, v{S_}, v{S_+1}")
        for t in range(2 if first else 0, 16, 2):
            a(f"v_max3_f32 v{MX}, v{S_+t}, v{S_+t+1}, v{MX}")
    def xhalf_max():
        a(f"""v_mov_b32 v10, v{MX}
              s_nop 1
              v_permlane32_swap_b32 v10, v{MX}
              s_nop 1
              v_max_f32 v{MX}, v{MX}, v10""")
    order = [7, 6, 5, 4, 3, 2, 1, 8, 0]
    def rdK(n): return f"ds_read_b128 {vr(KF+4*(n%3),4)}, v{KA} offset:{order[n]*1024}"
    def rdV(n):
        b = VF + 8*(n % 2)
        return f"""s_mov_b64 exec, s[{sVM}:{sVM+1}]
              ds_read_b128 {vr(b,4)}, v{VA_} offset:{order[n]*1024}
              ds_read_b128 {vr(b+4,4)}, v{VA_} offset:{order[n]*1024+512}
              s_mov_b64 exec, -1"""
    def mS(k, Dd): return f"{MFMA} {vr(Dd,16)}, {vr(KF+4*(k%3),4)}, {vr(QF,4)}, {vr(CN,16)}"
    a(rdK(0)); a(rdK(1)); a(rdV(0))
    a(f"""s_setprio 3
          s_waitcnt lgkmcnt(3)
          {MFMA} {vr(S+16,16)}, {vr(KF,4)}, {vr(QF,4)}, 0
          s_barrier""")
    pt_load()
    if FORCE_SLOW: a("s_branch L_slow")
    a(f"""s_cmp_eq_u32 s{sR}, 0
          s_cbranch_scc1 L_slow
          s_nop {3 if MODE == 'auto' else 8}
          v_max3_f32 v{MX}, v{S+16}, v{S+17}, v{S+18}
          v_max3_f32 v10, v{S+19}, v{S+20}, v{S+21}
          v_max3_f32 v11, v{S+22}, v{S+23}, v{S+24}
          v_max3_f32 v{MX}, v{S+25}, v{S+26}, v{MX}
          v_max3_f32 v10, v{S+27}, v{S+28}, v10
          v_max3_f32 v11, v{S+29}, v{S+30}, v11
          v_max3_f32 v{MX}, v{S+31}, v{MX}, v10
          v_max_f32 v{MX}, v{MX}, v11""")
    xhalf_max()
    a(f"v_sub_f32 v{CN}, 0xc2400000, v{MX}")
    for r in range(1, 16): a(f"v_mov_b32 v{CN+r}, v{CN}")
    a("s_nop 1")
    a(mS(0, S))
    prev = None
    for n in range(8):
        Sn = S + 16*(n % 2); Vn = VF + 8*(n % 2)
        P_ = PP if n % 2 == 0 else P2
        ex = lambda r: a(f"v_exp_f32 v{Sn+r}, v{Sn+r}")
        cv = lambda t: a(f"v_cvt_pk_bf16_f32 v{P_+t}, v{Sn+2*t}, v{Sn+2*t+1}")
        if n in (3, 5, 7): a(f"s_setprio {({3:2,5:1,7:0})[n]}")
        if n == 0:
            a("s_waitcnt lgkmcnt(2)"); a(mS(1, S+16)); a(rdK(2)); a(rdV(1)); a("s_nop 4")
        if n == 7:
            a(prev); a("s_nop 3")
            for r in range(16): a(f"v_cndmask_b32 v{Sn+r}, v{S3+r}, v{Sn+r}, s[{64+2*r}:{65+2*r}]")
        for r in range(4): ex(r)
        if 0 < n < 7: a(prev)
        if n == 7: a(rdV(8))
        for r in range(4, 8): ex(r)
        if 0 < n < 7:
            a("s_waitcnt lgkmcnt(2)"); a(mS(n+1, S + 16*((n+1) % 2)))
            a(rdK(n+2)); a(rdV(n+1))
        for t in range(4): cv(t)
        for r in range(8, 12): ex(r)
        if n < 7:
            a("s_waitcnt lgkmcnt(3)")
            a(f"{MFMA} {vr(O,16)}, {vr(Vn,4)}, {vr(P_,4)}, {'0' if n == 0 else vr(O,16)}")
        else:
            for t in range(4): a(f"v_and_b32 v{PP+t}, v{MK+t}, v{P_+t}\nv_xor_b32 v{P_+t}, v{PP+t}, v{P_+t}")
            a("s_waitcnt lgkmcnt(2)")
            a(f"{MFMA} {vr(O,16)}, {vr(Vn,4)}, {vr(PP,4)}, {vr(O,16)}")
        ex(12); ex(13)
        if n == 6: a("s_waitcnt lgkmcnt(2)"); a(mS(8, S3))
        if n == 7: a("s_waitcnt lgkmcnt(0)"); a(f"{MFMA} {vr(O,16)}, {vr(VF,4)}, {vr(P2,4)}, {vr(O,16)}")
        ex(14); ex(15)
        for t in range(4, 8): cv(t)
        prev = f"{MFMA} {vr(O,16)}, {vr(Vn+4,4)}, {vr(P_+4,4)}, {vr(O,16)}"
    for t in range(4, 8): a(f"v_and_b32 v{PP+t}, v{MK+t}, v{P2+t}\nv_xor_b32 v{P2+t}, v{PP+t}, v{P2+t}")
    a(f"""s_nop 0
          {MFMA} {vr(O,16)}, {vr(VF+12,4)}, {vr(PP+4,4)}, {vr(O,16)}
          {MFMA} {vr(O,16)}, {vr(VF+4,4)}, {vr(P2+4,4)}, {vr(O,16)}
          s_waitcnt vmcnt(0)
          v_cmp_ne_u32 s[6:7], s{sPTV}, v148
          v_mov_b32 v14, 0x7f800000
          s_nop 8
          v_add_f32 v10, |v{O}|, |v{O+1}|
          v_add_f32 v11, |v{O+2}|, |v{O+3}|
          v_add_f32 v12, |v{O+4}|, |v{O+5}|
          v_add_f32 v13, |v{O+6}|, |v{O+7}|
          v_add_f32 v10, v10, v11
          v_add_f32 v12, v12, v13
          v_mul_f32 v11, 0x5f800000, v{O+8}
          v_add_f32 v10, v10, v12
          v_add_f32 v11, v10, v11
          v_rcp_f32 v10, v{O+8}
          v_cmp_lt_f32 vcc, v11, v14
          s_cmp_eq_u64 vcc, -1
          s_cbranch_scc1 L_norm""")
    a.label("L_slow")
    a(f"""s_setprio 0
          s_sub_u32 s3, 8, s{sNF}
          s_lshl_b32 s3, s3, 10
          s_waitcnt lgkmcnt(0)""")
    for x in masks("0"): a(x)
    a(f"""ds_read_b128 {vr(KF,4)}, v{KA} offset:{8*1024}
          s_waitcnt lgkmcnt(0)
          {MFMA} {vr(S,16)}, {vr(KF,4)}, {vr(QF,4)}, {vr(CD,16)}
          s_nop 11""")
    maxblk(S, True)
    a(f"""s_cmp_eq_u32 s{sR}, 0
          s_cbranch_scc1 L_s1nofar
          ds_read_b128 {vr(KF,4)}, v{KA}
          s_waitcnt lgkmcnt(0)
          {MFMA} {vr(S,16)}, {vr(KF,4)}, {vr(QF,4)}, {vr(CF,16)}
          s_nop 11""")
    maxblk(S, False)
    a.label("L_s1nofar")
    a(f"""s_mov_b32 s{sI}, s{sNF}
          v_add_u32 v10, s3, v{KA}
          s_cmp_eq_u32 s{sI}, 0
          s_cbranch_scc1 L_s1done""")
    a.label("L_s1loop")
    a(f"""ds_read_b128 {vr(KF,4)}, v10
          v_add_u32 v10, 1024, v10
          s_waitcnt lgkmcnt(0)
          {MFMA} {vr(S,16)}, {vr(KF,4)}, {vr(QF,4)}, 0
          s_nop 11""")
    maxblk(S, False)
    a(f"""s_sub_u32 s{sI}, s{sI}, 1
          s_cmp_lg_u32 s{sI}, 0
          s_cbranch_scc1 L_s1loop""")
    a.label("L_s1done")
    xhalf_max()
    a(f"v_sub_f32 v{MX}, 0, v{MX}")
    for x in masks(f"v{MX}"): a(x)
    for r in range(16): a(f"v_mov_b32 v{CN+r}, v{MX}")
    def pvblk(kaddr, vaddr, off, C, first):
        a(f"""ds_read_b128 {vr(KF,4)}, v{kaddr} offset:{off}
              s_mov_b64 exec, s[{sVM}:{sVM+1}]
              ds_read_b128 {vr(VF,4)}, v{vaddr} offset:{off}
              ds_read_b128 {vr(VF+4,4)}, v{vaddr} offset:{off+512}
              s_mov_b64 exec, -1
              s_waitcnt lgkmcnt(0)
              {MFMA} {vr(S,16)}, {vr(KF,4)}, {vr(QF,4)}, {vr(C,16)}
              s_nop 11""")
        for r in range(16): a(f"v_exp_f32 v{S+r}, v{S+r}")
        for t in range(8): a(f"v_cvt_pk_bf16_f32 v{PP+t}, v{S+2*t}, v{S+2*t+1}")
        a("s_nop 1")
        a(f"{MFMA} {vr(O,16)}, {vr(VF,4)}, {vr(PP,4)}, {'0' if first else vr(O,16)}")
        a(f"{MFMA} {vr(O,16)}, {vr(VF+4,4)}, {vr(PP+4,4)}, {vr(O,16)}")
    pvblk(KA, VA_, 8*1024, CD, True)
    a(f"""s_cmp_eq_u32 s{sR}, 0
          s_cbranch_scc1 L_s2nofar""")
    pvblk(KA, VA_, 0, CF, False)
    a.label("L_s2nofar")
    a(f"""s_mov_b32 s{sI}, s{sNF}
          v_add_u32 v10, s3, v{KA}
          v_add_u32 v11, s3, v{VA_}
          s_cmp_eq_u32 s{sI}, 0
          s_cbranch_scc1 L_s2done""")
    a.label("L_s2loop")
    pvblk(10, 11, 0, CN, False)
    a(f"""v_add_u32 v10, 1024, v10
          v_add_u32 v11, 1024, v11
          s_sub_u32 s{sI}, s{sI}, 1
          s_cmp_lg_u32 s{sI}, 0
          s_cbranch_scc1 L_s2loop""")
    a.label("L_s2done")
    a(f"""s_waitcnt vmcnt(0)
          v_cmp_ne_u32 s[6:7], s{sPTV}, v148
          s_nop 12
          v_rcp_f32 v10, v{O+8}
          s_nop 0""")
    a.label("L_norm")
    for t in range(8): a(f"v_mul_f32 v{O+t}, v10, v{O+t}")
    for t in range(4): a(f"v_cvt_pk_bf16_f32 v{PP+t}, v{O+2*t}, v{O+2*t+1}")
    a(f"s_add_u32 s4, s{sQO}, {WS_O}")
    if MODE == "auto":
        a(f"""s_cmp_eq_u64 s[6:7], 0
              s_cbranch_scc0 L_ox
              buffer_store_dwordx4 {vr(PP,4)}, v1, s[{SWS}:{SWS+3}], s4 offen""")
        stamp(a, 13)
        publish(a, sF2, 10, flav="")
        a("s_branch L_od")
        a.label("L_ox")
    a(f"buffer_store_dwordx4 {vr(PP,4)}, v1, s[{SWS}:{SWS+3}], s4 offen {ST}")
    stamp(a, 13 if MODE != "auto" else 19)
    publish(a, sF2, 10)
    a.label("L_od")
    stamp(a, 14)
    a(f"""s_barrier
          s_cmp_ge_u32 s{sW}, 4
          s_cbranch_scc1 L_fin""")
    OA, WA2, ACC2, FR2 = 8, 9, 16, 32
    a(f"""s_lshl_b32 s4, s{sR}, 3
          s_and_b32 s5, s{sHD}, 7
          s_add_u32 s4, s4, s5                    ; qb'
          v_lshrrev_b32 v2, 5, v0
          v_bfe_u32 v3, v0, 2, 2
          v_lshl_add_u32 v6, v2, 2, v3
          v_lshlrev_b32 v6, 8, v6
          v_bfe_u32 v5, v0, 4, 1
          v_lshlrev_b32 v5, 1, v5
          v_and_b32 v7, 1, v0
          v_add_u32 v5, v5, v7
          v_xor_b32 v3, s{sW}, v3
          v_lshl_add_u32 v5, v3, 2, v5
          v_lshl_add_u32 v6, v5, 4, v6
          v_bfe_u32 v7, v0, 1, 1
          v_lshl_add_u32 v6, v7, 3, v6""")
    for qd in range(4): a(f"v_add_u32 v{WA2+qd}, {WOQ(qd)}, v6")
    a(f"""v_and_b32 v14, 31, v0
          s_lshl_b32 s7, s4, 5
          v_add_u32 v14, s7, v14
          v_lshlrev_b32 v14, 11, v14
          v_lshl_add_u32 v14, v2, 4, v14
          s_lshl_b32 s7, s{sCQ}, 8
          s_lshl_b32 s8, s{sW}, 6
          s_add_u32 s7, s7, s8
          s_add_u32 s7, s7, 1024
          v_add_u32 v14, s7, v14""")
    def wrd(qd, k, f):
        return [f"ds_read_b64_tr_b16 {vr(f+4+2*q,2)}, v{WA2+qd} offset:{k*4096 + q*2048}" for q in range(2)]
    for k in range(8):
        for x in wrd(0, k, FR2+8*k): a(x)
    a("s_barrier")
    stamp(a, 16)
    for k in range(8): a(f"ds_read_b128 {vr(FR2+8*k,4)}, v1 offset:{KV_BASE + k*1024}")
    for qd in range(4):
        for k in range(8):
            f = FR2 + 64*(qd % 2) + 8*k
            fn = FR2 + 64*((qd+1) % 2) + 8*k
            if qd == 0: a(f"s_waitcnt lgkmcnt({min(15, 7-k + 3*k)})")
            else: a(f"s_waitcnt lgkmcnt({min(15, 3*(7-k) + (3*k if qd < 3 else 0))})")
            c = "0" if (qd == 0 and k == 0) else vr(ACC2,16)
            a(f"{MFMA} {vr(ACC2,16)}, {vr(f+4,4)}, {vr(f,4)}, {c}")
            if qd < 3:
                a(f"ds_read_b128 {vr(fn,4)}, v1 offset:{KV_BASE + (8*(qd+1)+k)*1024}")
                for x in wrd(qd+1, k, fn): a(x)
    a("s_nop 15")
    for mm in range(2):
        for t in range(4):
            a(f"v_cvt_pk_bf16_f32 v{FR2+4*mm+t}, v{ACC2+8*mm+2*t}, v{ACC2+8*mm+2*t+1}")
        a(f"buffer_store_dwordx4 {vr(FR2+4*mm,4)}, v14, s[{SOUT}:{SOUT+3}], 0 offen offset:{32*mm}")
    stamp(a, 17)
    stamp_flush(a, 18)
    a("s_endpgm")
    a.label("L_fin")
    stamp_flush(a, 18)
    a.label("L_end")
    a("s_endpgm")
    return a

def main():
    a = gen()
    hdr = f"""; {NAME} : one fused kernel (generated by my gen6.py)
; @launch grid=(256,1,1) block=(768,1,1) lds=163840
.amdgcn_target "amdgcn-amd-amdhsa--gfx950"
.text
"""
    kd = f""".section .rodata,"a"
.p2align 6
.amdhsa_kernel {KN}
  .amdhsa_next_free_vgpr 168
  .amdhsa_next_free_sgpr 102
  .amdhsa_accum_offset 168
  .amdhsa_group_segment_fixed_size 0
  .amdhsa_kernarg_size 88
  .amdhsa_user_sgpr_count 2
  .amdhsa_user_sgpr_kernarg_segment_ptr 1
  .amdhsa_system_sgpr_workgroup_id_x 1
.end_amdhsa_kernel
"""
    path = sys.argv[1] if len(sys.argv) > 1 and sys.argv[1].endswith(".s") else f"cdna_kernels/{NAME}.s"
    open(path, "w").write(hdr + a.text() + kd)
main()
```

```python
import sys, struct, math

NAME = "concat_heads__spectral_fnet__sliding_block__prompt"
KN = NAME + "_kernel"
WS_Q, WS_K, WS_V, WS_O, WS_U = 0, 2 << 20, 4 << 20, 6 << 20, 8 << 20
WS_F1, WS_F2, WS_PT = (11 << 20), (11 << 20) + 0x20000, (11 << 20) + 0x60000
U_ROW = 4224
U_GP = 16 * U_ROW
U_SIZE = 32 * U_GP
QSCALE = 0.25 * math.log2(math.e)
uid = [0]
STAMP = "--stamp" in sys.argv
FORCE_SLOW = "--slow" in sys.argv
SKIP = set(int(x) for x in sys.argv[sys.argv.index("--skip")+1].split(",")) if "--skip" in sys.argv else set()
ST = sys.argv[sys.argv.index("--st")+1].replace("+", " ") if "--st" in sys.argv else "sc1"
LD = "sc1"
SPIN_MAX = 30000
def opt(name, default):
    return type(default)(sys.argv[sys.argv.index(name)+1]) if name in sys.argv else default
PDELAY = opt("--pdelay", 0)
PIPE = "--pipe" in sys.argv
FULLF = "--fullf" in sys.argv
KVLD = sys.argv[sys.argv.index("--kvld")+1].replace("+", " ").replace("none", "") if "--kvld" in sys.argv else "sc1"
A2ST = "sc1" if "--a2sc1" in sys.argv else ""
WB = "--wb" in sys.argv

def f2u(x): return struct.unpack("<I", struct.pack("<f", x))[0]

class Asm:
    def __init__(self): self.L = []
    def __call__(self, s):
        for line in s.strip("\n").split("\n"):
            line = line.strip()
            if line: self.L.append("  " + line)
    def label(self, n): self.L.append(n + ":")
    def text(self): return "\n".join(self.L) + "\n"

def vr(b, n=1): return f"v{b}" if n == 1 else f"v[{b}:{b+n-1}]"
MFMA = "v_mfma_f32_32x32x16_bf16"

kAX, kSR, kSI, kDR, kDI, kBX, kWQ, kWO, kOUT, kDBG, kWS = 64, 66, 68, 70, 72, 74, 76, 78, 80, 82, 84
sTYPE, sRB, sCQ, sW, sNON = 16, 17, 18, 19, 20
sHD, sR = 21, 22
SWS = 32
VST = 167

def srd(a, d, k, size, off=0):
    if off:
        a(f"s_add_u32 s{d}, s{k}, {off}\ns_addc_u32 s{d+1}, s{k+1}, 0")
    else:
        a(f"s_mov_b32 s{d}, s{k}\ns_mov_b32 s{d+1}, s{k+1}")
    a(f"s_mov_b32 s{d+2}, {size}\ns_mov_b32 s{d+3}, 0x20000")

AMP = [int(x) for x in sys.argv[sys.argv.index("--amp")+1].split(",")] if "--amp" in sys.argv else None
def amp_end(a):
    if not AMP: return
    uid[0] += 1
    L = f"amp{uid[0]}"
    a(f"""s_cmp_lg_u32 s2, {AMP[3]}
          s_cbranch_scc1 {L}x
          s_cmp_lg_u32 s{sW}, {AMP[4]}
          s_cbranch_scc1 {L}x
          s_waitcnt vmcnt(0)
          s_memrealtime s[62:63]
          s_sub_u32 s100, s101, s100
          s_min_u32 s100, s100, 10000
          s_mul_i32 s100, s100, {AMP[2]}
          s_waitcnt lgkmcnt(0)
          s_add_u32 s100, s100, s62""")
    a.label(L)
    a(f"""s_memrealtime s[62:63]
          s_waitcnt lgkmcnt(0)
          s_sub_u32 s61, s62, s100
          s_cmp_lt_i32 s61, 0
          s_cbranch_scc1 {L}""")
    a.label(L + "x")
GMAX = None
def stamp(a, idx):
    if AMP and idx in AMP[:2]:
        a(f"""s_memrealtime s[62:63]
              s_waitcnt lgkmcnt(0)
              s_mov_b32 s{100 + AMP[:2].index(idx)}, s62""")
    if not STAMP: return
    if idx in SKIP: return
    a(f"""s_memrealtime s[96:97]
          s_memtime s[98:99]
          s_waitcnt lgkmcnt(0)
          v_writelane_b32 v{VST}, s96, {idx}
          v_writelane_b32 v{VST}, s98, {idx+32}""")
def stamp_flush(a, idx):
    if AMP:
        if idx in AMP[:2]: a("s_waitcnt vmcnt(0)")
        stamp(a, idx)
        amp_end(a)
    if not STAMP: return
    a("s_waitcnt vmcnt(0)")
    stamp(a, idx)
    srd(a, 88, SWS, 0x100000, 16 << 20)
    a(f"""s_mov_b64 exec, -1
          s_lshl_b32 s92, s2, 12
          s_lshl_b32 s93, s{sW}, 8
          s_add_u32 s92, s92, s93
          v_mbcnt_lo_u32_b32 v2, -1, 0
          v_mbcnt_hi_u32_b32 v2, -1, v2
          v_lshlrev_b32 v2, 2, v2
          buffer_store_dword v{VST}, v2, s[88:91], s92 offen""")

def poll(a, vaddr, vtmp, nl_mask, srdreg=SWS):
    uid[0] += 1
    L = f"poll{uid[0]}"
    a(f"""s_mov_b32 s60, 0
          s_mov_b64 exec, {nl_mask}""")
    a.label(L)
    a(f"""buffer_load_dword v{vtmp}, v{vaddr}, s[{srdreg}:{srdreg+3}], 0 offen sc1
          s_add_u32 s60, s60, 1
          s_cmp_gt_u32 s60, {SPIN_MAX}
          s_cbranch_scc1 {L}x
          s_waitcnt vmcnt(0)
          v_cmp_ne_u32 vcc, s{sNON}, v{vtmp}
          s_cbranch_vccnz {L}""")
    a.label(L + "x")
    a("s_mov_b64 exec, -1")

def poll_pipe(a, vaddr, vt, nl_mask, gap=2):
    uid[0] += 1
    L = f"pp{uid[0]}"
    ld = lambda k: f"buffer_load_dword v{vt+k}, v{vaddr}, s[{SWS}:{SWS+3}], 0 offen sc1"
    a(f"""s_mov_b32 s60, 0
          s_mov_b64 exec, {nl_mask}
          {ld(0)}
          s_sleep {gap}
          {ld(1)}""")
    a.label(L)
    for k in range(3):
        a(f"""s_sleep {gap}
              {ld((k+2)%3)}
              s_waitcnt vmcnt(2)
              v_cmp_ne_u32 vcc, s{sNON}, v{vt+k}
              s_cbranch_vccz {L}x""")
    a(f"""s_add_u32 s60, s60, 1
          s_cmp_lt_u32 s60, {SPIN_MAX}
          s_cbranch_scc1 {L}""")
    a.label(L + "x")
    a("s_mov_b64 exec, -1")

def publish(a, soff, vtmp, cnt=0, flav=None):
    if FULLF:
        a(f"""v_mov_b32 v{vtmp}, s{sNON}
              v_mov_b32 v{vtmp+1}, s{sNON}
              s_waitcnt vmcnt({cnt})
              s_mov_b64 exec, 0xffff
              buffer_store_dwordx2 v[{vtmp}:{vtmp+1}], v166, s[{SWS}:{SWS+3}], s{soff} offen {ST if flav is None else flav}
              s_mov_b64 exec, -1""")
        return
    a(f"""s_waitcnt vmcnt({cnt})
          v_mov_b32 v{vtmp}, s{sNON}
          s_mov_b64 exec, 1
          buffer_store_dword v{vtmp}, off, s[{SWS}:{SWS+3}], s{soff} {ST if flav is None else flav}
          s_mov_b64 exec, -1""")

def nonce_wait(a, vtmp, first_loaded):
    uid[0] += 1
    L = f"non{uid[0]}"
    a("s_mov_b32 s60, 0")
    if first_loaded:
        a(f"s_branch {L}c")
    a.label(L)
    a(f"""buffer_load_dword v{vtmp}, off, s[56:59], 0 sc1
          s_waitcnt vmcnt(0)""")
    a.label(L + "c")
    a(f"""v_readfirstlane_b32 s{sNON}, v{vtmp}
          s_add_u32 s60, s60, 1
          s_cmp_gt_u32 s60, {SPIN_MAX}
          s_cbranch_scc1 {L}x
          s_cmp_eq_u32 s{sNON}, 0
          s_cbranch_scc1 {L}""")
    a.label(L + "x")

def diag_mask(r):
    g, i = r // 4, r % 4
    return (0xffffffff << (8*g+i)) & 0xffffffff, (0xffffffff << (8*g+i+4)) & 0xffffffff

MODE = sys.argv[sys.argv.index("--mode")+1] if "--mode" in sys.argv else "auto"
SPF = "--nospf" not in sys.argv
SLOT = 32768
RING = 32768
KV_BASE = 0
Q_BASE = 163840 - 8192
def WOQ(q): return 32768*(q+1)
MRAW = 32
UF = 64
NS = 3
sX, sJ = 23, 31

def gen():
    a = Asm()
    a.L += [f".globl {KN}", ".p2align 8", f".type {KN},@function"]
    a.label(KN)
    a(f"""s_cmp_ge_u32 s2, 256
          s_cbranch_scc1 L_end
          s_load_dwordx16 s[64:79], s[0:1], 0
          s_load_dwordx4 s[80:83], s[0:1], 64
          s_load_dwordx2 s[84:85], s[0:1], 80
          v_lshrrev_b32 v1, 6, v0
          v_and_b32 v0, 63, v0
          s_and_b32 s{sR}, s2, 7
          v_readfirstlane_b32 s{sW}, v1
          s_lshr_b32 s{sTYPE}, s{sR}, 1
          s_and_b32 s4, s2, 1
          s_lshl_b32 s4, s4, 3
          s_bfe_u32 s{sRB}, s2, 0x30003
          s_add_u32 s{sRB}, s{sRB}, s4
          s_lshr_b32 s{sCQ}, s2, 6
          s_lshr_b32 s{sHD}, s2, 3
""")
    if FULLF: a("v_lshlrev_b32 v166, 3, v0")
    if STAMP: a(f"v_mov_b32 v{VST}, 0")
    stamp(a, 0)
    a(f"""s_cmp_lt_u32 s{sW}, 8
          s_cbranch_scc1 L_consumer""")
    sQO, sF2, sPTV = 12, 13, 14
    def pt_load():
        if MODE == "auto":
            a(f"""v_and_b32 v147, 31, v0
                  v_lshl_add_u32 v147, v147, 3, s{sR}
                  v_lshlrev_b32 v147, 7, v147
                  v_add_u32 v147, {WS_PT}, v147
                  buffer_load_dword v148, v147, s[{SWS}:{SWS+3}], 0 offen sc1""")
    sLW, sXB, sXSH, sWRS, sCB = 23, 24, 25, 26, 27
    sSOX, sSOW, sWST, sM0 = 28, 29, 30, 31
    SX, SWD, SWOD, SMR, SMI = 36, 40, 44, 48, 52
    sC0, sT1O, sSGN = 24, 25, 26
    a(f"""s_sub_u32 s{sLW}, s{sW}, 8
          s_cmp_eq_u32 s{sTYPE}, 3
          s_cselect_b32 s{sXSH}, 16, 10
          s_movk_i32 s3, 3072
          s_cselect_b32 s{sWRS}, 1024, s3
          s_lshl_b32 s4, s{sRB}, 2
          s_add_u32 s4, s4, s{sLW}
          s_lshl_b32 s5, s4, 5
          s_cmp_eq_u32 s{sTYPE}, 3
          s_cselect_b32 s{sXB}, s4, s5
          s_lshl_b32 s{sXB}, s{sXB}, 10
          s_lshl_b32 s4, s{sCQ}, 7
          s_lshl_b32 s5, s{sTYPE}, 10
          s_lshl_b32 s6, s{sCQ}, 8
          s_add_u32 s5, s5, s6
          s_lshr_b32 s6, s{sLW}, 1
          s_lshl_b32 s6, s6, 7
          s_add_u32 s5, s5, s6
          s_cmp_eq_u32 s{sTYPE}, 3
          s_cselect_b32 s{sCB}, s4, s5
          s_lshl_b32 s{sWST}, s{sWRS}, 6
          s_lshl_b32 s{sM0}, s{sLW}, 12
          v_lshrrev_b32 v1, 3, v0
          v_and_b32 v2, 7, v0
          v_lshrrev_b32 v3, 4, v0
          v_xor_b32 v4, v3, v2
          v_xor_b32 v5, 4, v4
          v_lshl_add_u32 v4, v4, 4, s{sXB}
          v_lshl_add_u32 v5, v5, 4, s{sXB}""")
    for jx in range(4):
        if jx: a(f"v_add_u32 v6, {8*jx}, v1")
        a(f"v_lshl_add_u32 v{8+jx}, v{6 if jx else 1}, s{sXSH}, v{4+(jx&1)}" if False else
          f"""v_lshlrev_b32 v6, s{sXSH}, v{6 if jx else 1}
              v_add_u32 v{8+jx}, v6, v{4+(jx&1)}""")
    a(f"""s_and_b32 s4, s{sLW}, 1
          s_lshl_b32 s4, s4, 5
          v_and_b32 v5, 1, v3
          v_lshlrev_b32 v5, 2, v5
          v_xor_b32 v5, v5, v2
          v_lshl_add_u32 v5, v5, 4, s{sCB}
          v_add_u32 v6, s4, v1
          v_mad_u32_u24 v12, v6, s{sWRS}, v5
          s_lshl_b32 s4, s{sWRS}, 3
          v_add_u32 v13, s4, v12
          v_add_u32 v14, s4, v13
          v_add_u32 v15, s4, v14
          s_lshl_b32 s4, s{sCQ}, 1
          s_add_u32 s4, s4, s{sRB}
          s_and_b32 s15, s4, 7
          s_lshl_b32 s{sSOX}, s15, 7
          s_mul_i32 s{sSOW}, s15, s{sWST}
          s_waitcnt lgkmcnt(0)
          s_cmp_lt_u32 s{sLW}, 2
          s_cselect_b32 s4, s{kDR}, s{kDI}
          s_cselect_b32 s5, s{kDR+1}, s{kDI+1}
          s_cmp_eq_u32 s{sTYPE}, 3
          s_cselect_b32 s{SX}, s{kAX}, s{kBX}
          s_cselect_b32 s{SX+1}, s{kAX+1}, s{kBX+1}
          s_mov_b32 s{SX+2}, 0x200000
          s_mov_b32 s{SX+3}, 0x20000
          s_cselect_b32 s{SWD}, s4, s{kWQ}
          s_cselect_b32 s{SWD+1}, s5, s{kWQ+1}
          s_mov_b32 s4, 0x180000
          s_cselect_b32 s{SWD+2}, 0x80000, s4
          s_mov_b32 s{SWD+3}, 0x20000""")
    stamp(a, 1)
    def issue(st):
        for j in range(8):
            S, so = (SX, sSOX) if j < 4 else (SWD, sSOW)
            a(f"""s_add_u32 m0, s{sM0}, {RING + (st%NS)*SLOT + (j//4)*16384 + (j%4)*1024}
                  s_nop 0
                  buffer_load_dwordx4 v{8+j}, s[{S}:{S+3}], s{so} offen lds""")
        if st < 7:
            a(f"""s_add_u32 s15, s15, 1
                  s_and_b32 s15, s15, 7
                  s_lshl_b32 s{sSOX}, s15, 7
                  s_mul_i32 s{sSOW}, s15, s{sWST}""")
    issue(0); issue(1)
    srd(a, SWS, kWS, 0x1000000)
    srd(a, 56, kDBG, 256)
    srd(a, SWOD, kWO, 0x80000)
    a(f"""; wo voffset: (32lw + (i>>4))*1024 + nb*256 + ((i&15) ^ ((i>>4)<<2))*16 ; nb = id>>6
          s_lshl_b32 s4, s{sLW}, 5
          v_add_u32 v19, s4, v3
          v_lshlrev_b32 v19, 10, v19
          v_and_b32 v4, 15, v0
          v_lshlrev_b32 v5, 2, v3
          v_xor_b32 v4, v4, v5
          v_lshl_add_u32 v19, v4, 4, v19
          s_lshl_b32 s4, s{sCQ}, 8
          v_add_u32 v19, s4, v19
          s_lshl_b32 s6, s{sR}, 1
          s_and_b32 s4, s{sHD}, 1
          s_add_u32 s6, s6, s4                    ; tc
          s_lshr_b32 s27, s{sHD}, 1               ; cr16
          s_lshl_b32 s{sC0}, s27, 5
          s_lshr_b32 s4, s6, 2
          s_lshl_b32 s4, s4, 3
          s_and_b32 s5, s6, 3
          s_add_u32 s4, s4, s5
          s_and_b32 s5, s{sW}, 1
          s_lshl_b32 s5, s5, 2
          s_add_u32 s5, s4, s5                    ; t1 source
          s_sub_u32 s4, 32, s5
          s_and_b32 s4, s4, 31
          s_cmp_lt_u32 s2, 128
          s_cselect_b32 s{sT1O}, s5, s4
          s_cselect_b64 vcc, -1, 0
          v_and_b32 v5, 31, v0
          s_and_b32 s4, s{sW}, 2
          s_lshl_b32 s4, s4, 4
          v_add_u32 v5, s4, v5
          v_lshl_add_u32 v20, v5, 5, s{sT1O}
          v_lshrrev_b32 v7, 5, v0                 ; h
          v_sub_u32 v6, 2048, v20
          v_cndmask_b32 v6, v6, v20, vcc
          v_cvt_f32_u32 v6, v6
          v_mul_f32 v17, 0x3a000000, v6
          v_lshlrev_b32 v6, 5, v7
          v_cvt_f32_u32 v6, v6
          v_mul_f32 v28, v17, v6
          v_and_b32 v5, 0x13, v0
          v_bfe_u32 v6, v0, 2, 1
          v_lshl_or_b32 v5, v6, 3, v5
          v_bfe_u32 v6, v0, 3, 1
          v_lshl_or_b32 v5, v6, 2, v5
          v_add_u32 v5, s{sC0}, v5                ; c
          v_sub_u32 v6, 512, v5
          v_cndmask_b32 v5, v6, v5, vcc           ; e
          s_mul_i32 s4, s6, {U_ROW}
          s_and_b32 s5, s{sW}, 1
          s_lshl_b32 s5, s5, 3
          s_add_u32 s4, s4, s5
          s_add_u32 s4, s4, {WS_U}
          v_lshl_add_u32 v5, v5, 4, s4
          s_mov_b32 s5, {16*U_GP}
          v_mad_u32_u24 v22, v7, s5, v5          ; U address
          s_sub_u32 s5, 15, s27
          s_cmp_lt_u32 s2, 128
          s_cselect_b32 s4, s27, s5
          s_cselect_b32 s5, 0, 1
          v_mul_u32_u24 v4, s5, v7
          v_add_u32 v4, s4, v4
          v_and_b32 v4, 7, v4
          v_lshrrev_b32 v5, 1, v4                 ; er
          v_and_b32 v4, 1, v4                     ; wn
          v_lshlrev_b32 v5, 8, v5
          v_lshl_add_u32 v5, v4, 1, v5
          v_and_b32 v4, 1, v0
          v_add_u32 v5, v5, v4
          v_bfe_u32 v4, v0, 1, 3
          v_lshl_add_u32 v5, v4, 5, v5
          v_bfe_u32 v4, v0, 4, 1
          v_lshl_add_u32 v5, v4, 2, v5
          v_add_u32 v5, 24, v5
          v_lshlrev_b32 v5, 7, v5
          v_add_u32 v21, {WS_F1}, v5
          s_lshl_b32 s27, s{sR}, 1
          s_add_u32 s27, s27, s{sLW}
          s_sub_u32 s4, s27, 2
          s_bfe_u32 s5, s4, 0x10003
          s_and_b32 s6, s4, 7
          s_and_b32 s7, s{sHD}, 24
          s_add_u32 s6, s6, s7
          s_lshl_b32 s6, s6, 3
          s_add_u32 s5, s5, s6
          s_lshl_b32 s5, s5, 2
          s_and_b32 s6, s{sHD}, 2
          s_add_u32 s5, s5, s6
          v_lshrrev_b32 v4, 1, v0
          v_sub_u32 v4, 2, v4                     ; lanes 0,1: V ; 2,3: K ; 4,5: Q
          v_and_b32 v5, 1, v0
          v_lshl_add_u32 v4, v4, 3, v5
          v_add_u32 v4, s5, v4
          v_lshlrev_b32 v4, 7, v4
          v_add_u32 v16, {WS_F1}, v4
          v_lshlrev_b32 v1, 4, v0
          s_lshl_b32 s4, s{sR}, 3
          s_lshl_b32 s5, s{sLW}, 1
          s_add_u32 s4, s4, s5
          s_lshl_b32 s5, s4, 10
          s_lshl_b32 s6, s{sHD}, 16
          s_add_u32 s5, s5, s6
          s_add_u32 s5, s5, {WS_O}
          v_lshl_add_u32 v24, v0, 7, s5
          s_lshl_b32 s4, s4, 5
          s_add_u32 s4, s4, s{sHD}
          s_lshl_b32 s4, s4, 7
          s_add_u32 s4, s4, {WS_F2}
          v_and_b32 v4, 1, v0
          v_cmp_gt_u32 vcc, 16, v0
          v_lshl_add_u32 v4, v4, 12, s4
          s_and_b32 s4, s{sHD}, 7
          v_cndmask_b32 v24, v4, v24, vcc
          s_lshl_b32 s4, s4, 2
          s_add_u32 s4, s4, s{sLW}
          s_lshl_b32 s4, s4, 14
          s_lshl_b32 s5, s{sCQ}, 8
          s_add_u32 s4, s4, s5
          v_bfe_u32 v4, v0, 1, 4
          v_lshlrev_b32 v4, 10, v4
          v_and_b32 v5, 1, v0
          v_lshl_add_u32 v4, v5, 7, v4
          v_add_u32 v26, s4, v4
          s_lshl_b32 s4, s{sR}, 3
          s_and_b32 s5, s{sHD}, 7
          s_add_u32 s4, s4, s5
          s_lshl_b32 s5, s4, 5
          s_lshl_b32 s6, s{sLW}, 3
          s_add_u32 s5, s5, s6
          v_add_u32 v25, s5, v0
          v_lshlrev_b32 v25, 7, v25
          v_add_u32 v25, {WS_F2}, v25
          s_lshl_b32 s5, s{sLW}, 19
          s_lshl_b32 s6, s4, 10
          s_add_u32 s5, s5, s6
          s_add_u32 s13, s5, {WS_O}""")
    for i in range(8):
        extra = 1 if i >= 6 else 0
        a(f"s_waitcnt vmcnt({(8 if i < 7 else 0) + extra})")
        if i in (0, 1, 7): stamp(a, 2+i)
        a("s_barrier")
        if i + 2 <= 7: issue(i+2)
        if i == 5: a("buffer_load_dword v18, off, s[56:59], 0 sc1")
        if i == 2 and SPF:
            a(f"""s_lshl_b32 s4, s2, 2
                  s_add_u32 s4, s4, s{sLW}
                  s_lshl_b32 s5, s4, 9
                  s_add_u32 s6, s{kWO}, s5
                  s_addc_u32 s7, s{kWO+1}, 0""")
            for k in range(8): a(f"s_load_dword s61, s[6:7], {64*k}")
        MF = 96
        a(f"""v_add_f32 v29, v28, v17
              v_add_f32 v30, v29, v17
              v_add_f32 v31, v30, v17
              v_cos_f32 v32, v28
              v_cos_f32 v33, v29
              v_cos_f32 v34, v30
              v_cos_f32 v35, v31
              v_sin_f32 v36, v28
              v_sin_f32 v37, v29
              v_sin_f32 v38, v30
              v_sin_f32 v39, v31
              v_add_f32 v28, v31, v17
              v_cvt_pk_bf16_f32 v{MF+4*i}, v32, v33
              v_cvt_pk_bf16_f32 v{MF+4*i+1}, v36, v37
              v_cvt_pk_bf16_f32 v{MF+4*i+2}, v34, v35
              v_cvt_pk_bf16_f32 v{MF+4*i+3}, v38, v39""")
    a("s_barrier")
    stamp(a, 21)
    SOUT = 40
    srd(a, SOUT, kOUT, 0x400000)
    a("s_waitcnt vmcnt(0) lgkmcnt(0)")
    nonce_wait(a, 18, True)
    a(f"""s_cmp_lt_u32 s27, 2
          s_cbranch_scc1 L_lc
          s_cmp_lt_u32 s{sLW}, 2
          s_cselect_b32 s6, 15, 63
          s_mov_b32 s7, 0""")
    if PDELAY: a(f"s_sleep {PDELAY}")
    if PIPE: poll_pipe(a, 16, 40, "s[6:7]")
    else: poll(a, 16, 5, "s[6:7]")
    stamp(a, 10)
    a(f"""s_sub_u32 s4, s27, 2
          s_lshl_b32 s5, s{sHD}, 16
          s_lshl_b32 s4, s4, 12
          s_add_u32 s4, s4, s5
          s_add_u32 s5, s4, {WS_K}
          s_add_u32 s6, s4, {WS_V}
          s_add_u32 m0, s{sM0}, {KV_BASE}
          s_nop 0""")
    for j in range(4): a(f"buffer_load_dwordx4 v1, s[{SWS}:{SWS+3}], s5 offen offset:{1024*j} {KVLD} lds")
    a(f"""s_add_u32 m0, s{sM0}, {KV_BASE+16384}
          s_nop 0""")
    for j in range(4): a(f"buffer_load_dwordx4 v1, s[{SWS}:{SWS+3}], s6 offen offset:{1024*j} {KVLD} lds")
    a(f"""s_cmp_lt_u32 s{sLW}, 2
          s_cbranch_scc1 L_lc
          s_add_u32 m0, s{sM0}, {Q_BASE-8192}
          s_nop 0""")
    for j in range(4): a(f"buffer_load_dwordx4 v1, s[{SWS}:{SWS+3}], s4 offen offset:{1024*j} {KVLD} lds")
    a.label("L_lc")
    a(f"buffer_load_dword v27, v26, s[{SWOD}:{SWOD+3}], 0 offen")
    a(f"""s_lshl_b32 s30, s{sM0}, 1
          s_and_b32 s3, s{sHD}, 3
          s_mov_b32 s7, 4
          s_waitcnt vmcnt(1)""")
    stamp(a, 11)
    a("s_barrier")
    a(f"buffer_load_dword v23, v21, s[{SWS}:{SWS+3}], 0 offen sc1")
    if MODE == "auto": a(f"buffer_load_dword v27, v24, s[{SWS}:{SWS+3}], 0 offen")
    a("s_barrier")
    stamp(a, 12)
    a.label("L_wol")
    a(f"""s_lshl_b32 s4, s3, 15
          s_add_u32 s4, s4, s30
          s_add_u32 s4, s4, {WOQ(0)}
          s_lshl_b32 s5, s3, 17""")
    for jj in range(8):
        a(f"""s_add_u32 m0, s4, {jj*1024}
              s_add_u32 s6, s5, {jj*4096}
              buffer_load_dwordx4 v19, s[{SWOD}:{SWOD+3}], s6 offen lds""")
    a(f"""s_add_u32 s3, s3, 1
          s_and_b32 s3, s3, 3
          s_sub_u32 s7, s7, 1
          s_cmp_lg_u32 s7, 0
          s_cbranch_scc1 L_wol""")
    stamp(a, 20)
    a(f"""s_waitcnt vmcnt(32)
          v_cmp_ne_u32 vcc, s{sNON}, v23
          s_cbranch_vccz L_uok""")
    poll(a, 21, 23, -1)
    a.label("L_uok")
    for js in range(8):
        for b in range(2):
            a(f"""s_mov_b32 s4, {(2*js + b)*U_GP}
                  buffer_load_dwordx2 {vr(UF+4*js+2*b,2)}, v22, s[{SWS}:{SWS+3}], s4 offen {LD}""")
    MF, A2 = 96, 128
    a(f"""v_lshrrev_b32 v3, 5, v0
          v_lshlrev_b32 v10, 11, v20
          v_lshl_add_u32 v10, v3, 4, v10
          s_lshl_b32 s4, s{sC0}, 1
          v_add_u32 v10, s4, v10""")
    stamp(a, 22)
    for js in range(8):
        a(f"s_waitcnt vmcnt({14-2*js})")
        a(f"{MFMA} {vr(A2,16)}, {vr(UF+4*js,4)}, {vr(MF+4*js,4)}, {'0' if js == 0 else vr(A2,16)}")
    a("s_nop 11")
    for mm in range(2):
        for t in range(4):
            a(f"v_cvt_pk_bf16_f32 v{UF+4*mm+t}, v{A2+8*mm+2*t}, v{A2+8*mm+2*t+1}")
        a(f"buffer_store_dwordx4 {vr(UF+4*mm,4)}, v10, s[{SOUT}:{SOUT+3}], 0 offen offset:{32*mm} {A2ST}")
    stamp(a, 13)
    a("s_barrier")
    stamp(a, 14)
    if PIPE: poll_pipe(a, 25, 40, 255, 1)
    else: poll(a, 25, 5, 255)
    stamp(a, 15)
    for j in range(8):
        a(f"""s_add_u32 m0, s30, {KV_BASE + j*1024}
              s_add_u32 s7, s13, {j*65536}
              buffer_load_dwordx4 v1, s[{SWS}:{SWS+3}], s7 offen {LD} lds""")
    a("""s_waitcnt vmcnt(0)
         s_barrier""")
    if WB:
        a(f"""s_or_b32 s4, s{sHD}, s{sLW}
              s_cmp_lg_u32 s4, 0
              s_cbranch_scc1 L_nowb
              buffer_wbl2 sc1""")
        a.label("L_nowb")
    stamp_flush(a, 18)
    a("s_endpgm")

    a.label("L_consumer")
    sWM, sWN, sIT, sDEL = 23, 24, 25, 26
    sMASK = 28
    XA, WA, CPM = 8, 12, 13
    FR, ACC = 32, 64
    CR, CI, NCI = 128, 136, 144
    def X(b, i): return FR + 16*b + 4*i
    def W(b, j): return FR + 16*b + 8 + 4*j
    def AC(i, j): return ACC + 16*(2*i + j)
    a(f"""s_and_b32 s{sWM}, s{sW}, 1
          s_lshr_b32 s{sWN}, s{sW}, 1
          v_and_b32 v1, 31, v0
          v_lshrrev_b32 v2, 5, v0
          v_bfe_u32 v3, v0, 1, 3
          v_xor_b32 v3, v3, v2
          s_lshl_b32 s3, s{sWM}, 13
          s_add_u32 s3, s3, {RING}
          v_lshl_add_u32 v4, v1, 7, s3
          s_or_b32 s3, s2, s{sW}
          s_cmp_lg_u32 s3, 0
          s_waitcnt lgkmcnt(0)""")
    srd(a, 56, kDBG, 256)
    a(f"""s_cbranch_scc1 L_nonpub
          s_memrealtime s[4:5]
          s_waitcnt lgkmcnt(0)
          s_or_b32 s4, s4, 1
          v_mov_b32 v5, s4
          s_mov_b64 exec, 1
          buffer_store_dword v5, off, s[56:59], 0 sc0 sc1
          s_mov_b64 exec, -1""")
    a.label("L_nonpub")
    srd(a, SWS, kWS, 0x1000000)
    a(f"""s_getreg_b32 s{sPTV}, hwreg(HW_REG_XCC_ID, 0, 16)
          s_lshl_b32 s{sPTV}, s{sPTV}, 8
          s_cmp_lt_u32 s{sW}, 4
          s_cbranch_scc1 L_cons2""")
    if "--notlb" not in sys.argv:
        srd(a, 40, kOUT, 0x400000)
        srd(a, 44, kWO, 0x80000)
        a(f"""v_lshlrev_b32 v5, 20, v0
              v_add_u32 v5, 0xff000, v5
              s_mov_b64 exec, 0xfff
              s_cmp_lg_u32 s{sW}, 4
              s_cbranch_scc1 L_tlb1
              buffer_load_dword v6, v5, s[{SWS}:{SWS+3}], 0 offen sc1""")
        a.label("L_tlb1")
        a(f"""s_mov_b64 exec, 15
              s_cmp_lg_u32 s{sW}, 5
              s_cbranch_scc1 L_tlb2
              buffer_load_dword v6, v5, s[40:43], 0 offen
              buffer_load_dword v7, off, s[44:47], 0""")
        a.label("L_tlb2")
        a("s_mov_b64 exec, -1")
    for i in range(9):
        a("s_barrier")
        if i == 5: a("buffer_load_dword v15, off, s[56:59], 0 sc1")
    a("s_waitcnt vmcnt(0)")
    nonce_wait(a, 15, True)
    a(f"s_xor_b32 s{sPTV}, s{sPTV}, s{sNON}")
    a("s_branch L_att")
    a.label("L_cons2")
    for kk in range(4):
        a(f"""v_xor_b32 v5, {2*kk}, v3
              v_lshl_add_u32 v{XA+kk}, v5, 4, v4""")
    a(f"""v_bfe_u32 v3, v0, 2, 2
          v_lshl_add_u32 v4, v2, 3, v3
          v_lshlrev_b32 v4, 7, v4
          v_bfe_u32 v5, v0, 4, 1
          v_lshlrev_b32 v5, 1, v5
          v_bfe_u32 v6, v0, 1, 1
          v_add_u32 v5, v5, v6
          s_lshl_b32 s3, s{sWN}, 2
          v_add_u32 v5, s3, v5
          v_bfe_u32 v6, v0, 3, 1
          v_lshlrev_b32 v6, 2, v6
          v_xor_b32 v5, v5, v6
          v_lshl_add_u32 v4, v5, 4, v4
          v_and_b32 v6, 1, v0
          v_lshl_add_u32 v4, v6, 3, v4
          v_add_u32 v{WA}, {RING+16384}, v4
          v_mov_b32 v{CPM}, 0xbf803f80""")
    for r in range(64): a(f"v_mov_b32 v{ACC+r}, 0")
    a(f"""s_lshl_b32 s3, s2, 2
          s_add_u32 s3, s3, s{sW}
          s_lshl_b32 s3, s3, 7
          s_add_u32 s31, s3, {WS_F1}
          s_lshl_b32 s3, s{sCQ}, 2
          s_add_u32 s3, s3, s{sWN}
          s_lshl_b32 s3, s3, 2
          s_add_u32 s3, s3, s{sTYPE}
          s_cmp_eq_u32 s3, 3
          s_cselect_b32 s{sMASK}, 1, 0
          s_mov_b32 s{sMASK+1}, s{sMASK}
          s_cmp_eq_u32 s{sTYPE}, 3
          s_cbranch_scc1 L_cA
          s_lshl_b32 s3, s{sCQ}, 3
          s_lshl_b32 s4, s{sWN}, 1
          s_add_u32 s3, s3, s4
          s_lshl_b32 s3, s3, 16
          s_lshl_b32 s4, s{sRB}, 2
          s_lshl_b32 s5, s{sWM}, 1
          s_add_u32 s4, s4, s5
          s_lshl_b32 s4, s4, 10
          s_add_u32 s3, s3, s4
          s_lshl_b32 s4, s{sTYPE}, 21
          s_add_u32 s3, s3, s4
          v_lshl_add_u32 v14, v0, 4, s3
          s_cmp_lg_u32 s{sTYPE}, 2
          s_cbranch_scc1 L_noconst
          v_bfe_u32 v5, v0, 4, 1
          v_lshlrev_b32 v5, 16, v5
          v_lshl_add_u32 v5, v2, 8, v5
          v_and_b32 v6, 15, v0
          v_lshl_add_u32 v5, v6, 4, v5
          v_add_u32 v14, s3, v5
          s_branch L_noconst""")
    a.label("L_cA")
    a(f"""s_lshl_b32 s3, s{sRB}, 1
          s_add_u32 s3, s3, s{sWM}
          s_mul_i32 s3, s3, {U_GP}
          s_lshl_b32 s4, s{sCQ}, 10
          s_add_u32 s3, s3, s4
          s_lshl_b32 s4, s{sWN}, 9
          s_add_u32 s3, s3, s4
          s_add_u32 s3, s3, {WS_U}
          v_lshl_add_u32 v14, v1, 4, s3
          s_mov_b32 s4, {8*U_ROW}
          v_mad_u32_u24 v14, v2, s4, v14
          v_lshlrev_b32 v3, 2, v2
          v_mul_u32_u24 v3, v3, v1""")
    for m in range(2):
        for j in range(8):
            cj = 16*m + (j % 4) + 8*(j // 4)
            a(f"""v_mad_u32_u24 v{16+j}, v1, {cj}, v3
                  v_and_b32 v{16+j}, 31, v{16+j}
                  v_cvt_f32_u32 v{16+j}, v{16+j}
                  v_mul_f32 v{16+j}, 0x3d000000, v{16+j}""")
        for j in range(8): a(f"v_cos_f32 v{24+j}, v{16+j}")
        for j in range(8): a(f"v_sin_f32 v{16+j}, v{16+j}")
        a("s_nop 0")
        for j in range(4):
            a(f"""v_cvt_pk_bf16_f32 v{CR+4*m+j}, v{24+2*j}, v{25+2*j}
                  v_cvt_pk_bf16_f32 v{CI+4*m+j}, -v{16+2*j}, -v{17+2*j}
                  v_cvt_pk_bf16_f32 v{NCI+4*m+j}, v{16+2*j}, v{17+2*j}""")
    a.label("L_noconst")
    def rd(kk, b):
        o = [f"ds_read_b128 {vr(X(b,i),4)}, v{XA+kk} offset:{i*4096}" for i in range(2)]
        o += [f"ds_read_b64_tr_b16 {vr(W(b,j)+2*q,2)}, v{WA} offset:{j*8192 + kk*2048 + q*512}" for j in range(2) for q in range(2)]
        return o
    def step(b, variant, r):
        m = []
        for j in range(2):
            for i in range(2):
                A_, B_ = (W(b,j), X(b,i)) if variant == "QK" else (X(b,i), W(b,j))
                m.append(f"{MFMA} {vr(AC(i,j),16)}, {vr(A_,4)}, {vr(B_,4)}, {vr(AC(i,j),16)}")
        c = [f"v_cndmask_b32 v{W(b,1)+t}, v{W(b,1)+t}, v{CPM}, s[{sMASK}:{sMASK+1}]" for t in range(4)] if variant == "A" else []
        for x in [m[0]] + r[:2] + c + [m[1]] + r[2:4] + (["s_nop 0"] if c and not r else []) + [m[2]] + r[4:] + [m[3]]: a(x)
    a(f"""s_mov_b32 s{sIT}, 0
          s_mov_b32 s30, 0
          s_mov_b32 s27, {SLOT}""")
    stamp(a, 1)
    a("s_barrier")
    stamp(a, 2)
    for x in rd(0, 0): a(x)
    a(f"""s_cmp_eq_u32 s{sTYPE}, 2
          s_cbranch_scc1 L_loopV
          s_cmp_eq_u32 s{sTYPE}, 3
          s_cbranch_scc1 L_loopA""")
    PK, SV, D = FR, 16, FR
    for variant in ("QK", "V", "A"):
        a.label(f"L_loop{variant}")
        for kk in range(3):
            a("s_waitcnt lgkmcnt(0)")
            step(kk % 2, variant, rd(kk+1, (kk+1) % 2))
        a(f"""s_add_u32 s30, s30, 1
              s_cmp_eq_u32 s30, {NS}
              s_cselect_b32 s{sDEL}, {-(NS-1)*SLOT}, s27
              s_cselect_b32 s30, 0, s30""")
        for r in (XA, XA+1, XA+2, XA+3, WA): a(f"v_add_u32 v{r}, s{sDEL}, v{r}")
        a(f"""s_add_u32 s{sIT}, s{sIT}, 1
              s_bitcmp1_b32 0x124, s{sIT}
              s_waitcnt lgkmcnt(0)
              s_cbranch_scc1 L_hook{variant}""")
        a.label(f"L_ret{variant}")
        a("s_barrier")
        step(1, variant, rd(0, 0))
        a(f"s_branch L_loop{variant}")
        a.label(f"L_hook{variant}")
        a(f"""s_cmp_eq_u32 s{sIT}, 8
              s_cbranch_scc1 L_last{variant}
              s_cmp_eq_u32 s{sIT}, 5
              s_cbranch_scc1 L_h5{variant}
              buffer_load_dword v15, off, s[56:59], 0 sc1
              s_branch L_ret{variant}""")
        a.label(f"L_h5{variant}")
        a("s_waitcnt vmcnt(0)")
        nonce_wait(a, 15, True)
        a(f"s_xor_b32 s{sPTV}, s{sPTV}, s{sNON}")
        if MODE == "auto":
            a(f"""s_cmp_lg_u32 s{sW}, 0
                  s_cbranch_scc1 L_ret{variant}
                  s_lshl_b32 s3, s2, 7
                  s_add_u32 s3, s3, {WS_PT}
                  v_mov_b32 v15, s{sPTV}
                  s_mov_b64 exec, 1
                  buffer_store_dword v15, off, s[{SWS}:{SWS+3}], s3 sc1
                  s_mov_b64 exec, -1""")
        a(f"s_branch L_ret{variant}")
        a.label(f"L_last{variant}")
        step(1, variant, [])
        stamp(a, 3)
        if variant == "QK":
            a(f"""s_mov_b32 s4, {1*65536}
                  s_mov_b32 s5, {4*65536}
                  s_mov_b32 s6, {5*65536}
                  s_cmp_eq_u32 s{sTYPE}, 0
                  s_mov_b32 s3, {f2u(QSCALE):#x}
                  s_cselect_b32 s8, s3, 1.0
                  s_mov_b32 s9, s8
                  s_nop 1""")
            for j in range(2):
                for i in range(2):
                    for mm in range(2):
                        for t in range(4): a(f"v_pk_mul_f32 {vr(AC(i,j)+8*mm+2*t,2)}, {vr(AC(i,j)+8*mm+2*t,2)}, s[8:9]")
                        d = FR + 8*(2*i+j) + 4*mm
                        for t in range(4): a(f"v_cvt_pk_bf16_f32 v{d+t}, v{AC(i,j)+8*mm+2*t}, v{AC(i,j)+8*mm+2*t+1}")
                        so = ["0", "s4", "s5", "s6"][2*j+mm]
                        a(f"buffer_store_dwordx4 {vr(d,4)}, v14, s[{SWS}:{SWS+3}], {so} offen offset:{i*1024} {ST}")
            a("s_branch L_pub1")
        elif variant == "V":
            a(f"""s_mov_b32 s4, {4*65536}
                  s_nop 7""")
            for j in range(2):
                for i in range(2):
                    for mm in range(2):
                        d = FR + 8*(2*i+j) + 4*mm
                        for t in range(4): a(f"v_cvt_pk_bf16_f32 v{d+t}, v{AC(i,j)+8*mm+2*t}, v{AC(i,j)+8*mm+2*t+1}")
                        so = "0" if j == 0 else "s4"
                        a(f"buffer_store_dwordx4 {vr(d,4)}, v14, s[{SWS}:{SWS+3}], {so} offen offset:{i*1024+mm*512} {ST}")
            a("s_branch L_pub1")
    a("s_barrier\ns_nop 7")
    for j in range(2):
        for p in range(2):
            for t in range(8): a(f"v_cvt_pk_bf16_f32 v{PK+16*p+8*j+t}, v{AC(p,j)+2*t}, v{AC(p,j)+2*t+1}")
    a(f"""s_cmp_eq_u32 s{sMASK}, 0
          s_cbranch_scc1 L_nosp1""")
    for p in range(2):
        for t in range(8):
            a(f"v_mov_b32 v{SV+8*p+t}, v{PK+16*p+8+t}")
            a(f"v_cndmask_b32 v{PK+16*p+8+t}, v{PK+16*p+8+t}, 0, s[{sMASK}:{sMASK+1}]")
    a.label("L_nosp1")
    a("s_nop 1")
    def step1(p, aa, bb):
        a(f"{MFMA} {vr(AC(p,0),16)}, {vr(CR,4)}, {vr(aa,4)}, 0")
        a(f"{MFMA} {vr(AC(p,1),16)}, {vr(CI,4)}, {vr(aa,4)}, 0")
        a(f"{MFMA} {vr(AC(p,0),16)}, {vr(CR+4,4)}, {vr(aa+4,4)}, {vr(AC(p,0),16)}")
        a(f"{MFMA} {vr(AC(p,1),16)}, {vr(CI+4,4)}, {vr(aa+4,4)}, {vr(AC(p,1),16)}")
        if bb is not None:
            for m in range(2):
                a(f"{MFMA} {vr(AC(p,0),16)}, {vr(NCI+4*m,4)}, {vr(bb+4*m,4)}, {vr(AC(p,0),16)}")
                a(f"{MFMA} {vr(AC(p,1),16)}, {vr(CR+4*m,4)}, {vr(bb+4*m,4)}, {vr(AC(p,1),16)}")
    def st(r, special):
        d = FR + 4*r if special else D - 32 + 32 + 4*r - 0
        a(f"""v_permlane32_swap_b32 v{d}, v{d+2}
              v_permlane32_swap_b32 v{d+1}, v{d+3}
              s_mov_b32 s4, {r*U_ROW}""")
        if special: a(f"s_mov_b64 exec, s[{sMASK}:{sMASK+1}]")
        a(f"buffer_store_dwordx4 {vr(d,4)}, v14, s[{SWS}:{SWS+3}], s4 offen {ST}")
        if special: a("s_mov_b64 exec, -1")
    def ustore(special):
        a("s_nop 11")
        for r in range(8):
            d = FR + 4*r if special else D + 4*r
            a(f"""v_cvt_pk_bf16_f32 v{d}, v{AC(0,0)+r}, v{AC(1,0)+r}
                  v_cvt_pk_bf16_f32 v{d+1}, v{AC(0,1)+r}, v{AC(1,1)+r}
                  v_cvt_pk_bf16_f32 v{d+2}, v{AC(0,0)+r+8}, v{AC(1,0)+r+8}
                  v_cvt_pk_bf16_f32 v{d+3}, v{AC(0,1)+r+8}, v{AC(1,1)+r+8}""")
            if r > 0: st(r-1, special)
        a("s_nop 1")
        st(7, special)
    for p in range(2): step1(p, PK+16*p, PK+16*p+8)
    ustore(False)
    a(f"""s_cmp_eq_u32 s{sMASK}, 0
          s_cbranch_scc1 L_pub1b""")
    for p in range(2): step1(p, SV+8*p, None)
    a(f"v_add_u32 v14, {256*16}, v14")
    ustore(True)
    a("s_branch L_pub1b")
    a.label("L_pub1")
    a("s_barrier")
    a.label("L_pub1b")
    stamp(a, 4)

    a.label("L_att")
    QF = 4
    KA, VA_, NINF, MX = 2, 3, 8, 9
    KF, VF, PP, S, O, CN, CD, CF = 12, 24, 40, 48, 80, 96, 112, 128
    S3, P2, MK = 112, 128, 136
    sVM, sNF, sI, sUOK = 8, 10, 11, 15
    srd(a, SOUT, kOUT, 0x400000)
    a(f"""s_lshl_b32 s4, s{sR}, 3
          s_add_u32 s4, s4, s{sW}
          s_lshl_b32 s{sQO}, s4, 10
          s_lshl_b32 s5, s{sHD}, 16
          s_add_u32 s{sQO}, s{sQO}, s5
          s_lshl_b32 s4, s4, 5
          s_add_u32 s4, s4, s{sHD}
          s_lshl_b32 s4, s4, 7
          s_add_u32 s{sF2}, s4, {WS_F2}
          v_lshlrev_b32 v1, 4, v0
          s_lshl_b32 s4, s{sW}, 10
          v_add_u32 v{KA}, s4, v1
          v_add_u32 v4, {Q_BASE}, v{KA}
          v_lshrrev_b32 v10, 5, v0
          v_and_b32 v11, 15, v0
          v_lshlrev_b32 v11, 4, v11
          v_lshl_add_u32 v11, v10, 8, v11
          s_add_u32 s4, s4, 16384
          v_add_u32 v{VA_}, s4, v11
          v_mov_b32 v{NINF}, 0xff800000
          s_mov_b32 s{sVM}, 0x0000ffff
          s_mov_b32 s{sVM+1}, 0x0000ffff
          s_mov_b32 s6, 0x00110000
          s_mov_b32 s7, 0x00110000
          v_mov_b32 v10, 0x3f803f80
""")
    for t in range(16): a(f"v_cndmask_b32 v{VF+t}, 0, v10, s[6:7]")
    for r in range(16):
        lo, hi = diag_mask(r)
        a(f"s_mov_b32 s{64+2*r}, {lo:#x}\ns_mov_b32 s{65+2*r}, {hi:#x}")
    a("v_mov_b32 v10, 0xffff\nv_mov_b32 v11, 0xffff0000")
    for t in range(8):
        a(f"""v_cndmask_b32 v{MK+t}, 0, v10, s[{64+4*t}:{65+4*t}]
              v_cndmask_b32 v5, 0, v11, s[{66+4*t}:{67+4*t}]
              v_or_b32 v{MK+t}, v{MK+t}, v5""")
    a(f"""s_cmp_gt_u32 s{sR}, 0
          s_cselect_b32 s{sNF}, 7, s{sW}
          s_cmp_ge_u32 s{sW}, 4
          s_cbranch_scc1 L_attbar""")
    publish(a, 31, 6)
    stamp(a, 5)
    a.label("L_attbar")
    stamp(a, 11)
    a("s_barrier")
    stamp(a, 12)
    a(f"ds_read_b128 {vr(QF,4)}, v4")
    def masks(val):
        return [f"""v_cndmask_b32 v{CD+r}, v{NINF}, {val}, s[{64+2*r}:{65+2*r}]
                  v_cndmask_b32 v{CF+r}, {val}, v{NINF}, s[{64+2*r}:{65+2*r}]""" for r in range(16)]
    def maxblk(S_, first):
        if first: a(f"v_max_f32 v{MX}, v{S_}, v{S_+1}")
        for t in range(2 if first else 0, 16, 2):
            a(f"v_max3_f32 v{MX}, v{S_+t}, v{S_+t+1}, v{MX}")
    def xhalf_max():
        a(f"""v_mov_b32 v10, v{MX}
              s_nop 1
              v_permlane32_swap_b32 v10, v{MX}
              s_nop 1
              v_max_f32 v{MX}, v{MX}, v10""")
    order = [7, 6, 5, 4, 3, 2, 1, 8, 0]
    def rdK(n): return f"ds_read_b128 {vr(KF+4*(n%3),4)}, v{KA} offset:{order[n]*1024}"
    def rdV(n):
        b = VF + 8*(n % 2)
        return f"""s_mov_b64 exec, s[{sVM}:{sVM+1}]
              ds_read_b128 {vr(b,4)}, v{VA_} offset:{order[n]*1024}
              ds_read_b128 {vr(b+4,4)}, v{VA_} offset:{order[n]*1024+512}
              s_mov_b64 exec, -1"""
    def mS(k, Dd): return f"{MFMA} {vr(Dd,16)}, {vr(KF+4*(k%3),4)}, {vr(QF,4)}, {vr(CN,16)}"
    a(rdK(0)); a(rdK(1)); a(rdV(0))
    a(f"""s_setprio 3
          s_waitcnt lgkmcnt(3)
          {MFMA} {vr(S+16,16)}, {vr(KF,4)}, {vr(QF,4)}, 0
          s_barrier""")
    pt_load()
    if FORCE_SLOW: a("s_branch L_slow")
    a(f"""s_cmp_eq_u32 s{sR}, 0
          s_cbranch_scc1 L_slow
          s_nop {3 if MODE == 'auto' else 8}
          v_max3_f32 v{MX}, v{S+16}, v{S+17}, v{S+18}
          v_max3_f32 v10, v{S+19}, v{S+20}, v{S+21}
          v_max3_f32 v11, v{S+22}, v{S+23}, v{S+24}
          v_max3_f32 v{MX}, v{S+25}, v{S+26}, v{MX}
          v_max3_f32 v10, v{S+27}, v{S+28}, v10
          v_max3_f32 v11, v{S+29}, v{S+30}, v11
          v_max3_f32 v{MX}, v{S+31}, v{MX}, v10
          v_max_f32 v{MX}, v{MX}, v11""")
    xhalf_max()
    a(f"v_sub_f32 v{CN}, 0xc2400000, v{MX}")
    for r in range(1, 16): a(f"v_mov_b32 v{CN+r}, v{CN}")
    a("s_nop 1")
    a(mS(0, S))
    prev = None
    for n in range(8):
        Sn = S + 16*(n % 2); Vn = VF + 8*(n % 2)
        P_ = PP if n % 2 == 0 else P2
        ex = lambda r: a(f"v_exp_f32 v{Sn+r}, v{Sn+r}")
        cv = lambda t: a(f"v_cvt_pk_bf16_f32 v{P_+t}, v{Sn+2*t}, v{Sn+2*t+1}")
        if n in (3, 5, 7): a(f"s_setprio {({3:2,5:1,7:0})[n]}")
        if n == 0:
            a("s_waitcnt lgkmcnt(2)"); a(mS(1, S+16)); a(rdK(2)); a(rdV(1)); a("s_nop 4")
        if n == 7:
            a(prev); a("s_nop 3")
            for r in range(16): a(f"v_cndmask_b32 v{Sn+r}, v{S3+r}, v{Sn+r}, s[{64+2*r}:{65+2*r}]")
        for r in range(4): ex(r)
        if 0 < n < 7: a(prev)
        if n == 7: a(rdV(8))
        for r in range(4, 8): ex(r)
        if 0 < n < 7:
            a("s_waitcnt lgkmcnt(2)"); a(mS(n+1, S + 16*((n+1) % 2)))
            a(rdK(n+2)); a(rdV(n+1))
        for t in range(4): cv(t)
        for r in range(8, 12): ex(r)
        if n < 7:
            a("s_waitcnt lgkmcnt(3)")
            a(f"{MFMA} {vr(O,16)}, {vr(Vn,4)}, {vr(P_,4)}, {'0' if n == 0 else vr(O,16)}")
        else:
            for t in range(4): a(f"v_and_b32 v{PP+t}, v{MK+t}, v{P_+t}\nv_xor_b32 v{P_+t}, v{PP+t}, v{P_+t}")
            a("s_waitcnt lgkmcnt(2)")
            a(f"{MFMA} {vr(O,16)}, {vr(Vn,4)}, {vr(PP,4)}, {vr(O,16)}")
        ex(12); ex(13)
        if n == 6: a("s_waitcnt lgkmcnt(2)"); a(mS(8, S3))
        if n == 7: a("s_waitcnt lgkmcnt(0)"); a(f"{MFMA} {vr(O,16)}, {vr(VF,4)}, {vr(P2,4)}, {vr(O,16)}")
        ex(14); ex(15)
        for t in range(4, 8): cv(t)
        prev = f"{MFMA} {vr(O,16)}, {vr(Vn+4,4)}, {vr(P_+4,4)}, {vr(O,16)}"
    for t in range(4, 8): a(f"v_and_b32 v{PP+t}, v{MK+t}, v{P2+t}\nv_xor_b32 v{P2+t}, v{PP+t}, v{P2+t}")
    a(f"""s_nop 0
          {MFMA} {vr(O,16)}, {vr(VF+12,4)}, {vr(PP+4,4)}, {vr(O,16)}
          {MFMA} {vr(O,16)}, {vr(VF+4,4)}, {vr(P2+4,4)}, {vr(O,16)}
          s_waitcnt vmcnt(0)
          v_cmp_ne_u32 s[6:7], s{sPTV}, v148
          v_mov_b32 v14, 0x7f800000
          s_nop 8
          v_add_f32 v10, |v{O}|, |v{O+1}|
          v_add_f32 v11, |v{O+2}|, |v{O+3}|
          v_add_f32 v12, |v{O+4}|, |v{O+5}|
          v_add_f32 v13, |v{O+6}|, |v{O+7}|
          v_add_f32 v10, v10, v11
          v_add_f32 v12, v12, v13
          v_mul_f32 v11, 0x5f800000, v{O+8}
          v_add_f32 v10, v10, v12
          v_add_f32 v11, v10, v11
          v_rcp_f32 v10, v{O+8}
          v_cmp_lt_f32 vcc, v11, v14
          s_cmp_eq_u64 vcc, -1
          s_cbranch_scc1 L_norm""")
    a.label("L_slow")
    a(f"""s_setprio 0
          s_sub_u32 s3, 8, s{sNF}
          s_lshl_b32 s3, s3, 10
          s_waitcnt lgkmcnt(0)""")
    for x in masks("0"): a(x)
    a(f"""ds_read_b128 {vr(KF,4)}, v{KA} offset:{8*1024}
          s_waitcnt lgkmcnt(0)
          {MFMA} {vr(S,16)}, {vr(KF,4)}, {vr(QF,4)}, {vr(CD,16)}
          s_nop 11""")
    maxblk(S, True)
    a(f"""s_cmp_eq_u32 s{sR}, 0
          s_cbranch_scc1 L_s1nofar
          ds_read_b128 {vr(KF,4)}, v{KA}
          s_waitcnt lgkmcnt(0)
          {MFMA} {vr(S,16)}, {vr(KF,4)}, {vr(QF,4)}, {vr(CF,16)}
          s_nop 11""")
    maxblk(S, False)
    a.label("L_s1nofar")
    a(f"""s_mov_b32 s{sI}, s{sNF}
          v_add_u32 v10, s3, v{KA}
          s_cmp_eq_u32 s{sI}, 0
          s_cbranch_scc1 L_s1done""")
    a.label("L_s1loop")
    a(f"""ds_read_b128 {vr(KF,4)}, v10
          v_add_u32 v10, 1024, v10
          s_waitcnt lgkmcnt(0)
          {MFMA} {vr(S,16)}, {vr(KF,4)}, {vr(QF,4)}, 0
          s_nop 11""")
    maxblk(S, False)
    a(f"""s_sub_u32 s{sI}, s{sI}, 1
          s_cmp_lg_u32 s{sI}, 0
          s_cbranch_scc1 L_s1loop""")
    a.label("L_s1done")
    xhalf_max()
    a(f"v_sub_f32 v{MX}, 0, v{MX}")
    for x in masks(f"v{MX}"): a(x)
    for r in range(16): a(f"v_mov_b32 v{CN+r}, v{MX}")
    def pvblk(kaddr, vaddr, off, C, first):
        a(f"""ds_read_b128 {vr(KF,4)}, v{kaddr} offset:{off}
              s_mov_b64 exec, s[{sVM}:{sVM+1}]
              ds_read_b128 {vr(VF,4)}, v{vaddr} offset:{off}
              ds_read_b128 {vr(VF+4,4)}, v{vaddr} offset:{off+512}
              s_mov_b64 exec, -1
              s_waitcnt lgkmcnt(0)
              {MFMA} {vr(S,16)}, {vr(KF,4)}, {vr(QF,4)}, {vr(C,16)}
              s_nop 11""")
        for r in range(16): a(f"v_exp_f32 v{S+r}, v{S+r}")
        for t in range(8): a(f"v_cvt_pk_bf16_f32 v{PP+t}, v{S+2*t}, v{S+2*t+1}")
        a("s_nop 1")
        a(f"{MFMA} {vr(O,16)}, {vr(VF,4)}, {vr(PP,4)}, {'0' if first else vr(O,16)}")
        a(f"{MFMA} {vr(O,16)}, {vr(VF+4,4)}, {vr(PP+4,4)}, {vr(O,16)}")
    pvblk(KA, VA_, 8*1024, CD, True)
    a(f"""s_cmp_eq_u32 s{sR}, 0
          s_cbranch_scc1 L_s2nofar""")
    pvblk(KA, VA_, 0, CF, False)
    a.label("L_s2nofar")
    a(f"""s_mov_b32 s{sI}, s{sNF}
          v_add_u32 v10, s3, v{KA}
          v_add_u32 v11, s3, v{VA_}
          s_cmp_eq_u32 s{sI}, 0
          s_cbranch_scc1 L_s2done""")
    a.label("L_s2loop")
    pvblk(10, 11, 0, CN, False)
    a(f"""v_add_u32 v10, 1024, v10
          v_add_u32 v11, 1024, v11
          s_sub_u32 s{sI}, s{sI}, 1
          s_cmp_lg_u32 s{sI}, 0
          s_cbranch_scc1 L_s2loop""")
    a.label("L_s2done")
    a(f"""s_waitcnt vmcnt(0)
          v_cmp_ne_u32 s[6:7], s{sPTV}, v148
          s_nop 12
          v_rcp_f32 v10, v{O+8}
          s_nop 0""")
    a.label("L_norm")
    for t in range(8): a(f"v_mul_f32 v{O+t}, v10, v{O+t}")
    for t in range(4): a(f"v_cvt_pk_bf16_f32 v{PP+t}, v{O+2*t}, v{O+2*t+1}")
    a(f"s_add_u32 s4, s{sQO}, {WS_O}")
    if MODE == "auto":
        a(f"""s_cmp_eq_u64 s[6:7], 0
              s_cbranch_scc0 L_ox
              buffer_store_dwordx4 {vr(PP,4)}, v1, s[{SWS}:{SWS+3}], s4 offen""")
        stamp(a, 13)
        publish(a, sF2, 10, flav="")
        a("s_branch L_od")
        a.label("L_ox")
    a(f"buffer_store_dwordx4 {vr(PP,4)}, v1, s[{SWS}:{SWS+3}], s4 offen {ST}")
    stamp(a, 13 if MODE != "auto" else 19)
    publish(a, sF2, 10)
    a.label("L_od")
    stamp(a, 14)
    a(f"""s_barrier
          s_cmp_ge_u32 s{sW}, 4
          s_cbranch_scc1 L_fin""")
    OA, WA2, ACC2, FR2 = 8, 9, 16, 32
    a(f"""s_lshl_b32 s4, s{sR}, 3
          s_and_b32 s5, s{sHD}, 7
          s_add_u32 s4, s4, s5                    ; qb'
          v_lshrrev_b32 v2, 5, v0
          v_bfe_u32 v3, v0, 2, 2
          v_lshl_add_u32 v6, v2, 2, v3
          v_lshlrev_b32 v6, 8, v6
          v_bfe_u32 v5, v0, 4, 1
          v_lshlrev_b32 v5, 1, v5
          v_and_b32 v7, 1, v0
          v_add_u32 v5, v5, v7
          v_xor_b32 v3, s{sW}, v3
          v_lshl_add_u32 v5, v3, 2, v5
          v_lshl_add_u32 v6, v5, 4, v6
          v_bfe_u32 v7, v0, 1, 1
          v_lshl_add_u32 v6, v7, 3, v6""")
    for qd in range(4): a(f"v_add_u32 v{WA2+qd}, {WOQ(qd)}, v6")
    a(f"""v_and_b32 v14, 31, v0
          s_lshl_b32 s7, s4, 5
          v_add_u32 v14, s7, v14
          v_lshlrev_b32 v14, 11, v14
          v_lshl_add_u32 v14, v2, 4, v14
          s_lshl_b32 s7, s{sCQ}, 8
          s_lshl_b32 s8, s{sW}, 6
          s_add_u32 s7, s7, s8
          s_add_u32 s7, s7, 1024
          v_add_u32 v14, s7, v14""")
    def wrd(qd, k, f):
        return [f"ds_read_b64_tr_b16 {vr(f+4+2*q,2)}, v{WA2+qd} offset:{k*4096 + q*2048}" for q in range(2)]
    for k in range(8):
        for x in wrd(0, k, FR2+8*k): a(x)
    a("s_barrier")
    stamp(a, 16)
    for k in range(8): a(f"ds_read_b128 {vr(FR2+8*k,4)}, v1 offset:{KV_BASE + k*1024}")
    for qd in range(4):
        for k in range(8):
            f = FR2 + 64*(qd % 2) + 8*k
            fn = FR2 + 64*((qd+1) % 2) + 8*k
            if qd == 0: a(f"s_waitcnt lgkmcnt({min(15, 7-k + 3*k)})")
            else: a(f"s_waitcnt lgkmcnt({min(15, 3*(7-k) + (3*k if qd < 3 else 0))})")
            c = "0" if (qd == 0 and k == 0) else vr(ACC2,16)
            a(f"{MFMA} {vr(ACC2,16)}, {vr(f+4,4)}, {vr(f,4)}, {c}")
            if qd < 3:
                a(f"ds_read_b128 {vr(fn,4)}, v1 offset:{KV_BASE + (8*(qd+1)+k)*1024}")
                for x in wrd(qd+1, k, fn): a(x)
    a("s_nop 15")
    for mm in range(2):
        for t in range(4):
            a(f"v_cvt_pk_bf16_f32 v{FR2+4*mm+t}, v{ACC2+8*mm+2*t}, v{ACC2+8*mm+2*t+1}")
        a(f"buffer_store_dwordx4 {vr(FR2+4*mm,4)}, v14, s[{SOUT}:{SOUT+3}], 0 offen offset:{32*mm}")
    stamp(a, 17)
    stamp_flush(a, 18)
    a("s_endpgm")
    a.label("L_fin")
    stamp_flush(a, 18)
    a.label("L_end")
    a("s_endpgm")
    return a

def main():
    a = gen()
    hdr = f"""; {NAME} : one fused kernel (generated by my gen6.py)
; @launch grid=(256,1,1) block=(768,1,1) lds=163840
.amdgcn_target "amdgcn-amd-amdhsa--gfx950"
.text
"""
    kd = f""".section .rodata,"a"
.p2align 6
.amdhsa_kernel {KN}
  .amdhsa_next_free_vgpr 168
  .amdhsa_next_free_sgpr 102
  .amdhsa_accum_offset 168
  .amdhsa_group_segment_fixed_size 0
  .amdhsa_kernarg_size 88
  .amdhsa_user_sgpr_count 2
  .amdhsa_user_sgpr_kernarg_segment_ptr 1
  .amdhsa_system_sgpr_workgroup_id_x 1
.end_amdhsa_kernel
"""
    path = sys.argv[1] if len(sys.argv) > 1 and sys.argv[1].endswith(".s") else f"cdna_kernels/{NAME}.s"
    open(path, "w").write(hdr + a.text() + kd)
main()
```

```python
import sys, struct, math

NAME = "concat_heads__spectral_fnet__sliding_block__prompt"
KN = NAME + "_kernel"
WS_Q, WS_K, WS_V, WS_O, WS_U = 0, 2 << 20, 4 << 20, 6 << 20, 8 << 20
WS_F1, WS_F2, WS_PT, WS_F3 = (11 << 20), (11 << 20) + 0x20000, (11 << 20) + 0x60000, (11 << 20) + 0x70000
U_ROW = 4224
U_GP = 16 * U_ROW
U_SIZE = 32 * U_GP
QSCALE = 0.25 * math.log2(math.e)
uid = [0]
STAMP = "--stamp" in sys.argv
FORCE_SLOW = "--slow" in sys.argv
SKIP = set(int(x) for x in sys.argv[sys.argv.index("--skip")+1].split(",")) if "--skip" in sys.argv else set()
ST = sys.argv[sys.argv.index("--st")+1].replace("+", " ") if "--st" in sys.argv else "sc1"
LD = "sc1"
SPIN_MAX = 30000
def opt(name, default):
    return type(default)(sys.argv[sys.argv.index(name)+1]) if name in sys.argv else default
PDELAY = opt("--pdelay", 0)
PIPE = "--pipe" in sys.argv
FULLF = "--fullf" in sys.argv
KVLD = sys.argv[sys.argv.index("--kvld")+1].replace("+", " ").replace("none", "") if "--kvld" in sys.argv else "sc1"
A2ST = "sc1" if "--a2sc1" in sys.argv else ""
WB = "--wb" in sys.argv

def f2u(x): return struct.unpack("<I", struct.pack("<f", x))[0]

class Asm:
    def __init__(self): self.L = []
    def __call__(self, s):
        for line in s.strip("\n").split("\n"):
            line = line.strip()
            if line: self.L.append("  " + line)
    def label(self, n): self.L.append(n + ":")
    def text(self): return "\n".join(self.L) + "\n"

def vr(b, n=1): return f"v{b}" if n == 1 else f"v[{b}:{b+n-1}]"
MFMA = "v_mfma_f32_32x32x16_bf16"

kAX, kSR, kSI, kDR, kDI, kBX, kWQ, kWO, kOUT, kDBG, kWS = 64, 66, 68, 70, 72, 74, 76, 78, 80, 82, 84
sTB, sHG, sJ, sW, sNON = 16, 17, 18, 19, 20
sHD, sR = 21, 22
SWS = 32
VST = 167

def srd(a, d, k, size, off=0):
    if off:
        a(f"s_add_u32 s{d}, s{k}, {off}\ns_addc_u32 s{d+1}, s{k+1}, 0")
    else:
        a(f"s_mov_b32 s{d}, s{k}\ns_mov_b32 s{d+1}, s{k+1}")
    a(f"s_mov_b32 s{d+2}, {size}\ns_mov_b32 s{d+3}, 0x20000")

AMP = [int(x) for x in sys.argv[sys.argv.index("--amp")+1].split(",")] if "--amp" in sys.argv else None
def amp_end(a):
    if not AMP: return
    uid[0] += 1
    L = f"amp{uid[0]}"
    a(f"""s_cmp_lg_u32 s2, {AMP[3]}
          s_cbranch_scc1 {L}x
          s_cmp_lg_u32 s{sW}, {AMP[4]}
          s_cbranch_scc1 {L}x
          s_waitcnt vmcnt(0)
          s_memrealtime s[62:63]
          s_sub_u32 s100, s101, s100
          s_min_u32 s100, s100, 10000
          s_mul_i32 s100, s100, {AMP[2]}
          s_waitcnt lgkmcnt(0)
          s_add_u32 s100, s100, s62""")
    a.label(L)
    a(f"""s_memrealtime s[62:63]
          s_waitcnt lgkmcnt(0)
          s_sub_u32 s61, s62, s100
          s_cmp_lt_i32 s61, 0
          s_cbranch_scc1 {L}""")
    a.label(L + "x")
GMAX = None
def stamp(a, idx):
    if AMP and idx in AMP[:2]:
        a(f"""s_memrealtime s[62:63]
              s_waitcnt lgkmcnt(0)
              s_mov_b32 s{100 + AMP[:2].index(idx)}, s62""")
    if not STAMP: return
    if idx in SKIP: return
    a(f"""s_memrealtime s[96:97]
          s_memtime s[98:99]
          s_waitcnt lgkmcnt(0)
          v_writelane_b32 v{VST}, s96, {idx}
          v_writelane_b32 v{VST}, s98, {idx+32}""")
def stamp_flush(a, idx):
    if AMP:
        if idx in AMP[:2]: a("s_waitcnt vmcnt(0)")
        stamp(a, idx)
        amp_end(a)
    if not STAMP: return
    a("s_waitcnt vmcnt(0)")
    stamp(a, idx)
    srd(a, 88, SWS, 0x100000, 16 << 20)
    a(f"""s_mov_b64 exec, -1
          s_lshl_b32 s92, s2, 12
          s_lshl_b32 s93, s{sW}, 8
          s_add_u32 s92, s92, s93
          v_mbcnt_lo_u32_b32 v2, -1, 0
          v_mbcnt_hi_u32_b32 v2, -1, v2
          v_lshlrev_b32 v2, 2, v2
          buffer_store_dword v{VST}, v2, s[88:91], s92 offen""")

def poll(a, vaddr, vtmp, nl_mask, srdreg=SWS):
    uid[0] += 1
    L = f"poll{uid[0]}"
    a(f"""s_mov_b32 s60, 0
          s_mov_b64 exec, {nl_mask}""")
    a.label(L)
    a(f"""buffer_load_dword v{vtmp}, v{vaddr}, s[{srdreg}:{srdreg+3}], 0 offen sc1
          s_add_u32 s60, s60, 1
          s_cmp_gt_u32 s60, {SPIN_MAX}
          s_cbranch_scc1 {L}x
          s_waitcnt vmcnt(0)
          v_cmp_ne_u32 vcc, s{sNON}, v{vtmp}
          s_cbranch_vccnz {L}""")
    a.label(L + "x")
    a("s_mov_b64 exec, -1")

def poll_pipe(a, vaddr, vt, nl_mask, gap=2):
    uid[0] += 1
    L = f"pp{uid[0]}"
    ld = lambda k: f"buffer_load_dword v{vt+k}, v{vaddr}, s[{SWS}:{SWS+3}], 0 offen sc1"
    a(f"""s_mov_b32 s60, 0
          s_mov_b64 exec, {nl_mask}
          {ld(0)}
          s_sleep {gap}
          {ld(1)}""")
    a.label(L)
    for k in range(3):
        a(f"""s_sleep {gap}
              {ld((k+2)%3)}
              s_waitcnt vmcnt(2)
              v_cmp_ne_u32 vcc, s{sNON}, v{vt+k}
              s_cbranch_vccz {L}x""")
    a(f"""s_add_u32 s60, s60, 1
          s_cmp_lt_u32 s60, {SPIN_MAX}
          s_cbranch_scc1 {L}""")
    a.label(L + "x")
    a("s_mov_b64 exec, -1")

def poll2(a, va, vb, vt):
    uid[0] += 1
    L = f"pq{uid[0]}"
    a("s_mov_b32 s60, 0")
    a.label(L)
    a(f"""buffer_load_dword v{vt}, v{va}, s[{SWS}:{SWS+3}], 0 offen sc1
          buffer_load_dword v{vt+1}, v{vb}, s[{SWS}:{SWS+3}], 0 offen sc1
          s_add_u32 s60, s60, 1
          s_cmp_gt_u32 s60, {SPIN_MAX}
          s_cbranch_scc1 {L}x
          s_waitcnt vmcnt(0)
          v_cmp_ne_u32 vcc, s{sNON}, v{vt}
          v_cmp_ne_u32 s[4:5], s{sNON}, v{vt+1}
          s_or_b64 vcc, vcc, s[4:5]
          s_cbranch_vccnz {L}""")
    a.label(L + "x")

def publish(a, soff, vtmp, cnt=0, flav=None):
    if FULLF:
        a(f"""v_mov_b32 v{vtmp}, s{sNON}
              v_mov_b32 v{vtmp+1}, s{sNON}
              s_waitcnt vmcnt({cnt})
              s_mov_b64 exec, 0xffff
              buffer_store_dwordx2 v[{vtmp}:{vtmp+1}], v166, s[{SWS}:{SWS+3}], s{soff} offen {ST if flav is None else flav}
              s_mov_b64 exec, -1""")
        return
    a(f"""s_waitcnt vmcnt({cnt})
          v_mov_b32 v{vtmp}, s{sNON}
          s_mov_b64 exec, 1
          buffer_store_dword v{vtmp}, off, s[{SWS}:{SWS+3}], s{soff} {ST if flav is None else flav}
          s_mov_b64 exec, -1""")

def nonce_wait(a, vtmp, first_loaded):
    uid[0] += 1
    L = f"non{uid[0]}"
    a("s_mov_b32 s60, 0")
    if first_loaded:
        a(f"s_branch {L}c")
    a.label(L)
    a(f"""buffer_load_dword v{vtmp}, off, s[56:59], 0 sc1
          s_waitcnt vmcnt(0)""")
    a.label(L + "c")
    a(f"""v_readfirstlane_b32 s{sNON}, v{vtmp}
          s_add_u32 s60, s60, 1
          s_cmp_gt_u32 s60, {SPIN_MAX}
          s_cbranch_scc1 {L}x
          s_cmp_eq_u32 s{sNON}, 0
          s_cbranch_scc1 {L}""")
    a.label(L + "x")

def diag_mask(r):
    g, i = r // 4, r % 4
    return (0xffffffff << (8*g+i)) & 0xffffffff, (0xffffffff << (8*g+i+4)) & 0xffffffff

MODE = sys.argv[sys.argv.index("--mode")+1] if "--mode" in sys.argv else "auto"
A2ST = ""
XR, WR, WSL = 0, 65536, 24576
NS = opt('--ns', 3)
QSLOT = [WR + 2*WSL, WR, WR + 3*WSL, WR + WSL] if NS == 3 else [WR + k*WSL for k in range(4)]
UPN = opt('--upn', 1)
PUBU = opt('--pubu', 1)
Q_BASE = 81920
WO_BASE = 98304
HSTR = 20480
UF = 64
sX = sR

def gen():
    a = Asm()
    a.L += [f".globl {KN}", ".p2align 8", f".type {KN},@function"]
    a.label(KN)
    a(f"""s_cmp_ge_u32 s2, 256
          s_cbranch_scc1 L_end
          s_load_dwordx16 s[64:79], s[0:1], 0
          s_load_dwordx4 s[80:83], s[0:1], 64
          s_load_dwordx2 s[84:85], s[0:1], 80
          v_lshrrev_b32 v1, 6, v0
          v_and_b32 v0, 63, v0
          s_and_b32 s{sX}, s2, 7
          v_readfirstlane_b32 s{sW}, v1
          s_lshr_b32 s{sJ}, s2, 3
          s_lshl_b32 s3, s{sX}, 2
          s_and_b32 s4, s{sJ}, 3
          s_add_u32 s{sTB}, s3, s4
          s_lshr_b32 s{sHG}, s2, 5""")
    if FULLF: a("v_lshlrev_b32 v166, 3, v0")
    if STAMP: a(f"v_mov_b32 v{VST}, 0")
    stamp(a, 0)
    a(f"""s_cmp_lt_u32 s{sW}, 8
          s_cbranch_scc1 L_consumer""")
    sQO, sF2, sPTV = 12, 13, 14
    def pt_load():
        if MODE == "auto":
            a(f"""v_and_b32 v147, 31, v0
                  v_lshl_add_u32 v147, v147, 3, s{sX}
                  v_lshlrev_b32 v147, 7, v147
                  v_add_u32 v147, {WS_PT}, v147
                  buffer_load_dword v148, v147, s[{SWS}:{SWS+3}], 0 offen sc1""")
    sLW, sROT, sSOX, sSOW, sMX, sMW, sTY = 23, 15, 28, 29, 30, 31, 27
    SX, SWD, SAX = 36, 40, 48
    SWOD, SOUT = 44, 40
    sC0 = 24
    XO, WO_, XA1 = 8, 10, 14
    sRA, sAX = 21, 25
    a(f"""s_sub_u32 s{sLW}, s{sW}, 8
          s_lshl_b32 s3, s{sTB}, 2
          s_add_u32 s3, s3, s{sLW}
          s_lshl_b32 s3, s3, 14                    ; (64tb + 16lw)*1024
          v_lshrrev_b32 v1, 3, v0
          v_and_b32 v2, 7, v0
          v_lshrrev_b32 v3, 4, v0
          v_xor_b32 v4, v3, v2
          v_xor_b32 v5, 4, v4
          v_lshlrev_b32 v4, 4, v4
          v_lshlrev_b32 v5, 4, v5
          v_lshl_add_u32 v6, v1, 10, s3
          v_add_u32 v{XO}, v6, v4
          v_add3_u32 v{XO+1}, v6, v5, s4
          v_and_b32 v6, 1, v3
          v_lshlrev_b32 v6, 2, v6
          v_xor_b32 v6, v6, v2
          s_lshl_b32 s3, s{sHG}, 7
          v_lshl_add_u32 v6, v6, 4, s3
          s_and_b32 s3, s{sLW}, 1
          s_lshl_b32 s3, s3, 5
          v_add_u32 v7, s3, v1
          s_movk_i32 s3, 3072
          v_mad_u32_u24 v{WO_}, v7, s3, v6""".replace("v_add3_u32 v9, v6, v5, s4", "v_add_u32 v9, v6, v5\n          v_add_u32 v9, 8192, v9"))
    for jw in range(1, 4): a(f"v_add_u32 v{WO_+jw}, {8*3072*jw}, v{WO_}")
    a(f"""s_and_b32 s3, s{sJ}, 3
          s_lshl_b32 s3, s3, 1
          s_add_u32 s3, s3, s{sHG}
          s_add_u32 s3, s3, s{sX}
          s_and_b32 s{sROT}, s3, 7
          s_lshr_b32 s{sTY}, s{sLW}, 1
          s_lshl_b32 s{sTY}, s{sTY}, 10
          s_add_u32 s{sTY}, s{sTY}, 1024
          s_lshl_b32 s{sSOX}, s{sROT}, 7
          s_mul_i32 s{sSOW}, s{sROT}, {64*3072}
          s_add_u32 s{sSOW}, s{sSOW}, s{sTY}
          s_lshl_b32 s{sMX}, s{sLW}, 11
          s_lshl_b32 s{sMW}, s{sLW}, 12
          s_lshr_b32 s3, s{sX}, 1
          s_lshl_b32 s3, s3, 3
          s_and_b32 s4, s{sJ}, 7
          s_add_u32 s3, s3, s4
          s_lshl_b32 s3, s3, 1
          s_lshr_b32 s4, s{sLW}, 1
          s_add_u32 s3, s3, s4
          s_lshl_b32 s3, s3, 10
          s_and_b32 s4, s{sLW}, 1
          s_lshl_b32 s4, s4, 20
          s_add_u32 s3, s3, s4
          v_lshl_add_u32 v6, v1, 16, s3
          v_add_u32 v{XA1}, v6, v4
          v_add_u32 v{XA1+1}, v6, v5
          v_add_u32 v{XA1+1}, {8*65536}, v{XA1+1}
          s_lshr_b32 s3, s{sJ}, 3
          s_lshl_b32 s3, s3, 1
          s_and_b32 s4, s{sX}, 1
          s_add_u32 s{sRA}, s3, s4
          s_lshl_b32 s{sAX}, s{sRA}, 7
          s_waitcnt lgkmcnt(0)""")
    srd(a, SX, kBX, 0x200000)
    srd(a, SAX, kAX, 0x200000)
    srd(a, SWD, kWQ, 0x180000)
    stamp(a, 1)
    def dma(sm0, m0off, v, S, so):
        a(f"""s_add_u32 m0, s{sm0}, {m0off}
              s_nop 0
              buffer_load_dwordx4 v{v}, s[{S}:{S+3}], s{so} offen lds""")
    def issue(st):
        if st < 8:
            for j in range(2): dma(sMX, XR + st*8192 + j*1024, XO+j, SX, sSOX)
        base = WR + (st % NS)*WSL if st < 8 else QSLOT[st-8]
        for j in range(4): dma(sMW, base + j*1024, WO_+j, SWD, sSOW)
        if st < 8:
            for j in range(2): dma(sMX, base + 16384 + j*1024, XA1+j, SAX, sAX)
        if st < 7:
            a(f"""s_add_u32 s{sROT}, s{sROT}, 1
                  s_and_b32 s{sROT}, s{sROT}, 7
                  s_lshl_b32 s{sSOX}, s{sROT}, 7
                  s_mul_i32 s{sSOW}, s{sROT}, {64*3072}
                  s_add_u32 s{sSOW}, s{sSOW}, s{sTY}
                  s_add_u32 s{sAX}, s{sAX}, 128
                  s_and_b32 s{sAX}, s{sAX}, 1023""")
        elif st < 11:
            if st == 7:
                a(f"""s_lshr_b32 s3, s{sLW}, 1
                      s_add_u32 s3, s3, 1
                      s_add_u32 s{sROT}, s{sROT}, s3""")
            else:
                a(f"s_add_u32 s{sROT}, s{sROT}, 2")
            a(f"""s_and_b32 s{sROT}, s{sROT}, 7
                  s_mul_i32 s{sSOW}, s{sROT}, {64*3072}""")
    issue(0); issue(1)
    if NS == 4: issue(2)
    srd(a, SWS, kWS, 0x1000000)
    srd(a, 56, kDBG, 256)
    a(f"""          ; wo voffset: (128lw + (i>>3))*1024 + hg*128 + ((i&7) ^ (((i>>4)&1)<<2))*16
          v_and_b32 v6, 1, v3
          v_lshlrev_b32 v6, 2, v6
          v_xor_b32 v6, v6, v2
          s_lshl_b32 s3, s{sLW}, 17
          s_lshl_b32 s4, s{sHG}, 7
          s_add_u32 s3, s3, s4
          v_lshl_add_u32 v6, v6, 4, s3
          v_lshl_add_u32 v19, v1, 10, v6
          s_and_b32 s4, s{sJ}, 3
          s_lshl_b32 s4, s4, 15
          s_add_u32 s3, s3, s4
          v_and_b32 v6, 31, v0
          v_lshl_add_u32 v26, v6, 10, s3
          s_lshl_b32 s6, s{sX}, 1
          s_and_b32 s4, s{sJ}, 1
          s_add_u32 s6, s6, s4                    ; tc
          s_lshr_b32 s7, s{sJ}, 1                 ; cr16
          s_lshl_b32 s{sC0}, s7, 5
          s_lshr_b32 s4, s6, 2
          s_lshl_b32 s4, s4, 3
          s_and_b32 s5, s6, 3
          s_add_u32 s4, s4, s5
          s_and_b32 s5, s{sW}, 1
          s_lshl_b32 s5, s5, 2
          s_add_u32 s5, s4, s5                    ; t1 source
          s_sub_u32 s4, 32, s5
          s_and_b32 s4, s4, 31
          s_cmp_lt_u32 s2, 128
          s_cselect_b32 s8, s5, s4
          s_cselect_b64 vcc, -1, 0
          v_and_b32 v5, 31, v0
          s_and_b32 s4, s{sW}, 2
          s_lshl_b32 s4, s4, 4
          v_add_u32 v5, s4, v5
          v_lshl_add_u32 v20, v5, 5, s8
          v_lshrrev_b32 v7, 5, v0                 ; h
          v_sub_u32 v6, 2048, v20
          v_cndmask_b32 v6, v6, v20, vcc
          v_cvt_f32_u32 v6, v6
          v_mul_f32 v17, 0x3a000000, v6
          v_lshlrev_b32 v6, 5, v7
          v_cvt_f32_u32 v6, v6
          v_mul_f32 v28, v17, v6
          v_and_b32 v5, 0x13, v0
          v_bfe_u32 v6, v0, 2, 1
          v_lshl_or_b32 v5, v6, 3, v5
          v_bfe_u32 v6, v0, 3, 1
          v_lshl_or_b32 v5, v6, 2, v5
          v_add_u32 v5, s{sC0}, v5                ; c
          v_sub_u32 v6, 512, v5
          v_cndmask_b32 v5, v6, v5, vcc           ; e
          s_mul_i32 s4, s6, {U_ROW}
          s_and_b32 s5, s{sW}, 1
          s_lshl_b32 s5, s5, 3
          s_add_u32 s4, s4, s5
          s_add_u32 s4, s4, {WS_U}
          v_lshl_add_u32 v5, v5, 4, s4
          s_mov_b32 s5, {16*U_GP}
          v_mad_u32_u24 v22, v7, s5, v5           ; U address
          s_sub_u32 s5, 15, s7
          s_cmp_lt_u32 s2, 128
          s_cselect_b32 s4, s7, s5                ; e block b
          s_cselect_b32 s5, 0, 1
          s_add_u32 s5, s5, s4
          s_and_b32 s5, s5, 7
          v_bfe_u32 v5, v0, 1, 3
          v_lshlrev_b32 v5, 4, v5
          v_bfe_u32 v6, v0, 4, 2
          v_lshl_add_u32 v5, v6, 2, v5
          v_and_b32 v6, 1, v0
          s_lshr_b32 s6, s4, 2
          s_and_b32 s4, s4, 3
          s_lshl_b32 s4, s4, 6
          s_add_u32 s4, s4, s6
          s_lshl_b32 s4, s4, 1
          v_add3_u32 v6, v5, v6, s4
          v_lshlrev_b32 v6, 7, v6
          v_add_u32 v21, {WS_F3}, v6
          s_lshr_b32 s6, s5, 2
          s_and_b32 s5, s5, 3
          s_lshl_b32 s5, s5, 6
          s_add_u32 s5, s5, s6
          s_lshl_b32 s5, s5, 1
          v_add_u32 v6, s5, v5
          v_lshlrev_b32 v6, 7, v6
          v_add_u32 v23, {WS_F3}, v6
          v_lshrrev_b32 v4, 1, v0
          v_add_u32 v4, s{sTB}, v4
          v_subrev_u32 v4, 4, v4
          v_and_b32 v5, 3, v4
          v_bfe_u32 v4, v4, 2, 3
          v_lshl_add_u32 v4, v5, 3, v4
          s_lshl_b32 s4, s{sHG}, 7
          s_and_b32 s5, s{sLW}, 2
          s_add_u32 s4, s4, s5
          v_lshl_add_u32 v4, v4, 2, s4
          v_and_b32 v5, 1, v0
          v_add_u32 v4, v4, v5
          v_lshlrev_b32 v4, 7, v4
          v_add_u32 v16, {WS_F1}, v4
          v_lshlrev_b32 v1, 4, v0
          s_lshl_b32 s9, s{sHG}, 2
          s_add_u32 s9, s9, s{sLW}
          s_lshl_b32 s5, s{sTB}, 11
          s_lshl_b32 s6, s9, 16
          s_add_u32 s10, s5, s6
          s_add_u32 s5, s10, {WS_O}
          v_lshl_add_u32 v24, v0, 7, s5
          s_lshl_b32 s4, s{sTB}, 6
          s_add_u32 s5, s4, s9
          s_lshl_b32 s5, s5, 7
          s_add_u32 s5, s5, {WS_F2}
          v_and_b32 v4, 1, v0
          v_cmp_gt_u32 vcc, 16, v0
          v_lshl_add_u32 v4, v4, 12, s5
          s_lshl_b32 s5, s{sLW}, 1
          v_cndmask_b32 v24, v4, v24, vcc
          s_add_u32 s4, s4, s5
          v_bfe_u32 v4, v0, 2, 2
          v_bfe_u32 v5, v0, 1, 1
          v_lshl_add_u32 v4, v4, 3, v5
          v_and_b32 v5, 1, v0
          v_lshl_add_u32 v4, v5, 5, v4
          v_add_u32 v4, s4, v4
          v_lshlrev_b32 v4, 7, v4
          v_add_u32 v25, {WS_F2}, v4
          s_lshl_b32 s5, s{sLW}, 17
          s_lshl_b32 s6, s{sTB}, 11
          s_add_u32 s5, s5, s6
          s_add_u32 s13, s5, {WS_O}""")
    MF, A2 = 96, 128
    for i in range(8):
        a(f"""v_add_f32 v29, v28, v17
              v_add_f32 v30, v29, v17
              v_add_f32 v31, v30, v17
              v_cos_f32 v32, v28
              v_cos_f32 v33, v29
              v_cos_f32 v34, v30
              v_cos_f32 v35, v31
              v_sin_f32 v36, v28
              v_sin_f32 v37, v29
              v_sin_f32 v38, v30
              v_sin_f32 v39, v31
              v_add_f32 v28, v31, v17
              v_cvt_pk_bf16_f32 v{MF+4*i}, v32, v36
              v_cvt_pk_bf16_f32 v{MF+4*i+1}, v33, v37
              v_cvt_pk_bf16_f32 v{MF+4*i+2}, v34, v38
              v_cvt_pk_bf16_f32 v{MF+4*i+3}, v35, v39""")
    for i in range(8):
        a(f"s_waitcnt vmcnt({([8]*6 + [9, 5])[i] if NS == 3 else ([16]*5 + [17, 13, 9])[i]})")
        if i in (0, 1, 7): stamp(a, 2+i)
        a("s_barrier")
        issue(i+NS-1)
        if i == 7 and NS == 3: issue(10)
        if i == 8-NS: a("buffer_load_dword v18, off, s[56:59], 0 sc1")
        if i == 2:
            a(f"""s_lshl_b32 s4, s2, 2
                  s_add_u32 s4, s4, s{sLW}
                  s_lshl_b32 s5, s4, 9
                  s_add_u32 s6, s{kWO}, s5
                  s_addc_u32 s7, s{kWO+1}, 0""")
            for k in range(8): a(f"s_load_dword s61, s[6:7], {64*k}")
    a("s_waitcnt vmcnt(8)")
    stamp(a, 20)
    a("s_barrier")
    issue(11)
    nonce_wait(a, 18, True)
    srd(a, SWOD, kWO, 0x80000)
    srd(a, SOUT, kOUT, 0x400000)
    NT = 2 if MODE == "auto" else 1
    a(f"""s_sub_u32 s3, 4, s{sTB}
          s_max_i32 s3, s3, 0
          s_lshl_b32 s4, s3, 1
          s_lshl_b32 s6, 0xff, s4
          s_and_b32 s6, s6, 0xff
          s_mov_b32 s7, 0
          s_mul_i32 s8, s{sLW}, {HSTR}
          s_add_u32 s8, s8, 6144
          s_add_u32 s10, s10, {WS_K - 2048}
          s_lshl_b32 s30, s{sLW}, 14
          s_mov_b32 s3, 0
          v_mov_b32 v2, 0x7ffffff0
          s_waitcnt vmcnt(8) lgkmcnt(0)
          s_barrier
          s_waitcnt vmcnt(4)
          s_barrier
          s_waitcnt vmcnt(0)""")
    stamp(a, 23)
    a(f"""s_barrier
          s_cmp_eq_u32 s{sTB}, 0
          s_cbranch_scc1 L_kv0""")
    if PDELAY: a(f"s_sleep {PDELAY}")
    if PIPE: poll_pipe(a, 16, 40, "s[6:7]")
    else: poll(a, 16, 5, "s[6:7]")
    stamp(a, 10)
    a.label("L_kv0")
    a("s_barrier")
    stamp(a, 24)
    a.label("L_kvl")
    a(f"""s_cmp_lt_u32 s3, s{sTB}
          s_cbranch_scc1 L_kvr
          v_mov_b32 v1, v2
          s_mov_b32 s10, 0""")
    a.label("L_kvr")
    a(f"""s_mov_b32 m0, s8
          s_add_u32 s4, s10, {WS_V - WS_K}
          buffer_load_dwordx4 v1, s[{SWS}:{SWS+3}], s10 offen {KVLD} lds
          buffer_load_dwordx4 v1, s[{SWS}:{SWS+3}], s10 offen offset:1024 {KVLD} lds
          s_add_u32 m0, s8, 10240
          s_add_u32 s3, s3, 1
          buffer_load_dwordx4 v1, s[{SWS}:{SWS+3}], s4 offen {KVLD} lds
          buffer_load_dwordx4 v1, s[{SWS}:{SWS+3}], s4 offen offset:1024 {KVLD} lds
          s_sub_u32 s8, s8, 2048
          s_sub_u32 s10, s10, 2048
          s_cmp_lt_u32 s3, 4
          s_cbranch_scc1 L_kvl
          v_lshlrev_b32 v1, 4, v0""")
    def wo_grp(g):
        a(f"""s_add_u32 s3, s{sJ}, {g}
              s_and_b32 s3, s3, 3
              s_lshl_b32 s4, s3, 12
              s_add_u32 s4, s4, s30
              s_add_u32 s4, s4, {WO_BASE}
              s_lshl_b32 s5, s3, 15""")
        for jj in range(4):
            a(f"""s_add_u32 m0, s4, {jj*1024}
                  s_add_u32 s6, s5, {jj*8192}
                  buffer_load_dwordx4 v19, s[{SWOD}:{SWOD+3}], s6 offen lds""")
    a("s_waitcnt vmcnt(12)")
    stamp(a, 11)
    a("s_barrier")
    stamp(a, 12)
    a("s_waitcnt vmcnt(8)\ns_barrier")
    if MODE == "auto": a(f"buffer_load_dword v27, v24, s[{SWS}:{SWS+3}], 0 offen")
    wo_grp(0)
    a(f"s_waitcnt vmcnt({4 + NT - 1 + 4})\ns_barrier")
    wo_grp(1)
    a(f"s_waitcnt vmcnt({NT - 1 + 8})\ns_barrier")
    stamp(a, 21)
    wo_grp(2); wo_grp(3)
    stamp(a, 25)
    poll2(a, 21, 23, 5)
    stamp(a, 26)
    for js in range(8):
        for b in range(2):
            a(f"""s_mov_b32 s4, {(2*js + b)*U_GP}
                  buffer_load_dwordx2 {vr(UF+4*js+2*b,2)}, v22, s[{SWS}:{SWS+3}], s4 offen {LD}""")
    a(f"""v_lshrrev_b32 v3, 5, v0
          v_lshlrev_b32 v10, 11, v20
          v_lshl_add_u32 v10, v3, 4, v10
          s_lshl_b32 s4, s{sC0}, 1
          v_add_u32 v10, s4, v10""")
    stamp(a, 27)
    if PIPE: poll_pipe(a, 25, 40, 0xffff, 1)
    else: poll(a, 25, 5, 0xffff)
    stamp(a, 15)
    a("s_barrier")
    stamp(a, 14)
    a(f"s_lshl_b32 s30, s{sLW}, 12")
    for j in range(8):
        hd = 8*(j//2) + (j % 2)
        a(f"""s_add_u32 m0, s30, {hd*2048}
              s_add_u32 s7, s13, {hd*65536}
              buffer_load_dwordx4 v1, s[{SWS}:{SWS+3}], s7 offen {LD} lds
              buffer_load_dwordx4 v1, s[{SWS}:{SWS+3}], s7 offen offset:1024 {LD} lds""")
    for q in range(4): a(f"s_waitcnt vmcnt({12-4*q})\ns_barrier")
    for js in range(8):
        a(f"{MFMA} {vr(A2,16)}, {vr(UF+4*js,4)}, {vr(MF+4*js,4)}, {'0' if js == 0 else vr(A2,16)}")
    a("s_nop 11")
    for mm in range(2):
        for t in range(4):
            a(f"v_cvt_pk_bf16_f32 v{UF+4*mm+t}, v{A2+8*mm+2*t}, v{A2+8*mm+2*t+1}")
        a(f"buffer_store_dwordx4 {vr(UF+4*mm,4)}, v10, s[{SOUT}:{SOUT+3}], 0 offen offset:{32*mm}")
    stamp(a, 13)
    stamp_flush(a, 18)
    a("s_endpgm")

    a.label("L_consumer")
    sIT, sDEL, sSL = 25, 26, 30
    sMASK = 28
    XA, WA = 8, 12
    ACC = 64
    a(f"""v_and_b32 v1, 31, v0
          v_lshrrev_b32 v2, 5, v0
          v_bfe_u32 v3, v0, 1, 3
          v_xor_b32 v3, v3, v2
          v_lshlrev_b32 v4, 7, v1
          s_or_b32 s3, s2, s{sW}
          s_cmp_lg_u32 s3, 4
          s_waitcnt lgkmcnt(0)""")
    srd(a, 56, kDBG, 256)
    a(f"""s_cbranch_scc1 L_nonpub
          s_cmp_lg_u32 s2, 0
          s_cbranch_scc1 L_nonpub
          s_memrealtime s[4:5]
          s_waitcnt lgkmcnt(0)
          s_or_b32 s4, s4, 1
          v_mov_b32 v5, s4
          s_mov_b64 exec, 1
          buffer_store_dword v5, off, s[56:59], 0 sc0 sc1
          s_mov_b64 exec, -1""")
    a.label("L_nonpub")
    srd(a, SWS, kWS, 0x1000000)
    for kk in range(4):
        a(f"""v_xor_b32 v5, {2*kk}, v3
              v_lshl_add_u32 v{XA+kk}, v5, 4, v4""")
    a(f"""s_getreg_b32 s{sPTV}, hwreg(HW_REG_XCC_ID, 0, 16)
          s_lshl_b32 s{sPTV}, s{sPTV}, 8
          v_bfe_u32 v3, v0, 2, 2
          v_lshl_add_u32 v7, v2, 3, v3             ; 8h + r
          v_lshlrev_b32 v4, 7, v7
          v_bfe_u32 v5, v0, 4, 1
          v_lshlrev_b32 v5, 1, v5
          v_bfe_u32 v6, v0, 1, 1
          v_add_u32 v5, v5, v6
          s_and_b32 s3, s{sW}, 2
          s_lshl_b32 s3, s3, 1
          v_add_u32 v5, s3, v5
          v_bfe_u32 v6, v0, 3, 1
          v_lshlrev_b32 v6, 2, v6
          v_xor_b32 v5, v5, v6
          v_lshl_add_u32 v4, v5, 4, v4
          v_and_b32 v6, 1, v0
          v_lshl_add_u32 v4, v6, 3, v4
          s_cmp_lt_u32 s{sW}, 4
          s_cbranch_scc1 L_kv""")
    a(f"""s_cmp_lt_u32 s{sW}, 6
          s_cbranch_scc1 L_a1""")
    for i in range(13):
        a("s_barrier")
        if i == 5: a("buffer_load_dword v15, off, s[56:59], 0 sc1")
        if i == 7:
            a("s_waitcnt vmcnt(0)")
            nonce_wait(a, 15, True)
    a(f"""s_xor_b32 s{sPTV}, s{sPTV}, s{sNON}
          s_branch L_att""")
    a.label("L_a1")
    sEH, sCA = 24, 25
    XF, AA, AB, WG = 20, 36, 68, 100
    DL, PH, SG, UA, NV, EI = 12, 13, 14, 15, 16, 17
    for kk in range(4): a(f"v_add_u32 v{XA+kk}, {WR+16384}, v{XA+kk}")
    a(f"""s_and_b32 s{sEH}, s{sW}, 1
          s_and_b32 s3, s{sX}, 1
          s_lshr_b32 s5, s{sJ}, 3
          s_lshl_b32 s4, s5, 1
          s_add_u32 s{sCA}, s4, s3
          s_lshl_b32 s3, s3, 2
          s_add_u32 s3, s3, s5                     ; eb
          s_lshl_b32 s3, s3, 1
          s_add_u32 s6, s3, s{sEH}
          s_lshl_b32 s3, s6, 4
          v_and_b32 v5, 15, v0
          v_add_u32 v{EI}, s3, v5                  ; e
          v_bfe_u32 v6, v0, 4, 1
          v_cvt_f32_u32 v{PH}, v6
          v_mul_f32 v{PH}, 0x3e800000, v{PH}
          s_cmp_eq_u32 s6, 0
          s_cselect_b32 s{sMASK}, 0x10000, 0
          s_mov_b32 s{sMASK+1}, s{sMASK}
          v_mov_b32 v6, 256
          v_cndmask_b32 v{EI}, v{EI}, v6, s[{sMASK}:{sMASK+1}]
          v_cndmask_b32 v{PH}, v{PH}, 0, s[{sMASK}:{sMASK+1}]
          v_cvt_f32_u32 v{DL}, v{EI}
          v_mul_f32 v{DL}, 0x3b000000, v{DL}       ; e/512
          v_and_b32 v6, 1, v0
          v_lshlrev_b32 v6, 31, v6
          v_or_b32 v{SG}, 1.0, v6
          s_lshr_b32 s3, s{sX}, 1
          s_lshl_b32 s3, s3, 3
          s_and_b32 s4, s{sJ}, 7
          s_add_u32 s3, s3, s4                     ; pi
          s_mul_i32 s3, s3, {U_GP}
          s_lshl_b32 s4, s6, 8
          s_add_u32 s3, s3, s4
          s_add_u32 s3, s3, {WS_U}
          v_lshl_add_u32 v5, v5, 4, s3
          v_lshrrev_b32 v6, 4, v0
          s_movk_i32 s4, {U_ROW}
          v_mad_u32_u24 v{UA}, v6, s4, v5
          v_mul_f32 v18, 0x41100000, v{DL}         ; 9*delta""")
    def genw(c):
        o = [f"""s_add_u32 s3, s{sCA}, {c}
              s_and_b32 s3, s3, 7
              s_lshl_b32 s3, s3, 6
              v_lshl_add_u32 v5, v2, 3, s3
              v_mul_u32_u24 v5, v5, v{EI}
              v_and_b32 v5, 511, v5
              v_cvt_f32_u32 v5, v5
              v_mul_f32 v5, 0x3b000000, v5
              v_add_f32 v{AB}, v5, v{PH}"""]
        for kk in range(4):
            t = []
            for j in range(1, 8): t.append(f"v_add_f32 v{AB+j}, v{AB+j-1}, v{DL}")
            for j in range(8): t.append(f"v_cos_f32 v{AB+8+j}, v{AB+j}")
            t.append(f"v_add_f32 v{AB}, v{AB+7}, v18")
            for j in range(4): t.append(f"v_cvt_pk_bf16_f32 v{WG+16*c+4*kk+j}, v{AB+8+2*j}, v{AB+9+2*j}")
            o.append("\n".join(t))
        return o
    CR, CI, NCI = WG, WG+8, WG+16
    def genc(m, T):
        t = []
        for j in range(8):
            cj = 16*m + (j % 4) + 8*(j // 4)
            t.append(f"""v_mad_u32_u24 v{T+j}, v1, {cj}, v3
                  v_and_b32 v{T+j}, 31, v{T+j}
                  v_cvt_f32_u32 v{T+j}, v{T+j}
                  v_mul_f32 v{T+j}, 0x3d000000, v{T+j}""")
        u = [f"v_cos_f32 v{T+8+j}, v{T+j}" for j in range(8)] + [f"v_sin_f32 v{T+j}, v{T+j}" for j in range(8)] + ["s_nop 0"]
        for j in range(4):
            u.append(f"""v_cvt_pk_bf16_f32 v{CR+4*m+j}, v{T+8+2*j}, v{T+9+2*j}
                  v_cvt_pk_bf16_f32 v{CI+4*m+j}, -v{T+2*j}, -v{T+1+2*j}
                  v_cvt_pk_bf16_f32 v{NCI+4*m+j}, v{T+2*j}, v{T+1+2*j}""")
        return ["\n".join(t[:4]), "\n".join(t[4:]), "\n".join(u[:17]), "\n".join(u[17:])]
    for c in range(2):
        for x in genw(c): a(x)
    a("""v_lshlrev_b32 v3, 2, v2
         v_mul_u32_u24 v3, v3, v1
         s_barrier""")
    def rda(kk, b): return [f"ds_read_b128 {vr(XF+8*b+4*p,4)}, v{XA+kk} offset:{p*4096}" for p in range(2)]
    for x in rda(0, 0): a(x)
    for st in range(8):
        fill = {0: genw(2), 1: genw(3), 7: genc(0, WG+32)}.get(st, [])
        if st in (0, 1): fill = [fill[0] + "\n" + fill[1]] + fill[2:]
        acc = AA if st < 4 else AB
        for kk in range(4):
            a("s_waitcnt lgkmcnt(0)")
            if kk == 3 and st < 7:
                d = WSL if (st+1) % NS else -(NS-1)*WSL
                a(f"s_mov_b32 s3, {d}")
                for r in range(4): a(f"v_add_u32 v{XA+r}, s3, v{XA+r}")
                a("s_barrier")
                if st == 4: a(f"buffer_load_dword v{NV}, off, s[56:59], 0 sc1")
            nx = rda((kk+1) % 4, (kk+1) % 2) if not (st == 7 and kk == 3) else ["", ""]
            for p in range(2):
                c = "0" if (st % 4 == 0 and kk == 0) else vr(acc+16*p,16)
                a(f"{MFMA} {vr(acc+16*p,16)}, {vr(XF+8*(kk%2)+4*p,4)}, {vr(WG+16*(st%4)+4*kk,4)}, {c}")
                a(nx[p])
            if fill: a(fill[kk])
    stamp(a, 7)
    a("s_barrier")
    for x in genc(1, WG+32): a(x)
    PK, SV, RE, IM, D1, D2 = XF, WG+24, AB, AB+16, AA, AA+16
    for p in range(2):
        for r in range(16): a(f"v_fma_f32 v{AA+16*p+r}, v{AB+16*p+r}, v{SG}, v{AA+16*p+r}")
    for p in range(2):
        for t in range(8): a(f"v_cvt_pk_bf16_f32 v{PK+8*p+t}, v{AA+16*p+2*t}, v{AA+16*p+2*t+1}")
    a("s_barrier\ns_nop 0")
    for t in range(8): a(f"v_permlane16_swap_b32 v{PK+t}, v{PK+8+t}")
    a(f"""s_mov_b32 s6, 0x00010001
          s_mov_b32 s7, 0x00010001
          s_cmp_eq_u32 s{sMASK}, 0
          s_cbranch_scc1 L_nosp1""")
    for t in range(8):
        a(f"v_mov_b32 v{SV+t}, v{PK+8+t}")
        a(f"v_cndmask_b32 v{PK+8+t}, v{PK+8+t}, 0, s[6:7]")
    a.label("L_nosp1")
    a("s_nop 1")
    def step1(aa, bb):
        a(f"{MFMA} {vr(RE,16)}, {vr(CR,4)}, {vr(aa,4)}, 0")
        a(f"{MFMA} {vr(IM,16)}, {vr(CI,4)}, {vr(aa,4)}, 0")
        a(f"{MFMA} {vr(RE,16)}, {vr(CR+4,4)}, {vr(aa+4,4)}, {vr(RE,16)}")
        a(f"{MFMA} {vr(IM,16)}, {vr(CI+4,4)}, {vr(aa+4,4)}, {vr(IM,16)}")
        if bb is not None:
            for m in range(2):
                a(f"{MFMA} {vr(RE,16)}, {vr(NCI+4*m,4)}, {vr(bb+4*m,4)}, {vr(RE,16)}")
                a(f"{MFMA} {vr(IM,16)}, {vr(CR+4*m,4)}, {vr(bb+4*m,4)}, {vr(IM,16)}")
    def upack(D):
        for r in range(16): a(f"v_cvt_pk_bf16_f32 v{D+r}, v{RE+r}, v{IM+r}")
        for g in range(4):
            d = D + 4*g
            a(f"""v_permlane32_swap_b32 v{d}, v{d+2}
                  v_permlane32_swap_b32 v{d+1}, v{d+3}""")
        for g in range(4):
            d = D + 4*g
            a(f"""v_permlane16_swap_b32 v{d}, v{d+1}
                  v_permlane16_swap_b32 v{d+2}, v{d+3}""")
    def ust(D, off):
        for g in range(4):
            a(f"""s_mov_b32 s4, {4*g*U_ROW + off}
                  buffer_store_dwordx4 {vr(D+4*g,4)}, v{UA}, s[{SWS}:{SWS+3}], s4 offen {ST}""")
    step1(PK, PK+8)
    a("s_barrier")
    a("s_waitcnt vmcnt(0)")
    nonce_wait(a, NV, True)
    a(f"s_xor_b32 s{sPTV}, s{sPTV}, s{sNON}\ns_nop 4")
    upack(D1)
    a(f"""s_cmp_eq_u32 s{sMASK}, 0
          s_cbranch_scc1 L_nosp2""")
    step1(SV, None)
    a("s_nop 11")
    upack(D2)
    a.label("L_nosp2")
    stamp(a, 8)
    ust(D1, 0)
    a(f"""s_cmp_eq_u32 s{sMASK}, 0
          s_cbranch_scc1 L_nosp3
          s_mov_b64 exec, s[6:7]""")
    ust(D2, 4096)
    a("s_mov_b64 exec, -1")
    a.label("L_nosp3")
    a(f"""s_barrier
          s_barrier
          s_lshl_b32 s3, s2, 1
          s_add_u32 s3, s3, s{sEH}
          s_lshl_b32 s3, s3, 7
          s_add_u32 s3, s3, {WS_F3}""")
    publish(a, 3, 6)
    a("s_branch L_att")

    a.label("L_kv")
    FR = 32
    def X(b, i): return FR + 12*b + 4*i
    def W(b): return FR + 12*b + 8
    a(f"""s_and_b32 s3, s{sW}, 1
          s_lshl_b32 s3, s3, 13
          s_add_u32 s3, s3, {WR}
          v_add_u32 v{WA}, s3, v4""")
    for r in range(32): a(f"v_mov_b32 v{ACC+r}, 0")
    a(f"""s_lshl_b32 s3, s2, 2
          s_add_u32 s3, s3, s{sW}
          s_lshl_b32 s3, s3, 7
          s_add_u32 s31, s3, {WS_F1}
          s_lshl_b32 s3, s{sHG}, 2
          s_and_b32 s4, s{sW}, 2
          s_add_u32 s3, s3, s4
          s_lshl_b32 s3, s3, 16
          s_lshl_b32 s4, s{sTB}, 11
          s_add_u32 s3, s3, s4
          s_add_u32 s3, s3, {WS_K}
          v_lshl_add_u32 v14, v0, 4, s3
          s_add_u32 s3, s3, {WS_V - WS_K}
          v_bfe_u32 v5, v0, 4, 1
          v_lshlrev_b32 v5, 16, v5
          v_lshl_add_u32 v5, v2, 8, v5
          v_and_b32 v6, 15, v0
          v_lshl_add_u32 v5, v6, 4, v5
          v_add_u32 v16, s3, v5
          v_mov_b32 v21, v4
          s_and_b32 s4, s{sW}, 2
          s_mul_i32 s3, s4, {HSTR}
          s_add_u32 s3, s3, 8192
          v_lshl_add_u32 v17, v0, 4, s3
          s_add_u32 s3, s3, 10240
          v_bfe_u32 v5, v0, 4, 1
          v_mul_u32_u24 v5, {HSTR}, v5
          v_lshl_add_u32 v5, v2, 8, v5
          v_lshl_add_u32 v5, v6, 4, v5
          v_add_u32 v18, s3, v5
          s_and_b32 s3, s{sW}, 1
          s_lshl_b32 s3, s3, 12
          s_lshl_b32 s4, s4, 10
          s_add_u32 s3, s3, s4
          s_add_u32 s3, s3, {Q_BASE}
          v_lshl_add_u32 v20, v0, 4, s3
          s_mov_b32 s8, {f2u(QSCALE):#x}
          s_mov_b32 s9, s8""")
    def rd(kk, b):
        return [f"ds_read_b128 {vr(X(b,i),4)}, v{XA+kk} offset:{i*4096}" for i in range(2)] + [f"ds_read_b64_tr_b16 {vr(W(b)+2*q,2)}, v{WA} offset:{kk*2048 + q*512}" for q in range(2)]
    def step(b, variant, r):
        m = []
        for i in range(2):
            A_, B_ = (W(b), X(b,i)) if variant == "K" else (X(b,i), W(b))
            m.append(f"{MFMA} {vr(ACC+16*i,16)}, {vr(A_,4)}, {vr(B_,4)}, {vr(ACC+16*i,16)}")
        for x in [m[0]] + r[:2] + [m[1]] + r[2:]: a(x)
    a(f"""s_mov_b32 s{sIT}, 0
          s_mov_b32 s{sSL}, 0
          s_mov_b32 s27, {WSL}""")
    stamp(a, 1)
    a("s_barrier")
    stamp(a, 2)
    for x in rd(0, 0): a(x)
    a(f"""s_bitcmp1_b32 s{sW}, 0
          s_cbranch_scc1 L_loopV""")
    for variant in ("K", "V"):
        a.label(f"L_loop{variant}")
        for kk in range(3):
            a("s_waitcnt lgkmcnt(0)")
            step(kk % 2, variant, rd(kk+1, (kk+1) % 2))
        a(f"""s_add_u32 s{sSL}, s{sSL}, 1
              s_cmp_eq_u32 s{sSL}, {NS}
              s_cselect_b32 s{sDEL}, {-(NS-1)*WSL}, s27
              s_cselect_b32 s{sSL}, 0, s{sSL}
              v_add_u32 v{WA}, s{sDEL}, v{WA}""")
        for r in range(4): a(f"v_add_u32 v{XA+r}, 8192, v{XA+r}")
        a(f"""s_add_u32 s{sIT}, s{sIT}, 1
              s_bitcmp1_b32 0x128, s{sIT}
              s_waitcnt lgkmcnt(0)
              s_cbranch_scc1 L_hook{variant}""")
        a.label(f"L_ret{variant}")
        a("s_barrier")
        step(1, variant, rd(0, 0))
        a(f"s_branch L_loop{variant}")
        a.label(f"L_hook{variant}")
        a(f"""s_cmp_eq_u32 s{sIT}, 8
              s_cbranch_scc1 L_last{variant}
              s_cmp_eq_u32 s{sIT}, 5
              s_cbranch_scc1 L_h5{variant}
              buffer_load_dword v19, off, s[56:59], 0 sc1
              s_branch L_ret{variant}""")
        a.label(f"L_h5{variant}")
        a("s_waitcnt vmcnt(0)")
        nonce_wait(a, 19, True)
        a(f"s_xor_b32 s{sPTV}, s{sPTV}, s{sNON}")
        if MODE == "auto" and variant == "K":
            a(f"""s_cmp_lg_u32 s{sW}, 2
                  s_cbranch_scc1 L_ret{variant}
                  s_lshl_b32 s3, s2, 7
                  s_add_u32 s3, s3, {WS_PT}
                  v_mov_b32 v19, s{sPTV}
                  s_mov_b64 exec, 1
                  buffer_store_dword v19, off, s[{SWS}:{SWS+3}], s3 sc1
                  s_mov_b64 exec, -1""")
        a(f"s_branch L_ret{variant}")
        a.label(f"L_last{variant}")
        step(1, variant, [])
        stamp(a, 3)
        a("s_mov_b32 s4, 65536\ns_nop 9")
        for i in range(2):
            for mm in range(2):
                d = FR + 8*i + 4*mm
                for t in range(4): a(f"v_cvt_pk_bf16_f32 v{d+t}, v{ACC+16*i+8*mm+2*t}, v{ACC+16*i+8*mm+2*t+1}")
                if variant == "K":
                    a(f"buffer_store_dwordx4 {vr(d,4)}, v14, s[{SWS}:{SWS+3}], {'s4' if mm else '0'} offen offset:{i*1024} {ST}")
                else:
                    a(f"buffer_store_dwordx4 {vr(d,4)}, v16, s[{SWS}:{SWS+3}], 0 offen offset:{i*1024+mm*512} {ST}")
        if variant == "K": a("s_branch L_kvdone")
    a.label("L_kvdone")
    stamp(a, 4)
    FQ = 96
    a(f"""s_and_b32 s3, s{sW}, 1
          s_lshl_b32 s3, s3, 12
          s_sub_u32 s3, s3, 65536
          v_add_u32 v{WA}, {QSLOT[0]}, v21""")
    for kk in range(4): a(f"v_add_u32 v{XA+kk}, s3, v{XA+kk}")
    a("s_barrier")
    def rdq(u, k, b):
        c2, kk = k // 4, k % 4
        f = FQ + 8*b
        return [f"ds_read_b128 {vr(f,4)}, v{XA+kk} offset:{(2*u+c2)*8192}"] + [f"ds_read_b64_tr_b16 {vr(f+4+2*q,2)}, v{WA} offset:{c2*8192 + kk*2048 + q*512}" for q in range(2)]
    NBQ = 4
    for k in range(3):
        for x in rdq(0, k, k): a(x)
    for u in range(4):
        for k in range(8):
            g = 8*u + k
            last = k >= 5
            if k == 5 and u < 3:
                d = QSLOT[u+1] - QSLOT[u]
                if u == PUBU:
                    publish(a, 31, 6)
                    stamp(a, 5)
                a(f"""s_waitcnt lgkmcnt(0)
                      s_barrier
                      v_add_u32 v{WA}, {d}, v{WA}""")
            nxt = rdq(u, k+3, (g+3) % NBQ) if k < 5 else (rdq(u+1, k-5, (g+3) % NBQ) if u < 3 else [])
            if not (k >= 5 and u < 3) or k > 5 or True:
                outst = 6 if (k < 5 or u < 3) else 3*(7-k)
                if not (k == 5 and u < 3) and not (k in (6, 7) and u < 3): a(f"s_waitcnt lgkmcnt({outst})")
            f = FQ + 8*(g % NBQ)
            a(f"{MFMA} {vr(ACC,16)}, {vr(f+4,4)}, {vr(f,4)}, {'0' if g == 0 else vr(ACC,16)}")
            for x in nxt: a(x)
    a("s_barrier")
    stamp(a, 6)
    a(f"""s_bitcmp1_b32 s{sW}, 0
          s_cbranch_scc1 L_cpv""")
    for i in range(2):
        for mm in range(2): a(f"ds_write_b128 v17, {vr(FR+8*i+4*mm,4)} offset:{mm*HSTR + i*1024}")
    a("s_branch L_cpq")
    a.label("L_cpv")
    for i in range(2):
        for mm in range(2): a(f"ds_write_b128 v18, {vr(FR+8*i+4*mm,4)} offset:{i*1024 + mm*512}")
    a.label("L_cpq")
    a("s_nop 5")
    for t in range(8): a(f"v_pk_mul_f32 {vr(ACC+2*t,2)}, {vr(ACC+2*t,2)}, s[8:9]")
    for t in range(8): a(f"v_cvt_pk_bf16_f32 v{FQ+t}, v{ACC+2*t}, v{ACC+2*t+1}")
    a(f"""ds_write_b128 v20, {vr(FQ,4)}
          ds_write_b128 v20, {vr(FQ+4,4)} offset:1024""")

    a.label("L_att")
    QF = 4
    KA, VA_, NINF, MX = 2, 3, 8, 9
    KF, VF, PP, S, O, CN, CD, CF = 12, 24, 40, 48, 80, 96, 112, 128
    S3, P2, MK = 112, 128, 136
    sVM, sNF, sI = 8, 10, 11
    srd(a, SOUT, kOUT, 0x400000)
    a(f"""s_and_b32 s3, s{sW}, 3
          s_lshr_b32 s5, s{sW}, 2
          s_lshl_b32 s4, s{sHG}, 2
          s_add_u32 s{sHD}, s4, s3
          s_lshl_b32 s4, s{sTB}, 1
          s_add_u32 s4, s4, s5                     ; qb
          s_lshl_b32 s{sQO}, s4, 10
          s_lshl_b32 s6, s{sHD}, 16
          s_add_u32 s{sQO}, s{sQO}, s6
          s_min_u32 s{sNF}, s4, 7
          s_lshl_b32 s4, s4, 5
          s_add_u32 s4, s4, s{sHD}
          s_lshl_b32 s4, s4, 7
          s_add_u32 s{sF2}, s4, {WS_F2}
          v_lshlrev_b32 v1, 4, v0
          s_lshl_b32 s4, s{sW}, 10
          s_add_u32 s4, s4, {Q_BASE}
          v_add_u32 v4, s4, v1
          s_mul_i32 s4, s3, {HSTR}
          s_lshl_b32 s5, s5, 10
          s_add_u32 s4, s4, s5
          v_add_u32 v{KA}, s4, v1
          v_lshrrev_b32 v10, 5, v0
          v_and_b32 v11, 15, v0
          v_lshlrev_b32 v11, 4, v11
          v_lshl_add_u32 v11, v10, 8, v11
          s_add_u32 s4, s4, 10240
          v_add_u32 v{VA_}, s4, v11
          v_mov_b32 v{NINF}, 0xff800000
          s_mov_b32 s{sVM}, 0x0000ffff
          s_mov_b32 s{sVM+1}, 0x0000ffff
          s_mov_b32 s6, 0x00110000
          s_mov_b32 s7, 0x00110000
          v_mov_b32 v10, 0x3f803f80""")
    for t in range(16): a(f"v_cndmask_b32 v{VF+t}, 0, v10, s[6:7]")
    for r in range(16):
        lo, hi = diag_mask(r)
        a(f"s_mov_b32 s{64+2*r}, {lo:#x}\ns_mov_b32 s{65+2*r}, {hi:#x}")
    a("v_mov_b32 v10, 0xffff\nv_mov_b32 v11, 0xffff0000")
    for t in range(8):
        a(f"""v_cndmask_b32 v{MK+t}, 0, v10, s[{64+4*t}:{65+4*t}]
              v_cndmask_b32 v5, 0, v11, s[{66+4*t}:{67+4*t}]
              v_or_b32 v{MK+t}, v{MK+t}, v5""")
    a("s_waitcnt lgkmcnt(0)")
    stamp(a, 11)
    a("s_barrier")
    stamp(a, 12)
    a(f"ds_read_b128 {vr(QF,4)}, v4")
    def masks(val):
        return [f"""v_cndmask_b32 v{CD+r}, v{NINF}, {val}, s[{64+2*r}:{65+2*r}]
                  v_cndmask_b32 v{CF+r}, {val}, v{NINF}, s[{64+2*r}:{65+2*r}]""" for r in range(16)]
    def maxblk(S_, first):
        if first: a(f"v_max_f32 v{MX}, v{S_}, v{S_+1}")
        for t in range(2 if first else 0, 16, 2):
            a(f"v_max3_f32 v{MX}, v{S_+t}, v{S_+t+1}, v{MX}")
    def xhalf_max():
        a(f"""v_mov_b32 v10, v{MX}
              s_nop 1
              v_permlane32_swap_b32 v10, v{MX}
              s_nop 1
              v_max_f32 v{MX}, v{MX}, v10""")
    order = [7, 6, 5, 4, 3, 2, 1, 8, 0]
    def rdK(n): return f"ds_read_b128 {vr(KF+4*(n%3),4)}, v{KA} offset:{order[n]*1024}"
    def rdV(n):
        b = VF + 8*(n % 2)
        return f"""s_mov_b64 exec, s[{sVM}:{sVM+1}]
              ds_read_b128 {vr(b,4)}, v{VA_} offset:{order[n]*1024}
              ds_read_b128 {vr(b+4,4)}, v{VA_} offset:{order[n]*1024+512}
              s_mov_b64 exec, -1"""
    def mS(k, Dd): return f"{MFMA} {vr(Dd,16)}, {vr(KF+4*(k%3),4)}, {vr(QF,4)}, {vr(CN,16)}"
    a(rdK(0)); a(rdK(1)); a(rdV(0))
    a(f"""s_setprio 3
          s_waitcnt lgkmcnt(3)
          {MFMA} {vr(S+16,16)}, {vr(KF,4)}, {vr(QF,4)}, 0""")
    pt_load()
    if FORCE_SLOW: a("s_branch L_preslow")
    CI_ = 149
    def fast(first):
        def mSv(k, Dd):
            if not first or k == 7: a(mS(k, Dd)); return
            inv = f"{MFMA} {vr(Dd,16)}, {vr(KF+4*(k%3),4)}, {vr(QF,4)}, {vr(CI_+1,16)}"
            if k == 8: a(inv); return
            a(f"""s_cmp_gt_u32 s{sNF}, {k}
                  s_cbranch_scc1 L_fv{k}
                  {inv}
                  s_branch L_fw{k}""")
            a.label(f"L_fv{k}")
            a(mS(k, Dd))
            a.label(f"L_fw{k}")
        if first:
            for r in range(16): a(f"v_mov_b32 v{CI_+1+r}, v{NINF}")
        a(f"""s_nop {4 if MODE == 'auto' else 9}
          v_max3_f32 v{MX}, v{S+16}, v{S+17}, v{S+18}
          v_max3_f32 v10, v{S+19}, v{S+20}, v{S+21}
          v_max3_f32 v11, v{S+22}, v{S+23}, v{S+24}
          v_max3_f32 v{MX}, v{S+25}, v{S+26}, v{MX}
          v_max3_f32 v10, v{S+27}, v{S+28}, v10
          v_max3_f32 v11, v{S+29}, v{S+30}, v11
          v_max3_f32 v{MX}, v{S+31}, v{MX}, v10
          v_max_f32 v{MX}, v{MX}, v11""")
        xhalf_max()
        a(f"v_sub_f32 v{CN}, 0xc2400000, v{MX}")
        for r in range(1, 16): a(f"v_mov_b32 v{CN+r}, v{CN}")
        a("s_nop 1")
        a(mS(0, S))
        prev = None
        for n in range(8):
            Sn = S + 16*(n % 2); Vn = VF + 8*(n % 2)
            P_ = PP if n % 2 == 0 else P2
            ex = lambda r: a(f"v_exp_f32 v{Sn+r}, v{Sn+r}")
            cv = lambda t: a(f"v_cvt_pk_bf16_f32 v{P_+t}, v{Sn+2*t}, v{Sn+2*t+1}")
            if n in (3, 5, 7): a(f"s_setprio {({3:2,5:1,7:0})[n]}")
            if n in (2, 4): a("s_barrier")
            if n == 0:
                a("s_waitcnt lgkmcnt(2)"); mSv(1, S+16); a("s_barrier"); a(rdK(2)); a(rdV(1)); a("s_nop 3")
            if n == 7:
                a(prev); a("s_nop 3")
                for r in range(16): a(f"v_cndmask_b32 v{Sn+r}, v{S3+r}, v{Sn+r}, s[{64+2*r}:{65+2*r}]")
            for r in range(4): ex(r)
            if 0 < n < 7: a(prev)
            if n == 7: a(rdV(8))
            for r in range(4, 8): ex(r)
            if 0 < n < 7:
                a("s_waitcnt lgkmcnt(2)"); mSv(n+1, S + 16*((n+1) % 2))
                a(rdK(n+2)); a(rdV(n+1))
            for t in range(4): cv(t)
            for r in range(8, 12): ex(r)
            if n < 7:
                a("s_waitcnt lgkmcnt(3)")
                a(f"{MFMA} {vr(O,16)}, {vr(Vn,4)}, {vr(P_,4)}, {'0' if n == 0 else vr(O,16)}")
            else:
                for t in range(4): a(f"v_and_b32 v{PP+t}, v{MK+t}, v{P_+t}\nv_xor_b32 v{P_+t}, v{PP+t}, v{P_+t}")
                a("s_waitcnt lgkmcnt(2)")
                a(f"{MFMA} {vr(O,16)}, {vr(Vn,4)}, {vr(PP,4)}, {vr(O,16)}")
            ex(12); ex(13)
            if n == 6: a("s_waitcnt lgkmcnt(2)"); mSv(8, S3)
            if n == 7: a("s_waitcnt lgkmcnt(0)"); a(f"{MFMA} {vr(O,16)}, {vr(VF,4)}, {vr(P2,4)}, {vr(O,16)}")
            ex(14); ex(15)
            for t in range(4, 8): cv(t)
            prev = f"{MFMA} {vr(O,16)}, {vr(Vn+4,4)}, {vr(P_+4,4)}, {vr(O,16)}"
        for t in range(4, 8): a(f"v_and_b32 v{PP+t}, v{MK+t}, v{P2+t}\nv_xor_b32 v{P2+t}, v{PP+t}, v{P2+t}")
        a(f"""s_nop 0
          {MFMA} {vr(O,16)}, {vr(VF+12,4)}, {vr(PP+4,4)}, {vr(O,16)}
          {MFMA} {vr(O,16)}, {vr(VF+4,4)}, {vr(P2+4,4)}, {vr(O,16)}
          s_waitcnt vmcnt(0)
          v_cmp_ne_u32 s[6:7], s{sPTV}, v148
          v_mov_b32 v14, 0x7f800000
          s_nop 8
          v_add_f32 v10, |v{O}|, |v{O+1}|
          v_add_f32 v11, |v{O+2}|, |v{O+3}|
          v_add_f32 v12, |v{O+4}|, |v{O+5}|
          v_add_f32 v13, |v{O+6}|, |v{O+7}|
          v_add_f32 v10, v10, v11
          v_add_f32 v12, v12, v13
          v_mul_f32 v11, 0x5f800000, v{O+8}
          v_add_f32 v10, v10, v12
          v_add_f32 v11, v10, v11
          v_rcp_f32 v10, v{O+8}
          v_cmp_lt_f32 vcc, v11, v14
          s_cmp_eq_u64 vcc, -1
          s_cbranch_scc1 L_norm
          s_branch L_slow""")
    a(f"""s_cmp_eq_u32 s{sR}, 0
          s_cbranch_scc1 L_first""")
    fast(False)
    a.label("L_first")
    a(f"""s_cmp_eq_u32 s{sNF}, 0
          s_cbranch_scc1 L_preslow""")
    fast(True)
    a.label("L_preslow")
    a("s_barrier\ns_barrier\ns_barrier")
    a.label("L_slow")
    a(f"""s_setprio 0
          s_sub_u32 s3, 8, s{sNF}
          s_lshl_b32 s3, s3, 10
          s_waitcnt lgkmcnt(0)""")
    for x in masks("0"): a(x)
    a(f"""ds_read_b128 {vr(KF,4)}, v{KA} offset:{8*1024}
          s_waitcnt lgkmcnt(0)
          {MFMA} {vr(S,16)}, {vr(KF,4)}, {vr(QF,4)}, {vr(CD,16)}
          s_nop 11""")
    maxblk(S, True)
    a(f"""s_cmp_eq_u32 s{sR}, 0
          s_cbranch_scc1 L_s1nofar
          ds_read_b128 {vr(KF,4)}, v{KA}
          s_waitcnt lgkmcnt(0)
          {MFMA} {vr(S,16)}, {vr(KF,4)}, {vr(QF,4)}, {vr(CF,16)}
          s_nop 11""")
    maxblk(S, False)
    a.label("L_s1nofar")
    a(f"""s_mov_b32 s{sI}, s{sNF}
          v_add_u32 v10, s3, v{KA}
          s_cmp_eq_u32 s{sI}, 0
          s_cbranch_scc1 L_s1done""")
    a.label("L_s1loop")
    a(f"""ds_read_b128 {vr(KF,4)}, v10
          v_add_u32 v10, 1024, v10
          s_waitcnt lgkmcnt(0)
          {MFMA} {vr(S,16)}, {vr(KF,4)}, {vr(QF,4)}, 0
          s_nop 11""")
    maxblk(S, False)
    a(f"""s_sub_u32 s{sI}, s{sI}, 1
          s_cmp_lg_u32 s{sI}, 0
          s_cbranch_scc1 L_s1loop""")
    a.label("L_s1done")
    xhalf_max()
    a(f"v_sub_f32 v{MX}, 0, v{MX}")
    for x in masks(f"v{MX}"): a(x)
    for r in range(16): a(f"v_mov_b32 v{CN+r}, v{MX}")
    def pvblk(kaddr, vaddr, off, C, first):
        a(f"""ds_read_b128 {vr(KF,4)}, v{kaddr} offset:{off}
              s_mov_b64 exec, s[{sVM}:{sVM+1}]
              ds_read_b128 {vr(VF,4)}, v{vaddr} offset:{off}
              ds_read_b128 {vr(VF+4,4)}, v{vaddr} offset:{off+512}
              s_mov_b64 exec, -1
              s_waitcnt lgkmcnt(0)
              {MFMA} {vr(S,16)}, {vr(KF,4)}, {vr(QF,4)}, {vr(C,16)}
              s_nop 11""")
        for r in range(16): a(f"v_exp_f32 v{S+r}, v{S+r}")
        for t in range(8): a(f"v_cvt_pk_bf16_f32 v{PP+t}, v{S+2*t}, v{S+2*t+1}")
        a("s_nop 1")
        a(f"{MFMA} {vr(O,16)}, {vr(VF,4)}, {vr(PP,4)}, {'0' if first else vr(O,16)}")
        a(f"{MFMA} {vr(O,16)}, {vr(VF+4,4)}, {vr(PP+4,4)}, {vr(O,16)}")
    pvblk(KA, VA_, 8*1024, CD, True)
    a(f"""s_cmp_eq_u32 s{sR}, 0
          s_cbranch_scc1 L_s2nofar""")
    pvblk(KA, VA_, 0, CF, False)
    a.label("L_s2nofar")
    a(f"""s_mov_b32 s{sI}, s{sNF}
          v_add_u32 v10, s3, v{KA}
          v_add_u32 v11, s3, v{VA_}
          s_cmp_eq_u32 s{sI}, 0
          s_cbranch_scc1 L_s2done""")
    a.label("L_s2loop")
    pvblk(10, 11, 0, CN, False)
    a(f"""v_add_u32 v10, 1024, v10
          v_add_u32 v11, 1024, v11
          s_sub_u32 s{sI}, s{sI}, 1
          s_cmp_lg_u32 s{sI}, 0
          s_cbranch_scc1 L_s2loop""")
    a.label("L_s2done")
    a(f"""s_waitcnt vmcnt(0)
          v_cmp_ne_u32 s[6:7], s{sPTV}, v148
          s_nop 12
          v_rcp_f32 v10, v{O+8}
          s_nop 0""")
    a.label("L_norm")
    for t in range(8): a(f"v_mul_f32 v{O+t}, v10, v{O+t}")
    for t in range(4): a(f"v_cvt_pk_bf16_f32 v{PP+t}, v{O+2*t}, v{O+2*t+1}")
    a(f"s_add_u32 s4, s{sQO}, {WS_O}")
    if MODE == "auto":
        a(f"""s_cmp_eq_u64 s[6:7], 0
              s_cbranch_scc0 L_ox
              buffer_store_dwordx4 {vr(PP,4)}, v1, s[{SWS}:{SWS+3}], s4 offen""")
        stamp(a, 13)
        publish(a, sF2, 10, flav="")
        a("s_branch L_od")
        a.label("L_ox")
    a(f"buffer_store_dwordx4 {vr(PP,4)}, v1, s[{SWS}:{SWS+3}], s4 offen {ST}")
    stamp(a, 13 if MODE != "auto" else 19)
    publish(a, sF2, 10)
    a.label("L_od")
    stamp(a, 14)
    a(f"""s_barrier
          s_cmp_ge_u32 s{sW}, 4
          s_cbranch_scc1 L_fin""")
    OA, WA2, ACC2, FR2 = 8, 9, 16, 32
    a(f"""s_and_b32 s5, s{sW}, 1
          s_lshl_b32 s3, s5, 10
          v_add_u32 v{OA}, s3, v1
          v_lshrrev_b32 v2, 5, v0
          v_bfe_u32 v3, v0, 2, 2
          v_lshl_add_u32 v4, v2, 2, v3
          v_lshlrev_b32 v4, 7, v4
          v_bfe_u32 v5, v0, 4, 1
          v_lshlrev_b32 v5, 1, v5
          v_and_b32 v6, 1, v0
          v_add_u32 v5, v5, v6
          s_and_b32 s3, s{sW}, 2
          s_lshl_b32 s3, s3, 1
          v_add_u32 v5, s3, v5
          v_bfe_u32 v6, v0, 3, 1
          v_lshlrev_b32 v6, 2, v6
          v_xor_b32 v5, v5, v6
          v_lshl_add_u32 v4, v5, 4, v4
          v_bfe_u32 v6, v0, 1, 1
          v_lshl_add_u32 v4, v6, 3, v4
          v_add_u32 v{WA2}, {WO_BASE}, v4
          v_and_b32 v14, 31, v0
          s_lshl_b32 s3, s{sTB}, 6
          s_lshl_b32 s5, s5, 5
          s_add_u32 s3, s3, s5
          v_add_u32 v14, s3, v14
          v_lshlrev_b32 v14, 11, v14
          v_lshl_add_u32 v14, v2, 4, v14
          s_lshl_b32 s3, s{sHG}, 7
          s_and_b32 s5, s{sW}, 2
          s_lshl_b32 s5, s5, 5
          s_add_u32 s3, s3, s5
          s_add_u32 s3, s3, 1024
          v_add_u32 v14, s3, v14""")
    def wrd(hd, f):
        return [f"ds_read_b64_tr_b16 {vr(f+4+2*q,2)}, v{WA2} offset:{hd*2048 + q*1024}" for q in range(2)]
    for k in range(8):
        for x in wrd(k, FR2+8*k): a(x)
    a("s_barrier")
    stamp(a, 16)
    for qd in range(4):
        if qd: a("s_barrier")
        for k in range(8): a(f"ds_read_b128 {vr(FR2+64*(qd%2)+8*k,4)}, v{OA} offset:{(8*qd+k)*2048}")
        for k in range(8):
            f = FR2 + 64*(qd % 2) + 8*k
            fn = FR2 + 64*((qd+1) % 2) + 8*k
            a(f"s_waitcnt lgkmcnt({min(15, 7-k + (2*k if qd < 3 else 0))})")
            c = "0" if (qd == 0 and k == 0) else vr(ACC2,16)
            a(f"{MFMA} {vr(ACC2,16)}, {vr(f+4,4)}, {vr(f,4)}, {c}")
            if qd < 3:
                for x in wrd(8*(qd+1)+k, fn): a(x)
    a("s_nop 15")
    for mm in range(2):
        for t in range(4):
            a(f"v_cvt_pk_bf16_f32 v{FR2+4*mm+t}, v{ACC2+8*mm+2*t}, v{ACC2+8*mm+2*t+1}")
        a(f"buffer_store_dwordx4 {vr(FR2+4*mm,4)}, v14, s[{SOUT}:{SOUT+3}], 0 offen offset:{32*mm}")
    stamp(a, 17)
    a.label("L_fin")
    stamp_flush(a, 18)
    a.label("L_end")
    a("s_endpgm")
    return a

def main():
    a = gen()
    hdr = f"""; {NAME} : one fused kernel (generated by my gen11.py)
; @launch grid=(256,1,1) block=(768,1,1) lds=163840
.amdgcn_target "amdgcn-amd-amdhsa--gfx950"
.text
"""
    kd = f""".section .rodata,"a"
.p2align 6
.amdhsa_kernel {KN}
  .amdhsa_next_free_vgpr 168
  .amdhsa_next_free_sgpr 102
  .amdhsa_accum_offset 168
  .amdhsa_group_segment_fixed_size 0
  .amdhsa_kernarg_size 88
  .amdhsa_user_sgpr_count 2
  .amdhsa_user_sgpr_kernarg_segment_ptr 1
  .amdhsa_system_sgpr_workgroup_id_x 1
.end_amdhsa_kernel
"""
    path = sys.argv[1] if len(sys.argv) > 1 and sys.argv[1].endswith(".s") else f"cdna_kernels/{NAME}.s"
    open(path, "w").write(hdr + a.text() + kd)
main()
```

```python
import sys, struct, math

NAME = "concat_heads__spectral_fnet__sliding_block__prompt"
KN = NAME + "_kernel"
WS_Q, WS_K, WS_V, WS_O, WS_U = 0, 2 << 20, 4 << 20, 6 << 20, 8 << 20
WS_F1, WS_F2, WS_PT, WS_F3 = (11 << 20), (11 << 20) + 0x20000, (11 << 20) + 0x60000, (11 << 20) + 0x70000
U_ROW = 4224
U_GP = 16 * U_ROW
U_SIZE = 32 * U_GP
QSCALE = 0.25 * math.log2(math.e)
uid = [0]
STAMP = "--stamp" in sys.argv
FORCE_SLOW = "--slow" in sys.argv
SKIP = set(int(x) for x in sys.argv[sys.argv.index("--skip")+1].split(",")) if "--skip" in sys.argv else set()
ST = sys.argv[sys.argv.index("--st")+1].replace("+", " ") if "--st" in sys.argv else "sc1"
LD = "sc1"
SPIN_MAX = 30000
def opt(name, default):
    return type(default)(sys.argv[sys.argv.index(name)+1]) if name in sys.argv else default
PDELAY = opt("--pdelay", 0)
PIPE = "--pipe" in sys.argv
FULLF = "--fullf" in sys.argv
KVLD = sys.argv[sys.argv.index("--kvld")+1].replace("+", " ").replace("none", "") if "--kvld" in sys.argv else "sc1"
A2ST = "sc1" if "--a2sc1" in sys.argv else ""
WB = "--wb" in sys.argv

def f2u(x): return struct.unpack("<I", struct.pack("<f", x))[0]

class Asm:
    def __init__(self): self.L = []
    def __call__(self, s):
        for line in s.strip("\n").split("\n"):
            line = line.strip()
            if line: self.L.append("  " + line)
    def label(self, n): self.L.append(n + ":")
    def text(self): return "\n".join(self.L) + "\n"

def vr(b, n=1): return f"v{b}" if n == 1 else f"v[{b}:{b+n-1}]"
MFMA = "v_mfma_f32_32x32x16_bf16"

kAX, kSR, kSI, kDR, kDI, kBX, kWQ, kWO, kOUT, kDBG, kWS = 64, 66, 68, 70, 72, 74, 76, 78, 80, 82, 84
sTB, sHG, sJ, sW, sNON = 16, 17, 18, 19, 20
sHD, sR = 21, 22
SWS = 32
VST = 167

def srd(a, d, k, size, off=0):
    if off:
        a(f"s_add_u32 s{d}, s{k}, {off}\ns_addc_u32 s{d+1}, s{k+1}, 0")
    else:
        a(f"s_mov_b32 s{d}, s{k}\ns_mov_b32 s{d+1}, s{k+1}")
    a(f"s_mov_b32 s{d+2}, {size}\ns_mov_b32 s{d+3}, 0x20000")

AMP = [int(x) for x in sys.argv[sys.argv.index("--amp")+1].split(",")] if "--amp" in sys.argv else None
def amp_end(a):
    if not AMP: return
    uid[0] += 1
    L = f"amp{uid[0]}"
    a(f"""s_cmp_lg_u32 s2, {AMP[3]}
          s_cbranch_scc1 {L}x
          s_cmp_lg_u32 s{sW}, {AMP[4]}
          s_cbranch_scc1 {L}x
          s_waitcnt vmcnt(0)
          s_memrealtime s[62:63]
          s_sub_u32 s100, s101, s100
          s_min_u32 s100, s100, 10000
          s_mul_i32 s100, s100, {AMP[2]}
          s_waitcnt lgkmcnt(0)
          s_add_u32 s100, s100, s62""")
    a.label(L)
    a(f"""s_memrealtime s[62:63]
          s_waitcnt lgkmcnt(0)
          s_sub_u32 s61, s62, s100
          s_cmp_lt_i32 s61, 0
          s_cbranch_scc1 {L}""")
    a.label(L + "x")
GMAX = None
def stamp(a, idx):
    if AMP and idx in AMP[:2]:
        a(f"""s_memrealtime s[62:63]
              s_waitcnt lgkmcnt(0)
              s_mov_b32 s{100 + AMP[:2].index(idx)}, s62""")
    if not STAMP: return
    if idx in SKIP: return
    a(f"""s_memrealtime s[96:97]
          s_memtime s[98:99]
          s_waitcnt lgkmcnt(0)
          v_writelane_b32 v{VST}, s96, {idx}
          v_writelane_b32 v{VST}, s98, {idx+32}""")
def stamp_flush(a, idx):
    if AMP:
        if idx in AMP[:2]: a("s_waitcnt vmcnt(0)")
        stamp(a, idx)
        amp_end(a)
    if not STAMP: return
    a("s_waitcnt vmcnt(0)")
    stamp(a, idx)
    srd(a, 88, SWS, 0x100000, 16 << 20)
    a(f"""s_mov_b64 exec, -1
          s_lshl_b32 s92, s2, 12
          s_lshl_b32 s93, s{sW}, 8
          s_add_u32 s92, s92, s93
          v_mbcnt_lo_u32_b32 v2, -1, 0
          v_mbcnt_hi_u32_b32 v2, -1, v2
          v_lshlrev_b32 v2, 2, v2
          buffer_store_dword v{VST}, v2, s[88:91], s92 offen""")

def poll(a, vaddr, vtmp, nl_mask, srdreg=SWS):
    uid[0] += 1
    L = f"poll{uid[0]}"
    a(f"""s_mov_b32 s60, 0
          s_mov_b64 exec, {nl_mask}""")
    a.label(L)
    a(f"""buffer_load_dword v{vtmp}, v{vaddr}, s[{srdreg}:{srdreg+3}], 0 offen sc1
          s_add_u32 s60, s60, 1
          s_cmp_gt_u32 s60, {SPIN_MAX}
          s_cbranch_scc1 {L}x
          s_waitcnt vmcnt(0)
          v_cmp_ne_u32 vcc, s{sNON}, v{vtmp}
          s_cbranch_vccnz {L}""")
    a.label(L + "x")
    a("s_mov_b64 exec, -1")

def poll_pipe(a, vaddr, vt, nl_mask, gap=2):
    uid[0] += 1
    L = f"pp{uid[0]}"
    ld = lambda k: f"buffer_load_dword v{vt+k}, v{vaddr}, s[{SWS}:{SWS+3}], 0 offen sc1"
    a(f"""s_mov_b32 s60, 0
          s_mov_b64 exec, {nl_mask}
          {ld(0)}
          s_sleep {gap}
          {ld(1)}""")
    a.label(L)
    for k in range(3):
        a(f"""s_sleep {gap}
              {ld((k+2)%3)}
              s_waitcnt vmcnt(2)
              v_cmp_ne_u32 vcc, s{sNON}, v{vt+k}
              s_cbranch_vccz {L}x""")
    a(f"""s_add_u32 s60, s60, 1
          s_cmp_lt_u32 s60, {SPIN_MAX}
          s_cbranch_scc1 {L}""")
    a.label(L + "x")
    a("s_mov_b64 exec, -1")

def poll2(a, va, vt):
    uid[0] += 1
    L = f"pq{uid[0]}"
    a("s_mov_b32 s60, 0")
    a.label(L)
    a(f"""buffer_load_dwordx2 v[{vt}:{vt+1}], v{va}, s[{SWS}:{SWS+3}], 0 offen sc1
          s_add_u32 s60, s60, 1
          s_cmp_gt_u32 s60, {SPIN_MAX}
          s_cbranch_scc1 {L}x
          s_waitcnt vmcnt(0)
          v_cmp_ne_u32 vcc, s{sNON}, v{vt}
          v_cmp_ne_u32 s[4:5], s{sNON}, v{vt+1}
          s_or_b64 vcc, vcc, s[4:5]
          s_cbranch_vccnz {L}""")
    a.label(L + "x")

def publish(a, soff, vtmp, cnt=0, flav=None):
    if FULLF:
        a(f"""v_mov_b32 v{vtmp}, s{sNON}
              v_mov_b32 v{vtmp+1}, s{sNON}
              s_waitcnt vmcnt({cnt})
              s_mov_b64 exec, 0xffff
              buffer_store_dwordx2 v[{vtmp}:{vtmp+1}], v166, s[{SWS}:{SWS+3}], s{soff} offen {ST if flav is None else flav}
              s_mov_b64 exec, -1""")
        return
    a(f"""s_waitcnt vmcnt({cnt})
          v_mov_b32 v{vtmp}, s{sNON}
          s_mov_b64 exec, 1
          buffer_store_dword v{vtmp}, off, s[{SWS}:{SWS+3}], s{soff} {ST if flav is None else flav}
          s_mov_b64 exec, -1""")

def nonce_wait(a, vtmp, first_loaded):
    uid[0] += 1
    L = f"non{uid[0]}"
    a("s_mov_b32 s60, 0")
    if first_loaded:
        a(f"s_branch {L}c")
    a.label(L)
    a(f"""buffer_load_dword v{vtmp}, off, s[56:59], 0 sc1
          s_waitcnt vmcnt(0)""")
    a.label(L + "c")
    a(f"""v_readfirstlane_b32 s{sNON}, v{vtmp}
          s_add_u32 s60, s60, 1
          s_cmp_gt_u32 s60, {SPIN_MAX}
          s_cbranch_scc1 {L}x
          s_cmp_eq_u32 s{sNON}, 0
          s_cbranch_scc1 {L}""")
    a.label(L + "x")

def diag_mask(r):
    g, i = r // 4, r % 4
    return (0xffffffff << (8*g+i)) & 0xffffffff, (0xffffffff << (8*g+i+4)) & 0xffffffff

MODE = sys.argv[sys.argv.index("--mode")+1] if "--mode" in sys.argv else "auto"
A2ST = ""
XR, WR, WSL = 0, 65536, 24576
NS = opt('--ns', 3)
QSLOT = [WR + 2*WSL, WR, WR + 3*WSL, WR + WSL] if NS == 3 else [WR + k*WSL for k in range(4)]
UPN = opt('--upn', 1)
PUBU = opt('--pubu', 1)
Q_BASE = 81920
WO_BASE = 98304
HSTR = 20480
UF = 64
sX = sR

def gen():
    a = Asm()
    a.L += [f".globl {KN}", ".p2align 8", f".type {KN},@function"]
    a.label(KN)
    a(f"""s_cmp_ge_u32 s2, 256
          s_cbranch_scc1 L_end
          s_load_dwordx16 s[64:79], s[0:1], 0
          s_load_dwordx4 s[80:83], s[0:1], 64
          s_load_dwordx2 s[84:85], s[0:1], 80
          v_lshrrev_b32 v1, 6, v0
          v_and_b32 v0, 63, v0
          s_and_b32 s{sX}, s2, 7
          v_readfirstlane_b32 s{sW}, v1
          s_lshr_b32 s{sJ}, s2, 3
          s_lshl_b32 s3, s{sX}, 2
          s_and_b32 s4, s{sJ}, 3
          s_add_u32 s{sTB}, s3, s4
          s_lshr_b32 s{sHG}, s2, 5
          s_xor_b32 s{sHG}, s{sHG}, {opt("--hgx", 0)}""")
    if FULLF: a("v_lshlrev_b32 v166, 3, v0")
    if STAMP: a(f"v_mov_b32 v{VST}, 0")
    stamp(a, 0)
    a(f"""s_cmp_lt_u32 s{sW}, 8
          s_cbranch_scc1 L_consumer""")
    sQO, sF2, sPTV = 12, 13, 14
    def pt_load():
        if MODE == "auto":
            a(f"""v_and_b32 v147, 31, v0
                  v_lshl_add_u32 v147, v147, 3, s{sX}
                  v_lshlrev_b32 v147, 7, v147
                  v_add_u32 v147, {WS_PT}, v147
                  buffer_load_dword v148, v147, s[{SWS}:{SWS+3}], 0 offen sc1""")
    sLW, sROT, sSOX, sSOW, sMX, sMW, sTY = 23, 15, 28, 29, 30, 31, 27
    SX, SWD, SAX = 36, 40, 48
    SWOD, SOUT = 44, 40
    sC0 = 24
    XO, WO_, XA1 = 8, 10, 14
    sRA, sAX = 21, 25
    a(f"""s_sub_u32 s{sLW}, s{sW}, 8
          s_lshl_b32 s3, s{sTB}, 2
          s_add_u32 s3, s3, s{sLW}
          s_lshl_b32 s3, s3, 14                    ; (64tb + 16lw)*1024
          v_lshrrev_b32 v1, 3, v0
          v_and_b32 v2, 7, v0
          v_lshrrev_b32 v3, 4, v0
          v_xor_b32 v4, v3, v2
          v_xor_b32 v5, 4, v4
          v_lshlrev_b32 v4, 4, v4
          v_lshlrev_b32 v5, 4, v5
          v_lshl_add_u32 v6, v1, 10, s3
          v_add_u32 v{XO}, v6, v4
          v_add3_u32 v{XO+1}, v6, v5, s4
          v_and_b32 v6, 1, v3
          v_lshlrev_b32 v6, 2, v6
          v_xor_b32 v6, v6, v2
          s_lshl_b32 s3, s{sHG}, 7
          v_lshl_add_u32 v6, v6, 4, s3
          s_and_b32 s3, s{sLW}, 1
          s_lshl_b32 s3, s3, 5
          v_add_u32 v7, s3, v1
          s_movk_i32 s3, 3072
          v_mad_u32_u24 v{WO_}, v7, s3, v6""".replace("v_add3_u32 v9, v6, v5, s4", "v_add_u32 v9, v6, v5\n          v_add_u32 v9, 8192, v9"))
    for jw in range(1, 4): a(f"v_add_u32 v{WO_+jw}, {8*3072*jw}, v{WO_}")
    a(f"""s_and_b32 s3, s{sJ}, 3
          s_lshl_b32 s3, s3, 1
          s_add_u32 s3, s3, s{sHG}
          s_add_u32 s3, s3, s{sX}
          s_and_b32 s{sROT}, s3, {opt('--rmask', 7)}
          s_lshr_b32 s{sTY}, s{sLW}, 1
          s_lshl_b32 s{sTY}, s{sTY}, 10
          s_add_u32 s{sTY}, s{sTY}, 1024
          s_lshl_b32 s{sSOX}, s{sROT}, 7
          s_mul_i32 s{sSOW}, s{sROT}, {64*3072}
          s_add_u32 s{sSOW}, s{sSOW}, s{sTY}
          s_lshl_b32 s{sMX}, s{sLW}, 11
          s_lshl_b32 s{sMW}, s{sLW}, 12
          s_lshr_b32 s3, s{sX}, 1
          s_lshl_b32 s3, s3, 3
          s_and_b32 s4, s{sJ}, 7
          s_add_u32 s3, s3, s4
          s_lshl_b32 s3, s3, 1
          s_lshr_b32 s4, s{sLW}, 1
          s_add_u32 s3, s3, s4
          s_lshl_b32 s3, s3, 10
          s_and_b32 s4, s{sLW}, 1
          s_lshl_b32 s4, s4, 20
          s_add_u32 s3, s3, s4
          v_lshl_add_u32 v6, v1, {10 if '--xcont' in sys.argv else 16}, s3
          v_add_u32 v{XA1}, v6, v4
          v_add_u32 v{XA1+1}, v6, v5
          v_add_u32 v{XA1+1}, {8*1024 if '--xcont' in sys.argv else 8*65536}, v{XA1+1}
          s_lshr_b32 s3, s{sJ}, 3
          s_lshl_b32 s3, s3, 1
          s_and_b32 s4, s{sX}, 1
          s_add_u32 s{sRA}, s3, s4
          s_and_b32 s{sRA}, s{sRA}, {opt('--amask', 7)}
          s_lshl_b32 s{sAX}, s{sRA}, 7
          s_waitcnt lgkmcnt(0)""")
    srd(a, SX, kBX, 0x200000)
    srd(a, SAX, kAX, 0x200000)
    srd(a, SWD, kWQ, 0x180000)
    stamp(a, 1)
    def dma(sm0, m0off, v, S, so):
        a(f"""s_add_u32 m0, s{sm0}, {m0off}
              s_nop 0
              buffer_load_dwordx4 v{v}, s[{S}:{S+3}], s{so} offen lds""")
    def issue(st):
        if st < 8:
            for j in range(2): dma(sMX, XR + st*8192 + j*1024, XO+j, SX, sSOX)
        base = WR + (st % NS)*WSL if st < 8 else QSLOT[st-8]
        for j in range(4): dma(sMW, base + j*1024, WO_+j, SWD, sSOW)
        if st < 8:
            for j in range(2): dma(sMX, base + 16384 + j*1024, XO+j if '--xsame' in sys.argv else XA1+j, SX if '--xsame' in sys.argv else SAX, sSOX if '--xsame' in sys.argv else sAX)
        if st < 7:
            a(f"""s_add_u32 s{sROT}, s{sROT}, 1
                  s_and_b32 s{sROT}, s{sROT}, 7
                  s_lshl_b32 s{sSOX}, s{sROT}, 7
                  s_mul_i32 s{sSOW}, s{sROT}, {64*3072}
                  s_add_u32 s{sSOW}, s{sSOW}, s{sTY}
                  s_add_u32 s{sAX}, s{sAX}, 128
                  s_and_b32 s{sAX}, s{sAX}, 1023""")
        elif st < 11:
            if st == 7:
                a(f"""s_lshr_b32 s3, s{sLW}, 1
                      s_add_u32 s3, s3, 1
                      s_add_u32 s{sROT}, s{sROT}, s3""")
            else:
                a(f"s_add_u32 s{sROT}, s{sROT}, 2")
            a(f"""s_and_b32 s{sROT}, s{sROT}, 7
                  s_mul_i32 s{sSOW}, s{sROT}, {64*3072}""")
    issue(0); issue(1)
    if NS == 4: issue(2)
    srd(a, SWS, kWS, 0x1000000)
    srd(a, 56, kDBG, 256)
    a(f"""          ; wo voffset: (128lw + (i>>3))*1024 + hg*128 + ((i&7) ^ (((i>>4)&1)<<2))*16
          v_and_b32 v6, 1, v3
          v_lshlrev_b32 v6, 2, v6
          v_xor_b32 v6, v6, v2
          s_lshl_b32 s3, s{sLW}, 17
          s_lshl_b32 s4, s{sHG}, 7
          s_add_u32 s3, s3, s4
          v_lshl_add_u32 v6, v6, 4, s3
          v_lshl_add_u32 v19, v1, 10, v6
          s_lshl_b32 s6, s{sX}, 1
          s_and_b32 s4, s{sJ}, 1
          s_add_u32 s6, s6, s4                    ; tc
          s_lshr_b32 s7, s{sJ}, 1                 ; cr16
          s_lshl_b32 s{sC0}, s7, 5
          s_lshr_b32 s4, s6, 2
          s_lshl_b32 s4, s4, 3
          s_and_b32 s5, s6, 3
          s_add_u32 s4, s4, s5
          s_and_b32 s5, s{sW}, 1
          s_lshl_b32 s5, s5, 2
          s_add_u32 s5, s4, s5                    ; t1 source
          s_sub_u32 s4, 32, s5
          s_and_b32 s4, s4, 31
          s_cmp_lt_u32 s2, 128
          s_cselect_b32 s8, s5, s4
          s_cselect_b64 vcc, -1, 0
          v_and_b32 v5, 31, v0
          s_and_b32 s4, s{sW}, 2
          s_lshl_b32 s4, s4, 4
          v_add_u32 v5, s4, v5
          v_lshl_add_u32 v20, v5, 5, s8
          v_lshrrev_b32 v7, 5, v0                 ; h
          v_sub_u32 v6, 2048, v20
          v_cndmask_b32 v6, v6, v20, vcc
          v_cvt_f32_u32 v6, v6
          v_mul_f32 v17, 0x3a000000, v6
          v_lshlrev_b32 v6, 5, v7
          v_cvt_f32_u32 v6, v6
          v_mul_f32 v28, v17, v6
          v_and_b32 v5, 0x13, v0
          v_bfe_u32 v6, v0, 2, 1
          v_lshl_or_b32 v5, v6, 3, v5
          v_bfe_u32 v6, v0, 3, 1
          v_lshl_or_b32 v5, v6, 2, v5
          v_add_u32 v5, s{sC0}, v5                ; c
          v_sub_u32 v6, 512, v5
          v_cndmask_b32 v5, v6, v5, vcc           ; e
          s_mul_i32 s4, s6, {U_ROW}
          s_and_b32 s5, s{sW}, 1
          s_lshl_b32 s5, s5, 3
          s_add_u32 s4, s4, s5
          s_add_u32 s4, s4, {WS_U}
          v_lshl_add_u32 v5, v5, 4, s4
          s_mov_b32 s5, {16*U_GP}
          v_mad_u32_u24 v22, v7, s5, v5           ; U address
          s_sub_u32 s5, 15, s7
          s_cmp_lt_u32 s2, 128
          s_cselect_b32 s4, s7, s5                ; e block b
          s_cselect_b32 s5, 0, 1
          v_mul_u32_u24 v5, s5, v7
          v_add_u32 v5, s4, v5
          v_and_b32 v5, 7, v5
          v_and_b32 v6, 31, v0
          v_lshlrev_b32 v6, 3, v6
          v_lshl_add_u32 v5, v5, 8, v6
          v_add_u32 v21, {WS_F3}, v5
          v_lshrrev_b32 v4, 1, v0
          v_add_u32 v4, s{sTB}, v4
          v_subrev_u32 v4, 4, v4
          v_and_b32 v5, 3, v4
          v_bfe_u32 v4, v4, 2, 3
          v_lshl_add_u32 v4, v5, 3, v4
          s_lshr_b32 s4, s2, 5
          s_lshl_b32 s4, s4, 12
          s_and_b32 s5, s{sLW}, 2
          s_lshl_b32 s5, s5, 2
          s_add_u32 s4, s4, s5
          v_lshl_add_u32 v4, v4, 7, s4
          v_and_b32 v5, 1, v0
          v_lshl_add_u32 v4, v5, 2, v4
          v_add_u32 v16, {WS_F1}, v4
          v_lshlrev_b32 v1, 4, v0
          s_lshl_b32 s9, s{sHG}, 2
          s_add_u32 s9, s9, s{sLW}
          s_lshl_b32 s5, s{sTB}, 11
          s_lshl_b32 s6, s9, 16
          s_add_u32 s10, s5, s6
          s_add_u32 s5, s10, {WS_O}
          v_lshl_add_u32 v24, v0, 7, s5
          s_lshl_b32 s4, s{sTB}, 6
          s_lshl_b32 s5, s{sLW}, 1
          s_add_u32 s4, s4, s5
          v_bfe_u32 v4, v0, 2, 2
          v_bfe_u32 v5, v0, 1, 1
          v_lshl_add_u32 v4, v4, 3, v5
          v_and_b32 v5, 1, v0
          v_lshl_add_u32 v4, v5, 5, v4
          v_add_u32 v4, s4, v4
          v_lshlrev_b32 v4, 2, v4
          v_add_u32 v25, {WS_F2}, v4
          s_lshl_b32 s5, s{sLW}, 17
          s_lshl_b32 s6, s{sTB}, 11
          s_add_u32 s5, s5, s6
          s_add_u32 s13, s5, {WS_O}""")
    MF, A2 = 96, 128
    for i in range(8):
        a(f"""v_add_f32 v29, v28, v17
              v_add_f32 v30, v29, v17
              v_add_f32 v31, v30, v17
              v_cos_f32 v32, v28
              v_cos_f32 v33, v29
              v_cos_f32 v34, v30
              v_cos_f32 v35, v31
              v_sin_f32 v36, v28
              v_sin_f32 v37, v29
              v_sin_f32 v38, v30
              v_sin_f32 v39, v31
              v_add_f32 v28, v31, v17
              v_cvt_pk_bf16_f32 v{MF+4*i}, v32, v36
              v_cvt_pk_bf16_f32 v{MF+4*i+1}, v33, v37
              v_cvt_pk_bf16_f32 v{MF+4*i+2}, v34, v38
              v_cvt_pk_bf16_f32 v{MF+4*i+3}, v35, v39""")
    for i in range(8):
        a(f"s_waitcnt vmcnt({([8]*6 + [9, 5])[i] if NS == 3 else ([16]*5 + [17, 13, 9])[i]})")
        if i in (0, 1, 7): stamp(a, 2+i)
        a("s_barrier")
        issue(i+NS-1)
        if i == 7 and NS == 3: issue(10)
        if i == 8-NS: a("buffer_load_dword v18, off, s[56:59], 0 sc1")
        if i == opt("--qpf", 1):
            a(f"""s_lshl_b32 s4, s2, 1
                  s_lshr_b32 s5, s{sLW}, 1
                  s_add_u32 s4, s4, s5
                  s_mul_i32 s4, s4, 3072
                  s_and_b32 s5, s{sLW}, 1
                  s_lshl_b32 s5, s5, 9
                  s_add_u32 s5, s5, s4
                  s_add_u32 s6, s{kWQ}, s5
                  s_addc_u32 s7, s{kWQ+1}, 0""")
            for k in range(8): a(f"s_load_dword s61, s[6:7], {64*k}")
        if i == 3:
            a(f"""s_lshl_b32 s4, s2, 2
                  s_add_u32 s4, s4, s{sLW}
                  s_lshl_b32 s5, s4, 9
                  s_add_u32 s6, s{kWO}, s5
                  s_addc_u32 s7, s{kWO+1}, 0""")
            for k in range(8): a(f"s_load_dword s61, s[6:7], {64*k}")
    a("s_waitcnt vmcnt(8)")
    stamp(a, 20)
    a("s_barrier")
    issue(11)
    nonce_wait(a, 18, True)
    srd(a, SWOD, kWO, 0x80000)
    srd(a, SOUT, kOUT, 0x400000)
    NT = 3 if MODE == "auto" else 1
    a(f"""s_sub_u32 s3, 4, s{sTB}
          s_max_i32 s3, s3, 0
          s_lshl_b32 s4, s3, 1
          s_lshl_b32 s6, 0xff, s4
          s_and_b32 s6, s6, 0xff
          s_mov_b32 s7, 0
          s_mul_i32 s8, s{sLW}, {HSTR}
          s_add_u32 s8, s8, 6144
          s_add_u32 s10, s10, {WS_K - 2048}
          s_lshl_b32 s30, s{sLW}, 14
          s_mov_b32 s3, 0
          v_mov_b32 v2, 0x7ffffff0
          s_waitcnt vmcnt(8) lgkmcnt(0)
          s_barrier
          s_waitcnt vmcnt(4)
          s_barrier
          s_waitcnt vmcnt(0)""")
    stamp(a, 23)
    a(f"""s_barrier
          s_cmp_eq_u32 s{sTB}, 0
          s_cbranch_scc1 L_kv0""")
    if PDELAY: a(f"s_sleep {PDELAY}")
    if PIPE: poll_pipe(a, 16, 40, "s[6:7]")
    else: poll(a, 16, 5, "s[6:7]")
    stamp(a, 10)
    a.label("L_kv0")
    a("s_barrier")
    stamp(a, 24)
    a.label("L_kvl")
    a(f"""s_cmp_lt_u32 s3, s{sTB}
          s_cbranch_scc1 L_kvr
          v_mov_b32 v1, v2
          s_mov_b32 s10, 0""")
    a.label("L_kvr")
    a(f"""s_mov_b32 m0, s8
          s_add_u32 s4, s10, {WS_V - WS_K}
          buffer_load_dwordx4 v1, s[{SWS}:{SWS+3}], s10 offen {KVLD} lds
          buffer_load_dwordx4 v1, s[{SWS}:{SWS+3}], s10 offen offset:1024 {KVLD} lds
          s_add_u32 m0, s8, 10240
          s_add_u32 s3, s3, 1
          buffer_load_dwordx4 v1, s[{SWS}:{SWS+3}], s4 offen {KVLD} lds
          buffer_load_dwordx4 v1, s[{SWS}:{SWS+3}], s4 offen offset:1024 {KVLD} lds
          s_sub_u32 s8, s8, 2048
          s_sub_u32 s10, s10, 2048
          s_cmp_lt_u32 s3, 4
          s_cbranch_scc1 L_kvl
          v_lshlrev_b32 v1, 4, v0""")
    def wo_grp(g):
        a(f"""s_add_u32 s3, s{sJ}, {g}
              s_and_b32 s3, s3, 3
              s_lshl_b32 s4, s3, 12
              s_add_u32 s4, s4, s30
              s_add_u32 s4, s4, {WO_BASE}
              s_lshl_b32 s5, s3, 15""")
        for jj in range(4):
            a(f"""s_add_u32 m0, s4, {jj*1024}
                  s_add_u32 s6, s5, {jj*8192}
                  buffer_load_dwordx4 v19, s[{SWOD}:{SWOD+3}], s6 offen lds""")
    a("s_waitcnt vmcnt(12)")
    stamp(a, 11)
    a("s_barrier")
    stamp(a, 12)
    a("s_waitcnt vmcnt(8)\ns_barrier")
    if MODE == "auto":
        a(f"""s_mov_b64 exec, 0xffff
              buffer_load_dword v27, v24, s[{SWS}:{SWS+3}], 0 offen
              buffer_load_dword v26, v25, s[{SWS}:{SWS+3}], 0 offen sc1
              s_mov_b64 exec, -1""")
    wo_grp(0)
    a(f"s_waitcnt vmcnt({4 + NT - 1 + 4})\ns_barrier")
    wo_grp(1)
    a(f"""buffer_load_dwordx2 v[4:5], v21, s[{SWS}:{SWS+3}], 0 offen sc1
          s_waitcnt vmcnt({NT - 1 + 9})
          s_barrier""")
    stamp(a, 21)
    wo_grp(2); wo_grp(3)
    a(f"""s_waitcnt vmcnt(8)
          v_cmp_ne_u32 vcc, s{sNON}, v4
          v_cmp_ne_u32 s[4:5], s{sNON}, v5
          s_or_b64 vcc, vcc, s[4:5]
          s_cbranch_vccz L_uok""")
    poll2(a, 21, 4)
    a.label("L_uok")
    stamp(a, 26)
    for js in range(8):
        for b in range(2):
            a(f"""s_mov_b32 s4, {(2*js + b)*U_GP}
                  buffer_load_dwordx2 {vr(UF+4*js+2*b,2)}, v22, s[{SWS}:{SWS+3}], s4 offen {LD}""")
    a(f"""v_lshrrev_b32 v3, 5, v0
          v_lshlrev_b32 v10, 11, v20
          v_lshl_add_u32 v10, v3, 4, v10
          s_lshl_b32 s4, s{sC0}, 1
          v_add_u32 v10, s4, v10""")
    stamp(a, 27)
    if PIPE: poll_pipe(a, 25, 40, 0xffff, 1)
    else: poll(a, 25, 5, 0xffff)
    stamp(a, 15)
    a("s_barrier")
    stamp(a, 14)
    a(f"s_lshl_b32 s30, s{sLW}, 12")
    for j in range(8):
        hd = 8*(j//2) + (j % 2)
        a(f"""s_add_u32 m0, s30, {hd*2048}
              s_add_u32 s7, s13, {hd*65536}
              buffer_load_dwordx4 v1, s[{SWS}:{SWS+3}], s7 offen {LD} lds
              buffer_load_dwordx4 v1, s[{SWS}:{SWS+3}], s7 offen offset:1024 {LD} lds""")
    a("s_waitcnt vmcnt(12)\ns_barrier")
    for js in range(8):
        a(f"{MFMA} {vr(A2,16)}, {vr(UF+4*js,4)}, {vr(MF+4*js,4)}, {'0' if js == 0 else vr(A2,16)}")
    a("s_waitcnt vmcnt(8)\ns_barrier\ns_waitcnt vmcnt(4)\ns_barrier\ns_waitcnt vmcnt(0)\ns_barrier\ns_nop 5")
    for mm in range(2):
        for t in range(4):
            a(f"v_cvt_pk_bf16_f32 v{UF+4*mm+t}, v{A2+8*mm+2*t}, v{A2+8*mm+2*t+1}")
        a(f"buffer_store_dwordx4 {vr(UF+4*mm,4)}, v10, s[{SOUT}:{SOUT+3}], 0 offen offset:{32*mm}")
    stamp(a, 13)
    stamp_flush(a, 18)
    a("s_endpgm")

    a.label("L_consumer")
    sIT, sDEL, sSL = 25, 26, 30
    sMASK = 28
    XA, WA = 8, 12
    ACC = 64
    a(f"""v_and_b32 v1, 31, v0
          v_lshrrev_b32 v2, 5, v0
          v_bfe_u32 v3, v0, 1, 3
          v_xor_b32 v3, v3, v2
          v_lshlrev_b32 v4, 7, v1
          s_or_b32 s3, s2, s{sW}
          s_cmp_lg_u32 s3, 4
          s_waitcnt lgkmcnt(0)""")
    srd(a, 56, kDBG, 256)
    a(f"""s_cbranch_scc1 L_nonpub
          s_cmp_lg_u32 s2, 0
          s_cbranch_scc1 L_nonpub
          s_memrealtime s[4:5]
          s_waitcnt lgkmcnt(0)
          s_or_b32 s4, s4, 1
          v_mov_b32 v5, s4
          s_mov_b64 exec, 1
          buffer_store_dword v5, off, s[56:59], 0 sc0 sc1
          s_mov_b64 exec, -1""")
    a.label("L_nonpub")
    srd(a, SWS, kWS, 0x1000000)
    for kk in range(4):
        a(f"""v_xor_b32 v5, {2*kk}, v3
              v_lshl_add_u32 v{XA+kk}, v5, 4, v4""")
    a(f"""s_getreg_b32 s{sPTV}, hwreg(HW_REG_XCC_ID, 0, 16)
          s_lshl_b32 s{sPTV}, s{sPTV}, 8
          v_bfe_u32 v3, v0, 2, 2
          v_lshl_add_u32 v7, v2, 3, v3             ; 8h + r
          v_lshlrev_b32 v4, 7, v7
          v_bfe_u32 v5, v0, 4, 1
          v_lshlrev_b32 v5, 1, v5
          v_bfe_u32 v6, v0, 1, 1
          v_add_u32 v5, v5, v6
          s_and_b32 s3, s{sW}, 2
          s_lshl_b32 s3, s3, 1
          v_add_u32 v5, s3, v5
          v_bfe_u32 v6, v0, 3, 1
          v_lshlrev_b32 v6, 2, v6
          v_xor_b32 v5, v5, v6
          v_lshl_add_u32 v4, v5, 4, v4
          v_and_b32 v6, 1, v0
          v_lshl_add_u32 v4, v6, 3, v4
          s_cmp_lt_u32 s{sW}, 4
          s_cbranch_scc1 L_kv""")
    sEH, sCA = 24, 25
    XF, AA, AB, WG, TM = 20, 36, 52, 100, 68
    XCH = WR + (7 % NS)*WSL + 16384
    DL, PH, SG, UA, NV, EI, XC = 12, 13, 14, 15, 3, 7, 16
    a(f"""s_and_b32 s3, s{sW}, 2
          s_lshl_b32 s3, s3, 11
          s_add_u32 s3, s3, {WR+16384}""")
    for kk in range(4): a(f"v_add_u32 v{XA+kk}, s3, v{XA+kk}")
    a(f"""s_and_b32 s{sEH}, s{sW}, 1
          s_and_b32 s3, s{sX}, 1
          s_lshr_b32 s5, s{sJ}, 3
          s_lshl_b32 s4, s5, 1
          s_add_u32 s{sCA}, s4, s3
          s_and_b32 s{sCA}, s{sCA}, {opt('--amask', 7)}
          s_lshl_b32 s3, s3, 2
          s_add_u32 s3, s3, s5                     ; eb
          s_lshl_b32 s3, s3, 1
          s_add_u32 s6, s3, s{sEH}
          s_lshl_b32 s3, s6, 4
          v_and_b32 v5, 15, v0
          v_add_u32 v{EI}, s3, v5                  ; e
          v_bfe_u32 v6, v0, 4, 1
          v_cvt_f32_u32 v{PH}, v6
          v_mul_f32 v{PH}, 0x3e800000, v{PH}
          s_cmp_eq_u32 s6, 0
          s_cselect_b32 s{sMASK}, 0x10000, 0
          s_mov_b32 s{sMASK+1}, s{sMASK}
          v_mov_b32 v6, 256
          v_cndmask_b32 v{EI}, v{EI}, v6, s[{sMASK}:{sMASK+1}]
          v_cndmask_b32 v{PH}, v{PH}, 0, s[{sMASK}:{sMASK+1}]
          v_cvt_f32_u32 v{DL}, v{EI}
          v_mul_f32 v{DL}, 0x3b000000, v{DL}       ; e/512
          v_and_b32 v6, 1, v0
          v_lshlrev_b32 v6, 31, v6
          v_or_b32 v{SG}, 1.0, v6
          s_lshr_b32 s3, s{sX}, 1
          s_lshl_b32 s3, s3, 3
          s_and_b32 s4, s{sJ}, 7
          s_add_u32 s3, s3, s4                     ; pi
          s_lshr_b32 s4, s6, 1
          s_lshl_b32 s4, s4, 5
          s_add_u32 s4, s4, s3
          s_lshl_b32 s4, s4, 1
          s_add_u32 s4, s4, s{sEH}
          s_lshl_b32 s26, s4, 2
          s_mul_i32 s3, s3, {U_GP}
          s_lshl_b32 s4, s6, 8
          s_add_u32 s3, s3, s4
          s_add_u32 s3, s3, {WS_U}
          v_lshl_add_u32 v5, v5, 4, s3
          v_lshrrev_b32 v6, 4, v0
          s_movk_i32 s4, {U_ROW}
          v_mad_u32_u24 v{UA}, v6, s4, v5
          s_lshl_b32 s3, s{sEH}, 11
          s_add_u32 s3, s3, {XCH}
          v_lshl_add_u32 v{XC}, v0, 4, s3""")
    def genw(c):
        o = [f"""s_add_u32 s3, s{sCA}, {c}
              s_and_b32 s3, s3, 7
              s_lshl_b32 s3, s3, 6
              v_lshl_add_u32 v{TM}, v2, 3, s3
              v_cvt_f32_u32 v{TM}, v{TM}
              v_mul_f32 v{TM}, v{TM}, v{DL}
              v_fract_f32 v{TM}, v{TM}
              v_add_f32 v{TM}, v{TM}, v{PH}"""]
        for kk in range(4):
            t = []
            for j in range(1, 8): t.append(f"v_add_f32 v{TM+j}, v{TM+j-1}, v{DL}")
            for j in range(8): t.append(f"v_cos_f32 v{TM+8+j}, v{TM+j}")
            t.append(f"v_fmamk_f32 v{TM}, v{DL}, 0x41100000, v{TM+7}")
            for j in range(4): t.append(f"v_cvt_pk_bf16_f32 v{WG+16*c+4*kk+j}, v{TM+8+2*j}, v{TM+9+2*j}")
            o.append("\n".join(t))
        return o
    CR, CI, NCI = 68+16, 68+24, WG
    def genc(m, T):
        t = []
        for j in range(8):
            cj = 16*m + (j % 4) + 8*(j // 4)
            t.append(f"""v_mad_u32_u24 v{T+j}, v1, {cj}, v{PH}
                  v_and_b32 v{T+j}, 31, v{T+j}
                  v_cvt_f32_u32 v{T+j}, v{T+j}
                  v_mul_f32 v{T+j}, 0x3d000000, v{T+j}""")
        u = [f"v_cos_f32 v{T+8+j}, v{T+j}" for j in range(8)] + [f"v_sin_f32 v{T+j}, v{T+j}" for j in range(8)] + ["s_nop 0"]
        for j in range(4):
            u.append(f"""v_cvt_pk_bf16_f32 v{CR+4*m+j}, v{T+8+2*j}, v{T+9+2*j}
                  v_cvt_pk_bf16_f32 v{CI+4*m+j}, -v{T+2*j}, -v{T+1+2*j}
                  v_cvt_pk_bf16_f32 v{NCI+4*m+j}, v{T+2*j}, v{T+1+2*j}""")
        return ["\n".join(t[:4]), "\n".join(t[4:]), "\n".join(u[:17]), "\n".join(u[17:])]
    for c in range(2):
        for x in genw(c): a(x)
    a("s_barrier")
    def rda(g): return f"ds_read_b128 {vr(XF+4*(g % 4),4)}, v{XA+g % 4}" if g < 32 else ""
    a(rda(0)); a(rda(1))
    for st in range(8):
        fill = {0: genw(2), 1: genw(3), 5: genc(0, TM), 6: genc(1, TM)}.get(st, [])
        if st in (0, 1): fill = [fill[0] + "\n" + fill[1]] + fill[2:]
        if st == 2: fill = ["", "", "", f"v_lshlrev_b32 v{PH}, 2, v2\nv_mul_u32_u24 v{PH}, v{PH}, v1"]
        acc = AA if st < 4 else AB
        for kk in range(4):
            g = 4*st + kk
            mm_ = f"{MFMA} {vr(acc,16)}, {vr(XF+4*(g % 4),4)}, {vr(WG+16*(st%4)+4*kk,4)}, {'0' if (st % 4 == 0 and kk == 0) else vr(acc,16)}"
            if kk < 3:
                a("s_waitcnt lgkmcnt(1)")
                a(mm_)
                if kk < 2: a(rda(g+2))
                if fill: a(fill[kk])
            if kk == 2:
                if st < 7:
                    d = WSL if (st+1) % NS else -(NS-1)*WSL
                    a(f"s_mov_b32 s3, {d}")
                    for r in range(4): a(f"v_add_u32 v{XA+r}, s3, v{XA+r}")
                    a("s_waitcnt lgkmcnt(0)\ns_barrier")
                    if st == 4: a(f"buffer_load_dword v{NV}, off, s[56:59], 0 sc1")
                    a(rda(g+2))
                else:
                    a("s_waitcnt lgkmcnt(0)")
            if kk == 3:
                a(mm_); a(rda(g+2))
                if fill: a(fill[3])
    stamp(a, 7)
    PK, SV, RE, IM, D1, D2 = XF, WG+24, WG+32, WG+48, AA, AB
    a("s_nop 10")
    for r in range(16): a(f"v_fma_f32 v{AA+r}, v{AB+r}, v{SG}, v{AA+r}")
    for t in range(8): a(f"v_cvt_pk_bf16_f32 v{PK+t}, v{AA+2*t}, v{AA+2*t+1}")
    a("s_waitcnt vmcnt(0)")
    nonce_wait(a, NV, True)
    a(f"""s_xor_b32 s{sPTV}, s{sPTV}, s{sNON}
          s_barrier
          s_cmp_lt_u32 s{sW}, 6
          s_cbranch_scc1 L_a1e
          ds_write_b128 v{XC}, {vr(PK,4)}
          ds_write_b128 v{XC}, {vr(PK+4,4)} offset:1024
          s_waitcnt lgkmcnt(0)
          s_barrier
          s_barrier
          s_barrier
          s_barrier
          s_branch L_att""")
    a.label("L_a1e")
    a(f"""s_barrier
          ds_read_b128 {vr(PK+8,4)}, v{XC}
          ds_read_b128 {vr(PK+12,4)}, v{XC} offset:1024
          s_waitcnt lgkmcnt(0)""")
    for t in range(8): a(f"v_permlane16_swap_b32 v{PK+t}, v{PK+8+t}")
    a(f"""s_mov_b32 s6, 0x00010001
          s_mov_b32 s7, 0x00010001
          s_cmp_eq_u32 s{sMASK}, 0
          s_cbranch_scc1 L_nosp1""")
    for t in range(8):
        a(f"v_mov_b32 v{SV+t}, v{PK+8+t}")
        a(f"v_cndmask_b32 v{PK+8+t}, v{PK+8+t}, 0, s[6:7]")
    a.label("L_nosp1")
    a("s_nop 1")
    def step1(aa, bb):
        a(f"{MFMA} {vr(RE,16)}, {vr(CR,4)}, {vr(aa,4)}, 0")
        a(f"{MFMA} {vr(IM,16)}, {vr(CI,4)}, {vr(aa,4)}, 0")
        a(f"{MFMA} {vr(RE,16)}, {vr(CR+4,4)}, {vr(aa+4,4)}, {vr(RE,16)}")
        a(f"{MFMA} {vr(IM,16)}, {vr(CI+4,4)}, {vr(aa+4,4)}, {vr(IM,16)}")
        if bb is not None:
            for m in range(2):
                a(f"{MFMA} {vr(RE,16)}, {vr(NCI+4*m,4)}, {vr(bb+4*m,4)}, {vr(RE,16)}")
                a(f"{MFMA} {vr(IM,16)}, {vr(CR+4*m,4)}, {vr(bb+4*m,4)}, {vr(IM,16)}")
    def upack(D):
        for r in range(16): a(f"v_cvt_pk_bf16_f32 v{D+r}, v{RE+r}, v{IM+r}")
        for g in range(4):
            d = D + 4*g
            a(f"""v_permlane32_swap_b32 v{d}, v{d+2}
                  v_permlane32_swap_b32 v{d+1}, v{d+3}""")
        for g in range(4):
            d = D + 4*g
            a(f"""v_permlane16_swap_b32 v{d}, v{d+1}
                  v_permlane16_swap_b32 v{d+2}, v{d+3}""")
    def ust(D, off):
        for g in range(4):
            a(f"""s_mov_b32 s4, {4*g*U_ROW + off}
                  buffer_store_dwordx4 {vr(D+4*g,4)}, v{UA}, s[{SWS}:{SWS+3}], s4 offen {ST}""")
    step1(PK, PK+8)
    a("s_barrier\ns_nop 10")
    upack(D1)
    a(f"""s_cmp_eq_u32 s{sMASK}, 0
          s_cbranch_scc1 L_nosp2""")
    step1(SV, None)
    a("s_nop 11")
    upack(D2)
    a.label("L_nosp2")
    stamp(a, 8)
    ust(D1, 0)
    a(f"""s_cmp_eq_u32 s{sMASK}, 0
          s_cbranch_scc1 L_nosp3
          s_mov_b64 exec, s[6:7]""")
    ust(D2, 4096)
    a("s_mov_b64 exec, -1")
    a.label("L_nosp3")
    a(f"""s_barrier
          s_barrier
          s_add_u32 s3, s26, {WS_F3}""")
    publish(a, 3, 6)
    a("s_branch L_att")

    a.label("L_kv")
    FR = 32
    FK = 96
    def X(b, i): return FK + 12*b + 4*i
    def W(b): return FK + 12*b + 8
    a(f"""s_and_b32 s3, s{sW}, 1
          s_lshl_b32 s3, s3, 13
          s_add_u32 s3, s3, {WR}
          v_add_u32 v{WA}, s3, v4""")
    for r in range(32): a(f"v_mov_b32 v{ACC+r}, 0")
    a(f"""s_lshl_b32 s3, s2, 5
          s_add_u32 s3, s3, s{sW}
          s_lshl_b32 s3, s3, 2
          s_add_u32 s31, s3, {WS_F1}
          s_lshl_b32 s3, s{sHG}, 2
          s_and_b32 s4, s{sW}, 2
          s_add_u32 s3, s3, s4
          s_lshl_b32 s3, s3, 16
          s_lshl_b32 s4, s{sTB}, 11
          s_add_u32 s3, s3, s4
          s_add_u32 s3, s3, {WS_K}
          v_lshl_add_u32 v14, v0, 4, s3
          s_add_u32 s3, s3, {WS_V - WS_K}
          v_bfe_u32 v5, v0, 4, 1
          v_lshlrev_b32 v5, 16, v5
          v_lshl_add_u32 v5, v2, 8, v5
          v_and_b32 v6, 15, v0
          v_lshl_add_u32 v5, v6, 4, v5
          v_add_u32 v16, s3, v5
          v_mov_b32 v21, v4
          s_and_b32 s4, s{sW}, 2
          s_mul_i32 s3, s4, {HSTR}
          s_add_u32 s3, s3, 8192
          v_lshl_add_u32 v17, v0, 4, s3
          s_add_u32 s3, s3, 10240
          v_bfe_u32 v5, v0, 4, 1
          v_mul_u32_u24 v5, {HSTR}, v5
          v_lshl_add_u32 v5, v2, 8, v5
          v_lshl_add_u32 v5, v6, 4, v5
          v_add_u32 v18, s3, v5
          s_and_b32 s3, s{sW}, 1
          s_lshl_b32 s3, s3, 12
          s_lshl_b32 s4, s4, 10
          s_add_u32 s3, s3, s4
          s_add_u32 s3, s3, {Q_BASE}
          v_lshl_add_u32 v20, v0, 4, s3
          s_mov_b32 s8, {f2u(QSCALE):#x}
          s_mov_b32 s9, s8""")
    def rd(kk, b):
        return [f"ds_read_b128 {vr(X(b,i),4)}, v{XA+kk} offset:{i*4096}" for i in range(2)] + [f"ds_read_b64_tr_b16 {vr(W(b)+2*q,2)}, v{WA} offset:{kk*2048 + q*512}" for q in range(2)]
    def step(b, variant, r):
        m = []
        for i in range(2):
            A_, B_ = (W(b), X(b,i)) if variant == "K" else (X(b,i), W(b))
            m.append(f"{MFMA} {vr(ACC+16*i,16)}, {vr(A_,4)}, {vr(B_,4)}, {vr(ACC+16*i,16)}")
        for x in [m[0]] + r[:2] + [m[1]] + r[2:]: a(x)
    a(f"""s_mov_b32 s{sIT}, 0
          s_mov_b32 s{sSL}, 0
          s_mov_b32 s27, {WSL}""")
    stamp(a, 1)
    a("s_barrier")
    stamp(a, 2)
    for x in rd(0, 0) + rd(1, 1): a(x)
    a(f"""s_bitcmp1_b32 s{sW}, 0
          s_cbranch_scc1 L_loopV""")
    for variant in ("K", "V"):
        a.label(f"L_loop{variant}")
        for kk in range(3):
            a("s_waitcnt lgkmcnt(4)")
            step(kk, variant, rd(kk+2, kk+2) if kk < 2 else [])
        a(f"""s_add_u32 s{sSL}, s{sSL}, 1
              s_cmp_eq_u32 s{sSL}, {NS}
              s_cselect_b32 s{sDEL}, {-(NS-1)*WSL}, s27
              s_cselect_b32 s{sSL}, 0, s{sSL}
              v_add_u32 v{WA}, s{sDEL}, v{WA}""")
        for r in range(4): a(f"v_add_u32 v{XA+r}, 8192, v{XA+r}")
        a(f"""s_add_u32 s{sIT}, s{sIT}, 1
              s_bitcmp1_b32 0x128, s{sIT}
              s_waitcnt lgkmcnt(0)
              s_cbranch_scc1 L_hook{variant}""")
        a.label(f"L_ret{variant}")
        a("s_barrier")
        for x in rd(0, 0): a(x)
        step(3, variant, rd(1, 1))
        a(f"s_branch L_loop{variant}")
        a.label(f"L_hook{variant}")
        a(f"""s_cmp_eq_u32 s{sIT}, 8
              s_cbranch_scc1 L_last{variant}
              s_cmp_eq_u32 s{sIT}, 5
              s_cbranch_scc1 L_h5{variant}
              buffer_load_dword v19, off, s[56:59], 0 sc1
              s_branch L_ret{variant}""")
        a.label(f"L_h5{variant}")
        a("s_waitcnt vmcnt(0)")
        nonce_wait(a, 19, True)
        a(f"s_xor_b32 s{sPTV}, s{sPTV}, s{sNON}")
        if MODE == "auto" and variant == "K":
            a(f"""s_cmp_lg_u32 s{sW}, 2
                  s_cbranch_scc1 L_ret{variant}
                  s_lshl_b32 s3, s2, 7
                  s_add_u32 s3, s3, {WS_PT}
                  v_mov_b32 v19, s{sPTV}
                  s_mov_b64 exec, 1
                  buffer_store_dword v19, off, s[{SWS}:{SWS+3}], s3 sc1
                  s_mov_b64 exec, -1""")
        a(f"s_branch L_ret{variant}")
        a.label(f"L_last{variant}")
        step(3, variant, [])
        stamp(a, 3)
        a("s_mov_b32 s4, 65536\ns_nop 9")
        for i in range(2):
            for mm in range(2):
                d = FR + 8*i + 4*mm
                for t in range(4): a(f"v_cvt_pk_bf16_f32 v{d+t}, v{ACC+16*i+8*mm+2*t}, v{ACC+16*i+8*mm+2*t+1}")
                if variant == "K":
                    a(f"buffer_store_dwordx4 {vr(d,4)}, v14, s[{SWS}:{SWS+3}], {'s4' if mm else '0'} offen offset:{i*1024} {ST}")
                else:
                    a(f"buffer_store_dwordx4 {vr(d,4)}, v16, s[{SWS}:{SWS+3}], 0 offen offset:{i*1024+mm*512} {ST}")
        if variant == "K": a("s_branch L_kvdone")
    a.label("L_kvdone")
    stamp(a, 4)
    FQ = 96
    a(f"""s_and_b32 s3, s{sW}, 1
          s_lshl_b32 s3, s3, 12
          s_sub_u32 s3, s3, 65536
          v_add_u32 v{WA}, {QSLOT[0]}, v21""")
    for kk in range(4): a(f"v_add_u32 v{XA+kk}, s3, v{XA+kk}")
    a("s_barrier")
    def rdq(u, k, b):
        c2, kk = k // 4, k % 4
        f = FQ + 8*b
        return [f"ds_read_b128 {vr(f,4)}, v{XA+kk} offset:{(2*u+c2)*8192}"] + [f"ds_read_b64_tr_b16 {vr(f+4+2*q,2)}, v{WA} offset:{c2*8192 + kk*2048 + q*512}" for q in range(2)]
    NBQ = 4
    for k in range(3):
        for x in rdq(0, k, k): a(x)
    for u in range(4):
        for k in range(8):
            g = 8*u + k
            last = k >= 5
            if k == 5 and u < 3:
                d = QSLOT[u+1] - QSLOT[u]
                if u == PUBU:
                    publish(a, 31, 6)
                    stamp(a, 5)
                a(f"""s_waitcnt lgkmcnt(0)
                      s_barrier
                      v_add_u32 v{WA}, {d}, v{WA}""")
            nxt = rdq(u, k+3, (g+3) % NBQ) if k < 5 else (rdq(u+1, k-5, (g+3) % NBQ) if u < 3 else [])
            if not (k >= 5 and u < 3) or k > 5 or True:
                outst = 6 if (k < 5 or u < 3) else 3*(7-k)
                if not (k == 5 and u < 3) and not (k in (6, 7) and u < 3): a(f"s_waitcnt lgkmcnt({outst})")
            f = FQ + 8*(g % NBQ)
            a(f"{MFMA} {vr(ACC,16)}, {vr(f+4,4)}, {vr(f,4)}, {'0' if g == 0 else vr(ACC,16)}")
            for x in nxt: a(x)
    a("s_barrier")
    stamp(a, 6)
    a(f"""s_bitcmp1_b32 s{sW}, 0
          s_cbranch_scc1 L_cpv""")
    for i in range(2):
        for mm in range(2): a(f"ds_write_b128 v17, {vr(FR+8*i+4*mm,4)} offset:{mm*HSTR + i*1024}")
    a("s_branch L_cpq")
    a.label("L_cpv")
    for i in range(2):
        for mm in range(2): a(f"ds_write_b128 v18, {vr(FR+8*i+4*mm,4)} offset:{i*1024 + mm*512}")
    a.label("L_cpq")
    a("s_nop 5")
    for t in range(8): a(f"v_pk_mul_f32 {vr(ACC+2*t,2)}, {vr(ACC+2*t,2)}, s[8:9]")
    for t in range(8): a(f"v_cvt_pk_bf16_f32 v{FQ+t}, v{ACC+2*t}, v{ACC+2*t+1}")
    a(f"""ds_write_b128 v20, {vr(FQ,4)}
          ds_write_b128 v20, {vr(FQ+4,4)} offset:1024""")

    a.label("L_att")
    QF = 4
    KA, VA_, NINF, MX = 2, 3, 8, 9
    KF, VF, PP, S, O, CN, CD, CF = 12, 24, 40, 48, 80, 96, 112, 128
    S3, P2, MK = 112, 128, 136
    sVM, sNF, sI = 8, 10, 11
    srd(a, SOUT, kOUT, 0x400000)
    a(f"""s_and_b32 s3, s{sW}, 3
          s_lshr_b32 s5, s{sW}, 2
          s_lshl_b32 s4, s{sHG}, 2
          s_add_u32 s{sHD}, s4, s3
          s_lshl_b32 s4, s{sTB}, 1
          s_add_u32 s4, s4, s5                     ; qb
          s_lshl_b32 s{sQO}, s4, 10
          s_lshl_b32 s6, s{sHD}, 16
          s_add_u32 s{sQO}, s{sQO}, s6
          s_min_u32 s{sNF}, s4, 7
          s_lshl_b32 s4, s4, 5
          s_add_u32 s4, s4, s{sHD}
          s_lshl_b32 s4, s4, 2
          s_add_u32 s{sF2}, s4, {WS_F2}
          v_lshlrev_b32 v1, 4, v0
          s_lshl_b32 s4, s{sW}, 10
          s_add_u32 s4, s4, {Q_BASE}
          v_add_u32 v4, s4, v1
          s_mul_i32 s4, s3, {HSTR}
          s_lshl_b32 s5, s5, 10
          s_add_u32 s4, s4, s5
          v_add_u32 v{KA}, s4, v1
          v_lshrrev_b32 v10, 5, v0
          v_and_b32 v11, 15, v0
          v_lshlrev_b32 v11, 4, v11
          v_lshl_add_u32 v11, v10, 8, v11
          s_add_u32 s4, s4, 10240
          v_add_u32 v{VA_}, s4, v11
          v_mov_b32 v{NINF}, 0xff800000
          s_mov_b32 s{sVM}, 0x0000ffff
          s_mov_b32 s{sVM+1}, 0x0000ffff
          s_mov_b32 s6, 0x00110000
          s_mov_b32 s7, 0x00110000
          v_mov_b32 v10, 0x3f803f80""")
    for t in range(16): a(f"v_cndmask_b32 v{VF+t}, 0, v10, s[6:7]")
    for r in range(16):
        lo, hi = diag_mask(r)
        a(f"s_mov_b32 s{64+2*r}, {lo:#x}\ns_mov_b32 s{65+2*r}, {hi:#x}")
    a("v_mov_b32 v10, 0xffff\nv_mov_b32 v11, 0xffff0000")
    for t in range(8):
        a(f"""v_cndmask_b32 v{MK+t}, 0, v10, s[{64+4*t}:{65+4*t}]
              v_cndmask_b32 v5, 0, v11, s[{66+4*t}:{67+4*t}]
              v_or_b32 v{MK+t}, v{MK+t}, v5""")
    a("s_waitcnt lgkmcnt(0)")
    stamp(a, 11)
    a("s_barrier")
    stamp(a, 12)
    a(f"ds_read_b128 {vr(QF,4)}, v4")
    def masks(val):
        return [f"""v_cndmask_b32 v{CD+r}, v{NINF}, {val}, s[{64+2*r}:{65+2*r}]
                  v_cndmask_b32 v{CF+r}, {val}, v{NINF}, s[{64+2*r}:{65+2*r}]""" for r in range(16)]
    def maxblk(S_, first):
        if first: a(f"v_max_f32 v{MX}, v{S_}, v{S_+1}")
        for t in range(2 if first else 0, 16, 2):
            a(f"v_max3_f32 v{MX}, v{S_+t}, v{S_+t+1}, v{MX}")
    def xhalf_max():
        a(f"""v_mov_b32 v10, v{MX}
              s_nop 1
              v_permlane32_swap_b32 v10, v{MX}
              s_nop 1
              v_max_f32 v{MX}, v{MX}, v10""")
    order = [7, 6, 5, 4, 3, 2, 1, 8, 0]
    def rdK(n): return f"ds_read_b128 {vr(KF+4*(n%3),4)}, v{KA} offset:{order[n]*1024}"
    def rdV(n):
        b = VF + 8*(n % 2)
        return f"""s_mov_b64 exec, s[{sVM}:{sVM+1}]
              ds_read_b128 {vr(b,4)}, v{VA_} offset:{order[n]*1024}
              ds_read_b128 {vr(b+4,4)}, v{VA_} offset:{order[n]*1024+512}
              s_mov_b64 exec, -1"""
    def mS(k, Dd): return f"{MFMA} {vr(Dd,16)}, {vr(KF+4*(k%3),4)}, {vr(QF,4)}, {vr(CN,16)}"
    a(rdK(0)); a(rdK(1)); a(rdV(0))
    a(f"""s_setprio 3
          s_waitcnt lgkmcnt(3)
          {MFMA} {vr(S+16,16)}, {vr(KF,4)}, {vr(QF,4)}, 0""")
    pt_load()
    if FORCE_SLOW: a("s_branch L_preslow")
    CI_ = 149
    def fast(first):
        def mSv(k, Dd):
            if not first or k == 7: a(mS(k, Dd)); return
            inv = f"{MFMA} {vr(Dd,16)}, {vr(KF+4*(k%3),4)}, {vr(QF,4)}, {vr(CI_+1,16)}"
            if k == 8: a(inv); return
            a(f"""s_cmp_gt_u32 s{sNF}, {k}
                  s_cbranch_scc1 L_fv{k}
                  {inv}
                  s_branch L_fw{k}""")
            a.label(f"L_fv{k}")
            a(mS(k, Dd))
            a.label(f"L_fw{k}")
        if first:
            for r in range(16): a(f"v_mov_b32 v{CI_+1+r}, v{NINF}")
        a(f"""s_nop {4 if MODE == 'auto' else 9}
          v_max3_f32 v{MX}, v{S+16}, v{S+17}, v{S+18}
          v_max3_f32 v10, v{S+19}, v{S+20}, v{S+21}
          v_max3_f32 v11, v{S+22}, v{S+23}, v{S+24}
          v_max3_f32 v{MX}, v{S+25}, v{S+26}, v{MX}
          v_max3_f32 v10, v{S+27}, v{S+28}, v10
          v_max3_f32 v11, v{S+29}, v{S+30}, v11
          v_max3_f32 v{MX}, v{S+31}, v{MX}, v10
          v_max_f32 v{MX}, v{MX}, v11""")
        xhalf_max()
        a(f"v_sub_f32 v{CN}, 0xc2400000, v{MX}")
        for r in range(1, 16): a(f"v_mov_b32 v{CN+r}, v{CN}")
        a("s_nop 1")
        a(mS(0, S))
        prev = None
        for n in range(8):
            Sn = S + 16*(n % 2); Vn = VF + 8*(n % 2)
            P_ = PP if n % 2 == 0 else P2
            ex = lambda r: a(f"v_exp_f32 v{Sn+r}, v{Sn+r}")
            cv = lambda t: a(f"v_cvt_pk_bf16_f32 v{P_+t}, v{Sn+2*t}, v{Sn+2*t+1}")
            if n in (3, 5, 7): a(f"s_setprio {({3:2,5:1,7:0})[n]}")
            if n in (2, 4): a("s_barrier")
            if n == 0:
                a("s_waitcnt lgkmcnt(2)"); mSv(1, S+16); a("s_barrier"); a(rdK(2)); a(rdV(1)); a("s_nop 3")
            if n == 7:
                a(prev); a("s_nop 3")
                for r in range(16): a(f"v_cndmask_b32 v{Sn+r}, v{S3+r}, v{Sn+r}, s[{64+2*r}:{65+2*r}]")
            for r in range(4): ex(r)
            if 0 < n < 7: a(prev)
            if n == 7: a(rdV(8))
            for r in range(4, 8): ex(r)
            if 0 < n < 7:
                a("s_waitcnt lgkmcnt(2)"); mSv(n+1, S + 16*((n+1) % 2))
                a(rdK(n+2)); a(rdV(n+1))
            for t in range(4): cv(t)
            for r in range(8, 12): ex(r)
            if n < 7:
                a("s_waitcnt lgkmcnt(3)")
                a(f"{MFMA} {vr(O,16)}, {vr(Vn,4)}, {vr(P_,4)}, {'0' if n == 0 else vr(O,16)}")
            else:
                for t in range(4): a(f"v_and_b32 v{PP+t}, v{MK+t}, v{P_+t}\nv_xor_b32 v{P_+t}, v{PP+t}, v{P_+t}")
                a("s_waitcnt lgkmcnt(2)")
                a(f"{MFMA} {vr(O,16)}, {vr(Vn,4)}, {vr(PP,4)}, {vr(O,16)}")
            ex(12); ex(13)
            if n == 6: a("s_waitcnt lgkmcnt(2)"); mSv(8, S3)
            if n == 7: a("s_waitcnt lgkmcnt(0)"); a(f"{MFMA} {vr(O,16)}, {vr(VF,4)}, {vr(P2,4)}, {vr(O,16)}")
            ex(14); ex(15)
            for t in range(4, 8): cv(t)
            prev = f"{MFMA} {vr(O,16)}, {vr(Vn+4,4)}, {vr(P_+4,4)}, {vr(O,16)}"
        for t in range(4, 8): a(f"v_and_b32 v{PP+t}, v{MK+t}, v{P2+t}\nv_xor_b32 v{P2+t}, v{PP+t}, v{P2+t}")
        a(f"""s_nop 0
          {MFMA} {vr(O,16)}, {vr(VF+12,4)}, {vr(PP+4,4)}, {vr(O,16)}
          {MFMA} {vr(O,16)}, {vr(VF+4,4)}, {vr(P2+4,4)}, {vr(O,16)}
          s_waitcnt vmcnt(0)
          v_cmp_ne_u32 s[6:7], s{sPTV}, v148
          v_mov_b32 v14, 0x7f800000
          s_nop 8
          v_add_f32 v10, |v{O}|, |v{O+1}|
          v_add_f32 v11, |v{O+2}|, |v{O+3}|
          v_add_f32 v12, |v{O+4}|, |v{O+5}|
          v_add_f32 v13, |v{O+6}|, |v{O+7}|
          v_add_f32 v10, v10, v11
          v_add_f32 v12, v12, v13
          v_mul_f32 v11, 0x5f800000, v{O+8}
          v_add_f32 v10, v10, v12
          v_add_f32 v11, v10, v11
          v_rcp_f32 v10, v{O+8}
          v_cmp_lt_f32 vcc, v11, v14
          s_cmp_eq_u64 vcc, -1
          s_cbranch_scc1 L_norm
          s_branch L_slow""")
    a(f"""s_cmp_eq_u32 s{sR}, 0
          s_cbranch_scc1 L_first""")
    fast(False)
    a.label("L_first")
    a(f"""s_cmp_eq_u32 s{sNF}, 0
          s_cbranch_scc1 L_preslow""")
    fast(True)
    a.label("L_preslow")
    a("s_barrier\ns_barrier\ns_barrier")
    a.label("L_slow")
    a(f"""s_setprio 0
          s_sub_u32 s3, 8, s{sNF}
          s_lshl_b32 s3, s3, 10
          s_waitcnt lgkmcnt(0)""")
    for x in masks("0"): a(x)
    a(f"""ds_read_b128 {vr(KF,4)}, v{KA} offset:{8*1024}
          s_waitcnt lgkmcnt(0)
          {MFMA} {vr(S,16)}, {vr(KF,4)}, {vr(QF,4)}, {vr(CD,16)}
          s_nop 11""")
    maxblk(S, True)
    a(f"""s_cmp_eq_u32 s{sR}, 0
          s_cbranch_scc1 L_s1nofar
          ds_read_b128 {vr(KF,4)}, v{KA}
          s_waitcnt lgkmcnt(0)
          {MFMA} {vr(S,16)}, {vr(KF,4)}, {vr(QF,4)}, {vr(CF,16)}
          s_nop 11""")
    maxblk(S, False)
    a.label("L_s1nofar")
    a(f"""s_mov_b32 s{sI}, s{sNF}
          v_add_u32 v10, s3, v{KA}
          s_cmp_eq_u32 s{sI}, 0
          s_cbranch_scc1 L_s1done""")
    a.label("L_s1loop")
    a(f"""ds_read_b128 {vr(KF,4)}, v10
          v_add_u32 v10, 1024, v10
          s_waitcnt lgkmcnt(0)
          {MFMA} {vr(S,16)}, {vr(KF,4)}, {vr(QF,4)}, 0
          s_nop 11""")
    maxblk(S, False)
    a(f"""s_sub_u32 s{sI}, s{sI}, 1
          s_cmp_lg_u32 s{sI}, 0
          s_cbranch_scc1 L_s1loop""")
    a.label("L_s1done")
    xhalf_max()
    a(f"v_sub_f32 v{MX}, 0, v{MX}")
    for x in masks(f"v{MX}"): a(x)
    for r in range(16): a(f"v_mov_b32 v{CN+r}, v{MX}")
    def pvblk(kaddr, vaddr, off, C, first):
        a(f"""ds_read_b128 {vr(KF,4)}, v{kaddr} offset:{off}
              s_mov_b64 exec, s[{sVM}:{sVM+1}]
              ds_read_b128 {vr(VF,4)}, v{vaddr} offset:{off}
              ds_read_b128 {vr(VF+4,4)}, v{vaddr} offset:{off+512}
              s_mov_b64 exec, -1
              s_waitcnt lgkmcnt(0)
              {MFMA} {vr(S,16)}, {vr(KF,4)}, {vr(QF,4)}, {vr(C,16)}
              s_nop 11""")
        for r in range(16): a(f"v_exp_f32 v{S+r}, v{S+r}")
        for t in range(8): a(f"v_cvt_pk_bf16_f32 v{PP+t}, v{S+2*t}, v{S+2*t+1}")
        a("s_nop 1")
        a(f"{MFMA} {vr(O,16)}, {vr(VF,4)}, {vr(PP,4)}, {'0' if first else vr(O,16)}")
        a(f"{MFMA} {vr(O,16)}, {vr(VF+4,4)}, {vr(PP+4,4)}, {vr(O,16)}")
    pvblk(KA, VA_, 8*1024, CD, True)
    a(f"""s_cmp_eq_u32 s{sR}, 0
          s_cbranch_scc1 L_s2nofar""")
    pvblk(KA, VA_, 0, CF, False)
    a.label("L_s2nofar")
    a(f"""s_mov_b32 s{sI}, s{sNF}
          v_add_u32 v10, s3, v{KA}
          v_add_u32 v11, s3, v{VA_}
          s_cmp_eq_u32 s{sI}, 0
          s_cbranch_scc1 L_s2done""")
    a.label("L_s2loop")
    pvblk(10, 11, 0, CN, False)
    a(f"""v_add_u32 v10, 1024, v10
          v_add_u32 v11, 1024, v11
          s_sub_u32 s{sI}, s{sI}, 1
          s_cmp_lg_u32 s{sI}, 0
          s_cbranch_scc1 L_s2loop""")
    a.label("L_s2done")
    a(f"""s_waitcnt vmcnt(0)
          v_cmp_ne_u32 s[6:7], s{sPTV}, v148
          s_nop 12
          v_rcp_f32 v10, v{O+8}
          s_nop 0""")
    a.label("L_norm")
    for t in range(8): a(f"v_mul_f32 v{O+t}, v10, v{O+t}")
    for t in range(4): a(f"v_cvt_pk_bf16_f32 v{PP+t}, v{O+2*t}, v{O+2*t+1}")
    a(f"s_add_u32 s4, s{sQO}, {WS_O}")
    if MODE == "auto":
        a(f"""s_cmp_eq_u64 s[6:7], 0
              s_cbranch_scc0 L_ox
              buffer_store_dwordx4 {vr(PP,4)}, v1, s[{SWS}:{SWS+3}], s4 offen""")
        stamp(a, 13)
        publish(a, sF2, 10, flav="")
        a("s_branch L_od")
        a.label("L_ox")
    a(f"buffer_store_dwordx4 {vr(PP,4)}, v1, s[{SWS}:{SWS+3}], s4 offen {ST}")
    stamp(a, 13 if MODE != "auto" else 19)
    publish(a, sF2, 10)
    a.label("L_od")
    stamp(a, 14)
    a(f"""s_barrier
          s_cmp_ge_u32 s{sW}, 4
          s_cbranch_scc1 L_fin""")
    OA, WA2, ACC2, FR2 = 8, 9, 16, 32
    a(f"""s_and_b32 s5, s{sW}, 1
          s_lshl_b32 s3, s5, 10
          v_add_u32 v{OA}, s3, v1
          v_lshrrev_b32 v2, 5, v0
          v_bfe_u32 v3, v0, 2, 2
          v_lshl_add_u32 v4, v2, 2, v3
          v_lshlrev_b32 v4, 7, v4
          v_bfe_u32 v5, v0, 4, 1
          v_lshlrev_b32 v5, 1, v5
          v_and_b32 v6, 1, v0
          v_add_u32 v5, v5, v6
          s_and_b32 s3, s{sW}, 2
          s_lshl_b32 s3, s3, 1
          v_add_u32 v5, s3, v5
          v_bfe_u32 v6, v0, 3, 1
          v_lshlrev_b32 v6, 2, v6
          v_xor_b32 v5, v5, v6
          v_lshl_add_u32 v4, v5, 4, v4
          v_bfe_u32 v6, v0, 1, 1
          v_lshl_add_u32 v4, v6, 3, v4
          v_add_u32 v{WA2}, {WO_BASE}, v4
          v_and_b32 v14, 31, v0
          s_lshl_b32 s3, s{sTB}, 6
          s_lshl_b32 s5, s5, 5
          s_add_u32 s3, s3, s5
          v_add_u32 v14, s3, v14
          v_lshlrev_b32 v14, 11, v14
          v_lshl_add_u32 v14, v2, 4, v14
          s_lshl_b32 s3, s{sHG}, 7
          s_and_b32 s5, s{sW}, 2
          s_lshl_b32 s5, s5, 5
          s_add_u32 s3, s3, s5
          s_add_u32 s3, s3, 1024
          v_add_u32 v14, s3, v14""")
    def wrd(hd, f):
        return [f"ds_read_b64_tr_b16 {vr(f+4+2*q,2)}, v{WA2} offset:{hd*2048 + q*1024}" for q in range(2)]
    for k in range(8):
        for x in wrd(k, FR2+8*k): a(x)
    a("s_barrier")
    stamp(a, 16)
    for qd in range(4):
        if qd: a("s_barrier")
        for k in range(8): a(f"ds_read_b128 {vr(FR2+64*(qd%2)+8*k,4)}, v{OA} offset:{(8*qd+k)*2048}")
        for k in range(8):
            f = FR2 + 64*(qd % 2) + 8*k
            fn = FR2 + 64*((qd+1) % 2) + 8*k
            a(f"s_waitcnt lgkmcnt({min(15, 7-k + (2*k if qd < 3 else 0))})")
            c = "0" if (qd == 0 and k == 0) else vr(ACC2,16)
            a(f"{MFMA} {vr(ACC2,16)}, {vr(f+4,4)}, {vr(f,4)}, {c}")
            if qd < 3:
                for x in wrd(8*(qd+1)+k, fn): a(x)
    a("s_nop 15")
    for mm in range(2):
        for t in range(4):
            a(f"v_cvt_pk_bf16_f32 v{FR2+4*mm+t}, v{ACC2+8*mm+2*t}, v{ACC2+8*mm+2*t+1}")
        a(f"buffer_store_dwordx4 {vr(FR2+4*mm,4)}, v14, s[{SOUT}:{SOUT+3}], 0 offen offset:{32*mm}")
    stamp(a, 17)
    a.label("L_fin")
    stamp_flush(a, 18)
    a.label("L_end")
    a("s_endpgm")
    return a

def main():
    a = gen()
    hdr = f"""; {NAME} : one fused kernel (generated by my gen11.py)
; @launch grid=(256,1,1) block=(768,1,1) lds=163840
.amdgcn_target "amdgcn-amd-amdhsa--gfx950"
.text
"""
    kd = f""".section .rodata,"a"
.p2align 6
.amdhsa_kernel {KN}
  .amdhsa_next_free_vgpr 168
  .amdhsa_next_free_sgpr 102
  .amdhsa_accum_offset 168
  .amdhsa_group_segment_fixed_size 0
  .amdhsa_kernarg_size 88
  .amdhsa_user_sgpr_count 2
  .amdhsa_user_sgpr_kernarg_segment_ptr 1
  .amdhsa_system_sgpr_workgroup_id_x 1
.end_amdhsa_kernel
"""
    path = sys.argv[1] if len(sys.argv) > 1 and sys.argv[1].endswith(".s") else f"cdna_kernels/{NAME}.s"
    open(path, "w").write(hdr + a.text() + kd)
main()
```

```python
import sys, struct, math

NAME = "concat_heads__spectral_fnet__sliding_block__prompt"
KN = NAME + "_kernel"
WS_Q, WS_K, WS_V, WS_O, WS_U = 0, 2 << 20, 4 << 20, 6 << 20, 8 << 20
WS_F1, WS_F2, WS_PT, WS_F3 = (11 << 20), (11 << 20) + 0x20000, (11 << 20) + 0x60000, (11 << 20) + 0x70000
U_ROW = 4224
U_GP = 16 * U_ROW
U_SIZE = 32 * U_GP
QSCALE = 0.25 * math.log2(math.e)
uid = [0]
STAMP = "--stamp" in sys.argv
FORCE_SLOW = "--slow" in sys.argv
SKIP = set(int(x) for x in sys.argv[sys.argv.index("--skip")+1].split(",")) if "--skip" in sys.argv else set()
ST = sys.argv[sys.argv.index("--st")+1].replace("+", " ") if "--st" in sys.argv else "sc1"
LD = "sc1"
SPIN_MAX = 200000
def opt(name, default):
    return type(default)(sys.argv[sys.argv.index(name)+1]) if name in sys.argv else default
PDELAY = opt("--pdelay", 0)
PIPE = "--pipe" in sys.argv
FULLF = "--fullf" in sys.argv
KVLD = sys.argv[sys.argv.index("--kvld")+1].replace("+", " ").replace("none", "") if "--kvld" in sys.argv else "sc1"
A2ST = "sc1" if "--a2sc1" in sys.argv else ""
WB = "--wb" in sys.argv

def f2u(x): return struct.unpack("<I", struct.pack("<f", x))[0]

class Asm:
    def __init__(self): self.L = []
    def __call__(self, s):
        for line in s.strip("\n").split("\n"):
            line = line.strip()
            if line: self.L.append("  " + line)
    def label(self, n): self.L.append(n + ":")
    def text(self): return "\n".join(self.L) + "\n"

def vr(b, n=1): return f"v{b}" if n == 1 else f"v[{b}:{b+n-1}]"
MFMA = "v_mfma_f32_32x32x16_bf16"

kAX, kSR, kSI, kDR, kDI, kBX, kWQ, kWO, kOUT, kDBG, kWS = 64, 66, 68, 70, 72, 74, 76, 78, 80, 82, 84
sTB, sHG, sJ, sW, sNON = 16, 17, 18, 19, 20
sHD, sR = 21, 22
SWS = 32
VST = 167

def srd(a, d, k, size, off=0):
    if off:
        a(f"s_add_u32 s{d}, s{k}, {off}\ns_addc_u32 s{d+1}, s{k+1}, 0")
    else:
        a(f"s_mov_b32 s{d}, s{k}\ns_mov_b32 s{d+1}, s{k+1}")
    a(f"s_mov_b32 s{d+2}, {size}\ns_mov_b32 s{d+3}, 0x20000")

AMP = [int(x) for x in sys.argv[sys.argv.index("--amp")+1].split(",")] if "--amp" in sys.argv else None
def amp_end(a):
    if not AMP: return
    uid[0] += 1
    L = f"amp{uid[0]}"
    a(f"""s_cmp_lg_u32 s2, {AMP[3]}
          s_cbranch_scc1 {L}x
          s_cmp_lg_u32 s{sW}, {AMP[4]}
          s_cbranch_scc1 {L}x
          s_waitcnt vmcnt(0)
          s_memrealtime s[62:63]
          s_sub_u32 s100, s101, s100
          s_min_u32 s100, s100, 10000
          s_mul_i32 s100, s100, {AMP[2]}
          s_waitcnt lgkmcnt(0)
          s_add_u32 s100, s100, s62""")
    a.label(L)
    a(f"""s_memrealtime s[62:63]
          s_waitcnt lgkmcnt(0)
          s_sub_u32 s61, s62, s100
          s_cmp_lt_i32 s61, 0
          s_cbranch_scc1 {L}""")
    a.label(L + "x")
GMAX = None
def stamp(a, idx):
    if AMP and idx in AMP[:2]:
        a(f"""s_memrealtime s[62:63]
              s_waitcnt lgkmcnt(0)
              s_mov_b32 s{100 + AMP[:2].index(idx)}, s62""")
    if not STAMP: return
    if idx in SKIP: return
    a(f"""s_memrealtime s[96:97]
          s_memtime s[98:99]
          s_waitcnt lgkmcnt(0)
          v_writelane_b32 v{VST}, s96, {idx}
          v_writelane_b32 v{VST}, s98, {idx+32}""")
def stamp_flush(a, idx):
    if AMP:
        if idx in AMP[:2]: a("s_waitcnt vmcnt(0)")
        stamp(a, idx)
        amp_end(a)
    if not STAMP: return
    a("s_waitcnt vmcnt(0)")
    stamp(a, idx)
    srd(a, 88, SWS, 0x100000, 16 << 20)
    a(f"""s_mov_b64 exec, -1
          s_lshl_b32 s92, s2, 12
          s_lshl_b32 s93, s{sW}, 8
          s_add_u32 s92, s92, s93
          v_mbcnt_lo_u32_b32 v2, -1, 0
          v_mbcnt_hi_u32_b32 v2, -1, v2
          v_lshlrev_b32 v2, 2, v2
          buffer_store_dword v{VST}, v2, s[88:91], s92 offen""")

def poll(a, vaddr, vtmp, nl_mask, srdreg=SWS):
    uid[0] += 1
    L = f"poll{uid[0]}"
    a(f"""s_mov_b32 s60, 0
          s_mov_b64 exec, {nl_mask}""")
    a.label(L)
    a(f"""buffer_load_dword v{vtmp}, v{vaddr}, s[{srdreg}:{srdreg+3}], 0 offen sc1
          s_add_u32 s60, s60, 1
          s_cmp_gt_u32 s60, {SPIN_MAX}
          s_cbranch_scc1 {L}x
          s_waitcnt vmcnt(0)
          v_cmp_ne_u32 vcc, s{sNON}, v{vtmp}
          s_cbranch_vccnz {L}""")
    a.label(L + "x")
    a("s_mov_b64 exec, -1")

def poll_pipe(a, vaddr, vt, nl_mask, gap=2):
    uid[0] += 1
    L = f"pp{uid[0]}"
    ld = lambda k: f"buffer_load_dword v{vt+k}, v{vaddr}, s[{SWS}:{SWS+3}], 0 offen sc1"
    a(f"""s_mov_b32 s60, 0
          s_mov_b64 exec, {nl_mask}
          {ld(0)}
          s_sleep {gap}
          {ld(1)}""")
    a.label(L)
    for k in range(3):
        a(f"""s_sleep {gap}
              {ld((k+2)%3)}
              s_waitcnt vmcnt(2)
              v_cmp_ne_u32 vcc, s{sNON}, v{vt+k}
              s_cbranch_vccz {L}x""")
    a(f"""s_add_u32 s60, s60, 1
          s_cmp_lt_u32 s60, {SPIN_MAX}
          s_cbranch_scc1 {L}""")
    a.label(L + "x")
    a("s_mov_b64 exec, -1")

def poll2(a, va, vt):
    uid[0] += 1
    L = f"pq{uid[0]}"
    a("s_mov_b32 s60, 0")
    a.label(L)
    a(f"""buffer_load_dwordx2 v[{vt}:{vt+1}], v{va}, s[{SWS}:{SWS+3}], 0 offen sc1
          s_add_u32 s60, s60, 1
          s_cmp_gt_u32 s60, {SPIN_MAX}
          s_cbranch_scc1 {L}x
          s_waitcnt vmcnt(0)
          v_cmp_ne_u32 vcc, s{sNON}, v{vt}
          v_cmp_ne_u32 s[4:5], s{sNON}, v{vt+1}
          s_or_b64 vcc, vcc, s[4:5]
          s_cbranch_vccnz {L}""")
    a.label(L + "x")

def publish(a, soff, vtmp, cnt=0, flav=None):
    if FULLF:
        a(f"""v_mov_b32 v{vtmp}, s{sNON}
              v_mov_b32 v{vtmp+1}, s{sNON}
              s_waitcnt vmcnt({cnt})
              s_mov_b64 exec, 0xffff
              buffer_store_dwordx2 v[{vtmp}:{vtmp+1}], v166, s[{SWS}:{SWS+3}], s{soff} offen {ST if flav is None else flav}
              s_mov_b64 exec, -1""")
        return
    a(f"""s_waitcnt vmcnt({cnt})
          v_mov_b32 v{vtmp}, s{sNON}
          s_mov_b64 exec, 1
          buffer_store_dword v{vtmp}, off, s[{SWS}:{SWS+3}], s{soff} {ST if flav is None else flav}
          s_mov_b64 exec, -1""")

def nonce_wait(a, vtmp, first_loaded):
    uid[0] += 1
    L = f"non{uid[0]}"
    a("s_mov_b32 s60, 0")
    if first_loaded:
        a(f"s_branch {L}c")
    a.label(L)
    a(f"""buffer_load_dword v{vtmp}, off, s[56:59], 0 sc1
          s_waitcnt vmcnt(0)""")
    a.label(L + "c")
    a(f"""v_readfirstlane_b32 s{sNON}, v{vtmp}
          s_add_u32 s60, s60, 1
          s_cmp_gt_u32 s60, {SPIN_MAX}
          s_cbranch_scc1 {L}x
          s_cmp_eq_u32 s{sNON}, 0
          s_cbranch_scc1 {L}""")
    a.label(L + "x")

def diag_mask(r):
    g, i = r // 4, r % 4
    return (0xffffffff << (8*g+i)) & 0xffffffff, (0xffffffff << (8*g+i+4)) & 0xffffffff

MODE = sys.argv[sys.argv.index("--mode")+1] if "--mode" in sys.argv else "auto"
A2F = opt("--a2st", "").replace("+", " ")
OPF = opt("--opst", "").replace("+", " ")
XR, WR, WSL = 0, 65536, 24576
NS = opt('--ns', 3)
QSLOT = [WR + 2*WSL, WR, WR + 3*WSL, WR + WSL] if NS == 3 else [WR + k*WSL for k in range(4)]
UPN = opt('--upn', 1)
PUBU = opt('--pubu', 1)
Q_BASE = 81920
WO_BASE = 98304
HSTR = 20480
OWNB = opt('--ownb', 0)
KVF = 90112
UF = 64
sX = sR

def gen():
    a = Asm()
    a.L += [f".globl {KN}", ".p2align 8", f".type {KN},@function"]
    a.label(KN)
    a(f"""s_cmp_ge_u32 s2, 256
          s_cbranch_scc1 L_end
          s_load_dwordx16 s[64:79], s[0:1], 0
          s_load_dwordx4 s[80:83], s[0:1], 64
          s_load_dwordx2 s[84:85], s[0:1], 80
          v_lshrrev_b32 v1, 6, v0
          v_and_b32 v0, 63, v0
          s_and_b32 s{sX}, s2, 7
          v_readfirstlane_b32 s{sW}, v1
          s_lshr_b32 s{sJ}, s2, 3
          s_lshl_b32 s3, s{sX}, 2
          s_and_b32 s4, s{sJ}, 3
          s_add_u32 s{sTB}, s3, s4
          s_lshr_b32 s{sHG}, s2, 5
          s_xor_b32 s{sHG}, s{sHG}, {opt("--hgx", 0)}""")
    if FULLF: a("v_lshlrev_b32 v166, 3, v0")
    if STAMP: a(f"v_mov_b32 v{VST}, 0")
    stamp(a, 0)
    a(f"""s_cmp_lt_u32 s{sW}, 8
          s_cbranch_scc1 L_consumer""")
    sQO, sF2, sPTV = 12, 13, 14
    def pt_load():
        if MODE == "auto":
            a(f"""v_and_b32 v147, 31, v0
                  v_lshl_add_u32 v147, v147, 3, s{sX}
                  v_lshlrev_b32 v147, 7, v147
                  v_add_u32 v147, {WS_PT}, v147
                  buffer_load_dword v148, v147, s[{SWS}:{SWS+3}], 0 offen sc1""")
    sLW, sROT, sSOX, sSOW, sMX, sMW, sTY = 23, 15, 28, 29, 30, 31, 27
    SX, SWD, SAX = 36, 40, 48
    SWOD, SOUT = 44, 40
    sC0 = 24
    XO, WO_, XA1 = 8, 10, 14
    sRA, sAX = 21, 25
    a(f"""s_sub_u32 s{sLW}, s{sW}, 8
          s_lshl_b32 s3, s{sTB}, 2
          s_add_u32 s3, s3, s{sLW}
          s_lshl_b32 s3, s3, 14                    ; (64tb + 16lw)*1024
          v_lshrrev_b32 v1, 3, v0
          v_and_b32 v2, 7, v0
          v_lshrrev_b32 v3, 4, v0
          v_xor_b32 v4, v3, v2
          v_xor_b32 v5, 4, v4
          v_lshlrev_b32 v4, 4, v4
          v_lshlrev_b32 v5, 4, v5
          v_lshl_add_u32 v6, v1, 10, s3
          v_add_u32 v{XO}, v6, v4
          v_add3_u32 v{XO+1}, v6, v5, s4
          v_and_b32 v6, 1, v3
          v_lshlrev_b32 v6, 2, v6
          v_xor_b32 v6, v6, v2
          s_lshl_b32 s3, s{sHG}, 7
          v_lshl_add_u32 v6, v6, 4, s3
          s_and_b32 s3, s{sLW}, 1
          s_lshl_b32 s3, s3, 5
          v_add_u32 v7, s3, v1
          s_movk_i32 s3, 3072
          v_mad_u32_u24 v{WO_}, v7, s3, v6""".replace("v_add3_u32 v9, v6, v5, s4", "v_add_u32 v9, v6, v5\n          v_add_u32 v9, 8192, v9"))
    for jw in range(1, 4): a(f"v_add_u32 v{WO_+jw}, {8*3072*jw}, v{WO_}")
    a(f"""s_and_b32 s3, s{sJ}, 3
          s_lshl_b32 s3, s3, 1
          s_add_u32 s3, s3, s{sHG}
          s_add_u32 s3, s3, s{sX}
          s_and_b32 s{sROT}, s3, {opt('--rmask', 4)}
          s_lshr_b32 s{sTY}, s{sLW}, 1
          s_lshl_b32 s{sTY}, s{sTY}, 10
          s_add_u32 s{sTY}, s{sTY}, 1024
          s_lshl_b32 s{sSOX}, s{sROT}, 7
          s_mul_i32 s{sSOW}, s{sROT}, {64*3072}
          s_add_u32 s{sSOW}, s{sSOW}, s{sTY}
          s_lshl_b32 s{sMX}, s{sLW}, 11
          s_lshl_b32 s{sMW}, s{sLW}, 12
          s_waitcnt lgkmcnt(0)""")
    srd(a, SX, kBX, 0x200000)
    srd(a, SWD, kWQ, 0x180000)
    stamp(a, 1)
    def dma(sm0, m0off, v, S, so):
        a(f"""s_add_u32 m0, s{sm0}, {m0off}
              s_nop 0
              buffer_load_dwordx4 v{v}, s[{S}:{S+3}], s{so} offen lds""")
    def issue(st):
        if st < 8:
            for j in range(2): dma(sMX, XR + st*8192 + j*1024, XO+j, SX, sSOX)
        base = WR + (st % NS)*WSL if st < 8 else QSLOT[st-8]
        for j in range(4): dma(sMW, base + j*1024, WO_+j, SWD, sSOW)
        if st == 0:
            a(f"""; A_x rows: pi = 8*(x>>1) + (j&7) ; p = lw>>1, s1 = 16*(lw&1) + 8j + (i>>3)
          s_lshl_b32 s3, s{sTB}, 1
          s_lshr_b32 s4, s{sLW}, 1
          s_add_u32 s3, s3, s4
          s_lshl_b32 s3, s3, 10
          s_and_b32 s4, s{sLW}, 1
          s_lshl_b32 s4, s4, 20
          s_add_u32 s3, s3, s4
          v_lshl_add_u32 v6, v1, {10 if '--xcont' in sys.argv else 16}, s3
          v_add_u32 v{XA1}, v6, v4
          v_add_u32 v{XA1+1}, v6, v5
          v_add_u32 v{XA1+1}, {8*1024 if '--xcont' in sys.argv else 8*65536}, v{XA1+1}
          s_lshr_b32 s3, s{sJ}, 2
          s_and_b32 s{sRA}, s3, {opt('--amask', 4)}
          s_lshl_b32 s{sAX}, s{sRA}, 7""")
            srd(a, SAX, kAX, 0x200000)
        if st < 8:
            for j in range(2): dma(sMX, base + 16384 + j*1024, XO+j if '--xsame' in sys.argv else XA1+j, SX if '--xsame' in sys.argv else SAX, sSOX if '--xsame' in sys.argv else sAX)
        if st < 7:
            a(f"""s_add_u32 s{sROT}, s{sROT}, 1
                  s_and_b32 s{sROT}, s{sROT}, 7
                  s_lshl_b32 s{sSOX}, s{sROT}, 7
                  s_mul_i32 s{sSOW}, s{sROT}, {64*3072}
                  s_add_u32 s{sSOW}, s{sSOW}, s{sTY}
                  s_add_u32 s{sAX}, s{sAX}, 128
                  s_and_b32 s{sAX}, s{sAX}, 1023""")
        elif st < 11:
            if st == 7:
                a(f"""s_lshr_b32 s3, s{sLW}, 1
                      s_add_u32 s3, s3, 1
                      s_add_u32 s{sROT}, s{sROT}, s3""")
            else:
                a(f"s_add_u32 s{sROT}, s{sROT}, 2")
            a(f"""s_and_b32 s{sROT}, s{sROT}, 7
                  s_mul_i32 s{sSOW}, s{sROT}, {64*3072}""")
    issue(0); issue(1)
    if NS == 4: issue(2)
    srd(a, SWS, kWS, 0x1000000)
    srd(a, 56, kDBG, 256)
    a(f"""          ; wo voffset: (128lw + (i>>3))*1024 + hg*128 + ((i&7) ^ (((i>>4)&1)<<2))*16
          v_and_b32 v6, 1, v3
          v_lshlrev_b32 v6, 2, v6
          v_xor_b32 v6, v6, v2
          s_lshl_b32 s3, s{sLW}, 17
          s_lshl_b32 s4, s{sHG}, 7
          s_add_u32 s3, s3, s4
          v_lshl_add_u32 v6, v6, 4, s3
          v_lshl_add_u32 v19, v1, 10, v6
          s_lshl_b32 s6, s{sX}, 1
          s_and_b32 s4, s{sJ}, 1
          s_add_u32 s6, s6, s4                    ; tc
          s_lshr_b32 s7, s{sJ}, 1                 ; cr16
          s_lshl_b32 s{sC0}, s7, 5
          s_lshr_b32 s4, s6, 2
          s_lshl_b32 s4, s4, 3
          s_and_b32 s5, s6, 3
          s_add_u32 s4, s4, s5
          s_and_b32 s5, s{sW}, 1
          s_lshl_b32 s5, s5, 2
          s_add_u32 s5, s4, s5                    ; t1 source
          s_sub_u32 s4, 32, s5
          s_and_b32 s4, s4, 31
          s_cmp_lt_u32 s2, 128
          s_cselect_b32 s8, s5, s4
          s_cselect_b64 vcc, -1, 0
          v_and_b32 v5, 31, v0
          s_and_b32 s4, s{sW}, 2
          s_lshl_b32 s4, s4, 4
          v_add_u32 v5, s4, v5
          v_lshl_add_u32 v20, v5, 5, s8
          v_lshrrev_b32 v7, 5, v0                 ; h
          v_sub_u32 v6, 2048, v20
          v_cndmask_b32 v6, v6, v20, vcc
          v_cvt_f32_u32 v6, v6
          v_mul_f32 v17, 0x3a000000, v6
          v_lshlrev_b32 v6, 5, v7
          v_cvt_f32_u32 v6, v6
          v_mul_f32 v28, v17, v6
          v_and_b32 v5, 0x13, v0
          v_bfe_u32 v6, v0, 2, 1
          v_lshl_or_b32 v5, v6, 3, v5
          v_bfe_u32 v6, v0, 3, 1
          v_lshl_or_b32 v5, v6, 2, v5
          v_add_u32 v5, s{sC0}, v5                ; c
          v_sub_u32 v6, 512, v5
          v_cndmask_b32 v5, v6, v5, vcc           ; e
          s_mul_i32 s4, s6, {U_ROW}
          s_and_b32 s5, s{sW}, 1
          s_lshl_b32 s5, s5, 3
          s_add_u32 s4, s4, s5
          s_add_u32 s4, s4, {WS_U}
          v_lshl_add_u32 v5, v5, 4, s4
          s_mov_b32 s5, {16*U_GP}
          v_mad_u32_u24 v22, v7, s5, v5           ; U address
          s_sub_u32 s5, 15, s7
          s_cmp_lt_u32 s2, 128
          s_cselect_b32 s4, s7, s5                ; e block b
          s_cselect_b32 s5, 0, 1
          v_mul_u32_u24 v5, s5, v7
          v_add_u32 v5, s4, v5
          v_and_b32 v5, 7, v5
          v_and_b32 v6, 31, v0
          v_lshlrev_b32 v6, 3, v6
          v_lshl_add_u32 v5, v5, 8, v6
          v_add_u32 v21, {WS_F3}, v5
          v_lshrrev_b32 v4, 1, v0
          v_add_u32 v4, s{sTB}, v4
          v_subrev_u32 v4, 4, v4
          v_and_b32 v5, 3, v4
          v_bfe_u32 v4, v4, 2, 3
          v_lshl_add_u32 v4, v5, 3, v4
          s_lshr_b32 s4, s2, 5
          s_lshl_b32 s4, s4, 12
          s_and_b32 s5, s{sLW}, 2
          s_lshl_b32 s5, s5, 2
          s_add_u32 s4, s4, s5
          v_lshl_add_u32 v4, v4, 7, s4
          v_and_b32 v5, 1, v0
          v_lshl_add_u32 v4, v5, 2, v4
          v_add_u32 v16, {WS_F1}, v4
          v_lshlrev_b32 v1, 4, v0
          s_lshl_b32 s9, s{sHG}, 2
          s_add_u32 s9, s9, s{sLW}
          s_lshl_b32 s5, s{sTB}, 11
          s_lshl_b32 s6, s9, 16
          s_add_u32 s10, s5, s6
          s_add_u32 s5, s10, {WS_O}
          v_lshl_add_u32 v24, v0, 7, s5
          s_lshl_b32 s4, s{sTB}, 6
          s_lshl_b32 s5, s{sLW}, 3
          s_add_u32 s4, s4, s5
          v_bfe_u32 v4, v0, 1, 3
          v_and_b32 v5, 1, v0
          v_lshl_add_u32 v4, v5, 5, v4
          v_add_u32 v4, s4, v4
          v_lshlrev_b32 v4, 2, v4
          v_add_u32 v25, {WS_F2}, v4
          s_lshl_b32 s5, s{sLW}, 19
          s_lshl_b32 s6, s{sTB}, 11
          s_add_u32 s5, s5, s6
          s_add_u32 s13, s5, {WS_O}""")
    MF, A2 = 96, 128
    for i in range(8):
        a(f"""v_add_f32 v29, v28, v17
              v_add_f32 v30, v29, v17
              v_add_f32 v31, v30, v17
              v_cos_f32 v32, v28
              v_cos_f32 v33, v29
              v_cos_f32 v34, v30
              v_cos_f32 v35, v31
              v_sin_f32 v36, v28
              v_sin_f32 v37, v29
              v_sin_f32 v38, v30
              v_sin_f32 v39, v31
              v_add_f32 v28, v31, v17
              v_cvt_pk_bf16_f32 v{MF+4*i}, v32, v36
              v_cvt_pk_bf16_f32 v{MF+4*i+1}, v33, v37
              v_cvt_pk_bf16_f32 v{MF+4*i+2}, v34, v38
              v_cvt_pk_bf16_f32 v{MF+4*i+3}, v35, v39""")
    for i in range(8):
        a(f"s_waitcnt vmcnt({([8]*6 + [9, 5])[i] if NS == 3 else ([16]*5 + [17, 13, 9])[i]})")
        if i in (0, 1, 7): stamp(a, 2+i)
        a("s_barrier")
        issue(i+NS-1)
        if i == 7 and NS == 3: issue(10)
        if i == 8-NS: a("buffer_load_dword v18, off, s[56:59], 0 sc1")
        if i == opt("--qpf", 1):
            a(f"""s_lshl_b32 s4, s2, 1
                  s_lshr_b32 s5, s{sLW}, 1
                  s_add_u32 s4, s4, s5
                  s_mul_i32 s4, s4, 3072
                  s_and_b32 s5, s{sLW}, 1
                  s_lshl_b32 s5, s5, 9
                  s_add_u32 s5, s5, s4
                  s_add_u32 s6, s{kWQ}, s5
                  s_addc_u32 s7, s{kWQ+1}, 0""")
            for k in range(8): a(f"s_load_dword s61, s[6:7], {64*k}")
        if i == 3:
            a(f"""s_lshl_b32 s4, s2, 2
                  s_add_u32 s4, s4, s{sLW}
                  s_lshl_b32 s5, s4, 9
                  s_add_u32 s6, s{kWO}, s5
                  s_addc_u32 s7, s{kWO+1}, 0""")
            for k in range(8): a(f"s_load_dword s61, s[6:7], {64*k}")
    a("s_waitcnt vmcnt(8)")
    stamp(a, 20)
    a("s_barrier")
    issue(11)
    nonce_wait(a, 18, True)
    srd(a, SWOD, kWO, 0x80000)
    srd(a, SOUT, kOUT, 0x400000)
    NT = 3 if MODE == "auto" else 1
    a(f"""s_sub_u32 s3, 4, s{sTB}
          s_max_i32 s3, s3, 0
          s_lshl_b32 s4, s3, 1
          s_lshl_b32 s6, 0xff, s4
          s_and_b32 s6, s6, 0xff
          s_mov_b32 s7, 0
          s_mul_i32 s8, s{sLW}, {HSTR}
          s_add_u32 s8, s8, 6144
          s_add_u32 s10, s10, {WS_K - 2048}
          s_lshl_b32 s30, s{sLW}, 14
          v_mov_b32 v2, 0x7ffffff0
          s_waitcnt vmcnt(8) lgkmcnt(0)
          s_barrier
          s_waitcnt vmcnt(4)
          s_barrier
          s_waitcnt vmcnt(0)""")
    stamp(a, 23)
    a(f"""s_barrier
          s_mov_b64 exec, s[6:7]
          s_cbranch_execz L_kv0
          buffer_load_dword v5, v16, s[{SWS}:{SWS+3}], 0 offen sc1
          s_mov_b64 exec, -1
          s_barrier
          {"s_barrier" if OWNB == 0 else ""}
          s_mov_b64 exec, s[6:7]
          s_waitcnt vmcnt(0)
          v_cmp_ne_u32 vcc, s{sNON}, v5
          s_mov_b64 exec, -1
          s_cbranch_vccz L_kv1""")
    poll(a, 16, 5, "s[6:7]")
    a("s_branch L_kv1")
    a.label("L_kv0")
    a("s_mov_b64 exec, -1\ns_barrier")
    if OWNB == 0: a("s_barrier")
    a.label("L_kv1")
    stamp(a, 10)
    def kv_grp(g):
        a(f"""s_cmp_gt_u32 s{sTB}, {g}
              s_cbranch_scc1 L_kvr{g}
              v_mov_b32 v3, v2
              s_mov_b32 s10, {2048*g}""")
        a.label(f"L_kvr{g}")
        a(f"""s_sub_u32 m0, s8, {2048*g}
              s_sub_u32 s4, s10, {2048*g}
              buffer_load_dwordx4 v3, s[{SWS}:{SWS+3}], s4 offen {KVLD} lds
              buffer_load_dwordx4 v3, s[{SWS}:{SWS+3}], s4 offen offset:1024 {KVLD} lds
              s_add_u32 m0, m0, 10240
              s_add_u32 s4, s4, {WS_V - WS_K}
              buffer_load_dwordx4 v3, s[{SWS}:{SWS+3}], s4 offen {KVLD} lds
              buffer_load_dwordx4 v3, s[{SWS}:{SWS+3}], s4 offen offset:1024 {KVLD} lds""")
    KV1 = opt("--kv1", 3)
    a("v_mov_b32 v3, v1")
    for g in range(KV1): kv_grp(g)
    def wo_grp(g):
        a(f"""s_add_u32 s3, s{sJ}, {g}
              s_and_b32 s3, s3, 3
              s_lshl_b32 s4, s3, 12
              s_add_u32 s4, s4, s30
              s_add_u32 s4, s4, {WO_BASE}
              s_lshl_b32 s5, s3, 15""")
        for jj in range(4):
            a(f"""s_add_u32 m0, s4, {jj*1024}
                  s_add_u32 s6, s5, {jj*8192}
                  buffer_load_dwordx4 v19, s[{SWOD}:{SWOD+3}], s6 offen lds""")
    a(f"""s_lshl_b32 s3, s{sLW}, 2
          s_add_u32 s3, s3, {KVF}
          v_mov_b32 v6, s3
          v_mov_b32 v7, 0
          ds_write_b32 v6, v7
          v_mov_b32 v7, 1
          {"s_barrier" if OWNB == 1 else ""}
          s_waitcnt vmcnt({4*KV1-4}) lgkmcnt(0)""")
    stamp(a, 11)
    a("s_barrier")
    stamp(a, 12)
    for g in range(KV1, 4): kv_grp(g)
    a(f"""s_waitcnt vmcnt(8)
          s_barrier
          buffer_load_dwordx2 v[4:5], v21, s[{SWS}:{SWS+3}], 0 offen sc1""")
    if MODE == "auto":
        a(f"""s_mov_b64 exec, 0xffff
              buffer_load_dword v27, v24, s[{SWS}:{SWS+3}], 0 offen
              buffer_load_dword v26, v25, s[{SWS}:{SWS+3}], 0 offen sc1
              s_mov_b64 exec, -1""")
    a(f"""s_waitcnt vmcnt({NT + 4})
          ds_write_b32 v6, v7
          v_mov_b32 v7, 2""")
    wo_grp(0)
    a(f"""s_waitcnt vmcnt({NT + 4})
          ds_write_b32 v6, v7""")
    stamp(a, 21)
    for g in range(1, 4): wo_grp(g)
    a(f"""s_waitcnt vmcnt(16)
          v_cmp_ne_u32 vcc, s{sNON}, v4
          v_cmp_ne_u32 s[4:5], s{sNON}, v5
          s_or_b64 vcc, vcc, s[4:5]
          s_cbranch_vccz L_uok""")
    poll2(a, 21, 4)
    a.label("L_uok")
    stamp(a, 26)
    for js in range(8):
        for b in range(2):
            a(f"""s_mov_b32 s4, {(2*js + b)*U_GP}
                  buffer_load_dwordx2 {vr(UF+4*js+2*b,2)}, v22, s[{SWS}:{SWS+3}], s4 offen {LD}""")
    a(f"""v_lshrrev_b32 v3, 5, v0
          v_lshlrev_b32 v10, 11, v20
          v_lshl_add_u32 v10, v3, 4, v10
          s_lshl_b32 s4, s{sC0}, 1
          v_add_u32 v10, s4, v10""")
    stamp(a, 27)
    for js in range(8):
        a(f"s_waitcnt vmcnt({14-2*js})")
        a(f"{MFMA} {vr(A2,16)}, {vr(UF+4*js,4)}, {vr(MF+4*js,4)}, {'0' if js == 0 else vr(A2,16)}")
    a("s_nop 11")
    for t in range(8): a(f"v_cvt_pk_bf16_f32 v{UF+t}, v{A2+2*t}, v{A2+2*t+1}")
    a("s_barrier")
    stamp(a, 14)
    def o_fetch():
        a(f"""s_lshl_b32 s4, s8, 13
              s_add_u32 s4, s4, s30
              s_lshl_b32 s5, s8, 18
              s_add_u32 s5, s5, s13""")
        for j in range(4):
            a(f"""s_add_u32 m0, s4, {j*2048}
                  s_add_u32 s7, s5, {j*65536}
                  buffer_load_dwordx4 v1, s[{SWS}:{SWS+3}], s7 offen {LD} lds
                  buffer_load_dwordx4 v1, s[{SWS}:{SWS+3}], s7 offen offset:1024 {LD} lds""")
    a(f"""s_mov_b32 s60, 0
          s_mov_b32 s8, 0
          s_mov_b32 s9, 1""")
    a.label("L_opl")
    a(f"""s_mov_b64 exec, 0xffff
          buffer_load_dword v5, v25, s[{SWS}:{SWS+3}], 0 offen sc1
          s_add_u32 s60, s60, 1
          s_cmp_gt_u32 s60, {SPIN_MAX}
          s_cbranch_scc1 L_opx
          s_waitcnt vmcnt(0)
          v_cmp_ne_u32 vcc, s{sNON}, v5
          s_and_b32 s4, vcc_lo, 0xff
          s_and_b32 s9, vcc_lo, 0xff00
          s_cmp_lg_u32 s4, 0
          s_cbranch_scc1 L_opl""")
    a.label("L_opx")
    a("s_mov_b64 exec, -1")
    o_fetch()
    a(f"""s_mov_b32 s8, 1
          s_cmp_lg_u32 s9, 0
          s_cbranch_scc1 L_op2""")
    o_fetch()
    a("""s_waitcnt vmcnt(8) lgkmcnt(0)
         s_barrier
         s_branch L_op3""")
    a.label("L_op2")
    a(f"""s_lshl_b32 s3, s8, 3
          s_lshl_b32 s10, 0xff, s3
          s_mov_b32 s11, 0
          s_waitcnt vmcnt(0) lgkmcnt(0)
          s_barrier""")
    poll(a, 25, 5, "s[10:11]")
    o_fetch()
    a.label("L_op3")
    stamp(a, 15)
    a("s_waitcnt vmcnt(0)\ns_barrier")
    for mm in range(2):
        a(f"buffer_store_dwordx4 {vr(UF+4*mm,4)}, v10, s[{SOUT}:{SOUT+3}], 0 offen offset:{32*mm} {A2F}")
    stamp(a, 13)
    stamp_flush(a, 18)
    a("s_endpgm")

    a.label("L_consumer")
    if "--nocpf" not in sys.argv:
        a(f"""s_cmp_lg_u32 s{sW}, 7
              s_cbranch_scc1 L_cpf1
              s_getpc_b64 s[4:5]""")
        a.label("L_cpf0")
        a(f"""s_sub_u32 s4, s4, L_cpf0-{KN}
              s_subb_u32 s5, s5, 0
              s_lshl_b32 s3, s{sJ}, 3
              v_add_u32 v1, s3, v0
              v_lshlrev_b32 v1, 7, v1
              v_cmp_gt_u32 vcc, L_last_insn-{KN}, v1
              s_and_b64 exec, vcc, 0xff
              s_cbranch_execz L_cpf2
              v_mov_b32 v3, s5
              v_add_co_u32 v2, vcc, s4, v1
              s_nop 1
              v_addc_co_u32 v3, vcc, 0, v3, vcc
              global_load_dword v165, v[2:3], off""")
        a.label("L_cpf2")
        a("s_mov_b64 exec, -1")
        a.label("L_cpf1")
    sIT, sDEL, sSL = 25, 26, 30
    sMASK = 28
    XA, WA = 8, 12
    ACC = 64
    a(f"""v_and_b32 v1, 31, v0
          v_lshrrev_b32 v2, 5, v0
          v_bfe_u32 v3, v0, 1, 3
          v_xor_b32 v3, v3, v2
          v_lshlrev_b32 v4, 7, v1
          s_or_b32 s3, s2, s{sW}
          s_cmp_lg_u32 s3, 4
          s_waitcnt lgkmcnt(0)""")
    srd(a, 56, kDBG, 256)
    a(f"""s_cbranch_scc1 L_nonpub
          s_cmp_lg_u32 s2, 0
          s_cbranch_scc1 L_nonpub
          s_memrealtime s[4:5]
          s_waitcnt lgkmcnt(0)
          s_or_b32 s4, s4, 1
          v_mov_b32 v5, s4
          s_mov_b64 exec, 1
          buffer_store_dword v5, off, s[56:59], 0 sc0 sc1
          s_mov_b64 exec, -1""")
    a.label("L_nonpub")
    srd(a, SWS, kWS, 0x1000000)
    for kk in range(4):
        a(f"""v_xor_b32 v5, {2*kk}, v3
              v_lshl_add_u32 v{XA+kk}, v5, 4, v4""")
    a(f"""s_getreg_b32 s{sPTV}, hwreg(HW_REG_XCC_ID, 0, 16)
          s_lshl_b32 s{sPTV}, s{sPTV}, 8
          v_bfe_u32 v3, v0, 2, 2
          v_lshl_add_u32 v7, v2, 3, v3             ; 8h + r
          v_lshlrev_b32 v4, 7, v7
          v_bfe_u32 v5, v0, 4, 1
          v_lshlrev_b32 v5, 1, v5
          v_bfe_u32 v6, v0, 1, 1
          v_add_u32 v5, v5, v6
          s_and_b32 s3, s{sW}, 2
          s_lshl_b32 s3, s3, 1
          v_add_u32 v5, s3, v5
          v_bfe_u32 v6, v0, 3, 1
          v_lshlrev_b32 v6, 2, v6
          v_xor_b32 v5, v5, v6
          v_lshl_add_u32 v4, v5, 4, v4
          v_and_b32 v6, 1, v0
          v_lshl_add_u32 v4, v6, 3, v4
          s_cmp_lt_u32 s{sW}, 4
          s_cbranch_scc1 L_kv""")
    sEH, sCA = 24, 25
    XF, AA, AB, WG, TM = 20, 36, 52, 100, 68
    XCH = WR + (7 % NS)*WSL + 16384
    DL, PH, SG, UA, NV, EI, XC = 12, 13, 14, 15, 3, 7, 16
    a(f"""s_and_b32 s3, s{sW}, 2
          s_lshl_b32 s3, s3, 11
          s_add_u32 s3, s3, {WR+16384}""")
    for kk in range(4): a(f"v_add_u32 v{XA+kk}, s3, v{XA+kk}")
    a(f"""s_and_b32 s{sEH}, s{sW}, 1
          s_lshr_b32 s3, s{sJ}, 2                  ; eb
          s_and_b32 s{sCA}, s3, {opt('--amask', 4)}
          s_lshl_b32 s3, s3, 1
          s_add_u32 s6, s3, s{sEH}
          s_lshl_b32 s3, s6, 4
          v_and_b32 v5, 15, v0
          v_add_u32 v{EI}, s3, v5                  ; e
          v_bfe_u32 v6, v0, 4, 1
          v_cvt_f32_u32 v{PH}, v6
          v_mul_f32 v{PH}, 0x3e800000, v{PH}
          s_cmp_eq_u32 s6, 0
          s_cselect_b32 s{sMASK}, 0x10000, 0
          s_mov_b32 s{sMASK+1}, s{sMASK}
          v_mov_b32 v6, 256
          v_cndmask_b32 v{EI}, v{EI}, v6, s[{sMASK}:{sMASK+1}]
          v_cndmask_b32 v{PH}, v{PH}, 0, s[{sMASK}:{sMASK+1}]
          v_cvt_f32_u32 v{DL}, v{EI}
          v_mul_f32 v{DL}, 0x3b000000, v{DL}       ; e/512
          v_and_b32 v6, 1, v0
          v_lshlrev_b32 v6, 31, v6
          v_or_b32 v{SG}, 1.0, v6
          s_mov_b32 s3, s{sTB}                     ; pi
          s_lshr_b32 s4, s6, 1
          s_lshl_b32 s4, s4, 5
          s_add_u32 s4, s4, s3
          s_lshl_b32 s4, s4, 1
          s_add_u32 s4, s4, s{sEH}
          s_lshl_b32 s26, s4, 2
          s_mul_i32 s3, s3, {U_GP}
          s_lshl_b32 s4, s6, 8
          s_add_u32 s3, s3, s4
          s_add_u32 s3, s3, {WS_U}
          v_lshl_add_u32 v5, v5, 4, s3
          v_lshrrev_b32 v6, 4, v0
          s_movk_i32 s4, {U_ROW}
          v_mad_u32_u24 v{UA}, v6, s4, v5
          s_lshl_b32 s3, s{sEH}, 11
          s_add_u32 s3, s3, {XCH}
          v_lshl_add_u32 v{XC}, v0, 4, s3""")
    def genw(c):
        o = [f"""s_add_u32 s3, s{sCA}, {c}
              s_and_b32 s3, s3, 7
              s_lshl_b32 s3, s3, 6
              v_lshl_add_u32 v{TM}, v2, 3, s3
              v_cvt_f32_u32 v{TM}, v{TM}
              v_mul_f32 v{TM}, v{TM}, v{DL}
              v_fract_f32 v{TM}, v{TM}
              v_add_f32 v{TM}, v{TM}, v{PH}"""]
        for kk in range(4):
            t = []
            for j in range(1, 8): t.append(f"v_add_f32 v{TM+j}, v{TM+j-1}, v{DL}")
            for j in range(8): t.append(f"v_cos_f32 v{TM+8+j}, v{TM+j}")
            t.append(f"v_fmamk_f32 v{TM}, v{DL}, 0x41100000, v{TM+7}")
            for j in range(4): t.append(f"v_cvt_pk_bf16_f32 v{WG+16*c+4*kk+j}, v{TM+8+2*j}, v{TM+9+2*j}")
            o.append("\n".join(t))
        return o
    CR, CI, NCI = 68+16, 68+24, WG
    def genc(m, T):
        t = []
        for j in range(8):
            cj = 16*m + (j % 4) + 8*(j // 4)
            t.append(f"""v_mad_u32_u24 v{T+j}, v1, {cj}, v{PH}
                  v_and_b32 v{T+j}, 31, v{T+j}
                  v_cvt_f32_u32 v{T+j}, v{T+j}
                  v_mul_f32 v{T+j}, 0x3d000000, v{T+j}""")
        u = [f"v_cos_f32 v{T+8+j}, v{T+j}" for j in range(8)] + [f"v_sin_f32 v{T+j}, v{T+j}" for j in range(8)] + ["s_nop 0"]
        for j in range(4):
            u.append(f"""v_cvt_pk_bf16_f32 v{CR+4*m+j}, v{T+8+2*j}, v{T+9+2*j}
                  v_cvt_pk_bf16_f32 v{CI+4*m+j}, -v{T+2*j}, -v{T+1+2*j}
                  v_cvt_pk_bf16_f32 v{NCI+4*m+j}, v{T+2*j}, v{T+1+2*j}""")
        return ["\n".join(t[:4]), "\n".join(t[4:]), "\n".join(u[:17]), "\n".join(u[17:])]
    for c in range(2):
        for x in genw(c): a(x)
    a("s_barrier")
    def rda(g): return f"ds_read_b128 {vr(XF+4*(g % 4),4)}, v{XA+g % 4}" if g < 32 else ""
    a(rda(0)); a(rda(1))
    for st in range(8):
        fill = {0: genw(2), 1: genw(3), 5: genc(0, TM), 6: genc(1, TM)}.get(st, [])
        if st in (0, 1): fill = [fill[0] + "\n" + fill[1]] + fill[2:]
        if st == 2: fill = ["", "", "", f"v_lshlrev_b32 v{PH}, 2, v2\nv_mul_u32_u24 v{PH}, v{PH}, v1"]
        acc = AA if st < 4 else AB
        for kk in range(4):
            g = 4*st + kk
            mm_ = f"{MFMA} {vr(acc,16)}, {vr(XF+4*(g % 4),4)}, {vr(WG+16*(st%4)+4*kk,4)}, {'0' if (st % 4 == 0 and kk == 0) else vr(acc,16)}"
            if kk < 3:
                a("s_waitcnt lgkmcnt(1)")
                a(mm_)
                if kk < 2: a(rda(g+2))
                if fill: a(fill[kk])
            if kk == 2:
                if st < 7:
                    d = WSL if (st+1) % NS else -(NS-1)*WSL
                    a(f"s_mov_b32 s3, {d}")
                    for r in range(4): a(f"v_add_u32 v{XA+r}, s3, v{XA+r}")
                    a("s_waitcnt lgkmcnt(0)\ns_barrier")
                    if st == 4: a(f"buffer_load_dword v{NV}, off, s[56:59], 0 sc1")
                    a(rda(g+2))
                else:
                    a("s_waitcnt lgkmcnt(0)")
            if kk == 3:
                a(mm_); a(rda(g+2))
                if fill: a(fill[3])
    stamp(a, 7)
    PK, SV, RE, IM, D1, D2 = XF, WG+24, WG+32, WG+48, AA, AB
    a("s_nop 11")
    for r in range(16): a(f"v_fma_f32 v{AA+r}, v{AB+r}, v{SG}, v{AA+r}")
    for t in range(8): a(f"v_cvt_pk_bf16_f32 v{PK+t}, v{AA+2*t}, v{AA+2*t+1}")
    a("s_waitcnt vmcnt(0)")
    nonce_wait(a, NV, True)
    a(f"""s_xor_b32 s{sPTV}, s{sPTV}, s{sNON}
          s_barrier
          s_cmp_lt_u32 s{sW}, 6
          s_cbranch_scc1 L_a1e
          ds_write_b128 v{XC}, {vr(PK,4)}
          ds_write_b128 v{XC}, {vr(PK+4,4)} offset:1024
          s_waitcnt lgkmcnt(0)
          s_barrier
          s_barrier
          s_barrier
          s_barrier
          s_branch L_att""")
    a.label("L_a1e")
    a(f"""s_barrier
          ds_read_b128 {vr(PK+8,4)}, v{XC}
          ds_read_b128 {vr(PK+12,4)}, v{XC} offset:1024
          s_waitcnt lgkmcnt(0)""")
    for t in range(8): a(f"v_permlane16_swap_b32 v{PK+t}, v{PK+8+t}")
    a(f"""s_mov_b32 s6, 0x00010001
          s_mov_b32 s7, 0x00010001
          s_cmp_eq_u32 s{sMASK}, 0
          s_cbranch_scc1 L_nosp1""")
    for t in range(8):
        a(f"v_mov_b32 v{SV+t}, v{PK+8+t}")
        a(f"v_cndmask_b32 v{PK+8+t}, v{PK+8+t}, 0, s[6:7]")
    a.label("L_nosp1")
    a("s_nop 1")
    def step1(aa, bb):
        a(f"{MFMA} {vr(RE,16)}, {vr(CR,4)}, {vr(aa,4)}, 0")
        a(f"{MFMA} {vr(IM,16)}, {vr(CI,4)}, {vr(aa,4)}, 0")
        a(f"{MFMA} {vr(RE,16)}, {vr(CR+4,4)}, {vr(aa+4,4)}, {vr(RE,16)}")
        a(f"{MFMA} {vr(IM,16)}, {vr(CI+4,4)}, {vr(aa+4,4)}, {vr(IM,16)}")
        if bb is not None:
            for m in range(2):
                a(f"{MFMA} {vr(RE,16)}, {vr(NCI+4*m,4)}, {vr(bb+4*m,4)}, {vr(RE,16)}")
                a(f"{MFMA} {vr(IM,16)}, {vr(CR+4*m,4)}, {vr(bb+4*m,4)}, {vr(IM,16)}")
    def upack(D):
        for r in range(16): a(f"v_cvt_pk_bf16_f32 v{D+r}, v{RE+r}, v{IM+r}")
        for g in range(4):
            d = D + 4*g
            a(f"""v_permlane32_swap_b32 v{d}, v{d+2}
                  v_permlane32_swap_b32 v{d+1}, v{d+3}""")
        for g in range(4):
            d = D + 4*g
            a(f"""v_permlane16_swap_b32 v{d}, v{d+1}
                  v_permlane16_swap_b32 v{d+2}, v{d+3}""")
    def ust(D, off):
        for g in range(4):
            a(f"""s_mov_b32 s4, {4*g*U_ROW + off}
                  buffer_store_dwordx4 {vr(D+4*g,4)}, v{UA}, s[{SWS}:{SWS+3}], s4 offen {ST}""")
    step1(PK, PK+8)
    a("s_barrier\ns_nop 10")
    upack(D1)
    a(f"""s_cmp_eq_u32 s{sMASK}, 0
          s_cbranch_scc1 L_nosp2""")
    step1(SV, None)
    a("s_nop 11")
    upack(D2)
    a.label("L_nosp2")
    stamp(a, 8)
    ust(D1, 0)
    a(f"""s_cmp_eq_u32 s{sMASK}, 0
          s_cbranch_scc1 L_nosp3
          s_mov_b64 exec, s[6:7]""")
    ust(D2, 4096)
    a("s_mov_b64 exec, -1")
    a.label("L_nosp3")
    a(f"""s_barrier
          s_barrier
          s_add_u32 s3, s26, {WS_F3}""")
    publish(a, 3, 6)
    a("s_branch L_att")

    a.label("L_kv")
    FR = 32
    FK = 96
    def X(b, i): return FK + 12*b + 4*i
    def W(b): return FK + 12*b + 8
    a(f"""s_and_b32 s3, s{sW}, 1
          s_lshl_b32 s3, s3, 13
          s_add_u32 s3, s3, {WR}
          v_add_u32 v{WA}, s3, v4""")
    for r in range(32): a(f"v_mov_b32 v{ACC+r}, 0")
    a(f"""s_lshl_b32 s3, s2, 5
          s_add_u32 s3, s3, s{sW}
          s_lshl_b32 s3, s3, 2
          s_add_u32 s31, s3, {WS_F1}
          s_lshl_b32 s3, s{sHG}, 2
          s_and_b32 s4, s{sW}, 2
          s_add_u32 s3, s3, s4
          s_lshl_b32 s3, s3, 16
          s_lshl_b32 s4, s{sTB}, 11
          s_add_u32 s3, s3, s4
          s_add_u32 s3, s3, {WS_K}
          v_lshl_add_u32 v14, v0, 4, s3
          s_add_u32 s3, s3, {WS_V - WS_K}
          v_bfe_u32 v5, v0, 4, 1
          v_lshlrev_b32 v5, 16, v5
          v_lshl_add_u32 v5, v2, 8, v5
          v_and_b32 v6, 15, v0
          v_lshl_add_u32 v5, v6, 4, v5
          v_add_u32 v16, s3, v5
          v_mov_b32 v21, v4
          s_and_b32 s4, s{sW}, 2
          s_mul_i32 s3, s4, {HSTR}
          s_add_u32 s3, s3, 8192
          v_lshl_add_u32 v17, v0, 4, s3
          s_add_u32 s3, s3, 10240
          v_bfe_u32 v5, v0, 4, 1
          v_mul_u32_u24 v5, {HSTR}, v5
          v_lshl_add_u32 v5, v2, 8, v5
          v_lshl_add_u32 v5, v6, 4, v5
          v_add_u32 v18, s3, v5
          s_and_b32 s3, s{sW}, 1
          s_lshl_b32 s3, s3, 12
          s_lshl_b32 s4, s4, 10
          s_add_u32 s3, s3, s4
          s_add_u32 s3, s3, {Q_BASE}
          v_lshl_add_u32 v20, v0, 4, s3
          s_mov_b32 s8, {f2u(QSCALE):#x}
          s_mov_b32 s9, s8""")
    def rd(kk, b):
        return [f"ds_read_b128 {vr(X(b,i),4)}, v{XA+kk} offset:{i*4096}" for i in range(2)] + [f"ds_read_b64_tr_b16 {vr(W(b)+2*q,2)}, v{WA} offset:{kk*2048 + q*512}" for q in range(2)]
    def step(b, variant, r):
        m = []
        for i in range(2):
            A_, B_ = (W(b), X(b,i)) if variant == "K" else (X(b,i), W(b))
            m.append(f"{MFMA} {vr(ACC+16*i,16)}, {vr(A_,4)}, {vr(B_,4)}, {vr(ACC+16*i,16)}")
        for x in [m[0]] + r[:2] + [m[1]] + r[2:]: a(x)
    a(f"""s_mov_b32 s{sIT}, 0
          s_mov_b32 s{sSL}, 0
          s_mov_b32 s27, {WSL}""")
    stamp(a, 1)
    a("s_barrier")
    stamp(a, 2)
    for x in rd(0, 0) + rd(1, 1): a(x)
    a(f"""s_bitcmp1_b32 s{sW}, 0
          s_cbranch_scc1 L_loopV""")
    for variant in ("K", "V"):
        a.label(f"L_loop{variant}")
        for kk in range(3):
            a("s_waitcnt lgkmcnt(4)")
            step(kk, variant, rd(kk+2, kk+2) if kk < 2 else [])
        a(f"""s_add_u32 s{sSL}, s{sSL}, 1
              s_cmp_eq_u32 s{sSL}, {NS}
              s_cselect_b32 s{sDEL}, {-(NS-1)*WSL}, s27
              s_cselect_b32 s{sSL}, 0, s{sSL}
              v_add_u32 v{WA}, s{sDEL}, v{WA}""")
        for r in range(4): a(f"v_add_u32 v{XA+r}, 8192, v{XA+r}")
        a(f"""s_add_u32 s{sIT}, s{sIT}, 1
              s_bitcmp1_b32 0x128, s{sIT}
              s_waitcnt lgkmcnt(0)
              s_cbranch_scc1 L_hook{variant}""")
        a.label(f"L_ret{variant}")
        a("s_barrier")
        for x in rd(0, 0): a(x)
        step(3, variant, rd(1, 1))
        a(f"s_branch L_loop{variant}")
        a.label(f"L_hook{variant}")
        a(f"""s_cmp_eq_u32 s{sIT}, 8
              s_cbranch_scc1 L_last{variant}
              s_cmp_eq_u32 s{sIT}, 5
              s_cbranch_scc1 L_h5{variant}
              buffer_load_dword v19, off, s[56:59], 0 sc1
              s_branch L_ret{variant}""")
        a.label(f"L_h5{variant}")
        a("s_waitcnt vmcnt(0)")
        nonce_wait(a, 19, True)
        a(f"s_xor_b32 s{sPTV}, s{sPTV}, s{sNON}")
        if MODE == "auto" and variant == "K":
            a(f"""s_cmp_lg_u32 s{sW}, 2
                  s_cbranch_scc1 L_ret{variant}
                  s_lshl_b32 s3, s2, 7
                  s_add_u32 s3, s3, {WS_PT}
                  v_mov_b32 v19, s{sPTV}
                  s_mov_b64 exec, 1
                  buffer_store_dword v19, off, s[{SWS}:{SWS+3}], s3 sc1
                  s_mov_b64 exec, -1""")
        a(f"s_branch L_ret{variant}")
        a.label(f"L_last{variant}")
        step(3, variant, [])
        stamp(a, 3)
        a("s_mov_b32 s4, 65536\ns_nop 9")
        for i in range(2):
            for mm in range(2):
                d = FR + 8*i + 4*mm
                for t in range(4): a(f"v_cvt_pk_bf16_f32 v{d+t}, v{ACC+16*i+8*mm+2*t}, v{ACC+16*i+8*mm+2*t+1}")
                if variant == "K":
                    a(f"buffer_store_dwordx4 {vr(d,4)}, v14, s[{SWS}:{SWS+3}], {'s4' if mm else '0'} offen offset:{i*1024} {ST}")
                else:
                    a(f"buffer_store_dwordx4 {vr(d,4)}, v16, s[{SWS}:{SWS+3}], 0 offen offset:{i*1024+mm*512} {ST}")
        if variant == "K": a("s_branch L_kvdone")
    a.label("L_kvdone")
    stamp(a, 4)
    FQ = 96
    a(f"""s_and_b32 s3, s{sW}, 1
          s_lshl_b32 s3, s3, 12
          s_sub_u32 s3, s3, 65536
          v_add_u32 v{WA}, {QSLOT[0]}, v21""")
    for kk in range(4): a(f"v_add_u32 v{XA+kk}, s3, v{XA+kk}")
    a("s_barrier")
    def rdq(u, k, b):
        c2, kk = k // 4, k % 4
        f = FQ + 8*b
        return [f"ds_read_b128 {vr(f,4)}, v{XA+kk} offset:{(2*u+c2)*8192}"] + [f"ds_read_b64_tr_b16 {vr(f+4+2*q,2)}, v{WA} offset:{c2*8192 + kk*2048 + q*512}" for q in range(2)]
    NBQ = 4
    for k in range(3):
        for x in rdq(0, k, k): a(x)
    for u in range(4):
        for k in range(8):
            g = 8*u + k
            last = k >= 5
            if k == 5 and u < 3:
                d = QSLOT[u+1] - QSLOT[u]
                if u == PUBU:
                    publish(a, 31, 6)
                    stamp(a, 5)
                a(f"""s_waitcnt lgkmcnt(0)
                      s_barrier
                      v_add_u32 v{WA}, {d}, v{WA}""")
            nxt = rdq(u, k+3, (g+3) % NBQ) if k < 5 else (rdq(u+1, k-5, (g+3) % NBQ) if u < 3 else [])
            if not (k >= 5 and u < 3) or k > 5 or True:
                outst = 6 if (k < 5 or u < 3) else 3*(7-k)
                if not (k == 5 and u < 3) and not (k in (6, 7) and u < 3): a(f"s_waitcnt lgkmcnt({outst})")
            f = FQ + 8*(g % NBQ)
            a(f"{MFMA} {vr(ACC,16)}, {vr(f+4,4)}, {vr(f,4)}, {'0' if g == 0 else vr(ACC,16)}")
            for x in nxt: a(x)
    a("s_barrier")
    stamp(a, 6)
    a(f"""s_bitcmp1_b32 s{sW}, 0
          s_cbranch_scc1 L_cpv""")
    for i in range(2):
        for mm in range(2): a(f"ds_write_b128 v17, {vr(FR+8*i+4*mm,4)} offset:{mm*HSTR + i*1024}")
    a("s_branch L_cpq")
    a.label("L_cpv")
    for i in range(2):
        for mm in range(2): a(f"ds_write_b128 v18, {vr(FR+8*i+4*mm,4)} offset:{i*1024 + mm*512}")
    a.label("L_cpq")
    a("s_nop 5")
    for t in range(8): a(f"v_pk_mul_f32 {vr(ACC+2*t,2)}, {vr(ACC+2*t,2)}, s[8:9]")
    for t in range(8): a(f"v_cvt_pk_bf16_f32 v{FQ+t}, v{ACC+2*t}, v{ACC+2*t+1}")
    a(f"""ds_write_b128 v20, {vr(FQ,4)}
          ds_write_b128 v20, {vr(FQ+4,4)} offset:1024""")

    a.label("L_att")
    QF = 4
    KA, VA_, NINF, MX = 2, 3, 8, 9
    KF, VF, PP, S, O, CN, CD, CF = 12, 24, 40, 48, 80, 96, 112, 128
    S3, P2, MK = 112, 128, 136
    sVM, sNF, sI = 8, 10, 11
    srd(a, SOUT, kOUT, 0x400000)
    a(f"""s_and_b32 s3, s{sW}, 3
          s_lshr_b32 s5, s{sW}, 2
          s_lshl_b32 s4, s{sHG}, 2
          s_add_u32 s{sHD}, s4, s3
          s_lshl_b32 s4, s{sTB}, 1
          s_add_u32 s4, s4, s5                     ; qb
          s_lshl_b32 s{sQO}, s4, 10
          s_lshl_b32 s6, s{sHD}, 16
          s_add_u32 s{sQO}, s{sQO}, s6
          s_min_u32 s{sNF}, s4, 7
          s_lshl_b32 s4, s4, 5
          s_add_u32 s4, s4, s{sHD}
          s_lshl_b32 s4, s4, 2
          s_add_u32 s{sF2}, s4, {WS_F2}
          v_lshlrev_b32 v1, 4, v0
          s_lshl_b32 s4, s{sW}, 10
          s_add_u32 s4, s4, {Q_BASE}
          v_add_u32 v4, s4, v1
          s_lshl_b32 s4, s3, 2
          s_add_u32 s4, s4, {KVF}
          v_mov_b32 v149, s4
          s_mul_i32 s4, s3, {HSTR}
          s_lshl_b32 s5, s5, 10
          s_add_u32 s4, s4, s5
          v_add_u32 v{KA}, s4, v1
          v_lshrrev_b32 v10, 5, v0
          v_and_b32 v11, 15, v0
          v_lshlrev_b32 v11, 4, v11
          v_lshl_add_u32 v11, v10, 8, v11
          s_add_u32 s4, s4, 10240
          v_add_u32 v{VA_}, s4, v11
          v_mov_b32 v{NINF}, 0xff800000
          s_mov_b32 s{sVM}, 0x0000ffff
          s_mov_b32 s{sVM+1}, 0x0000ffff
          s_mov_b32 s6, 0x00110000
          s_mov_b32 s7, 0x00110000
          v_mov_b32 v10, 0x3f803f80""")
    for t in range(16): a(f"v_cndmask_b32 v{VF+t}, 0, v10, s[6:7]")
    for r in range(16):
        lo, hi = diag_mask(r)
        a(f"s_mov_b32 s{64+2*r}, {lo:#x}\ns_mov_b32 s{65+2*r}, {hi:#x}")
    a("v_mov_b32 v10, 0xffff\nv_mov_b32 v11, 0xffff0000")
    for t in range(8):
        a(f"""v_cndmask_b32 v{MK+t}, 0, v10, s[{64+4*t}:{65+4*t}]
              v_cndmask_b32 v5, 0, v11, s[{66+4*t}:{67+4*t}]
              v_or_b32 v{MK+t}, v{MK+t}, v5""")
    a("s_waitcnt lgkmcnt(0)")
    stamp(a, 11)
    a("s_barrier")
    stamp(a, 12)
    a(f"ds_read_b128 {vr(QF,4)}, v4")
    def kv_wait(lvl):
        uid[0] += 1
        L = f"kw{uid[0]}"
        a("s_mov_b32 s60, 0")
        a.label(L)
        a(f"""ds_read_b32 v11, v149
              s_add_u32 s60, s60, 1
              s_cmp_gt_u32 s60, {SPIN_MAX*8}
              s_cbranch_scc1 {L}x
              s_waitcnt lgkmcnt(0)
              v_readfirstlane_b32 s3, v11
              s_cmp_lt_u32 s3, {lvl}
              s_cbranch_scc1 {L}""")
        a.label(L + "x")
    def masks(val):
        return [f"""v_cndmask_b32 v{CD+r}, v{NINF}, {val}, s[{64+2*r}:{65+2*r}]
                  v_cndmask_b32 v{CF+r}, {val}, v{NINF}, s[{64+2*r}:{65+2*r}]""" for r in range(16)]
    def maxblk(S_, first):
        if first: a(f"v_max_f32 v{MX}, v{S_}, v{S_+1}")
        for t in range(2 if first else 0, 16, 2):
            a(f"v_max3_f32 v{MX}, v{S_+t}, v{S_+t+1}, v{MX}")
    def xhalf_max():
        a(f"""v_mov_b32 v10, v{MX}
              s_nop 1
              v_permlane32_swap_b32 v10, v{MX}
              s_nop 1
              v_max_f32 v{MX}, v{MX}, v10""")
    order = [7, 6, 5, 4, 3, 2, 1, 8, 0]
    def rdK(n): return f"ds_read_b128 {vr(KF+4*(n%3),4)}, v{KA} offset:{order[n]*1024}"
    def rdV(n):
        b = VF + 8*(n % 2)
        return f"""s_mov_b64 exec, s[{sVM}:{sVM+1}]
              ds_read_b128 {vr(b,4)}, v{VA_} offset:{order[n]*1024}
              ds_read_b128 {vr(b+4,4)}, v{VA_} offset:{order[n]*1024+512}
              s_mov_b64 exec, -1"""
    def mS(k, Dd): return f"{MFMA} {vr(Dd,16)}, {vr(KF+4*(k%3),4)}, {vr(QF,4)}, {vr(CN,16)}"
    a("s_setprio 3")
    pt_load()
    if FORCE_SLOW: a("s_branch L_preslow")
    CI_ = 149
    def fast(first):
        def mSv(k, Dd, tag=''):
            if not first or k == 7: a(mS(k, Dd)); return
            inv = f"{MFMA} {vr(Dd,16)}, {vr(KF+4*(k%3),4)}, {vr(QF,4)}, {vr(CI_+1,16)}"
            if k == 8: a(inv); return
            a(f"""s_cmp_gt_u32 s{sNF}, {k}
                  s_cbranch_scc1 L_fv{k}{tag}
                  {inv}
                  s_branch L_fw{k}{tag}""")
            a.label(f"L_fv{k}{tag}")
            a(mS(k, Dd))
            a.label(f"L_fw{k}{tag}")
        F = int(first)
        if first:
            for r in range(16): a(f"v_mov_b32 v{CI_+1+r}, v{NINF}")
        def standin():
            a(f"""v_max3_f32 v{MX}, v{S+16}, v{S+17}, v{S+18}
                  v_max3_f32 v10, v{S+19}, v{S+20}, v{S+21}
                  v_max3_f32 v11, v{S+22}, v{S+23}, v{S+24}
                  v_max3_f32 v{MX}, v{S+25}, v{S+26}, v{MX}
                  v_max3_f32 v10, v{S+27}, v{S+28}, v10
                  v_max3_f32 v11, v{S+29}, v{S+30}, v11
                  v_max3_f32 v{MX}, v{S+31}, v{MX}, v10
                  v_max_f32 v{MX}, v{MX}, v11""")
            xhalf_max()
            a(f"v_sub_f32 v{CN}, 0xc2700000, v{MX}")
            for r in range(1, 16): a(f"v_mov_b32 v{CN+r}, v{CN}")
        a(f"""s_cmp_lt_u32 s{sW}, 4
              s_cbranch_scc1 L_q0{F}""")
        a(rdK(0)); a(rdV(0))
        a(f"""s_waitcnt lgkmcnt(2)
              {MFMA} {vr(S+16,16)}, {vr(KF,4)}, {vr(QF,4)}, 0
              s_nop 11""")
        standin()
        a("s_nop 1"); a(mS(0, S)); a("s_nop 11")
        for r in range(12): a(f"v_exp_f32 v{S+r}, v{S+r}")
        for t in range(4): a(f"v_cvt_pk_bf16_f32 v{PP+t}, v{S+2*t}, v{S+2*t+1}")
        a(f"""v_exp_f32 v{S+12}, v{S+12}
              s_waitcnt lgkmcnt(0)
              {MFMA} {vr(O,16)}, {vr(VF,4)}, {vr(PP,4)}, 0""")
        for r in range(13, 16): a(f"v_exp_f32 v{S+r}, v{S+r}")
        for t in range(4, 8): a(f"v_cvt_pk_bf16_f32 v{PP+t}, v{S+2*t}, v{S+2*t+1}")
        stamp(a, 30)
        a("s_barrier")
        a(rdK(1)); a("s_barrier"); a(rdK(2)); a(rdV(1))
        a("s_waitcnt lgkmcnt(3)")
        mSv(1, S+16, "b")
        a(f"s_nop 10\ns_branch L_n1{F}")
        a.label(f"L_q0{F}")
        a(f"""ds_read_b128 {vr(KF+8,4)}, v{KA} offset:{8*1024}
              s_waitcnt lgkmcnt(0)
              {MFMA} {vr(S+16,16)}, {vr(KF+8,4)}, {vr(QF,4)}, 0
              s_nop 11""")
        for r in range(16): a(f"v_cndmask_b32 v{S+16+r}, v{NINF}, v{S+16+r}, s[{64+2*r}:{65+2*r}]")
        standin()
        stamp(a, 30)
        a("s_barrier")
        a(rdK(0)); a(rdK(1)); a(rdV(0))
        a("s_waitcnt lgkmcnt(3)")
        mSv(0, S)
        prev = None
        for n in range(8):
            Sn = S + 16*(n % 2); Vn = VF + 8*(n % 2)
            P_ = PP if n % 2 == 0 else P2
            ex = lambda r: a(f"v_exp_f32 v{Sn+r}, v{Sn+r}")
            cv = lambda t: a(f"v_cvt_pk_bf16_f32 v{P_+t}, v{Sn+2*t}, v{Sn+2*t+1}")
            if n == 1: a.label(f"L_n1{F}")
            PR = dict(zip([int(c) for c in opt("--pr", "357")], (2, 1, 0)))
            if n in PR: a(f"s_setprio {PR[n]}")
            if n in (2, 4):
                a(f"""v_readfirstlane_b32 s3, v11
                      s_cmp_ge_u32 s3, {n//2}
                      s_cbranch_scc1 L_kf{int(first)}{n}""")
                kv_wait(n//2)
                a.label(f"L_kf{int(first)}{n}")
            if n == 0:
                a("s_waitcnt lgkmcnt(2)"); mSv(1, S+16); a("s_barrier"); a(rdK(2)); a(rdV(1)); a("s_nop 3")
            if n == 7:
                a(prev); a("s_nop 3")
                for r in range(16): a(f"v_cndmask_b32 v{Sn+r}, v{S3+r}, v{Sn+r}, s[{64+2*r}:{65+2*r}]")
            for r in range(4): ex(r)
            if 0 < n < 7: a(prev)
            if n == 7: a(rdV(8))
            for r in range(4, 8): ex(r)
            if 0 < n < 7:
                a("s_waitcnt lgkmcnt(2)"); mSv(n+1, S + 16*((n+1) % 2))
                if n in (1, 3): a("ds_read_b32 v11, v149")
                a(rdK(n+2)); a(rdV(n+1))
            for t in range(4): cv(t)
            for r in range(8, 12): ex(r)
            if n < 7:
                a("s_waitcnt lgkmcnt(3)")
                a(f"{MFMA} {vr(O,16)}, {vr(Vn,4)}, {vr(P_,4)}, {'0' if n == 0 else vr(O,16)}")
            else:
                for t in range(4): a(f"v_and_b32 v{PP+t}, v{MK+t}, v{P_+t}\nv_xor_b32 v{P_+t}, v{PP+t}, v{P_+t}")
                a("s_waitcnt lgkmcnt(2)")
                a(f"{MFMA} {vr(O,16)}, {vr(Vn,4)}, {vr(PP,4)}, {vr(O,16)}")
            ex(12); ex(13)
            if n == 6: a("s_waitcnt lgkmcnt(2)"); mSv(8, S3)
            if n == 7: a("s_waitcnt lgkmcnt(0)"); a(f"{MFMA} {vr(O,16)}, {vr(VF,4)}, {vr(P2,4)}, {vr(O,16)}")
            ex(14); ex(15)
            for t in range(4, 8): cv(t)
            prev = f"{MFMA} {vr(O,16)}, {vr(Vn+4,4)}, {vr(P_+4,4)}, {vr(O,16)}"
        for t in range(4, 8): a(f"v_and_b32 v{PP+t}, v{MK+t}, v{P2+t}\nv_xor_b32 v{P2+t}, v{PP+t}, v{P2+t}")
        a(f"""s_nop 0
          {MFMA} {vr(O,16)}, {vr(VF+12,4)}, {vr(PP+4,4)}, {vr(O,16)}
          {MFMA} {vr(O,16)}, {vr(VF+4,4)}, {vr(P2+4,4)}, {vr(O,16)}
          s_waitcnt vmcnt(0)
          v_cmp_ne_u32 s[6:7], s{sPTV}, v148
          v_mov_b32 v14, 0x7f800000
          s_nop 8
          v_add_f32 v10, |v{O}|, |v{O+1}|
          v_add_f32 v11, |v{O+2}|, |v{O+3}|
          v_add_f32 v12, |v{O+4}|, |v{O+5}|
          v_add_f32 v13, |v{O+6}|, |v{O+7}|
          v_add_f32 v10, v10, v11
          v_add_f32 v12, v12, v13
          v_mul_f32 v11, 0x43800000, v{O+8}
          v_add_f32 v10, v10, v12
          v_add_f32 v11, v10, v11
          v_rcp_f32 v10, v{O+8}
          v_cmp_lt_f32 vcc, v11, v14
          s_cmp_eq_u64 vcc, -1
          s_cbranch_scc1 L_norm
          s_branch L_slow""")
    a(f"""s_cmp_eq_u32 s{sR}, 0
          s_cbranch_scc1 L_first""")
    fast(False)
    a.label("L_first")
    fast(True)
    a.label("L_preslow")
    a("s_barrier\ns_barrier")
    kv_wait(2)
    a.label("L_slow")
    a(f"""s_setprio 0
          s_sub_u32 s3, 8, s{sNF}
          s_lshl_b32 s3, s3, 10
          s_waitcnt lgkmcnt(0)""")
    for x in masks("0"): a(x)
    a(f"""ds_read_b128 {vr(KF,4)}, v{KA} offset:{8*1024}
          s_waitcnt lgkmcnt(0)
          {MFMA} {vr(S,16)}, {vr(KF,4)}, {vr(QF,4)}, {vr(CD,16)}
          s_nop 11""")
    maxblk(S, True)
    a(f"""s_cmp_eq_u32 s{sR}, 0
          s_cbranch_scc1 L_s1nofar
          ds_read_b128 {vr(KF,4)}, v{KA}
          s_waitcnt lgkmcnt(0)
          {MFMA} {vr(S,16)}, {vr(KF,4)}, {vr(QF,4)}, {vr(CF,16)}
          s_nop 11""")
    maxblk(S, False)
    a.label("L_s1nofar")
    a(f"""s_mov_b32 s{sI}, s{sNF}
          v_add_u32 v10, s3, v{KA}
          s_cmp_eq_u32 s{sI}, 0
          s_cbranch_scc1 L_s1done""")
    a.label("L_s1loop")
    a(f"""ds_read_b128 {vr(KF,4)}, v10
          v_add_u32 v10, 1024, v10
          s_waitcnt lgkmcnt(0)
          {MFMA} {vr(S,16)}, {vr(KF,4)}, {vr(QF,4)}, 0
          s_nop 11""")
    maxblk(S, False)
    a(f"""s_sub_u32 s{sI}, s{sI}, 1
          s_cmp_lg_u32 s{sI}, 0
          s_cbranch_scc1 L_s1loop""")
    a.label("L_s1done")
    xhalf_max()
    a(f"v_sub_f32 v{MX}, 0, v{MX}")
    for x in masks(f"v{MX}"): a(x)
    for r in range(16): a(f"v_mov_b32 v{CN+r}, v{MX}")
    def pvblk(kaddr, vaddr, off, C, first):
        a(f"""ds_read_b128 {vr(KF,4)}, v{kaddr} offset:{off}
              s_mov_b64 exec, s[{sVM}:{sVM+1}]
              ds_read_b128 {vr(VF,4)}, v{vaddr} offset:{off}
              ds_read_b128 {vr(VF+4,4)}, v{vaddr} offset:{off+512}
              s_mov_b64 exec, -1
              s_waitcnt lgkmcnt(0)
              {MFMA} {vr(S,16)}, {vr(KF,4)}, {vr(QF,4)}, {vr(C,16)}
              s_nop 11""")
        for r in range(16): a(f"v_exp_f32 v{S+r}, v{S+r}")
        for t in range(8): a(f"v_cvt_pk_bf16_f32 v{PP+t}, v{S+2*t}, v{S+2*t+1}")
        a("s_nop 1")
        a(f"{MFMA} {vr(O,16)}, {vr(VF,4)}, {vr(PP,4)}, {'0' if first else vr(O,16)}")
        a(f"{MFMA} {vr(O,16)}, {vr(VF+4,4)}, {vr(PP+4,4)}, {vr(O,16)}")
    pvblk(KA, VA_, 8*1024, CD, True)
    a(f"""s_cmp_eq_u32 s{sR}, 0
          s_cbranch_scc1 L_s2nofar""")
    pvblk(KA, VA_, 0, CF, False)
    a.label("L_s2nofar")
    a(f"""s_mov_b32 s{sI}, s{sNF}
          v_add_u32 v10, s3, v{KA}
          v_add_u32 v11, s3, v{VA_}
          s_cmp_eq_u32 s{sI}, 0
          s_cbranch_scc1 L_s2done""")
    a.label("L_s2loop")
    pvblk(10, 11, 0, CN, False)
    a(f"""v_add_u32 v10, 1024, v10
          v_add_u32 v11, 1024, v11
          s_sub_u32 s{sI}, s{sI}, 1
          s_cmp_lg_u32 s{sI}, 0
          s_cbranch_scc1 L_s2loop""")
    a.label("L_s2done")
    a(f"""s_waitcnt vmcnt(0)
          v_cmp_ne_u32 s[6:7], s{sPTV}, v148
          s_nop 12
          v_rcp_f32 v10, v{O+8}
          s_nop 0""")
    a.label("L_norm")
    for t in range(8): a(f"v_mul_f32 v{O+t}, v10, v{O+t}")
    for t in range(4): a(f"v_cvt_pk_bf16_f32 v{PP+t}, v{O+2*t}, v{O+2*t+1}")
    a(f"s_add_u32 s4, s{sQO}, {WS_O}")
    if MODE == "auto":
        a(f"""s_cmp_eq_u64 s[6:7], 0
              s_cbranch_scc0 L_ox
              buffer_store_dwordx4 {vr(PP,4)}, v1, s[{SWS}:{SWS+3}], s4 offen""")
        stamp(a, 13)
        publish(a, sF2, 10, flav="")
        a("s_branch L_od")
        a.label("L_ox")
    a(f"buffer_store_dwordx4 {vr(PP,4)}, v1, s[{SWS}:{SWS+3}], s4 offen {ST}")
    stamp(a, 13 if MODE != "auto" else 19)
    publish(a, sF2, 10)
    a.label("L_od")
    stamp(a, 14)
    a(f"""s_barrier
          s_cmp_ge_u32 s{sW}, 4
          s_cbranch_scc1 L_fin""")
    OA, WA2, ACC2, W2, O2 = 8, 9, 16, 32, 32
    a(f"""s_and_b32 s5, s{sW}, 1
          v_lshrrev_b32 v2, 5, v0
          v_bfe_u32 v3, v0, 2, 2
          v_lshl_add_u32 v4, v2, 2, v3
          v_lshlrev_b32 v4, 7, v4
          v_bfe_u32 v5, v0, 4, 1
          v_lshlrev_b32 v5, 1, v5
          v_and_b32 v6, 1, v0
          v_add_u32 v5, v5, v6
          s_and_b32 s3, s{sW}, 2
          s_lshl_b32 s3, s3, 1
          v_add_u32 v5, s3, v5
          v_bfe_u32 v6, v0, 3, 1
          v_lshlrev_b32 v6, 2, v6
          v_xor_b32 v5, v5, v6
          v_lshl_add_u32 v4, v5, 4, v4
          v_bfe_u32 v6, v0, 1, 1
          v_lshl_add_u32 v4, v6, 3, v4
          v_add_u32 v{WA2}, {WO_BASE}, v4
          s_lshl_b32 s3, s5, 10
          v_add_u32 v{OA}, s3, v1
          v_and_b32 v14, 31, v0
          s_lshl_b32 s3, s{sTB}, 6
          s_lshl_b32 s5, s5, 5
          s_add_u32 s3, s3, s5
          v_add_u32 v14, s3, v14
          v_lshlrev_b32 v14, 11, v14
          v_lshl_add_u32 v14, v2, 4, v14
          s_lshl_b32 s3, s{sHG}, 7
          s_and_b32 s5, s{sW}, 2
          s_lshl_b32 s5, s5, 5
          s_add_u32 s3, s3, s5
          s_add_u32 s3, s3, 1024
          v_add_u32 v14, s3, v14
          v_mov_b32 v15, v{OA}""")
    heads = [8*(k//4 % 4) + 4*(k//16) + k % 4 for k in range(32)]
    OB = [2, 6, 10, 160]
    for k in range(32):
        for q in range(2):
            a(f"ds_read_b64_tr_b16 {vr(W2+4*k+2*q,2)}, v{WA2} offset:{heads[k]*2048 + q*1024}")
    a("s_waitcnt lgkmcnt(0)\ns_barrier")
    stamp(a, 28)
    rdo = lambda k: f"ds_read_b128 {vr(OB[k % 4],4)}, v15 offset:{heads[k]*2048}"
    for k in range(4): a(rdo(k))
    for k in range(32):
        if k == 12:
            a("s_barrier")
            stamp(a, 16)
        a(f"s_waitcnt lgkmcnt({min(3, 31-k)})")
        a(f"{MFMA} {vr(ACC2,16)}, {vr(W2+4*k,4)}, {vr(OB[k % 4],4)}, {'0' if k == 0 else vr(ACC2,16)}")
        if k + 4 < 32: a(rdo(k+4))
    a("s_nop 11")
    for mm in range(2):
        for t in range(4):
            a(f"v_cvt_pk_bf16_f32 v{O2+4*mm+t}, v{ACC2+8*mm+2*t}, v{ACC2+8*mm+2*t+1}")
        a(f"buffer_store_dwordx4 {vr(O2+4*mm,4)}, v14, s[{SOUT}:{SOUT+3}], 0 offen offset:{32*mm} {OPF}")
    stamp(a, 17)
    a.label("L_fin")
    stamp_flush(a, 18)
    a.label("L_end")
    a.label("L_last_insn")
    a("s_endpgm")
    return a

def main():
    a = gen()
    hdr = f"""; {NAME} : one fused kernel (generated by my gen11.py)
; @launch grid=(256,1,1) block=(768,1,1) lds=163840
.amdgcn_target "amdgcn-amd-amdhsa--gfx950"
.text
"""
    kd = f""".section .rodata,"a"
.p2align 6
.amdhsa_kernel {KN}
  .amdhsa_next_free_vgpr 168
  .amdhsa_next_free_sgpr 102
  .amdhsa_accum_offset 168
  .amdhsa_group_segment_fixed_size 0
  .amdhsa_kernarg_size 88
  .amdhsa_user_sgpr_count 2
  .amdhsa_user_sgpr_kernarg_segment_ptr 1
  .amdhsa_system_sgpr_workgroup_id_x 1
.end_amdhsa_kernel
"""
    path = sys.argv[1] if len(sys.argv) > 1 and sys.argv[1].endswith(".s") else f"cdna_kernels/{NAME}.s"
    open(path, "w").write(hdr + a.text() + kd)
main()
```

```python
import sys, struct, math

NAME = "concat_heads__spectral_fnet__sliding_block__prompt"
KN = NAME + "_kernel"
WS_Q, WS_K, WS_V, WS_O, WS_U = 0, 2 << 20, 4 << 20, 6 << 20, 8 << 20
WS_F1, WS_F2, WS_PT, WS_F3 = (11 << 20), (11 << 20) + 0x20000, (11 << 20) + 0x60000, (11 << 20) + 0x70000
U_ROW = 4224
U_GP = 16 * U_ROW
U_SIZE = 32 * U_GP
QSCALE = 0.25 * math.log2(math.e)
uid = [0]
STAMP = "--stamp" in sys.argv
FORCE_SLOW = "--slow" in sys.argv
SKIP = set(int(x) for x in sys.argv[sys.argv.index("--skip")+1].split(",")) if "--skip" in sys.argv else set()
ST = sys.argv[sys.argv.index("--st")+1].replace("+", " ") if "--st" in sys.argv else "sc1"
LD = "sc1"
SPIN_MAX = 200000
def opt(name, default):
    return type(default)(sys.argv[sys.argv.index(name)+1]) if name in sys.argv else default
PDELAY = opt("--pdelay", 0)
PIPE = "--pipe" in sys.argv
FULLF = "--fullf" in sys.argv
KVLD = sys.argv[sys.argv.index("--kvld")+1].replace("+", " ").replace("none", "") if "--kvld" in sys.argv else "sc1"
A2ST = "sc1" if "--a2sc1" in sys.argv else ""
WB = "--wb" in sys.argv

def f2u(x): return struct.unpack("<I", struct.pack("<f", x))[0]

class Asm:
    def __init__(self): self.L = []
    def __call__(self, s):
        for line in s.strip("\n").split("\n"):
            line = line.strip()
            if line: self.L.append("  " + line)
    def label(self, n): self.L.append(n + ":")
    def text(self): return "\n".join(self.L) + "\n"

def vr(b, n=1): return f"v{b}" if n == 1 else f"v[{b}:{b+n-1}]"
MFMA = "v_mfma_f32_32x32x16_bf16"

kAX, kSR, kSI, kDR, kDI, kBX, kWQ, kWO, kOUT, kDBG, kWS = 64, 66, 68, 70, 72, 74, 76, 78, 80, 82, 84
sTB, sHG, sJ, sW, sNON = 16, 17, 18, 19, 20
sHD, sR = 21, 22
SWS = 32
VST = 167

def srd(a, d, k, size, off=0):
    if off:
        a(f"s_add_u32 s{d}, s{k}, {off}\ns_addc_u32 s{d+1}, s{k+1}, 0")
    else:
        a(f"s_mov_b32 s{d}, s{k}\ns_mov_b32 s{d+1}, s{k+1}")
    a(f"s_mov_b32 s{d+2}, {size}\ns_mov_b32 s{d+3}, 0x20000")

AMP = [int(x) for x in sys.argv[sys.argv.index("--amp")+1].split(",")] if "--amp" in sys.argv else None
def amp_end(a):
    if not AMP: return
    uid[0] += 1
    L = f"amp{uid[0]}"
    a(f"""s_cmp_lg_u32 s2, {AMP[3]}
          s_cbranch_scc1 {L}x
          s_cmp_lg_u32 s{sW}, {AMP[4]}
          s_cbranch_scc1 {L}x
          s_waitcnt vmcnt(0)
          s_memrealtime s[62:63]
          s_sub_u32 s100, s101, s100
          s_min_u32 s100, s100, 10000
          s_mul_i32 s100, s100, {AMP[2]}
          s_waitcnt lgkmcnt(0)
          s_add_u32 s100, s100, s62""")
    a.label(L)
    a(f"""s_memrealtime s[62:63]
          s_waitcnt lgkmcnt(0)
          s_sub_u32 s61, s62, s100
          s_cmp_lt_i32 s61, 0
          s_cbranch_scc1 {L}""")
    a.label(L + "x")
GMAX = None
def stamp(a, idx):
    if AMP and idx in AMP[:2]:
        a(f"""s_memrealtime s[62:63]
              s_waitcnt lgkmcnt(0)
              s_mov_b32 s{100 + AMP[:2].index(idx)}, s62""")
    if not STAMP: return
    if idx in SKIP: return
    a(f"""s_memrealtime s[96:97]
          s_memtime s[98:99]
          s_waitcnt lgkmcnt(0)
          v_writelane_b32 v{VST}, s96, {idx}
          v_writelane_b32 v{VST}, s98, {idx+32}""")
def stamp_flush(a, idx):
    if AMP:
        if idx in AMP[:2]: a("s_waitcnt vmcnt(0)")
        stamp(a, idx)
        amp_end(a)
    if not STAMP: return
    a("s_waitcnt vmcnt(0)")
    stamp(a, idx)
    srd(a, 88, SWS, 0x100000, 16 << 20)
    a(f"""s_mov_b64 exec, -1
          s_lshl_b32 s92, s2, 12
          s_lshl_b32 s93, s{sW}, 8
          s_add_u32 s92, s92, s93
          v_mbcnt_lo_u32_b32 v2, -1, 0
          v_mbcnt_hi_u32_b32 v2, -1, v2
          v_lshlrev_b32 v2, 2, v2
          buffer_store_dword v{VST}, v2, s[88:91], s92 offen""")

def poll(a, vaddr, vtmp, nl_mask, srdreg=SWS):
    uid[0] += 1
    L = f"poll{uid[0]}"
    a(f"""s_mov_b32 s60, 0
          s_mov_b64 exec, {nl_mask}""")
    a.label(L)
    a(f"""buffer_load_dword v{vtmp}, v{vaddr}, s[{srdreg}:{srdreg+3}], 0 offen sc1
          s_add_u32 s60, s60, 1
          s_cmp_gt_u32 s60, {SPIN_MAX}
          s_cbranch_scc1 {L}x
          s_waitcnt vmcnt(0)
          v_cmp_ne_u32 vcc, s{sNON}, v{vtmp}
          s_cbranch_vccnz {L}""")
    a.label(L + "x")
    a("s_mov_b64 exec, -1")

def poll_pipe(a, vaddr, vt, nl_mask, gap=2):
    uid[0] += 1
    L = f"pp{uid[0]}"
    ld = lambda k: f"buffer_load_dword v{vt+k}, v{vaddr}, s[{SWS}:{SWS+3}], 0 offen sc1"
    a(f"""s_mov_b32 s60, 0
          s_mov_b64 exec, {nl_mask}
          {ld(0)}
          s_sleep {gap}
          {ld(1)}""")
    a.label(L)
    for k in range(3):
        a(f"""s_sleep {gap}
              {ld((k+2)%3)}
              s_waitcnt vmcnt(2)
              v_cmp_ne_u32 vcc, s{sNON}, v{vt+k}
              s_cbranch_vccz {L}x""")
    a(f"""s_add_u32 s60, s60, 1
          s_cmp_lt_u32 s60, {SPIN_MAX}
          s_cbranch_scc1 {L}""")
    a.label(L + "x")
    a("s_mov_b64 exec, -1")

def poll2(a, va, vt):
    uid[0] += 1
    L = f"pq{uid[0]}"
    a("s_mov_b32 s60, 0")
    a.label(L)
    a(f"""buffer_load_dwordx2 v[{vt}:{vt+1}], v{va}, s[{SWS}:{SWS+3}], 0 offen sc1
          s_add_u32 s60, s60, 1
          s_cmp_gt_u32 s60, {SPIN_MAX}
          s_cbranch_scc1 {L}x
          s_waitcnt vmcnt(0)
          v_cmp_ne_u32 vcc, s{sNON}, v{vt}
          v_cmp_ne_u32 s[4:5], s{sNON}, v{vt+1}
          s_or_b64 vcc, vcc, s[4:5]
          s_cbranch_vccnz {L}""")
    a.label(L + "x")

def publish(a, soff, vtmp, cnt=0, flav=None):
    if FULLF:
        a(f"""v_mov_b32 v{vtmp}, s{sNON}
              v_mov_b32 v{vtmp+1}, s{sNON}
              s_waitcnt vmcnt({cnt})
              s_mov_b64 exec, 0xffff
              buffer_store_dwordx2 v[{vtmp}:{vtmp+1}], v166, s[{SWS}:{SWS+3}], s{soff} offen {ST if flav is None else flav}
              s_mov_b64 exec, -1""")
        return
    a(f"""s_waitcnt vmcnt({cnt})
          v_mov_b32 v{vtmp}, s{sNON}
          s_mov_b64 exec, 1
          buffer_store_dword v{vtmp}, off, s[{SWS}:{SWS+3}], s{soff} {ST if flav is None else flav}
          s_mov_b64 exec, -1""")

def nonce_wait(a, vtmp, first_loaded):
    uid[0] += 1
    L = f"non{uid[0]}"
    a("s_mov_b32 s60, 0")
    if first_loaded:
        a(f"s_branch {L}c")
    a.label(L)
    a(f"""buffer_load_dword v{vtmp}, off, s[56:59], 0 sc1
          s_waitcnt vmcnt(0)""")
    a.label(L + "c")
    a(f"""v_readfirstlane_b32 s{sNON}, v{vtmp}
          s_add_u32 s60, s60, 1
          s_cmp_gt_u32 s60, {SPIN_MAX}
          s_cbranch_scc1 {L}x
          s_cmp_eq_u32 s{sNON}, 0
          s_cbranch_scc1 {L}""")
    a.label(L + "x")

def diag_mask(r):
    g, i = r // 4, r % 4
    return (0xffffffff << (8*g+i)) & 0xffffffff, (0xffffffff << (8*g+i+4)) & 0xffffffff

MODE = sys.argv[sys.argv.index("--mode")+1] if "--mode" in sys.argv else "auto"
A2F = opt("--a2st", "").replace("+", " ")
OPF = opt("--opst", "").replace("+", " ")
XR, WR, WSL = 0, 65536, 24576
NS = opt('--ns', 3)
QSLOT = [WR + 2*WSL, WR, WR + 3*WSL, WR + WSL] if NS == 3 else [WR + k*WSL for k in range(4)]
UPN = opt('--upn', 1)
PUBU = opt('--pubu', 1)
Q_BASE = 81920
WO_BASE = 98304
HSTR = 20480
OWNB = opt('--ownb', 1)
KVF = 90112
UF = 64
sX = sR

def gen():
    a = Asm()
    a.L += [f".globl {KN}", ".p2align 8", f".type {KN},@function"]
    a.label(KN)
    a(f"""s_cmp_ge_u32 s2, 256
          s_cbranch_scc1 L_end
          s_load_dwordx16 s[64:79], s[0:1], 0
          s_load_dwordx4 s[80:83], s[0:1], 64
          s_load_dwordx2 s[84:85], s[0:1], 80
          v_lshrrev_b32 v1, 6, v0
          v_and_b32 v0, 63, v0
          s_and_b32 s{sX}, s2, 7
          v_readfirstlane_b32 s{sW}, v1
          s_lshr_b32 s{sJ}, s2, 3
          s_lshl_b32 s3, s{sX}, 2
          s_and_b32 s4, s{sJ}, 3
          s_add_u32 s{sTB}, s3, s4
          s_lshr_b32 s{sHG}, s2, 5
          s_xor_b32 s{sHG}, s{sHG}, {opt("--hgx", 0)}""")
    if FULLF: a("v_lshlrev_b32 v166, 3, v0")
    if STAMP: a(f"v_mov_b32 v{VST}, 0")
    stamp(a, 0)
    a(f"""s_cmp_lt_u32 s{sW}, 8
          s_cbranch_scc1 L_consumer""")
    sQO, sF2, sPTV = 12, 13, 14
    def pt_load():
        if MODE == "auto":
            a(f"""v_and_b32 v147, 31, v0
                  v_lshl_add_u32 v147, v147, 3, s{sX}
                  v_lshlrev_b32 v147, 7, v147
                  v_add_u32 v147, {WS_PT}, v147
                  buffer_load_dword v148, v147, s[{SWS}:{SWS+3}], 0 offen sc1""")
    sLW, sROT, sSOX, sSOW, sMX, sMW, sTY = 23, 15, 28, 29, 30, 31, 27
    SX, SWD, SAX = 36, 40, 48
    SWOD, SOUT = 44, 40
    sC0 = 24
    XO, WO_, XA1 = 8, 10, 14
    sRA, sAX = 21, 25
    a(f"""s_sub_u32 s{sLW}, s{sW}, 8
          s_lshl_b32 s3, s{sTB}, 2
          s_add_u32 s3, s3, s{sLW}
          s_lshl_b32 s3, s3, 14                    ; (64tb + 16lw)*1024
          v_lshrrev_b32 v1, 3, v0
          v_and_b32 v2, 7, v0
          v_lshrrev_b32 v3, 4, v0
          v_xor_b32 v4, v3, v2
          v_xor_b32 v5, 4, v4
          v_lshlrev_b32 v4, 4, v4
          v_lshlrev_b32 v5, 4, v5
          v_lshl_add_u32 v6, v1, 10, s3
          v_add_u32 v{XO}, v6, v4
          v_add3_u32 v{XO+1}, v6, v5, s4
          v_and_b32 v6, 1, v3
          v_lshlrev_b32 v6, 2, v6
          v_xor_b32 v6, v6, v2
          s_lshl_b32 s3, s{sHG}, 7
          v_lshl_add_u32 v6, v6, 4, s3
          s_and_b32 s3, s{sLW}, 1
          s_lshl_b32 s3, s3, 5
          v_add_u32 v7, s3, v1
          s_movk_i32 s3, 3072
          v_mad_u32_u24 v{WO_}, v7, s3, v6""".replace("v_add3_u32 v9, v6, v5, s4", "v_add_u32 v9, v6, v5\n          v_add_u32 v9, 8192, v9"))
    for jw in range(1, 4): a(f"v_add_u32 v{WO_+jw}, {8*3072*jw}, v{WO_}")
    a(f"""s_and_b32 s3, s{sJ}, 3
          s_lshl_b32 s3, s3, 1
          s_add_u32 s3, s3, s{sHG}
          s_add_u32 s3, s3, s{sX}
          s_and_b32 s{sROT}, s3, {opt('--rmask', 4)}
          s_lshr_b32 s{sTY}, s{sLW}, 1
          s_lshl_b32 s{sTY}, s{sTY}, 10
          s_add_u32 s{sTY}, s{sTY}, 1024
          s_lshl_b32 s{sSOX}, s{sROT}, 7
          s_mul_i32 s{sSOW}, s{sROT}, {64*3072}
          s_add_u32 s{sSOW}, s{sSOW}, s{sTY}
          s_lshl_b32 s{sMX}, s{sLW}, 11
          s_lshl_b32 s{sMW}, s{sLW}, 12
          s_waitcnt lgkmcnt(0)""")
    srd(a, SX, kBX, 0x200000)
    srd(a, SWD, kWQ, 0x180000)
    stamp(a, 1)
    def dma(sm0, m0off, v, S, so):
        a(f"""s_add_u32 m0, s{sm0}, {m0off}
              s_nop 0
              buffer_load_dwordx4 v{v}, s[{S}:{S+3}], s{so} offen lds""")
    def issue(st):
        if st < 8:
            for j in range(2): dma(sMX, XR + st*8192 + j*1024, XO+j, SX, sSOX)
        base = WR + (st % NS)*WSL if st < 8 else QSLOT[st-8]
        for j in range(4): dma(sMW, base + j*1024, WO_+j, SWD, sSOW)
        if st == 0:
            a(f"""; A_x rows: pi = 8*(x>>1) + (j&7) ; p = lw>>1, s1 = 16*(lw&1) + 8j + (i>>3)
          s_lshl_b32 s3, s{sTB}, 1
          s_lshr_b32 s4, s{sLW}, 1
          s_add_u32 s3, s3, s4
          s_lshl_b32 s3, s3, 10
          s_and_b32 s4, s{sLW}, 1
          s_lshl_b32 s4, s4, 20
          s_add_u32 s3, s3, s4
          v_lshl_add_u32 v6, v1, {10 if '--xcont' in sys.argv else 16}, s3
          v_add_u32 v{XA1}, v6, v4
          v_add_u32 v{XA1+1}, v6, v5
          v_add_u32 v{XA1+1}, {8*1024 if '--xcont' in sys.argv else 8*65536}, v{XA1+1}
          s_lshr_b32 s3, s{sJ}, 2
          s_and_b32 s{sRA}, s3, {opt('--amask', 4)}
          s_lshl_b32 s{sAX}, s{sRA}, 7""")
            srd(a, SAX, kAX, 0x200000)
        if st < 8:
            for j in range(2): dma(sMX, base + 16384 + j*1024, XO+j if '--xsame' in sys.argv else XA1+j, SX if '--xsame' in sys.argv else SAX, sSOX if '--xsame' in sys.argv else sAX)
        if st < 7:
            a(f"""s_add_u32 s{sROT}, s{sROT}, 1
                  s_and_b32 s{sROT}, s{sROT}, 7
                  s_lshl_b32 s{sSOX}, s{sROT}, 7
                  s_mul_i32 s{sSOW}, s{sROT}, {64*3072}
                  s_add_u32 s{sSOW}, s{sSOW}, s{sTY}
                  s_add_u32 s{sAX}, s{sAX}, 128
                  s_and_b32 s{sAX}, s{sAX}, 1023""")
        elif st < 11:
            if st == 7:
                a(f"""s_lshr_b32 s3, s{sLW}, 1
                      s_add_u32 s3, s3, 1
                      s_add_u32 s{sROT}, s{sROT}, s3""")
            else:
                a(f"s_add_u32 s{sROT}, s{sROT}, 2")
            a(f"""s_and_b32 s{sROT}, s{sROT}, 7
                  s_mul_i32 s{sSOW}, s{sROT}, {64*3072}""")
    issue(0); issue(1)
    if NS == 4: issue(2)
    srd(a, SWS, kWS, 0x1000000)
    srd(a, 56, kDBG, 256)
    a(f"""          ; wo voffset: (128lw + (i>>3))*1024 + hg*128 + ((i&7) ^ (((i>>4)&1)<<2))*16
          v_and_b32 v6, 1, v3
          v_lshlrev_b32 v6, 2, v6
          v_xor_b32 v6, v6, v2
          s_lshl_b32 s3, s{sLW}, 17
          s_lshl_b32 s4, s{sHG}, 7
          s_add_u32 s3, s3, s4
          v_lshl_add_u32 v6, v6, 4, s3
          v_lshl_add_u32 v19, v1, 10, v6
          s_lshl_b32 s6, s{sX}, 1
          s_and_b32 s4, s{sJ}, 1
          s_add_u32 s6, s6, s4                    ; tc
          s_lshr_b32 s7, s{sJ}, 1                 ; cr16
          s_lshl_b32 s{sC0}, s7, 5
          s_lshr_b32 s4, s6, 2
          s_lshl_b32 s4, s4, 3
          s_and_b32 s5, s6, 3
          s_add_u32 s4, s4, s5
          s_and_b32 s5, s{sW}, 1
          s_lshl_b32 s5, s5, 2
          s_add_u32 s5, s4, s5                    ; t1 source
          s_sub_u32 s4, 32, s5
          s_and_b32 s4, s4, 31
          s_cmp_lt_u32 s2, 128
          s_cselect_b32 s8, s5, s4
          s_cselect_b64 vcc, -1, 0
          v_and_b32 v5, 31, v0
          s_and_b32 s4, s{sW}, 2
          s_lshl_b32 s4, s4, 4
          v_add_u32 v5, s4, v5
          v_lshl_add_u32 v20, v5, 5, s8
          v_lshrrev_b32 v7, 5, v0                 ; h
          v_sub_u32 v6, 2048, v20
          v_cndmask_b32 v6, v6, v20, vcc
          v_cvt_f32_u32 v6, v6
          v_mul_f32 v17, 0x3a000000, v6
          v_lshlrev_b32 v6, 5, v7
          v_cvt_f32_u32 v6, v6
          v_mul_f32 v28, v17, v6
          v_and_b32 v5, 0x13, v0
          v_bfe_u32 v6, v0, 2, 1
          v_lshl_or_b32 v5, v6, 3, v5
          v_bfe_u32 v6, v0, 3, 1
          v_lshl_or_b32 v5, v6, 2, v5
          v_add_u32 v5, s{sC0}, v5                ; c
          v_sub_u32 v6, 512, v5
          v_cndmask_b32 v5, v6, v5, vcc           ; e
          s_mul_i32 s4, s6, {U_ROW}
          s_and_b32 s5, s{sW}, 1
          s_lshl_b32 s5, s5, 3
          s_add_u32 s4, s4, s5
          s_add_u32 s4, s4, {WS_U}
          v_lshl_add_u32 v5, v5, 4, s4
          s_mov_b32 s5, {16*U_GP}
          v_mad_u32_u24 v22, v7, s5, v5           ; U address
          s_sub_u32 s5, 15, s7
          s_cmp_lt_u32 s2, 128
          s_cselect_b32 s4, s7, s5                ; e block b
          s_cselect_b32 s5, 0, 1
          v_mul_u32_u24 v5, s5, v7
          v_add_u32 v5, s4, v5
          v_and_b32 v5, 7, v5
          v_and_b32 v6, 31, v0
          v_lshlrev_b32 v6, 3, v6
          v_lshl_add_u32 v5, v5, 8, v6
          v_add_u32 v21, {WS_F3}, v5
          v_lshrrev_b32 v4, 1, v0
          v_add_u32 v4, s{sTB}, v4
          v_subrev_u32 v4, 4, v4
          v_and_b32 v5, 3, v4
          v_bfe_u32 v4, v4, 2, 3
          v_lshl_add_u32 v4, v5, 3, v4
          s_lshr_b32 s4, s2, 5
          s_lshl_b32 s4, s4, 12
          s_and_b32 s5, s{sLW}, 2
          s_lshl_b32 s5, s5, 2
          s_add_u32 s4, s4, s5
          v_lshl_add_u32 v4, v4, 7, s4
          v_and_b32 v5, 1, v0
          v_lshl_add_u32 v4, v5, 2, v4
          v_add_u32 v16, {WS_F1}, v4
          v_lshlrev_b32 v1, 4, v0
          s_lshl_b32 s9, s{sHG}, 2
          s_add_u32 s9, s9, s{sLW}
          s_lshl_b32 s5, s{sTB}, 11
          s_lshl_b32 s6, s9, 16
          s_add_u32 s10, s5, s6
          s_add_u32 s5, s10, {WS_O}
          v_lshl_add_u32 v24, v0, 7, s5
          s_lshl_b32 s4, s{sTB}, 6
          s_lshl_b32 s5, s{sLW}, 3
          s_add_u32 s4, s4, s5
          v_bfe_u32 v4, v0, 1, 3
          v_and_b32 v5, 1, v0
          v_lshl_add_u32 v4, v5, 5, v4
          v_add_u32 v4, s4, v4
          v_lshlrev_b32 v4, 2, v4
          v_add_u32 v25, {WS_F2}, v4
          s_lshl_b32 s5, s{sLW}, 19
          s_lshl_b32 s6, s{sTB}, 11
          s_add_u32 s5, s5, s6
          s_add_u32 s13, s5, {WS_O}""")
    MF, A2 = 96, 128
    for i in range(8):
        a(f"""v_add_f32 v29, v28, v17
              v_add_f32 v30, v29, v17
              v_add_f32 v31, v30, v17
              v_cos_f32 v32, v28
              v_cos_f32 v33, v29
              v_cos_f32 v34, v30
              v_cos_f32 v35, v31
              v_sin_f32 v36, v28
              v_sin_f32 v37, v29
              v_sin_f32 v38, v30
              v_sin_f32 v39, v31
              v_add_f32 v28, v31, v17
              v_cvt_pk_bf16_f32 v{MF+4*i}, v32, v36
              v_cvt_pk_bf16_f32 v{MF+4*i+1}, v33, v37
              v_cvt_pk_bf16_f32 v{MF+4*i+2}, v34, v38
              v_cvt_pk_bf16_f32 v{MF+4*i+3}, v35, v39""")
    for i in range(8):
        if i == 0 and "--dg" in sys.argv:
            stamp(a, 25); a("s_waitcnt vmcnt(14)"); stamp(a, 28); a("s_waitcnt vmcnt(10)"); stamp(a, 29)
        if "--dg" in sys.argv and 2 <= i <= 6: a("s_waitcnt vmcnt(9)" if i == 6 else "s_waitcnt vmcnt(8)"); stamp(a, 2+i)
        a(f"s_waitcnt vmcnt({([8]*6 + [9, 5])[i] if NS == 3 else ([16]*5 + [17, 13, 9])[i]})")
        if i in (0, 1, 7): stamp(a, 2+i)
        a("s_barrier")
        issue(i+NS-1)
        if i == 7 and NS == 3: issue(10)
        if i == 8-NS: a("buffer_load_dword v18, off, s[56:59], 0 sc1")
        if i == opt("--qpf", 1):
            a(f"""s_lshl_b32 s4, s2, 1
                  s_lshr_b32 s5, s{sLW}, 1
                  s_add_u32 s4, s4, s5
                  s_mul_i32 s4, s4, 3072
                  s_and_b32 s5, s{sLW}, 1
                  s_lshl_b32 s5, s5, 9
                  s_add_u32 s5, s5, s4
                  s_add_u32 s6, s{kWQ}, s5
                  s_addc_u32 s7, s{kWQ+1}, 0""")
            for k in range(8): a(f"s_load_dword s61, s[6:7], {64*k}")
        if i == 3:
            a(f"""s_lshl_b32 s4, s2, 2
                  s_add_u32 s4, s4, s{sLW}
                  s_lshl_b32 s5, s4, 9
                  s_add_u32 s6, s{kWO}, s5
                  s_addc_u32 s7, s{kWO+1}, 0""")
            for k in range(8): a(f"s_load_dword s61, s[6:7], {64*k}")
    a("s_waitcnt vmcnt(8)")
    stamp(a, 20)
    a("s_barrier")
    issue(11)
    nonce_wait(a, 18, True)
    srd(a, SWOD, kWO, 0x80000)
    srd(a, SOUT, kOUT, 0x400000)
    NT = 3 if MODE == "auto" else 1
    a(f"""s_sub_u32 s3, 4, s{sTB}
          s_max_i32 s3, s3, 0
          s_lshl_b32 s4, s3, 1
          s_lshl_b32 s6, 0xff, s4
          s_and_b32 s6, s6, 0xff
          s_mov_b32 s7, 0
          s_mul_i32 s8, s{sLW}, {HSTR}
          s_add_u32 s8, s8, 6144
          s_add_u32 s10, s10, {WS_K - 2048}
          s_lshl_b32 s30, s{sLW}, 14
          v_mov_b32 v2, 0x7ffffff0
          s_waitcnt vmcnt(8) lgkmcnt(0)
          s_barrier
          s_waitcnt vmcnt(4)
          s_barrier
          s_waitcnt vmcnt(0)""")
    stamp(a, 23)
    a(f"""s_barrier
          s_mov_b64 exec, s[6:7]
          s_cbranch_execz L_kv0
          buffer_load_dword v5, v16, s[{SWS}:{SWS+3}], 0 offen sc1
          s_mov_b64 exec, -1
          s_barrier
          {"s_barrier" if OWNB == 0 else ""}
          s_mov_b64 exec, s[6:7]
          s_waitcnt vmcnt(0)
          v_cmp_ne_u32 vcc, s{sNON}, v5
          s_mov_b64 exec, -1
          s_cbranch_vccz L_kv1""")
    poll(a, 16, 5, "s[6:7]")
    a("s_branch L_kv1")
    a.label("L_kv0")
    a("s_mov_b64 exec, -1\ns_barrier")
    if OWNB == 0: a("s_barrier")
    a.label("L_kv1")
    stamp(a, 10)
    def kv_grp(g):
        a(f"""s_cmp_gt_u32 s{sTB}, {g}
              s_cbranch_scc1 L_kvr{g}
              v_mov_b32 v3, v2
              s_mov_b32 s10, {2048*g}""")
        a.label(f"L_kvr{g}")
        a(f"""s_sub_u32 m0, s8, {2048*g}
              s_sub_u32 s4, s10, {2048*g}
              buffer_load_dwordx4 v3, s[{SWS}:{SWS+3}], s4 offen {KVLD} lds
              buffer_load_dwordx4 v3, s[{SWS}:{SWS+3}], s4 offen offset:1024 {KVLD} lds
              s_add_u32 m0, m0, 10240
              s_add_u32 s4, s4, {WS_V - WS_K}
              buffer_load_dwordx4 v3, s[{SWS}:{SWS+3}], s4 offen {KVLD} lds
              buffer_load_dwordx4 v3, s[{SWS}:{SWS+3}], s4 offen offset:1024 {KVLD} lds""")
    KV1 = opt("--kv1", 3)
    a("v_mov_b32 v3, v1")
    for g in range(KV1): kv_grp(g)
    def wo_grp(g):
        a(f"""s_add_u32 s3, s{sJ}, {g}
              s_and_b32 s3, s3, 3
              s_lshl_b32 s4, s3, 12
              s_add_u32 s4, s4, s30
              s_add_u32 s4, s4, {WO_BASE}
              s_lshl_b32 s5, s3, 15""")
        for jj in range(4):
            a(f"""s_add_u32 m0, s4, {jj*1024}
                  s_add_u32 s6, s5, {jj*8192}
                  buffer_load_dwordx4 v19, s[{SWOD}:{SWOD+3}], s6 offen lds""")
    a(f"""s_lshl_b32 s3, s{sLW}, 2
          s_add_u32 s3, s3, {KVF}
          v_mov_b32 v6, s3
          v_mov_b32 v7, 0
          ds_write_b32 v6, v7
          v_mov_b32 v7, 1
          {"s_barrier" if OWNB == 1 else ""}
          s_waitcnt vmcnt({4*KV1-4}) lgkmcnt(0)""")
    stamp(a, 11)
    a("s_barrier")
    stamp(a, 12)
    for g in range(KV1, 4): kv_grp(g)
    a(f"""s_waitcnt vmcnt(8)
          s_barrier
          buffer_load_dwordx2 v[4:5], v21, s[{SWS}:{SWS+3}], 0 offen sc1""")
    if MODE == "auto":
        a(f"""s_mov_b64 exec, 0xffff
              buffer_load_dword v27, v24, s[{SWS}:{SWS+3}], 0 offen
              buffer_load_dword v26, v25, s[{SWS}:{SWS+3}], 0 offen sc1
              s_mov_b64 exec, -1""")
    a(f"""s_waitcnt vmcnt({NT + 4})
          ds_write_b32 v6, v7
          v_mov_b32 v7, 2""")
    wo_grp(0)
    a(f"""s_waitcnt vmcnt({NT + 4})
          ds_write_b32 v6, v7""")
    stamp(a, 21)
    for g in range(1, 4): wo_grp(g)
    a(f"""s_waitcnt vmcnt(16)
          v_cmp_ne_u32 vcc, s{sNON}, v4
          v_cmp_ne_u32 s[4:5], s{sNON}, v5
          s_or_b64 vcc, vcc, s[4:5]
          s_cbranch_vccz L_uok""")
    poll2(a, 21, 4)
    a.label("L_uok")
    stamp(a, 26)
    for js in range(8):
        for b in range(2):
            a(f"""s_mov_b32 s4, {(2*js + b)*U_GP}
                  buffer_load_dwordx2 {vr(UF+4*js+2*b,2)}, v22, s[{SWS}:{SWS+3}], s4 offen {LD}""")
    a(f"""v_lshrrev_b32 v3, 5, v0
          v_lshlrev_b32 v10, 11, v20
          v_lshl_add_u32 v10, v3, 4, v10
          s_lshl_b32 s4, s{sC0}, 1
          v_add_u32 v10, s4, v10""")
    stamp(a, 27)
    for js in range(8):
        a(f"s_waitcnt vmcnt({14-2*js})")
        a(f"{MFMA} {vr(A2,16)}, {vr(UF+4*js,4)}, {vr(MF+4*js,4)}, {'0' if js == 0 else vr(A2,16)}")
    a("s_nop 11")
    for t in range(8): a(f"v_cvt_pk_bf16_f32 v{UF+t}, v{A2+2*t}, v{A2+2*t+1}")
    a("s_barrier")
    stamp(a, 14)
    def o_fetch():
        a(f"""s_lshl_b32 s4, s8, 13
              s_add_u32 s4, s4, s30
              s_lshl_b32 s5, s8, 18
              s_add_u32 s5, s5, s13""")
        for j in range(4):
            a(f"""s_add_u32 m0, s4, {j*2048}
                  s_add_u32 s7, s5, {j*65536}
                  buffer_load_dwordx4 v1, s[{SWS}:{SWS+3}], s7 offen {LD} lds
                  buffer_load_dwordx4 v1, s[{SWS}:{SWS+3}], s7 offen offset:1024 {LD} lds""")
    a(f"""s_mov_b32 s60, 0
          s_mov_b32 s8, 0
          s_mov_b32 s9, 1""")
    a.label("L_opl")
    a(f"""s_mov_b64 exec, 0xffff
          buffer_load_dword v5, v25, s[{SWS}:{SWS+3}], 0 offen sc1
          s_add_u32 s60, s60, 1
          s_cmp_gt_u32 s60, {SPIN_MAX}
          s_cbranch_scc1 L_opx
          s_waitcnt vmcnt(0)
          v_cmp_ne_u32 vcc, s{sNON}, v5
          s_and_b32 s4, vcc_lo, 0xff
          s_and_b32 s9, vcc_lo, 0xff00
          s_cmp_lg_u32 s4, 0
          s_cbranch_scc1 L_opl""")
    a.label("L_opx")
    a("s_mov_b64 exec, -1")
    o_fetch()
    a(f"""s_mov_b32 s8, 1
          s_cmp_lg_u32 s9, 0
          s_cbranch_scc1 L_op2""")
    o_fetch()
    a("""s_waitcnt vmcnt(8) lgkmcnt(0)
         s_barrier
         s_branch L_op3""")
    a.label("L_op2")
    a(f"""s_lshl_b32 s3, s8, 3
          s_lshl_b32 s10, 0xff, s3
          s_mov_b32 s11, 0
          s_waitcnt vmcnt(0) lgkmcnt(0)
          s_barrier""")
    poll(a, 25, 5, "s[10:11]")
    o_fetch()
    a.label("L_op3")
    stamp(a, 15)
    a("s_waitcnt vmcnt(0)\ns_barrier")
    for mm in range(2):
        a(f"buffer_store_dwordx4 {vr(UF+4*mm,4)}, v10, s[{SOUT}:{SOUT+3}], 0 offen offset:{32*mm} {A2F}")
    stamp(a, 13)
    stamp_flush(a, 18)
    a("s_endpgm")

    a.label("L_consumer")
    if "--nocpf" not in sys.argv:
        a(f"""s_cmp_lg_u32 s{sW}, 7
              s_cbranch_scc1 L_cpf1
              s_getpc_b64 s[4:5]""")
        a.label("L_cpf0")
        a(f"""s_sub_u32 s4, s4, L_cpf0-{KN}
              s_subb_u32 s5, s5, 0
              s_lshl_b32 s3, s{sJ}, 3
              v_add_u32 v1, s3, v0
              v_lshlrev_b32 v1, 7, v1
              v_cmp_gt_u32 vcc, L_last_insn-{KN}, v1
              s_and_b64 exec, vcc, 0xff
              s_cbranch_execz L_cpf2
              v_mov_b32 v3, s5
              v_add_co_u32 v2, vcc, s4, v1
              s_nop 1
              v_addc_co_u32 v3, vcc, 0, v3, vcc
              global_load_dword v165, v[2:3], off""")
        a.label("L_cpf2")
        a("s_mov_b64 exec, -1")
        a.label("L_cpf1")
    sIT, sDEL, sSL = 25, 26, 30
    sMASK = 28
    XA, WA = 8, 12
    ACC = 64
    a(f"""v_and_b32 v1, 31, v0
          v_lshrrev_b32 v2, 5, v0
          v_bfe_u32 v3, v0, 1, 3
          v_xor_b32 v3, v3, v2
          v_lshlrev_b32 v4, 7, v1
          s_or_b32 s3, s2, s{sW}
          s_cmp_lg_u32 s3, 4
          s_waitcnt lgkmcnt(0)""")
    srd(a, 56, kDBG, 256)
    a(f"""s_cbranch_scc1 L_nonpub
          s_cmp_lg_u32 s2, 0
          s_cbranch_scc1 L_nonpub
          s_memrealtime s[4:5]
          s_waitcnt lgkmcnt(0)
          s_or_b32 s4, s4, 1
          v_mov_b32 v5, s4
          s_mov_b64 exec, 1
          buffer_store_dword v5, off, s[56:59], 0 sc0 sc1
          s_mov_b64 exec, -1""")
    a.label("L_nonpub")
    srd(a, SWS, kWS, 0x1000000)
    for kk in range(4):
        a(f"""v_xor_b32 v5, {2*kk}, v3
              v_lshl_add_u32 v{XA+kk}, v5, 4, v4""")
    a(f"""s_getreg_b32 s{sPTV}, hwreg(HW_REG_XCC_ID, 0, 16)
          s_lshl_b32 s{sPTV}, s{sPTV}, 8
          v_bfe_u32 v3, v0, 2, 2
          v_lshl_add_u32 v7, v2, 3, v3             ; 8h + r
          v_lshlrev_b32 v4, 7, v7
          v_bfe_u32 v5, v0, 4, 1
          v_lshlrev_b32 v5, 1, v5
          v_bfe_u32 v6, v0, 1, 1
          v_add_u32 v5, v5, v6
          s_and_b32 s3, s{sW}, 2
          s_lshl_b32 s3, s3, 1
          v_add_u32 v5, s3, v5
          v_bfe_u32 v6, v0, 3, 1
          v_lshlrev_b32 v6, 2, v6
          v_xor_b32 v5, v5, v6
          v_lshl_add_u32 v4, v5, 4, v4
          v_and_b32 v6, 1, v0
          v_lshl_add_u32 v4, v6, 3, v4
          s_cmp_lt_u32 s{sW}, 4
          s_cbranch_scc1 L_kv""")
    sEH, sCA = 24, 25
    XF, AA, AB, WG, TM = 20, 36, 52, 100, 68
    XCH = WR + (7 % NS)*WSL + 16384
    DL, PH, SG, UA, NV, EI, XC = 12, 13, 14, 15, 3, 7, 16
    a(f"""s_and_b32 s3, s{sW}, 2
          s_lshl_b32 s3, s3, 11
          s_add_u32 s3, s3, {WR+16384}""")
    for kk in range(4): a(f"v_add_u32 v{XA+kk}, s3, v{XA+kk}")
    a(f"""s_and_b32 s{sEH}, s{sW}, 1
          s_lshr_b32 s3, s{sJ}, 2                  ; eb
          s_and_b32 s{sCA}, s3, {opt('--amask', 4)}
          s_lshl_b32 s3, s3, 1
          s_add_u32 s6, s3, s{sEH}
          s_lshl_b32 s3, s6, 4
          v_and_b32 v5, 15, v0
          v_add_u32 v{EI}, s3, v5                  ; e
          v_bfe_u32 v6, v0, 4, 1
          v_cvt_f32_u32 v{PH}, v6
          v_mul_f32 v{PH}, 0x3e800000, v{PH}
          s_cmp_eq_u32 s6, 0
          s_cselect_b32 s{sMASK}, 0x10000, 0
          s_mov_b32 s{sMASK+1}, s{sMASK}
          v_mov_b32 v6, 256
          v_cndmask_b32 v{EI}, v{EI}, v6, s[{sMASK}:{sMASK+1}]
          v_cndmask_b32 v{PH}, v{PH}, 0, s[{sMASK}:{sMASK+1}]
          v_cvt_f32_u32 v{DL}, v{EI}
          v_mul_f32 v{DL}, 0x3b000000, v{DL}       ; e/512
          v_and_b32 v6, 1, v0
          v_lshlrev_b32 v6, 31, v6
          v_or_b32 v{SG}, 1.0, v6
          s_mov_b32 s3, s{sTB}                     ; pi
          s_lshr_b32 s4, s6, 1
          s_lshl_b32 s4, s4, 5
          s_add_u32 s4, s4, s3
          s_lshl_b32 s4, s4, 1
          s_add_u32 s4, s4, s{sEH}
          s_lshl_b32 s26, s4, 2
          s_mul_i32 s3, s3, {U_GP}
          s_lshl_b32 s4, s6, 8
          s_add_u32 s3, s3, s4
          s_add_u32 s3, s3, {WS_U}
          v_lshl_add_u32 v5, v5, 4, s3
          v_lshrrev_b32 v6, 4, v0
          s_movk_i32 s4, {U_ROW}
          v_mad_u32_u24 v{UA}, v6, s4, v5
          s_lshl_b32 s3, s{sEH}, 11
          s_add_u32 s3, s3, {XCH}
          v_lshl_add_u32 v{XC}, v0, 4, s3""")
    def genw(c):
        o = [f"""s_add_u32 s3, s{sCA}, {c}
              s_and_b32 s3, s3, 7
              s_lshl_b32 s3, s3, 6
              v_lshl_add_u32 v{TM}, v2, 3, s3
              v_cvt_f32_u32 v{TM}, v{TM}
              v_mul_f32 v{TM}, v{TM}, v{DL}
              v_fract_f32 v{TM}, v{TM}
              v_add_f32 v{TM}, v{TM}, v{PH}"""]
        for kk in range(4):
            t = []
            for j in range(1, 8): t.append(f"v_add_f32 v{TM+j}, v{TM+j-1}, v{DL}")
            for j in range(8): t.append(f"v_cos_f32 v{TM+8+j}, v{TM+j}")
            t.append(f"v_fmamk_f32 v{TM}, v{DL}, 0x41100000, v{TM+7}")
            for j in range(4): t.append(f"v_cvt_pk_bf16_f32 v{WG+16*c+4*kk+j}, v{TM+8+2*j}, v{TM+9+2*j}")
            o.append("\n".join(t))
        return o
    CR, CI, NCI = 68+16, 68+24, WG
    def genc(m, T):
        t = []
        for j in range(8):
            cj = 16*m + (j % 4) + 8*(j // 4)
            t.append(f"""v_mad_u32_u24 v{T+j}, v1, {cj}, v{PH}
                  v_and_b32 v{T+j}, 31, v{T+j}
                  v_cvt_f32_u32 v{T+j}, v{T+j}
                  v_mul_f32 v{T+j}, 0x3d000000, v{T+j}""")
        u = [f"v_cos_f32 v{T+8+j}, v{T+j}" for j in range(8)] + [f"v_sin_f32 v{T+j}, v{T+j}" for j in range(8)] + ["s_nop 0"]
        for j in range(4):
            u.append(f"""v_cvt_pk_bf16_f32 v{CR+4*m+j}, v{T+8+2*j}, v{T+9+2*j}
                  v_cvt_pk_bf16_f32 v{CI+4*m+j}, -v{T+2*j}, -v{T+1+2*j}
                  v_cvt_pk_bf16_f32 v{NCI+4*m+j}, v{T+2*j}, v{T+1+2*j}""")
        return ["\n".join(t[:4]), "\n".join(t[4:]), "\n".join(u[:17]), "\n".join(u[17:])]
    for c in range(2):
        for x in genw(c): a(x)
    a("s_barrier")
    def rda(g): return f"ds_read_b128 {vr(XF+4*(g % 4),4)}, v{XA+g % 4}" if g < 32 else ""
    a(rda(0)); a(rda(1))
    for st in range(8):
        fill = {0: genw(2), 1: genw(3), 5: genc(0, TM), 6: genc(1, TM)}.get(st, [])
        if st in (0, 1): fill = [fill[0] + "\n" + fill[1]] + fill[2:]
        if st == 2: fill = ["", "", "", f"v_lshlrev_b32 v{PH}, 2, v2\nv_mul_u32_u24 v{PH}, v{PH}, v1"]
        acc = AA if st < 4 else AB
        for kk in range(4):
            g = 4*st + kk
            mm_ = f"{MFMA} {vr(acc,16)}, {vr(XF+4*(g % 4),4)}, {vr(WG+16*(st%4)+4*kk,4)}, {'0' if (st % 4 == 0 and kk == 0) else vr(acc,16)}"
            if kk < 3:
                a("s_waitcnt lgkmcnt(1)")
                a(mm_)
                if kk < 2: a(rda(g+2))
                if fill: a(fill[kk])
            if kk == 2:
                if st < 7:
                    d = WSL if (st+1) % NS else -(NS-1)*WSL
                    a(f"s_mov_b32 s3, {d}")
                    for r in range(4): a(f"v_add_u32 v{XA+r}, s3, v{XA+r}")
                    a("s_waitcnt lgkmcnt(0)\ns_barrier")
                    if st == 4: a(f"buffer_load_dword v{NV}, off, s[56:59], 0 sc1")
                    a(rda(g+2))
                else:
                    a("s_waitcnt lgkmcnt(0)")
            if kk == 3:
                a(mm_); a(rda(g+2))
                if fill: a(fill[3])
    stamp(a, 7)
    PK, SV, RE, IM, D1, D2 = XF, WG+24, WG+32, WG+48, AA, AB
    a("s_nop 11")
    for r in range(16): a(f"v_fma_f32 v{AA+r}, v{AB+r}, v{SG}, v{AA+r}")
    for t in range(8): a(f"v_cvt_pk_bf16_f32 v{PK+t}, v{AA+2*t}, v{AA+2*t+1}")
    a("s_waitcnt vmcnt(0)")
    nonce_wait(a, NV, True)
    a(f"""s_xor_b32 s{sPTV}, s{sPTV}, s{sNON}
          s_barrier
          s_cmp_lt_u32 s{sW}, 6
          s_cbranch_scc1 L_a1e
          ds_write_b128 v{XC}, {vr(PK,4)}
          ds_write_b128 v{XC}, {vr(PK+4,4)} offset:1024
          s_waitcnt lgkmcnt(0)
          s_barrier
          s_barrier
          s_barrier
          s_barrier
          s_branch L_att""")
    a.label("L_a1e")
    a(f"""s_barrier
          ds_read_b128 {vr(PK+8,4)}, v{XC}
          ds_read_b128 {vr(PK+12,4)}, v{XC} offset:1024
          s_waitcnt lgkmcnt(0)""")
    for t in range(8): a(f"v_permlane16_swap_b32 v{PK+t}, v{PK+8+t}")
    a(f"""s_mov_b32 s6, 0x00010001
          s_mov_b32 s7, 0x00010001
          s_cmp_eq_u32 s{sMASK}, 0
          s_cbranch_scc1 L_nosp1""")
    for t in range(8):
        a(f"v_mov_b32 v{SV+t}, v{PK+8+t}")
        a(f"v_cndmask_b32 v{PK+8+t}, v{PK+8+t}, 0, s[6:7]")
    a.label("L_nosp1")
    a("s_nop 1")
    def step1(aa, bb):
        a(f"{MFMA} {vr(RE,16)}, {vr(CR,4)}, {vr(aa,4)}, 0")
        a(f"{MFMA} {vr(IM,16)}, {vr(CI,4)}, {vr(aa,4)}, 0")
        a(f"{MFMA} {vr(RE,16)}, {vr(CR+4,4)}, {vr(aa+4,4)}, {vr(RE,16)}")
        a(f"{MFMA} {vr(IM,16)}, {vr(CI+4,4)}, {vr(aa+4,4)}, {vr(IM,16)}")
        if bb is not None:
            for m in range(2):
                a(f"{MFMA} {vr(RE,16)}, {vr(NCI+4*m,4)}, {vr(bb+4*m,4)}, {vr(RE,16)}")
                a(f"{MFMA} {vr(IM,16)}, {vr(CR+4*m,4)}, {vr(bb+4*m,4)}, {vr(IM,16)}")
    def upack(D):
        for r in range(16): a(f"v_cvt_pk_bf16_f32 v{D+r}, v{RE+r}, v{IM+r}")
        for g in range(4):
            d = D + 4*g
            a(f"""v_permlane32_swap_b32 v{d}, v{d+2}
                  v_permlane32_swap_b32 v{d+1}, v{d+3}""")
        for g in range(4):
            d = D + 4*g
            a(f"""v_permlane16_swap_b32 v{d}, v{d+1}
                  v_permlane16_swap_b32 v{d+2}, v{d+3}""")
    def ust(D, off):
        for g in range(4):
            a(f"""s_mov_b32 s4, {4*g*U_ROW + off}
                  buffer_store_dwordx4 {vr(D+4*g,4)}, v{UA}, s[{SWS}:{SWS+3}], s4 offen {ST}""")
    step1(PK, PK+8)
    a("s_barrier\ns_nop 10")
    upack(D1)
    a(f"""s_cmp_eq_u32 s{sMASK}, 0
          s_cbranch_scc1 L_nosp2""")
    step1(SV, None)
    a("s_nop 11")
    upack(D2)
    a.label("L_nosp2")
    stamp(a, 8)
    ust(D1, 0)
    a(f"""s_cmp_eq_u32 s{sMASK}, 0
          s_cbranch_scc1 L_nosp3
          s_mov_b64 exec, s[6:7]""")
    ust(D2, 4096)
    a("s_mov_b64 exec, -1")
    a.label("L_nosp3")
    a(f"""s_barrier
          s_barrier
          s_add_u32 s3, s26, {WS_F3}""")
    publish(a, 3, 6)
    a("s_branch L_att")

    a.label("L_kv")
    FR = 32
    FK = 96
    def X(b, i): return FK + 12*b + 4*i
    def W(b): return FK + 12*b + 8
    a(f"""s_and_b32 s3, s{sW}, 1
          s_lshl_b32 s3, s3, 13
          s_add_u32 s3, s3, {WR}
          v_add_u32 v{WA}, s3, v4""")
    for r in range(32): a(f"v_mov_b32 v{ACC+r}, 0")
    a(f"""s_lshl_b32 s3, s2, 5
          s_add_u32 s3, s3, s{sW}
          s_lshl_b32 s3, s3, 2
          s_add_u32 s31, s3, {WS_F1}
          s_lshl_b32 s3, s{sHG}, 2
          s_and_b32 s4, s{sW}, 2
          s_add_u32 s3, s3, s4
          s_lshl_b32 s3, s3, 16
          s_lshl_b32 s4, s{sTB}, 11
          s_add_u32 s3, s3, s4
          s_add_u32 s3, s3, {WS_K}
          v_lshl_add_u32 v14, v0, 4, s3
          s_add_u32 s3, s3, {WS_V - WS_K}
          v_bfe_u32 v5, v0, 4, 1
          v_lshlrev_b32 v5, 16, v5
          v_lshl_add_u32 v5, v2, 8, v5
          v_and_b32 v6, 15, v0
          v_lshl_add_u32 v5, v6, 4, v5
          v_add_u32 v16, s3, v5
          v_mov_b32 v21, v4
          s_and_b32 s4, s{sW}, 2
          s_mul_i32 s3, s4, {HSTR}
          s_add_u32 s3, s3, 8192
          v_lshl_add_u32 v17, v0, 4, s3
          s_add_u32 s3, s3, 10240
          v_bfe_u32 v5, v0, 4, 1
          v_mul_u32_u24 v5, {HSTR}, v5
          v_lshl_add_u32 v5, v2, 8, v5
          v_lshl_add_u32 v5, v6, 4, v5
          v_add_u32 v18, s3, v5
          s_and_b32 s3, s{sW}, 1
          s_lshl_b32 s3, s3, 12
          s_lshl_b32 s4, s4, 10
          s_add_u32 s3, s3, s4
          s_add_u32 s3, s3, {Q_BASE}
          v_lshl_add_u32 v20, v0, 4, s3
          s_mov_b32 s8, {f2u(QSCALE):#x}
          s_mov_b32 s9, s8""")
    def rd(kk, b):
        return [f"ds_read_b128 {vr(X(b,i),4)}, v{XA+kk} offset:{i*4096}" for i in range(2)] + [f"ds_read_b64_tr_b16 {vr(W(b)+2*q,2)}, v{WA} offset:{kk*2048 + q*512}" for q in range(2)]
    def step(b, variant, r):
        m = []
        for i in range(2):
            A_, B_ = (W(b), X(b,i)) if variant == "K" else (X(b,i), W(b))
            m.append(f"{MFMA} {vr(ACC+16*i,16)}, {vr(A_,4)}, {vr(B_,4)}, {vr(ACC+16*i,16)}")
        for x in [m[0]] + r[:2] + [m[1]] + r[2:]: a(x)
    a(f"""s_mov_b32 s{sIT}, 0
          s_mov_b32 s{sSL}, 0
          s_mov_b32 s27, {WSL}""")
    stamp(a, 1)
    a("s_barrier")
    stamp(a, 2)
    for x in rd(0, 0) + rd(1, 1): a(x)
    a(f"""s_bitcmp1_b32 s{sW}, 0
          s_cbranch_scc1 L_loopV""")
    for variant in ("K", "V"):
        a.label(f"L_loop{variant}")
        for kk in range(3):
            a("s_waitcnt lgkmcnt(4)")
            step(kk, variant, rd(kk+2, kk+2) if kk < 2 else [])
        a(f"""s_add_u32 s{sSL}, s{sSL}, 1
              s_cmp_eq_u32 s{sSL}, {NS}
              s_cselect_b32 s{sDEL}, {-(NS-1)*WSL}, s27
              s_cselect_b32 s{sSL}, 0, s{sSL}
              v_add_u32 v{WA}, s{sDEL}, v{WA}""")
        for r in range(4): a(f"v_add_u32 v{XA+r}, 8192, v{XA+r}")
        a(f"""s_add_u32 s{sIT}, s{sIT}, 1
              s_bitcmp1_b32 0x128, s{sIT}
              s_waitcnt lgkmcnt(0)
              s_cbranch_scc1 L_hook{variant}""")
        a.label(f"L_ret{variant}")
        a("s_barrier")
        for x in rd(0, 0): a(x)
        step(3, variant, rd(1, 1))
        a(f"s_branch L_loop{variant}")
        a.label(f"L_hook{variant}")
        a(f"""s_cmp_eq_u32 s{sIT}, 8
              s_cbranch_scc1 L_last{variant}
              s_cmp_eq_u32 s{sIT}, 5
              s_cbranch_scc1 L_h5{variant}
              buffer_load_dword v19, off, s[56:59], 0 sc1
              s_branch L_ret{variant}""")
        a.label(f"L_h5{variant}")
        a("s_waitcnt vmcnt(0)")
        nonce_wait(a, 19, True)
        a(f"s_xor_b32 s{sPTV}, s{sPTV}, s{sNON}")
        if MODE == "auto" and variant == "K":
            a(f"""s_cmp_lg_u32 s{sW}, 2
                  s_cbranch_scc1 L_ret{variant}
                  s_lshl_b32 s3, s2, 7
                  s_add_u32 s3, s3, {WS_PT}
                  v_mov_b32 v19, s{sPTV}
                  s_mov_b64 exec, 1
                  buffer_store_dword v19, off, s[{SWS}:{SWS+3}], s3 sc1
                  s_mov_b64 exec, -1""")
        a(f"s_branch L_ret{variant}")
        a.label(f"L_last{variant}")
        step(3, variant, [])
        stamp(a, 3)
        a("s_mov_b32 s4, 65536\ns_nop 9")
        for i in range(2):
            for mm in range(2):
                d = FR + 8*i + 4*mm
                for t in range(4): a(f"v_cvt_pk_bf16_f32 v{d+t}, v{ACC+16*i+8*mm+2*t}, v{ACC+16*i+8*mm+2*t+1}")
                if variant == "K":
                    a(f"buffer_store_dwordx4 {vr(d,4)}, v14, s[{SWS}:{SWS+3}], {'s4' if mm else '0'} offen offset:{i*1024} {ST}")
                else:
                    a(f"buffer_store_dwordx4 {vr(d,4)}, v16, s[{SWS}:{SWS+3}], 0 offen offset:{i*1024+mm*512} {ST}")
        if variant == "K": a("s_branch L_kvdone")
    a.label("L_kvdone")
    stamp(a, 4)
    FQ = 96
    a(f"""s_and_b32 s3, s{sW}, 1
          s_lshl_b32 s3, s3, 12
          s_sub_u32 s3, s3, 65536
          v_add_u32 v{WA}, {QSLOT[0]}, v21""")
    for kk in range(4): a(f"v_add_u32 v{XA+kk}, s3, v{XA+kk}")
    a("s_barrier")
    def rdq(u, k, b):
        c2, kk = k // 4, k % 4
        f = FQ + 8*b
        return [f"ds_read_b128 {vr(f,4)}, v{XA+kk} offset:{(2*u+c2)*8192}"] + [f"ds_read_b64_tr_b16 {vr(f+4+2*q,2)}, v{WA} offset:{c2*8192 + kk*2048 + q*512}" for q in range(2)]
    NBQ = 4
    for k in range(3):
        for x in rdq(0, k, k): a(x)
    for u in range(4):
        for k in range(8):
            g = 8*u + k
            last = k >= 5
            if k == 5 and u < 3:
                d = QSLOT[u+1] - QSLOT[u]
                if u == PUBU:
                    publish(a, 31, 6)
                    stamp(a, 5)
                a(f"""s_waitcnt lgkmcnt(0)
                      s_barrier
                      v_add_u32 v{WA}, {d}, v{WA}""")
            nxt = rdq(u, k+3, (g+3) % NBQ) if k < 5 else (rdq(u+1, k-5, (g+3) % NBQ) if u < 3 else [])
            if not (k >= 5 and u < 3) or k > 5 or True:
                outst = 6 if (k < 5 or u < 3) else 3*(7-k)
                if not (k == 5 and u < 3) and not (k in (6, 7) and u < 3): a(f"s_waitcnt lgkmcnt({outst})")
            f = FQ + 8*(g % NBQ)
            a(f"{MFMA} {vr(ACC,16)}, {vr(f+4,4)}, {vr(f,4)}, {'0' if g == 0 else vr(ACC,16)}")
            for x in nxt: a(x)
    a("s_barrier")
    stamp(a, 6)
    a(f"""s_bitcmp1_b32 s{sW}, 0
          s_cbranch_scc1 L_cpv""")
    for i in range(2):
        for mm in range(2): a(f"ds_write_b128 v17, {vr(FR+8*i+4*mm,4)} offset:{mm*HSTR + i*1024}")
    a("s_branch L_cpq")
    a.label("L_cpv")
    for i in range(2):
        for mm in range(2): a(f"ds_write_b128 v18, {vr(FR+8*i+4*mm,4)} offset:{i*1024 + mm*512}")
    a.label("L_cpq")
    a("s_nop 5")
    for t in range(8): a(f"v_pk_mul_f32 {vr(ACC+2*t,2)}, {vr(ACC+2*t,2)}, s[8:9]")
    for t in range(8): a(f"v_cvt_pk_bf16_f32 v{FQ+t}, v{ACC+2*t}, v{ACC+2*t+1}")
    a(f"""ds_write_b128 v20, {vr(FQ,4)}
          ds_write_b128 v20, {vr(FQ+4,4)} offset:1024""")

    a.label("L_att")
    QF = 4
    KA, VA_, NINF, MX = 2, 3, 8, 9
    KF, VF, PP, S, O, CN, CD, CF = 12, 24, 40, 48, 80, 96, 112, 128
    S3, P2, MK = 112, 128, 136
    sVM, sNF, sI = 8, 10, 11
    srd(a, SOUT, kOUT, 0x400000)
    a(f"""s_and_b32 s3, s{sW}, 3
          s_lshr_b32 s5, s{sW}, 2
          s_lshl_b32 s4, s{sHG}, 2
          s_add_u32 s{sHD}, s4, s3
          s_lshl_b32 s4, s{sTB}, 1
          s_add_u32 s4, s4, s5                     ; qb
          s_lshl_b32 s{sQO}, s4, 10
          s_lshl_b32 s6, s{sHD}, 16
          s_add_u32 s{sQO}, s{sQO}, s6
          s_min_u32 s{sNF}, s4, 7
          s_lshl_b32 s4, s4, 5
          s_add_u32 s4, s4, s{sHD}
          s_lshl_b32 s4, s4, 2
          s_add_u32 s{sF2}, s4, {WS_F2}
          v_lshlrev_b32 v1, 4, v0
          s_lshl_b32 s4, s{sW}, 10
          s_add_u32 s4, s4, {Q_BASE}
          v_add_u32 v4, s4, v1
          s_lshl_b32 s4, s3, 2
          s_add_u32 s4, s4, {KVF}
          v_mov_b32 v149, s4
          s_mul_i32 s4, s3, {HSTR}
          s_lshl_b32 s5, s5, 10
          s_add_u32 s4, s4, s5
          v_add_u32 v{KA}, s4, v1
          v_lshrrev_b32 v10, 5, v0
          v_and_b32 v11, 15, v0
          v_lshlrev_b32 v11, 4, v11
          v_lshl_add_u32 v11, v10, 8, v11
          s_add_u32 s4, s4, 10240
          v_add_u32 v{VA_}, s4, v11
          v_mov_b32 v{NINF}, 0xff800000
          s_mov_b32 s{sVM}, 0x0000ffff
          s_mov_b32 s{sVM+1}, 0x0000ffff
          s_mov_b32 s6, 0x00110000
          s_mov_b32 s7, 0x00110000
          v_mov_b32 v10, 0x3f803f80""")
    for t in range(16): a(f"v_cndmask_b32 v{VF+t}, 0, v10, s[6:7]")
    for r in range(16):
        lo, hi = diag_mask(r)
        a(f"s_mov_b32 s{64+2*r}, {lo:#x}\ns_mov_b32 s{65+2*r}, {hi:#x}")
    a("v_mov_b32 v10, 0xffff\nv_mov_b32 v11, 0xffff0000")
    for t in range(8):
        a(f"""v_cndmask_b32 v{MK+t}, 0, v10, s[{64+4*t}:{65+4*t}]
              v_cndmask_b32 v5, 0, v11, s[{66+4*t}:{67+4*t}]
              v_or_b32 v{MK+t}, v{MK+t}, v5""")
    a("s_waitcnt lgkmcnt(0)")
    stamp(a, 11)
    a("s_barrier")
    stamp(a, 12)
    a(f"ds_read_b128 {vr(QF,4)}, v4")
    def kv_wait(lvl):
        uid[0] += 1
        L = f"kw{uid[0]}"
        a("s_mov_b32 s60, 0")
        a.label(L)
        a(f"""ds_read_b32 v11, v149
              s_add_u32 s60, s60, 1
              s_cmp_gt_u32 s60, {SPIN_MAX*8}
              s_cbranch_scc1 {L}x
              s_waitcnt lgkmcnt(0)
              v_readfirstlane_b32 s3, v11
              s_cmp_lt_u32 s3, {lvl}
              s_cbranch_scc1 {L}""")
        a.label(L + "x")
    def masks(val):
        return [f"""v_cndmask_b32 v{CD+r}, v{NINF}, {val}, s[{64+2*r}:{65+2*r}]
                  v_cndmask_b32 v{CF+r}, {val}, v{NINF}, s[{64+2*r}:{65+2*r}]""" for r in range(16)]
    def maxblk(S_, first):
        if first: a(f"v_max_f32 v{MX}, v{S_}, v{S_+1}")
        for t in range(2 if first else 0, 16, 2):
            a(f"v_max3_f32 v{MX}, v{S_+t}, v{S_+t+1}, v{MX}")
    def xhalf_max():
        a(f"""v_mov_b32 v10, v{MX}
              s_nop 1
              v_permlane32_swap_b32 v10, v{MX}
              s_nop 1
              v_max_f32 v{MX}, v{MX}, v10""")
    order = [7, 6, 5, 4, 3, 2, 1, 8, 0]
    def rdK(n): return f"ds_read_b128 {vr(KF+4*(n%3),4)}, v{KA} offset:{order[n]*1024}"
    def rdV(n):
        b = VF + 8*(n % 2)
        return f"""s_mov_b64 exec, s[{sVM}:{sVM+1}]
              ds_read_b128 {vr(b,4)}, v{VA_} offset:{order[n]*1024}
              ds_read_b128 {vr(b+4,4)}, v{VA_} offset:{order[n]*1024+512}
              s_mov_b64 exec, -1"""
    def mS(k, Dd): return f"{MFMA} {vr(Dd,16)}, {vr(KF+4*(k%3),4)}, {vr(QF,4)}, {vr(CN,16)}"
    a("s_setprio 3")
    pt_load()
    if FORCE_SLOW: a("s_branch L_preslow")
    CI_ = 149
    def fast(first):
        def mSv(k, Dd, tag=''):
            if not first or k == 7: a(mS(k, Dd)); return
            inv = f"{MFMA} {vr(Dd,16)}, {vr(KF+4*(k%3),4)}, {vr(QF,4)}, {vr(CI_+1,16)}"
            if k == 8: a(inv); return
            a(f"""s_cmp_gt_u32 s{sNF}, {k}
                  s_cbranch_scc1 L_fv{k}{tag}
                  {inv}
                  s_branch L_fw{k}{tag}""")
            a.label(f"L_fv{k}{tag}")
            a(mS(k, Dd))
            a.label(f"L_fw{k}{tag}")
        F = int(first)
        if first:
            for r in range(16): a(f"v_mov_b32 v{CI_+1+r}, v{NINF}")
        def standin():
            a(f"""v_max3_f32 v{MX}, v{S+16}, v{S+17}, v{S+18}
                  v_max3_f32 v10, v{S+19}, v{S+20}, v{S+21}
                  v_max3_f32 v11, v{S+22}, v{S+23}, v{S+24}
                  v_max3_f32 v{MX}, v{S+25}, v{S+26}, v{MX}
                  v_max3_f32 v10, v{S+27}, v{S+28}, v10
                  v_max3_f32 v11, v{S+29}, v{S+30}, v11
                  v_max3_f32 v{MX}, v{S+31}, v{MX}, v10
                  v_max_f32 v{MX}, v{MX}, v11""")
            xhalf_max()
            a(f"v_sub_f32 v{CN}, 0xc2700000, v{MX}")
            for r in range(1, 16): a(f"v_mov_b32 v{CN+r}, v{CN}")
        a(f"""s_cmp_lt_u32 s{sW}, 4
              s_cbranch_scc1 L_q0{F}""")
        a(rdK(0)); a(rdV(0))
        a(f"""s_waitcnt lgkmcnt(2)
              {MFMA} {vr(S+16,16)}, {vr(KF,4)}, {vr(QF,4)}, 0
              s_nop 11""")
        standin()
        a("s_nop 1"); a(mS(0, S)); a("s_nop 11")
        for r in range(12): a(f"v_exp_f32 v{S+r}, v{S+r}")
        for t in range(4): a(f"v_cvt_pk_bf16_f32 v{PP+t}, v{S+2*t}, v{S+2*t+1}")
        a(f"""v_exp_f32 v{S+12}, v{S+12}
              s_waitcnt lgkmcnt(0)
              {MFMA} {vr(O,16)}, {vr(VF,4)}, {vr(PP,4)}, 0""")
        for r in range(13, 16): a(f"v_exp_f32 v{S+r}, v{S+r}")
        for t in range(4, 8): a(f"v_cvt_pk_bf16_f32 v{PP+t}, v{S+2*t}, v{S+2*t+1}")
        stamp(a, 30)
        a("s_barrier")
        a(rdK(1)); a("s_barrier"); a(rdK(2)); a(rdV(1))
        a("s_waitcnt lgkmcnt(3)")
        mSv(1, S+16, "b")
        a(f"s_nop 10\ns_branch L_n1{F}")
        a.label(f"L_q0{F}")
        a(f"""ds_read_b128 {vr(KF+8,4)}, v{KA} offset:{8*1024}
              s_waitcnt lgkmcnt(0)
              {MFMA} {vr(S+16,16)}, {vr(KF+8,4)}, {vr(QF,4)}, 0
              s_nop 11""")
        for r in range(16): a(f"v_cndmask_b32 v{S+16+r}, v{NINF}, v{S+16+r}, s[{64+2*r}:{65+2*r}]")
        standin()
        stamp(a, 30)
        a("s_barrier")
        a(rdK(0)); a(rdK(1)); a(rdV(0))
        a("s_waitcnt lgkmcnt(3)")
        mSv(0, S)
        prev = None
        for n in range(8):
            Sn = S + 16*(n % 2); Vn = VF + 8*(n % 2)
            P_ = PP if n % 2 == 0 else P2
            ex = lambda r: a(f"v_exp_f32 v{Sn+r}, v{Sn+r}")
            cv = lambda t: a(f"v_cvt_pk_bf16_f32 v{P_+t}, v{Sn+2*t}, v{Sn+2*t+1}")
            if n == 1: a.label(f"L_n1{F}")
            PR = dict(zip([int(c) for c in opt("--pr", "357")], (2, 1, 0)))
            if n in PR: a(f"s_setprio {PR[n]}")
            if n in (2, 4):
                a(f"""v_readfirstlane_b32 s3, v11
                      s_cmp_ge_u32 s3, {n//2}
                      s_cbranch_scc1 L_kf{int(first)}{n}""")
                kv_wait(n//2)
                a.label(f"L_kf{int(first)}{n}")
            if n == 0:
                a("s_waitcnt lgkmcnt(2)"); mSv(1, S+16); a("s_barrier"); a(rdK(2)); a(rdV(1)); a("s_nop 3")
            if n == 7:
                a(prev); a("s_nop 3")
                for r in range(16): a(f"v_cndmask_b32 v{Sn+r}, v{S3+r}, v{Sn+r}, s[{64+2*r}:{65+2*r}]")
            for r in range(4): ex(r)
            if 0 < n < 7: a(prev)
            if n == 7: a(rdV(8))
            for r in range(4, 8): ex(r)
            if 0 < n < 7:
                a("s_waitcnt lgkmcnt(2)"); mSv(n+1, S + 16*((n+1) % 2))
                if n in (1, 3): a("ds_read_b32 v11, v149")
                a(rdK(n+2)); a(rdV(n+1))
            for t in range(4): cv(t)
            for r in range(8, 12): ex(r)
            if n < 7:
                a("s_waitcnt lgkmcnt(3)")
                a(f"{MFMA} {vr(O,16)}, {vr(Vn,4)}, {vr(P_,4)}, {'0' if n == 0 else vr(O,16)}")
            else:
                for t in range(4): a(f"v_and_b32 v{PP+t}, v{MK+t}, v{P_+t}\nv_xor_b32 v{P_+t}, v{PP+t}, v{P_+t}")
                a("s_waitcnt lgkmcnt(2)")
                a(f"{MFMA} {vr(O,16)}, {vr(Vn,4)}, {vr(PP,4)}, {vr(O,16)}")
            ex(12); ex(13)
            if n == 6: a("s_waitcnt lgkmcnt(2)"); mSv(8, S3)
            if n == 7: a("s_waitcnt lgkmcnt(0)"); a(f"{MFMA} {vr(O,16)}, {vr(VF,4)}, {vr(P2,4)}, {vr(O,16)}")
            ex(14); ex(15)
            for t in range(4, 8): cv(t)
            prev = f"{MFMA} {vr(O,16)}, {vr(Vn+4,4)}, {vr(P_+4,4)}, {vr(O,16)}"
        for t in range(4, 8): a(f"v_and_b32 v{PP+t}, v{MK+t}, v{P2+t}\nv_xor_b32 v{P2+t}, v{PP+t}, v{P2+t}")
        a(f"""s_nop 0
          {MFMA} {vr(O,16)}, {vr(VF+12,4)}, {vr(PP+4,4)}, {vr(O,16)}
          {MFMA} {vr(O,16)}, {vr(VF+4,4)}, {vr(P2+4,4)}, {vr(O,16)}
          s_waitcnt vmcnt(0)
          v_cmp_ne_u32 s[6:7], s{sPTV}, v148
          v_mov_b32 v14, 0x7f800000
          s_nop 8
          v_add_f32 v10, |v{O}|, |v{O+1}|
          v_add_f32 v11, |v{O+2}|, |v{O+3}|
          v_add_f32 v12, |v{O+4}|, |v{O+5}|
          v_add_f32 v13, |v{O+6}|, |v{O+7}|
          v_add_f32 v10, v10, v11
          v_add_f32 v12, v12, v13
          v_mul_f32 v11, 0x43800000, v{O+8}
          v_add_f32 v10, v10, v12
          v_add_f32 v11, v10, v11
          v_rcp_f32 v10, v{O+8}
          v_cmp_lt_f32 vcc, v11, v14
          s_cmp_eq_u64 vcc, -1
          s_cbranch_scc1 L_norm
          s_branch L_slow""")
    a(f"""s_cmp_eq_u32 s{sR}, 0
          s_cbranch_scc1 L_first""")
    fast(False)
    a.label("L_first")
    fast(True)
    a.label("L_preslow")
    a("s_barrier\ns_barrier")
    kv_wait(2)
    a.label("L_slow")
    a(f"""s_setprio 0
          s_sub_u32 s3, 8, s{sNF}
          s_lshl_b32 s3, s3, 10
          s_waitcnt lgkmcnt(0)""")
    for x in masks("0"): a(x)
    a(f"""ds_read_b128 {vr(KF,4)}, v{KA} offset:{8*1024}
          s_waitcnt lgkmcnt(0)
          {MFMA} {vr(S,16)}, {vr(KF,4)}, {vr(QF,4)}, {vr(CD,16)}
          s_nop 11""")
    maxblk(S, True)
    a(f"""s_cmp_eq_u32 s{sR}, 0
          s_cbranch_scc1 L_s1nofar
          ds_read_b128 {vr(KF,4)}, v{KA}
          s_waitcnt lgkmcnt(0)
          {MFMA} {vr(S,16)}, {vr(KF,4)}, {vr(QF,4)}, {vr(CF,16)}
          s_nop 11""")
    maxblk(S, False)
    a.label("L_s1nofar")
    a(f"""s_mov_b32 s{sI}, s{sNF}
          v_add_u32 v10, s3, v{KA}
          s_cmp_eq_u32 s{sI}, 0
          s_cbranch_scc1 L_s1done""")
    a.label("L_s1loop")
    a(f"""ds_read_b128 {vr(KF,4)}, v10
          v_add_u32 v10, 1024, v10
          s_waitcnt lgkmcnt(0)
          {MFMA} {vr(S,16)}, {vr(KF,4)}, {vr(QF,4)}, 0
          s_nop 11""")
    maxblk(S, False)
    a(f"""s_sub_u32 s{sI}, s{sI}, 1
          s_cmp_lg_u32 s{sI}, 0
          s_cbranch_scc1 L_s1loop""")
    a.label("L_s1done")
    xhalf_max()
    a(f"v_sub_f32 v{MX}, 0, v{MX}")
    for x in masks(f"v{MX}"): a(x)
    for r in range(16): a(f"v_mov_b32 v{CN+r}, v{MX}")
    def pvblk(kaddr, vaddr, off, C, first):
        a(f"""ds_read_b128 {vr(KF,4)}, v{kaddr} offset:{off}
              s_mov_b64 exec, s[{sVM}:{sVM+1}]
              ds_read_b128 {vr(VF,4)}, v{vaddr} offset:{off}
              ds_read_b128 {vr(VF+4,4)}, v{vaddr} offset:{off+512}
              s_mov_b64 exec, -1
              s_waitcnt lgkmcnt(0)
              {MFMA} {vr(S,16)}, {vr(KF,4)}, {vr(QF,4)}, {vr(C,16)}
              s_nop 11""")
        for r in range(16): a(f"v_exp_f32 v{S+r}, v{S+r}")
        for t in range(8): a(f"v_cvt_pk_bf16_f32 v{PP+t}, v{S+2*t}, v{S+2*t+1}")
        a("s_nop 1")
        a(f"{MFMA} {vr(O,16)}, {vr(VF,4)}, {vr(PP,4)}, {'0' if first else vr(O,16)}")
        a(f"{MFMA} {vr(O,16)}, {vr(VF+4,4)}, {vr(PP+4,4)}, {vr(O,16)}")
    pvblk(KA, VA_, 8*1024, CD, True)
    a(f"""s_cmp_eq_u32 s{sR}, 0
          s_cbranch_scc1 L_s2nofar""")
    pvblk(KA, VA_, 0, CF, False)
    a.label("L_s2nofar")
    a(f"""s_mov_b32 s{sI}, s{sNF}
          v_add_u32 v10, s3, v{KA}
          v_add_u32 v11, s3, v{VA_}
          s_cmp_eq_u32 s{sI}, 0
          s_cbranch_scc1 L_s2done""")
    a.label("L_s2loop")
    pvblk(10, 11, 0, CN, False)
    a(f"""v_add_u32 v10, 1024, v10
          v_add_u32 v11, 1024, v11
          s_sub_u32 s{sI}, s{sI}, 1
          s_cmp_lg_u32 s{sI}, 0
          s_cbranch_scc1 L_s2loop""")
    a.label("L_s2done")
    a(f"""s_waitcnt vmcnt(0)
          v_cmp_ne_u32 s[6:7], s{sPTV}, v148
          s_nop 12
          v_rcp_f32 v10, v{O+8}
          s_nop 0""")
    a.label("L_norm")
    for t in range(8): a(f"v_mul_f32 v{O+t}, v10, v{O+t}")
    for t in range(4): a(f"v_cvt_pk_bf16_f32 v{PP+t}, v{O+2*t}, v{O+2*t+1}")
    a(f"s_add_u32 s4, s{sQO}, {WS_O}")
    if MODE == "auto":
        a(f"""s_cmp_eq_u64 s[6:7], 0
              s_cbranch_scc0 L_ox
              buffer_store_dwordx4 {vr(PP,4)}, v1, s[{SWS}:{SWS+3}], s4 offen""")
        stamp(a, 13)
        publish(a, sF2, 10, flav="")
        a("s_branch L_od")
        a.label("L_ox")
    a(f"buffer_store_dwordx4 {vr(PP,4)}, v1, s[{SWS}:{SWS+3}], s4 offen {ST}")
    stamp(a, 13 if MODE != "auto" else 19)
    publish(a, sF2, 10)
    a.label("L_od")
    stamp(a, 14)
    a(f"""s_barrier
          s_cmp_ge_u32 s{sW}, 4
          s_cbranch_scc1 L_fin""")
    OA, WA2, ACC2, W2, O2 = 8, 9, 16, 32, 32
    a(f"""s_and_b32 s5, s{sW}, 1
          v_lshrrev_b32 v2, 5, v0
          v_bfe_u32 v3, v0, 2, 2
          v_lshl_add_u32 v4, v2, 2, v3
          v_lshlrev_b32 v4, 7, v4
          v_bfe_u32 v5, v0, 4, 1
          v_lshlrev_b32 v5, 1, v5
          v_and_b32 v6, 1, v0
          v_add_u32 v5, v5, v6
          s_and_b32 s3, s{sW}, 2
          s_lshl_b32 s3, s3, 1
          v_add_u32 v5, s3, v5
          v_bfe_u32 v6, v0, 3, 1
          v_lshlrev_b32 v6, 2, v6
          v_xor_b32 v5, v5, v6
          v_lshl_add_u32 v4, v5, 4, v4
          v_bfe_u32 v6, v0, 1, 1
          v_lshl_add_u32 v4, v6, 3, v4
          v_add_u32 v{WA2}, {WO_BASE}, v4
          s_lshl_b32 s3, s5, 10
          v_add_u32 v{OA}, s3, v1
          v_and_b32 v14, 31, v0
          s_lshl_b32 s3, s{sTB}, 6
          s_lshl_b32 s5, s5, 5
          s_add_u32 s3, s3, s5
          v_add_u32 v14, s3, v14
          v_lshlrev_b32 v14, 11, v14
          v_lshl_add_u32 v14, v2, 4, v14
          s_lshl_b32 s3, s{sHG}, 7
          s_and_b32 s5, s{sW}, 2
          s_lshl_b32 s5, s5, 5
          s_add_u32 s3, s3, s5
          s_add_u32 s3, s3, 1024
          v_add_u32 v14, s3, v14
          v_mov_b32 v15, v{OA}""")
    heads = [8*(k//4 % 4) + 4*(k//16) + k % 4 for k in range(32)]
    OB = [2, 6, 10, 160]
    for k in range(32):
        for q in range(2):
            a(f"ds_read_b64_tr_b16 {vr(W2+4*k+2*q,2)}, v{WA2} offset:{heads[k]*2048 + q*1024}")
    a("s_waitcnt lgkmcnt(0)\ns_barrier")
    stamp(a, 28)
    rdo = lambda k: f"ds_read_b128 {vr(OB[k % 4],4)}, v15 offset:{heads[k]*2048}"
    for k in range(4): a(rdo(k))
    for k in range(32):
        if k == 12:
            a("s_barrier")
            stamp(a, 16)
        a(f"s_waitcnt lgkmcnt({min(3, 31-k)})")
        a(f"{MFMA} {vr(ACC2,16)}, {vr(W2+4*k,4)}, {vr(OB[k % 4],4)}, {'0' if k == 0 else vr(ACC2,16)}")
        if k + 4 < 32: a(rdo(k+4))
    a("s_nop 11")
    for mm in range(2):
        for t in range(4):
            a(f"v_cvt_pk_bf16_f32 v{O2+4*mm+t}, v{ACC2+8*mm+2*t}, v{ACC2+8*mm+2*t+1}")
        a(f"buffer_store_dwordx4 {vr(O2+4*mm,4)}, v14, s[{SOUT}:{SOUT+3}], 0 offen offset:{32*mm} {OPF}")
    stamp(a, 17)
    a.label("L_fin")
    stamp_flush(a, 18)
    a.label("L_end")
    a.label("L_last_insn")
    a("s_endpgm")
    return a

def main():
    a = gen()
    hdr = f"""; {NAME} : one fused kernel (generated by my gen11.py)
; @launch grid=(256,1,1) block=(768,1,1) lds=163840
.amdgcn_target "amdgcn-amd-amdhsa--gfx950"
.text
"""
    kd = f""".section .rodata,"a"
.p2align 6
.amdhsa_kernel {KN}
  .amdhsa_next_free_vgpr 168
  .amdhsa_next_free_sgpr 102
  .amdhsa_accum_offset 168
  .amdhsa_group_segment_fixed_size 0
  .amdhsa_kernarg_size 88
  .amdhsa_user_sgpr_count 2
  .amdhsa_user_sgpr_kernarg_segment_ptr 1
  .amdhsa_system_sgpr_workgroup_id_x 1
.end_amdhsa_kernel
"""
    path = sys.argv[1] if len(sys.argv) > 1 and sys.argv[1].endswith(".s") else f"cdna_kernels/{NAME}.s"
    open(path, "w").write(hdr + a.text() + kd)
main()
```

```python
import sys, struct, math

NAME = "concat_heads__spectral_fnet__sliding_block__prompt"
KN = NAME + "_kernel"
WS_Q, WS_K, WS_V, WS_O, WS_U = 0, 2 << 20, 4 << 20, 6 << 20, 8 << 20
WS_F1, WS_F2, WS_PT, WS_F3 = (11 << 20), (11 << 20) + 0x20000, (11 << 20) + 0x60000, (11 << 20) + 0x70000
U_ROW = 4224
U_GP = 16 * U_ROW
U_SIZE = 32 * U_GP
QSCALE = 0.25 * math.log2(math.e)
uid = [0]
STAMP = "--stamp" in sys.argv
FORCE_SLOW = "--slow" in sys.argv
SKIP = set(int(x) for x in sys.argv[sys.argv.index("--skip")+1].split(",")) if "--skip" in sys.argv else set()
ST = sys.argv[sys.argv.index("--st")+1].replace("+", " ") if "--st" in sys.argv else "sc1"
LD = "sc1"
SPIN_MAX = 200000
def opt(name, default):
    return type(default)(sys.argv[sys.argv.index(name)+1]) if name in sys.argv else default
PDELAY = opt("--pdelay", 0)
PIPE = "--pipe" in sys.argv
FULLF = "--fullf" in sys.argv
KVLD = sys.argv[sys.argv.index("--kvld")+1].replace("+", " ").replace("none", "") if "--kvld" in sys.argv else "sc1"
A2ST = "sc1" if "--a2sc1" in sys.argv else ""
WB = "--wb" in sys.argv

def f2u(x): return struct.unpack("<I", struct.pack("<f", x))[0]

class Asm:
    def __init__(self): self.L = []
    def __call__(self, s):
        for line in s.strip("\n").split("\n"):
            line = line.strip()
            if line: self.L.append(line if line.endswith(":") and " " not in line else "  " + line)
    def label(self, n): self.L.append(n + ":")
    def text(self): return "\n".join(self.L) + "\n"

def vr(b, n=1): return f"v{b}" if n == 1 else f"v[{b}:{b+n-1}]"
MFMA = "v_mfma_f32_32x32x16_bf16"

kAX, kSR, kSI, kDR, kDI, kBX, kWQ, kWO, kOUT, kDBG, kWS = 64, 66, 68, 70, 72, 74, 76, 78, 80, 82, 84
sTB, sHG, sJ, sW, sNON = 16, 17, 18, 19, 20
sHD, sR = 21, 22
SWS = 32
VST = 167

def srd(a, d, k, size, off=0):
    if off:
        a(f"s_add_u32 s{d}, s{k}, {off}\ns_addc_u32 s{d+1}, s{k+1}, 0")
    else:
        a(f"s_mov_b32 s{d}, s{k}\ns_mov_b32 s{d+1}, s{k+1}")
    a(f"s_mov_b32 s{d+2}, {size}\ns_mov_b32 s{d+3}, 0x20000")

AMP = [int(x) for x in sys.argv[sys.argv.index("--amp")+1].split(",")] if "--amp" in sys.argv else None
def amp_end(a):
    if not AMP: return
    uid[0] += 1
    L = f"amp{uid[0]}"
    a(f"""s_cmp_lg_u32 s2, {AMP[3]}
          s_cbranch_scc1 {L}x
          s_cmp_lg_u32 s{sW}, {AMP[4]}
          s_cbranch_scc1 {L}x
          s_waitcnt vmcnt(0)
          s_memrealtime s[62:63]
          s_sub_u32 s100, s101, s100
          s_min_u32 s100, s100, 10000
          s_mul_i32 s100, s100, {AMP[2]}
          s_waitcnt lgkmcnt(0)
          s_add_u32 s100, s100, s62""")
    a.label(L)
    a(f"""s_memrealtime s[62:63]
          s_waitcnt lgkmcnt(0)
          s_sub_u32 s61, s62, s100
          s_cmp_lt_i32 s61, 0
          s_cbranch_scc1 {L}""")
    a.label(L + "x")
GMAX = None
def stamp(a, idx):
    if AMP and idx in AMP[:2]:
        a(f"""s_memrealtime s[62:63]
              s_waitcnt lgkmcnt(0)
              s_mov_b32 s{100 + AMP[:2].index(idx)}, s62""")
    if not STAMP: return
    if idx in SKIP: return
    a(f"""s_memrealtime s[96:97]
          s_memtime s[98:99]
          s_waitcnt lgkmcnt(0)
          v_writelane_b32 v{VST}, s96, {idx}
          v_writelane_b32 v{VST}, s98, {idx+32}""")
def stamp_flush(a, idx):
    if AMP:
        if idx in AMP[:2]: a("s_waitcnt vmcnt(0)")
        stamp(a, idx)
        amp_end(a)
    if not STAMP: return
    a("s_waitcnt vmcnt(0)")
    stamp(a, idx)
    srd(a, 88, SWS, 0x100000, 16 << 20)
    a(f"""s_mov_b64 exec, -1
          s_lshl_b32 s92, s2, 12
          s_lshl_b32 s93, s{sW}, 8
          s_add_u32 s92, s92, s93
          v_mbcnt_lo_u32_b32 v2, -1, 0
          v_mbcnt_hi_u32_b32 v2, -1, v2
          v_lshlrev_b32 v2, 2, v2
          buffer_store_dword v{VST}, v2, s[88:91], s92 offen""")

def poll(a, vaddr, vtmp, nl_mask, srdreg=SWS):
    uid[0] += 1
    L = f"poll{uid[0]}"
    a(f"""s_mov_b32 s60, 0
          s_mov_b64 exec, {nl_mask}""")
    a.label(L)
    a(f"""buffer_load_dword v{vtmp}, v{vaddr}, s[{srdreg}:{srdreg+3}], 0 offen sc1
          s_add_u32 s60, s60, 1
          s_cmp_gt_u32 s60, {SPIN_MAX}
          s_cbranch_scc1 {L}x
          s_waitcnt vmcnt(0)
          v_cmp_ne_u32 vcc, s{sNON}, v{vtmp}
          s_cbranch_vccnz {L}""")
    a.label(L + "x")
    a("s_mov_b64 exec, -1")

def poll_pipe(a, vaddr, vt, nl_mask, gap=2):
    uid[0] += 1
    L = f"pp{uid[0]}"
    ld = lambda k: f"buffer_load_dword v{vt+k}, v{vaddr}, s[{SWS}:{SWS+3}], 0 offen sc1"
    a(f"""s_mov_b32 s60, 0
          s_mov_b64 exec, {nl_mask}
          {ld(0)}
          s_sleep {gap}
          {ld(1)}""")
    a.label(L)
    for k in range(3):
        a(f"""s_sleep {gap}
              {ld((k+2)%3)}
              s_waitcnt vmcnt(2)
              v_cmp_ne_u32 vcc, s{sNON}, v{vt+k}
              s_cbranch_vccz {L}x""")
    a(f"""s_add_u32 s60, s60, 1
          s_cmp_lt_u32 s60, {SPIN_MAX}
          s_cbranch_scc1 {L}""")
    a.label(L + "x")
    a("s_mov_b64 exec, -1")

def poll2(a, va, vt):
    uid[0] += 1
    L = f"pq{uid[0]}"
    a("s_mov_b32 s60, 0")
    a.label(L)
    a(f"""buffer_load_dwordx2 v[{vt}:{vt+1}], v{va}, s[{SWS}:{SWS+3}], 0 offen sc1
          s_add_u32 s60, s60, 1
          s_cmp_gt_u32 s60, {SPIN_MAX}
          s_cbranch_scc1 {L}x
          s_waitcnt vmcnt(0)
          v_cmp_ne_u32 vcc, s{sNON}, v{vt}
          v_cmp_ne_u32 s[4:5], s{sNON}, v{vt+1}
          s_or_b64 vcc, vcc, s[4:5]
          s_cbranch_vccnz {L}""")
    a.label(L + "x")

def publish(a, soff, vtmp, cnt=0, flav=None):
    if FULLF:
        a(f"""v_mov_b32 v{vtmp}, s{sNON}
              v_mov_b32 v{vtmp+1}, s{sNON}
              s_waitcnt vmcnt({cnt})
              s_mov_b64 exec, 0xffff
              buffer_store_dwordx2 v[{vtmp}:{vtmp+1}], v166, s[{SWS}:{SWS+3}], s{soff} offen {ST if flav is None else flav}
              s_mov_b64 exec, -1""")
        return
    a(f"""s_waitcnt vmcnt({cnt})
          v_mov_b32 v{vtmp}, s{sNON}
          s_mov_b64 exec, 1
          buffer_store_dword v{vtmp}, off, s[{SWS}:{SWS+3}], s{soff} {ST if flav is None else flav}
          s_mov_b64 exec, -1""")

def nonce_wait(a, vtmp, first_loaded):
    uid[0] += 1
    L = f"non{uid[0]}"
    a("s_mov_b32 s60, 0")
    if first_loaded:
        a(f"s_branch {L}c")
    a.label(L)
    a(f"""buffer_load_dword v{vtmp}, off, s[56:59], 0 sc1
          s_waitcnt vmcnt(0)""")
    a.label(L + "c")
    a(f"""v_readfirstlane_b32 s{sNON}, v{vtmp}
          s_add_u32 s60, s60, 1
          s_cmp_gt_u32 s60, {SPIN_MAX}
          s_cbranch_scc1 {L}x
          s_cmp_eq_u32 s{sNON}, 0
          s_cbranch_scc1 {L}""")
    a.label(L + "x")

def diag_mask(r):
    g, i = r // 4, r % 4
    return (0xffffffff << (8*g+i)) & 0xffffffff, (0xffffffff << (8*g+i+4)) & 0xffffffff

MODE = sys.argv[sys.argv.index("--mode")+1] if "--mode" in sys.argv else "auto"
A2F = opt("--a2st", "").replace("+", " ")
OPF = opt("--opst", "").replace("+", " ")
XR, WR, WSL = 0, 65536, 24576
NS = opt('--ns', 3)
QSLOT = [WR + 2*WSL, WR, WR + 3*WSL, WR + WSL] if NS == 3 else [WR + k*WSL for k in range(4)]
UPN = opt('--upn', 1)
PUBU = opt('--pubu', 1)
Q_BASE = 81920
WO_BASE = 98304
HSTR = 20480
UE = '--ue' in sys.argv
ALIGN = '--noalign' not in sys.argv
OWNF = WR + WSL + 16384 + 4096
MST = WR + 2*WSL
B11E = '--b11e' in sys.argv
NONW = 163840 - 1024
OWNB = opt('--ownb', 1)
KVF = 90112
UF = 64
sX = sR

def gen():
    a = Asm()
    a.L += [f".globl {KN}", ".p2align 8", f".type {KN},@function"]
    a.label(KN)
    a(f"""s_cmp_ge_u32 s2, 256
          s_cbranch_scc1 L_end
          s_load_dwordx16 s[64:79], s[0:1], 0
          s_load_dwordx4 s[80:83], s[0:1], 64
          s_load_dwordx2 s[84:85], s[0:1], 80
          v_lshrrev_b32 v1, 6, v0
          v_and_b32 v0, 63, v0
          s_and_b32 s{sX}, s2, 7
          v_readfirstlane_b32 s{sW}, v1
          s_lshr_b32 s{sJ}, s2, 3
          s_lshl_b32 s3, s{sX}, 2
          s_and_b32 s4, s{sJ}, 3
          s_add_u32 s{sTB}, s3, s4
          s_lshr_b32 s{sHG}, s2, 5
          s_xor_b32 s{sHG}, s{sHG}, {opt("--hgx", 0)}""")
    if FULLF: a("v_lshlrev_b32 v166, 3, v0")
    if STAMP: a(f"v_mov_b32 v{VST}, 0")
    stamp(a, 0)
    a(f"""s_cmp_lt_u32 s{sW}, 8
          s_cbranch_scc1 L_consumer""")
    sQO, sF2, sPTV = 12, 13, 14
    def get_tag(vt):
        a(f"""v_mov_b32 v{vt}, {NONW}
              ds_read_b32 v{vt}, v{vt}
              s_waitcnt lgkmcnt(0)
              v_readfirstlane_b32 s{sNON}, v{vt}
              s_nop 1""")
    def pt_load():
        if MODE == "auto":
            a(f"""v_and_b32 v147, 31, v0
                  v_lshl_add_u32 v147, v147, 3, s{sX}
                  v_lshlrev_b32 v147, 7, v147
                  v_add_u32 v147, {WS_PT}, v147
                  buffer_load_dword v148, v147, s[{SWS}:{SWS+3}], 0 offen sc1""")
    sLW, sROT, sSOX, sSOW, sMX, sMW, sTY = 23, 15, 28, 29, 30, 31, 27
    SX, SWD, SAX = 36, 40, 48
    SWOD, SOUT = 44, 40
    sC0 = 24
    XO, WO_, XA1 = 8, 10, 14
    sRA, sAX = 21, 25
    a(f"""s_sub_u32 s{sLW}, s{sW}, 8
          s_lshl_b32 s3, s{sTB}, 2
          s_add_u32 s3, s3, s{sLW}
          s_lshl_b32 s3, s3, 14                    ; (64tb + 16lw)*1024
          v_lshrrev_b32 v1, 3, v0
          v_and_b32 v2, 7, v0
          v_lshrrev_b32 v3, 4, v0
          v_xor_b32 v4, v3, v2
          v_xor_b32 v5, 4, v4
          v_lshlrev_b32 v4, 4, v4
          v_lshlrev_b32 v5, 4, v5
          v_lshl_add_u32 v6, v1, 10, s3
          v_add_u32 v{XO}, v6, v4
          v_add3_u32 v{XO+1}, v6, v5, s4
          v_and_b32 v6, 1, v3
          v_lshlrev_b32 v6, 2, v6
          v_xor_b32 v6, v6, v2
          s_lshl_b32 s3, s{sHG}, 7
          v_lshl_add_u32 v6, v6, 4, s3
          s_and_b32 s3, s{sLW}, 1
          s_lshl_b32 s3, s3, 5
          v_add_u32 v7, s3, v1
          s_movk_i32 s3, 3072
          v_mad_u32_u24 v{WO_}, v7, s3, v6""".replace("v_add3_u32 v9, v6, v5, s4", "v_add_u32 v9, v6, v5\n          v_add_u32 v9, 8192, v9"))
    for jw in range(1, 4): a(f"v_add_u32 v{WO_+jw}, {8*3072*jw}, v{WO_}")
    a(f"""s_and_b32 s3, s{sJ}, 3
          s_lshl_b32 s3, s3, 1
          s_add_u32 s3, s3, s{sHG}
          s_add_u32 s3, s3, s{sX}
          s_and_b32 s{sROT}, s3, {opt('--rmask', 4)}
          s_lshr_b32 s{sTY}, s{sLW}, 1
          s_lshl_b32 s{sTY}, s{sTY}, 10
          s_add_u32 s{sTY}, s{sTY}, 1024
          s_lshl_b32 s{sSOX}, s{sROT}, 7
          s_mul_i32 s{sSOW}, s{sROT}, {64*3072}
          s_add_u32 s{sSOW}, s{sSOW}, s{sTY}
          s_lshl_b32 s{sMX}, s{sLW}, 11
          s_lshl_b32 s{sMW}, s{sLW}, 12
          s_waitcnt lgkmcnt(0)""")
    srd(a, SX, kBX, 0x200000)
    srd(a, SWD, kWQ, 0x180000)
    stamp(a, 1)
    def dma(sm0, m0off, v, S, so):
        a(f"""s_add_u32 m0, s{sm0}, {m0off}
              s_nop 0
              buffer_load_dwordx4 v{v}, s[{S}:{S+3}], s{so} offen lds""")
    def issue(st):
        if st < 8:
            for j in range(2): dma(sMX, XR + st*8192 + j*1024, XO+j, SX, sSOX)
        base = WR + (st % NS)*WSL if st < 8 else QSLOT[st-8]
        for j in range(4): dma(sMW, base + j*1024, WO_+j, SWD, sSOW)
        if st == 0:
            a(f"""; A_x rows: pi = 8*(x>>1) + (j&7) ; p = lw>>1, s1 = 16*(lw&1) + 8j + (i>>3)
          s_lshl_b32 s3, s{sTB}, 1
          s_lshr_b32 s4, s{sLW}, 1
          s_add_u32 s3, s3, s4
          s_lshl_b32 s3, s3, 10
          s_and_b32 s4, s{sLW}, 1
          s_lshl_b32 s4, s4, 20
          s_add_u32 s3, s3, s4
          v_lshl_add_u32 v6, v1, {10 if '--xcont' in sys.argv else 16}, s3
          v_add_u32 v{XA1}, v6, v4
          v_add_u32 v{XA1+1}, v6, v5
          v_add_u32 v{XA1+1}, {8*1024 if '--xcont' in sys.argv else 8*65536}, v{XA1+1}
          s_lshr_b32 s3, s{sJ}, 2
          s_and_b32 s{sRA}, s3, {opt('--amask', 4)}
          s_lshl_b32 s{sAX}, s{sRA}, 7""")
            srd(a, SAX, kAX, 0x200000)
        if st < 8:
            for j in range(2): dma(sMX, base + 16384 + j*1024, XO+j if '--xsame' in sys.argv else XA1+j, SX if '--xsame' in sys.argv else SAX, sSOX if '--xsame' in sys.argv else sAX)
        if st < 7:
            a(f"""s_add_u32 s{sROT}, s{sROT}, 1
                  s_and_b32 s{sROT}, s{sROT}, 7
                  s_lshl_b32 s{sSOX}, s{sROT}, 7
                  s_mul_i32 s{sSOW}, s{sROT}, {64*3072}
                  s_add_u32 s{sSOW}, s{sSOW}, s{sTY}
                  s_add_u32 s{sAX}, s{sAX}, 128
                  s_and_b32 s{sAX}, s{sAX}, 1023""")
        elif st < 11:
            a(f"s_add_u32 s{sROT}, s{sROT}, 2")
            a(f"""s_and_b32 s{sROT}, s{sROT}, 7
                  s_mul_i32 s{sSOW}, s{sROT}, {64*3072}""")
    issue(0)
    srd(a, SWS, kWS, 0x1000000)
    srd(a, 56, kDBG, 256)
    a(f"""          ; wo voffset: (128lw + (i>>3))*1024 + hg*128 + ((i&7) ^ (((i>>4)&1)<<2))*16
          v_and_b32 v6, 1, v3
          v_lshlrev_b32 v6, 2, v6
          v_xor_b32 v6, v6, v2
          s_lshl_b32 s3, s{sLW}, 17
          s_lshl_b32 s4, s{sHG}, 7
          s_add_u32 s3, s3, s4
          v_lshl_add_u32 v6, v6, 4, s3
          v_lshl_add_u32 v19, v1, 10, v6
          v_lshrrev_b32 v4, 1, v0
          v_add_u32 v4, s{sTB}, v4
          v_subrev_u32 v4, 4, v4
          v_and_b32 v5, 3, v4
          v_bfe_u32 v4, v4, 2, 3
          v_lshl_add_u32 v4, v5, 3, v4
          s_lshr_b32 s4, s2, 5
          s_lshl_b32 s4, s4, 12
          s_and_b32 s5, s{sLW}, 2
          s_lshl_b32 s5, s5, 2
          s_add_u32 s4, s4, s5
          v_lshl_add_u32 v4, v4, 7, s4
          v_and_b32 v5, 1, v0
          v_lshl_add_u32 v4, v5, 2, v4
          v_add_u32 v16, {WS_F1}, v4
          v_lshlrev_b32 v1, 4, v0
          s_lshl_b32 s9, s{sHG}, 2
          s_add_u32 s9, s9, s{sLW}
          s_lshl_b32 s5, s{sTB}, 11
          s_lshl_b32 s6, s9, 16
          s_add_u32 s10, s5, s6
          s_add_u32 s5, s10, {WS_O}
          v_lshl_add_u32 v24, v0, 7, s5
          s_lshl_b32 s4, s{sTB}, 6
          s_lshl_b32 s5, s{sLW}, 3
          s_add_u32 s4, s4, s5
          v_bfe_u32 v4, v0, 1, 3
          v_and_b32 v5, 1, v0
          v_lshl_add_u32 v4, v5, 5, v4
          v_add_u32 v4, s4, v4
          v_lshlrev_b32 v4, 2, v4
          v_add_u32 v25, {WS_F2}, v4
          s_lshl_b32 s5, s{sLW}, 19
          s_lshl_b32 s6, s{sTB}, 11
          s_add_u32 s5, s5, s6
          s_add_u32 s13, s5, {WS_O}""")
    MF, A2 = 96, 128
    sPF, sWB, sIH = 52, 54, 55
    a(f"""s_lshl_b32 s4, s2, 1
          s_lshr_b32 s5, s{sLW}, 1
          s_add_u32 s4, s4, s5
          s_mul_i32 s4, s4, 3072
          s_and_b32 s5, s{sLW}, 1
          s_lshl_b32 s5, s5, 9
          s_add_u32 s5, s5, s4
          s_add_u32 s{sPF}, s{kWQ}, s5
          s_addc_u32 s{sPF+1}, s{kWQ+1}, 0
          s_mov_b32 s{sIH}, 0
          s_mov_b32 s{sWB}, {WR + 2*WSL}
          s_add_u32 s11, s{sMX}, {XR + 2*8192}
          s_getreg_b32 s{sPTV}, hwreg(HW_REG_XCC_ID, 0, 16)
          s_lshl_b32 s{sPTV}, s{sPTV}, 8""")
    issue(1)
    def prefetch4():
        if "--nopf" in sys.argv: return
        a(f"""s_sub_u32 s3, s{sIH}, {opt("--pf0", 2)}
              s_cmp_ge_u32 s3, 4
              s_cbranch_scc1 L_hpf""")
        for k in range(4): a(f"s_load_dword s61, s[{sPF}:{sPF+1}], {64*k}")
        a(f"""s_add_u32 s{sPF}, s{sPF}, 256
              s_addc_u32 s{sPF+1}, s{sPF+1}, 0
              s_cmp_lg_u32 s3, 1
              s_cbranch_scc1 L_hpf
              s_lshl_b32 s4, s2, 2
              s_add_u32 s4, s4, s{sLW}
              s_lshl_b32 s5, s4, 9
              s_add_u32 s{sPF}, s{kWO}, s5
              s_addc_u32 s{sPF+1}, s{kWO+1}, 0""")
        a.label("L_hpf")
    stamp(a, 25)
    if ALIGN: a.L.append(".p2align 6")
    a.label("L_hl")
    a("s_waitcnt vmcnt(8)")
    if STAMP and "--lst" in sys.argv:
        a(f"""s_memrealtime s[96:97]
              s_add_u32 s3, s{sIH}, 2
              s_waitcnt lgkmcnt(0)
              v_writelane_b32 v{VST}, s96, s3""".replace("v_writelane_b32 v167, s96, s3", "s_mov_b32 m0, s3\nv_writelane_b32 v167, s96, m0"))
    a(f"""s_barrier
          s_add_u32 s4, s{sMW}, s{sWB}
          s_add_u32 s5, s{sMX}, s{sWB}""")
    for j in range(2): dma(11, j*1024, XO+j, SX, sSOX)
    for j in range(4): dma(4, j*1024, WO_+j, SWD, sSOW)
    for j in range(2): dma(5, 16384 + j*1024, XA1+j, SAX, sAX)
    prefetch4()
    a(f"""s_add_u32 s11, s11, 8192
          s_add_u32 s{sWB}, s{sWB}, {WSL}
          s_cmp_eq_u32 s{sWB}, {WR + 3*WSL}
          s_cselect_b32 s{sWB}, {WR}, s{sWB}
          s_add_u32 s{sROT}, s{sROT}, 1
          s_and_b32 s{sROT}, s{sROT}, 7
          s_lshl_b32 s{sSOX}, s{sROT}, 7
          s_mul_i32 s{sSOW}, s{sROT}, {64*3072}
          s_add_u32 s{sSOW}, s{sSOW}, s{sTY}
          s_add_u32 s{sAX}, s{sAX}, 128
          s_and_b32 s{sAX}, s{sAX}, 1023
          s_add_u32 s{sIH}, s{sIH}, 1
""")
    a(f"""s_cmp_lt_u32 s{sIH}, 6
          s_cbranch_scc1 L_hl
          s_lshr_b32 s3, s{sLW}, 1
          s_add_u32 s{sROT}, s{sROT}, s3
          s_and_b32 s{sROT}, s{sROT}, 7
          s_mul_i32 s{sSOW}, s{sROT}, {64*3072}
          s_cmp_lg_u32 s{sLW}, 0
          s_cbranch_scc1 L_hn0
          buffer_load_dword v18, off, s[56:59], 0 sc1
          s_waitcnt vmcnt(9)
          s_branch L_hn1""")
    a.label("L_hn0")
    a("s_waitcnt vmcnt(8)")
    a.label("L_hn1")
    a("s_barrier")
    issue(8)
    a(f"""s_cmp_lg_u32 s{sLW}, 0
          s_cbranch_scc1 L_hn2
          s_waitcnt vmcnt(5)
          s_branch L_hn3""")
    a.label("L_hn2")
    a("s_waitcnt vmcnt(4)")
    a.label("L_hn3")
    stamp(a, 9)
    a("s_barrier")
    issue(9); issue(10)
    a(f"""s_waitcnt vmcnt(8)
          s_cmp_lg_u32 s{sLW}, 0
          s_cbranch_scc1 L_hp2""")
    nonce_wait(a, 18, True)
    a(f"""v_mov_b32 v6, {NONW}
          v_mov_b32 v7, s{sNON}
          ds_write_b32 v6, v7""")
    if MODE == "auto":
        a(f"""s_xor_b32 s3, s{sPTV}, s{sNON}
              v_mov_b32 v18, s3
              s_lshl_b32 s3, s2, 7
              s_add_u32 s3, s3, {WS_PT}
              s_mov_b64 exec, 1
              buffer_store_dword v18, off, s[{SWS}:{SWS+3}], s3 sc1
              s_mov_b64 exec, -1""")
    a("s_waitcnt lgkmcnt(0)")
    a.label("L_hp2")
    stamp(a, 20)
    a("s_barrier")
    issue(11)
    get_tag(6)
    srd(a, SWOD, kWO, 0x80000)
    srd(a, SOUT, kOUT, 0x400000)
    a(f"""; A2 task: tc = 2x + (j&1), cr16 = j>>1, sigma = w&1, nt = (w>>1)&1
          s_lshl_b32 s6, s{sX}, 1
          s_and_b32 s4, s{sJ}, 1
          s_add_u32 s6, s6, s4                    ; tc
          s_lshr_b32 s7, s{sJ}, 1                 ; cr16
          s_lshl_b32 s{sC0}, s7, 5
          s_lshr_b32 s4, s6, 2
          s_lshl_b32 s4, s4, 3
          s_and_b32 s5, s6, 3
          s_add_u32 s4, s4, s5
          s_and_b32 s5, s{sW}, 1
          s_lshl_b32 s5, s5, 2
          s_add_u32 s5, s4, s5                    ; t1 source
          s_sub_u32 s4, 32, s5
          s_and_b32 s4, s4, 31
          s_cmp_lt_u32 s2, 128
          s_cselect_b32 s11, s5, s4
          s_cselect_b64 vcc, -1, 0
          v_and_b32 v45, 31, v0
          s_and_b32 s4, s{sW}, 2
          s_lshl_b32 s4, s4, 4
          v_add_u32 v45, s4, v45
          v_lshl_add_u32 v20, v45, 5, s11""")
    a(f"""v_lshrrev_b32 v47, 5, v0
          v_and_b32 v45, 0x13, v0
          v_bfe_u32 v46, v0, 2, 1
          v_lshl_or_b32 v45, v46, 3, v45
          v_bfe_u32 v46, v0, 3, 1
          v_lshl_or_b32 v45, v46, 2, v45
          v_add_u32 v45, s{sC0}, v45                ; c
          v_sub_u32 v46, 512, v45
          v_cndmask_b32 v45, v46, v45, vcc           ; e
          s_mul_i32 s4, s6, {U_ROW}
          s_and_b32 s5, s{sW}, 1
          s_lshl_b32 s5, s5, 3
          s_add_u32 s4, s4, s5
          s_add_u32 s4, s4, {WS_U}
          v_lshl_add_u32 v45, v45, 4, s4
          s_mov_b32 s5, {16*U_GP}
          v_mad_u32_u24 v22, v47, s5, v45           ; U address
          s_sub_u32 s5, 15, s7
          s_cmp_lt_u32 s2, 128
          s_cselect_b32 s4, s7, s5                ; e block b
          s_cselect_b32 s5, 0, 1
          v_mul_u32_u24 v45, s5, v47
          v_add_u32 v45, s4, v45
          v_and_b32 v45, 7, v45
          v_and_b32 v46, 31, v0
          v_lshlrev_b32 v46, 3, v46
          v_lshl_add_u32 v45, v45, 8, v46
          v_add_u32 v21, {WS_F3}, v45""")
    NT = 3 if MODE == "auto" else 1
    a(f"""s_sub_u32 s3, 4, s{sTB}
          s_max_i32 s3, s3, 0
          s_lshl_b32 s4, s3, 1
          s_lshl_b32 s6, 0xff, s4
          s_and_b32 s6, s6, 0xff
          s_mov_b32 s7, 0
          s_mul_i32 s8, s{sLW}, {HSTR}
          s_add_u32 s8, s8, 6144
          s_add_u32 s10, s10, {WS_K - 2048}
          s_lshl_b32 s30, s{sLW}, 14
          v_mov_b32 v2, 0x7ffffff0
          s_waitcnt vmcnt(8) lgkmcnt(0)
          s_barrier""")
    a(f"""s_waitcnt vmcnt(4)
          s_barrier
          s_waitcnt vmcnt(0)""")
    stamp(a, 23)
    a(f"""s_barrier
          s_mov_b64 exec, s[6:7]
          s_cbranch_execz L_kv0
          buffer_load_dword v5, v16, s[{SWS}:{SWS+3}], 0 offen sc1
          s_mov_b64 exec, -1
          s_barrier
          s_mov_b64 exec, s[6:7]
          s_waitcnt vmcnt(0)
          v_cmp_ne_u32 vcc, s{sNON}, v5
          s_mov_b64 exec, -1
          s_cbranch_vccz L_kv1""")
    poll(a, 16, 5, "s[6:7]")
    a("s_branch L_kv1")
    a.label("L_kv0")
    a("s_mov_b64 exec, -1\ns_barrier")
    a.label("L_kv1")
    stamp(a, 10)
    def kv_grp(g):
        a(f"""s_cmp_gt_u32 s{sTB}, {g}
              s_cbranch_scc1 L_kvr{g}
              v_mov_b32 v3, v2
              s_mov_b32 s10, {2048*g}""")
        a.label(f"L_kvr{g}")
        a(f"""s_sub_u32 m0, s8, {2048*g}
              s_sub_u32 s4, s10, {2048*g}
              buffer_load_dwordx4 v3, s[{SWS}:{SWS+3}], s4 offen {KVLD} lds
              buffer_load_dwordx4 v3, s[{SWS}:{SWS+3}], s4 offen offset:1024 {KVLD} lds
              s_add_u32 m0, m0, 10240
              s_add_u32 s4, s4, {WS_V - WS_K}
              buffer_load_dwordx4 v3, s[{SWS}:{SWS+3}], s4 offen {KVLD} lds
              buffer_load_dwordx4 v3, s[{SWS}:{SWS+3}], s4 offen offset:1024 {KVLD} lds""")
    KV1 = opt("--kv1", 3)
    a("v_mov_b32 v3, v1")
    for g in range(KV1): kv_grp(g)
    def wo_grp(g):
        a(f"""s_add_u32 s3, s{sJ}, {g}
              s_and_b32 s3, s3, 3
              s_lshl_b32 s4, s3, 12
              s_add_u32 s4, s4, s30
              s_add_u32 s4, s4, {WO_BASE}
              s_lshl_b32 s5, s3, 15""")
        for jj in range(4):
            a(f"""s_add_u32 m0, s4, {jj*1024}
                  s_add_u32 s6, s5, {jj*8192}
                  buffer_load_dwordx4 v19, s[{SWOD}:{SWOD+3}], s6 offen lds""")
    a(f"""s_lshl_b32 s3, s{sLW}, 2
          s_add_u32 s3, s3, {KVF}
          v_mov_b32 v6, s3
          v_mov_b32 v7, 0
          ds_write_b32 v6, v7""")
    a(f"""s_and_b32 s3, s{sLW}, 1
          s_lshl_b32 s3, s3, 13
          s_add_u32 s3, s3, {MST}
          v_add_u32 v44, s3, v1""")
    for js in range(8): a(f"ds_read_b128 {vr(MF+4*js,4)}, v44 offset:{js*1024}")
    a(f"""s_bitcmp1_b32 s{sLW}, 1
          s_cselect_b32 s3, 0x80008000, 0
          v_mov_b32 v7, 1
          s_waitcnt lgkmcnt(0)""")
    for k in range(16): a(f"v_xor_b32 v{MF+2*k+1}, s3, v{MF+2*k+1}")
    a(f"s_waitcnt vmcnt({4*KV1-4})")
    stamp(a, 11)
    a("s_barrier")
    stamp(a, 12)
    for g in range(KV1, 4): kv_grp(g)
    a(f"""s_waitcnt vmcnt(8)
          s_barrier
          buffer_load_dwordx2 v[4:5], v21, s[{SWS}:{SWS+3}], 0 offen sc1""")
    if MODE == "auto":
        a(f"""s_mov_b64 exec, 0xffff
              buffer_load_dword v27, v24, s[{SWS}:{SWS+3}], 0 offen
              buffer_load_dword v26, v25, s[{SWS}:{SWS+3}], 0 offen sc1
              s_mov_b64 exec, -1""")
    a(f"""s_waitcnt vmcnt({NT + 4})
          ds_write_b32 v6, v7
          v_mov_b32 v7, 2""")
    wo_grp(0)
    a(f"""s_waitcnt vmcnt({NT + 4})
          ds_write_b32 v6, v7""")
    stamp(a, 21)
    for g in range(1, 4): wo_grp(g)
    a(f"""s_waitcnt vmcnt(16)
          v_cmp_ne_u32 vcc, s{sNON}, v4
          v_cmp_ne_u32 s[4:5], s{sNON}, v5
          s_or_b64 vcc, vcc, s[4:5]
          s_cbranch_vccz L_uok""")
    poll2(a, 21, 4)
    a.label("L_uok")
    stamp(a, 26)
    for js in range(8):
        for b in range(2):
            a(f"""s_mov_b32 s4, {(2*js + b)*U_GP}
                  buffer_load_dwordx2 {vr(UF+4*js+2*b,2)}, v22, s[{SWS}:{SWS+3}], s4 offen {LD}""")
    a(f"""v_lshrrev_b32 v3, 5, v0
          v_lshlrev_b32 v10, 11, v20
          v_lshl_add_u32 v10, v3, 4, v10
          s_lshl_b32 s4, s{sC0}, 1
          v_add_u32 v10, s4, v10""")
    stamp(a, 27)
    for js in range(8):
        a(f"s_waitcnt vmcnt({14-2*js})")
        a(f"{MFMA} {vr(A2,16)}, {vr(UF+4*js,4)}, {vr(MF+4*js,4)}, {'0' if js == 0 else vr(A2,16)}")
    a("s_nop 11")
    for t in range(8): a(f"v_cvt_pk_bf16_f32 v{UF+t}, v{A2+2*t}, v{A2+2*t+1}")
    a("s_barrier")
    stamp(a, 14)
    def o_fetch():
        a(f"""s_lshl_b32 s4, s8, 13
              s_add_u32 s4, s4, s30
              s_lshl_b32 s5, s8, 18
              s_add_u32 s5, s5, s13""")
        for j in range(4):
            a(f"""s_add_u32 m0, s4, {j*2048}
                  s_add_u32 s7, s5, {j*65536}
                  buffer_load_dwordx4 v1, s[{SWS}:{SWS+3}], s7 offen {LD} lds
                  buffer_load_dwordx4 v1, s[{SWS}:{SWS+3}], s7 offen offset:1024 {LD} lds""")
    a(f"""s_mov_b32 s60, 0
          s_mov_b32 s8, 0
          s_mov_b32 s9, 1""")
    a.label("L_opl")
    a(f"""s_mov_b64 exec, 0xffff
          buffer_load_dword v5, v25, s[{SWS}:{SWS+3}], 0 offen sc1
          s_add_u32 s60, s60, 1
          s_cmp_gt_u32 s60, {SPIN_MAX}
          s_cbranch_scc1 L_opx
          s_waitcnt vmcnt(0)
          v_cmp_ne_u32 vcc, s{sNON}, v5
          s_and_b32 s4, vcc_lo, 0xff
          s_and_b32 s9, vcc_lo, 0xff00
          s_cmp_lg_u32 s4, 0
          s_cbranch_scc1 L_opl""")
    a.label("L_opx")
    a("s_mov_b64 exec, -1")
    o_fetch()
    a(f"""s_mov_b32 s8, 1
          s_cmp_lg_u32 s9, 0
          s_cbranch_scc1 L_op2""")
    o_fetch()
    a("""s_waitcnt vmcnt(8) lgkmcnt(0)
         s_barrier
         s_branch L_op3""")
    a.label("L_op2")
    a(f"""s_lshl_b32 s3, s8, 3
          s_lshl_b32 s10, 0xff, s3
          s_mov_b32 s11, 0
          s_waitcnt vmcnt(0) lgkmcnt(0)
          s_barrier""")
    poll(a, 25, 5, "s[10:11]")
    o_fetch()
    a.label("L_op3")
    stamp(a, 15)
    a("s_waitcnt vmcnt(0)\ns_barrier")
    for mm in range(2):
        a(f"buffer_store_dwordx4 {vr(UF+4*mm,4)}, v10, s[{SOUT}:{SOUT+3}], 0 offen offset:{32*mm} {A2F}")
    stamp(a, 13)
    stamp_flush(a, 18)
    a("s_endpgm")

    a.label("L_consumer")
    if "--nocpf" not in sys.argv:
        a(f"""s_cmp_lg_u32 s{sW}, 7
              s_cbranch_scc1 L_cpf1
              s_getpc_b64 s[4:5]""")
        a.label("L_cpf0")
        a(f"""s_sub_u32 s4, s4, L_cpf0-{KN}
              s_subb_u32 s5, s5, 0
              s_lshl_b32 s3, s{sJ}, 3
              v_add_u32 v1, s3, v0
              v_lshlrev_b32 v1, 7, v1
              v_cmp_gt_u32 vcc, L_last_insn-{KN}, v1
              s_and_b64 exec, vcc, 0xff
              s_cbranch_execz L_cpf2
              v_mov_b32 v3, s5
              v_add_co_u32 v2, vcc, s4, v1
              s_nop 1
              v_addc_co_u32 v3, vcc, 0, v3, vcc
              global_load_dword v165, v[2:3], off""")
        a.label("L_cpf2")
        a("s_mov_b64 exec, -1")
        a.label("L_cpf1")
    sIT, sDEL, sSL = 25, 26, 30
    sMASK = 28
    XA, WA = 8, 12
    ACC = 64
    a(f"""v_and_b32 v1, 31, v0
          v_lshrrev_b32 v2, 5, v0
          v_bfe_u32 v3, v0, 1, 3
          v_xor_b32 v3, v3, v2
          v_lshlrev_b32 v4, 7, v1
          s_or_b32 s3, s2, s{sW}
          s_cmp_lg_u32 s3, 4
          s_waitcnt lgkmcnt(0)""")
    srd(a, 56, kDBG, 256)
    a(f"""s_cbranch_scc1 L_nonpub
          s_cmp_lg_u32 s2, 0
          s_cbranch_scc1 L_nonpub
          s_memrealtime s[4:5]
          s_waitcnt lgkmcnt(0)
          s_or_b32 s4, s4, 1
          v_mov_b32 v5, s4
          s_mov_b64 exec, 1
          buffer_store_dword v5, off, s[56:59], 0 sc0 sc1
          s_mov_b64 exec, -1""")
    a.label("L_nonpub")
    srd(a, SWS, kWS, 0x1000000)
    srd(a, SOUT, kOUT, 0x400000)
    for r in range(16):
        lo, hi = diag_mask(r)
        a(f"s_mov_b32 s{64+2*r}, {lo:#x}\ns_mov_b32 s{65+2*r}, {hi:#x}")
    for kk in range(4):
        a(f"""v_xor_b32 v5, {2*kk}, v3
              v_lshl_add_u32 v{XA+kk}, v5, 4, v4""")
    a(f"""s_getreg_b32 s{sPTV}, hwreg(HW_REG_XCC_ID, 0, 16)
          s_lshl_b32 s{sPTV}, s{sPTV}, 8
          v_bfe_u32 v3, v0, 2, 2
          v_lshl_add_u32 v7, v2, 3, v3             ; 8h + r
          v_lshlrev_b32 v4, 7, v7
          v_bfe_u32 v5, v0, 4, 1
          v_lshlrev_b32 v5, 1, v5
          v_bfe_u32 v6, v0, 1, 1
          v_add_u32 v5, v5, v6
          s_and_b32 s3, s{sW}, 2
          s_lshl_b32 s3, s3, 1
          v_add_u32 v5, s3, v5
          v_bfe_u32 v6, v0, 3, 1
          v_lshlrev_b32 v6, 2, v6
          v_xor_b32 v5, v5, v6
          v_lshl_add_u32 v4, v5, 4, v4
          v_and_b32 v6, 1, v0
          v_lshl_add_u32 v4, v6, 3, v4
          s_cmp_lt_u32 s{sW}, 4
          s_cbranch_scc1 L_kv""")
    sEH, sCA = 24, 25
    XF, AA, AB, WG, TM = 20, 36, 52, 100, 68
    XCH = WR + (7 % NS)*WSL + 16384
    DL, PH, SG, UA, NV, EI, XC = 12, 13, 14, 15, 3, 7, 164
    a(f"""s_and_b32 s3, s{sW}, 2
          s_lshl_b32 s3, s3, 11
          s_add_u32 s3, s3, {WR+16384}""")
    for kk in range(4): a(f"v_add_u32 v{XA+kk}, s3, v{XA+kk}")
    a(f"""s_and_b32 s{sEH}, s{sW}, 1
          s_lshr_b32 s3, s{sJ}, 2                  ; eb
          s_and_b32 s{sCA}, s3, {opt('--amask', 4)}
          s_lshl_b32 s3, s3, 1
          s_add_u32 s6, s3, s{sEH}
          s_lshl_b32 s3, s6, 4
          v_and_b32 v5, 15, v0
          v_add_u32 v{EI}, s3, v5                  ; e
          v_bfe_u32 v6, v0, 4, 1
          v_cvt_f32_u32 v{PH}, v6
          v_mul_f32 v{PH}, 0x3e800000, v{PH}
          s_cmp_eq_u32 s6, 0
          s_cselect_b32 s{sMASK}, 0x10000, 0
          s_mov_b32 s{sMASK+1}, s{sMASK}
          v_mov_b32 v6, 256
          v_cndmask_b32 v{EI}, v{EI}, v6, s[{sMASK}:{sMASK+1}]
          v_cndmask_b32 v{PH}, v{PH}, 0, s[{sMASK}:{sMASK+1}]
          v_cvt_f32_u32 v{DL}, v{EI}
          v_mul_f32 v{DL}, 0x3b000000, v{DL}       ; e/512
          v_and_b32 v6, 1, v0
          v_lshlrev_b32 v6, 31, v6
          v_or_b32 v{SG}, 1.0, v6
          s_mov_b32 s3, s{sTB}                     ; pi
          s_lshr_b32 s4, s6, 1
          s_lshl_b32 s4, s4, 5
          s_add_u32 s4, s4, s3
          s_lshl_b32 s4, s4, 1
          s_add_u32 s4, s4, s{sEH}
          s_lshl_b32 s26, s4, 2
          s_mul_i32 s3, s3, {U_GP}
          s_lshl_b32 s4, s6, 8
          s_add_u32 s3, s3, s4
          s_add_u32 s3, s3, {WS_U}
          v_lshl_add_u32 v5, v5, 4, s3
          v_lshrrev_b32 v6, 4, v0
          s_movk_i32 s4, {U_ROW}
          v_mad_u32_u24 v{UA}, v6, s4, v5
          s_lshl_b32 s3, s{sEH}, 11
          s_add_u32 s3, s3, {XCH}
          v_lshl_add_u32 v{XC}, v0, 4, s3""")
    def genw(c):
        o = [f"""s_add_u32 s3, s{sCA}, {c}
              s_and_b32 s3, s3, 7
              s_lshl_b32 s3, s3, 6
              v_lshl_add_u32 v{TM}, v2, 3, s3
              v_cvt_f32_u32 v{TM}, v{TM}
              v_mul_f32 v{TM}, v{TM}, v{DL}
              v_fract_f32 v{TM}, v{TM}
              v_add_f32 v{TM}, v{TM}, v{PH}"""]
        for kk in range(4):
            t = []
            for j in range(1, 8): t.append(f"v_add_f32 v{TM+j}, v{TM+j-1}, v{DL}")
            for j in range(8): t.append(f"v_cos_f32 v{TM+8+j}, v{TM+j}")
            t.append(f"v_fmamk_f32 v{TM}, v{DL}, 0x41100000, v{TM+7}")
            for j in range(4): t.append(f"v_cvt_pk_bf16_f32 v{WG+16*c+4*kk+j}, v{TM+8+2*j}, v{TM+9+2*j}")
            o.append("\n".join(t))
        return o
    CR, CI, NCI = 68+16, 68+24, WG
    NQ = [4, 16]
    def genc(m, T):
        t = []
        for j in range(8):
            cj = 16*m + (j % 4) + 8*(j // 4)
            t.append(f"""v_mad_u32_u24 v{T+j}, v1, {cj}, v{PH}
                  v_and_b32 v{T+j}, 31, v{T+j}
                  v_cvt_f32_u32 v{T+j}, v{T+j}
                  v_mul_f32 v{T+j}, 0x3d000000, v{T+j}""")
        u = [f"v_cos_f32 v{T+8+j}, v{T+j}" for j in range(8)] + [f"v_sin_f32 v{T+j}, v{T+j}" for j in range(8)] + ["s_nop 0"]
        for j in range(4):
            u.append(f"""v_cvt_pk_bf16_f32 v{CR+4*m+j}, v{T+8+2*j}, v{T+9+2*j}
                  v_cvt_pk_bf16_f32 v{CI+4*m+j}, -v{T+2*j}, -v{T+1+2*j}
                  v_cvt_pk_bf16_f32 v{NQ[m]+j}, v{T+2*j}, v{T+1+2*j}""")
        return ["\n".join(t[:4]), "\n".join(t[4:]), "\n".join(u[:17]), "\n".join(u[17:])]
    def genm(js):
        T, d = TM, 84 + 4*js
        return f"""v_add_f32 v{T}, v18, v17
              v_add_f32 v{T+1}, v{T}, v17
              v_add_f32 v{T+2}, v{T+1}, v17
              v_cos_f32 v{T+4}, v18
              v_cos_f32 v{T+5}, v{T}
              v_cos_f32 v{T+6}, v{T+1}
              v_cos_f32 v{T+7}, v{T+2}
              v_sin_f32 v{T+8}, v18
              v_sin_f32 v{T+9}, v{T}
              v_sin_f32 v{T+10}, v{T+1}
              v_sin_f32 v{T+11}, v{T+2}
              v_add_f32 v18, v{T+2}, v17
              v_cvt_pk_bf16_f32 v{d}, v{T+4}, v{T+8}
              v_cvt_pk_bf16_f32 v{d+1}, v{T+5}, v{T+9}
              v_cvt_pk_bf16_f32 v{d+2}, v{T+6}, v{T+10}
              v_cvt_pk_bf16_f32 v{d+3}, v{T+7}, v{T+11}"""
    mpar = f"""; A2 task: tc = 2x + (j&1), cr16 = j>>1, sigma = w&1, nt = (w>>1)&1
          s_lshl_b32 s6, s{sX}, 1
          s_and_b32 s4, s{sJ}, 1
          s_add_u32 s6, s6, s4                    ; tc
          s_lshr_b32 s7, s{sJ}, 1                 ; cr16
          s_lshl_b32 s10, s7, 5
          s_lshr_b32 s4, s6, 2
          s_lshl_b32 s4, s4, 3
          s_and_b32 s5, s6, 3
          s_add_u32 s4, s4, s5
          s_and_b32 s5, s{sW}, 1
          s_lshl_b32 s5, s5, 2
          s_add_u32 s5, s4, s5                    ; t1 source
          s_sub_u32 s4, 32, s5
          s_and_b32 s4, s4, 31
          s_cmp_lt_u32 s2, 128
          s_cselect_b32 s11, s5, s4
          s_cselect_b64 vcc, -1, 0
          v_and_b32 v{TM+1}, 31, v0
          v_lshl_add_u32 v{TM}, v{TM+1}, 5, s11
          v_lshrrev_b32 v{TM+3}, 5, v0                 ; h
          v_sub_u32 v{TM+2}, 2048, v{TM}
          v_cndmask_b32 v{TM+2}, v{TM+2}, v{TM}, vcc
          v_cvt_f32_u32 v{TM+2}, v{TM+2}
          v_mul_f32 v17, 0x3a000000, v{TM+2}
          v_lshlrev_b32 v{TM+2}, 5, v{TM+3}
          v_cvt_f32_u32 v{TM+2}, v{TM+2}
          v_mul_f32 v18, v17, v{TM+2}"""
    def either(p0, p1):
        if not p0 and not p1: return ""
        uid[0] += 1
        L = f"e{uid[0]}"
        return f"s_cmp_ge_u32 s{sW}, 6\ns_cbranch_scc1 {L}a\n{p0}\ns_branch {L}b\n{L}a:\n{p1}\n{L}b:"
    for c in range(2):
        for x in genw(c): a(x)
    a("s_barrier")
    def rda(g): return f"ds_read_b128 {vr(XF+4*(g % 4),4)}, v{XA+g % 4}" if g < 32 else ""
    a(rda(0)); a(rda(1))
    for st in range(8):
        fill = {0: genw(2), 1: genw(3), 2: genc(0, TM), 3: genc(1, TM)}.get(st, [])
        if st in (0, 1): fill = [fill[0] + "\n" + fill[1]] + fill[2:]
        if st == 1: fill[3] += f"\nv_lshlrev_b32 v{PH}, 2, v2\nv_mul_u32_u24 v{PH}, v{PH}, v1"
        if st == 2: fill = [either(fill[0], mpar), either(fill[1], genm(0)), either(fill[2], genm(1)), either(fill[3], "")]
        if st == 3: fill = [either(fill[0], genm(2)), either(fill[1], genm(3)), either(fill[2], ""), either(fill[3], "")]
        acc = AA if st < 4 else AB
        for kk in range(4):
            g = 4*st + kk
            mm_ = f"{MFMA} {vr(acc,16)}, {vr(XF+4*(g % 4),4)}, {vr(WG+16*(st%4)+4*kk,4)}, {'0' if (st % 4 == 0 and kk == 0) else vr(acc,16)}"
            if kk < 3:
                a("s_waitcnt lgkmcnt(1)")
                a(mm_)
                if kk < 2: a(rda(g+2))
                if fill: a(fill[kk])
            if kk == 2:
                if st < 7:
                    d = WSL if (st+1) % NS else -(NS-1)*WSL
                    a(f"s_mov_b32 s3, {d}")
                    for r in range(4): a(f"v_add_u32 v{XA+r}, s3, v{XA+r}")
                    a("s_waitcnt lgkmcnt(0)\ns_barrier")
                    a(rda(g+2))
                else:
                    a("s_waitcnt lgkmcnt(0)")
            if kk == 3:
                a(mm_); a(rda(g+2))
                if fill: a(fill[3])
    stamp(a, 7)
    PK, SV, RE, IM, D1, D2 = XF, WG+24, WG+32, WG+48, AA, AB
    a("s_nop 11")
    for r in range(16): a(f"v_fma_f32 v{AA+r}, v{AB+r}, v{SG}, v{AA+r}")
    for t in range(8): a(f"v_cvt_pk_bf16_f32 v{PK+t}, v{AA+2*t}, v{AA+2*t+1}")
    a(f"""s_barrier
          s_cmp_lt_u32 s{sW}, 6
          s_cbranch_scc1 L_a1e
          ds_write_b128 v{XC}, {vr(PK,4)}
          ds_write_b128 v{XC}, {vr(PK+4,4)} offset:1024
          v_mov_b32 v{TM}, 0
          v_mov_b32 v{TM+1}, 0
          v_mov_b32 v{TM+2}, 0
          v_mov_b32 v{TM+3}, 0
          v_mov_b32 v{TM+4}, {OWNF}
          ds_write_b128 v{TM+4}, {vr(TM,4)}
          s_waitcnt lgkmcnt(0)
          s_barrier""")
    a(f"""s_and_b32 s3, s{sW}, 1
          s_lshl_b32 s3, s3, 13
          s_add_u32 s3, s3, {MST}
          v_lshl_add_u32 v42, v0, 4, s3""")
    for js in range(4): a(f"ds_write_b128 v42, {vr(84+4*js,4)} offset:{js*1024}")
    for js in range(4, 8):
        a(genm(js))
        a(f"ds_write_b128 v42, {vr(84+4*js,4)} offset:{js*1024}")
    a("""s_barrier
         s_waitcnt lgkmcnt(0)
         s_barrier
         s_barrier
         s_branch L_att""")
    a.label("L_a1e")
    a(f"""s_barrier
          ds_read_b128 {vr(PK+8,4)}, v{XC}
          ds_read_b128 {vr(PK+12,4)}, v{XC} offset:1024
          s_waitcnt lgkmcnt(0)""")
    for t in range(8): a(f"v_permlane16_swap_b32 v{PK+t}, v{PK+8+t}")
    a(f"""s_mov_b32 s6, 0x00010001
          s_mov_b32 s7, 0x00010001
          s_cmp_eq_u32 s{sMASK}, 0
          s_cbranch_scc1 L_nosp1""")
    for t in range(8):
        a(f"v_mov_b32 v{SV+t}, v{PK+8+t}")
        a(f"v_cndmask_b32 v{PK+8+t}, v{PK+8+t}, 0, s[6:7]")
    a.label("L_nosp1")
    a("s_nop 1")
    def step1(aa, bb):
        a(f"{MFMA} {vr(RE,16)}, {vr(CR,4)}, {vr(aa,4)}, 0")
        a(f"{MFMA} {vr(IM,16)}, {vr(CI,4)}, {vr(aa,4)}, 0")
        a(f"{MFMA} {vr(RE,16)}, {vr(CR+4,4)}, {vr(aa+4,4)}, {vr(RE,16)}")
        a(f"{MFMA} {vr(IM,16)}, {vr(CI+4,4)}, {vr(aa+4,4)}, {vr(IM,16)}")
        if bb is not None:
            for m in range(2):
                a(f"{MFMA} {vr(RE,16)}, {vr(NQ[m],4)}, {vr(bb+4*m,4)}, {vr(RE,16)}")
                a(f"{MFMA} {vr(IM,16)}, {vr(CR+4*m,4)}, {vr(bb+4*m,4)}, {vr(IM,16)}")
    def upack(D):
        for r in range(16): a(f"v_cvt_pk_bf16_f32 v{D+r}, v{RE+r}, v{IM+r}")
        for g in range(4):
            d = D + 4*g
            a(f"""v_permlane32_swap_b32 v{d}, v{d+2}
                  v_permlane32_swap_b32 v{d+1}, v{d+3}""")
        for g in range(4):
            d = D + 4*g
            a(f"""v_permlane16_swap_b32 v{d}, v{d+1}
                  v_permlane16_swap_b32 v{d+2}, v{d+3}""")
    def ust(D, off):
        for g in range(4):
            a(f"""s_mov_b32 s4, {4*g*U_ROW + off}
                  buffer_store_dwordx4 {vr(D+4*g,4)}, v{UA}, s[{SWS}:{SWS+3}], s4 offen {ST}""")
    step1(PK, PK+8)
    a("s_nop 11" if UE else "s_barrier\ns_nop 10")
    upack(D1)
    a(f"""s_cmp_eq_u32 s{sMASK}, 0
          s_cbranch_scc1 L_nosp2""")
    step1(SV, None)
    a("s_nop 11")
    upack(D2)
    a.label("L_nosp2")
    stamp(a, 8)
    ust(D1, 0)
    a(f"""s_cmp_eq_u32 s{sMASK}, 0
          s_cbranch_scc1 L_nosp3
          s_mov_b64 exec, s[6:7]""")
    ust(D2, 4096)
    a("s_mov_b64 exec, -1")
    a.label("L_nosp3")
    get_tag(NV)
    a(f"""s_barrier
          s_barrier
          {"s_barrier" if UE else ""}
          s_add_u32 s3, s26, {WS_F3}""")
    publish(a, 3, 6)
    a("s_branch L_att")

    a.label("L_kv")
    FR = 32
    FK = 96
    def X(b, i): return FK + 12*b + 4*i
    def W(b): return FK + 12*b + 8
    a(f"""s_and_b32 s3, s{sW}, 1
          s_lshl_b32 s3, s3, 13
          s_add_u32 s3, s3, {WR}
          v_add_u32 v{WA}, s3, v4""")
    for r in range(32): a(f"v_mov_b32 v{ACC+r}, 0")
    a(f"""s_lshl_b32 s3, s2, 5
          s_add_u32 s3, s3, s{sW}
          s_lshl_b32 s3, s3, 2
          s_add_u32 s31, s3, {WS_F1}
          s_lshl_b32 s3, s{sHG}, 2
          s_and_b32 s4, s{sW}, 2
          s_add_u32 s3, s3, s4
          s_lshl_b32 s3, s3, 16
          s_lshl_b32 s4, s{sTB}, 11
          s_add_u32 s3, s3, s4
          s_add_u32 s3, s3, {WS_K}
          v_lshl_add_u32 v14, v0, 4, s3
          s_add_u32 s3, s3, {WS_V - WS_K}
          v_bfe_u32 v5, v0, 4, 1
          v_lshlrev_b32 v5, 16, v5
          v_lshl_add_u32 v5, v2, 8, v5
          v_and_b32 v6, 15, v0
          v_lshl_add_u32 v5, v6, 4, v5
          v_add_u32 v16, s3, v5
          v_mov_b32 v21, v4
          s_and_b32 s4, s{sW}, 2
          s_mul_i32 s3, s4, {HSTR}
          s_add_u32 s3, s3, 8192
          v_lshl_add_u32 v17, v0, 4, s3
          s_add_u32 s3, s3, 10240
          v_bfe_u32 v5, v0, 4, 1
          v_mul_u32_u24 v5, {HSTR}, v5
          v_lshl_add_u32 v5, v2, 8, v5
          v_lshl_add_u32 v5, v6, 4, v5
          v_add_u32 v18, s3, v5
          s_and_b32 s3, s{sW}, 1
          s_lshl_b32 s3, s3, 12
          s_lshl_b32 s4, s4, 10
          s_add_u32 s3, s3, s4
          s_add_u32 s3, s3, {Q_BASE}
          v_lshl_add_u32 v20, v0, 4, s3
          s_mov_b32 s8, {f2u(QSCALE):#x}
          s_mov_b32 s9, s8""")
    def rd(kk, b):
        return [f"ds_read_b128 {vr(X(b,i),4)}, v{XA+kk} offset:{i*4096}" for i in range(2)] + [f"ds_read_b64_tr_b16 {vr(W(b)+2*q,2)}, v{WA} offset:{kk*2048 + q*512}" for q in range(2)]
    def step(b, variant, r):
        m = []
        for i in range(2):
            A_, B_ = (W(b), X(b,i)) if variant == "K" else (X(b,i), W(b))
            m.append(f"{MFMA} {vr(ACC+16*i,16)}, {vr(A_,4)}, {vr(B_,4)}, {vr(ACC+16*i,16)}")
        for x in [m[0]] + r[:2] + [m[1]] + r[2:]: a(x)
    a(f"""s_mov_b32 s{sIT}, 0
          s_mov_b32 s{sSL}, 0
          s_mov_b32 s27, {WSL}""")
    stamp(a, 1)
    a("s_barrier")
    stamp(a, 2)
    for x in rd(0, 0) + rd(1, 1): a(x)
    a(f"""s_bitcmp1_b32 s{sW}, 0
          s_cbranch_scc1 L_loopV""")
    for variant in ("K", "V"):
        if ALIGN: a.L.append(".p2align 6")
        a.label(f"L_loop{variant}")
        for kk in range(3):
            a("s_waitcnt lgkmcnt(4)")
            step(kk, variant, rd(kk+2, kk+2) if kk < 2 else [])
        a(f"""s_add_u32 s{sSL}, s{sSL}, 1
              s_cmp_eq_u32 s{sSL}, {NS}
              s_cselect_b32 s{sDEL}, {-(NS-1)*WSL}, s27
              s_cselect_b32 s{sSL}, 0, s{sSL}
              v_add_u32 v{WA}, s{sDEL}, v{WA}""")
        for r in range(4): a(f"v_add_u32 v{XA+r}, 8192, v{XA+r}")
        a(f"""s_add_u32 s{sIT}, s{sIT}, 1
              s_cmp_eq_u32 s{sIT}, 8
              s_waitcnt lgkmcnt(0)
              s_cbranch_scc1 L_last{variant}
              s_barrier""")
        for x in rd(0, 0): a(x)
        step(3, variant, rd(1, 1))
        a(f"s_branch L_loop{variant}")
        a.label(f"L_last{variant}")
        step(3, variant, [])
        stamp(a, 3)
        a("s_mov_b32 s4, 65536\ns_nop 9")
        for i in range(2):
            for mm in range(2):
                d = FR + 8*i + 4*mm
                for t in range(4): a(f"v_cvt_pk_bf16_f32 v{d+t}, v{ACC+16*i+8*mm+2*t}, v{ACC+16*i+8*mm+2*t+1}")
                if variant == "K":
                    a(f"buffer_store_dwordx4 {vr(d,4)}, v14, s[{SWS}:{SWS+3}], {'s4' if mm else '0'} offen offset:{i*1024} {ST}")
                else:
                    a(f"buffer_store_dwordx4 {vr(d,4)}, v16, s[{SWS}:{SWS+3}], 0 offen offset:{i*1024+mm*512} {ST}")
        if variant == "K": a("s_branch L_kvdone")
    a.label("L_kvdone")
    stamp(a, 4)
    FQ = 96
    a(f"""s_and_b32 s3, s{sW}, 1
          s_lshl_b32 s3, s3, 12
          s_sub_u32 s3, s3, 65536
          v_add_u32 v{WA}, {QSLOT[0]}, v21""")
    for kk in range(4): a(f"v_add_u32 v{XA+kk}, s3, v{XA+kk}")
    a(f"""v_mov_b32 v19, {NONW}
          s_barrier
          ds_read_b32 v19, v19""")
    if PUBU < 0:
        a(f"s_waitcnt lgkmcnt(0)\nv_readfirstlane_b32 s{sNON}, v19\ns_nop 1")
        publish(a, 31, 6)
        stamp(a, 5)
    def rdq(u, k, b):
        c2, kk = k // 4, k % 4
        f = FQ + 8*b
        return [f"ds_read_b128 {vr(f,4)}, v{XA+kk} offset:{(2*u+c2)*8192}"] + [f"ds_read_b64_tr_b16 {vr(f+4+2*q,2)}, v{WA} offset:{c2*8192 + kk*2048 + q*512}" for q in range(2)]
    NBQ = 4
    for k in range(3):
        for x in rdq(0, k, k): a(x)
    for u in range(4):
        for k in range(8):
            g = 8*u + k
            last = k >= 5
            if k == 5 and u < 3:
                d = QSLOT[u+1] - QSLOT[u]
                if u == PUBU:
                    a(f"v_readfirstlane_b32 s{sNON}, v19\ns_nop 1")
                    publish(a, 31, 6)
                    stamp(a, 5)
                a(f"""s_waitcnt lgkmcnt(0)
                      s_barrier
                      v_add_u32 v{WA}, {d}, v{WA}""")
            nxt = rdq(u, k+3, (g+3) % NBQ) if k < 5 else (rdq(u+1, k-5, (g+3) % NBQ) if u < 3 else [])
            if not (k >= 5 and u < 3) or k > 5 or True:
                outst = 6 if (k < 5 or u < 3) else 3*(7-k)
                if not (k == 5 and u < 3) and not (k in (6, 7) and u < 3): a(f"s_waitcnt lgkmcnt({outst})")
            f = FQ + 8*(g % NBQ)
            a(f"{MFMA} {vr(ACC,16)}, {vr(f+4,4)}, {vr(f,4)}, {'0' if g == 0 else vr(ACC,16)}")
            for x in nxt: a(x)
    a("s_barrier")
    stamp(a, 6)
    a(f"""s_bitcmp1_b32 s{sW}, 0
          s_cbranch_scc1 L_cpv""")
    for i in range(2):
        for mm in range(2): a(f"ds_write_b128 v17, {vr(FR+8*i+4*mm,4)} offset:{mm*HSTR + i*1024}")
    a("s_branch L_cpq")
    a.label("L_cpv")
    for i in range(2):
        for mm in range(2): a(f"ds_write_b128 v18, {vr(FR+8*i+4*mm,4)} offset:{i*1024 + mm*512}")
    a.label("L_cpq")
    a("s_nop 5")
    for t in range(8): a(f"v_pk_mul_f32 {vr(ACC+2*t,2)}, {vr(ACC+2*t,2)}, s[8:9]")
    for t in range(8): a(f"v_cvt_pk_bf16_f32 v{FQ+t}, v{ACC+2*t}, v{ACC+2*t+1}")
    a(f"""ds_write_b128 v20, {vr(FQ,4)}
          ds_write_b128 v20, {vr(FQ+4,4)} offset:1024
          s_lshl_b32 s3, s{sW}, 2
          s_add_u32 s3, s3, {OWNF}
          v_mov_b32 v5, s3
          v_mov_b32 v6, 1
          s_waitcnt lgkmcnt(0)
          ds_write_b32 v5, v6""")

    a.label("L_att")
    QF = 4
    KA, VA_, NINF, MX = 2, 3, 8, 9
    KF, VF, PP, S, O, CN, CD, CF = 12, 24, 40, 48, 80, 96, 112, 128
    S3, P2, MK = 112, 128, 136
    sVM, sNF, sI = 8, 10, 11
    get_tag(5)
    a(f"""s_xor_b32 s{sPTV}, s{sPTV}, s{sNON}
          s_and_b32 s3, s{sW}, 3
          s_lshr_b32 s5, s{sW}, 2
          s_lshl_b32 s4, s{sHG}, 2
          s_add_u32 s{sHD}, s4, s3
          s_lshl_b32 s4, s{sTB}, 1
          s_add_u32 s4, s4, s5                     ; qb
          s_lshl_b32 s{sQO}, s4, 10
          s_lshl_b32 s6, s{sHD}, 16
          s_add_u32 s{sQO}, s{sQO}, s6
          s_min_u32 s{sNF}, s4, 7
          s_lshl_b32 s4, s4, 5
          s_add_u32 s4, s4, s{sHD}
          s_lshl_b32 s4, s4, 2
          s_add_u32 s{sF2}, s4, {WS_F2}
          v_lshlrev_b32 v1, 4, v0
          s_lshl_b32 s4, s{sW}, 10
          s_add_u32 s4, s4, {Q_BASE}
          v_add_u32 v4, s4, v1
          s_lshl_b32 s4, s3, 2
          s_add_u32 s4, s4, {KVF}
          v_mov_b32 v149, s4
          s_mul_i32 s4, s3, {HSTR}
          s_lshl_b32 s5, s5, 10
          s_add_u32 s4, s4, s5
          v_add_u32 v{KA}, s4, v1
          v_lshrrev_b32 v10, 5, v0
          v_and_b32 v11, 15, v0
          v_lshlrev_b32 v11, 4, v11
          v_lshl_add_u32 v11, v10, 8, v11
          s_add_u32 s4, s4, 10240
          v_add_u32 v{VA_}, s4, v11
          v_mov_b32 v{NINF}, 0xff800000
          s_mov_b32 s{sVM}, 0x0000ffff
          s_mov_b32 s{sVM+1}, 0x0000ffff
          s_mov_b32 s6, 0x00110000
          s_mov_b32 s7, 0x00110000
          v_mov_b32 v10, 0x3f803f80""")
    for t in range(16): a(f"v_cndmask_b32 v{VF+t}, 0, v10, s[6:7]")
    a("v_mov_b32 v10, 0xffff\nv_mov_b32 v11, 0xffff0000")
    for t in range(8):
        a(f"""v_cndmask_b32 v{MK+t}, 0, v10, s[{64+4*t}:{65+4*t}]
              v_cndmask_b32 v5, 0, v11, s[{66+4*t}:{67+4*t}]
              v_or_b32 v{MK+t}, v{MK+t}, v5""")
    stamp(a, 11)
    a(f"""v_mov_b32 v5, {OWNF}
          s_mov_b32 s60, 0""")
    a.label("L_ownw")
    a(f"""ds_read_b128 v[12:15], v5
          s_add_u32 s60, s60, 1
          s_cmp_gt_u32 s60, {SPIN_MAX*8}
          s_cbranch_scc1 L_ownx
          s_waitcnt lgkmcnt(0)
          v_and_b32 v12, v12, v13
          v_and_b32 v14, v14, v15
          v_and_b32 v12, v12, v14
          v_cmp_eq_u32 vcc, 0, v12
          s_cbranch_vccnz L_ownw""")
    a.label("L_ownx")
    stamp(a, 12)
    a(f"ds_read_b128 {vr(QF,4)}, v4")
    def kv_wait(lvl):
        uid[0] += 1
        L = f"kw{uid[0]}"
        a("s_mov_b32 s60, 0")
        a.label(L)
        a(f"""ds_read_b32 v11, v149
              s_add_u32 s60, s60, 1
              s_cmp_gt_u32 s60, {SPIN_MAX*8}
              s_cbranch_scc1 {L}x
              s_waitcnt lgkmcnt(0)
              v_readfirstlane_b32 s3, v11
              s_cmp_lt_u32 s3, {lvl}
              s_cbranch_scc1 {L}""")
        a.label(L + "x")
    def masks(val):
        return [f"""v_cndmask_b32 v{CD+r}, v{NINF}, {val}, s[{64+2*r}:{65+2*r}]
                  v_cndmask_b32 v{CF+r}, {val}, v{NINF}, s[{64+2*r}:{65+2*r}]""" for r in range(16)]
    def maxblk(S_, first):
        if first: a(f"v_max_f32 v{MX}, v{S_}, v{S_+1}")
        for t in range(2 if first else 0, 16, 2):
            a(f"v_max3_f32 v{MX}, v{S_+t}, v{S_+t+1}, v{MX}")
    def xhalf_max():
        a(f"""v_mov_b32 v10, v{MX}
              s_nop 1
              v_permlane32_swap_b32 v10, v{MX}
              s_nop 1
              v_max_f32 v{MX}, v{MX}, v10""")
    order = [7, 6, 5, 4, 3, 2, 1, 8, 0]
    def rdK(n): return f"ds_read_b128 {vr(KF+4*(n%3),4)}, v{KA} offset:{order[n]*1024}"
    def rdV(n):
        b = VF + 8*(n % 2)
        return f"""s_mov_b64 exec, s[{sVM}:{sVM+1}]
              ds_read_b128 {vr(b,4)}, v{VA_} offset:{order[n]*1024}
              ds_read_b128 {vr(b+4,4)}, v{VA_} offset:{order[n]*1024+512}
              s_mov_b64 exec, -1"""
    def mS(k, Dd): return f"{MFMA} {vr(Dd,16)}, {vr(KF+4*(k%3),4)}, {vr(QF,4)}, {vr(CN,16)}"
    a("s_setprio 3")
    pt_load()
    if FORCE_SLOW: a("s_branch L_preslow")
    CI_ = 149
    def fast(first):
        def mSv(k, Dd, tag=''):
            if not first or k == 7: a(mS(k, Dd)); return
            inv = f"{MFMA} {vr(Dd,16)}, {vr(KF+4*(k%3),4)}, {vr(QF,4)}, {vr(CI_+1,16)}"
            if k == 8: a(inv); return
            a(f"""s_cmp_gt_u32 s{sNF}, {k}
                  s_cbranch_scc1 L_fv{k}{tag}
                  {inv}
                  s_branch L_fw{k}{tag}""")
            a.label(f"L_fv{k}{tag}")
            a(mS(k, Dd))
            a.label(f"L_fw{k}{tag}")
        F = int(first)
        if first:
            for r in range(16): a(f"v_mov_b32 v{CI_+1+r}, v{NINF}")
        def standin():
            a(f"""v_max3_f32 v{MX}, v{S+16}, v{S+17}, v{S+18}
                  v_max3_f32 v10, v{S+19}, v{S+20}, v{S+21}
                  v_max3_f32 v11, v{S+22}, v{S+23}, v{S+24}
                  v_max3_f32 v{MX}, v{S+25}, v{S+26}, v{MX}
                  v_max3_f32 v10, v{S+27}, v{S+28}, v10
                  v_max3_f32 v11, v{S+29}, v{S+30}, v11
                  v_max3_f32 v{MX}, v{S+31}, v{MX}, v10
                  v_max_f32 v{MX}, v{MX}, v11""")
            xhalf_max()
            a(f"v_sub_f32 v{CN}, 0xc2700000, v{MX}")
            for r in range(1, 16): a(f"v_mov_b32 v{CN+r}, v{CN}")
        a(f"""s_cmp_lt_u32 s{sW}, 4
              s_cbranch_scc1 L_q0{F}""")
        a(rdK(0)); a(rdV(0))
        a(f"""s_waitcnt lgkmcnt(2)
              {MFMA} {vr(S+16,16)}, {vr(KF,4)}, {vr(QF,4)}, 0
              s_nop 11""")
        standin()
        a("s_nop 1"); a(mS(0, S)); a("s_nop 11")
        for r in range(12): a(f"v_exp_f32 v{S+r}, v{S+r}")
        for t in range(4): a(f"v_cvt_pk_bf16_f32 v{PP+t}, v{S+2*t}, v{S+2*t+1}")
        a(f"""v_exp_f32 v{S+12}, v{S+12}
              s_waitcnt lgkmcnt(0)
              {MFMA} {vr(O,16)}, {vr(VF,4)}, {vr(PP,4)}, 0""")
        for r in range(13, 16): a(f"v_exp_f32 v{S+r}, v{S+r}")
        for t in range(4, 8): a(f"v_cvt_pk_bf16_f32 v{PP+t}, v{S+2*t}, v{S+2*t+1}")
        stamp(a, 30)
        a("s_barrier")
        a(rdK(1)); a("s_barrier"); a(rdK(2)); a(rdV(1))
        a("s_waitcnt lgkmcnt(3)")
        mSv(1, S+16, "b")
        a(f"s_nop 10\ns_branch L_n1{F}")
        a.label(f"L_q0{F}")
        a(f"""ds_read_b128 {vr(KF+8,4)}, v{KA} offset:{8*1024}
              s_waitcnt lgkmcnt(0)
              {MFMA} {vr(S+16,16)}, {vr(KF+8,4)}, {vr(QF,4)}, 0
              s_nop 11""")
        for r in range(16): a(f"v_cndmask_b32 v{S+16+r}, v{NINF}, v{S+16+r}, s[{64+2*r}:{65+2*r}]")
        standin()
        stamp(a, 30)
        a("s_barrier")
        a(rdK(0)); a(rdK(1)); a(rdV(0))
        a("s_waitcnt lgkmcnt(3)")
        mSv(0, S)
        prev = None
        for n in range(8):
            Sn = S + 16*(n % 2); Vn = VF + 8*(n % 2)
            P_ = PP if n % 2 == 0 else P2
            ex = lambda r: a(f"v_exp_f32 v{Sn+r}, v{Sn+r}")
            cv = lambda t: a(f"v_cvt_pk_bf16_f32 v{P_+t}, v{Sn+2*t}, v{Sn+2*t+1}")
            if n == 1: a.label(f"L_n1{F}")
            PR = dict(zip([int(c) for c in opt("--pr", "357")], (2, 1, 0)))
            if n in PR: a(f"s_setprio {PR[n]}")
            if n in (2, 4):
                a(f"""v_readfirstlane_b32 s3, v11
                      s_cmp_ge_u32 s3, {n//2}
                      s_cbranch_scc1 L_kf{int(first)}{n}""")
                kv_wait(n//2)
                a.label(f"L_kf{int(first)}{n}")
            if n == 0:
                a("s_waitcnt lgkmcnt(2)"); mSv(1, S+16); a("s_barrier"); a(rdK(2)); a(rdV(1)); a("s_nop 3")
            if n == 7:
                a(prev); a("s_nop 3")
                for r in range(16): a(f"v_cndmask_b32 v{Sn+r}, v{S3+r}, v{Sn+r}, s[{64+2*r}:{65+2*r}]")
            for r in range(4): ex(r)
            if 0 < n < 7: a(prev)
            if n == 7: a(rdV(8))
            for r in range(4, 8): ex(r)
            if 0 < n < 7:
                a("s_waitcnt lgkmcnt(2)"); mSv(n+1, S + 16*((n+1) % 2))
                if n in (1, 3): a("ds_read_b32 v11, v149")
                a(rdK(n+2)); a(rdV(n+1))
            for t in range(4): cv(t)
            for r in range(8, 12): ex(r)
            if n < 7:
                a("s_waitcnt lgkmcnt(3)")
                a(f"{MFMA} {vr(O,16)}, {vr(Vn,4)}, {vr(P_,4)}, {'0' if n == 0 else vr(O,16)}")
            else:
                for t in range(4): a(f"v_and_b32 v{PP+t}, v{MK+t}, v{P_+t}\nv_xor_b32 v{P_+t}, v{PP+t}, v{P_+t}")
                a("s_waitcnt lgkmcnt(2)")
                a(f"{MFMA} {vr(O,16)}, {vr(Vn,4)}, {vr(PP,4)}, {vr(O,16)}")
            ex(12); ex(13)
            if n == 6: a("s_waitcnt lgkmcnt(2)"); mSv(8, S3)
            if n == 7: a("s_waitcnt lgkmcnt(0)"); a(f"{MFMA} {vr(O,16)}, {vr(VF,4)}, {vr(P2,4)}, {vr(O,16)}")
            ex(14); ex(15)
            for t in range(4, 8): cv(t)
            prev = f"{MFMA} {vr(O,16)}, {vr(Vn+4,4)}, {vr(P_+4,4)}, {vr(O,16)}"
        for t in range(4, 8): a(f"v_and_b32 v{PP+t}, v{MK+t}, v{P2+t}\nv_xor_b32 v{P2+t}, v{PP+t}, v{P2+t}")
        a(f"""s_nop 0
          {MFMA} {vr(O,16)}, {vr(VF+12,4)}, {vr(PP+4,4)}, {vr(O,16)}
          {MFMA} {vr(O,16)}, {vr(VF+4,4)}, {vr(P2+4,4)}, {vr(O,16)}
          s_waitcnt vmcnt(0)
          v_cmp_ne_u32 s[6:7], s{sPTV}, v148
          v_mov_b32 v14, 0x7f800000
          s_nop 8
          v_add_f32 v10, |v{O}|, |v{O+1}|
          v_add_f32 v11, |v{O+2}|, |v{O+3}|
          v_add_f32 v12, |v{O+4}|, |v{O+5}|
          v_add_f32 v13, |v{O+6}|, |v{O+7}|
          v_add_f32 v10, v10, v11
          v_add_f32 v12, v12, v13
          v_mul_f32 v11, 0x43800000, v{O+8}
          v_add_f32 v10, v10, v12
          v_add_f32 v11, v10, v11
          v_rcp_f32 v10, v{O+8}
          v_cmp_lt_f32 vcc, v11, v14
          s_cmp_eq_u64 vcc, -1
          s_cbranch_scc1 L_norm
          s_branch L_slow""")
    a(f"""s_cmp_eq_u32 s{sR}, 0
          s_cbranch_scc1 L_first""")
    fast(False)
    a.label("L_first")
    fast(True)
    a.label("L_preslow")
    a("s_barrier\ns_barrier")
    kv_wait(2)
    a.label("L_slow")
    a(f"""s_setprio 0
          s_sub_u32 s3, 8, s{sNF}
          s_lshl_b32 s3, s3, 10
          s_waitcnt lgkmcnt(0)""")
    for x in masks("0"): a(x)
    a(f"""ds_read_b128 {vr(KF,4)}, v{KA} offset:{8*1024}
          s_waitcnt lgkmcnt(0)
          {MFMA} {vr(S,16)}, {vr(KF,4)}, {vr(QF,4)}, {vr(CD,16)}
          s_nop 11""")
    maxblk(S, True)
    a(f"""s_cmp_eq_u32 s{sR}, 0
          s_cbranch_scc1 L_s1nofar
          ds_read_b128 {vr(KF,4)}, v{KA}
          s_waitcnt lgkmcnt(0)
          {MFMA} {vr(S,16)}, {vr(KF,4)}, {vr(QF,4)}, {vr(CF,16)}
          s_nop 11""")
    maxblk(S, False)
    a.label("L_s1nofar")
    a(f"""s_mov_b32 s{sI}, s{sNF}
          v_add_u32 v10, s3, v{KA}
          s_cmp_eq_u32 s{sI}, 0
          s_cbranch_scc1 L_s1done""")
    a.label("L_s1loop")
    a(f"""ds_read_b128 {vr(KF,4)}, v10
          v_add_u32 v10, 1024, v10
          s_waitcnt lgkmcnt(0)
          {MFMA} {vr(S,16)}, {vr(KF,4)}, {vr(QF,4)}, 0
          s_nop 11""")
    maxblk(S, False)
    a(f"""s_sub_u32 s{sI}, s{sI}, 1
          s_cmp_lg_u32 s{sI}, 0
          s_cbranch_scc1 L_s1loop""")
    a.label("L_s1done")
    xhalf_max()
    a(f"v_sub_f32 v{MX}, 0, v{MX}")
    for x in masks(f"v{MX}"): a(x)
    for r in range(16): a(f"v_mov_b32 v{CN+r}, v{MX}")
    def pvblk(kaddr, vaddr, off, C, first):
        a(f"""ds_read_b128 {vr(KF,4)}, v{kaddr} offset:{off}
              s_mov_b64 exec, s[{sVM}:{sVM+1}]
              ds_read_b128 {vr(VF,4)}, v{vaddr} offset:{off}
              ds_read_b128 {vr(VF+4,4)}, v{vaddr} offset:{off+512}
              s_mov_b64 exec, -1
              s_waitcnt lgkmcnt(0)
              {MFMA} {vr(S,16)}, {vr(KF,4)}, {vr(QF,4)}, {vr(C,16)}
              s_nop 11""")
        for r in range(16): a(f"v_exp_f32 v{S+r}, v{S+r}")
        for t in range(8): a(f"v_cvt_pk_bf16_f32 v{PP+t}, v{S+2*t}, v{S+2*t+1}")
        a("s_nop 1")
        a(f"{MFMA} {vr(O,16)}, {vr(VF,4)}, {vr(PP,4)}, {'0' if first else vr(O,16)}")
        a(f"{MFMA} {vr(O,16)}, {vr(VF+4,4)}, {vr(PP+4,4)}, {vr(O,16)}")
    pvblk(KA, VA_, 8*1024, CD, True)
    a(f"""s_cmp_eq_u32 s{sR}, 0
          s_cbranch_scc1 L_s2nofar""")
    pvblk(KA, VA_, 0, CF, False)
    a.label("L_s2nofar")
    a(f"""s_mov_b32 s{sI}, s{sNF}
          v_add_u32 v10, s3, v{KA}
          v_add_u32 v11, s3, v{VA_}
          s_cmp_eq_u32 s{sI}, 0
          s_cbranch_scc1 L_s2done""")
    a.label("L_s2loop")
    pvblk(10, 11, 0, CN, False)
    a(f"""v_add_u32 v10, 1024, v10
          v_add_u32 v11, 1024, v11
          s_sub_u32 s{sI}, s{sI}, 1
          s_cmp_lg_u32 s{sI}, 0
          s_cbranch_scc1 L_s2loop""")
    a.label("L_s2done")
    a(f"""s_waitcnt vmcnt(0)
          v_cmp_ne_u32 s[6:7], s{sPTV}, v148
          s_nop 12
          v_rcp_f32 v10, v{O+8}
          s_nop 0""")
    a.label("L_norm")
    for t in range(8): a(f"v_mul_f32 v{O+t}, v10, v{O+t}")
    for t in range(4): a(f"v_cvt_pk_bf16_f32 v{PP+t}, v{O+2*t}, v{O+2*t+1}")
    a(f"s_add_u32 s4, s{sQO}, {WS_O}")
    if MODE == "auto":
        a(f"""s_cmp_eq_u64 s[6:7], 0
              s_cbranch_scc0 L_ox
              buffer_store_dwordx4 {vr(PP,4)}, v1, s[{SWS}:{SWS+3}], s4 offen""")
        stamp(a, 13)
        publish(a, sF2, 10, flav="")
        a("s_branch L_od")
        a.label("L_ox")
    a(f"buffer_store_dwordx4 {vr(PP,4)}, v1, s[{SWS}:{SWS+3}], s4 offen {ST}")
    stamp(a, 13 if MODE != "auto" else 19)
    publish(a, sF2, 10)
    a.label("L_od")
    stamp(a, 14)
    a(f"""s_barrier
          s_cmp_ge_u32 s{sW}, 4
          s_cbranch_scc1 L_fin""")
    OA, WA2, ACC2, W2, O2 = 8, 9, 16, 32, 32
    a(f"""s_and_b32 s5, s{sW}, 1
          v_lshrrev_b32 v2, 5, v0
          v_bfe_u32 v3, v0, 2, 2
          v_lshl_add_u32 v4, v2, 2, v3
          v_lshlrev_b32 v4, 7, v4
          v_bfe_u32 v5, v0, 4, 1
          v_lshlrev_b32 v5, 1, v5
          v_and_b32 v6, 1, v0
          v_add_u32 v5, v5, v6
          s_and_b32 s3, s{sW}, 2
          s_lshl_b32 s3, s3, 1
          v_add_u32 v5, s3, v5
          v_bfe_u32 v6, v0, 3, 1
          v_lshlrev_b32 v6, 2, v6
          v_xor_b32 v5, v5, v6
          v_lshl_add_u32 v4, v5, 4, v4
          v_bfe_u32 v6, v0, 1, 1
          v_lshl_add_u32 v4, v6, 3, v4
          v_add_u32 v{WA2}, {WO_BASE}, v4
          s_lshl_b32 s3, s5, 10
          v_add_u32 v{OA}, s3, v1
          v_and_b32 v14, 31, v0
          s_lshl_b32 s3, s{sTB}, 6
          s_lshl_b32 s5, s5, 5
          s_add_u32 s3, s3, s5
          v_add_u32 v14, s3, v14
          v_lshlrev_b32 v14, 11, v14
          v_lshl_add_u32 v14, v2, 4, v14
          s_lshl_b32 s3, s{sHG}, 7
          s_and_b32 s5, s{sW}, 2
          s_lshl_b32 s5, s5, 5
          s_add_u32 s3, s3, s5
          s_add_u32 s3, s3, 1024
          v_add_u32 v14, s3, v14
          v_mov_b32 v15, v{OA}""")
    heads = [8*(k//4 % 4) + 4*(k//16) + k % 4 for k in range(32)]
    OB = [2, 6, 10, 160]
    for k in range(32):
        for q in range(2):
            a(f"ds_read_b64_tr_b16 {vr(W2+4*k+2*q,2)}, v{WA2} offset:{heads[k]*2048 + q*1024}")
    a("s_waitcnt lgkmcnt(0)\ns_barrier")
    stamp(a, 28)
    rdo = lambda k: f"ds_read_b128 {vr(OB[k % 4],4)}, v15 offset:{heads[k]*2048}"
    for k in range(4): a(rdo(k))
    for k in range(32):
        if k == 12:
            a("s_barrier")
            stamp(a, 16)
        a(f"s_waitcnt lgkmcnt({min(3, 31-k)})")
        a(f"{MFMA} {vr(ACC2,16)}, {vr(W2+4*k,4)}, {vr(OB[k % 4],4)}, {'0' if k == 0 else vr(ACC2,16)}")
        if k + 4 < 32: a(rdo(k+4))
    a("s_nop 11")
    for mm in range(2):
        for t in range(4):
            a(f"v_cvt_pk_bf16_f32 v{O2+4*mm+t}, v{ACC2+8*mm+2*t}, v{ACC2+8*mm+2*t+1}")
        a(f"buffer_store_dwordx4 {vr(O2+4*mm,4)}, v14, s[{SOUT}:{SOUT+3}], 0 offen offset:{32*mm} {OPF}")
    stamp(a, 17)
    a.label("L_fin")
    stamp_flush(a, 18)
    a.label("L_end")
    a.label("L_last_insn")
    a("s_endpgm")
    return a

def main():
    a = gen()
    hdr = f"""; {NAME} : one fused kernel (generated by my gen11.py)
; @launch grid=(256,1,1) block=(768,1,1) lds=163840
.amdgcn_target "amdgcn-amd-amdhsa--gfx950"
.text
"""
    kd = f""".section .rodata,"a"
.p2align 6
.amdhsa_kernel {KN}
  .amdhsa_next_free_vgpr 168
  .amdhsa_next_free_sgpr 102
  .amdhsa_accum_offset 168
  .amdhsa_group_segment_fixed_size 0
  .amdhsa_kernarg_size 88
  .amdhsa_user_sgpr_count 2
  .amdhsa_user_sgpr_kernarg_segment_ptr 1
  .amdhsa_system_sgpr_workgroup_id_x 1
.end_amdhsa_kernel
"""
    path = sys.argv[1] if len(sys.argv) > 1 and sys.argv[1].endswith(".s") else f"cdna_kernels/{NAME}.s"
    open(path, "w").write(hdr + a.text() + kd)
main()
```

```python
import sys, struct, math

NAME = "concat_heads__spectral_fnet__sliding_block__prompt"
KN = NAME + "_kernel"
WS_Q, WS_K, WS_V, WS_O, WS_U = 0, 2 << 20, 4 << 20, 6 << 20, 8 << 20
WS_F1, WS_F2, WS_PT, WS_F3 = (11 << 20), (11 << 20) + 0x20000, (11 << 20) + 0x60000, (11 << 20) + 0x70000
U_ROW = 4224
U_GP = 16 * U_ROW
U_SIZE = 32 * U_GP
QSCALE = 0.25 * math.log2(math.e)
uid = [0]
STAMP = "--stamp" in sys.argv
FORCE_SLOW = "--slow" in sys.argv
SKIP = set(int(x) for x in sys.argv[sys.argv.index("--skip")+1].split(",")) if "--skip" in sys.argv else set()
ST = sys.argv[sys.argv.index("--st")+1].replace("+", " ") if "--st" in sys.argv else "sc1"
LD = "sc1"
SPIN_MAX = 200000
def opt(name, default):
    return type(default)(sys.argv[sys.argv.index(name)+1]) if name in sys.argv else default
PDELAY = opt("--pdelay", 0)
PIPE = "--pipe" in sys.argv
FULLF = "--fullf" in sys.argv
KVLD = sys.argv[sys.argv.index("--kvld")+1].replace("+", " ").replace("none", "") if "--kvld" in sys.argv else "sc1"
A2ST = "sc1" if "--a2sc1" in sys.argv else ""
WB = "--wb" in sys.argv

def f2u(x): return struct.unpack("<I", struct.pack("<f", x))[0]

class Asm:
    def __init__(self): self.L = []
    def __call__(self, s):
        for line in s.strip("\n").split("\n"):
            line = line.strip()
            if line: self.L.append(line if line.endswith(":") and " " not in line else "  " + line)
    def label(self, n): self.L.append(n + ":")
    def text(self): return "\n".join(self.L) + "\n"

def vr(b, n=1): return f"v{b}" if n == 1 else f"v[{b}:{b+n-1}]"
MFMA = "v_mfma_f32_32x32x16_bf16"

kAX, kSR, kSI, kDR, kDI, kBX, kWQ, kWO, kOUT, kDBG, kWS = 64, 66, 68, 70, 72, 74, 76, 78, 80, 82, 84
sTB, sHG, sJ, sW, sNON = 16, 17, 18, 19, 20
sHD, sR = 21, 22
SWS = 32
VST = 167

def srd(a, d, k, size, off=0):
    if off:
        a(f"s_add_u32 s{d}, s{k}, {off}\ns_addc_u32 s{d+1}, s{k+1}, 0")
    else:
        a(f"s_mov_b32 s{d}, s{k}\ns_mov_b32 s{d+1}, s{k+1}")
    a(f"s_mov_b32 s{d+2}, {size}\ns_mov_b32 s{d+3}, 0x20000")

AMP = [int(x) for x in sys.argv[sys.argv.index("--amp")+1].split(",")] if "--amp" in sys.argv else None
def amp_end(a):
    if not AMP: return
    uid[0] += 1
    L = f"amp{uid[0]}"
    a(f"""s_cmp_lg_u32 s2, {AMP[3]}
          s_cbranch_scc1 {L}x
          s_cmp_lg_u32 s{sW}, {AMP[4]}
          s_cbranch_scc1 {L}x
          s_waitcnt vmcnt(0)
          s_memrealtime s[62:63]
          s_sub_u32 s100, s101, s100
          s_min_u32 s100, s100, 10000
          s_mul_i32 s100, s100, {AMP[2]}
          s_waitcnt lgkmcnt(0)
          s_add_u32 s100, s100, s62""")
    a.label(L)
    a(f"""s_memrealtime s[62:63]
          s_waitcnt lgkmcnt(0)
          s_sub_u32 s61, s62, s100
          s_cmp_lt_i32 s61, 0
          s_cbranch_scc1 {L}""")
    a.label(L + "x")
GMAX = None
def stamp(a, idx):
    if AMP and idx in AMP[:2]:
        a(f"""s_memrealtime s[62:63]
              s_waitcnt lgkmcnt(0)
              s_mov_b32 s{100 + AMP[:2].index(idx)}, s62""")
    if not STAMP: return
    if idx in SKIP: return
    a(f"""s_memrealtime s[96:97]
          s_memtime s[98:99]
          s_waitcnt lgkmcnt(0)
          v_writelane_b32 v{VST}, s96, {idx}
          v_writelane_b32 v{VST}, s98, {idx+32}""")
def stamp_flush(a, idx):
    if AMP:
        if idx in AMP[:2]: a("s_waitcnt vmcnt(0)")
        stamp(a, idx)
        amp_end(a)
    if not STAMP: return
    a("s_waitcnt vmcnt(0)")
    stamp(a, idx)
    srd(a, 88, SWS, 0x100000, 16 << 20)
    a(f"""s_mov_b64 exec, -1
          s_lshl_b32 s92, s2, 12
          s_lshl_b32 s93, s{sW}, 8
          s_add_u32 s92, s92, s93
          v_mbcnt_lo_u32_b32 v2, -1, 0
          v_mbcnt_hi_u32_b32 v2, -1, v2
          v_lshlrev_b32 v2, 2, v2
          buffer_store_dword v{VST}, v2, s[88:91], s92 offen""")

def poll(a, vaddr, vtmp, nl_mask, srdreg=SWS):
    uid[0] += 1
    L = f"poll{uid[0]}"
    a(f"""s_mov_b32 s60, 0
          s_mov_b64 exec, {nl_mask}""")
    a.label(L)
    a(f"""buffer_load_dword v{vtmp}, v{vaddr}, s[{srdreg}:{srdreg+3}], 0 offen sc1
          s_add_u32 s60, s60, 1
          s_cmp_gt_u32 s60, {SPIN_MAX}
          s_cbranch_scc1 {L}x
          s_waitcnt vmcnt(0)
          v_cmp_ne_u32 vcc, s{sNON}, v{vtmp}
          s_cbranch_vccnz {L}""")
    a.label(L + "x")
    a("s_mov_b64 exec, -1")

def poll_pipe(a, vaddr, vt, nl_mask, gap=2):
    uid[0] += 1
    L = f"pp{uid[0]}"
    ld = lambda k: f"buffer_load_dword v{vt+k}, v{vaddr}, s[{SWS}:{SWS+3}], 0 offen sc1"
    a(f"""s_mov_b32 s60, 0
          s_mov_b64 exec, {nl_mask}
          {ld(0)}
          s_sleep {gap}
          {ld(1)}""")
    a.label(L)
    for k in range(3):
        a(f"""s_sleep {gap}
              {ld((k+2)%3)}
              s_waitcnt vmcnt(2)
              v_cmp_ne_u32 vcc, s{sNON}, v{vt+k}
              s_cbranch_vccz {L}x""")
    a(f"""s_add_u32 s60, s60, 1
          s_cmp_lt_u32 s60, {SPIN_MAX}
          s_cbranch_scc1 {L}""")
    a.label(L + "x")
    a("s_mov_b64 exec, -1")

def poll2(a, va, vt):
    uid[0] += 1
    L = f"pq{uid[0]}"
    a("s_mov_b32 s60, 0")
    a.label(L)
    a(f"""buffer_load_dwordx2 v[{vt}:{vt+1}], v{va}, s[{SWS}:{SWS+3}], 0 offen sc1
          s_add_u32 s60, s60, 1
          s_cmp_gt_u32 s60, {SPIN_MAX}
          s_cbranch_scc1 {L}x
          s_waitcnt vmcnt(0)
          v_cmp_ne_u32 vcc, s{sNON}, v{vt}
          v_cmp_ne_u32 s[4:5], s{sNON}, v{vt+1}
          s_or_b64 vcc, vcc, s[4:5]
          s_cbranch_vccnz {L}""")
    a.label(L + "x")

def publish(a, soff, vtmp, cnt=0, flav=None):
    if FULLF:
        a(f"""v_mov_b32 v{vtmp}, s{sNON}
              v_mov_b32 v{vtmp+1}, s{sNON}
              s_waitcnt vmcnt({cnt})
              s_mov_b64 exec, 0xffff
              buffer_store_dwordx2 v[{vtmp}:{vtmp+1}], v166, s[{SWS}:{SWS+3}], s{soff} offen {ST if flav is None else flav}
              s_mov_b64 exec, -1""")
        return
    a(f"""s_waitcnt vmcnt({cnt})
          v_mov_b32 v{vtmp}, s{sNON}
          s_mov_b64 exec, 1
          buffer_store_dword v{vtmp}, off, s[{SWS}:{SWS+3}], s{soff} {ST if flav is None else flav}
          s_mov_b64 exec, -1""")

def nonce_wait(a, vtmp, first_loaded):
    uid[0] += 1
    L = f"non{uid[0]}"
    a("s_mov_b32 s60, 0")
    if first_loaded:
        a(f"s_branch {L}c")
    a.label(L)
    a(f"""buffer_load_dword v{vtmp}, off, s[56:59], 0 sc1
          s_waitcnt vmcnt(0)""")
    a.label(L + "c")
    a(f"""v_readfirstlane_b32 s{sNON}, v{vtmp}
          s_add_u32 s60, s60, 1
          s_cmp_gt_u32 s60, {SPIN_MAX}
          s_cbranch_scc1 {L}x
          s_cmp_eq_u32 s{sNON}, 0
          s_cbranch_scc1 {L}""")
    a.label(L + "x")

def diag_mask(r):
    g, i = r // 4, r % 4
    return (0xffffffff << (8*g+i)) & 0xffffffff, (0xffffffff << (8*g+i+4)) & 0xffffffff

MODE = sys.argv[sys.argv.index("--mode")+1] if "--mode" in sys.argv else "auto"
A2F = opt("--a2st", "").replace("+", " ")
OPF = opt("--opst", "").replace("+", " ")
XR, WR, WSL = 0, 65536, 24576
NS = opt('--ns', 3)
QSLOT = [WR + 2*WSL, WR, WR + 3*WSL, WR + WSL] if NS == 3 else [WR + k*WSL for k in range(4)]
UPN = opt('--upn', 1)
PUBU = opt('--pubu', 0)
Q_BASE = 81920
WO_BASE = 98304
HSTR = 20480
UE = '--noue' not in sys.argv
ALIGN = '--noalign' not in sys.argv
OWNF = WR + WSL + 16384 + 4096
MST = WR + 2*WSL
B11E = '--b11e' in sys.argv
NONW = 163840 - 1024
OWNB = opt('--ownb', 1)
KVF = 90112
UF = 64
sX = sR

def gen():
    a = Asm()
    a.L += [f".globl {KN}", ".p2align 8", f".type {KN},@function"]
    a.label(KN)
    a(f"""s_cmp_ge_u32 s2, 256
          s_cbranch_scc1 L_end
          s_load_dwordx16 s[64:79], s[0:1], 0
          s_load_dwordx4 s[80:83], s[0:1], 64
          s_load_dwordx2 s[84:85], s[0:1], 80
          v_lshrrev_b32 v1, 6, v0
          v_and_b32 v0, 63, v0
          s_and_b32 s{sX}, s2, 7
          v_readfirstlane_b32 s{sW}, v1
          s_lshr_b32 s{sJ}, s2, 3
          s_lshl_b32 s3, s{sX}, 2
          s_and_b32 s4, s{sJ}, 3
          s_add_u32 s{sTB}, s3, s4
          s_lshr_b32 s{sHG}, s2, 5
          s_xor_b32 s{sHG}, s{sHG}, {opt("--hgx", 0)}""")
    if FULLF: a("v_lshlrev_b32 v166, 3, v0")
    if STAMP: a(f"v_mov_b32 v{VST}, 0")
    stamp(a, 0)
    a(f"""s_cmp_lt_u32 s{sW}, 8
          s_cbranch_scc1 L_consumer""")
    sQO, sF2, sPTV = 12, 13, 14
    def get_tag(vt):
        a(f"""v_mov_b32 v{vt}, {NONW}
              ds_read_b32 v{vt}, v{vt}
              s_waitcnt lgkmcnt(0)
              v_readfirstlane_b32 s{sNON}, v{vt}
              s_nop 1""")
    def pt_load():
        if MODE == "auto":
            a(f"""v_and_b32 v147, 31, v0
                  s_lshl_b32 s3, s{sX}, 7
                  s_add_u32 s3, s3, {WS_PT}
                  v_lshl_add_u32 v147, v147, 2, s3
                  buffer_load_dword v148, v147, s[{SWS}:{SWS+3}], 0 offen sc1""")
    sLW, sROT, sSOX, sSOW, sMX, sMW, sTY = 23, 15, 28, 29, 30, 31, 27
    SX, SWD, SAX = 36, 40, 48
    SWOD, SOUT = 44, 40
    sC0 = 24
    XO, WO_, XA1 = 8, 10, 14
    sRA, sAX = 21, 25
    a(f"""s_sub_u32 s{sLW}, s{sW}, 8
          s_lshl_b32 s3, s{sTB}, 2
          s_add_u32 s3, s3, s{sLW}
          s_lshl_b32 s3, s3, 14                    ; (64tb + 16lw)*1024
          v_lshrrev_b32 v1, 3, v0
          v_and_b32 v2, 7, v0
          v_lshrrev_b32 v3, 4, v0
          v_xor_b32 v4, v3, v2
          v_xor_b32 v5, 4, v4
          v_lshlrev_b32 v4, 4, v4
          v_lshlrev_b32 v5, 4, v5
          v_lshl_add_u32 v6, v1, 10, s3
          v_add_u32 v{XO}, v6, v4
          v_add3_u32 v{XO+1}, v6, v5, s4
          v_and_b32 v6, 1, v3
          v_lshlrev_b32 v6, 2, v6
          v_xor_b32 v6, v6, v2
          s_lshl_b32 s3, s{sHG}, 7
          v_lshl_add_u32 v6, v6, 4, s3
          s_and_b32 s3, s{sLW}, 1
          s_lshl_b32 s3, s3, 5
          v_add_u32 v7, s3, v1
          s_movk_i32 s3, 3072
          v_mad_u32_u24 v{WO_}, v7, s3, v6""".replace("v_add3_u32 v9, v6, v5, s4", "v_add_u32 v9, v6, v5\n          v_add_u32 v9, 8192, v9"))
    for jw in range(1, 4): a(f"v_add_u32 v{WO_+jw}, {8*3072*jw}, v{WO_}")
    a(f"""s_and_b32 s3, s{sJ}, 3
          s_lshl_b32 s3, s3, 1
          s_add_u32 s3, s3, s{sHG}
          s_add_u32 s3, s3, s{sX}
          s_and_b32 s{sROT}, s3, {opt('--rmask', 4)}
          s_lshr_b32 s{sTY}, s{sLW}, 1
          s_lshl_b32 s{sTY}, s{sTY}, 10
          s_add_u32 s{sTY}, s{sTY}, 1024
          s_lshl_b32 s{sSOX}, s{sROT}, 7
          s_mul_i32 s{sSOW}, s{sROT}, {64*3072}
          s_add_u32 s{sSOW}, s{sSOW}, s{sTY}
          s_lshl_b32 s{sMX}, s{sLW}, 11
          s_lshl_b32 s{sMW}, s{sLW}, 12
          s_waitcnt lgkmcnt(0)""")
    srd(a, SX, kBX, 0x200000)
    srd(a, SWD, kWQ, 0x180000)
    stamp(a, 1)
    def dma(sm0, m0off, v, S, so):
        a(f"""s_add_u32 m0, s{sm0}, {m0off}
              s_nop 0
              buffer_load_dwordx4 v{v}, s[{S}:{S+3}], s{so} offen lds""")
    def issue(st):
        if st < 8:
            for j in range(2): dma(sMX, XR + st*8192 + j*1024, XO+j, SX, sSOX)
        base = WR + (st % NS)*WSL if st < 8 else QSLOT[st-8]
        for j in range(4): dma(sMW, base + j*1024, WO_+j, SWD, sSOW)
        if st == 0:
            a(f"""; A_x rows: pi = 8*(x>>1) + (j&7) ; p = lw>>1, s1 = 16*(lw&1) + 8j + (i>>3)
          s_lshl_b32 s3, s{sTB}, 1
          s_lshr_b32 s4, s{sLW}, 1
          s_add_u32 s3, s3, s4
          s_lshl_b32 s3, s3, 10
          s_and_b32 s4, s{sLW}, 1
          s_lshl_b32 s4, s4, 20
          s_add_u32 s3, s3, s4
          v_lshl_add_u32 v6, v1, {10 if '--xcont' in sys.argv else 16}, s3
          v_add_u32 v{XA1}, v6, v4
          v_add_u32 v{XA1+1}, v6, v5
          v_add_u32 v{XA1+1}, {8*1024 if '--xcont' in sys.argv else 8*65536}, v{XA1+1}
          s_lshr_b32 s3, s{sJ}, 2
          s_and_b32 s{sRA}, s3, {opt('--amask', 4)}
          s_lshl_b32 s{sAX}, s{sRA}, 7""")
            srd(a, SAX, kAX, 0x200000)
        if st < 8:
            for j in range(2): dma(sMX, base + 16384 + j*1024, XO+j if '--xsame' in sys.argv else XA1+j, SX if '--xsame' in sys.argv else SAX, sSOX if '--xsame' in sys.argv else sAX)
        if st < 7:
            a(f"""s_add_u32 s{sROT}, s{sROT}, 1
                  s_and_b32 s{sROT}, s{sROT}, 7
                  s_lshl_b32 s{sSOX}, s{sROT}, 7
                  s_mul_i32 s{sSOW}, s{sROT}, {64*3072}
                  s_add_u32 s{sSOW}, s{sSOW}, s{sTY}
                  s_add_u32 s{sAX}, s{sAX}, 128
                  s_and_b32 s{sAX}, s{sAX}, 1023""")
        elif st < 11:
            a(f"s_add_u32 s{sROT}, s{sROT}, 2")
            a(f"""s_and_b32 s{sROT}, s{sROT}, 7
                  s_mul_i32 s{sSOW}, s{sROT}, {64*3072}""")
    issue(0)
    srd(a, SWS, kWS, 0x1000000)
    srd(a, 56, kDBG, 256)
    a(f"""          ; wo voffset: (128lw + (i>>3))*1024 + hg*128 + ((i&7) ^ (((i>>4)&1)<<2))*16
          v_and_b32 v6, 1, v3
          v_lshlrev_b32 v6, 2, v6
          v_xor_b32 v6, v6, v2
          s_lshl_b32 s3, s{sLW}, 17
          s_lshl_b32 s4, s{sHG}, 7
          s_add_u32 s3, s3, s4
          v_lshl_add_u32 v6, v6, 4, s3
          v_lshl_add_u32 v19, v1, 10, v6
          v_lshrrev_b32 v4, 1, v0
          v_add_u32 v4, s{sTB}, v4
          v_subrev_u32 v4, 4, v4
          v_and_b32 v5, 3, v4
          v_bfe_u32 v4, v4, 2, 3
          v_lshl_add_u32 v4, v5, 3, v4
          s_lshr_b32 s4, s2, 5
          s_lshl_b32 s4, s4, 12
          s_and_b32 s5, s{sLW}, 2
          s_lshl_b32 s5, s5, 2
          s_add_u32 s4, s4, s5
          v_lshl_add_u32 v4, v4, 7, s4
          v_and_b32 v5, 1, v0
          v_lshl_add_u32 v4, v5, 2, v4
          v_add_u32 v16, {WS_F1}, v4
          v_lshlrev_b32 v1, 4, v0
          s_lshl_b32 s9, s{sHG}, 2
          s_add_u32 s9, s9, s{sLW}
          s_lshl_b32 s5, s{sTB}, 11
          s_lshl_b32 s6, s9, 16
          s_add_u32 s10, s5, s6
          s_add_u32 s5, s10, {WS_O}
          v_lshl_add_u32 v24, v0, 7, s5
          s_lshl_b32 s4, s{sTB}, 6
          s_lshl_b32 s5, s{sLW}, 3
          s_add_u32 s4, s4, s5
          v_bfe_u32 v4, v0, 1, 3
          v_and_b32 v5, 1, v0
          v_lshl_add_u32 v4, v5, 5, v4
          v_add_u32 v4, s4, v4
          v_lshlrev_b32 v4, 2, v4
          v_add_u32 v25, {WS_F2}, v4
          s_lshl_b32 s5, s{sLW}, 19
          s_lshl_b32 s6, s{sTB}, 11
          s_add_u32 s5, s5, s6
          s_add_u32 s13, s5, {WS_O}""")
    MF, A2 = 96, 128
    sPF, sWB, sIH = 52, 54, 55
    a(f"""s_lshl_b32 s4, s2, 1
          s_lshr_b32 s5, s{sLW}, 1
          s_add_u32 s4, s4, s5
          s_mul_i32 s4, s4, 3072
          s_and_b32 s5, s{sLW}, 1
          s_lshl_b32 s5, s5, 9
          s_add_u32 s5, s5, s4
          s_add_u32 s{sPF}, s{kWQ}, s5
          s_addc_u32 s{sPF+1}, s{kWQ+1}, 0
          s_mov_b32 s{sIH}, 0
          s_mov_b32 s{sWB}, {WR + 2*WSL}
          s_add_u32 s11, s{sMX}, {XR + 2*8192}
          s_getreg_b32 s{sPTV}, hwreg(HW_REG_XCC_ID, 0, 16)
          s_lshl_b32 s{sPTV}, s{sPTV}, 8""")
    issue(1)
    def prefetch4():
        if "--nopf" in sys.argv: return
        a(f"""s_sub_u32 s3, s{sIH}, {opt("--pf0", 2)}
              s_cmp_ge_u32 s3, 4
              s_cbranch_scc1 L_hpf""")
        for k in range(4): a(f"s_load_dword s61, s[{sPF}:{sPF+1}], {64*k}")
        a(f"""s_add_u32 s{sPF}, s{sPF}, 256
              s_addc_u32 s{sPF+1}, s{sPF+1}, 0
              s_cmp_lg_u32 s3, 1
              s_cbranch_scc1 L_hpf
              s_lshl_b32 s4, s2, 2
              s_add_u32 s4, s4, s{sLW}
              s_lshl_b32 s5, s4, 9
              s_add_u32 s{sPF}, s{kWO}, s5
              s_addc_u32 s{sPF+1}, s{kWO+1}, 0""")
        a.label("L_hpf")
    stamp(a, 25)
    if ALIGN: a.L.append(".p2align 6")
    a.label("L_hl")
    a("s_waitcnt vmcnt(8)")
    if STAMP and "--lst" in sys.argv:
        a(f"""s_memrealtime s[96:97]
              s_add_u32 s3, s{sIH}, 2
              s_waitcnt lgkmcnt(0)
              v_writelane_b32 v{VST}, s96, s3""".replace("v_writelane_b32 v167, s96, s3", "s_mov_b32 m0, s3\nv_writelane_b32 v167, s96, m0"))
    a(f"""s_barrier
          s_add_u32 s4, s{sMW}, s{sWB}
          s_add_u32 s5, s{sMX}, s{sWB}""")
    for j in range(2): dma(11, j*1024, XO+j, SX, sSOX)
    for j in range(4): dma(4, j*1024, WO_+j, SWD, sSOW)
    for j in range(2): dma(5, 16384 + j*1024, XA1+j, SAX, sAX)
    prefetch4()
    a(f"""s_add_u32 s11, s11, 8192
          s_add_u32 s{sWB}, s{sWB}, {WSL}
          s_cmp_eq_u32 s{sWB}, {WR + 3*WSL}
          s_cselect_b32 s{sWB}, {WR}, s{sWB}
          s_add_u32 s{sROT}, s{sROT}, 1
          s_and_b32 s{sROT}, s{sROT}, 7
          s_lshl_b32 s{sSOX}, s{sROT}, 7
          s_mul_i32 s{sSOW}, s{sROT}, {64*3072}
          s_add_u32 s{sSOW}, s{sSOW}, s{sTY}
          s_add_u32 s{sAX}, s{sAX}, 128
          s_and_b32 s{sAX}, s{sAX}, 1023
          s_add_u32 s{sIH}, s{sIH}, 1
""")
    a(f"""s_cmp_lt_u32 s{sIH}, 6
          s_cbranch_scc1 L_hl
          s_lshr_b32 s3, s{sLW}, 1
          s_add_u32 s{sROT}, s{sROT}, s3
          s_and_b32 s{sROT}, s{sROT}, 7
          s_mul_i32 s{sSOW}, s{sROT}, {64*3072}
          s_cmp_lg_u32 s{sLW}, 0
          s_cbranch_scc1 L_hn0
          buffer_load_dword v18, off, s[56:59], 0 sc1
          s_waitcnt vmcnt(9)
          s_branch L_hn1""")
    a.label("L_hn0")
    a("s_waitcnt vmcnt(8)")
    a.label("L_hn1")
    a("s_barrier")
    issue(8)
    a(f"""s_cmp_lg_u32 s{sLW}, 0
          s_cbranch_scc1 L_hn2
          s_waitcnt vmcnt(5)
          s_branch L_hn3""")
    a.label("L_hn2")
    a("s_waitcnt vmcnt(4)")
    a.label("L_hn3")
    stamp(a, 9)
    a("s_barrier")
    issue(9); issue(10)
    a(f"""s_waitcnt vmcnt(8)
          s_cmp_lg_u32 s{sLW}, 0
          s_cbranch_scc1 L_hp2""")
    nonce_wait(a, 18, True)
    a(f"""v_mov_b32 v6, {NONW}
          v_mov_b32 v7, s{sNON}
          ds_write_b32 v6, v7""")
    if MODE == "auto":
        a(f"""s_xor_b32 s3, s{sPTV}, s{sNON}
              v_mov_b32 v18, s3
              s_lshl_b32 s3, s{sX}, 5
              s_add_u32 s3, s3, s{sJ}
              s_lshl_b32 s3, s3, 2
              s_add_u32 s3, s3, {WS_PT}
              s_mov_b64 exec, 1
              buffer_store_dword v18, off, s[{SWS}:{SWS+3}], s3
              s_mov_b64 exec, -1""")
    a("s_waitcnt lgkmcnt(0)")
    a.label("L_hp2")
    stamp(a, 20)
    a("s_barrier")
    issue(11)
    get_tag(6)
    srd(a, SWOD, kWO, 0x80000)
    srd(a, SOUT, kOUT, 0x400000)
    a(f"""; A2 task: tc = 2x + (j&1), cr16 = j>>1, sigma = w&1, nt = (w>>1)&1
          s_lshl_b32 s6, s{sX}, 1
          s_and_b32 s4, s{sJ}, 1
          s_add_u32 s6, s6, s4                    ; tc
          s_lshr_b32 s7, s{sJ}, 1                 ; cr16
          s_lshl_b32 s{sC0}, s7, 5
          s_lshr_b32 s4, s6, 2
          s_lshl_b32 s4, s4, 3
          s_and_b32 s5, s6, 3
          s_add_u32 s4, s4, s5
          s_and_b32 s5, s{sW}, 1
          s_lshl_b32 s5, s5, 2
          s_add_u32 s5, s4, s5                    ; t1 source
          s_sub_u32 s4, 32, s5
          s_and_b32 s4, s4, 31
          s_cmp_lt_u32 s2, 128
          s_cselect_b32 s11, s5, s4
          s_cselect_b64 vcc, -1, 0
          v_and_b32 v45, 31, v0
          v_lshl_add_u32 v20, v45, 5, s11""")
    a(f"""v_lshrrev_b32 v47, 5, v0
          v_and_b32 v45, 0x13, v0
          v_bfe_u32 v46, v0, 2, 1
          v_lshl_or_b32 v45, v46, 3, v45
          v_bfe_u32 v46, v0, 3, 1
          v_lshl_or_b32 v45, v46, 2, v45
          v_add_u32 v45, s{sC0}, v45                ; c
          v_sub_u32 v46, 512, v45
          v_cndmask_b32 v45, v46, v45, vcc           ; e
          s_mul_i32 s4, s6, {U_ROW}
          s_and_b32 s5, s{sW}, 1
          s_lshl_b32 s5, s5, 3
          s_add_u32 s4, s4, s5
          s_add_u32 s4, s4, {WS_U}
          v_lshl_add_u32 v45, v45, 4, s4
          s_mov_b32 s5, {16*U_GP}
          v_mad_u32_u24 v22, v47, s5, v45           ; U address
          s_sub_u32 s5, 15, s7
          s_cmp_lt_u32 s2, 128
          s_cselect_b32 s4, s7, s5                ; e block b
          s_cselect_b32 s5, 0, 1
          v_mul_u32_u24 v45, s5, v47
          v_add_u32 v45, s4, v45
          v_and_b32 v45, 7, v45
          v_and_b32 v46, 31, v0
          v_lshlrev_b32 v46, 3, v46
          v_lshl_add_u32 v45, v45, 8, v46
          v_add_u32 v21, {WS_F3}, v45""")
    NT = 3 if MODE == "auto" else 1
    a(f"""s_sub_u32 s3, 4, s{sTB}
          s_max_i32 s3, s3, 0
          s_lshl_b32 s4, s3, 1
          s_lshl_b32 s6, 0xff, s4
          s_and_b32 s6, s6, 0xff
          s_mov_b32 s7, 0
          s_mul_i32 s8, s{sLW}, {HSTR}
          s_add_u32 s8, s8, 6144
          s_add_u32 s10, s10, {WS_K - 2048}
          s_lshl_b32 s30, s{sLW}, 14
          v_mov_b32 v2, 0x7ffffff0
          s_waitcnt vmcnt(8) lgkmcnt(0)
          s_barrier""")
    a(f"""s_waitcnt vmcnt(4)
          s_barrier
          s_waitcnt vmcnt(0)""")
    stamp(a, 23)
    a(f"""s_barrier
          s_mov_b64 exec, s[6:7]
          s_cbranch_execz L_kv0
          buffer_load_dword v5, v16, s[{SWS}:{SWS+3}], 0 offen sc1
          s_mov_b64 exec, -1
          s_barrier
          s_mov_b64 exec, s[6:7]
          s_waitcnt vmcnt(0)
          v_cmp_ne_u32 vcc, s{sNON}, v5
          s_mov_b64 exec, -1
          s_cbranch_vccz L_kv1""")
    poll(a, 16, 5, "s[6:7]")
    a("s_branch L_kv1")
    a.label("L_kv0")
    a("s_mov_b64 exec, -1\ns_barrier")
    a.label("L_kv1")
    stamp(a, 10)
    def kv_grp(g):
        a(f"""s_cmp_gt_u32 s{sTB}, {g}
              s_cbranch_scc1 L_kvr{g}
              v_mov_b32 v3, v2
              s_mov_b32 s10, {2048*g}""")
        a.label(f"L_kvr{g}")
        a(f"""s_sub_u32 m0, s8, {2048*g}
              s_sub_u32 s4, s10, {2048*g}
              buffer_load_dwordx4 v3, s[{SWS}:{SWS+3}], s4 offen {KVLD} lds
              buffer_load_dwordx4 v3, s[{SWS}:{SWS+3}], s4 offen offset:1024 {KVLD} lds
              s_add_u32 m0, m0, 10240
              s_add_u32 s4, s4, {WS_V - WS_K}
              buffer_load_dwordx4 v3, s[{SWS}:{SWS+3}], s4 offen {KVLD} lds
              buffer_load_dwordx4 v3, s[{SWS}:{SWS+3}], s4 offen offset:1024 {KVLD} lds""")
    KV1 = opt("--kv1", 3)
    a("v_mov_b32 v3, v1")
    for g in range(KV1): kv_grp(g)
    def wo_grp(g):
        a(f"""s_add_u32 s3, s{sJ}, {g}
              s_and_b32 s3, s3, 3
              s_lshl_b32 s4, s3, 12
              s_add_u32 s4, s4, s30
              s_add_u32 s4, s4, {WO_BASE}
              s_lshl_b32 s5, s3, 15""")
        for jj in range(4):
            a(f"""s_add_u32 m0, s4, {jj*1024}
                  s_add_u32 s6, s5, {jj*8192}
                  buffer_load_dwordx4 v19, s[{SWOD}:{SWOD+3}], s6 offen lds""")
    a(f"""s_lshl_b32 s3, s{sLW}, 2
          s_add_u32 s3, s3, {KVF}
          v_mov_b32 v6, s3
          v_mov_b32 v7, 0
          ds_write_b32 v6, v7""")
    a(f"""s_and_b32 s3, s{sLW}, 1
          s_lshl_b32 s3, s3, 13
          s_add_u32 s3, s3, {MST}
          v_add_u32 v44, s3, v1""")
    for js in range(8): a(f"ds_read_b128 {vr(MF+4*js,4)}, v44 offset:{js*1024}")
    a("v_mov_b32 v7, 1\ns_waitcnt lgkmcnt(0)")
    a(f"s_waitcnt vmcnt({4*KV1-4})")
    stamp(a, 11)
    a("s_barrier")
    stamp(a, 12)
    for g in range(KV1, 4): kv_grp(g)
    a(f"""s_waitcnt vmcnt(8)
          s_barrier
          buffer_load_dwordx2 v[4:5], v21, s[{SWS}:{SWS+3}], 0 offen sc1""")
    if MODE == "auto":
        a(f"""s_mov_b64 exec, 0xffff
              buffer_load_dword v27, v24, s[{SWS}:{SWS+3}], 0 offen
              buffer_load_dword v26, v25, s[{SWS}:{SWS+3}], 0 offen sc1
              s_mov_b64 exec, -1""")
    a(f"""s_waitcnt vmcnt({NT + 4})
          ds_write_b32 v6, v7
          v_mov_b32 v7, 2""")
    wo_grp(0)
    a(f"""s_waitcnt vmcnt({NT + 4})
          ds_write_b32 v6, v7""")
    stamp(a, 21)
    for g in range(1, 4): wo_grp(g)
    a(f"""s_cmp_ge_u32 s{sLW}, 2
          s_cbranch_scc1 L_nou
          s_waitcnt vmcnt(16)
          v_cmp_ne_u32 vcc, s{sNON}, v4
          v_cmp_ne_u32 s[4:5], s{sNON}, v5
          s_or_b64 vcc, vcc, s[4:5]
          s_cbranch_vccz L_uok""")
    poll2(a, 21, 4)
    a.label("L_uok")
    stamp(a, 26)
    for js in range(8):
        for b in range(2):
            a(f"""s_mov_b32 s4, {(2*js + b)*U_GP}
                  buffer_load_dwordx2 {vr(UF+4*js+2*b,2)}, v22, s[{SWS}:{SWS+3}], s4 offen {LD}""")
    a(f"""v_lshrrev_b32 v3, 5, v0
          v_lshlrev_b32 v10, 11, v20
          v_lshl_add_u32 v10, v3, 4, v10
          s_lshl_b32 s4, s{sC0}, 1
          v_add_u32 v10, s4, v10""")
    stamp(a, 27)
    a("s_waitcnt vmcnt(16)\ns_branch L_nou2")
    a.label("L_nou")
    a("s_waitcnt vmcnt(0)")
    a.label("L_nou2")
    def a2_half(k, L):
        a(f"""s_cmp_ge_u32 s{sLW}, 2
              s_cbranch_scc1 {L}""")
        if k:
            a("s_mov_b32 s3, 0x80008000")
            for t in range(16): a(f"v_xor_b32 v{MF+2*t+1}, s3, v{MF+2*t+1}")
            for t in range(8): a(f"v_cvt_pk_bf16_f32 v{44+t}, v{A2+2*t}, v{A2+2*t+1}")
        for js in range(8):
            a(f"{MFMA} {vr(A2+16*k,16)}, {vr(UF+4*js,4)}, {vr(MF+4*js,4)}, {'0' if js == 0 else vr(A2+16*k,16)}")
        a.label(L)
    a("s_barrier")
    stamp(a, 14)
    def o_fetch():
        a(f"""s_lshl_b32 s4, s8, 13
              s_add_u32 s4, s4, s30
              s_lshl_b32 s5, s8, 18
              s_add_u32 s5, s5, s13""")
        for j in range(4):
            a(f"""s_add_u32 m0, s4, {j*2048}
                  s_add_u32 s7, s5, {j*65536}
                  buffer_load_dwordx4 v1, s[{SWS}:{SWS+3}], s7 offen {LD} lds
                  buffer_load_dwordx4 v1, s[{SWS}:{SWS+3}], s7 offen offset:1024 {LD} lds""")
    a(f"""s_mov_b32 s60, 0
          s_mov_b32 s8, 0
          s_mov_b32 s9, 1
          s_mov_b64 exec, 0xffff
          buffer_load_dword v5, v25, s[{SWS}:{SWS+3}], 0 offen sc1
          s_mov_b64 exec, -1
          s_waitcnt vmcnt(1)""")
    a2_half(0, "L_h0")
    a("s_mov_b64 exec, 0xffff\ns_branch L_opw")
    a.label("L_opl")
    a(f"""buffer_load_dword v5, v25, s[{SWS}:{SWS+3}], 0 offen sc1
          s_add_u32 s60, s60, 1
          s_cmp_gt_u32 s60, {SPIN_MAX}
          s_cbranch_scc1 L_opx""")
    a.label("L_opw")
    a(f"""s_waitcnt vmcnt(0)
          v_cmp_ne_u32 vcc, s{sNON}, v5
          s_and_b32 s4, vcc_lo, 0xff
          s_and_b32 s9, vcc_lo, 0xff00
          s_cmp_lg_u32 s4, 0
          s_cbranch_scc1 L_opl""")
    a.label("L_opx")
    a("s_mov_b64 exec, -1")
    o_fetch()
    a(f"""s_mov_b32 s8, 1
          s_cmp_lg_u32 s9, 0
          s_cbranch_scc1 L_op2""")
    o_fetch()
    a2_half(1, "L_h1a")
    a("""s_waitcnt vmcnt(8)
         s_barrier
         s_branch L_op3""")
    a.label("L_op2")
    a(f"""s_lshl_b32 s3, s8, 3
          s_lshl_b32 s10, 0xff, s3
          s_mov_b32 s11, 0""")
    a2_half(1, "L_h1b")
    a("s_waitcnt vmcnt(0)\ns_barrier")
    poll(a, 25, 5, "s[10:11]")
    o_fetch()
    a.label("L_op3")
    stamp(a, 15)
    a("s_waitcnt vmcnt(0)\ns_barrier")
    a(f"""s_cmp_ge_u32 s{sLW}, 2
          s_cbranch_scc1 L_h2
          s_mov_b32 s3, {1024*2048}""")
    for mm in range(2):
        a(f"buffer_store_dwordx4 {vr(44+4*mm,4)}, v10, s[{SOUT}:{SOUT+3}], 0 offen offset:{32*mm} {A2F}")
    a("s_nop 7")
    for t in range(8): a(f"v_cvt_pk_bf16_f32 v{52+t}, v{A2+16+2*t}, v{A2+16+2*t+1}")
    for mm in range(2):
        a(f"buffer_store_dwordx4 {vr(52+4*mm,4)}, v10, s[{SOUT}:{SOUT+3}], s3 offen offset:{32*mm} {A2F}")
    a.label("L_h2")
    stamp(a, 13)
    stamp_flush(a, 18)
    a("s_endpgm")

    a.label("L_consumer")
    if "--nocpf" not in sys.argv:
        a(f"""s_cmp_lg_u32 s{sW}, 7
              s_cbranch_scc1 L_cpf1
              s_getpc_b64 s[4:5]""")
        a.label("L_cpf0")
        a(f"""s_sub_u32 s4, s4, L_cpf0-{KN}
              s_subb_u32 s5, s5, 0
              s_lshl_b32 s3, s{sJ}, 3
              v_add_u32 v1, s3, v0
              v_lshlrev_b32 v1, 7, v1
              v_cmp_gt_u32 vcc, L_last_insn-{KN}, v1
              s_and_b64 exec, vcc, 0xff
              s_cbranch_execz L_cpf2
              v_mov_b32 v3, s5
              v_add_co_u32 v2, vcc, s4, v1
              s_nop 1
              v_addc_co_u32 v3, vcc, 0, v3, vcc
              global_load_dword v165, v[2:3], off""")
        a.label("L_cpf2")
        a("s_mov_b64 exec, -1")
        a.label("L_cpf1")
    sIT, sDEL, sSL = 25, 26, 30
    sMASK = 28
    XA, WA = 8, 12
    ACC = 64
    a(f"""v_and_b32 v1, 31, v0
          v_lshrrev_b32 v2, 5, v0
          v_bfe_u32 v3, v0, 1, 3
          v_xor_b32 v3, v3, v2
          v_lshlrev_b32 v4, 7, v1
          s_or_b32 s3, s2, s{sW}
          s_cmp_lg_u32 s3, 4
          s_waitcnt lgkmcnt(0)""")
    srd(a, 56, kDBG, 256)
    a(f"""s_cbranch_scc1 L_nonpub
          s_cmp_lg_u32 s2, 0
          s_cbranch_scc1 L_nonpub
          s_memrealtime s[4:5]
          s_waitcnt lgkmcnt(0)
          s_or_b32 s4, s4, 1
          v_mov_b32 v5, s4
          s_mov_b64 exec, 1
          buffer_store_dword v5, off, s[56:59], 0 sc0 sc1
          s_mov_b64 exec, -1""")
    a.label("L_nonpub")
    srd(a, SWS, kWS, 0x1000000)
    if MODE == "auto":
        a(f"""s_cmp_lg_u32 s{sW}, 6
              s_cbranch_scc1 L_ptt
              s_lshl_b32 s3, s{sX}, 7
              s_add_u32 s3, s3, {WS_PT}
              buffer_load_dword v165, off, s[{SWS}:{SWS+3}], s3""")
        a.label("L_ptt")
    srd(a, SOUT, kOUT, 0x400000)
    for r in range(16):
        lo, hi = diag_mask(r)
        a(f"s_mov_b32 s{64+2*r}, {lo:#x}\ns_mov_b32 s{65+2*r}, {hi:#x}")
    for kk in range(4):
        a(f"""v_xor_b32 v5, {2*kk}, v3
              v_lshl_add_u32 v{XA+kk}, v5, 4, v4""")
    a(f"""s_getreg_b32 s{sPTV}, hwreg(HW_REG_XCC_ID, 0, 16)
          s_lshl_b32 s{sPTV}, s{sPTV}, 8
          v_bfe_u32 v3, v0, 2, 2
          v_lshl_add_u32 v7, v2, 3, v3             ; 8h + r
          v_lshlrev_b32 v4, 7, v7
          v_bfe_u32 v5, v0, 4, 1
          v_lshlrev_b32 v5, 1, v5
          v_bfe_u32 v6, v0, 1, 1
          v_add_u32 v5, v5, v6
          s_and_b32 s3, s{sW}, 2
          s_lshl_b32 s3, s3, 1
          v_add_u32 v5, s3, v5
          v_bfe_u32 v6, v0, 3, 1
          v_lshlrev_b32 v6, 2, v6
          v_xor_b32 v5, v5, v6
          v_lshl_add_u32 v4, v5, 4, v4
          v_and_b32 v6, 1, v0
          v_lshl_add_u32 v4, v6, 3, v4
          s_cmp_lt_u32 s{sW}, 4
          s_cbranch_scc1 L_kv""")
    sEH, sCA = 24, 25
    XF, AA, AB, WG, TM = 20, 36, 52, 100, 68
    XCH = WR + (7 % NS)*WSL + 16384
    DL, PH, SG, UA, NV, EI, XC = 12, 13, 14, 15, 3, 7, 164
    a(f"""s_and_b32 s3, s{sW}, 2
          s_lshl_b32 s3, s3, 11
          s_add_u32 s3, s3, {WR+16384}""")
    for kk in range(4): a(f"v_add_u32 v{XA+kk}, s3, v{XA+kk}")
    a(f"""s_and_b32 s{sEH}, s{sW}, 1
          s_lshr_b32 s3, s{sJ}, 2                  ; eb
          s_and_b32 s{sCA}, s3, {opt('--amask', 4)}
          s_lshl_b32 s3, s3, 1
          s_add_u32 s6, s3, s{sEH}
          s_lshl_b32 s3, s6, 4
          v_and_b32 v5, 15, v0
          v_add_u32 v{EI}, s3, v5                  ; e
          v_bfe_u32 v6, v0, 4, 1
          v_cvt_f32_u32 v{PH}, v6
          v_mul_f32 v{PH}, 0x3e800000, v{PH}
          s_cmp_eq_u32 s6, 0
          s_cselect_b32 s{sMASK}, 0x10000, 0
          s_mov_b32 s{sMASK+1}, s{sMASK}
          v_mov_b32 v6, 256
          v_cndmask_b32 v{EI}, v{EI}, v6, s[{sMASK}:{sMASK+1}]
          v_cndmask_b32 v{PH}, v{PH}, 0, s[{sMASK}:{sMASK+1}]
          v_cvt_f32_u32 v{DL}, v{EI}
          v_mul_f32 v{DL}, 0x3b000000, v{DL}       ; e/512
          v_and_b32 v6, 1, v0
          v_lshlrev_b32 v6, 31, v6
          v_or_b32 v{SG}, 1.0, v6
          s_mov_b32 s3, s{sTB}                     ; pi
          s_lshr_b32 s4, s6, 1
          s_lshl_b32 s4, s4, 5
          s_add_u32 s4, s4, s3
          s_lshl_b32 s4, s4, 1
          s_add_u32 s4, s4, s{sEH}
          s_lshl_b32 s26, s4, 2
          s_mul_i32 s3, s3, {U_GP}
          s_lshl_b32 s4, s6, 8
          s_add_u32 s3, s3, s4
          s_add_u32 s3, s3, {WS_U}
          v_lshl_add_u32 v5, v5, 4, s3
          v_lshrrev_b32 v6, 4, v0
          s_movk_i32 s4, {U_ROW}
          v_mad_u32_u24 v{UA}, v6, s4, v5
          s_lshl_b32 s3, s{sEH}, 11
          s_add_u32 s3, s3, {XCH}
          v_lshl_add_u32 v{XC}, v0, 4, s3""")
    def genw(c):
        o = [f"""s_add_u32 s3, s{sCA}, {c}
              s_and_b32 s3, s3, 7
              s_lshl_b32 s3, s3, 6
              v_lshl_add_u32 v{TM}, v2, 3, s3
              v_cvt_f32_u32 v{TM}, v{TM}
              v_mul_f32 v{TM}, v{TM}, v{DL}
              v_fract_f32 v{TM}, v{TM}
              v_add_f32 v{TM}, v{TM}, v{PH}"""]
        for kk in range(4):
            t = []
            for j in range(1, 8): t.append(f"v_add_f32 v{TM+j}, v{TM+j-1}, v{DL}")
            for j in range(8): t.append(f"v_cos_f32 v{TM+8+j}, v{TM+j}")
            t.append(f"v_fmamk_f32 v{TM}, v{DL}, 0x41100000, v{TM+7}")
            for j in range(4): t.append(f"v_cvt_pk_bf16_f32 v{WG+16*c+4*kk+j}, v{TM+8+2*j}, v{TM+9+2*j}")
            o.append("\n".join(t))
        return o
    CR, CI, NCI = 68+16, 68+24, WG
    NQ = [4, 16]
    def genc(m, T):
        t = []
        for j in range(8):
            cj = 16*m + (j % 4) + 8*(j // 4)
            t.append(f"""v_mad_u32_u24 v{T+j}, v1, {cj}, v{PH}
                  v_and_b32 v{T+j}, 31, v{T+j}
                  v_cvt_f32_u32 v{T+j}, v{T+j}
                  v_mul_f32 v{T+j}, 0x3d000000, v{T+j}""")
        u = [f"v_cos_f32 v{T+8+j}, v{T+j}" for j in range(8)] + [f"v_sin_f32 v{T+j}, v{T+j}" for j in range(8)] + ["s_nop 0"]
        for j in range(4):
            u.append(f"""v_cvt_pk_bf16_f32 v{CR+4*m+j}, v{T+8+2*j}, v{T+9+2*j}
                  v_cvt_pk_bf16_f32 v{CI+4*m+j}, -v{T+2*j}, -v{T+1+2*j}
                  v_cvt_pk_bf16_f32 v{NQ[m]+j}, v{T+2*j}, v{T+1+2*j}""")
        return ["\n".join(t[:4]), "\n".join(t[4:]), "\n".join(u[:17]), "\n".join(u[17:])]
    def genm(js):
        T, d = TM, 84 + 4*js
        return f"""v_add_f32 v{T}, v18, v17
              v_add_f32 v{T+1}, v{T}, v17
              v_add_f32 v{T+2}, v{T+1}, v17
              v_cos_f32 v{T+4}, v18
              v_cos_f32 v{T+5}, v{T}
              v_cos_f32 v{T+6}, v{T+1}
              v_cos_f32 v{T+7}, v{T+2}
              v_sin_f32 v{T+8}, v18
              v_sin_f32 v{T+9}, v{T}
              v_sin_f32 v{T+10}, v{T+1}
              v_sin_f32 v{T+11}, v{T+2}
              v_add_f32 v18, v{T+2}, v17
              v_cvt_pk_bf16_f32 v{d}, v{T+4}, v{T+8}
              v_cvt_pk_bf16_f32 v{d+1}, v{T+5}, v{T+9}
              v_cvt_pk_bf16_f32 v{d+2}, v{T+6}, v{T+10}
              v_cvt_pk_bf16_f32 v{d+3}, v{T+7}, v{T+11}"""
    mpar = f"""; A2 task: tc = 2x + (j&1), cr16 = j>>1, sigma = w&1, nt = (w>>1)&1
          s_lshl_b32 s6, s{sX}, 1
          s_and_b32 s4, s{sJ}, 1
          s_add_u32 s6, s6, s4                    ; tc
          s_lshr_b32 s7, s{sJ}, 1                 ; cr16
          s_lshl_b32 s10, s7, 5
          s_lshr_b32 s4, s6, 2
          s_lshl_b32 s4, s4, 3
          s_and_b32 s5, s6, 3
          s_add_u32 s4, s4, s5
          s_and_b32 s5, s{sW}, 1
          s_lshl_b32 s5, s5, 2
          s_add_u32 s5, s4, s5                    ; t1 source
          s_sub_u32 s4, 32, s5
          s_and_b32 s4, s4, 31
          s_cmp_lt_u32 s2, 128
          s_cselect_b32 s11, s5, s4
          s_cselect_b64 vcc, -1, 0
          v_and_b32 v{TM+1}, 31, v0
          v_lshl_add_u32 v{TM}, v{TM+1}, 5, s11
          v_lshrrev_b32 v{TM+3}, 5, v0                 ; h
          v_sub_u32 v{TM+2}, 2048, v{TM}
          v_cndmask_b32 v{TM+2}, v{TM+2}, v{TM}, vcc
          v_cvt_f32_u32 v{TM+2}, v{TM+2}
          v_mul_f32 v17, 0x3a000000, v{TM+2}
          v_lshlrev_b32 v{TM+2}, 5, v{TM+3}
          v_cvt_f32_u32 v{TM+2}, v{TM+2}
          v_mul_f32 v18, v17, v{TM+2}"""
    def either(p0, p1):
        if not p0 and not p1: return ""
        uid[0] += 1
        L = f"e{uid[0]}"
        return f"s_cmp_ge_u32 s{sW}, 6\ns_cbranch_scc1 {L}a\n{p0}\ns_branch {L}b\n{L}a:\n{p1}\n{L}b:"
    for c in range(2):
        for x in genw(c): a(x)
    a("s_barrier")
    def rda(g): return f"ds_read_b128 {vr(XF+4*(g % 4),4)}, v{XA+g % 4}" if g < 32 else ""
    a(rda(0)); a(rda(1))
    for st in range(8):
        fill = {0: genw(2), 1: genw(3), 2: genc(0, TM), 3: genc(1, TM)}.get(st, [])
        if st in (0, 1): fill = [fill[0] + "\n" + fill[1]] + fill[2:]
        if st == 1: fill[3] += f"\nv_lshlrev_b32 v{PH}, 2, v2\nv_mul_u32_u24 v{PH}, v{PH}, v1"
        if st == 2: fill = [either(fill[0], mpar), either(fill[1], genm(0)), either(fill[2], genm(1)), either(fill[3], "")]
        if st == 3: fill = [either(fill[0], genm(2)), either(fill[1], genm(3)), either(fill[2], ""), either(fill[3], "")]
        acc = AA if st < 4 else AB
        for kk in range(4):
            g = 4*st + kk
            mm_ = f"{MFMA} {vr(acc,16)}, {vr(XF+4*(g % 4),4)}, {vr(WG+16*(st%4)+4*kk,4)}, {'0' if (st % 4 == 0 and kk == 0) else vr(acc,16)}"
            if kk < 3:
                a("s_waitcnt lgkmcnt(1)")
                a(mm_)
                if kk < 2: a(rda(g+2))
                if fill: a(fill[kk])
            if kk == 2:
                if st < 7:
                    d = WSL if (st+1) % NS else -(NS-1)*WSL
                    a(f"s_mov_b32 s3, {d}")
                    for r in range(4): a(f"v_add_u32 v{XA+r}, s3, v{XA+r}")
                    a("s_waitcnt lgkmcnt(0)\ns_barrier")
                    a(rda(g+2))
                else:
                    a("s_waitcnt lgkmcnt(0)")
            if kk == 3:
                a(mm_); a(rda(g+2))
                if fill: a(fill[3])
    stamp(a, 7)
    PK, SV, RE, IM, D1, D2 = XF, WG+24, WG+32, WG+48, AA, AB
    a("s_nop 11")
    for r in range(16): a(f"v_fma_f32 v{AA+r}, v{AB+r}, v{SG}, v{AA+r}")
    for t in range(8): a(f"v_cvt_pk_bf16_f32 v{PK+t}, v{AA+2*t}, v{AA+2*t+1}")
    a(f"""s_barrier
          s_cmp_lt_u32 s{sW}, 6
          s_cbranch_scc1 L_a1e
          ds_write_b128 v{XC}, {vr(PK,4)}
          ds_write_b128 v{XC}, {vr(PK+4,4)} offset:1024
          v_mov_b32 v{TM}, 0
          v_mov_b32 v{TM+1}, 0
          v_mov_b32 v{TM+2}, 0
          v_mov_b32 v{TM+3}, 0
          v_mov_b32 v{TM+4}, {OWNF}
          ds_write_b128 v{TM+4}, {vr(TM,4)}
          s_waitcnt lgkmcnt(0)
          s_barrier""")
    a(f"""s_and_b32 s3, s{sW}, 1
          s_lshl_b32 s3, s3, 13
          s_add_u32 s3, s3, {MST}
          v_lshl_add_u32 v42, v0, 4, s3""")
    for js in range(4): a(f"ds_write_b128 v42, {vr(84+4*js,4)} offset:{js*1024}")
    for js in range(4, 8):
        a(genm(js))
        a(f"ds_write_b128 v42, {vr(84+4*js,4)} offset:{js*1024}")
    a("""s_barrier
         s_waitcnt lgkmcnt(0)
         s_barrier
         s_barrier
         s_branch L_att""")
    a.label("L_a1e")
    a(f"""s_barrier
          ds_read_b128 {vr(PK+8,4)}, v{XC}
          ds_read_b128 {vr(PK+12,4)}, v{XC} offset:1024
          s_waitcnt lgkmcnt(0)""")
    for t in range(8): a(f"v_permlane16_swap_b32 v{PK+t}, v{PK+8+t}")
    a(f"""s_mov_b32 s6, 0x00010001
          s_mov_b32 s7, 0x00010001
          s_cmp_eq_u32 s{sMASK}, 0
          s_cbranch_scc1 L_nosp1""")
    for t in range(8):
        a(f"v_mov_b32 v{SV+t}, v{PK+8+t}")
        a(f"v_cndmask_b32 v{PK+8+t}, v{PK+8+t}, 0, s[6:7]")
    a.label("L_nosp1")
    a("s_nop 1")
    def step1(aa, bb):
        a(f"{MFMA} {vr(RE,16)}, {vr(CR,4)}, {vr(aa,4)}, 0")
        a(f"{MFMA} {vr(IM,16)}, {vr(CI,4)}, {vr(aa,4)}, 0")
        a(f"{MFMA} {vr(RE,16)}, {vr(CR+4,4)}, {vr(aa+4,4)}, {vr(RE,16)}")
        a(f"{MFMA} {vr(IM,16)}, {vr(CI+4,4)}, {vr(aa+4,4)}, {vr(IM,16)}")
        if bb is not None:
            for m in range(2):
                a(f"{MFMA} {vr(RE,16)}, {vr(NQ[m],4)}, {vr(bb+4*m,4)}, {vr(RE,16)}")
                a(f"{MFMA} {vr(IM,16)}, {vr(CR+4*m,4)}, {vr(bb+4*m,4)}, {vr(IM,16)}")
    def upack(D):
        for r in range(16): a(f"v_cvt_pk_bf16_f32 v{D+r}, v{RE+r}, v{IM+r}")
        for g in range(4):
            d = D + 4*g
            a(f"""v_permlane32_swap_b32 v{d}, v{d+2}
                  v_permlane32_swap_b32 v{d+1}, v{d+3}""")
        for g in range(4):
            d = D + 4*g
            a(f"""v_permlane16_swap_b32 v{d}, v{d+1}
                  v_permlane16_swap_b32 v{d+2}, v{d+3}""")
    def ust(D, off):
        for g in range(4):
            a(f"""s_mov_b32 s4, {4*g*U_ROW + off}
                  buffer_store_dwordx4 {vr(D+4*g,4)}, v{UA}, s[{SWS}:{SWS+3}], s4 offen {ST}""")
    step1(PK, PK+8)
    a("s_nop 11" if UE else "s_barrier\ns_nop 10")
    upack(D1)
    a(f"""s_cmp_eq_u32 s{sMASK}, 0
          s_cbranch_scc1 L_nosp2""")
    step1(SV, None)
    a("s_nop 11")
    upack(D2)
    a.label("L_nosp2")
    stamp(a, 8)
    ust(D1, 0)
    a(f"""s_cmp_eq_u32 s{sMASK}, 0
          s_cbranch_scc1 L_nosp3
          s_mov_b64 exec, s[6:7]""")
    ust(D2, 4096)
    a("s_mov_b64 exec, -1")
    a.label("L_nosp3")
    get_tag(NV)
    a(f"""s_barrier
          s_barrier
          {"s_barrier" if UE else ""}
          s_add_u32 s3, s26, {WS_F3}""")
    publish(a, 3, 6)
    a("s_branch L_att")

    a.label("L_kv")
    FR = 32
    FK = 96
    def X(b, i): return FK + 12*b + 4*i
    def W(b): return FK + 12*b + 8
    a(f"""s_and_b32 s3, s{sW}, 1
          s_lshl_b32 s3, s3, 13
          s_add_u32 s3, s3, {WR}
          v_add_u32 v{WA}, s3, v4""")
    for r in range(32): a(f"v_mov_b32 v{ACC+r}, 0")
    a(f"""s_lshl_b32 s3, s2, 5
          s_add_u32 s3, s3, s{sW}
          s_lshl_b32 s3, s3, 2
          s_add_u32 s31, s3, {WS_F1}
          s_lshl_b32 s3, s{sHG}, 2
          s_and_b32 s4, s{sW}, 2
          s_add_u32 s3, s3, s4
          s_lshl_b32 s3, s3, 16
          s_lshl_b32 s4, s{sTB}, 11
          s_add_u32 s3, s3, s4
          s_add_u32 s3, s3, {WS_K}
          v_lshl_add_u32 v14, v0, 4, s3
          s_add_u32 s3, s3, {WS_V - WS_K}
          v_bfe_u32 v5, v0, 4, 1
          v_lshlrev_b32 v5, 16, v5
          v_lshl_add_u32 v5, v2, 8, v5
          v_and_b32 v6, 15, v0
          v_lshl_add_u32 v5, v6, 4, v5
          v_add_u32 v16, s3, v5
          v_mov_b32 v21, v4
          s_and_b32 s4, s{sW}, 2
          s_mul_i32 s3, s4, {HSTR}
          s_add_u32 s3, s3, 8192
          v_lshl_add_u32 v17, v0, 4, s3
          s_add_u32 s3, s3, 10240
          v_bfe_u32 v5, v0, 4, 1
          v_mul_u32_u24 v5, {HSTR}, v5
          v_lshl_add_u32 v5, v2, 8, v5
          v_lshl_add_u32 v5, v6, 4, v5
          v_add_u32 v18, s3, v5
          s_and_b32 s3, s{sW}, 1
          s_lshl_b32 s3, s3, 12
          s_lshl_b32 s4, s4, 10
          s_add_u32 s3, s3, s4
          s_add_u32 s3, s3, {Q_BASE}
          v_lshl_add_u32 v20, v0, 4, s3
          s_mov_b32 s8, {f2u(QSCALE):#x}
          s_mov_b32 s9, s8""")
    def rd(kk, b):
        return [f"ds_read_b128 {vr(X(b,i),4)}, v{XA+kk} offset:{i*4096}" for i in range(2)] + [f"ds_read_b64_tr_b16 {vr(W(b)+2*q,2)}, v{WA} offset:{kk*2048 + q*512}" for q in range(2)]
    def step(b, variant, r):
        m = []
        for i in range(2):
            A_, B_ = (W(b), X(b,i)) if variant == "K" else (X(b,i), W(b))
            m.append(f"{MFMA} {vr(ACC+16*i,16)}, {vr(A_,4)}, {vr(B_,4)}, {vr(ACC+16*i,16)}")
        for x in [m[0]] + r[:2] + [m[1]] + r[2:]: a(x)
    a(f"""s_mov_b32 s{sIT}, 0
          s_mov_b32 s{sSL}, 0
          s_mov_b32 s27, {WSL}""")
    stamp(a, 1)
    a("s_barrier")
    stamp(a, 2)
    for x in rd(0, 0) + rd(1, 1): a(x)
    a(f"""s_bitcmp1_b32 s{sW}, 0
          s_cbranch_scc1 L_loopV""")
    for variant in ("K", "V"):
        if ALIGN: a.L.append(".p2align 6")
        a.label(f"L_loop{variant}")
        for kk in range(3):
            a("s_waitcnt lgkmcnt(4)")
            step(kk, variant, rd(kk+2, kk+2) if kk < 2 else [])
        a(f"""s_add_u32 s{sSL}, s{sSL}, 1
              s_cmp_eq_u32 s{sSL}, {NS}
              s_cselect_b32 s{sDEL}, {-(NS-1)*WSL}, s27
              s_cselect_b32 s{sSL}, 0, s{sSL}
              v_add_u32 v{WA}, s{sDEL}, v{WA}""")
        for r in range(4): a(f"v_add_u32 v{XA+r}, 8192, v{XA+r}")
        a(f"""s_add_u32 s{sIT}, s{sIT}, 1
              s_cmp_eq_u32 s{sIT}, 8
              s_waitcnt lgkmcnt(0)
              s_cbranch_scc1 L_last{variant}
              s_barrier""")
        for x in rd(0, 0): a(x)
        step(3, variant, rd(1, 1))
        a(f"s_branch L_loop{variant}")
        a.label(f"L_last{variant}")
        step(3, variant, [])
        stamp(a, 3)
        a("s_mov_b32 s4, 65536\ns_nop 9")
        for i in range(2):
            for mm in range(2):
                d = FR + 8*i + 4*mm
                for t in range(4): a(f"v_cvt_pk_bf16_f32 v{d+t}, v{ACC+16*i+8*mm+2*t}, v{ACC+16*i+8*mm+2*t+1}")
                if variant == "K":
                    a(f"buffer_store_dwordx4 {vr(d,4)}, v14, s[{SWS}:{SWS+3}], {'s4' if mm else '0'} offen offset:{i*1024} {ST}")
                else:
                    a(f"buffer_store_dwordx4 {vr(d,4)}, v16, s[{SWS}:{SWS+3}], 0 offen offset:{i*1024+mm*512} {ST}")
        if variant == "K": a("s_branch L_kvdone")
    a.label("L_kvdone")
    stamp(a, 4)
    FQ = 96
    a(f"""s_and_b32 s3, s{sW}, 1
          s_lshl_b32 s3, s3, 12
          s_sub_u32 s3, s3, 65536
          v_add_u32 v{WA}, {QSLOT[0]}, v21""")
    for kk in range(4): a(f"v_add_u32 v{XA+kk}, s3, v{XA+kk}")
    a(f"""v_mov_b32 v19, {NONW}
          s_barrier
          ds_read_b32 v19, v19""")
    if PUBU < 0:
        a(f"s_waitcnt lgkmcnt(0)\nv_readfirstlane_b32 s{sNON}, v19\ns_nop 1")
        publish(a, 31, 6)
        stamp(a, 5)
    def rdq(u, k, b):
        c2, kk = k // 4, k % 4
        f = FQ + 8*b
        return [f"ds_read_b128 {vr(f,4)}, v{XA+kk} offset:{(2*u+c2)*8192}"] + [f"ds_read_b64_tr_b16 {vr(f+4+2*q,2)}, v{WA} offset:{c2*8192 + kk*2048 + q*512}" for q in range(2)]
    NBQ = 4
    for k in range(3):
        for x in rdq(0, k, k): a(x)
    for u in range(4):
        for k in range(8):
            g = 8*u + k
            last = k >= 5
            if k == 5 and u < 3:
                d = QSLOT[u+1] - QSLOT[u]
                if u == PUBU:
                    a(f"v_readfirstlane_b32 s{sNON}, v19\ns_nop 1")
                    publish(a, 31, 6)
                    stamp(a, 5)
                a(f"""s_waitcnt lgkmcnt(0)
                      s_barrier
                      v_add_u32 v{WA}, {d}, v{WA}""")
            nxt = rdq(u, k+3, (g+3) % NBQ) if k < 5 else (rdq(u+1, k-5, (g+3) % NBQ) if u < 3 else [])
            if not (k >= 5 and u < 3) or k > 5 or True:
                outst = 6 if (k < 5 or u < 3) else 3*(7-k)
                if not (k == 5 and u < 3) and not (k in (6, 7) and u < 3): a(f"s_waitcnt lgkmcnt({outst})")
            f = FQ + 8*(g % NBQ)
            a(f"{MFMA} {vr(ACC,16)}, {vr(f+4,4)}, {vr(f,4)}, {'0' if g == 0 else vr(ACC,16)}")
            for x in nxt: a(x)
    a("s_barrier")
    stamp(a, 6)
    a(f"""s_bitcmp1_b32 s{sW}, 0
          s_cbranch_scc1 L_cpv""")
    for i in range(2):
        for mm in range(2): a(f"ds_write_b128 v17, {vr(FR+8*i+4*mm,4)} offset:{mm*HSTR + i*1024}")
    a("s_branch L_cpq")
    a.label("L_cpv")
    for i in range(2):
        for mm in range(2): a(f"ds_write_b128 v18, {vr(FR+8*i+4*mm,4)} offset:{i*1024 + mm*512}")
    a.label("L_cpq")
    a("s_nop 5")
    for t in range(8): a(f"v_pk_mul_f32 {vr(ACC+2*t,2)}, {vr(ACC+2*t,2)}, s[8:9]")
    for t in range(8): a(f"v_cvt_pk_bf16_f32 v{FQ+t}, v{ACC+2*t}, v{ACC+2*t+1}")
    a(f"""ds_write_b128 v20, {vr(FQ,4)}
          ds_write_b128 v20, {vr(FQ+4,4)} offset:1024
          s_lshl_b32 s3, s{sW}, 2
          s_add_u32 s3, s3, {OWNF}
          v_mov_b32 v5, s3
          v_mov_b32 v6, 1
          s_waitcnt lgkmcnt(0)
          ds_write_b32 v5, v6""")

    a.label("L_att")
    QF = 4
    KA, VA_, NINF, MX = 2, 3, 8, 9
    KF, VF, PP, S, O, CN, CD, CF = 12, 24, 40, 48, 80, 96, 112, 128
    S3, P2, MK = 112, 128, 136
    sVM, sNF, sI = 8, 10, 11
    get_tag(5)
    a(f"""s_xor_b32 s{sPTV}, s{sPTV}, s{sNON}
          s_and_b32 s3, s{sW}, 3
          s_lshr_b32 s5, s{sW}, 2
          s_lshl_b32 s4, s{sHG}, 2
          s_add_u32 s{sHD}, s4, s3
          s_lshl_b32 s4, s{sTB}, 1
          s_add_u32 s4, s4, s5                     ; qb
          s_lshl_b32 s{sQO}, s4, 10
          s_lshl_b32 s6, s{sHD}, 16
          s_add_u32 s{sQO}, s{sQO}, s6
          s_min_u32 s{sNF}, s4, 7
          s_lshl_b32 s4, s4, 5
          s_add_u32 s4, s4, s{sHD}
          s_lshl_b32 s4, s4, 2
          s_add_u32 s{sF2}, s4, {WS_F2}
          v_lshlrev_b32 v1, 4, v0
          s_lshl_b32 s4, s{sW}, 10
          s_add_u32 s4, s4, {Q_BASE}
          v_add_u32 v4, s4, v1
          s_lshl_b32 s4, s3, 2
          s_add_u32 s4, s4, {KVF}
          v_mov_b32 v149, s4
          s_mul_i32 s4, s3, {HSTR}
          s_lshl_b32 s5, s5, 10
          s_add_u32 s4, s4, s5
          v_add_u32 v{KA}, s4, v1
          v_lshrrev_b32 v10, 5, v0
          v_and_b32 v11, 15, v0
          v_lshlrev_b32 v11, 4, v11
          v_lshl_add_u32 v11, v10, 8, v11
          s_add_u32 s4, s4, 10240
          v_add_u32 v{VA_}, s4, v11
          v_mov_b32 v{NINF}, 0xff800000
          s_mov_b32 s{sVM}, 0x0000ffff
          s_mov_b32 s{sVM+1}, 0x0000ffff
          s_mov_b32 s6, 0x00110000
          s_mov_b32 s7, 0x00110000
          v_mov_b32 v10, 0x3f803f80""")
    for t in range(16): a(f"v_cndmask_b32 v{VF+t}, 0, v10, s[6:7]")
    a("v_mov_b32 v10, 0xffff\nv_mov_b32 v11, 0xffff0000")
    for t in range(8):
        a(f"""v_cndmask_b32 v{MK+t}, 0, v10, s[{64+4*t}:{65+4*t}]
              v_cndmask_b32 v5, 0, v11, s[{66+4*t}:{67+4*t}]
              v_or_b32 v{MK+t}, v{MK+t}, v5""")
    stamp(a, 11)
    a(f"""v_mov_b32 v5, {OWNF}
          s_mov_b32 s60, 0""")
    a.label("L_ownw")
    a(f"""ds_read_b128 v[12:15], v5
          s_add_u32 s60, s60, 1
          s_cmp_gt_u32 s60, {SPIN_MAX*8}
          s_cbranch_scc1 L_ownx
          s_waitcnt lgkmcnt(0)
          v_and_b32 v12, v12, v13
          v_and_b32 v14, v14, v15
          v_and_b32 v12, v12, v14
          v_cmp_eq_u32 vcc, 0, v12
          s_cbranch_vccnz L_ownw""")
    a.label("L_ownx")
    stamp(a, 12)
    a(f"ds_read_b128 {vr(QF,4)}, v4")
    def kv_wait(lvl):
        uid[0] += 1
        L = f"kw{uid[0]}"
        a("s_mov_b32 s60, 0")
        a.label(L)
        a(f"""ds_read_b32 v11, v149
              s_add_u32 s60, s60, 1
              s_cmp_gt_u32 s60, {SPIN_MAX*8}
              s_cbranch_scc1 {L}x
              s_waitcnt lgkmcnt(0)
              v_readfirstlane_b32 s3, v11
              s_cmp_lt_u32 s3, {lvl}
              s_cbranch_scc1 {L}""")
        a.label(L + "x")
    def masks(val):
        return [f"""v_cndmask_b32 v{CD+r}, v{NINF}, {val}, s[{64+2*r}:{65+2*r}]
                  v_cndmask_b32 v{CF+r}, {val}, v{NINF}, s[{64+2*r}:{65+2*r}]""" for r in range(16)]
    def maxblk(S_, first):
        if first: a(f"v_max_f32 v{MX}, v{S_}, v{S_+1}")
        for t in range(2 if first else 0, 16, 2):
            a(f"v_max3_f32 v{MX}, v{S_+t}, v{S_+t+1}, v{MX}")
    def xhalf_max():
        a(f"""v_mov_b32 v10, v{MX}
              s_nop 1
              v_permlane32_swap_b32 v10, v{MX}
              s_nop 1
              v_max_f32 v{MX}, v{MX}, v10""")
    order = [7, 6, 5, 4, 3, 2, 1, 8, 0]
    def rdK(n): return f"ds_read_b128 {vr(KF+4*(n%3),4)}, v{KA} offset:{order[n]*1024}"
    def rdV(n):
        b = VF + 8*(n % 2)
        return f"""s_mov_b64 exec, s[{sVM}:{sVM+1}]
              ds_read_b128 {vr(b,4)}, v{VA_} offset:{order[n]*1024}
              ds_read_b128 {vr(b+4,4)}, v{VA_} offset:{order[n]*1024+512}
              s_mov_b64 exec, -1"""
    def mS(k, Dd): return f"{MFMA} {vr(Dd,16)}, {vr(KF+4*(k%3),4)}, {vr(QF,4)}, {vr(CN,16)}"
    a("s_setprio 3")
    PTN = opt("--ptn", 1)
    if PTN < 0: pt_load()
    if FORCE_SLOW: a("s_branch L_preslow")
    CI_ = 149
    def fast(first):
        def mSv(k, Dd, tag=''):
            if not first or k == 7: a(mS(k, Dd)); return
            inv = f"{MFMA} {vr(Dd,16)}, {vr(KF+4*(k%3),4)}, {vr(QF,4)}, {vr(CI_+1,16)}"
            if k == 8: a(inv); return
            a(f"""s_cmp_gt_u32 s{sNF}, {k}
                  s_cbranch_scc1 L_fv{k}{tag}
                  {inv}
                  s_branch L_fw{k}{tag}""")
            a.label(f"L_fv{k}{tag}")
            a(mS(k, Dd))
            a.label(f"L_fw{k}{tag}")
        F = int(first)
        if first:
            for r in range(16): a(f"v_mov_b32 v{CI_+1+r}, v{NINF}")
        def standin():
            a(f"""v_max3_f32 v{MX}, v{S+16}, v{S+17}, v{S+18}
                  v_max3_f32 v10, v{S+19}, v{S+20}, v{S+21}
                  v_max3_f32 v11, v{S+22}, v{S+23}, v{S+24}
                  v_max3_f32 v{MX}, v{S+25}, v{S+26}, v{MX}
                  v_max3_f32 v10, v{S+27}, v{S+28}, v10
                  v_max3_f32 v11, v{S+29}, v{S+30}, v11
                  v_max3_f32 v{MX}, v{S+31}, v{MX}, v10
                  v_max_f32 v{MX}, v{MX}, v11""")
            xhalf_max()
            a(f"v_sub_f32 v{CN}, 0xc2700000, v{MX}")
            for r in range(1, 16): a(f"v_mov_b32 v{CN+r}, v{CN}")
        a(f"""s_cmp_lt_u32 s{sW}, 4
              s_cbranch_scc1 L_q0{F}""")
        a(rdK(0)); a(rdV(0))
        a(f"""s_waitcnt lgkmcnt(2)
              {MFMA} {vr(S+16,16)}, {vr(KF,4)}, {vr(QF,4)}, 0
              s_nop 11""")
        standin()
        a("s_nop 1"); a(mS(0, S)); a("s_nop 11")
        for r in range(12): a(f"v_exp_f32 v{S+r}, v{S+r}")
        for t in range(4): a(f"v_cvt_pk_bf16_f32 v{PP+t}, v{S+2*t}, v{S+2*t+1}")
        a(f"""v_exp_f32 v{S+12}, v{S+12}
              s_waitcnt lgkmcnt(0)
              {MFMA} {vr(O,16)}, {vr(VF,4)}, {vr(PP,4)}, 0""")
        for r in range(13, 16): a(f"v_exp_f32 v{S+r}, v{S+r}")
        for t in range(4, 8): a(f"v_cvt_pk_bf16_f32 v{PP+t}, v{S+2*t}, v{S+2*t+1}")
        stamp(a, 30)
        a("s_barrier")
        a(rdK(1)); a("s_barrier"); a(rdK(2)); a(rdV(1))
        a("s_waitcnt lgkmcnt(3)")
        mSv(1, S+16, "b")
        a(f"s_nop 10\ns_branch L_n1{F}")
        a.label(f"L_q0{F}")
        a(f"""ds_read_b128 {vr(KF+8,4)}, v{KA} offset:{8*1024}
              s_waitcnt lgkmcnt(0)
              {MFMA} {vr(S+16,16)}, {vr(KF+8,4)}, {vr(QF,4)}, 0
              s_nop 11""")
        for r in range(16): a(f"v_cndmask_b32 v{S+16+r}, v{NINF}, v{S+16+r}, s[{64+2*r}:{65+2*r}]")
        standin()
        stamp(a, 30)
        a("s_barrier")
        a(rdK(0)); a(rdK(1)); a(rdV(0))
        a("s_waitcnt lgkmcnt(3)")
        mSv(0, S)
        prev = None
        for n in range(8):
            Sn = S + 16*(n % 2); Vn = VF + 8*(n % 2)
            P_ = PP if n % 2 == 0 else P2
            ex = lambda r: a(f"v_exp_f32 v{Sn+r}, v{Sn+r}")
            cv = lambda t: a(f"v_cvt_pk_bf16_f32 v{P_+t}, v{Sn+2*t}, v{Sn+2*t+1}")
            if n == 1: a.label(f"L_n1{F}")
            if n == PTN: pt_load()
            PR = dict(zip([int(c) for c in opt("--pr", "357")], (2, 1, 0)))
            if n in PR: a(f"s_setprio {PR[n]}")
            if n in (2, 4):
                a(f"""v_readfirstlane_b32 s3, v11
                      s_cmp_ge_u32 s3, {n//2}
                      s_cbranch_scc1 L_kf{int(first)}{n}""")
                kv_wait(n//2)
                a.label(f"L_kf{int(first)}{n}")
            if n == 0:
                a("s_waitcnt lgkmcnt(2)"); mSv(1, S+16); a("s_barrier"); a(rdK(2)); a(rdV(1)); a("s_nop 3")
            if n == 7:
                a(prev); a("s_nop 3")
                for r in range(16): a(f"v_cndmask_b32 v{Sn+r}, v{S3+r}, v{Sn+r}, s[{64+2*r}:{65+2*r}]")
            for r in range(4): ex(r)
            if 0 < n < 7: a(prev)
            if n == 7: a(rdV(8))
            for r in range(4, 8): ex(r)
            if 0 < n < 7:
                a("s_waitcnt lgkmcnt(2)"); mSv(n+1, S + 16*((n+1) % 2))
                if n in (1, 3): a("ds_read_b32 v11, v149")
                a(rdK(n+2)); a(rdV(n+1))
            for t in range(4): cv(t)
            for r in range(8, 12): ex(r)
            if n < 7:
                a("s_waitcnt lgkmcnt(3)")
                a(f"{MFMA} {vr(O,16)}, {vr(Vn,4)}, {vr(P_,4)}, {'0' if n == 0 else vr(O,16)}")
            else:
                for t in range(4): a(f"v_and_b32 v{PP+t}, v{MK+t}, v{P_+t}\nv_xor_b32 v{P_+t}, v{PP+t}, v{P_+t}")
                a("s_waitcnt lgkmcnt(2)")
                a(f"{MFMA} {vr(O,16)}, {vr(Vn,4)}, {vr(PP,4)}, {vr(O,16)}")
            ex(12); ex(13)
            if n == 6: a("s_waitcnt lgkmcnt(2)"); mSv(8, S3)
            if n == 7: a("s_waitcnt lgkmcnt(0)"); a(f"{MFMA} {vr(O,16)}, {vr(VF,4)}, {vr(P2,4)}, {vr(O,16)}")
            ex(14); ex(15)
            for t in range(4, 8): cv(t)
            prev = f"{MFMA} {vr(O,16)}, {vr(Vn+4,4)}, {vr(P_+4,4)}, {vr(O,16)}"
        for t in range(4, 8): a(f"v_and_b32 v{PP+t}, v{MK+t}, v{P2+t}\nv_xor_b32 v{P2+t}, v{PP+t}, v{P2+t}")
        a(f"""s_nop 0
          {MFMA} {vr(O,16)}, {vr(VF+12,4)}, {vr(PP+4,4)}, {vr(O,16)}
          {MFMA} {vr(O,16)}, {vr(VF+4,4)}, {vr(P2+4,4)}, {vr(O,16)}
          s_waitcnt vmcnt(0)
          v_cmp_ne_u32 s[6:7], s{sPTV}, v148
          v_mov_b32 v14, 0x7f800000
          s_nop 8
          v_add_f32 v10, |v{O}|, |v{O+1}|
          v_add_f32 v11, |v{O+2}|, |v{O+3}|
          v_add_f32 v12, |v{O+4}|, |v{O+5}|
          v_add_f32 v13, |v{O+6}|, |v{O+7}|
          v_add_f32 v10, v10, v11
          v_add_f32 v12, v12, v13
          v_mul_f32 v11, 0x43800000, v{O+8}
          v_add_f32 v10, v10, v12
          v_add_f32 v11, v10, v11
          v_rcp_f32 v10, v{O+8}
          v_cmp_lt_f32 vcc, v11, v14
          s_cmp_eq_u64 vcc, -1
          s_cbranch_scc1 L_norm
          s_branch L_slow""")
    a(f"""s_cmp_eq_u32 s{sR}, 0
          s_cbranch_scc1 L_first""")
    fast(False)
    a.label("L_first")
    fast(True)
    a.label("L_preslow")
    a("s_barrier\ns_barrier")
    kv_wait(2)
    if PTN >= 0: pt_load()
    a.label("L_slow")
    a(f"""s_setprio 0
          s_sub_u32 s3, 8, s{sNF}
          s_lshl_b32 s3, s3, 10
          s_waitcnt lgkmcnt(0)""")
    for x in masks("0"): a(x)
    a(f"""ds_read_b128 {vr(KF,4)}, v{KA} offset:{8*1024}
          s_waitcnt lgkmcnt(0)
          {MFMA} {vr(S,16)}, {vr(KF,4)}, {vr(QF,4)}, {vr(CD,16)}
          s_nop 11""")
    maxblk(S, True)
    a(f"""s_cmp_eq_u32 s{sR}, 0
          s_cbranch_scc1 L_s1nofar
          ds_read_b128 {vr(KF,4)}, v{KA}
          s_waitcnt lgkmcnt(0)
          {MFMA} {vr(S,16)}, {vr(KF,4)}, {vr(QF,4)}, {vr(CF,16)}
          s_nop 11""")
    maxblk(S, False)
    a.label("L_s1nofar")
    a(f"""s_mov_b32 s{sI}, s{sNF}
          v_add_u32 v10, s3, v{KA}
          s_cmp_eq_u32 s{sI}, 0
          s_cbranch_scc1 L_s1done""")
    a.label("L_s1loop")
    a(f"""ds_read_b128 {vr(KF,4)}, v10
          v_add_u32 v10, 1024, v10
          s_waitcnt lgkmcnt(0)
          {MFMA} {vr(S,16)}, {vr(KF,4)}, {vr(QF,4)}, 0
          s_nop 11""")
    maxblk(S, False)
    a(f"""s_sub_u32 s{sI}, s{sI}, 1
          s_cmp_lg_u32 s{sI}, 0
          s_cbranch_scc1 L_s1loop""")
    a.label("L_s1done")
    xhalf_max()
    a(f"v_sub_f32 v{MX}, 0, v{MX}")
    for x in masks(f"v{MX}"): a(x)
    for r in range(16): a(f"v_mov_b32 v{CN+r}, v{MX}")
    def pvblk(kaddr, vaddr, off, C, first):
        a(f"""ds_read_b128 {vr(KF,4)}, v{kaddr} offset:{off}
              s_mov_b64 exec, s[{sVM}:{sVM+1}]
              ds_read_b128 {vr(VF,4)}, v{vaddr} offset:{off}
              ds_read_b128 {vr(VF+4,4)}, v{vaddr} offset:{off+512}
              s_mov_b64 exec, -1
              s_waitcnt lgkmcnt(0)
              {MFMA} {vr(S,16)}, {vr(KF,4)}, {vr(QF,4)}, {vr(C,16)}
              s_nop 11""")
        for r in range(16): a(f"v_exp_f32 v{S+r}, v{S+r}")
        for t in range(8): a(f"v_cvt_pk_bf16_f32 v{PP+t}, v{S+2*t}, v{S+2*t+1}")
        a("s_nop 1")
        a(f"{MFMA} {vr(O,16)}, {vr(VF,4)}, {vr(PP,4)}, {'0' if first else vr(O,16)}")
        a(f"{MFMA} {vr(O,16)}, {vr(VF+4,4)}, {vr(PP+4,4)}, {vr(O,16)}")
    pvblk(KA, VA_, 8*1024, CD, True)
    a(f"""s_cmp_eq_u32 s{sR}, 0
          s_cbranch_scc1 L_s2nofar""")
    pvblk(KA, VA_, 0, CF, False)
    a.label("L_s2nofar")
    a(f"""s_mov_b32 s{sI}, s{sNF}
          v_add_u32 v10, s3, v{KA}
          v_add_u32 v11, s3, v{VA_}
          s_cmp_eq_u32 s{sI}, 0
          s_cbranch_scc1 L_s2done""")
    a.label("L_s2loop")
    pvblk(10, 11, 0, CN, False)
    a(f"""v_add_u32 v10, 1024, v10
          v_add_u32 v11, 1024, v11
          s_sub_u32 s{sI}, s{sI}, 1
          s_cmp_lg_u32 s{sI}, 0
          s_cbranch_scc1 L_s2loop""")
    a.label("L_s2done")
    a(f"""s_waitcnt vmcnt(0)
          v_cmp_ne_u32 s[6:7], s{sPTV}, v148
          s_nop 12
          v_rcp_f32 v10, v{O+8}
          s_nop 0""")
    a.label("L_norm")
    for t in range(8): a(f"v_mul_f32 v{O+t}, v10, v{O+t}")
    for t in range(4): a(f"v_cvt_pk_bf16_f32 v{PP+t}, v{O+2*t}, v{O+2*t+1}")
    a(f"s_add_u32 s4, s{sQO}, {WS_O}")
    if MODE == "auto":
        a(f"""s_cmp_eq_u64 s[6:7], 0
              s_cbranch_scc0 L_ox
              buffer_store_dwordx4 {vr(PP,4)}, v1, s[{SWS}:{SWS+3}], s4 offen""")
        stamp(a, 13)
        publish(a, sF2, 10, flav="")
        a("s_branch L_od")
        a.label("L_ox")
    a(f"buffer_store_dwordx4 {vr(PP,4)}, v1, s[{SWS}:{SWS+3}], s4 offen {ST}")
    stamp(a, 13 if MODE != "auto" else 19)
    publish(a, sF2, 10)
    a.label("L_od")
    stamp(a, 14)
    a(f"""s_barrier
          s_cmp_ge_u32 s{sW}, 4
          s_cbranch_scc1 L_fin""")
    OA, WA2, ACC2, W2, O2 = 8, 9, 16, 32, 32
    a(f"""s_and_b32 s5, s{sW}, 1
          v_lshrrev_b32 v2, 5, v0
          v_bfe_u32 v3, v0, 2, 2
          v_lshl_add_u32 v4, v2, 2, v3
          v_lshlrev_b32 v4, 7, v4
          v_bfe_u32 v5, v0, 4, 1
          v_lshlrev_b32 v5, 1, v5
          v_and_b32 v6, 1, v0
          v_add_u32 v5, v5, v6
          s_and_b32 s3, s{sW}, 2
          s_lshl_b32 s3, s3, 1
          v_add_u32 v5, s3, v5
          v_bfe_u32 v6, v0, 3, 1
          v_lshlrev_b32 v6, 2, v6
          v_xor_b32 v5, v5, v6
          v_lshl_add_u32 v4, v5, 4, v4
          v_bfe_u32 v6, v0, 1, 1
          v_lshl_add_u32 v4, v6, 3, v4
          v_add_u32 v{WA2}, {WO_BASE}, v4
          s_lshl_b32 s3, s5, 10
          v_add_u32 v{OA}, s3, v1
          v_and_b32 v14, 31, v0
          s_lshl_b32 s3, s{sTB}, 6
          s_lshl_b32 s5, s5, 5
          s_add_u32 s3, s3, s5
          v_add_u32 v14, s3, v14
          v_lshlrev_b32 v14, 11, v14
          v_lshl_add_u32 v14, v2, 4, v14
          s_lshl_b32 s3, s{sHG}, 7
          s_and_b32 s5, s{sW}, 2
          s_lshl_b32 s5, s5, 5
          s_add_u32 s3, s3, s5
          s_add_u32 s3, s3, 1024
          v_add_u32 v14, s3, v14
          v_mov_b32 v15, v{OA}""")
    heads = [8*(k//4 % 4) + 4*(k//16) + k % 4 for k in range(32)]
    OB = [2, 6, 10, 160]
    for k in range(32):
        for q in range(2):
            a(f"ds_read_b64_tr_b16 {vr(W2+4*k+2*q,2)}, v{WA2} offset:{heads[k]*2048 + q*1024}")
    a("s_waitcnt lgkmcnt(0)\ns_barrier")
    stamp(a, 28)
    rdo = lambda k: f"ds_read_b128 {vr(OB[k % 4],4)}, v15 offset:{heads[k]*2048}"
    for k in range(4): a(rdo(k))
    for k in range(32):
        if k == 12:
            a("s_barrier")
            stamp(a, 16)
        a(f"s_waitcnt lgkmcnt({min(3, 31-k)})")
        a(f"{MFMA} {vr(ACC2,16)}, {vr(W2+4*k,4)}, {vr(OB[k % 4],4)}, {'0' if k == 0 else vr(ACC2,16)}")
        if k + 4 < 32: a(rdo(k+4))
    a("s_nop 11")
    for mm in range(2):
        for t in range(4):
            a(f"v_cvt_pk_bf16_f32 v{O2+4*mm+t}, v{ACC2+8*mm+2*t}, v{ACC2+8*mm+2*t+1}")
        a(f"buffer_store_dwordx4 {vr(O2+4*mm,4)}, v14, s[{SOUT}:{SOUT+3}], 0 offen offset:{32*mm} {OPF}")
    stamp(a, 17)
    a.label("L_fin")
    stamp_flush(a, 18)
    a.label("L_end")
    a.label("L_last_insn")
    a("s_endpgm")
    return a

def main():
    a = gen()
    hdr = f"""; {NAME} : one fused kernel (generated by my gen11.py)
; @launch grid=(256,1,1) block=(768,1,1) lds=163840
.amdgcn_target "amdgcn-amd-amdhsa--gfx950"
.text
"""
    kd = f""".section .rodata,"a"
.p2align 6
.amdhsa_kernel {KN}
  .amdhsa_next_free_vgpr 168
  .amdhsa_next_free_sgpr 102
  .amdhsa_accum_offset 168
  .amdhsa_group_segment_fixed_size 0
  .amdhsa_kernarg_size 88
  .amdhsa_user_sgpr_count 2
  .amdhsa_user_sgpr_kernarg_segment_ptr 1
  .amdhsa_system_sgpr_workgroup_id_x 1
.end_amdhsa_kernel
"""
    path = sys.argv[1] if len(sys.argv) > 1 and sys.argv[1].endswith(".s") else f"cdna_kernels/{NAME}.s"
    open(path, "w").write(hdr + a.text() + kd)
main()
```

```python
import sys, struct, math

NAME = "concat_heads__spectral_fnet__sliding_block__prompt"
KN = NAME + "_kernel"
WS_Q, WS_K, WS_V, WS_O, WS_U = 0, 2 << 20, 4 << 20, 6 << 20, 8 << 20
WS_F1, WS_F2, WS_PT, WS_F3 = (11 << 20), (11 << 20) + 0x20000, (11 << 20) + 0x60000, (11 << 20) + 0x70000
U_ROW = 4224
U_GP = 16 * U_ROW
U_SIZE = 32 * U_GP
QSCALE = 0.25 * math.log2(math.e)
uid = [0]
STAMP = "--stamp" in sys.argv
FORCE_SLOW = "--slow" in sys.argv
SKIP = set(int(x) for x in sys.argv[sys.argv.index("--skip")+1].split(",")) if "--skip" in sys.argv else set()
ST = sys.argv[sys.argv.index("--st")+1].replace("+", " ") if "--st" in sys.argv else "sc1"
LD = "sc1"
SPIN_MAX = 200000
def opt(name, default):
    return type(default)(sys.argv[sys.argv.index(name)+1]) if name in sys.argv else default
PDELAY = opt("--pdelay", 0)
PIPE = "--pipe" in sys.argv
FULLF = "--fullf" in sys.argv
KVLD = sys.argv[sys.argv.index("--kvld")+1].replace("+", " ").replace("none", "") if "--kvld" in sys.argv else "sc1"
A2ST = "sc1" if "--a2sc1" in sys.argv else ""
WB = "--wb" in sys.argv

def f2u(x): return struct.unpack("<I", struct.pack("<f", x))[0]

class Asm:
    def __init__(self): self.L = []
    def __call__(self, s):
        for line in s.strip("\n").split("\n"):
            line = line.strip()
            if line: self.L.append(line if line.endswith(":") and " " not in line else "  " + line)
    def label(self, n): self.L.append(n + ":")
    def text(self): return "\n".join(self.L) + "\n"

def vr(b, n=1): return f"v{b}" if n == 1 else f"v[{b}:{b+n-1}]"
MFMA = "v_mfma_f32_32x32x16_bf16"

kAX, kSR, kSI, kDR, kDI, kBX, kWQ, kWO, kOUT, kDBG, kWS = 64, 66, 68, 70, 72, 74, 76, 78, 80, 82, 84
sTB, sHG, sJ, sW, sNON = 16, 17, 18, 19, 20
sHD, sR = 21, 22
SWS = 32
VST = 167

def srd(a, d, k, size, off=0):
    if off:
        a(f"s_add_u32 s{d}, s{k}, {off}\ns_addc_u32 s{d+1}, s{k+1}, 0")
    else:
        a(f"s_mov_b32 s{d}, s{k}\ns_mov_b32 s{d+1}, s{k+1}")
    a(f"s_mov_b32 s{d+2}, {size}\ns_mov_b32 s{d+3}, 0x20000")

AMP = [int(x) for x in sys.argv[sys.argv.index("--amp")+1].split(",")] if "--amp" in sys.argv else None
def amp_end(a):
    if not AMP: return
    uid[0] += 1
    L = f"amp{uid[0]}"
    a(f"""s_cmp_lg_u32 s2, {AMP[3]}
          s_cbranch_scc1 {L}x
          s_cmp_lg_u32 s{sW}, {AMP[4]}
          s_cbranch_scc1 {L}x
          s_waitcnt vmcnt(0)
          s_memrealtime s[62:63]
          s_sub_u32 s100, s101, s100
          s_min_u32 s100, s100, 10000
          s_mul_i32 s100, s100, {AMP[2]}
          s_waitcnt lgkmcnt(0)
          s_add_u32 s100, s100, s62""")
    a.label(L)
    a(f"""s_memrealtime s[62:63]
          s_waitcnt lgkmcnt(0)
          s_sub_u32 s61, s62, s100
          s_cmp_lt_i32 s61, 0
          s_cbranch_scc1 {L}""")
    a.label(L + "x")
GMAX = None
def stamp(a, idx):
    if AMP and idx in AMP[:2]:
        a(f"""s_memrealtime s[62:63]
              s_waitcnt lgkmcnt(0)
              s_mov_b32 s{100 + AMP[:2].index(idx)}, s62""")
    if not STAMP: return
    if idx in SKIP: return
    a(f"""s_memrealtime s[96:97]
          s_memtime s[98:99]
          s_waitcnt lgkmcnt(0)
          v_writelane_b32 v{VST}, s96, {idx}
          v_writelane_b32 v{VST}, s98, {idx+32}""")
def stamp_flush(a, idx):
    if AMP:
        if idx in AMP[:2]: a("s_waitcnt vmcnt(0)")
        stamp(a, idx)
        amp_end(a)
    if not STAMP: return
    a("s_waitcnt vmcnt(0)")
    stamp(a, idx)
    srd(a, 88, SWS, 0x100000, 16 << 20)
    a(f"""s_mov_b64 exec, -1
          s_lshl_b32 s92, s2, 12
          s_lshl_b32 s93, s{sW}, 8
          s_add_u32 s92, s92, s93
          v_mbcnt_lo_u32_b32 v2, -1, 0
          v_mbcnt_hi_u32_b32 v2, -1, v2
          v_lshlrev_b32 v2, 2, v2
          buffer_store_dword v{VST}, v2, s[88:91], s92 offen""")

def poll(a, vaddr, vtmp, nl_mask, srdreg=SWS):
    uid[0] += 1
    L = f"poll{uid[0]}"
    a(f"""s_mov_b32 s60, 0
          s_mov_b64 exec, {nl_mask}""")
    a.label(L)
    a(f"""buffer_load_dword v{vtmp}, v{vaddr}, s[{srdreg}:{srdreg+3}], 0 offen sc1
          s_add_u32 s60, s60, 1
          s_cmp_gt_u32 s60, {SPIN_MAX}
          s_cbranch_scc1 {L}x
          s_waitcnt vmcnt(0)
          v_cmp_ne_u32 vcc, s{sNON}, v{vtmp}
          s_cbranch_vccnz {L}""")
    a.label(L + "x")
    a("s_mov_b64 exec, -1")

def poll_pipe(a, vaddr, vt, nl_mask, gap=2):
    uid[0] += 1
    L = f"pp{uid[0]}"
    ld = lambda k: f"buffer_load_dword v{vt+k}, v{vaddr}, s[{SWS}:{SWS+3}], 0 offen sc1"
    a(f"""s_mov_b32 s60, 0
          s_mov_b64 exec, {nl_mask}
          {ld(0)}
          s_sleep {gap}
          {ld(1)}""")
    a.label(L)
    for k in range(3):
        a(f"""s_sleep {gap}
              {ld((k+2)%3)}
              s_waitcnt vmcnt(2)
              v_cmp_ne_u32 vcc, s{sNON}, v{vt+k}
              s_cbranch_vccz {L}x""")
    a(f"""s_add_u32 s60, s60, 1
          s_cmp_lt_u32 s60, {SPIN_MAX}
          s_cbranch_scc1 {L}""")
    a.label(L + "x")
    a("s_mov_b64 exec, -1")

def poll2(a, va, vt):
    uid[0] += 1
    L = f"pq{uid[0]}"
    a("s_mov_b32 s60, 0")
    a.label(L)
    a(f"""buffer_load_dwordx2 v[{vt}:{vt+1}], v{va}, s[{SWS}:{SWS+3}], 0 offen sc1
          s_add_u32 s60, s60, 1
          s_cmp_gt_u32 s60, {SPIN_MAX}
          s_cbranch_scc1 {L}x
          s_waitcnt vmcnt(0)
          v_cmp_ne_u32 vcc, s{sNON}, v{vt}
          v_cmp_ne_u32 s[4:5], s{sNON}, v{vt+1}
          s_or_b64 vcc, vcc, s[4:5]
          s_cbranch_vccnz {L}""")
    a.label(L + "x")

def publish(a, soff, vtmp, cnt=0, flav=None):
    if FULLF:
        a(f"""v_mov_b32 v{vtmp}, s{sNON}
              v_mov_b32 v{vtmp+1}, s{sNON}
              s_waitcnt vmcnt({cnt})
              s_mov_b64 exec, 0xffff
              buffer_store_dwordx2 v[{vtmp}:{vtmp+1}], v166, s[{SWS}:{SWS+3}], s{soff} offen {ST if flav is None else flav}
              s_mov_b64 exec, -1""")
        return
    a(f"""s_waitcnt vmcnt({cnt})
          v_mov_b32 v{vtmp}, s{sNON}
          s_mov_b64 exec, 1
          buffer_store_dword v{vtmp}, off, s[{SWS}:{SWS+3}], s{soff} {ST if flav is None else flav}
          s_mov_b64 exec, -1""")

def nonce_wait(a, vtmp, first_loaded):
    uid[0] += 1
    L = f"non{uid[0]}"
    a("s_mov_b32 s60, 0")
    if first_loaded:
        a(f"s_branch {L}c")
    a.label(L)
    a(f"""buffer_load_dword v{vtmp}, off, s[56:59], 0 sc1
          s_waitcnt vmcnt(0)""")
    a.label(L + "c")
    a(f"""v_readfirstlane_b32 s{sNON}, v{vtmp}
          s_add_u32 s60, s60, 1
          s_cmp_gt_u32 s60, {SPIN_MAX}
          s_cbranch_scc1 {L}x
          s_cmp_eq_u32 s{sNON}, 0
          s_cbranch_scc1 {L}""")
    a.label(L + "x")

def diag_mask(r):
    g, i = r // 4, r % 4
    return (0xffffffff << (8*g+i)) & 0xffffffff, (0xffffffff << (8*g+i+4)) & 0xffffffff

MODE = sys.argv[sys.argv.index("--mode")+1] if "--mode" in sys.argv else "auto"
A2F = opt("--a2st", "").replace("+", " ")
OPF = opt("--opst", "").replace("+", " ")
XR, WR, WSL = 0, 65536, 24576
NS = opt('--ns', 3)
QSLOT = [WR + 2*WSL, WR, WR + 3*WSL, WR + WSL] if NS == 3 else [WR + k*WSL for k in range(4)]
UPN = opt('--upn', 1)
PUBU = opt('--pubu', 0)
Q_BASE = 81920
WO_BASE = 98304
HSTR = 20480
UE = '--noue' not in sys.argv
ALIGN = '--noalign' not in sys.argv
OWNF = WR + WSL + 16384 + 4096
MST = WR + 2*WSL
B11E = '--b11e' in sys.argv
NONW = 163840 - 1024
OWNB = opt('--ownb', 1)
KVF = 90112
UF = 64
sX = sR

def gen():
    a = Asm()
    a.L += [f".globl {KN}", ".p2align 8", f".type {KN},@function"]
    a.label(KN)
    a(f"""s_cmp_ge_u32 s2, 256
          s_cbranch_scc1 L_end
          s_load_dwordx16 s[64:79], s[0:1], 0
          s_load_dwordx4 s[80:83], s[0:1], 64
          s_load_dwordx2 s[84:85], s[0:1], 80
          v_lshrrev_b32 v1, 6, v0
          v_and_b32 v0, 63, v0
          s_and_b32 s{sX}, s2, 7
          v_readfirstlane_b32 s{sW}, v1
          s_lshr_b32 s{sJ}, s2, 3
          s_lshl_b32 s3, s{sX}, 2
          s_and_b32 s4, s{sJ}, 3
          s_add_u32 s{sTB}, s3, s4
          s_lshr_b32 s{sHG}, s2, 5
          s_xor_b32 s{sHG}, s{sHG}, {opt("--hgx", 0)}""")
    if FULLF: a("v_lshlrev_b32 v166, 3, v0")
    if STAMP: a(f"v_mov_b32 v{VST}, 0")
    stamp(a, 0)
    a(f"""s_cmp_lt_u32 s{sW}, 8
          s_cbranch_scc1 L_consumer""")
    sQO, sF2, sPTV = 12, 13, 14
    def get_tag(vt):
        a(f"""v_mov_b32 v{vt}, {NONW}
              ds_read_b32 v{vt}, v{vt}
              s_waitcnt lgkmcnt(0)
              v_readfirstlane_b32 s{sNON}, v{vt}
              s_nop 1""")
    def pt_load():
        if MODE == "auto":
            a(f"""v_and_b32 v147, 31, v0
                  s_lshl_b32 s3, s{sX}, 7
                  s_add_u32 s3, s3, {WS_PT}
                  v_lshl_add_u32 v147, v147, 2, s3
                  buffer_load_dword v148, v147, s[{SWS}:{SWS+3}], 0 offen sc1""")
    sLW, sROT, sSOX, sSOW, sMX, sMW, sTY = 23, 15, 28, 29, 30, 31, 27
    SX, SWD, SAX = 36, 40, 48
    SWOD, SOUT = 44, 40
    sC0 = 24
    XO, WO_, XA1 = 8, 10, 14
    sRA, sAX = 21, 25
    a(f"""s_sub_u32 s{sLW}, s{sW}, 8
          s_lshl_b32 s3, s{sTB}, 2
          s_add_u32 s3, s3, s{sLW}
          s_lshl_b32 s3, s3, 14                    ; (64tb + 16lw)*1024
          v_lshrrev_b32 v1, 3, v0
          v_and_b32 v2, 7, v0
          v_lshrrev_b32 v3, 4, v0
          v_xor_b32 v4, v3, v2
          v_xor_b32 v5, 4, v4
          v_lshlrev_b32 v4, 4, v4
          v_lshlrev_b32 v5, 4, v5
          v_lshl_add_u32 v6, v1, 10, s3
          v_add_u32 v{XO}, v6, v4
          v_add3_u32 v{XO+1}, v6, v5, s4
          v_and_b32 v6, 1, v3
          v_lshlrev_b32 v6, 2, v6
          v_xor_b32 v6, v6, v2
          s_lshl_b32 s3, s{sHG}, 7
          v_lshl_add_u32 v6, v6, 4, s3
          s_and_b32 s3, s{sLW}, 1
          s_lshl_b32 s3, s3, 5
          v_add_u32 v7, s3, v1
          s_movk_i32 s3, 3072
          v_mad_u32_u24 v{WO_}, v7, s3, v6""".replace("v_add3_u32 v9, v6, v5, s4", "v_add_u32 v9, v6, v5\n          v_add_u32 v9, 8192, v9"))
    for jw in range(1, 4): a(f"v_add_u32 v{WO_+jw}, {8*3072*jw}, v{WO_}")
    a(f"""s_and_b32 s3, s{sJ}, 3
          s_lshl_b32 s3, s3, 1
          s_add_u32 s3, s3, s{sHG}
          s_add_u32 s3, s3, s{sX}
          s_and_b32 s{sROT}, s3, {opt('--rmask', 4)}
          s_lshr_b32 s{sTY}, s{sLW}, 1
          s_lshl_b32 s{sTY}, s{sTY}, 10
          s_add_u32 s{sTY}, s{sTY}, 1024
          s_lshl_b32 s{sSOX}, s{sROT}, 7
          s_mul_i32 s{sSOW}, s{sROT}, {64*3072}
          s_add_u32 s{sSOW}, s{sSOW}, s{sTY}
          s_lshl_b32 s{sMX}, s{sLW}, 11
          s_lshl_b32 s{sMW}, s{sLW}, 12
          s_waitcnt lgkmcnt(0)""")
    srd(a, SX, kBX, 0x200000)
    srd(a, SWD, kWQ, 0x180000)
    stamp(a, 1)
    def dma(sm0, m0off, v, S, so):
        a(f"""s_add_u32 m0, s{sm0}, {m0off}
              s_nop 0
              buffer_load_dwordx4 v{v}, s[{S}:{S+3}], s{so} offen lds""")
    def issue(st):
        if st < 8:
            for j in range(2): dma(sMX, XR + st*8192 + j*1024, XO+j, SX, sSOX)
        base = WR + (st % NS)*WSL if st < 8 else QSLOT[st-8]
        for j in range(4): dma(sMW, base + j*1024, WO_+j, SWD, sSOW)
        if st == 0:
            a(f"""; A_x rows: pi = 8*(x>>1) + (j&7) ; p = lw>>1, s1 = 16*(lw&1) + 8j + (i>>3)
          s_lshl_b32 s3, s{sTB}, 1
          s_lshr_b32 s4, s{sLW}, 1
          s_add_u32 s3, s3, s4
          s_lshl_b32 s3, s3, 10
          s_and_b32 s4, s{sLW}, 1
          s_lshl_b32 s4, s4, 20
          s_add_u32 s3, s3, s4
          v_lshl_add_u32 v6, v1, {10 if '--xcont' in sys.argv else 16}, s3
          v_add_u32 v{XA1}, v6, v4
          v_add_u32 v{XA1+1}, v6, v5
          v_add_u32 v{XA1+1}, {8*1024 if '--xcont' in sys.argv else 8*65536}, v{XA1+1}
          s_lshr_b32 s3, s{sJ}, 2
          s_and_b32 s{sRA}, s3, {opt('--amask', 4)}
          s_lshl_b32 s{sAX}, s{sRA}, 7""")
            srd(a, SAX, kAX, 0x200000)
        if st < 8:
            for j in range(2): dma(sMX, base + 16384 + j*1024, XO+j if '--xsame' in sys.argv else XA1+j, SX if '--xsame' in sys.argv else SAX, sSOX if '--xsame' in sys.argv else sAX)
        if st < 7:
            a(f"""s_add_u32 s{sROT}, s{sROT}, 1
                  s_and_b32 s{sROT}, s{sROT}, 7
                  s_lshl_b32 s{sSOX}, s{sROT}, 7
                  s_mul_i32 s{sSOW}, s{sROT}, {64*3072}
                  s_add_u32 s{sSOW}, s{sSOW}, s{sTY}
                  s_add_u32 s{sAX}, s{sAX}, 128
                  s_and_b32 s{sAX}, s{sAX}, 1023""")
        elif st < 11:
            a(f"s_add_u32 s{sROT}, s{sROT}, 2")
            a(f"""s_and_b32 s{sROT}, s{sROT}, 7
                  s_mul_i32 s{sSOW}, s{sROT}, {64*3072}""")
    issue(0)
    srd(a, SWS, kWS, 0x1000000)
    srd(a, 56, kDBG, 256)
    a(f"""          ; wo voffset: (128lw + (i>>3))*1024 + hg*128 + ((i&7) ^ (((i>>4)&1)<<2))*16
          v_and_b32 v6, 1, v3
          v_lshlrev_b32 v6, 2, v6
          v_xor_b32 v6, v6, v2
          s_lshl_b32 s3, s{sLW}, 17
          s_lshl_b32 s4, s{sHG}, 7
          s_add_u32 s3, s3, s4
          v_lshl_add_u32 v6, v6, 4, s3
          v_lshl_add_u32 v19, v1, 10, v6
          v_lshrrev_b32 v4, 1, v0
          v_add_u32 v4, s{sTB}, v4
          v_subrev_u32 v4, 4, v4
          v_and_b32 v5, 3, v4
          v_bfe_u32 v4, v4, 2, 3
          v_lshl_add_u32 v4, v5, 3, v4
          s_lshr_b32 s4, s2, 5
          s_lshl_b32 s4, s4, 12
          s_and_b32 s5, s{sLW}, 2
          s_lshl_b32 s5, s5, 2
          s_add_u32 s4, s4, s5
          v_lshl_add_u32 v4, v4, 7, s4
          v_and_b32 v5, 1, v0
          v_lshl_add_u32 v4, v5, 2, v4
          v_add_u32 v16, {WS_F1}, v4
          v_lshlrev_b32 v1, 4, v0
          s_lshl_b32 s9, s{sHG}, 2
          s_add_u32 s9, s9, s{sLW}
          s_lshl_b32 s5, s{sTB}, 11
          s_lshl_b32 s6, s9, 16
          s_add_u32 s10, s5, s6
          s_add_u32 s5, s10, {WS_O}
          v_lshl_add_u32 v24, v0, 7, s5
          s_lshl_b32 s4, s{sTB}, 6
          s_lshl_b32 s5, s{sLW}, 3
          s_add_u32 s4, s4, s5
          v_bfe_u32 v4, v0, 1, 3
          v_and_b32 v5, 1, v0
          v_lshl_add_u32 v4, v5, 5, v4
          v_add_u32 v4, s4, v4
          v_lshlrev_b32 v4, 2, v4
          v_add_u32 v25, {WS_F2}, v4
          s_lshl_b32 s5, s{sLW}, 19
          s_lshl_b32 s6, s{sTB}, 11
          s_add_u32 s5, s5, s6
          s_add_u32 s13, s5, {WS_O}""")
    MF, A2 = 96, 128
    sPF, sWB, sIH = 52, 54, 55
    a(f"""s_lshl_b32 s4, s2, 1
          s_lshr_b32 s5, s{sLW}, 1
          s_add_u32 s4, s4, s5
          s_mul_i32 s4, s4, 3072
          s_and_b32 s5, s{sLW}, 1
          s_lshl_b32 s5, s5, 9
          s_add_u32 s5, s5, s4
          s_add_u32 s{sPF}, s{kWQ}, s5
          s_addc_u32 s{sPF+1}, s{kWQ+1}, 0
          s_mov_b32 s{sIH}, 0
          s_mov_b32 s{sWB}, {WR + 2*WSL}
          s_add_u32 s11, s{sMX}, {XR + 2*8192}
          s_getreg_b32 s{sPTV}, hwreg(HW_REG_XCC_ID, 0, 16)
          s_lshl_b32 s{sPTV}, s{sPTV}, 8""")
    issue(1)
    def prefetch4():
        if "--nopf" in sys.argv: return
        a(f"""s_sub_u32 s3, s{sIH}, {opt("--pf0", 2)}
              s_cmp_ge_u32 s3, 4
              s_cbranch_scc1 L_hpf""")
        for k in range(4): a(f"s_load_dword s61, s[{sPF}:{sPF+1}], {64*k}")
        a(f"""s_add_u32 s{sPF}, s{sPF}, 256
              s_addc_u32 s{sPF+1}, s{sPF+1}, 0
              s_cmp_lg_u32 s3, 1
              s_cbranch_scc1 L_hpf
              s_lshl_b32 s4, s2, 2
              s_add_u32 s4, s4, s{sLW}
              s_lshl_b32 s5, s4, 9
              s_add_u32 s{sPF}, s{kWO}, s5
              s_addc_u32 s{sPF+1}, s{kWO+1}, 0""")
        a.label("L_hpf")
    stamp(a, 25)
    if ALIGN: a.L.append(".p2align 6")
    a.label("L_hl")
    a("s_waitcnt vmcnt(8)")
    if STAMP and "--lst" in sys.argv:
        a(f"""s_memrealtime s[96:97]
              s_add_u32 s3, s{sIH}, 2
              s_waitcnt lgkmcnt(0)
              v_writelane_b32 v{VST}, s96, s3""".replace("v_writelane_b32 v167, s96, s3", "s_mov_b32 m0, s3\nv_writelane_b32 v167, s96, m0"))
    a(f"""s_barrier
          s_add_u32 s4, s{sMW}, s{sWB}
          s_add_u32 s5, s{sMX}, s{sWB}""")
    for j in range(2): dma(11, j*1024, XO+j, SX, sSOX)
    for j in range(4): dma(4, j*1024, WO_+j, SWD, sSOW)
    for j in range(2): dma(5, 16384 + j*1024, XA1+j, SAX, sAX)
    prefetch4()
    a(f"""s_add_u32 s11, s11, 8192
          s_add_u32 s{sWB}, s{sWB}, {WSL}
          s_cmp_eq_u32 s{sWB}, {WR + 3*WSL}
          s_cselect_b32 s{sWB}, {WR}, s{sWB}
          s_add_u32 s{sROT}, s{sROT}, 1
          s_and_b32 s{sROT}, s{sROT}, 7
          s_lshl_b32 s{sSOX}, s{sROT}, 7
          s_mul_i32 s{sSOW}, s{sROT}, {64*3072}
          s_add_u32 s{sSOW}, s{sSOW}, s{sTY}
          s_add_u32 s{sAX}, s{sAX}, 128
          s_and_b32 s{sAX}, s{sAX}, 1023
          s_add_u32 s{sIH}, s{sIH}, 1
""")
    a(f"""s_cmp_lt_u32 s{sIH}, 6
          s_cbranch_scc1 L_hl
          s_lshr_b32 s3, s{sLW}, 1
          s_add_u32 s{sROT}, s{sROT}, s3
          s_and_b32 s{sROT}, s{sROT}, 7
          s_mul_i32 s{sSOW}, s{sROT}, {64*3072}
          s_cmp_lg_u32 s{sLW}, 0
          s_cbranch_scc1 L_hn0
          buffer_load_dword v18, off, s[56:59], 0 sc1
          s_waitcnt vmcnt(9)
          s_branch L_hn1""")
    a.label("L_hn0")
    a("s_waitcnt vmcnt(8)")
    a.label("L_hn1")
    a("s_barrier")
    issue(8)
    a(f"""s_cmp_lg_u32 s{sLW}, 0
          s_cbranch_scc1 L_hn2
          s_waitcnt vmcnt(5)
          s_branch L_hn3""")
    a.label("L_hn2")
    a("s_waitcnt vmcnt(4)")
    a.label("L_hn3")
    stamp(a, 9)
    a("s_barrier")
    issue(9); issue(10)
    a(f"""s_waitcnt vmcnt(8)
          s_cmp_lg_u32 s{sLW}, 0
          s_cbranch_scc1 L_hp2""")
    nonce_wait(a, 18, True)
    a(f"""v_mov_b32 v6, {NONW}
          v_mov_b32 v7, s{sNON}
          ds_write_b32 v6, v7""")
    if MODE == "auto":
        a(f"""s_xor_b32 s3, s{sPTV}, s{sNON}
              v_mov_b32 v18, s3
              s_lshl_b32 s3, s{sX}, 5
              s_add_u32 s3, s3, s{sJ}
              s_lshl_b32 s3, s3, 2
              s_add_u32 s3, s3, {WS_PT}
              s_mov_b64 exec, 1
              buffer_store_dword v18, off, s[{SWS}:{SWS+3}], s3
              s_mov_b64 exec, -1""")
    a("s_waitcnt lgkmcnt(0)")
    a.label("L_hp2")
    stamp(a, 20)
    a("s_barrier")
    issue(11)
    get_tag(6)
    srd(a, SWOD, kWO, 0x80000)
    srd(a, SOUT, kOUT, 0x400000)
    a(f"""; A2 task: tc = 2x + (j&1), cr16 = j>>1, sigma = w&1, nt = (w>>1)&1
          s_lshl_b32 s6, s{sX}, 1
          s_and_b32 s4, s{sJ}, 1
          s_add_u32 s6, s6, s4                    ; tc
          s_lshr_b32 s7, s{sJ}, 1                 ; cr16
          s_lshl_b32 s{sC0}, s7, 5
          s_lshr_b32 s4, s6, 2
          s_lshl_b32 s4, s4, 3
          s_and_b32 s5, s6, 3
          s_add_u32 s4, s4, s5
          s_and_b32 s5, s{sW}, 1
          s_lshl_b32 s5, s5, 2
          s_add_u32 s5, s4, s5                    ; t1 source
          s_sub_u32 s4, 32, s5
          s_and_b32 s4, s4, 31
          s_cmp_lt_u32 s2, 128
          s_cselect_b32 s11, s5, s4
          s_cselect_b64 vcc, -1, 0
          v_and_b32 v45, 31, v0
          v_lshl_add_u32 v20, v45, 5, s11""")
    a(f"""v_lshrrev_b32 v47, 5, v0
          v_and_b32 v45, 0x13, v0
          v_bfe_u32 v46, v0, 2, 1
          v_lshl_or_b32 v45, v46, 3, v45
          v_bfe_u32 v46, v0, 3, 1
          v_lshl_or_b32 v45, v46, 2, v45
          v_add_u32 v45, s{sC0}, v45                ; c
          v_sub_u32 v46, 512, v45
          v_cndmask_b32 v45, v46, v45, vcc           ; e
          s_mul_i32 s4, s6, {U_ROW}
          s_and_b32 s5, s{sW}, 1
          s_lshl_b32 s5, s5, 3
          s_add_u32 s4, s4, s5
          s_add_u32 s4, s4, {WS_U}
          v_lshl_add_u32 v45, v45, 4, s4
          s_mov_b32 s5, {16*U_GP}
          v_mad_u32_u24 v22, v47, s5, v45           ; U address
          s_sub_u32 s5, 15, s7
          s_cmp_lt_u32 s2, 128
          s_cselect_b32 s4, s7, s5                ; e block b
          s_cselect_b32 s5, 0, 1
          v_mul_u32_u24 v45, s5, v47
          v_add_u32 v45, s4, v45
          v_and_b32 v45, 7, v45
          v_and_b32 v46, 31, v0
          v_lshlrev_b32 v46, 3, v46
          v_lshl_add_u32 v45, v45, 8, v46
          v_add_u32 v21, {WS_F3}, v45""")
    NT = 3 if MODE == "auto" else 1
    a(f"""s_sub_u32 s3, 4, s{sTB}
          s_max_i32 s3, s3, 0
          s_lshl_b32 s4, s3, 1
          s_lshl_b32 s6, 0xff, s4
          s_and_b32 s6, s6, 0xff
          s_mov_b32 s7, 0
          s_mul_i32 s8, s{sLW}, {HSTR}
          s_add_u32 s8, s8, 6144
          s_add_u32 s10, s10, {WS_K - 2048}
          s_lshl_b32 s30, s{sLW}, 14
          v_mov_b32 v2, 0x7ffffff0
          s_waitcnt vmcnt(8) lgkmcnt(0)
          s_barrier""")
    a(f"""s_waitcnt vmcnt(4)
          s_barrier
          s_waitcnt vmcnt(0)""")
    stamp(a, 23)
    a(f"""s_barrier
          s_mov_b64 exec, s[6:7]
          s_cbranch_execz L_kv0
          buffer_load_dword v5, v16, s[{SWS}:{SWS+3}], 0 offen sc1
          s_mov_b64 exec, -1
          s_barrier
          s_mov_b64 exec, s[6:7]
          s_waitcnt vmcnt(0)
          v_cmp_ne_u32 vcc, s{sNON}, v5
          s_mov_b64 exec, -1
          s_cbranch_vccz L_kv1""")
    poll(a, 16, 5, "s[6:7]")
    a("s_branch L_kv1")
    a.label("L_kv0")
    a("s_mov_b64 exec, -1\ns_barrier")
    a.label("L_kv1")
    stamp(a, 10)
    def kv_grp(g):
        a(f"""s_cmp_gt_u32 s{sTB}, {g}
              s_cbranch_scc1 L_kvr{g}
              v_mov_b32 v3, v2
              s_mov_b32 s10, {2048*g}""")
        a.label(f"L_kvr{g}")
        a(f"""s_sub_u32 m0, s8, {2048*g}
              s_sub_u32 s4, s10, {2048*g}
              buffer_load_dwordx4 v3, s[{SWS}:{SWS+3}], s4 offen {KVLD} lds
              buffer_load_dwordx4 v3, s[{SWS}:{SWS+3}], s4 offen offset:1024 {KVLD} lds
              s_add_u32 m0, m0, 10240
              s_add_u32 s4, s4, {WS_V - WS_K}
              buffer_load_dwordx4 v3, s[{SWS}:{SWS+3}], s4 offen {KVLD} lds
              buffer_load_dwordx4 v3, s[{SWS}:{SWS+3}], s4 offen offset:1024 {KVLD} lds""")
    KV1 = opt("--kv1", 3)
    a("v_mov_b32 v3, v1")
    for g in range(KV1): kv_grp(g)
    def wo_grp(g):
        a(f"""s_add_u32 s3, s{sJ}, {g}
              s_and_b32 s3, s3, 3
              s_lshl_b32 s4, s3, 12
              s_add_u32 s4, s4, s30
              s_add_u32 s4, s4, {WO_BASE}
              s_lshl_b32 s5, s3, 15""")
        for jj in range(4):
            a(f"""s_add_u32 m0, s4, {jj*1024}
                  s_add_u32 s6, s5, {jj*8192}
                  buffer_load_dwordx4 v19, s[{SWOD}:{SWOD+3}], s6 offen lds""")
    a(f"""s_lshl_b32 s3, s{sLW}, 2
          s_add_u32 s3, s3, {KVF}
          v_mov_b32 v6, s3
          v_mov_b32 v7, 0
          ds_write_b32 v6, v7""")
    a(f"""s_and_b32 s3, s{sLW}, 1
          s_lshl_b32 s3, s3, 13
          s_add_u32 s3, s3, {MST}
          v_add_u32 v44, s3, v1""")
    for js in range(8): a(f"ds_read_b128 {vr(MF+4*js,4)}, v44 offset:{js*1024}")
    a("v_mov_b32 v7, 1\ns_waitcnt lgkmcnt(0)")
    a(f"s_waitcnt vmcnt({4*KV1-4})")
    stamp(a, 11)
    a("s_barrier")
    stamp(a, 12)
    for g in range(KV1, 4): kv_grp(g)
    a(f"""s_waitcnt vmcnt(8)
          s_barrier
          buffer_load_dwordx2 v[4:5], v21, s[{SWS}:{SWS+3}], 0 offen sc1""")
    if MODE == "auto":
        a(f"""s_mov_b64 exec, 0xffff
              buffer_load_dword v27, v24, s[{SWS}:{SWS+3}], 0 offen
              buffer_load_dword v26, v25, s[{SWS}:{SWS+3}], 0 offen sc1
              s_mov_b64 exec, -1""")
    a(f"""s_waitcnt vmcnt({NT + 4})
          ds_write_b32 v6, v7
          v_mov_b32 v7, 2""")
    wo_grp(0)
    a(f"""s_waitcnt vmcnt({NT + 4})
          ds_write_b32 v6, v7""")
    stamp(a, 21)
    for g in range(1, 4): wo_grp(g)
    a(f"""s_cmp_ge_u32 s{sLW}, 2
          s_cbranch_scc1 L_nou
          s_waitcnt vmcnt(16)
          v_cmp_ne_u32 vcc, s{sNON}, v4
          v_cmp_ne_u32 s[4:5], s{sNON}, v5
          s_or_b64 vcc, vcc, s[4:5]
          s_cbranch_vccz L_uok""")
    poll2(a, 21, 4)
    a.label("L_uok")
    stamp(a, 26)
    for js in range(8):
        for b in range(2):
            a(f"""s_mov_b32 s4, {(2*js + b)*U_GP}
                  buffer_load_dwordx2 {vr(UF+4*js+2*b,2)}, v22, s[{SWS}:{SWS+3}], s4 offen {LD}""")
    a(f"""v_lshrrev_b32 v3, 5, v0
          v_lshlrev_b32 v10, 11, v20
          v_lshl_add_u32 v10, v3, 4, v10
          s_lshl_b32 s4, s{sC0}, 1
          v_add_u32 v10, s4, v10""")
    stamp(a, 27)
    a("s_waitcnt vmcnt(16)\ns_branch L_nou2")
    a.label("L_nou")
    a("s_waitcnt vmcnt(0)")
    a.label("L_nou2")
    def a2_half(k, L):
        a(f"""s_cmp_ge_u32 s{sLW}, 2
              s_cbranch_scc1 {L}""")
        if k:
            a("s_mov_b32 s3, 0x80008000")
            for t in range(16): a(f"v_xor_b32 v{MF+2*t+1}, s3, v{MF+2*t+1}")
            for t in range(8): a(f"v_cvt_pk_bf16_f32 v{44+t}, v{A2+2*t}, v{A2+2*t+1}")
        for js in range(8):
            a(f"{MFMA} {vr(A2+16*k,16)}, {vr(UF+4*js,4)}, {vr(MF+4*js,4)}, {'0' if js == 0 else vr(A2+16*k,16)}")
        a.label(L)
    a("s_barrier")
    stamp(a, 14)
    def o_fetch():
        a(f"""s_lshl_b32 s4, s8, 13
              s_add_u32 s4, s4, s30
              s_lshl_b32 s5, s8, 18
              s_add_u32 s5, s5, s13""")
        for j in range(4):
            a(f"""s_add_u32 m0, s4, {j*2048}
                  s_add_u32 s7, s5, {j*65536}
                  buffer_load_dwordx4 v1, s[{SWS}:{SWS+3}], s7 offen {LD} lds
                  buffer_load_dwordx4 v1, s[{SWS}:{SWS+3}], s7 offen offset:1024 {LD} lds""")
    a(f"""s_mov_b32 s60, 0
          s_mov_b32 s8, 0
          s_mov_b32 s9, 1
          s_mov_b64 exec, 0xffff
          buffer_load_dword v5, v25, s[{SWS}:{SWS+3}], 0 offen sc1
          s_mov_b64 exec, -1
          s_waitcnt vmcnt(1)""")
    a2_half(0, "L_h0")
    a("s_mov_b64 exec, 0xffff\ns_branch L_opw")
    a.label("L_opl")
    a(f"""buffer_load_dword v5, v25, s[{SWS}:{SWS+3}], 0 offen sc1
          s_add_u32 s60, s60, 1
          s_cmp_gt_u32 s60, {SPIN_MAX}
          s_cbranch_scc1 L_opx""")
    a.label("L_opw")
    a(f"""s_waitcnt vmcnt(0)
          v_cmp_ne_u32 vcc, s{sNON}, v5
          s_and_b32 s4, vcc_lo, 0xff
          s_and_b32 s9, vcc_lo, 0xff00
          s_cmp_lg_u32 s4, 0
          s_cbranch_scc1 L_opl""")
    a.label("L_opx")
    a("s_mov_b64 exec, -1")
    o_fetch()
    a(f"""s_mov_b32 s8, 1
          s_cmp_lg_u32 s9, 0
          s_cbranch_scc1 L_op2""")
    o_fetch()
    a2_half(1, "L_h1a")
    a("""s_waitcnt vmcnt(8)
         s_barrier
         s_branch L_op3""")
    a.label("L_op2")
    a(f"""s_lshl_b32 s3, s8, 3
          s_lshl_b32 s10, 0xff, s3
          s_mov_b32 s11, 0""")
    a2_half(1, "L_h1b")
    a("s_waitcnt vmcnt(0)\ns_barrier")
    poll(a, 25, 5, "s[10:11]")
    o_fetch()
    a.label("L_op3")
    stamp(a, 15)
    a("s_waitcnt vmcnt(0)\ns_barrier")
    a(f"""s_cmp_ge_u32 s{sLW}, 2
          s_cbranch_scc1 L_h2
          s_mov_b32 s3, {1024*2048}""")
    for mm in range(2):
        a(f"buffer_store_dwordx4 {vr(44+4*mm,4)}, v10, s[{SOUT}:{SOUT+3}], 0 offen offset:{32*mm} {A2F}")
    a("s_nop 7")
    for t in range(8): a(f"v_cvt_pk_bf16_f32 v{52+t}, v{A2+16+2*t}, v{A2+16+2*t+1}")
    for mm in range(2):
        a(f"buffer_store_dwordx4 {vr(52+4*mm,4)}, v10, s[{SOUT}:{SOUT+3}], s3 offen offset:{32*mm} {A2F}")
    a.label("L_h2")
    stamp(a, 13)
    stamp_flush(a, 18)
    a("s_endpgm")

    a.label("L_consumer")
    if "--nocpf" not in sys.argv:
        a(f"""s_cmp_lg_u32 s{sW}, 7
              s_cbranch_scc1 L_cpf1
              s_getpc_b64 s[4:5]""")
        a.label("L_cpf0")
        a(f"""s_sub_u32 s4, s4, L_cpf0-{KN}
              s_subb_u32 s5, s5, 0
              s_lshl_b32 s3, s{sJ}, 3
              v_add_u32 v1, s3, v0
              v_lshlrev_b32 v1, 7, v1
              v_cmp_gt_u32 vcc, L_last_insn-{KN}, v1
              s_and_b64 exec, vcc, 0xff
              s_cbranch_execz L_cpf2
              v_mov_b32 v3, s5
              v_add_co_u32 v2, vcc, s4, v1
              s_nop 1
              v_addc_co_u32 v3, vcc, 0, v3, vcc
              global_load_dword v165, v[2:3], off""")
        a.label("L_cpf2")
        a("s_mov_b64 exec, -1")
        a.label("L_cpf1")
    sIT, sDEL, sSL = 25, 26, 30
    sMASK = 28
    XA, WA = 8, 12
    ACC = 64
    a(f"""v_and_b32 v1, 31, v0
          v_lshrrev_b32 v2, 5, v0
          v_bfe_u32 v3, v0, 1, 3
          v_xor_b32 v3, v3, v2
          v_lshlrev_b32 v4, 7, v1
          s_or_b32 s3, s2, s{sW}
          s_cmp_lg_u32 s3, 4
          s_waitcnt lgkmcnt(0)""")
    srd(a, 56, kDBG, 256)
    a(f"""s_cbranch_scc1 L_nonpub
          s_cmp_lg_u32 s2, 0
          s_cbranch_scc1 L_nonpub
          s_memrealtime s[4:5]
          s_waitcnt lgkmcnt(0)
          s_or_b32 s4, s4, 1
          v_mov_b32 v5, s4
          s_mov_b64 exec, 1
          buffer_store_dword v5, off, s[56:59], 0 sc0 sc1
          s_mov_b64 exec, -1""")
    a.label("L_nonpub")
    srd(a, SWS, kWS, 0x1000000)
    if MODE == "auto":
        a(f"""s_cmp_lg_u32 s{sW}, 6
              s_cbranch_scc1 L_ptt
              s_lshl_b32 s3, s{sX}, 7
              s_add_u32 s3, s3, {WS_PT}
              buffer_load_dword v165, off, s[{SWS}:{SWS+3}], s3""")
        a.label("L_ptt")
    srd(a, SOUT, kOUT, 0x400000)
    if "--tlb" in sys.argv:
        srd(a, 44, kWO, 0x80000)
        a(f"""s_cmp_lg_u32 s{sW}, 5
              s_cbranch_scc1 L_tlb
              v_lshlrev_b32 v5, 20, v0
              s_lshl_b32 s3, s2, 7
              s_add_u32 s3, s3, 0x80000
              v_add_u32 v5, s3, v5
              s_mov_b64 exec, 0xffc
              buffer_load_dword v165, v5, s[{SWS}:{SWS+3}], 0 offen sc1
              s_mov_b64 exec, 15
              buffer_load_dword v165, v5, s[{SOUT}:{SOUT+3}], 0 offen
              s_mov_b64 exec, 1
              s_lshl_b32 s3, s2, 7
              buffer_load_dword v165, off, s[44:47], s3
              s_mov_b64 exec, -1""")
        a.label("L_tlb")
    for r in range(16):
        lo, hi = diag_mask(r)
        a(f"s_mov_b32 s{64+2*r}, {lo:#x}\ns_mov_b32 s{65+2*r}, {hi:#x}")
    for kk in range(4):
        a(f"""v_xor_b32 v5, {2*kk}, v3
              v_lshl_add_u32 v{XA+kk}, v5, 4, v4""")
    a(f"""s_getreg_b32 s{sPTV}, hwreg(HW_REG_XCC_ID, 0, 16)
          s_lshl_b32 s{sPTV}, s{sPTV}, 8
          v_bfe_u32 v3, v0, 2, 2
          v_lshl_add_u32 v7, v2, 3, v3             ; 8h + r
          v_lshlrev_b32 v4, 7, v7
          v_bfe_u32 v5, v0, 4, 1
          v_lshlrev_b32 v5, 1, v5
          v_bfe_u32 v6, v0, 1, 1
          v_add_u32 v5, v5, v6
          s_and_b32 s3, s{sW}, 2
          s_lshl_b32 s3, s3, 1
          v_add_u32 v5, s3, v5
          v_bfe_u32 v6, v0, 3, 1
          v_lshlrev_b32 v6, 2, v6
          v_xor_b32 v5, v5, v6
          v_lshl_add_u32 v4, v5, 4, v4
          v_and_b32 v6, 1, v0
          v_lshl_add_u32 v4, v6, 3, v4
          s_cmp_lt_u32 s{sW}, 4
          s_cbranch_scc1 L_kv""")
    sEH, sCA = 24, 25
    XF, AA, AB, WG, TM = 20, 36, 52, 100, 68
    XCH = WR + (7 % NS)*WSL + 16384
    DL, PH, SG, UA, NV, EI, XC = 12, 13, 14, 15, 3, 7, 164
    a(f"""s_and_b32 s3, s{sW}, 2
          s_lshl_b32 s3, s3, 11
          s_add_u32 s3, s3, {WR+16384}""")
    for kk in range(4): a(f"v_add_u32 v{XA+kk}, s3, v{XA+kk}")
    a(f"""s_and_b32 s{sEH}, s{sW}, 1
          s_lshr_b32 s3, s{sJ}, 2                  ; eb
          s_and_b32 s{sCA}, s3, {opt('--amask', 4)}
          s_lshl_b32 s3, s3, 1
          s_add_u32 s6, s3, s{sEH}
          s_lshl_b32 s3, s6, 4
          v_and_b32 v5, 15, v0
          v_add_u32 v{EI}, s3, v5                  ; e
          v_bfe_u32 v6, v0, 4, 1
          v_cvt_f32_u32 v{PH}, v6
          v_mul_f32 v{PH}, 0x3e800000, v{PH}
          s_cmp_eq_u32 s6, 0
          s_cselect_b32 s{sMASK}, 0x10000, 0
          s_mov_b32 s{sMASK+1}, s{sMASK}
          v_mov_b32 v6, 256
          v_cndmask_b32 v{EI}, v{EI}, v6, s[{sMASK}:{sMASK+1}]
          v_cndmask_b32 v{PH}, v{PH}, 0, s[{sMASK}:{sMASK+1}]
          v_cvt_f32_u32 v{DL}, v{EI}
          v_mul_f32 v{DL}, 0x3b000000, v{DL}       ; e/512
          v_and_b32 v6, 1, v0
          v_lshlrev_b32 v6, 31, v6
          v_or_b32 v{SG}, 1.0, v6
          s_mov_b32 s3, s{sTB}                     ; pi
          s_lshr_b32 s4, s6, 1
          s_lshl_b32 s4, s4, 5
          s_add_u32 s4, s4, s3
          s_lshl_b32 s4, s4, 1
          s_add_u32 s4, s4, s{sEH}
          s_lshl_b32 s26, s4, 2
          s_mul_i32 s3, s3, {U_GP}
          s_lshl_b32 s4, s6, 8
          s_add_u32 s3, s3, s4
          s_add_u32 s3, s3, {WS_U}
          v_lshl_add_u32 v5, v5, 4, s3
          v_lshrrev_b32 v6, 4, v0
          s_movk_i32 s4, {U_ROW}
          v_mad_u32_u24 v{UA}, v6, s4, v5
          s_lshl_b32 s3, s{sEH}, 11
          s_add_u32 s3, s3, {XCH}
          v_lshl_add_u32 v{XC}, v0, 4, s3""")
    def genw(c):
        o = [f"""s_add_u32 s3, s{sCA}, {c}
              s_and_b32 s3, s3, 7
              s_lshl_b32 s3, s3, 6
              v_lshl_add_u32 v{TM}, v2, 3, s3
              v_cvt_f32_u32 v{TM}, v{TM}
              v_mul_f32 v{TM}, v{TM}, v{DL}
              v_fract_f32 v{TM}, v{TM}
              v_add_f32 v{TM}, v{TM}, v{PH}"""]
        for kk in range(4):
            t = []
            for j in range(1, 8): t.append(f"v_add_f32 v{TM+j}, v{TM+j-1}, v{DL}")
            for j in range(8): t.append(f"v_cos_f32 v{TM+8+j}, v{TM+j}")
            t.append(f"v_fmamk_f32 v{TM}, v{DL}, 0x41100000, v{TM+7}")
            for j in range(4): t.append(f"v_cvt_pk_bf16_f32 v{WG+16*c+4*kk+j}, v{TM+8+2*j}, v{TM+9+2*j}")
            o.append("\n".join(t))
        return o
    CR, CI, NCI = 68+16, 68+24, WG
    NQ = [4, 16]
    def genc(m, T):
        t = []
        for j in range(8):
            cj = 16*m + (j % 4) + 8*(j // 4)
            t.append(f"""v_mad_u32_u24 v{T+j}, v1, {cj}, v{PH}
                  v_and_b32 v{T+j}, 31, v{T+j}
                  v_cvt_f32_u32 v{T+j}, v{T+j}
                  v_mul_f32 v{T+j}, 0x3d000000, v{T+j}""")
        u = [f"v_cos_f32 v{T+8+j}, v{T+j}" for j in range(8)] + [f"v_sin_f32 v{T+j}, v{T+j}" for j in range(8)] + ["s_nop 0"]
        for j in range(4):
            u.append(f"""v_cvt_pk_bf16_f32 v{CR+4*m+j}, v{T+8+2*j}, v{T+9+2*j}
                  v_cvt_pk_bf16_f32 v{CI+4*m+j}, -v{T+2*j}, -v{T+1+2*j}
                  v_cvt_pk_bf16_f32 v{NQ[m]+j}, v{T+2*j}, v{T+1+2*j}""")
        return ["\n".join(t[:4]), "\n".join(t[4:]), "\n".join(u[:17]), "\n".join(u[17:])]
    def genm(js):
        T, d = TM, 84 + 4*js
        return f"""v_add_f32 v{T}, v18, v17
              v_add_f32 v{T+1}, v{T}, v17
              v_add_f32 v{T+2}, v{T+1}, v17
              v_cos_f32 v{T+4}, v18
              v_cos_f32 v{T+5}, v{T}
              v_cos_f32 v{T+6}, v{T+1}
              v_cos_f32 v{T+7}, v{T+2}
              v_sin_f32 v{T+8}, v18
              v_sin_f32 v{T+9}, v{T}
              v_sin_f32 v{T+10}, v{T+1}
              v_sin_f32 v{T+11}, v{T+2}
              v_add_f32 v18, v{T+2}, v17
              v_cvt_pk_bf16_f32 v{d}, v{T+4}, v{T+8}
              v_cvt_pk_bf16_f32 v{d+1}, v{T+5}, v{T+9}
              v_cvt_pk_bf16_f32 v{d+2}, v{T+6}, v{T+10}
              v_cvt_pk_bf16_f32 v{d+3}, v{T+7}, v{T+11}"""
    mpar = f"""; A2 task: tc = 2x + (j&1), cr16 = j>>1, sigma = w&1, nt = (w>>1)&1
          s_lshl_b32 s6, s{sX}, 1
          s_and_b32 s4, s{sJ}, 1
          s_add_u32 s6, s6, s4                    ; tc
          s_lshr_b32 s7, s{sJ}, 1                 ; cr16
          s_lshl_b32 s10, s7, 5
          s_lshr_b32 s4, s6, 2
          s_lshl_b32 s4, s4, 3
          s_and_b32 s5, s6, 3
          s_add_u32 s4, s4, s5
          s_and_b32 s5, s{sW}, 1
          s_lshl_b32 s5, s5, 2
          s_add_u32 s5, s4, s5                    ; t1 source
          s_sub_u32 s4, 32, s5
          s_and_b32 s4, s4, 31
          s_cmp_lt_u32 s2, 128
          s_cselect_b32 s11, s5, s4
          s_cselect_b64 vcc, -1, 0
          v_and_b32 v{TM+1}, 31, v0
          v_lshl_add_u32 v{TM}, v{TM+1}, 5, s11
          v_lshrrev_b32 v{TM+3}, 5, v0                 ; h
          v_sub_u32 v{TM+2}, 2048, v{TM}
          v_cndmask_b32 v{TM+2}, v{TM+2}, v{TM}, vcc
          v_cvt_f32_u32 v{TM+2}, v{TM+2}
          v_mul_f32 v17, 0x3a000000, v{TM+2}
          v_lshlrev_b32 v{TM+2}, 5, v{TM+3}
          v_cvt_f32_u32 v{TM+2}, v{TM+2}
          v_mul_f32 v18, v17, v{TM+2}"""
    def either(p0, p1):
        if not p0 and not p1: return ""
        uid[0] += 1
        L = f"e{uid[0]}"
        return f"s_cmp_ge_u32 s{sW}, 6\ns_cbranch_scc1 {L}a\n{p0}\ns_branch {L}b\n{L}a:\n{p1}\n{L}b:"
    for c in range(2):
        for x in genw(c): a(x)
    a("s_barrier")
    def rda(g): return f"ds_read_b128 {vr(XF+4*(g % 4),4)}, v{XA+g % 4}" if g < 32 else ""
    a(rda(0)); a(rda(1))
    for st in range(8):
        fill = {0: genw(2), 1: genw(3), 2: genc(0, TM), 3: genc(1, TM)}.get(st, [])
        if st in (0, 1): fill = [fill[0] + "\n" + fill[1]] + fill[2:]
        if st == 1: fill[3] += f"\nv_lshlrev_b32 v{PH}, 2, v2\nv_mul_u32_u24 v{PH}, v{PH}, v1"
        if st == 2: fill = [either(fill[0], mpar), either(fill[1], genm(0)), either(fill[2], genm(1)), either(fill[3], "")]
        if st == 3: fill = [either(fill[0], genm(2)), either(fill[1], genm(3)), either(fill[2], ""), either(fill[3], "")]
        acc = AA if st < 4 else AB
        for kk in range(4):
            g = 4*st + kk
            mm_ = f"{MFMA} {vr(acc,16)}, {vr(XF+4*(g % 4),4)}, {vr(WG+16*(st%4)+4*kk,4)}, {'0' if (st % 4 == 0 and kk == 0) else vr(acc,16)}"
            if kk < 3:
                a("s_waitcnt lgkmcnt(1)")
                a(mm_)
                if kk < 2: a(rda(g+2))
                if fill: a(fill[kk])
            if kk == 2:
                if st < 7:
                    d = WSL if (st+1) % NS else -(NS-1)*WSL
                    a(f"s_mov_b32 s3, {d}")
                    for r in range(4): a(f"v_add_u32 v{XA+r}, s3, v{XA+r}")
                    a("s_waitcnt lgkmcnt(0)\ns_barrier")
                    a(rda(g+2))
                else:
                    a("s_waitcnt lgkmcnt(0)")
            if kk == 3:
                a(mm_); a(rda(g+2))
                if fill: a(fill[3])
    stamp(a, 7)
    PK, SV, RE, IM, D1, D2 = XF, WG+24, WG+32, WG+48, AA, AB
    a("s_nop 11")
    for r in range(16): a(f"v_fma_f32 v{AA+r}, v{AB+r}, v{SG}, v{AA+r}")
    for t in range(8): a(f"v_cvt_pk_bf16_f32 v{PK+t}, v{AA+2*t}, v{AA+2*t+1}")
    a(f"""s_barrier
          s_cmp_lt_u32 s{sW}, 6
          s_cbranch_scc1 L_a1e
          ds_write_b128 v{XC}, {vr(PK,4)}
          ds_write_b128 v{XC}, {vr(PK+4,4)} offset:1024
          v_mov_b32 v{TM}, 0
          v_mov_b32 v{TM+1}, 0
          v_mov_b32 v{TM+2}, 0
          v_mov_b32 v{TM+3}, 0
          v_mov_b32 v{TM+4}, {OWNF}
          ds_write_b128 v{TM+4}, {vr(TM,4)}
          s_waitcnt lgkmcnt(0)
          s_barrier""")
    a(f"""s_and_b32 s3, s{sW}, 1
          s_lshl_b32 s3, s3, 13
          s_add_u32 s3, s3, {MST}
          v_lshl_add_u32 v42, v0, 4, s3""")
    for js in range(4): a(f"ds_write_b128 v42, {vr(84+4*js,4)} offset:{js*1024}")
    for js in range(4, 8):
        a(genm(js))
        a(f"ds_write_b128 v42, {vr(84+4*js,4)} offset:{js*1024}")
    a("""s_barrier
         s_waitcnt lgkmcnt(0)
         s_barrier
         s_barrier
         s_branch L_att""")
    a.label("L_a1e")
    a(f"""s_barrier
          ds_read_b128 {vr(PK+8,4)}, v{XC}
          ds_read_b128 {vr(PK+12,4)}, v{XC} offset:1024
          s_waitcnt lgkmcnt(0)""")
    for t in range(8): a(f"v_permlane16_swap_b32 v{PK+t}, v{PK+8+t}")
    a(f"""s_mov_b32 s6, 0x00010001
          s_mov_b32 s7, 0x00010001
          s_cmp_eq_u32 s{sMASK}, 0
          s_cbranch_scc1 L_nosp1""")
    for t in range(8):
        a(f"v_mov_b32 v{SV+t}, v{PK+8+t}")
        a(f"v_cndmask_b32 v{PK+8+t}, v{PK+8+t}, 0, s[6:7]")
    a.label("L_nosp1")
    a("s_nop 1")
    def step1(aa, bb):
        a(f"{MFMA} {vr(RE,16)}, {vr(CR,4)}, {vr(aa,4)}, 0")
        a(f"{MFMA} {vr(IM,16)}, {vr(CI,4)}, {vr(aa,4)}, 0")
        a(f"{MFMA} {vr(RE,16)}, {vr(CR+4,4)}, {vr(aa+4,4)}, {vr(RE,16)}")
        a(f"{MFMA} {vr(IM,16)}, {vr(CI+4,4)}, {vr(aa+4,4)}, {vr(IM,16)}")
        if bb is not None:
            for m in range(2):
                a(f"{MFMA} {vr(RE,16)}, {vr(NQ[m],4)}, {vr(bb+4*m,4)}, {vr(RE,16)}")
                a(f"{MFMA} {vr(IM,16)}, {vr(CR+4*m,4)}, {vr(bb+4*m,4)}, {vr(IM,16)}")
    def upack(D):
        for r in range(16): a(f"v_cvt_pk_bf16_f32 v{D+r}, v{RE+r}, v{IM+r}")
        for g in range(4):
            d = D + 4*g
            a(f"""v_permlane32_swap_b32 v{d}, v{d+2}
                  v_permlane32_swap_b32 v{d+1}, v{d+3}""")
        for g in range(4):
            d = D + 4*g
            a(f"""v_permlane16_swap_b32 v{d}, v{d+1}
                  v_permlane16_swap_b32 v{d+2}, v{d+3}""")
    def ust(D, off):
        for g in range(4):
            a(f"""s_mov_b32 s4, {4*g*U_ROW + off}
                  buffer_store_dwordx4 {vr(D+4*g,4)}, v{UA}, s[{SWS}:{SWS+3}], s4 offen {ST}""")
    step1(PK, PK+8)
    a("s_nop 11" if UE else "s_barrier\ns_nop 10")
    upack(D1)
    a(f"""s_cmp_eq_u32 s{sMASK}, 0
          s_cbranch_scc1 L_nosp2""")
    step1(SV, None)
    a("s_nop 11")
    upack(D2)
    a.label("L_nosp2")
    stamp(a, 8)
    ust(D1, 0)
    a(f"""s_cmp_eq_u32 s{sMASK}, 0
          s_cbranch_scc1 L_nosp3
          s_mov_b64 exec, s[6:7]""")
    ust(D2, 4096)
    a("s_mov_b64 exec, -1")
    a.label("L_nosp3")
    get_tag(NV)
    a(f"""s_barrier
          s_barrier
          {"s_barrier" if UE else ""}
          s_add_u32 s3, s26, {WS_F3}""")
    publish(a, 3, 6)
    a("s_branch L_att")

    a.label("L_kv")
    FR = 32
    FK = 96
    def X(b, i): return FK + 12*b + 4*i
    def W(b): return FK + 12*b + 8
    a(f"""s_and_b32 s3, s{sW}, 1
          s_lshl_b32 s3, s3, 13
          s_add_u32 s3, s3, {WR}
          v_add_u32 v{WA}, s3, v4""")
    for r in range(32): a(f"v_mov_b32 v{ACC+r}, 0")
    a(f"""s_lshl_b32 s3, s2, 5
          s_add_u32 s3, s3, s{sW}
          s_lshl_b32 s3, s3, 2
          s_add_u32 s31, s3, {WS_F1}
          s_lshl_b32 s3, s{sHG}, 2
          s_and_b32 s4, s{sW}, 2
          s_add_u32 s3, s3, s4
          s_lshl_b32 s3, s3, 16
          s_lshl_b32 s4, s{sTB}, 11
          s_add_u32 s3, s3, s4
          s_add_u32 s3, s3, {WS_K}
          v_lshl_add_u32 v14, v0, 4, s3
          s_add_u32 s3, s3, {WS_V - WS_K}
          v_bfe_u32 v5, v0, 4, 1
          v_lshlrev_b32 v5, 16, v5
          v_lshl_add_u32 v5, v2, 8, v5
          v_and_b32 v6, 15, v0
          v_lshl_add_u32 v5, v6, 4, v5
          v_add_u32 v16, s3, v5
          v_mov_b32 v21, v4
          s_and_b32 s4, s{sW}, 2
          s_mul_i32 s3, s4, {HSTR}
          s_add_u32 s3, s3, 8192
          v_lshl_add_u32 v17, v0, 4, s3
          s_add_u32 s3, s3, 10240
          v_bfe_u32 v5, v0, 4, 1
          v_mul_u32_u24 v5, {HSTR}, v5
          v_lshl_add_u32 v5, v2, 8, v5
          v_lshl_add_u32 v5, v6, 4, v5
          v_add_u32 v18, s3, v5
          s_and_b32 s3, s{sW}, 1
          s_lshl_b32 s3, s3, 12
          s_lshl_b32 s4, s4, 10
          s_add_u32 s3, s3, s4
          s_add_u32 s3, s3, {Q_BASE}
          v_lshl_add_u32 v20, v0, 4, s3
          s_mov_b32 s8, {f2u(QSCALE):#x}
          s_mov_b32 s9, s8""")
    def rd(kk, b):
        return [f"ds_read_b128 {vr(X(b,i),4)}, v{XA+kk} offset:{i*4096}" for i in range(2)] + [f"ds_read_b64_tr_b16 {vr(W(b)+2*q,2)}, v{WA} offset:{kk*2048 + q*512}" for q in range(2)]
    def step(b, variant, r):
        m = []
        for i in range(2):
            A_, B_ = (W(b), X(b,i)) if variant == "K" else (X(b,i), W(b))
            m.append(f"{MFMA} {vr(ACC+16*i,16)}, {vr(A_,4)}, {vr(B_,4)}, {vr(ACC+16*i,16)}")
        for x in [m[0]] + r[:2] + [m[1]] + r[2:]: a(x)
    a(f"""s_mov_b32 s{sIT}, 0
          s_mov_b32 s{sSL}, 0
          s_mov_b32 s27, {WSL}""")
    stamp(a, 1)
    a("s_barrier")
    stamp(a, 2)
    for x in rd(0, 0) + rd(1, 1): a(x)
    a(f"""s_bitcmp1_b32 s{sW}, 0
          s_cbranch_scc1 L_loopV""")
    for variant in ("K", "V"):
        if ALIGN: a.L.append(".p2align 6")
        a.label(f"L_loop{variant}")
        for kk in range(3):
            a("s_waitcnt lgkmcnt(4)")
            step(kk, variant, rd(kk+2, kk+2) if kk < 2 else [])
        a(f"""s_add_u32 s{sSL}, s{sSL}, 1
              s_cmp_eq_u32 s{sSL}, {NS}
              s_cselect_b32 s{sDEL}, {-(NS-1)*WSL}, s27
              s_cselect_b32 s{sSL}, 0, s{sSL}
              v_add_u32 v{WA}, s{sDEL}, v{WA}""")
        for r in range(4): a(f"v_add_u32 v{XA+r}, 8192, v{XA+r}")
        a(f"""s_add_u32 s{sIT}, s{sIT}, 1
              s_cmp_eq_u32 s{sIT}, 8
              s_waitcnt lgkmcnt(0)
              s_cbranch_scc1 L_last{variant}
              s_barrier""")
        for x in rd(0, 0): a(x)
        step(3, variant, rd(1, 1))
        a(f"s_branch L_loop{variant}")
        a.label(f"L_last{variant}")
        step(3, variant, [])
        stamp(a, 3)
        a("s_mov_b32 s4, 65536\ns_nop 9")
        for i in range(2):
            for mm in range(2):
                d = FR + 8*i + 4*mm
                for t in range(4): a(f"v_cvt_pk_bf16_f32 v{d+t}, v{ACC+16*i+8*mm+2*t}, v{ACC+16*i+8*mm+2*t+1}")
                if variant == "K":
                    a(f"buffer_store_dwordx4 {vr(d,4)}, v14, s[{SWS}:{SWS+3}], {'s4' if mm else '0'} offen offset:{i*1024} {ST}")
                else:
                    a(f"buffer_store_dwordx4 {vr(d,4)}, v16, s[{SWS}:{SWS+3}], 0 offen offset:{i*1024+mm*512} {ST}")
        if variant == "K": a("s_branch L_kvdone")
    a.label("L_kvdone")
    stamp(a, 4)
    FQ = 96
    a(f"""s_and_b32 s3, s{sW}, 1
          s_lshl_b32 s3, s3, 12
          s_sub_u32 s3, s3, 65536
          v_add_u32 v{WA}, {QSLOT[0]}, v21""")
    for kk in range(4): a(f"v_add_u32 v{XA+kk}, s3, v{XA+kk}")
    a(f"""v_mov_b32 v19, {NONW}
          s_barrier
          ds_read_b32 v19, v19""")
    if PUBU < 0:
        a(f"s_waitcnt lgkmcnt(0)\nv_readfirstlane_b32 s{sNON}, v19\ns_nop 1")
        publish(a, 31, 6)
        stamp(a, 5)
    def rdq(u, k, b):
        c2, kk = k // 4, k % 4
        f = FQ + 8*b
        return [f"ds_read_b128 {vr(f,4)}, v{XA+kk} offset:{(2*u+c2)*8192}"] + [f"ds_read_b64_tr_b16 {vr(f+4+2*q,2)}, v{WA} offset:{c2*8192 + kk*2048 + q*512}" for q in range(2)]
    NBQ = 4
    for k in range(3):
        for x in rdq(0, k, k): a(x)
    for u in range(4):
        for k in range(8):
            g = 8*u + k
            last = k >= 5
            if k == 5 and u < 3:
                d = QSLOT[u+1] - QSLOT[u]
                if u == PUBU:
                    a(f"v_readfirstlane_b32 s{sNON}, v19\ns_nop 1")
                    publish(a, 31, 6)
                    stamp(a, 5)
                a(f"""s_waitcnt lgkmcnt(0)
                      s_barrier
                      v_add_u32 v{WA}, {d}, v{WA}""")
            nxt = rdq(u, k+3, (g+3) % NBQ) if k < 5 else (rdq(u+1, k-5, (g+3) % NBQ) if u < 3 else [])
            if not (k >= 5 and u < 3) or k > 5 or True:
                outst = 6 if (k < 5 or u < 3) else 3*(7-k)
                if not (k == 5 and u < 3) and not (k in (6, 7) and u < 3): a(f"s_waitcnt lgkmcnt({outst})")
            f = FQ + 8*(g % NBQ)
            a(f"{MFMA} {vr(ACC,16)}, {vr(f+4,4)}, {vr(f,4)}, {'0' if g == 0 else vr(ACC,16)}")
            for x in nxt: a(x)
    a("s_barrier")
    stamp(a, 6)
    a(f"""s_bitcmp1_b32 s{sW}, 0
          s_cbranch_scc1 L_cpv""")
    for i in range(2):
        for mm in range(2): a(f"ds_write_b128 v17, {vr(FR+8*i+4*mm,4)} offset:{mm*HSTR + i*1024}")
    a("s_branch L_cpq")
    a.label("L_cpv")
    for i in range(2):
        for mm in range(2): a(f"ds_write_b128 v18, {vr(FR+8*i+4*mm,4)} offset:{i*1024 + mm*512}")
    a.label("L_cpq")
    a("s_nop 5")
    for t in range(8): a(f"v_pk_mul_f32 {vr(ACC+2*t,2)}, {vr(ACC+2*t,2)}, s[8:9]")
    for t in range(8): a(f"v_cvt_pk_bf16_f32 v{FQ+t}, v{ACC+2*t}, v{ACC+2*t+1}")
    a(f"""ds_write_b128 v20, {vr(FQ,4)}
          ds_write_b128 v20, {vr(FQ+4,4)} offset:1024
          s_lshl_b32 s3, s{sW}, 2
          s_add_u32 s3, s3, {OWNF}
          v_mov_b32 v5, s3
          v_mov_b32 v6, 1
          s_waitcnt lgkmcnt(0)
          ds_write_b32 v5, v6""")

    a.label("L_att")
    QF = 4
    KA, VA_, NINF, MX = 2, 3, 8, 9
    KF, VF, PP, S, O, CN, CD, CF = 12, 24, 40, 48, 80, 96, 112, 128
    S3, P2, MK = 112, 128, 136
    sVM, sNF, sI = 8, 10, 11
    get_tag(5)
    a(f"""s_xor_b32 s{sPTV}, s{sPTV}, s{sNON}
          s_and_b32 s3, s{sW}, 3
          s_lshr_b32 s5, s{sW}, 2
          s_lshl_b32 s4, s{sHG}, 2
          s_add_u32 s{sHD}, s4, s3
          s_lshl_b32 s4, s{sTB}, 1
          s_add_u32 s4, s4, s5                     ; qb
          s_lshl_b32 s{sQO}, s4, 10
          s_lshl_b32 s6, s{sHD}, 16
          s_add_u32 s{sQO}, s{sQO}, s6
          s_min_u32 s{sNF}, s4, 7
          s_lshl_b32 s4, s4, 5
          s_add_u32 s4, s4, s{sHD}
          s_lshl_b32 s4, s4, 2
          s_add_u32 s{sF2}, s4, {WS_F2}
          v_lshlrev_b32 v1, 4, v0
          s_lshl_b32 s4, s{sW}, 10
          s_add_u32 s4, s4, {Q_BASE}
          v_add_u32 v4, s4, v1
          s_lshl_b32 s4, s3, 2
          s_add_u32 s4, s4, {KVF}
          v_mov_b32 v149, s4
          s_mul_i32 s4, s3, {HSTR}
          s_lshl_b32 s5, s5, 10
          s_add_u32 s4, s4, s5
          v_add_u32 v{KA}, s4, v1
          v_lshrrev_b32 v10, 5, v0
          v_and_b32 v11, 15, v0
          v_lshlrev_b32 v11, 4, v11
          v_lshl_add_u32 v11, v10, 8, v11
          s_add_u32 s4, s4, 10240
          v_add_u32 v{VA_}, s4, v11
          v_mov_b32 v{NINF}, 0xff800000
          s_mov_b32 s{sVM}, 0x0000ffff
          s_mov_b32 s{sVM+1}, 0x0000ffff
          s_mov_b32 s6, 0x00110000
          s_mov_b32 s7, 0x00110000
          v_mov_b32 v10, 0x3f803f80""")
    for t in range(16): a(f"v_cndmask_b32 v{VF+t}, 0, v10, s[6:7]")
    a("v_mov_b32 v10, 0xffff\nv_mov_b32 v11, 0xffff0000")
    for t in range(8):
        a(f"""v_cndmask_b32 v{MK+t}, 0, v10, s[{64+4*t}:{65+4*t}]
              v_cndmask_b32 v5, 0, v11, s[{66+4*t}:{67+4*t}]
              v_or_b32 v{MK+t}, v{MK+t}, v5""")
    stamp(a, 11)
    a(f"""v_mov_b32 v5, {OWNF}
          s_mov_b32 s60, 0""")
    a.label("L_ownw")
    a(f"""ds_read_b128 v[12:15], v5
          s_add_u32 s60, s60, 1
          s_cmp_gt_u32 s60, {SPIN_MAX*8}
          s_cbranch_scc1 L_ownx
          s_waitcnt lgkmcnt(0)
          v_and_b32 v12, v12, v13
          v_and_b32 v14, v14, v15
          v_and_b32 v12, v12, v14
          v_cmp_eq_u32 vcc, 0, v12
          s_cbranch_vccnz L_ownw""")
    a.label("L_ownx")
    stamp(a, 12)
    a(f"ds_read_b128 {vr(QF,4)}, v4")
    def kv_wait(lvl):
        uid[0] += 1
        L = f"kw{uid[0]}"
        a("s_mov_b32 s60, 0")
        a.label(L)
        a(f"""ds_read_b32 v11, v149
              s_add_u32 s60, s60, 1
              s_cmp_gt_u32 s60, {SPIN_MAX*8}
              s_cbranch_scc1 {L}x
              s_waitcnt lgkmcnt(0)
              v_readfirstlane_b32 s3, v11
              s_cmp_lt_u32 s3, {lvl}
              s_cbranch_scc1 {L}""")
        a.label(L + "x")
    def masks(val):
        return [f"""v_cndmask_b32 v{CD+r}, v{NINF}, {val}, s[{64+2*r}:{65+2*r}]
                  v_cndmask_b32 v{CF+r}, {val}, v{NINF}, s[{64+2*r}:{65+2*r}]""" for r in range(16)]
    def maxblk(S_, first):
        if first: a(f"v_max_f32 v{MX}, v{S_}, v{S_+1}")
        for t in range(2 if first else 0, 16, 2):
            a(f"v_max3_f32 v{MX}, v{S_+t}, v{S_+t+1}, v{MX}")
    def xhalf_max():
        a(f"""v_mov_b32 v10, v{MX}
              s_nop 1
              v_permlane32_swap_b32 v10, v{MX}
              s_nop 1
              v_max_f32 v{MX}, v{MX}, v10""")
    order = [7, 6, 5, 4, 3, 2, 1, 8, 0]
    def rdK(n): return f"ds_read_b128 {vr(KF+4*(n%3),4)}, v{KA} offset:{order[n]*1024}"
    def rdV(n):
        b = VF + 8*(n % 2)
        return f"""s_mov_b64 exec, s[{sVM}:{sVM+1}]
              ds_read_b128 {vr(b,4)}, v{VA_} offset:{order[n]*1024}
              ds_read_b128 {vr(b+4,4)}, v{VA_} offset:{order[n]*1024+512}
              s_mov_b64 exec, -1"""
    def mS(k, Dd): return f"{MFMA} {vr(Dd,16)}, {vr(KF+4*(k%3),4)}, {vr(QF,4)}, {vr(CN,16)}"
    a("s_setprio 3")
    PTN = opt("--ptn", 1)
    if PTN < 0: pt_load()
    if FORCE_SLOW: a("s_branch L_preslow")
    CI_ = 149
    def fast(first):
        def mSv(k, Dd, tag=''):
            if not first or k == 7: a(mS(k, Dd)); return
            inv = f"{MFMA} {vr(Dd,16)}, {vr(KF+4*(k%3),4)}, {vr(QF,4)}, {vr(CI_+1,16)}"
            if k == 8: a(inv); return
            a(f"""s_cmp_gt_u32 s{sNF}, {k}
                  s_cbranch_scc1 L_fv{k}{tag}
                  {inv}
                  s_branch L_fw{k}{tag}""")
            a.label(f"L_fv{k}{tag}")
            a(mS(k, Dd))
            a.label(f"L_fw{k}{tag}")
        F = int(first)
        if first:
            for r in range(16): a(f"v_mov_b32 v{CI_+1+r}, v{NINF}")
        def standin():
            a(f"""v_max3_f32 v{MX}, v{S+16}, v{S+17}, v{S+18}
                  v_max3_f32 v10, v{S+19}, v{S+20}, v{S+21}
                  v_max3_f32 v11, v{S+22}, v{S+23}, v{S+24}
                  v_max3_f32 v{MX}, v{S+25}, v{S+26}, v{MX}
                  v_max3_f32 v10, v{S+27}, v{S+28}, v10
                  v_max3_f32 v11, v{S+29}, v{S+30}, v11
                  v_max3_f32 v{MX}, v{S+31}, v{MX}, v10
                  v_max_f32 v{MX}, v{MX}, v11""")
            xhalf_max()
            a(f"v_sub_f32 v{CN}, 0xc2700000, v{MX}")
            for r in range(1, 16): a(f"v_mov_b32 v{CN+r}, v{CN}")
        a(f"""s_cmp_lt_u32 s{sW}, 4
              s_cbranch_scc1 L_q0{F}""")
        a(rdK(0)); a(rdV(0))
        a(f"""s_waitcnt lgkmcnt(2)
              {MFMA} {vr(S+16,16)}, {vr(KF,4)}, {vr(QF,4)}, 0
              s_nop 11""")
        standin()
        a("s_nop 1"); a(mS(0, S)); a("s_nop 11")
        for r in range(12): a(f"v_exp_f32 v{S+r}, v{S+r}")
        for t in range(4): a(f"v_cvt_pk_bf16_f32 v{PP+t}, v{S+2*t}, v{S+2*t+1}")
        a(f"""v_exp_f32 v{S+12}, v{S+12}
              s_waitcnt lgkmcnt(0)
              {MFMA} {vr(O,16)}, {vr(VF,4)}, {vr(PP,4)}, 0""")
        for r in range(13, 16): a(f"v_exp_f32 v{S+r}, v{S+r}")
        for t in range(4, 8): a(f"v_cvt_pk_bf16_f32 v{PP+t}, v{S+2*t}, v{S+2*t+1}")
        stamp(a, 30)
        a("s_barrier")
        a(rdK(1)); a("s_barrier"); a(rdK(2)); a(rdV(1))
        a("s_waitcnt lgkmcnt(3)")
        mSv(1, S+16, "b")
        a(f"s_nop 10\ns_branch L_n1{F}")
        a.label(f"L_q0{F}")
        a(f"""ds_read_b128 {vr(KF+8,4)}, v{KA} offset:{8*1024}
              s_waitcnt lgkmcnt(0)
              {MFMA} {vr(S+16,16)}, {vr(KF+8,4)}, {vr(QF,4)}, 0
              s_nop 11""")
        for r in range(16): a(f"v_cndmask_b32 v{S+16+r}, v{NINF}, v{S+16+r}, s[{64+2*r}:{65+2*r}]")
        standin()
        stamp(a, 30)
        a("s_barrier")
        a(rdK(0)); a(rdK(1)); a(rdV(0))
        a("s_waitcnt lgkmcnt(3)")
        mSv(0, S)
        prev = None
        for n in range(8):
            Sn = S + 16*(n % 2); Vn = VF + 8*(n % 2)
            P_ = PP if n % 2 == 0 else P2
            ex = lambda r: a(f"v_exp_f32 v{Sn+r}, v{Sn+r}")
            cv = lambda t: a(f"v_cvt_pk_bf16_f32 v{P_+t}, v{Sn+2*t}, v{Sn+2*t+1}")
            if n == 1: a.label(f"L_n1{F}")
            if n == PTN: pt_load()
            PR = dict(zip([int(c) for c in opt("--pr", "357")], (2, 1, 0)))
            if n in PR: a(f"s_setprio {PR[n]}")
            if n in (2, 4):
                a(f"""v_readfirstlane_b32 s3, v11
                      s_cmp_ge_u32 s3, {n//2}
                      s_cbranch_scc1 L_kf{int(first)}{n}""")
                kv_wait(n//2)
                a.label(f"L_kf{int(first)}{n}")
            if n == 0:
                a("s_waitcnt lgkmcnt(2)"); mSv(1, S+16); a("s_barrier"); a(rdK(2)); a(rdV(1)); a("s_nop 3")
            if n == 7:
                a(prev); a("s_nop 3")
                for r in range(16): a(f"v_cndmask_b32 v{Sn+r}, v{S3+r}, v{Sn+r}, s[{64+2*r}:{65+2*r}]")
            for r in range(4): ex(r)
            if 0 < n < 7: a(prev)
            if n == 7: a(rdV(8))
            for r in range(4, 8): ex(r)
            if 0 < n < 7:
                a("s_waitcnt lgkmcnt(2)"); mSv(n+1, S + 16*((n+1) % 2))
                if n in (1, 3): a("ds_read_b32 v11, v149")
                a(rdK(n+2)); a(rdV(n+1))
            for t in range(4): cv(t)
            for r in range(8, 12): ex(r)
            if n < 7:
                a("s_waitcnt lgkmcnt(3)")
                a(f"{MFMA} {vr(O,16)}, {vr(Vn,4)}, {vr(P_,4)}, {'0' if n == 0 else vr(O,16)}")
            else:
                for t in range(4): a(f"v_and_b32 v{PP+t}, v{MK+t}, v{P_+t}\nv_xor_b32 v{P_+t}, v{PP+t}, v{P_+t}")
                a("s_waitcnt lgkmcnt(2)")
                a(f"{MFMA} {vr(O,16)}, {vr(Vn,4)}, {vr(PP,4)}, {vr(O,16)}")
            ex(12); ex(13)
            if n == 6: a("s_waitcnt lgkmcnt(2)"); mSv(8, S3)
            if n == 7: a("s_waitcnt lgkmcnt(0)"); a(f"{MFMA} {vr(O,16)}, {vr(VF,4)}, {vr(P2,4)}, {vr(O,16)}")
            ex(14); ex(15)
            for t in range(4, 8): cv(t)
            prev = f"{MFMA} {vr(O,16)}, {vr(Vn+4,4)}, {vr(P_+4,4)}, {vr(O,16)}"
        for t in range(4, 8): a(f"v_and_b32 v{PP+t}, v{MK+t}, v{P2+t}\nv_xor_b32 v{P2+t}, v{PP+t}, v{P2+t}")
        a(f"""s_nop 0
          {MFMA} {vr(O,16)}, {vr(VF+12,4)}, {vr(PP+4,4)}, {vr(O,16)}
          {MFMA} {vr(O,16)}, {vr(VF+4,4)}, {vr(P2+4,4)}, {vr(O,16)}
          s_waitcnt vmcnt(0)
          v_cmp_ne_u32 s[6:7], s{sPTV}, v148
          v_mov_b32 v14, 0x7f800000
          s_nop 8
          v_add_f32 v10, |v{O}|, |v{O+1}|
          v_add_f32 v11, |v{O+2}|, |v{O+3}|
          v_add_f32 v12, |v{O+4}|, |v{O+5}|
          v_add_f32 v13, |v{O+6}|, |v{O+7}|
          v_add_f32 v10, v10, v11
          v_add_f32 v12, v12, v13
          v_mul_f32 v11, 0x43800000, v{O+8}
          v_add_f32 v10, v10, v12
          v_add_f32 v11, v10, v11
          v_rcp_f32 v10, v{O+8}
          v_cmp_lt_f32 vcc, v11, v14
          s_cmp_eq_u64 vcc, -1
          s_cbranch_scc1 L_norm
          s_branch L_slow""")
    a(f"""s_cmp_eq_u32 s{sR}, 0
          s_cbranch_scc1 L_first""")
    fast(False)
    a.label("L_first")
    fast(True)
    a.label("L_preslow")
    a("s_barrier\ns_barrier")
    kv_wait(2)
    if PTN >= 0: pt_load()
    a.label("L_slow")
    a(f"""s_setprio 0
          s_sub_u32 s3, 8, s{sNF}
          s_lshl_b32 s3, s3, 10
          s_waitcnt lgkmcnt(0)""")
    for x in masks("0"): a(x)
    a(f"""ds_read_b128 {vr(KF,4)}, v{KA} offset:{8*1024}
          s_waitcnt lgkmcnt(0)
          {MFMA} {vr(S,16)}, {vr(KF,4)}, {vr(QF,4)}, {vr(CD,16)}
          s_nop 11""")
    maxblk(S, True)
    a(f"""s_cmp_eq_u32 s{sR}, 0
          s_cbranch_scc1 L_s1nofar
          ds_read_b128 {vr(KF,4)}, v{KA}
          s_waitcnt lgkmcnt(0)
          {MFMA} {vr(S,16)}, {vr(KF,4)}, {vr(QF,4)}, {vr(CF,16)}
          s_nop 11""")
    maxblk(S, False)
    a.label("L_s1nofar")
    a(f"""s_mov_b32 s{sI}, s{sNF}
          v_add_u32 v10, s3, v{KA}
          s_cmp_eq_u32 s{sI}, 0
          s_cbranch_scc1 L_s1done""")
    a.label("L_s1loop")
    a(f"""ds_read_b128 {vr(KF,4)}, v10
          v_add_u32 v10, 1024, v10
          s_waitcnt lgkmcnt(0)
          {MFMA} {vr(S,16)}, {vr(KF,4)}, {vr(QF,4)}, 0
          s_nop 11""")
    maxblk(S, False)
    a(f"""s_sub_u32 s{sI}, s{sI}, 1
          s_cmp_lg_u32 s{sI}, 0
          s_cbranch_scc1 L_s1loop""")
    a.label("L_s1done")
    xhalf_max()
    a(f"v_sub_f32 v{MX}, 0, v{MX}")
    for x in masks(f"v{MX}"): a(x)
    for r in range(16): a(f"v_mov_b32 v{CN+r}, v{MX}")
    def pvblk(kaddr, vaddr, off, C, first):
        a(f"""ds_read_b128 {vr(KF,4)}, v{kaddr} offset:{off}
              s_mov_b64 exec, s[{sVM}:{sVM+1}]
              ds_read_b128 {vr(VF,4)}, v{vaddr} offset:{off}
              ds_read_b128 {vr(VF+4,4)}, v{vaddr} offset:{off+512}
              s_mov_b64 exec, -1
              s_waitcnt lgkmcnt(0)
              {MFMA} {vr(S,16)}, {vr(KF,4)}, {vr(QF,4)}, {vr(C,16)}
              s_nop 11""")
        for r in range(16): a(f"v_exp_f32 v{S+r}, v{S+r}")
        for t in range(8): a(f"v_cvt_pk_bf16_f32 v{PP+t}, v{S+2*t}, v{S+2*t+1}")
        a("s_nop 1")
        a(f"{MFMA} {vr(O,16)}, {vr(VF,4)}, {vr(PP,4)}, {'0' if first else vr(O,16)}")
        a(f"{MFMA} {vr(O,16)}, {vr(VF+4,4)}, {vr(PP+4,4)}, {vr(O,16)}")
    pvblk(KA, VA_, 8*1024, CD, True)
    a(f"""s_cmp_eq_u32 s{sR}, 0
          s_cbranch_scc1 L_s2nofar""")
    pvblk(KA, VA_, 0, CF, False)
    a.label("L_s2nofar")
    a(f"""s_mov_b32 s{sI}, s{sNF}
          v_add_u32 v10, s3, v{KA}
          v_add_u32 v11, s3, v{VA_}
          s_cmp_eq_u32 s{sI}, 0
          s_cbranch_scc1 L_s2done""")
    a.label("L_s2loop")
    pvblk(10, 11, 0, CN, False)
    a(f"""v_add_u32 v10, 1024, v10
          v_add_u32 v11, 1024, v11
          s_sub_u32 s{sI}, s{sI}, 1
          s_cmp_lg_u32 s{sI}, 0
          s_cbranch_scc1 L_s2loop""")
    a.label("L_s2done")
    a(f"""s_waitcnt vmcnt(0)
          v_cmp_ne_u32 s[6:7], s{sPTV}, v148
          s_nop 12
          v_rcp_f32 v10, v{O+8}
          s_nop 0""")
    a.label("L_norm")
    for t in range(8): a(f"v_mul_f32 v{O+t}, v10, v{O+t}")
    for t in range(4): a(f"v_cvt_pk_bf16_f32 v{PP+t}, v{O+2*t}, v{O+2*t+1}")
    a(f"s_add_u32 s4, s{sQO}, {WS_O}")
    if MODE == "auto":
        a(f"""s_cmp_eq_u64 s[6:7], 0
              s_cbranch_scc0 L_ox
              buffer_store_dwordx4 {vr(PP,4)}, v1, s[{SWS}:{SWS+3}], s4 offen""")
        stamp(a, 13)
        publish(a, sF2, 10, flav="")
        a("s_branch L_od")
        a.label("L_ox")
    a(f"buffer_store_dwordx4 {vr(PP,4)}, v1, s[{SWS}:{SWS+3}], s4 offen {ST}")
    stamp(a, 13 if MODE != "auto" else 19)
    publish(a, sF2, 10)
    a.label("L_od")
    stamp(a, 14)
    a(f"""s_barrier
          s_cmp_ge_u32 s{sW}, 4
          s_cbranch_scc1 L_fin""")
    OA, WA2, ACC2, W2, O2 = 8, 9, 16, 32, 32
    a(f"""s_and_b32 s5, s{sW}, 1
          v_lshrrev_b32 v2, 5, v0
          v_bfe_u32 v3, v0, 2, 2
          v_lshl_add_u32 v4, v2, 2, v3
          v_lshlrev_b32 v4, 7, v4
          v_bfe_u32 v5, v0, 4, 1
          v_lshlrev_b32 v5, 1, v5
          v_and_b32 v6, 1, v0
          v_add_u32 v5, v5, v6
          s_and_b32 s3, s{sW}, 2
          s_lshl_b32 s3, s3, 1
          v_add_u32 v5, s3, v5
          v_bfe_u32 v6, v0, 3, 1
          v_lshlrev_b32 v6, 2, v6
          v_xor_b32 v5, v5, v6
          v_lshl_add_u32 v4, v5, 4, v4
          v_bfe_u32 v6, v0, 1, 1
          v_lshl_add_u32 v4, v6, 3, v4
          v_add_u32 v{WA2}, {WO_BASE}, v4
          s_lshl_b32 s3, s5, 10
          v_add_u32 v{OA}, s3, v1
          v_and_b32 v14, 31, v0
          s_lshl_b32 s3, s{sTB}, 6
          s_lshl_b32 s5, s5, 5
          s_add_u32 s3, s3, s5
          v_add_u32 v14, s3, v14
          v_lshlrev_b32 v14, 11, v14
          v_lshl_add_u32 v14, v2, 4, v14
          s_lshl_b32 s3, s{sHG}, 7
          s_and_b32 s5, s{sW}, 2
          s_lshl_b32 s5, s5, 5
          s_add_u32 s3, s3, s5
          s_add_u32 s3, s3, 1024
          v_add_u32 v14, s3, v14
          v_mov_b32 v15, v{OA}""")
    heads = [8*(k//4 % 4) + 4*(k//16) + k % 4 for k in range(32)]
    OB = [2, 6, 10, 160]
    for k in range(32):
        for q in range(2):
            a(f"ds_read_b64_tr_b16 {vr(W2+4*k+2*q,2)}, v{WA2} offset:{heads[k]*2048 + q*1024}")
    a("s_waitcnt lgkmcnt(0)\ns_barrier")
    stamp(a, 28)
    rdo = lambda k: f"ds_read_b128 {vr(OB[k % 4],4)}, v15 offset:{heads[k]*2048}"
    for k in range(4): a(rdo(k))
    for k in range(32):
        if k == 12:
            a("s_barrier")
            stamp(a, 16)
        a(f"s_waitcnt lgkmcnt({min(3, 31-k)})")
        a(f"{MFMA} {vr(ACC2,16)}, {vr(W2+4*k,4)}, {vr(OB[k % 4],4)}, {'0' if k == 0 else vr(ACC2,16)}")
        if k + 4 < 32: a(rdo(k+4))
    a("s_nop 11")
    for mm in range(2):
        for t in range(4):
            a(f"v_cvt_pk_bf16_f32 v{O2+4*mm+t}, v{ACC2+8*mm+2*t}, v{ACC2+8*mm+2*t+1}")
        a(f"buffer_store_dwordx4 {vr(O2+4*mm,4)}, v14, s[{SOUT}:{SOUT+3}], 0 offen offset:{32*mm} {OPF}")
    stamp(a, 17)
    a.label("L_fin")
    stamp_flush(a, 18)
    a.label("L_end")
    a.label("L_last_insn")
    a("s_endpgm")
    return a

def main():
    a = gen()
    hdr = f"""; {NAME} : one fused kernel (generated by my gen11.py)
; @launch grid=(256,1,1) block=(768,1,1) lds=163840
.amdgcn_target "amdgcn-amd-amdhsa--gfx950"
.text
"""
    kd = f""".section .rodata,"a"
.p2align 6
.amdhsa_kernel {KN}
  .amdhsa_next_free_vgpr 168
  .amdhsa_next_free_sgpr 102
  .amdhsa_accum_offset 168
  .amdhsa_group_segment_fixed_size 0
  .amdhsa_kernarg_size 88
  .amdhsa_user_sgpr_count 2
  .amdhsa_user_sgpr_kernarg_segment_ptr 1
  .amdhsa_system_sgpr_workgroup_id_x 1
.end_amdhsa_kernel
"""
    path = sys.argv[1] if len(sys.argv) > 1 and sys.argv[1].endswith(".s") else f"cdna_kernels/{NAME}.s"
    open(path, "w").write(hdr + a.text() + kd)
main()
```

```python
import sys, struct, math

NAME = "concat_heads__spectral_fnet__sliding_block__prompt"
KN = NAME + "_kernel"
WS_Q, WS_K, WS_V, WS_O, WS_U = 0, 2 << 20, 4 << 20, 6 << 20, 8 << 20
WS_F1, WS_F2, WS_PT, WS_F3 = (11 << 20), (11 << 20) + 0x20000, (11 << 20) + 0x60000, (11 << 20) + 0x70000
U_ROW = 4224
U_GP = 16 * U_ROW
U_SIZE = 32 * U_GP
QSCALE = 0.25 * math.log2(math.e)
uid = [0]
STAMP = "--stamp" in sys.argv
FORCE_SLOW = "--slow" in sys.argv
SKIP = set(int(x) for x in sys.argv[sys.argv.index("--skip")+1].split(",")) if "--skip" in sys.argv else set()
ST = sys.argv[sys.argv.index("--st")+1].replace("+", " ") if "--st" in sys.argv else "sc1"
LD = "sc1"
SPIN_MAX = 200000
def opt(name, default):
    return type(default)(sys.argv[sys.argv.index(name)+1]) if name in sys.argv else default
PDELAY = opt("--pdelay", 0)
PIPE = "--pipe" in sys.argv
FULLF = "--fullf" in sys.argv
KVLD = sys.argv[sys.argv.index("--kvld")+1].replace("+", " ").replace("none", "") if "--kvld" in sys.argv else "sc1"
A2ST = "sc1" if "--a2sc1" in sys.argv else ""
WB = "--wb" in sys.argv

def f2u(x): return struct.unpack("<I", struct.pack("<f", x))[0]

class Asm:
    def __init__(self): self.L = []
    def __call__(self, s):
        for line in s.strip("\n").split("\n"):
            line = line.strip()
            if line: self.L.append(line if line.endswith(":") and " " not in line else "  " + line)
    def label(self, n): self.L.append(n + ":")
    def text(self): return "\n".join(self.L) + "\n"

def vr(b, n=1): return f"v{b}" if n == 1 else f"v[{b}:{b+n-1}]"
MFMA = "v_mfma_f32_32x32x16_bf16"

kAX, kSR, kSI, kDR, kDI, kBX, kWQ, kWO, kOUT, kDBG, kWS = 64, 66, 68, 70, 72, 74, 76, 78, 80, 82, 84
sTB, sHG, sJ, sW, sNON = 16, 17, 18, 19, 20
sHD, sR = 21, 22
SWS = 32
VST = 167

def srd(a, d, k, size, off=0):
    if off:
        a(f"s_add_u32 s{d}, s{k}, {off}\ns_addc_u32 s{d+1}, s{k+1}, 0")
    else:
        a(f"s_mov_b32 s{d}, s{k}\ns_mov_b32 s{d+1}, s{k+1}")
    a(f"s_mov_b32 s{d+2}, {size}\ns_mov_b32 s{d+3}, 0x20000")

AMP = [int(x) for x in sys.argv[sys.argv.index("--amp")+1].split(",")] if "--amp" in sys.argv else None
def amp_end(a):
    if not AMP: return
    uid[0] += 1
    L = f"amp{uid[0]}"
    a(f"""s_cmp_lg_u32 s2, {AMP[3]}
          s_cbranch_scc1 {L}x
          s_cmp_lg_u32 s{sW}, {AMP[4]}
          s_cbranch_scc1 {L}x
          s_waitcnt vmcnt(0)
          s_memrealtime s[62:63]
          s_sub_u32 s100, s101, s100
          s_min_u32 s100, s100, 10000
          s_mul_i32 s100, s100, {AMP[2]}
          s_waitcnt lgkmcnt(0)
          s_add_u32 s100, s100, s62""")
    a.label(L)
    a(f"""s_memrealtime s[62:63]
          s_waitcnt lgkmcnt(0)
          s_sub_u32 s61, s62, s100
          s_cmp_lt_i32 s61, 0
          s_cbranch_scc1 {L}""")
    a.label(L + "x")
GMAX = None
def stamp(a, idx):
    if AMP and idx in AMP[:2]:
        a(f"""s_memrealtime s[62:63]
              s_waitcnt lgkmcnt(0)
              s_mov_b32 s{100 + AMP[:2].index(idx)}, s62""")
    if not STAMP: return
    if idx in SKIP: return
    a(f"""s_memrealtime s[96:97]
          s_memtime s[98:99]
          s_waitcnt lgkmcnt(0)
          v_writelane_b32 v{VST}, s96, {idx}
          v_writelane_b32 v{VST}, s98, {idx+32}""")
def stamp_flush(a, idx):
    if AMP:
        if idx in AMP[:2]: a("s_waitcnt vmcnt(0)")
        stamp(a, idx)
        amp_end(a)
    if not STAMP: return
    a("s_waitcnt vmcnt(0)")
    stamp(a, idx)
    srd(a, 88, SWS, 0x100000, 16 << 20)
    a(f"""s_mov_b64 exec, -1
          s_lshl_b32 s92, s2, 12
          s_lshl_b32 s93, s{sW}, 8
          s_add_u32 s92, s92, s93
          v_mbcnt_lo_u32_b32 v2, -1, 0
          v_mbcnt_hi_u32_b32 v2, -1, v2
          v_lshlrev_b32 v2, 2, v2
          buffer_store_dword v{VST}, v2, s[88:91], s92 offen""")

def poll(a, vaddr, vtmp, nl_mask, srdreg=SWS):
    uid[0] += 1
    L = f"poll{uid[0]}"
    a(f"""s_mov_b32 s60, 0
          s_mov_b64 exec, {nl_mask}""")
    a.label(L)
    a(f"""buffer_load_dword v{vtmp}, v{vaddr}, s[{srdreg}:{srdreg+3}], 0 offen sc1
          s_add_u32 s60, s60, 1
          s_cmp_gt_u32 s60, {SPIN_MAX}
          s_cbranch_scc1 {L}x
          s_waitcnt vmcnt(0)
          v_cmp_ne_u32 vcc, s{sNON}, v{vtmp}
          s_cbranch_vccnz {L}""")
    a.label(L + "x")
    a("s_mov_b64 exec, -1")

def poll_pipe(a, vaddr, vt, nl_mask, gap=2):
    uid[0] += 1
    L = f"pp{uid[0]}"
    ld = lambda k: f"buffer_load_dword v{vt+k}, v{vaddr}, s[{SWS}:{SWS+3}], 0 offen sc1"
    a(f"""s_mov_b32 s60, 0
          s_mov_b64 exec, {nl_mask}
          {ld(0)}
          s_sleep {gap}
          {ld(1)}""")
    a.label(L)
    for k in range(3):
        a(f"""s_sleep {gap}
              {ld((k+2)%3)}
              s_waitcnt vmcnt(2)
              v_cmp_ne_u32 vcc, s{sNON}, v{vt+k}
              s_cbranch_vccz {L}x""")
    a(f"""s_add_u32 s60, s60, 1
          s_cmp_lt_u32 s60, {SPIN_MAX}
          s_cbranch_scc1 {L}""")
    a.label(L + "x")
    a("s_mov_b64 exec, -1")

def poll2(a, va, vt):
    uid[0] += 1
    L = f"pq{uid[0]}"
    a("s_mov_b32 s60, 0")
    a.label(L)
    a(f"""buffer_load_dwordx2 v[{vt}:{vt+1}], v{va}, s[{SWS}:{SWS+3}], 0 offen sc1
          s_add_u32 s60, s60, 1
          s_cmp_gt_u32 s60, {SPIN_MAX}
          s_cbranch_scc1 {L}x
          s_waitcnt vmcnt(0)
          v_cmp_ne_u32 vcc, s{sNON}, v{vt}
          v_cmp_ne_u32 s[10:11], s{sNON}, v{vt+1}
          s_or_b64 vcc, vcc, s[10:11]
          s_cbranch_vccnz {L}""")
    a.label(L + "x")

def publish(a, soff, vtmp, cnt=0, flav=None):
    if FULLF:
        a(f"""v_mov_b32 v{vtmp}, s{sNON}
              v_mov_b32 v{vtmp+1}, s{sNON}
              s_waitcnt vmcnt({cnt})
              s_mov_b64 exec, 0xffff
              buffer_store_dwordx2 v[{vtmp}:{vtmp+1}], v166, s[{SWS}:{SWS+3}], s{soff} offen {ST if flav is None else flav}
              s_mov_b64 exec, -1""")
        return
    a(f"""s_waitcnt vmcnt({cnt})
          v_mov_b32 v{vtmp}, s{sNON}
          s_mov_b64 exec, 1
          buffer_store_dword v{vtmp}, off, s[{SWS}:{SWS+3}], s{soff} {ST if flav is None else flav}
          s_mov_b64 exec, -1""")

def nonce_wait(a, vtmp, first_loaded):
    uid[0] += 1
    L = f"non{uid[0]}"
    a("s_mov_b32 s60, 0")
    if first_loaded:
        a(f"s_branch {L}c")
    a.label(L)
    a(f"""buffer_load_dword v{vtmp}, off, s[56:59], 0 sc1
          s_waitcnt vmcnt(0)""")
    a.label(L + "c")
    a(f"""v_readfirstlane_b32 s{sNON}, v{vtmp}
          s_add_u32 s60, s60, 1
          s_cmp_gt_u32 s60, {SPIN_MAX}
          s_cbranch_scc1 {L}x
          s_cmp_eq_u32 s{sNON}, 0
          s_cbranch_scc1 {L}""")
    a.label(L + "x")

def diag_mask(r):
    g, i = r // 4, r % 4
    return (0xffffffff << (8*g+i)) & 0xffffffff, (0xffffffff << (8*g+i+4)) & 0xffffffff

MODE = sys.argv[sys.argv.index("--mode")+1] if "--mode" in sys.argv else "auto"
A2F = opt("--a2st", "").replace("+", " ")
OPF = opt("--opst", "").replace("+", " ")
XR, WR, WSL = 0, 65536, 24576
NS = opt('--ns', 3)
QSLOT = [WR + 2*WSL, WR, WR + 3*WSL, WR + WSL] if NS == 3 else [WR + k*WSL for k in range(4)]
UPN = opt('--upn', 1)
PUBU = opt('--pubu', 0)
Q_BASE = 81920
WO_BASE = 98304
HSTR = 20480
UE = '--noue' not in sys.argv
ALIGN = '--noalign' not in sys.argv
OWNF = WR + WSL + 16384 + 4096
MST = WR + 2*WSL
B11E = '--b11e' in sys.argv
NONW = 163840 - 1024
OWNB = opt('--ownb', 1)
KVF = 90112
UF = 64
sX = sR

def gen():
    a = Asm()
    a.L += [f".globl {KN}", ".p2align 8", f".type {KN},@function"]
    a.label(KN)
    a(f"""s_cmp_ge_u32 s2, 256
          s_cbranch_scc1 L_end
          s_load_dwordx16 s[64:79], s[0:1], 0
          s_load_dwordx4 s[80:83], s[0:1], 64
          s_load_dwordx2 s[84:85], s[0:1], 80
          v_lshrrev_b32 v1, 6, v0
          v_and_b32 v0, 63, v0
          s_and_b32 s{sX}, s2, 7
          v_readfirstlane_b32 s{sW}, v1
          s_lshr_b32 s{sJ}, s2, 3
          s_lshl_b32 s3, s{sX}, 2
          s_and_b32 s4, s{sJ}, 3
          s_add_u32 s{sTB}, s3, s4
          s_lshr_b32 s{sHG}, s2, 5
          s_xor_b32 s{sHG}, s{sHG}, {opt("--hgx", 0)}""")
    if FULLF: a("v_lshlrev_b32 v166, 3, v0")
    if STAMP: a(f"v_mov_b32 v{VST}, 0")
    stamp(a, 0)
    a(f"""s_cmp_lt_u32 s{sW}, 8
          s_cbranch_scc1 L_consumer""")
    sQO, sF2, sPTV = 12, 13, 14
    def get_tag(vt):
        a(f"""v_mov_b32 v{vt}, {NONW}
              ds_read_b32 v{vt}, v{vt}
              s_waitcnt lgkmcnt(0)
              v_readfirstlane_b32 s{sNON}, v{vt}
              s_nop 1""")
    def pt_load():
        if MODE == "auto":
            a(f"""v_and_b32 v147, 31, v0
                  s_lshl_b32 s3, s{sX}, 7
                  s_add_u32 s3, s3, {WS_PT}
                  v_lshl_add_u32 v147, v147, 2, s3
                  buffer_load_dword v148, v147, s[{SWS}:{SWS+3}], 0 offen sc1""")
    sLW, sROT, sSOX, sSOW, sMX, sMW, sTY = 23, 15, 28, 29, 30, 31, 27
    SX, SWD, SAX = 36, 40, 48
    SWOD, SOUT = 44, 40
    sC0 = 24
    XO, WO_, XA1 = 8, 10, 14
    sRA, sAX = 21, 25
    a(f"""s_sub_u32 s{sLW}, s{sW}, 8
          s_lshl_b32 s3, s{sTB}, 2
          s_add_u32 s3, s3, s{sLW}
          s_lshl_b32 s3, s3, 14                    ; (64tb + 16lw)*1024
          v_lshrrev_b32 v1, 3, v0
          v_and_b32 v2, 7, v0
          v_lshrrev_b32 v3, 4, v0
          v_xor_b32 v4, v3, v2
          v_xor_b32 v5, 4, v4
          v_lshlrev_b32 v4, 4, v4
          v_lshlrev_b32 v5, 4, v5
          v_lshl_add_u32 v6, v1, 10, s3
          v_add_u32 v{XO}, v6, v4
          v_add3_u32 v{XO+1}, v6, v5, s4
          v_and_b32 v6, 1, v3
          v_lshlrev_b32 v6, 2, v6
          v_xor_b32 v6, v6, v2
          s_lshl_b32 s3, s{sHG}, 7
          v_lshl_add_u32 v6, v6, 4, s3
          s_and_b32 s3, s{sLW}, 1
          s_lshl_b32 s3, s3, 5
          v_add_u32 v7, s3, v1
          s_movk_i32 s3, 3072
          v_mad_u32_u24 v{WO_}, v7, s3, v6""".replace("v_add3_u32 v9, v6, v5, s4", "v_add_u32 v9, v6, v5\n          v_add_u32 v9, 8192, v9"))
    for jw in range(1, 4): a(f"v_add_u32 v{WO_+jw}, {8*3072*jw}, v{WO_}")
    a(f"""s_and_b32 s3, s{sJ}, 3
          s_lshl_b32 s3, s3, 1
          s_add_u32 s3, s3, s{sHG}
          s_add_u32 s3, s3, s{sX}
          s_and_b32 s{sROT}, s3, {opt('--rmask', 4)}
          s_lshr_b32 s{sTY}, s{sLW}, 1
          s_lshl_b32 s{sTY}, s{sTY}, 10
          s_add_u32 s{sTY}, s{sTY}, 1024
          s_lshl_b32 s{sSOX}, s{sROT}, 7
          s_mul_i32 s{sSOW}, s{sROT}, {64*3072}
          s_add_u32 s{sSOW}, s{sSOW}, s{sTY}
          s_lshl_b32 s{sMX}, s{sLW}, 11
          s_lshl_b32 s{sMW}, s{sLW}, 12
          s_waitcnt lgkmcnt(0)""")
    srd(a, SX, kBX, 0x200000)
    srd(a, SWD, kWQ, 0x180000)
    stamp(a, 1)
    def dma(sm0, m0off, v, S, so):
        a(f"""s_add_u32 m0, s{sm0}, {m0off}
              s_nop 0
              buffer_load_dwordx4 v{v}, s[{S}:{S+3}], s{so} offen lds""")
    def issue(st):
        if st < 8:
            for j in range(2): dma(sMX, XR + st*8192 + j*1024, XO+j, SX, sSOX)
        base = WR + (st % NS)*WSL if st < 8 else QSLOT[st-8]
        for j in range(4): dma(sMW, base + j*1024, WO_+j, SWD, sSOW)
        if st == 0:
            a(f"""; A_x rows: pi = 8*(x>>1) + (j&7) ; p = lw>>1, s1 = 16*(lw&1) + 8j + (i>>3)
          s_lshl_b32 s3, s{sTB}, 1
          s_lshr_b32 s4, s{sLW}, 1
          s_add_u32 s3, s3, s4
          s_lshl_b32 s3, s3, 10
          s_and_b32 s4, s{sLW}, 1
          s_lshl_b32 s4, s4, 20
          s_add_u32 s3, s3, s4
          v_lshl_add_u32 v6, v1, {10 if '--xcont' in sys.argv else 16}, s3
          v_add_u32 v{XA1}, v6, v4
          v_add_u32 v{XA1+1}, v6, v5
          v_add_u32 v{XA1+1}, {8*1024 if '--xcont' in sys.argv else 8*65536}, v{XA1+1}
          s_lshr_b32 s3, s{sJ}, 2
          s_and_b32 s{sRA}, s3, {opt('--amask', 4)}
          s_lshl_b32 s{sAX}, s{sRA}, 7""")
            srd(a, SAX, kAX, 0x200000)
        if st < 8:
            for j in range(2): dma(sMX, base + 16384 + j*1024, XO+j if '--xsame' in sys.argv else XA1+j, SX if '--xsame' in sys.argv else SAX, sSOX if '--xsame' in sys.argv else sAX)
        if st < 7:
            a(f"""s_add_u32 s{sROT}, s{sROT}, 1
                  s_and_b32 s{sROT}, s{sROT}, 7
                  s_lshl_b32 s{sSOX}, s{sROT}, 7
                  s_mul_i32 s{sSOW}, s{sROT}, {64*3072}
                  s_add_u32 s{sSOW}, s{sSOW}, s{sTY}
                  s_add_u32 s{sAX}, s{sAX}, 128
                  s_and_b32 s{sAX}, s{sAX}, 1023""")
        elif st < 11:
            a(f"s_add_u32 s{sROT}, s{sROT}, 2")
            a(f"""s_and_b32 s{sROT}, s{sROT}, 7
                  s_mul_i32 s{sSOW}, s{sROT}, {64*3072}""")
    issue(0)
    srd(a, SWS, kWS, 0x1000000)
    srd(a, 56, kDBG, 256)
    a(f"""          ; wo voffset: (128lw + (i>>3))*1024 + hg*128 + ((i&7) ^ (((i>>4)&1)<<2))*16
          v_and_b32 v6, 1, v3
          v_lshlrev_b32 v6, 2, v6
          v_xor_b32 v6, v6, v2
          s_lshl_b32 s3, s{sLW}, 17
          s_lshl_b32 s4, s{sHG}, 7
          s_add_u32 s3, s3, s4
          v_lshl_add_u32 v6, v6, 4, s3
          v_lshl_add_u32 v19, v1, 10, v6
          v_lshrrev_b32 v4, 1, v0
          v_add_u32 v4, s{sTB}, v4
          v_subrev_u32 v4, 4, v4
          v_and_b32 v5, 3, v4
          v_bfe_u32 v4, v4, 2, 3
          v_lshl_add_u32 v4, v5, 3, v4
          s_lshr_b32 s4, s2, 5
          s_lshl_b32 s4, s4, 12
          s_and_b32 s5, s{sLW}, 2
          s_lshl_b32 s5, s5, 2
          s_add_u32 s4, s4, s5
          v_lshl_add_u32 v4, v4, 7, s4
          v_and_b32 v5, 1, v0
          v_lshl_add_u32 v4, v5, 2, v4
          v_add_u32 v16, {WS_F1}, v4
          v_lshlrev_b32 v1, 4, v0
          s_lshl_b32 s9, s{sHG}, 2
          s_add_u32 s9, s9, s{sLW}
          s_lshl_b32 s5, s{sTB}, 11
          s_lshl_b32 s6, s9, 16
          s_add_u32 s10, s5, s6
          s_add_u32 s5, s10, {WS_O}
          v_lshl_add_u32 v24, v0, 7, s5
          s_lshl_b32 s4, s{sTB}, 6
          s_lshl_b32 s5, s{sLW}, 3
          s_add_u32 s4, s4, s5
          v_bfe_u32 v4, v0, 1, 3
          v_and_b32 v5, 1, v0
          v_lshl_add_u32 v4, v5, 5, v4
          v_add_u32 v4, s4, v4
          v_lshlrev_b32 v4, 2, v4
          v_add_u32 v25, {WS_F2}, v4
          s_lshl_b32 s5, s{sLW}, 19
          s_lshl_b32 s6, s{sTB}, 11
          s_add_u32 s5, s5, s6
          s_add_u32 s13, s5, {WS_O}""")
    MF, A2 = 96, 128
    sPF, sWB, sIH = 52, 54, 55
    a(f"""s_lshl_b32 s4, s2, 1
          s_lshr_b32 s5, s{sLW}, 1
          s_add_u32 s4, s4, s5
          s_mul_i32 s4, s4, 3072
          s_and_b32 s5, s{sLW}, 1
          s_lshl_b32 s5, s5, 9
          s_add_u32 s5, s5, s4
          s_add_u32 s{sPF}, s{kWQ}, s5
          s_addc_u32 s{sPF+1}, s{kWQ+1}, 0
          s_mov_b32 s{sIH}, 0
          s_mov_b32 s{sWB}, {WR + 2*WSL}
          s_add_u32 s11, s{sMX}, {XR + 2*8192}
          s_getreg_b32 s{sPTV}, hwreg(HW_REG_XCC_ID, 0, 16)
          s_lshl_b32 s{sPTV}, s{sPTV}, 8""")
    issue(1)
    def prefetch4():
        if "--nopf" in sys.argv: return
        a(f"""s_sub_u32 s3, s{sIH}, {opt("--pf0", 2)}
              s_cmp_ge_u32 s3, 4
              s_cbranch_scc1 L_hpf""")
        for k in range(4): a(f"s_load_dword s61, s[{sPF}:{sPF+1}], {64*k}")
        a(f"""s_add_u32 s{sPF}, s{sPF}, 256
              s_addc_u32 s{sPF+1}, s{sPF+1}, 0
              s_cmp_lg_u32 s3, 1
              s_cbranch_scc1 L_hpf
              s_lshl_b32 s4, s2, 2
              s_add_u32 s4, s4, s{sLW}
              s_lshl_b32 s5, s4, 9
              s_add_u32 s{sPF}, s{kWO}, s5
              s_addc_u32 s{sPF+1}, s{kWO+1}, 0""")
        a.label("L_hpf")
    stamp(a, 25)
    if ALIGN: a.L.append(".p2align 6")
    a.label("L_hl")
    a("s_waitcnt vmcnt(8)")
    if STAMP and "--lst" in sys.argv:
        a(f"""s_memrealtime s[96:97]
              s_add_u32 s3, s{sIH}, 2
              s_waitcnt lgkmcnt(0)
              v_writelane_b32 v{VST}, s96, s3""".replace("v_writelane_b32 v167, s96, s3", "s_mov_b32 m0, s3\nv_writelane_b32 v167, s96, m0"))
    a(f"""s_barrier
          s_add_u32 s4, s{sMW}, s{sWB}
          s_add_u32 s5, s{sMX}, s{sWB}""")
    for j in range(2): dma(11, j*1024, XO+j, SX, sSOX)
    for j in range(4): dma(4, j*1024, WO_+j, SWD, sSOW)
    for j in range(2): dma(5, 16384 + j*1024, XA1+j, SAX, sAX)
    prefetch4()
    a(f"""s_add_u32 s11, s11, 8192
          s_add_u32 s{sWB}, s{sWB}, {WSL}
          s_cmp_eq_u32 s{sWB}, {WR + 3*WSL}
          s_cselect_b32 s{sWB}, {WR}, s{sWB}
          s_add_u32 s{sROT}, s{sROT}, 1
          s_and_b32 s{sROT}, s{sROT}, 7
          s_lshl_b32 s{sSOX}, s{sROT}, 7
          s_mul_i32 s{sSOW}, s{sROT}, {64*3072}
          s_add_u32 s{sSOW}, s{sSOW}, s{sTY}
          s_add_u32 s{sAX}, s{sAX}, 128
          s_and_b32 s{sAX}, s{sAX}, 1023
          s_add_u32 s{sIH}, s{sIH}, 1
""")
    a(f"""s_cmp_lt_u32 s{sIH}, 6
          s_cbranch_scc1 L_hl
          s_lshr_b32 s3, s{sLW}, 1
          s_add_u32 s{sROT}, s{sROT}, s3
          s_and_b32 s{sROT}, s{sROT}, 7
          s_mul_i32 s{sSOW}, s{sROT}, {64*3072}
          s_cmp_lg_u32 s{sLW}, 0
          s_cbranch_scc1 L_hn0
          buffer_load_dword v18, off, s[56:59], 0 sc1
          s_waitcnt vmcnt(9)
          s_branch L_hn1""")
    a.label("L_hn0")
    a("s_waitcnt vmcnt(8)")
    a.label("L_hn1")
    a("s_barrier")
    issue(8)
    a(f"""s_cmp_lg_u32 s{sLW}, 0
          s_cbranch_scc1 L_hn2
          s_waitcnt vmcnt(5)
          s_branch L_hn3""")
    a.label("L_hn2")
    a("s_waitcnt vmcnt(4)")
    a.label("L_hn3")
    stamp(a, 9)
    a("s_barrier")
    issue(9); issue(10)
    a(f"""s_waitcnt vmcnt(8)
          s_cmp_lg_u32 s{sLW}, 0
          s_cbranch_scc1 L_hp2""")
    nonce_wait(a, 18, True)
    a(f"""v_mov_b32 v6, {NONW}
          v_mov_b32 v7, s{sNON}
          ds_write_b32 v6, v7""")
    if MODE == "auto":
        a(f"""s_xor_b32 s3, s{sPTV}, s{sNON}
              v_mov_b32 v18, s3
              s_lshl_b32 s3, s{sX}, 5
              s_add_u32 s3, s3, s{sJ}
              s_lshl_b32 s3, s3, 2
              s_add_u32 s3, s3, {WS_PT}
              s_mov_b64 exec, 1
              buffer_store_dword v18, off, s[{SWS}:{SWS+3}], s3
              s_mov_b64 exec, -1""")
    a("s_waitcnt lgkmcnt(0)")
    a.label("L_hp2")
    stamp(a, 20)
    a("s_barrier")
    issue(11)
    get_tag(6)
    srd(a, SWOD, kWO, 0x80000)
    srd(a, SOUT, kOUT, 0x400000)
    a(f"""; A2 task: tc = 2x + (j&1), cr16 = j>>1, sigma = w&1, nt = (w>>1)&1
          s_lshl_b32 s6, s{sX}, 1
          s_and_b32 s4, s{sJ}, 1
          s_add_u32 s6, s6, s4                    ; tc
          s_lshr_b32 s7, s{sJ}, 1                 ; cr16
          s_lshl_b32 s{sC0}, s7, 5
          s_lshr_b32 s4, s6, 2
          s_lshl_b32 s4, s4, 3
          s_and_b32 s5, s6, 3
          s_add_u32 s4, s4, s5
          s_and_b32 s5, s{sW}, 1
          s_lshl_b32 s5, s5, 2
          s_add_u32 s5, s4, s5                    ; t1 source
          s_sub_u32 s4, 32, s5
          s_and_b32 s4, s4, 31
          s_cmp_lt_u32 s2, 128
          s_cselect_b32 s11, s5, s4
          s_cselect_b64 vcc, -1, 0
          v_and_b32 v45, 31, v0
          v_lshl_add_u32 v20, v45, 5, s11""")
    a(f"""v_lshrrev_b32 v47, 5, v0
          v_and_b32 v45, 0x13, v0
          v_bfe_u32 v46, v0, 2, 1
          v_lshl_or_b32 v45, v46, 3, v45
          v_bfe_u32 v46, v0, 3, 1
          v_lshl_or_b32 v45, v46, 2, v45
          v_add_u32 v45, s{sC0}, v45                ; c
          v_sub_u32 v46, 512, v45
          v_cndmask_b32 v45, v46, v45, vcc           ; e
          s_mul_i32 s4, s6, {U_ROW}
          s_and_b32 s5, s{sW}, 1
          s_lshl_b32 s5, s5, 3
          s_add_u32 s4, s4, s5
          s_add_u32 s4, s4, {WS_U}
          v_lshl_add_u32 v45, v45, 4, s4
          s_mov_b32 s5, {16*U_GP}
          v_mad_u32_u24 v22, v47, s5, v45           ; U address
          s_sub_u32 s5, 15, s7
          s_cmp_lt_u32 s2, 128
          s_cselect_b32 s4, s7, s5                ; e block b
          s_cselect_b32 s5, 0, 1
          v_mul_u32_u24 v45, s5, v47
          v_add_u32 v45, s4, v45
          v_and_b32 v45, 7, v45
          v_and_b32 v46, 31, v0
          v_lshlrev_b32 v46, 3, v46
          v_lshl_add_u32 v45, v45, 8, v46
          v_add_u32 v21, {WS_F3}, v45""")
    NT = 3 if MODE == "auto" else 1
    a(f"""s_sub_u32 s3, 4, s{sTB}
          s_max_i32 s3, s3, 0
          s_lshl_b32 s4, s3, 1
          s_lshl_b32 s6, 0xff, s4
          s_and_b32 s6, s6, 0xff
          s_mov_b32 s7, 0
          s_mul_i32 s8, s{sLW}, {HSTR}
          s_add_u32 s8, s8, 6144
          s_add_u32 s10, s10, {WS_K - 2048}
          s_lshl_b32 s30, s{sLW}, 14
          v_mov_b32 v2, 0x7ffffff0
          s_waitcnt vmcnt(8) lgkmcnt(0)
          s_barrier""")
    a(f"""s_waitcnt vmcnt(4)
          s_barrier
          s_waitcnt vmcnt(0)""")
    stamp(a, 23)
    a(f"""s_barrier
          s_mov_b64 exec, s[6:7]
          s_cbranch_execz L_kv0
          buffer_load_dword v5, v16, s[{SWS}:{SWS+3}], 0 offen sc1
          s_mov_b64 exec, -1
          s_barrier
          s_mov_b64 exec, s[6:7]
          s_waitcnt vmcnt(0)
          v_cmp_ne_u32 vcc, s{sNON}, v5
          s_mov_b64 exec, -1
          s_cbranch_vccz L_kv1""")
    poll(a, 16, 5, "s[6:7]")
    a("s_branch L_kv1")
    a.label("L_kv0")
    a("s_mov_b64 exec, -1\ns_barrier")
    a.label("L_kv1")
    stamp(a, 10)
    def kv_grp(g):
        a(f"""s_cmp_gt_u32 s{sTB}, {g}
              s_cbranch_scc1 L_kvr{g}
              v_mov_b32 v3, v2
              s_mov_b32 s10, {2048*g}""")
        a.label(f"L_kvr{g}")
        a(f"""s_sub_u32 m0, s8, {2048*g}
              s_sub_u32 s4, s10, {2048*g}
              buffer_load_dwordx4 v3, s[{SWS}:{SWS+3}], s4 offen {KVLD} lds
              buffer_load_dwordx4 v3, s[{SWS}:{SWS+3}], s4 offen offset:1024 {KVLD} lds
              s_add_u32 m0, m0, 10240
              s_add_u32 s4, s4, {WS_V - WS_K}
              buffer_load_dwordx4 v3, s[{SWS}:{SWS+3}], s4 offen {KVLD} lds
              buffer_load_dwordx4 v3, s[{SWS}:{SWS+3}], s4 offen offset:1024 {KVLD} lds""")
    KV1 = opt("--kv1", 3)
    a("v_mov_b32 v3, v1")
    for g in range(KV1): kv_grp(g)
    def wo_grp(g):
        a(f"""s_add_u32 s3, s{sJ}, {g}
              s_and_b32 s3, s3, 3
              s_lshl_b32 s4, s3, 12
              s_add_u32 s4, s4, s30
              s_add_u32 s4, s4, {WO_BASE}
              s_lshl_b32 s5, s3, 15""")
        for jj in range(4):
            a(f"""s_add_u32 m0, s4, {jj*1024}
                  s_add_u32 s6, s5, {jj*8192}
                  buffer_load_dwordx4 v19, s[{SWOD}:{SWOD+3}], s6 offen lds""")
    a(f"""s_lshl_b32 s3, s{sLW}, 2
          s_add_u32 s3, s3, {KVF}
          v_mov_b32 v6, s3
          v_mov_b32 v7, 0
          ds_write_b32 v6, v7""")
    a(f"""s_and_b32 s3, s{sLW}, 1
          s_lshl_b32 s3, s3, 13
          s_add_u32 s3, s3, {MST}
          v_add_u32 v44, s3, v1""")
    for js in range(8): a(f"ds_read_b128 {vr(MF+4*js,4)}, v44 offset:{js*1024}")
    a("v_mov_b32 v7, 1\ns_waitcnt lgkmcnt(0)")
    a(f"s_waitcnt vmcnt({4*KV1-4})")
    stamp(a, 11)
    a("s_barrier")
    stamp(a, 12)
    for g in range(KV1, 4): kv_grp(g)
    a(f"""s_waitcnt vmcnt(8)
          s_barrier
          buffer_load_dwordx2 v[4:5], v21, s[{SWS}:{SWS+3}], 0 offen sc1""")
    if MODE == "auto":
        a(f"""s_mov_b64 exec, 0xffff
              buffer_load_dword v27, v24, s[{SWS}:{SWS+3}], 0 offen
              buffer_load_dword v26, v25, s[{SWS}:{SWS+3}], 0 offen sc1
              s_mov_b64 exec, -1""")
    a(f"""s_waitcnt vmcnt({NT + 4})
          ds_write_b32 v6, v7
          v_mov_b32 v7, 2""")
    wo_grp(0)
    a(f"""s_waitcnt vmcnt({NT + 4})
          ds_write_b32 v6, v7""")
    stamp(a, 21)
    for g in range(1, 4): wo_grp(g)
    a(f"""s_cmp_ge_u32 s{sLW}, 2
          s_cbranch_scc1 L_nou
          s_waitcnt vmcnt(16)
          v_cmp_ne_u32 vcc, s{sNON}, v4
          v_cmp_ne_u32 s[10:11], s{sNON}, v5
          s_or_b64 vcc, vcc, s[10:11]
          s_cbranch_vccz L_uok""")
    poll2(a, 21, 4)
    a.label("L_uok")
    stamp(a, 26)
    for js in range(8):
        for b in range(2):
            a(f"""s_mov_b32 s4, {(2*js + b)*U_GP}
                  buffer_load_dwordx2 {vr(UF+4*js+2*b,2)}, v22, s[{SWS}:{SWS+3}], s4 offen {LD}""")
    a(f"""v_lshrrev_b32 v3, 5, v0
          v_lshlrev_b32 v10, 11, v20
          v_lshl_add_u32 v10, v3, 4, v10
          s_lshl_b32 s4, s{sC0}, 1
          v_add_u32 v10, s4, v10""")
    stamp(a, 27)
    a("s_waitcnt vmcnt(16)\ns_branch L_nou2")
    a.label("L_nou")
    a("s_waitcnt vmcnt(0)")
    a.label("L_nou2")
    def a2_half(k, L):
        a(f"""s_cmp_ge_u32 s{sLW}, 2
              s_cbranch_scc1 {L}""")
        if k:
            a("s_mov_b32 s3, 0x80008000")
            for t in range(16): a(f"v_xor_b32 v{MF+2*t+1}, s3, v{MF+2*t+1}")
            for t in range(8): a(f"v_cvt_pk_bf16_f32 v{44+t}, v{A2+2*t}, v{A2+2*t+1}")
        for js in range(8):
            a(f"{MFMA} {vr(A2+16*k,16)}, {vr(UF+4*js,4)}, {vr(MF+4*js,4)}, {'0' if js == 0 else vr(A2+16*k,16)}")
        a.label(L)
    a("s_barrier")
    stamp(a, 14)
    def o_fetch():
        a(f"""s_lshl_b32 s4, s8, 13
              s_add_u32 s4, s4, s30
              s_lshl_b32 s5, s8, 18
              s_add_u32 s5, s5, s13""")
        for j in range(4):
            a(f"""s_add_u32 m0, s4, {j*2048}
                  s_add_u32 s7, s5, {j*65536}
                  buffer_load_dwordx4 v1, s[{SWS}:{SWS+3}], s7 offen {LD} lds
                  buffer_load_dwordx4 v1, s[{SWS}:{SWS+3}], s7 offen offset:1024 {LD} lds""")
    a(f"""s_mov_b32 s60, 0
          s_mov_b32 s8, 0
          s_mov_b32 s9, 1
          s_mov_b64 exec, 0xffff
          buffer_load_dword v5, v25, s[{SWS}:{SWS+3}], 0 offen sc1
          s_mov_b64 exec, -1
          s_waitcnt vmcnt(1)""")
    a2_half(0, "L_h0")
    a("s_mov_b64 exec, 0xffff\ns_branch L_opw")
    a.label("L_opl")
    a(f"""buffer_load_dword v5, v25, s[{SWS}:{SWS+3}], 0 offen sc1
          s_add_u32 s60, s60, 1
          s_cmp_gt_u32 s60, {SPIN_MAX}
          s_cbranch_scc1 L_opx""")
    a.label("L_opw")
    a(f"""s_waitcnt vmcnt(0)
          v_cmp_ne_u32 vcc, s{sNON}, v5
          s_and_b32 s4, vcc_lo, 0xff
          s_and_b32 s9, vcc_lo, 0xff00
          s_cmp_lg_u32 s4, 0
          s_cbranch_scc1 L_opl""")
    a.label("L_opx")
    a("s_mov_b64 exec, -1")
    o_fetch()
    a(f"""s_mov_b32 s8, 1
          s_cmp_lg_u32 s9, 0
          s_cbranch_scc1 L_op2""")
    o_fetch()
    a2_half(1, "L_h1a")
    a("""s_waitcnt vmcnt(8)
         s_barrier
         s_branch L_op3""")
    a.label("L_op2")
    a(f"""s_lshl_b32 s3, s8, 3
          s_lshl_b32 s10, 0xff, s3
          s_mov_b32 s11, 0""")
    a2_half(1, "L_h1b")
    a("s_waitcnt vmcnt(0)\ns_barrier")
    poll(a, 25, 5, "s[10:11]")
    o_fetch()
    a.label("L_op3")
    stamp(a, 15)
    a("s_waitcnt vmcnt(0)\ns_barrier")
    a(f"""s_cmp_ge_u32 s{sLW}, 2
          s_cbranch_scc1 L_h2
          s_mov_b32 s3, {1024*2048}""")
    for mm in range(2):
        a(f"buffer_store_dwordx4 {vr(44+4*mm,4)}, v10, s[{SOUT}:{SOUT+3}], 0 offen offset:{32*mm} {A2F}")
    a("s_nop 7")
    for t in range(8): a(f"v_cvt_pk_bf16_f32 v{52+t}, v{A2+16+2*t}, v{A2+16+2*t+1}")
    for mm in range(2):
        a(f"buffer_store_dwordx4 {vr(52+4*mm,4)}, v10, s[{SOUT}:{SOUT+3}], s3 offen offset:{32*mm} {A2F}")
    a.label("L_h2")
    stamp(a, 13)
    stamp_flush(a, 18)
    a("s_endpgm")

    a.label("L_consumer")
    if "--nocpf" not in sys.argv:
        a(f"""s_cmp_lg_u32 s{sW}, 7
              s_cbranch_scc1 L_cpf1
              s_getpc_b64 s[4:5]""")
        a.label("L_cpf0")
        a(f"""s_sub_u32 s4, s4, L_cpf0-{KN}
              s_subb_u32 s5, s5, 0
              s_lshl_b32 s3, s{sJ}, 3
              v_add_u32 v1, s3, v0
              v_lshlrev_b32 v1, 7, v1
              v_cmp_gt_u32 vcc, L_last_insn-{KN}, v1
              s_and_b64 exec, vcc, 0xff
              s_cbranch_execz L_cpf2
              v_mov_b32 v3, s5
              v_add_co_u32 v2, vcc, s4, v1
              s_nop 1
              v_addc_co_u32 v3, vcc, 0, v3, vcc
              global_load_dword v165, v[2:3], off""")
        a.label("L_cpf2")
        a("s_mov_b64 exec, -1")
        a.label("L_cpf1")
    sIT, sDEL, sSL = 25, 26, 30
    sMASK = 28
    XA, WA = 8, 12
    ACC = 64
    a(f"""v_and_b32 v1, 31, v0
          v_lshrrev_b32 v2, 5, v0
          v_bfe_u32 v3, v0, 1, 3
          v_xor_b32 v3, v3, v2
          v_lshlrev_b32 v4, 7, v1
          s_or_b32 s3, s2, s{sW}
          s_cmp_lg_u32 s3, 4
          s_waitcnt lgkmcnt(0)""")
    srd(a, 56, kDBG, 256)
    a(f"""s_cbranch_scc1 L_nonpub
          s_cmp_lg_u32 s2, 0
          s_cbranch_scc1 L_nonpub
          s_memrealtime s[4:5]
          s_waitcnt lgkmcnt(0)
          s_or_b32 s4, s4, 1
          v_mov_b32 v5, s4
          s_mov_b64 exec, 1
          buffer_store_dword v5, off, s[56:59], 0 sc0 sc1
          s_mov_b64 exec, -1""")
    a.label("L_nonpub")
    srd(a, SWS, kWS, 0x1000000)
    if MODE == "auto":
        a(f"""s_cmp_lg_u32 s{sW}, 6
              s_cbranch_scc1 L_ptt
              s_lshl_b32 s3, s{sX}, 7
              s_add_u32 s3, s3, {WS_PT}
              buffer_load_dword v165, off, s[{SWS}:{SWS+3}], s3""")
        a.label("L_ptt")
    srd(a, SOUT, kOUT, 0x400000)
    if "--tlb" in sys.argv:
        srd(a, 44, kWO, 0x80000)
        a(f"""s_cmp_lg_u32 s{sW}, 5
              s_cbranch_scc1 L_tlb
              v_lshlrev_b32 v5, 20, v0
              s_lshl_b32 s3, s2, 7
              s_add_u32 s3, s3, 0x80000
              v_add_u32 v5, s3, v5
              s_mov_b64 exec, 0xffc
              buffer_load_dword v165, v5, s[{SWS}:{SWS+3}], 0 offen sc1
              s_mov_b64 exec, 15
              buffer_load_dword v165, v5, s[{SOUT}:{SOUT+3}], 0 offen
              s_mov_b64 exec, 1
              s_lshl_b32 s3, s2, 7
              buffer_load_dword v165, off, s[44:47], s3
              s_mov_b64 exec, -1""")
        a.label("L_tlb")
    for r in range(16):
        lo, hi = diag_mask(r)
        a(f"s_mov_b32 s{64+2*r}, {lo:#x}\ns_mov_b32 s{65+2*r}, {hi:#x}")
    for kk in range(4):
        a(f"""v_xor_b32 v5, {2*kk}, v3
              v_lshl_add_u32 v{XA+kk}, v5, 4, v4""")
    a(f"""s_getreg_b32 s{sPTV}, hwreg(HW_REG_XCC_ID, 0, 16)
          s_lshl_b32 s{sPTV}, s{sPTV}, 8
          v_bfe_u32 v3, v0, 2, 2
          v_lshl_add_u32 v7, v2, 3, v3             ; 8h + r
          v_lshlrev_b32 v4, 7, v7
          v_bfe_u32 v5, v0, 4, 1
          v_lshlrev_b32 v5, 1, v5
          v_bfe_u32 v6, v0, 1, 1
          v_add_u32 v5, v5, v6
          s_and_b32 s3, s{sW}, 2
          s_lshl_b32 s3, s3, 1
          v_add_u32 v5, s3, v5
          v_bfe_u32 v6, v0, 3, 1
          v_lshlrev_b32 v6, 2, v6
          v_xor_b32 v5, v5, v6
          v_lshl_add_u32 v4, v5, 4, v4
          v_and_b32 v6, 1, v0
          v_lshl_add_u32 v4, v6, 3, v4
          s_cmp_lt_u32 s{sW}, 4
          s_cbranch_scc1 L_kv""")
    sEH, sCA = 24, 25
    XF, AA, AB, WG, TM = 20, 36, 52, 100, 68
    XCH = WR + (7 % NS)*WSL + 16384
    DL, PH, SG, UA, NV, EI, XC = 12, 13, 14, 15, 3, 7, 164
    a(f"""s_and_b32 s3, s{sW}, 2
          s_lshl_b32 s3, s3, 11
          s_add_u32 s3, s3, {WR+16384}""")
    for kk in range(4): a(f"v_add_u32 v{XA+kk}, s3, v{XA+kk}")
    a(f"""s_and_b32 s{sEH}, s{sW}, 1
          s_lshr_b32 s3, s{sJ}, 2                  ; eb
          s_and_b32 s{sCA}, s3, {opt('--amask', 4)}
          s_lshl_b32 s3, s3, 1
          s_add_u32 s6, s3, s{sEH}
          s_lshl_b32 s3, s6, 4
          v_and_b32 v5, 15, v0
          v_add_u32 v{EI}, s3, v5                  ; e
          v_bfe_u32 v6, v0, 4, 1
          v_cvt_f32_u32 v{PH}, v6
          v_mul_f32 v{PH}, 0x3e800000, v{PH}
          s_cmp_eq_u32 s6, 0
          s_cselect_b32 s{sMASK}, 0x10000, 0
          s_mov_b32 s{sMASK+1}, s{sMASK}
          v_mov_b32 v6, 256
          v_cndmask_b32 v{EI}, v{EI}, v6, s[{sMASK}:{sMASK+1}]
          v_cndmask_b32 v{PH}, v{PH}, 0, s[{sMASK}:{sMASK+1}]
          v_cvt_f32_u32 v{DL}, v{EI}
          v_mul_f32 v{DL}, 0x3b000000, v{DL}       ; e/512
          v_and_b32 v6, 1, v0
          v_lshlrev_b32 v6, 31, v6
          v_or_b32 v{SG}, 1.0, v6
          s_mov_b32 s3, s{sTB}                     ; pi
          s_lshr_b32 s4, s6, 1
          s_lshl_b32 s4, s4, 5
          s_add_u32 s4, s4, s3
          s_lshl_b32 s4, s4, 1
          s_add_u32 s4, s4, s{sEH}
          s_lshl_b32 s26, s4, 2
          s_mul_i32 s3, s3, {U_GP}
          s_lshl_b32 s4, s6, 8
          s_add_u32 s3, s3, s4
          s_add_u32 s3, s3, {WS_U}
          v_lshl_add_u32 v5, v5, 4, s3
          v_lshrrev_b32 v6, 4, v0
          s_movk_i32 s4, {U_ROW}
          v_mad_u32_u24 v{UA}, v6, s4, v5
          s_lshl_b32 s3, s{sEH}, 11
          s_add_u32 s3, s3, {XCH}
          v_lshl_add_u32 v{XC}, v0, 4, s3""")
    def genw(c):
        o = [f"""s_add_u32 s3, s{sCA}, {c}
              s_and_b32 s3, s3, 7
              s_lshl_b32 s3, s3, 6
              v_lshl_add_u32 v{TM}, v2, 3, s3
              v_cvt_f32_u32 v{TM}, v{TM}
              v_mul_f32 v{TM}, v{TM}, v{DL}
              v_fract_f32 v{TM}, v{TM}
              v_add_f32 v{TM}, v{TM}, v{PH}"""]
        for kk in range(4):
            t = []
            for j in range(1, 8): t.append(f"v_add_f32 v{TM+j}, v{TM+j-1}, v{DL}")
            for j in range(8): t.append(f"v_cos_f32 v{TM+8+j}, v{TM+j}")
            t.append(f"v_fmamk_f32 v{TM}, v{DL}, 0x41100000, v{TM+7}")
            for j in range(4): t.append(f"v_cvt_pk_bf16_f32 v{WG+16*c+4*kk+j}, v{TM+8+2*j}, v{TM+9+2*j}")
            o.append("\n".join(t))
        return o
    CR, CI, NCI = 68+16, 68+24, WG
    NQ = [4, 16]
    def genc(m, T):
        t = []
        for j in range(8):
            cj = 16*m + (j % 4) + 8*(j // 4)
            t.append(f"""v_mad_u32_u24 v{T+j}, v1, {cj}, v{PH}
                  v_and_b32 v{T+j}, 31, v{T+j}
                  v_cvt_f32_u32 v{T+j}, v{T+j}
                  v_mul_f32 v{T+j}, 0x3d000000, v{T+j}""")
        u = [f"v_cos_f32 v{T+8+j}, v{T+j}" for j in range(8)] + [f"v_sin_f32 v{T+j}, v{T+j}" for j in range(8)] + ["s_nop 0"]
        for j in range(4):
            u.append(f"""v_cvt_pk_bf16_f32 v{CR+4*m+j}, v{T+8+2*j}, v{T+9+2*j}
                  v_cvt_pk_bf16_f32 v{CI+4*m+j}, -v{T+2*j}, -v{T+1+2*j}
                  v_cvt_pk_bf16_f32 v{NQ[m]+j}, v{T+2*j}, v{T+1+2*j}""")
        return ["\n".join(t[:4]), "\n".join(t[4:]), "\n".join(u[:17]), "\n".join(u[17:])]
    def genm(js):
        T, d = TM, 84 + 4*js
        return f"""v_add_f32 v{T}, v18, v17
              v_add_f32 v{T+1}, v{T}, v17
              v_add_f32 v{T+2}, v{T+1}, v17
              v_cos_f32 v{T+4}, v18
              v_cos_f32 v{T+5}, v{T}
              v_cos_f32 v{T+6}, v{T+1}
              v_cos_f32 v{T+7}, v{T+2}
              v_sin_f32 v{T+8}, v18
              v_sin_f32 v{T+9}, v{T}
              v_sin_f32 v{T+10}, v{T+1}
              v_sin_f32 v{T+11}, v{T+2}
              v_add_f32 v18, v{T+2}, v17
              v_cvt_pk_bf16_f32 v{d}, v{T+4}, v{T+8}
              v_cvt_pk_bf16_f32 v{d+1}, v{T+5}, v{T+9}
              v_cvt_pk_bf16_f32 v{d+2}, v{T+6}, v{T+10}
              v_cvt_pk_bf16_f32 v{d+3}, v{T+7}, v{T+11}"""
    mpar = f"""; A2 task: tc = 2x + (j&1), cr16 = j>>1, sigma = w&1, nt = (w>>1)&1
          s_lshl_b32 s6, s{sX}, 1
          s_and_b32 s4, s{sJ}, 1
          s_add_u32 s6, s6, s4                    ; tc
          s_lshr_b32 s7, s{sJ}, 1                 ; cr16
          s_lshl_b32 s10, s7, 5
          s_lshr_b32 s4, s6, 2
          s_lshl_b32 s4, s4, 3
          s_and_b32 s5, s6, 3
          s_add_u32 s4, s4, s5
          s_and_b32 s5, s{sW}, 1
          s_lshl_b32 s5, s5, 2
          s_add_u32 s5, s4, s5                    ; t1 source
          s_sub_u32 s4, 32, s5
          s_and_b32 s4, s4, 31
          s_cmp_lt_u32 s2, 128
          s_cselect_b32 s11, s5, s4
          s_cselect_b64 vcc, -1, 0
          v_and_b32 v{TM+1}, 31, v0
          v_lshl_add_u32 v{TM}, v{TM+1}, 5, s11
          v_lshrrev_b32 v{TM+3}, 5, v0                 ; h
          v_sub_u32 v{TM+2}, 2048, v{TM}
          v_cndmask_b32 v{TM+2}, v{TM+2}, v{TM}, vcc
          v_cvt_f32_u32 v{TM+2}, v{TM+2}
          v_mul_f32 v17, 0x3a000000, v{TM+2}
          v_lshlrev_b32 v{TM+2}, 5, v{TM+3}
          v_cvt_f32_u32 v{TM+2}, v{TM+2}
          v_mul_f32 v18, v17, v{TM+2}"""
    def either(p0, p1):
        if not p0 and not p1: return ""
        uid[0] += 1
        L = f"e{uid[0]}"
        return f"s_cmp_ge_u32 s{sW}, 6\ns_cbranch_scc1 {L}a\n{p0}\ns_branch {L}b\n{L}a:\n{p1}\n{L}b:"
    for c in range(2):
        for x in genw(c): a(x)
    a("s_barrier")
    def rda(g): return f"ds_read_b128 {vr(XF+4*(g % 4),4)}, v{XA+g % 4}" if g < 32 else ""
    a(rda(0)); a(rda(1))
    for st in range(8):
        fill = {0: genw(2), 1: genw(3), 2: genc(0, TM), 3: genc(1, TM)}.get(st, [])
        if st in (0, 1): fill = [fill[0] + "\n" + fill[1]] + fill[2:]
        if st == 1: fill[3] += f"\nv_lshlrev_b32 v{PH}, 2, v2\nv_mul_u32_u24 v{PH}, v{PH}, v1"
        if st == 2: fill = [either(fill[0], mpar), either(fill[1], genm(0)), either(fill[2], genm(1)), either(fill[3], "")]
        if st == 3: fill = [either(fill[0], genm(2)), either(fill[1], genm(3)), either(fill[2], ""), either(fill[3], "")]
        acc = AA if st < 4 else AB
        for kk in range(4):
            g = 4*st + kk
            mm_ = f"{MFMA} {vr(acc,16)}, {vr(XF+4*(g % 4),4)}, {vr(WG+16*(st%4)+4*kk,4)}, {'0' if (st % 4 == 0 and kk == 0) else vr(acc,16)}"
            if kk < 3:
                a("s_waitcnt lgkmcnt(1)")
                a(mm_)
                if kk < 2: a(rda(g+2))
                if fill: a(fill[kk])
            if kk == 2:
                if st < 7:
                    d = WSL if (st+1) % NS else -(NS-1)*WSL
                    a(f"s_mov_b32 s3, {d}")
                    for r in range(4): a(f"v_add_u32 v{XA+r}, s3, v{XA+r}")
                    a("s_waitcnt lgkmcnt(0)\ns_barrier")
                    a(rda(g+2))
                else:
                    a("s_waitcnt lgkmcnt(0)")
            if kk == 3:
                a(mm_); a(rda(g+2))
                if fill: a(fill[3])
    stamp(a, 7)
    PK, SV, RE, IM, D1, D2 = XF, WG+24, WG+32, WG+48, AA, AB
    a("s_nop 11")
    for r in range(16): a(f"v_fma_f32 v{AA+r}, v{AB+r}, v{SG}, v{AA+r}")
    for t in range(8): a(f"v_cvt_pk_bf16_f32 v{PK+t}, v{AA+2*t}, v{AA+2*t+1}")
    a(f"""s_barrier
          s_cmp_lt_u32 s{sW}, 6
          s_cbranch_scc1 L_a1e
          ds_write_b128 v{XC}, {vr(PK,4)}
          ds_write_b128 v{XC}, {vr(PK+4,4)} offset:1024
          v_mov_b32 v{TM}, 0
          v_mov_b32 v{TM+1}, 0
          v_mov_b32 v{TM+2}, 0
          v_mov_b32 v{TM+3}, 0
          v_mov_b32 v{TM+4}, {OWNF}
          ds_write_b128 v{TM+4}, {vr(TM,4)}
          s_waitcnt lgkmcnt(0)
          s_barrier""")
    a(f"""s_and_b32 s3, s{sW}, 1
          s_lshl_b32 s3, s3, 13
          s_add_u32 s3, s3, {MST}
          v_lshl_add_u32 v42, v0, 4, s3""")
    for js in range(4): a(f"ds_write_b128 v42, {vr(84+4*js,4)} offset:{js*1024}")
    for js in range(4, 8):
        a(genm(js))
        a(f"ds_write_b128 v42, {vr(84+4*js,4)} offset:{js*1024}")
    a("""s_barrier
         s_waitcnt lgkmcnt(0)
         s_barrier
         s_barrier
         s_branch L_att""")
    a.label("L_a1e")
    a(f"""s_barrier
          ds_read_b128 {vr(PK+8,4)}, v{XC}
          ds_read_b128 {vr(PK+12,4)}, v{XC} offset:1024
          s_waitcnt lgkmcnt(0)""")
    for t in range(8): a(f"v_permlane16_swap_b32 v{PK+t}, v{PK+8+t}")
    a(f"""s_mov_b32 s6, 0x00010001
          s_mov_b32 s7, 0x00010001
          s_cmp_eq_u32 s{sMASK}, 0
          s_cbranch_scc1 L_nosp1""")
    for t in range(8):
        a(f"v_mov_b32 v{SV+t}, v{PK+8+t}")
        a(f"v_cndmask_b32 v{PK+8+t}, v{PK+8+t}, 0, s[6:7]")
    a.label("L_nosp1")
    a("s_nop 1")
    def step1(aa, bb):
        a(f"{MFMA} {vr(RE,16)}, {vr(CR,4)}, {vr(aa,4)}, 0")
        a(f"{MFMA} {vr(IM,16)}, {vr(CI,4)}, {vr(aa,4)}, 0")
        a(f"{MFMA} {vr(RE,16)}, {vr(CR+4,4)}, {vr(aa+4,4)}, {vr(RE,16)}")
        a(f"{MFMA} {vr(IM,16)}, {vr(CI+4,4)}, {vr(aa+4,4)}, {vr(IM,16)}")
        if bb is not None:
            for m in range(2):
                a(f"{MFMA} {vr(RE,16)}, {vr(NQ[m],4)}, {vr(bb+4*m,4)}, {vr(RE,16)}")
                a(f"{MFMA} {vr(IM,16)}, {vr(CR+4*m,4)}, {vr(bb+4*m,4)}, {vr(IM,16)}")
    def upack(D):
        for r in range(16): a(f"v_cvt_pk_bf16_f32 v{D+r}, v{RE+r}, v{IM+r}")
        for g in range(4):
            d = D + 4*g
            a(f"""v_permlane32_swap_b32 v{d}, v{d+2}
                  v_permlane32_swap_b32 v{d+1}, v{d+3}""")
        for g in range(4):
            d = D + 4*g
            a(f"""v_permlane16_swap_b32 v{d}, v{d+1}
                  v_permlane16_swap_b32 v{d+2}, v{d+3}""")
    def ust(D, off):
        for g in range(4):
            a(f"""s_mov_b32 s4, {4*g*U_ROW + off}
                  buffer_store_dwordx4 {vr(D+4*g,4)}, v{UA}, s[{SWS}:{SWS+3}], s4 offen {ST}""")
    step1(PK, PK+8)
    a("s_nop 11" if UE else "s_barrier\ns_nop 10")
    upack(D1)
    a(f"""s_cmp_eq_u32 s{sMASK}, 0
          s_cbranch_scc1 L_nosp2""")
    step1(SV, None)
    a("s_nop 11")
    upack(D2)
    a.label("L_nosp2")
    stamp(a, 8)
    ust(D1, 0)
    a(f"""s_cmp_eq_u32 s{sMASK}, 0
          s_cbranch_scc1 L_nosp3
          s_mov_b64 exec, s[6:7]""")
    ust(D2, 4096)
    a("s_mov_b64 exec, -1")
    a.label("L_nosp3")
    get_tag(NV)
    a(f"""s_barrier
          s_barrier
          {"s_barrier" if UE else ""}
          s_add_u32 s3, s26, {WS_F3}""")
    publish(a, 3, 6)
    a("s_branch L_att")

    a.label("L_kv")
    FR = 32
    FK = 96
    def X(b, i): return FK + 12*b + 4*i
    def W(b): return FK + 12*b + 8
    a(f"""s_and_b32 s3, s{sW}, 1
          s_lshl_b32 s3, s3, 13
          s_add_u32 s3, s3, {WR}
          v_add_u32 v{WA}, s3, v4""")
    for r in range(32): a(f"v_mov_b32 v{ACC+r}, 0")
    a(f"""s_lshl_b32 s3, s2, 5
          s_add_u32 s3, s3, s{sW}
          s_lshl_b32 s3, s3, 2
          s_add_u32 s31, s3, {WS_F1}
          s_lshl_b32 s3, s{sHG}, 2
          s_and_b32 s4, s{sW}, 2
          s_add_u32 s3, s3, s4
          s_lshl_b32 s3, s3, 16
          s_lshl_b32 s4, s{sTB}, 11
          s_add_u32 s3, s3, s4
          s_add_u32 s3, s3, {WS_K}
          v_lshl_add_u32 v14, v0, 4, s3
          s_add_u32 s3, s3, {WS_V - WS_K}
          v_bfe_u32 v5, v0, 4, 1
          v_lshlrev_b32 v5, 16, v5
          v_lshl_add_u32 v5, v2, 8, v5
          v_and_b32 v6, 15, v0
          v_lshl_add_u32 v5, v6, 4, v5
          v_add_u32 v16, s3, v5
          v_mov_b32 v21, v4
          s_and_b32 s4, s{sW}, 2
          s_mul_i32 s3, s4, {HSTR}
          s_add_u32 s3, s3, 8192
          v_lshl_add_u32 v17, v0, 4, s3
          s_add_u32 s3, s3, 10240
          v_bfe_u32 v5, v0, 4, 1
          v_mul_u32_u24 v5, {HSTR}, v5
          v_lshl_add_u32 v5, v2, 8, v5
          v_lshl_add_u32 v5, v6, 4, v5
          v_add_u32 v18, s3, v5
          s_and_b32 s3, s{sW}, 1
          s_lshl_b32 s3, s3, 12
          s_lshl_b32 s4, s4, 10
          s_add_u32 s3, s3, s4
          s_add_u32 s3, s3, {Q_BASE}
          v_lshl_add_u32 v20, v0, 4, s3
          s_mov_b32 s8, {f2u(QSCALE):#x}
          s_mov_b32 s9, s8""")
    def rd(kk, b):
        return [f"ds_read_b128 {vr(X(b,i),4)}, v{XA+kk} offset:{i*4096}" for i in range(2)] + [f"ds_read_b64_tr_b16 {vr(W(b)+2*q,2)}, v{WA} offset:{kk*2048 + q*512}" for q in range(2)]
    def step(b, variant, r):
        m = []
        for i in range(2):
            A_, B_ = (W(b), X(b,i)) if variant == "K" else (X(b,i), W(b))
            m.append(f"{MFMA} {vr(ACC+16*i,16)}, {vr(A_,4)}, {vr(B_,4)}, {vr(ACC+16*i,16)}")
        for x in [m[0]] + r[:2] + [m[1]] + r[2:]: a(x)
    a(f"""s_mov_b32 s{sIT}, 0
          s_mov_b32 s{sSL}, 0
          s_mov_b32 s27, {WSL}""")
    stamp(a, 1)
    a("s_barrier")
    stamp(a, 2)
    for x in rd(0, 0) + rd(1, 1): a(x)
    a(f"""s_bitcmp1_b32 s{sW}, 0
          s_cbranch_scc1 L_loopV""")
    for variant in ("K", "V"):
        if ALIGN: a.L.append(".p2align 6")
        a.label(f"L_loop{variant}")
        for kk in range(3):
            a("s_waitcnt lgkmcnt(4)")
            step(kk, variant, rd(kk+2, kk+2) if kk < 2 else [])
        a(f"""s_add_u32 s{sSL}, s{sSL}, 1
              s_cmp_eq_u32 s{sSL}, {NS}
              s_cselect_b32 s{sDEL}, {-(NS-1)*WSL}, s27
              s_cselect_b32 s{sSL}, 0, s{sSL}
              v_add_u32 v{WA}, s{sDEL}, v{WA}""")
        for r in range(4): a(f"v_add_u32 v{XA+r}, 8192, v{XA+r}")
        a(f"""s_add_u32 s{sIT}, s{sIT}, 1
              s_cmp_eq_u32 s{sIT}, 8
              s_waitcnt lgkmcnt(0)
              s_cbranch_scc1 L_last{variant}
              s_barrier""")
        for x in rd(0, 0): a(x)
        step(3, variant, rd(1, 1))
        a(f"s_branch L_loop{variant}")
        a.label(f"L_last{variant}")
        step(3, variant, [])
        stamp(a, 3)
        a("s_mov_b32 s4, 65536\ns_nop 9")
        for i in range(2):
            for mm in range(2):
                d = FR + 8*i + 4*mm
                for t in range(4): a(f"v_cvt_pk_bf16_f32 v{d+t}, v{ACC+16*i+8*mm+2*t}, v{ACC+16*i+8*mm+2*t+1}")
                if variant == "K":
                    a(f"buffer_store_dwordx4 {vr(d,4)}, v14, s[{SWS}:{SWS+3}], {'s4' if mm else '0'} offen offset:{i*1024} {ST}")
                else:
                    a(f"buffer_store_dwordx4 {vr(d,4)}, v16, s[{SWS}:{SWS+3}], 0 offen offset:{i*1024+mm*512} {ST}")
        if variant == "K": a("s_branch L_kvdone")
    a.label("L_kvdone")
    stamp(a, 4)
    FQ = 96
    a(f"""s_and_b32 s3, s{sW}, 1
          s_lshl_b32 s3, s3, 12
          s_sub_u32 s3, s3, 65536
          v_add_u32 v{WA}, {QSLOT[0]}, v21""")
    for kk in range(4): a(f"v_add_u32 v{XA+kk}, s3, v{XA+kk}")
    a(f"""v_mov_b32 v19, {NONW}
          s_barrier
          ds_read_b32 v19, v19""")
    if PUBU < 0:
        a(f"s_waitcnt lgkmcnt(0)\nv_readfirstlane_b32 s{sNON}, v19\ns_nop 1")
        publish(a, 31, 6)
        stamp(a, 5)
    def rdq(u, k, b):
        c2, kk = k // 4, k % 4
        f = FQ + 8*b
        return [f"ds_read_b128 {vr(f,4)}, v{XA+kk} offset:{(2*u+c2)*8192}"] + [f"ds_read_b64_tr_b16 {vr(f+4+2*q,2)}, v{WA} offset:{c2*8192 + kk*2048 + q*512}" for q in range(2)]
    NBQ = 4
    for k in range(3):
        for x in rdq(0, k, k): a(x)
    for u in range(4):
        for k in range(8):
            g = 8*u + k
            last = k >= 5
            if k == 5 and u < 3:
                d = QSLOT[u+1] - QSLOT[u]
                if u == PUBU:
                    a(f"v_readfirstlane_b32 s{sNON}, v19\ns_nop 1")
                    publish(a, 31, 6)
                    stamp(a, 5)
                a(f"""s_waitcnt lgkmcnt(0)
                      s_barrier
                      v_add_u32 v{WA}, {d}, v{WA}""")
            nxt = rdq(u, k+3, (g+3) % NBQ) if k < 5 else (rdq(u+1, k-5, (g+3) % NBQ) if u < 3 else [])
            if not (k >= 5 and u < 3) or k > 5 or True:
                outst = 6 if (k < 5 or u < 3) else 3*(7-k)
                if not (k == 5 and u < 3) and not (k in (6, 7) and u < 3): a(f"s_waitcnt lgkmcnt({outst})")
            f = FQ + 8*(g % NBQ)
            a(f"{MFMA} {vr(ACC,16)}, {vr(f+4,4)}, {vr(f,4)}, {'0' if g == 0 else vr(ACC,16)}")
            for x in nxt: a(x)
    a("s_barrier")
    stamp(a, 6)
    a(f"""s_bitcmp1_b32 s{sW}, 0
          s_cbranch_scc1 L_cpv""")
    for i in range(2):
        for mm in range(2): a(f"ds_write_b128 v17, {vr(FR+8*i+4*mm,4)} offset:{mm*HSTR + i*1024}")
    a("s_branch L_cpq")
    a.label("L_cpv")
    for i in range(2):
        for mm in range(2): a(f"ds_write_b128 v18, {vr(FR+8*i+4*mm,4)} offset:{i*1024 + mm*512}")
    a.label("L_cpq")
    a("s_nop 5")
    for t in range(8): a(f"v_pk_mul_f32 {vr(ACC+2*t,2)}, {vr(ACC+2*t,2)}, s[8:9]")
    for t in range(8): a(f"v_cvt_pk_bf16_f32 v{FQ+t}, v{ACC+2*t}, v{ACC+2*t+1}")
    a(f"""ds_write_b128 v20, {vr(FQ,4)}
          ds_write_b128 v20, {vr(FQ+4,4)} offset:1024
          s_lshl_b32 s3, s{sW}, 2
          s_add_u32 s3, s3, {OWNF}
          v_mov_b32 v5, s3
          v_mov_b32 v6, 1
          s_waitcnt lgkmcnt(0)
          ds_write_b32 v5, v6""")

    a.label("L_att")
    QF = 4
    KA, VA_, NINF, MX = 2, 3, 8, 9
    KF, VF, PP, S, O, CN, CD, CF = 12, 24, 40, 48, 80, 96, 112, 128
    S3, P2, MK = 112, 128, 136
    sVM, sNF, sI = 8, 10, 11
    get_tag(5)
    a(f"""s_xor_b32 s{sPTV}, s{sPTV}, s{sNON}
          s_and_b32 s3, s{sW}, 3
          s_lshr_b32 s5, s{sW}, 2
          s_lshl_b32 s4, s{sHG}, 2
          s_add_u32 s{sHD}, s4, s3
          s_lshl_b32 s4, s{sTB}, 1
          s_add_u32 s4, s4, s5                     ; qb
          s_lshl_b32 s{sQO}, s4, 10
          s_lshl_b32 s6, s{sHD}, 16
          s_add_u32 s{sQO}, s{sQO}, s6
          s_min_u32 s{sNF}, s4, 7
          s_lshl_b32 s4, s4, 5
          s_add_u32 s4, s4, s{sHD}
          s_lshl_b32 s4, s4, 2
          s_add_u32 s{sF2}, s4, {WS_F2}
          v_lshlrev_b32 v1, 4, v0
          s_lshl_b32 s4, s{sW}, 10
          s_add_u32 s4, s4, {Q_BASE}
          v_add_u32 v4, s4, v1
          s_lshl_b32 s4, s3, 2
          s_add_u32 s4, s4, {KVF}
          v_mov_b32 v149, s4
          s_mul_i32 s4, s3, {HSTR}
          s_lshl_b32 s5, s5, 10
          s_add_u32 s4, s4, s5
          v_add_u32 v{KA}, s4, v1
          v_lshrrev_b32 v10, 5, v0
          v_and_b32 v11, 15, v0
          v_lshlrev_b32 v11, 4, v11
          v_lshl_add_u32 v11, v10, 8, v11
          s_add_u32 s4, s4, 10240
          v_add_u32 v{VA_}, s4, v11
          v_mov_b32 v{NINF}, 0xff800000
          s_mov_b32 s{sVM}, 0x0000ffff
          s_mov_b32 s{sVM+1}, 0x0000ffff
          s_mov_b32 s6, 0x00110000
          s_mov_b32 s7, 0x00110000
          v_mov_b32 v10, 0x3f803f80""")
    for t in range(16): a(f"v_cndmask_b32 v{VF+t}, 0, v10, s[6:7]")
    a("v_mov_b32 v10, 0xffff\nv_mov_b32 v11, 0xffff0000")
    for t in range(8):
        a(f"""v_cndmask_b32 v{MK+t}, 0, v10, s[{64+4*t}:{65+4*t}]
              v_cndmask_b32 v5, 0, v11, s[{66+4*t}:{67+4*t}]
              v_or_b32 v{MK+t}, v{MK+t}, v5""")
    stamp(a, 11)
    a(f"""v_mov_b32 v5, {OWNF}
          s_mov_b32 s60, 0""")
    a.label("L_ownw")
    a(f"""ds_read_b128 v[12:15], v5
          s_add_u32 s60, s60, 1
          s_cmp_gt_u32 s60, {SPIN_MAX*8}
          s_cbranch_scc1 L_ownx
          s_waitcnt lgkmcnt(0)
          v_and_b32 v12, v12, v13
          v_and_b32 v14, v14, v15
          v_and_b32 v12, v12, v14
          v_cmp_eq_u32 vcc, 0, v12
          s_cbranch_vccnz L_ownw""")
    a.label("L_ownx")
    stamp(a, 12)
    a(f"ds_read_b128 {vr(QF,4)}, v4")
    def kv_wait(lvl):
        uid[0] += 1
        L = f"kw{uid[0]}"
        a("s_mov_b32 s60, 0")
        a.label(L)
        a(f"""ds_read_b32 v11, v149
              s_add_u32 s60, s60, 1
              s_cmp_gt_u32 s60, {SPIN_MAX*8}
              s_cbranch_scc1 {L}x
              s_waitcnt lgkmcnt(0)
              v_readfirstlane_b32 s3, v11
              s_cmp_lt_u32 s3, {lvl}
              s_cbranch_scc1 {L}""")
        a.label(L + "x")
    def masks(val):
        return [f"""v_cndmask_b32 v{CD+r}, v{NINF}, {val}, s[{64+2*r}:{65+2*r}]
                  v_cndmask_b32 v{CF+r}, {val}, v{NINF}, s[{64+2*r}:{65+2*r}]""" for r in range(16)]
    def maxblk(S_, first):
        if first: a(f"v_max_f32 v{MX}, v{S_}, v{S_+1}")
        for t in range(2 if first else 0, 16, 2):
            a(f"v_max3_f32 v{MX}, v{S_+t}, v{S_+t+1}, v{MX}")
    def xhalf_max():
        a(f"""v_mov_b32 v10, v{MX}
              s_nop 1
              v_permlane32_swap_b32 v10, v{MX}
              s_nop 1
              v_max_f32 v{MX}, v{MX}, v10""")
    order = [7, 6, 5, 4, 3, 2, 1, 8, 0]
    def rdK(n): return f"ds_read_b128 {vr(KF+4*(n%3),4)}, v{KA} offset:{order[n]*1024}"
    def rdV(n):
        b = VF + 8*(n % 2)
        return f"""s_mov_b64 exec, s[{sVM}:{sVM+1}]
              ds_read_b128 {vr(b,4)}, v{VA_} offset:{order[n]*1024}
              ds_read_b128 {vr(b+4,4)}, v{VA_} offset:{order[n]*1024+512}
              s_mov_b64 exec, -1"""
    def mS(k, Dd): return f"{MFMA} {vr(Dd,16)}, {vr(KF+4*(k%3),4)}, {vr(QF,4)}, {vr(CN,16)}"
    a("s_setprio 3")
    PTN = opt("--ptn", 1)
    if PTN < 0: pt_load()
    if FORCE_SLOW: a("s_branch L_preslow")
    CI_ = 149
    def fast(first):
        def mSv(k, Dd, tag=''):
            if not first or k == 7: a(mS(k, Dd)); return
            inv = f"{MFMA} {vr(Dd,16)}, {vr(KF+4*(k%3),4)}, {vr(QF,4)}, {vr(CI_+1,16)}"
            if k == 8: a(inv); return
            a(f"""s_cmp_gt_u32 s{sNF}, {k}
                  s_cbranch_scc1 L_fv{k}{tag}
                  {inv}
                  s_branch L_fw{k}{tag}""")
            a.label(f"L_fv{k}{tag}")
            a(mS(k, Dd))
            a.label(f"L_fw{k}{tag}")
        F = int(first)
        if first:
            for r in range(16): a(f"v_mov_b32 v{CI_+1+r}, v{NINF}")
        def standin():
            a(f"""v_max3_f32 v{MX}, v{S+16}, v{S+17}, v{S+18}
                  v_max3_f32 v10, v{S+19}, v{S+20}, v{S+21}
                  v_max3_f32 v11, v{S+22}, v{S+23}, v{S+24}
                  v_max3_f32 v{MX}, v{S+25}, v{S+26}, v{MX}
                  v_max3_f32 v10, v{S+27}, v{S+28}, v10
                  v_max3_f32 v11, v{S+29}, v{S+30}, v11
                  v_max3_f32 v{MX}, v{S+31}, v{MX}, v10
                  v_max_f32 v{MX}, v{MX}, v11""")
            xhalf_max()
            a(f"v_sub_f32 v{CN}, 0xc2700000, v{MX}")
            for r in range(1, 16): a(f"v_mov_b32 v{CN+r}, v{CN}")
        a(f"""s_cmp_lt_u32 s{sW}, 4
              s_cbranch_scc1 L_q0{F}""")
        a(rdK(0)); a(rdV(0))
        a(f"""s_waitcnt lgkmcnt(2)
              {MFMA} {vr(S+16,16)}, {vr(KF,4)}, {vr(QF,4)}, 0
              s_nop 11""")
        standin()
        a("s_nop 1"); a(mS(0, S)); a("s_nop 11")
        for r in range(12): a(f"v_exp_f32 v{S+r}, v{S+r}")
        for t in range(4): a(f"v_cvt_pk_bf16_f32 v{PP+t}, v{S+2*t}, v{S+2*t+1}")
        a(f"""v_exp_f32 v{S+12}, v{S+12}
              s_waitcnt lgkmcnt(0)
              {MFMA} {vr(O,16)}, {vr(VF,4)}, {vr(PP,4)}, 0""")
        for r in range(13, 16): a(f"v_exp_f32 v{S+r}, v{S+r}")
        for t in range(4, 8): a(f"v_cvt_pk_bf16_f32 v{PP+t}, v{S+2*t}, v{S+2*t+1}")
        stamp(a, 30)
        a("s_barrier")
        a(rdK(1)); a("s_barrier"); a(rdK(2)); a(rdV(1))
        a("s_waitcnt lgkmcnt(3)")
        mSv(1, S+16, "b")
        a(f"s_nop 10\ns_branch L_n1{F}")
        a.label(f"L_q0{F}")
        a(f"""ds_read_b128 {vr(KF+8,4)}, v{KA} offset:{8*1024}
              s_waitcnt lgkmcnt(0)
              {MFMA} {vr(S+16,16)}, {vr(KF+8,4)}, {vr(QF,4)}, 0
              s_nop 11""")
        for r in range(16): a(f"v_cndmask_b32 v{S+16+r}, v{NINF}, v{S+16+r}, s[{64+2*r}:{65+2*r}]")
        standin()
        stamp(a, 30)
        a("s_barrier")
        a(rdK(0)); a(rdK(1)); a(rdV(0))
        a("s_waitcnt lgkmcnt(3)")
        mSv(0, S)
        prev = None
        for n in range(8):
            Sn = S + 16*(n % 2); Vn = VF + 8*(n % 2)
            P_ = PP if n % 2 == 0 else P2
            ex = lambda r: a(f"v_exp_f32 v{Sn+r}, v{Sn+r}")
            cv = lambda t: a(f"v_cvt_pk_bf16_f32 v{P_+t}, v{Sn+2*t}, v{Sn+2*t+1}")
            if n == 1: a.label(f"L_n1{F}")
            if n == PTN: pt_load()
            PR = dict(zip([int(c) for c in opt("--pr", "357")], (2, 1, 0)))
            if n in PR: a(f"s_setprio {PR[n]}")
            if n in (2, 4):
                a(f"""v_readfirstlane_b32 s3, v11
                      s_cmp_ge_u32 s3, {n//2}
                      s_cbranch_scc1 L_kf{int(first)}{n}""")
                kv_wait(n//2)
                a.label(f"L_kf{int(first)}{n}")
            if n == 0:
                a("s_waitcnt lgkmcnt(2)"); mSv(1, S+16); a("s_barrier"); a(rdK(2)); a(rdV(1)); a("s_nop 3")
            if n == 7:
                a("s_nop 1"); a(prev); a("s_nop 2")
                for r in range(16): a(f"v_cndmask_b32 v{Sn+r}, v{S3+r}, v{Sn+r}, s[{64+2*r}:{65+2*r}]")
            for r in range(4): ex(r)
            if 0 < n < 7: a(prev)
            if n == 7: a(rdV(8))
            for r in range(4, 8): ex(r)
            if 0 < n < 7:
                a("s_waitcnt lgkmcnt(2)"); mSv(n+1, S + 16*((n+1) % 2))
                if n in (1, 3): a("ds_read_b32 v11, v149")
                a(rdK(n+2)); a(rdV(n+1))
            for t in range(4): cv(t)
            for r in range(8, 12): ex(r)
            if n < 7:
                a("s_waitcnt lgkmcnt(3)")
                a(f"{MFMA} {vr(O,16)}, {vr(Vn,4)}, {vr(P_,4)}, {'0' if n == 0 else vr(O,16)}")
            else:
                for t in range(4): a(f"v_and_b32 v{PP+t}, v{MK+t}, v{P_+t}\nv_xor_b32 v{P_+t}, v{PP+t}, v{P_+t}")
                a("s_waitcnt lgkmcnt(2)")
                a(f"{MFMA} {vr(O,16)}, {vr(Vn,4)}, {vr(PP,4)}, {vr(O,16)}")
            ex(12); ex(13)
            if n == 6: a("s_waitcnt lgkmcnt(2)"); mSv(8, S3)
            if n == 7: a("s_waitcnt lgkmcnt(0)"); a(f"{MFMA} {vr(O,16)}, {vr(VF,4)}, {vr(P2,4)}, {vr(O,16)}")
            ex(14); ex(15)
            for t in range(4, 8): cv(t)
            prev = f"{MFMA} {vr(O,16)}, {vr(Vn+4,4)}, {vr(P_+4,4)}, {vr(O,16)}"
        for t in range(4, 8): a(f"v_and_b32 v{PP+t}, v{MK+t}, v{P2+t}\nv_xor_b32 v{P2+t}, v{PP+t}, v{P2+t}")
        a(f"""s_nop 0
          {MFMA} {vr(O,16)}, {vr(VF+12,4)}, {vr(PP+4,4)}, {vr(O,16)}
          {MFMA} {vr(O,16)}, {vr(VF+4,4)}, {vr(P2+4,4)}, {vr(O,16)}
          s_waitcnt vmcnt(0)
          v_cmp_ne_u32 s[6:7], s{sPTV}, v148
          v_mov_b32 v14, 0x7f800000
          s_nop 8
          v_add_f32 v10, |v{O}|, |v{O+1}|
          v_add_f32 v11, |v{O+2}|, |v{O+3}|
          v_add_f32 v12, |v{O+4}|, |v{O+5}|
          v_add_f32 v13, |v{O+6}|, |v{O+7}|
          v_add_f32 v10, v10, v11
          v_add_f32 v12, v12, v13
          v_mul_f32 v11, 0x43800000, v{O+8}
          v_add_f32 v10, v10, v12
          v_add_f32 v11, v10, v11
          v_rcp_f32 v10, v{O+8}
          v_cmp_lt_f32 vcc, v11, v14
          s_cmp_eq_u64 vcc, -1
          s_cbranch_scc1 L_norm
          s_branch L_slow""")
    a(f"""s_cmp_eq_u32 s{sR}, 0
          s_cbranch_scc1 L_first""")
    fast(False)
    a.label("L_first")
    fast(True)
    a.label("L_preslow")
    a("s_barrier\ns_barrier")
    kv_wait(2)
    if PTN >= 0: pt_load()
    a.label("L_slow")
    a(f"""s_setprio 0
          s_sub_u32 s3, 8, s{sNF}
          s_lshl_b32 s3, s3, 10
          s_waitcnt lgkmcnt(0)""")
    for x in masks("0"): a(x)
    a(f"""ds_read_b128 {vr(KF,4)}, v{KA} offset:{8*1024}
          s_waitcnt lgkmcnt(0)
          {MFMA} {vr(S,16)}, {vr(KF,4)}, {vr(QF,4)}, {vr(CD,16)}
          s_nop 11""")
    maxblk(S, True)
    a(f"""s_cmp_eq_u32 s{sR}, 0
          s_cbranch_scc1 L_s1nofar
          ds_read_b128 {vr(KF,4)}, v{KA}
          s_waitcnt lgkmcnt(0)
          {MFMA} {vr(S,16)}, {vr(KF,4)}, {vr(QF,4)}, {vr(CF,16)}
          s_nop 11""")
    maxblk(S, False)
    a.label("L_s1nofar")
    a(f"""s_mov_b32 s{sI}, s{sNF}
          v_add_u32 v10, s3, v{KA}
          s_cmp_eq_u32 s{sI}, 0
          s_cbranch_scc1 L_s1done""")
    a.label("L_s1loop")
    a(f"""ds_read_b128 {vr(KF,4)}, v10
          v_add_u32 v10, 1024, v10
          s_waitcnt lgkmcnt(0)
          {MFMA} {vr(S,16)}, {vr(KF,4)}, {vr(QF,4)}, 0
          s_nop 11""")
    maxblk(S, False)
    a(f"""s_sub_u32 s{sI}, s{sI}, 1
          s_cmp_lg_u32 s{sI}, 0
          s_cbranch_scc1 L_s1loop""")
    a.label("L_s1done")
    xhalf_max()
    a(f"v_sub_f32 v{MX}, 0, v{MX}")
    for x in masks(f"v{MX}"): a(x)
    for r in range(16): a(f"v_mov_b32 v{CN+r}, v{MX}")
    def pvblk(kaddr, vaddr, off, C, first):
        a(f"""ds_read_b128 {vr(KF,4)}, v{kaddr} offset:{off}
              s_mov_b64 exec, s[{sVM}:{sVM+1}]
              ds_read_b128 {vr(VF,4)}, v{vaddr} offset:{off}
              ds_read_b128 {vr(VF+4,4)}, v{vaddr} offset:{off+512}
              s_mov_b64 exec, -1
              s_waitcnt lgkmcnt(0)
              {MFMA} {vr(S,16)}, {vr(KF,4)}, {vr(QF,4)}, {vr(C,16)}
              s_nop 11""")
        for r in range(16): a(f"v_exp_f32 v{S+r}, v{S+r}")
        for t in range(8): a(f"v_cvt_pk_bf16_f32 v{PP+t}, v{S+2*t}, v{S+2*t+1}")
        a("s_nop 1")
        a(f"{MFMA} {vr(O,16)}, {vr(VF,4)}, {vr(PP,4)}, {'0' if first else vr(O,16)}")
        a(f"{MFMA} {vr(O,16)}, {vr(VF+4,4)}, {vr(PP+4,4)}, {vr(O,16)}")
    pvblk(KA, VA_, 8*1024, CD, True)
    a(f"""s_cmp_eq_u32 s{sR}, 0
          s_cbranch_scc1 L_s2nofar""")
    pvblk(KA, VA_, 0, CF, False)
    a.label("L_s2nofar")
    a(f"""s_mov_b32 s{sI}, s{sNF}
          v_add_u32 v10, s3, v{KA}
          v_add_u32 v11, s3, v{VA_}
          s_cmp_eq_u32 s{sI}, 0
          s_cbranch_scc1 L_s2done""")
    a.label("L_s2loop")
    pvblk(10, 11, 0, CN, False)
    a(f"""v_add_u32 v10, 1024, v10
          v_add_u32 v11, 1024, v11
          s_sub_u32 s{sI}, s{sI}, 1
          s_cmp_lg_u32 s{sI}, 0
          s_cbranch_scc1 L_s2loop""")
    a.label("L_s2done")
    a(f"""s_waitcnt vmcnt(0)
          v_cmp_ne_u32 s[6:7], s{sPTV}, v148
          s_nop 12
          v_rcp_f32 v10, v{O+8}
          s_nop 0""")
    a.label("L_norm")
    for t in range(8): a(f"v_mul_f32 v{O+t}, v10, v{O+t}")
    for t in range(4): a(f"v_cvt_pk_bf16_f32 v{PP+t}, v{O+2*t}, v{O+2*t+1}")
    a(f"s_add_u32 s4, s{sQO}, {WS_O}")
    if MODE == "auto":
        a(f"""s_cmp_eq_u64 s[6:7], 0
              s_cbranch_scc0 L_ox
              buffer_store_dwordx4 {vr(PP,4)}, v1, s[{SWS}:{SWS+3}], s4 offen""")
        stamp(a, 13)
        publish(a, sF2, 10, flav="")
        a("s_branch L_od")
        a.label("L_ox")
    a(f"buffer_store_dwordx4 {vr(PP,4)}, v1, s[{SWS}:{SWS+3}], s4 offen {ST}")
    stamp(a, 13 if MODE != "auto" else 19)
    publish(a, sF2, 10)
    a.label("L_od")
    stamp(a, 14)
    a(f"""s_barrier
          s_cmp_ge_u32 s{sW}, 4
          s_cbranch_scc1 L_fin""")
    OA, WA2, ACC2, W2, O2 = 8, 9, 16, 32, 32
    a(f"""s_and_b32 s5, s{sW}, 1
          v_lshrrev_b32 v2, 5, v0
          v_bfe_u32 v3, v0, 2, 2
          v_lshl_add_u32 v4, v2, 2, v3
          v_lshlrev_b32 v4, 7, v4
          v_bfe_u32 v5, v0, 4, 1
          v_lshlrev_b32 v5, 1, v5
          v_and_b32 v6, 1, v0
          v_add_u32 v5, v5, v6
          s_and_b32 s3, s{sW}, 2
          s_lshl_b32 s3, s3, 1
          v_add_u32 v5, s3, v5
          v_bfe_u32 v6, v0, 3, 1
          v_lshlrev_b32 v6, 2, v6
          v_xor_b32 v5, v5, v6
          v_lshl_add_u32 v4, v5, 4, v4
          v_bfe_u32 v6, v0, 1, 1
          v_lshl_add_u32 v4, v6, 3, v4
          v_add_u32 v{WA2}, {WO_BASE}, v4
          s_lshl_b32 s3, s5, 10
          v_add_u32 v{OA}, s3, v1
          v_and_b32 v14, 31, v0
          s_lshl_b32 s3, s{sTB}, 6
          s_lshl_b32 s5, s5, 5
          s_add_u32 s3, s3, s5
          v_add_u32 v14, s3, v14
          v_lshlrev_b32 v14, 11, v14
          v_lshl_add_u32 v14, v2, 4, v14
          s_lshl_b32 s3, s{sHG}, 7
          s_and_b32 s5, s{sW}, 2
          s_lshl_b32 s5, s5, 5
          s_add_u32 s3, s3, s5
          s_add_u32 s3, s3, 1024
          v_add_u32 v14, s3, v14
          v_mov_b32 v15, v{OA}""")
    heads = [8*(k//4 % 4) + 4*(k//16) + k % 4 for k in range(32)]
    OB = [2, 6, 10, 160]
    for k in range(32):
        for q in range(2):
            a(f"ds_read_b64_tr_b16 {vr(W2+4*k+2*q,2)}, v{WA2} offset:{heads[k]*2048 + q*1024}")
    a("s_waitcnt lgkmcnt(0)\ns_barrier")
    stamp(a, 28)
    rdo = lambda k: f"ds_read_b128 {vr(OB[k % 4],4)}, v15 offset:{heads[k]*2048}"
    for k in range(4): a(rdo(k))
    for k in range(32):
        if k == 12:
            a("s_barrier")
            stamp(a, 16)
        a(f"s_waitcnt lgkmcnt({min(3, 31-k)})")
        a(f"{MFMA} {vr(ACC2,16)}, {vr(W2+4*k,4)}, {vr(OB[k % 4],4)}, {'0' if k == 0 else vr(ACC2,16)}")
        if k + 4 < 32: a(rdo(k+4))
    a("s_nop 11")
    for mm in range(2):
        for t in range(4):
            a(f"v_cvt_pk_bf16_f32 v{O2+4*mm+t}, v{ACC2+8*mm+2*t}, v{ACC2+8*mm+2*t+1}")
        a(f"buffer_store_dwordx4 {vr(O2+4*mm,4)}, v14, s[{SOUT}:{SOUT+3}], 0 offen offset:{32*mm} {OPF}")
    stamp(a, 17)
    a.label("L_fin")
    stamp_flush(a, 18)
    a.label("L_end")
    a.label("L_last_insn")
    a("s_endpgm")
    return a

def main():
    a = gen()
    hdr = f"""; {NAME} : one fused kernel (generated by my gen11.py)
; @launch grid=(256,1,1) block=(768,1,1) lds=163840
.amdgcn_target "amdgcn-amd-amdhsa--gfx950"
.text
"""
    kd = f""".section .rodata,"a"
.p2align 6
.amdhsa_kernel {KN}
  .amdhsa_next_free_vgpr 168
  .amdhsa_next_free_sgpr 102
  .amdhsa_accum_offset 168
  .amdhsa_group_segment_fixed_size 0
  .amdhsa_kernarg_size 88
  .amdhsa_user_sgpr_count 2
  .amdhsa_user_sgpr_kernarg_segment_ptr 1
  .amdhsa_system_sgpr_workgroup_id_x 1
.end_amdhsa_kernel
"""
    path = sys.argv[1] if len(sys.argv) > 1 and sys.argv[1].endswith(".s") else f"cdna_kernels/{NAME}.s"
    open(path, "w").write(hdr + a.text() + kd)
main()
```

```python
import sys, struct, math

NAME = "concat_heads__spectral_fnet__sliding_block__prompt"
KN = NAME + "_kernel"
WS_Q, WS_K, WS_V, WS_O, WS_U = 0, 2 << 20, 4 << 20, 6 << 20, 8 << 20
WS_F1, WS_F2, WS_PT, WS_F3 = (11 << 20), (11 << 20) + 0x20000, (11 << 20) + 0x60000, (11 << 20) + 0x70000
U_ROW = 4224
U_GP = 16 * U_ROW
U_SIZE = 32 * U_GP
QSCALE = 0.25 * math.log2(math.e)
uid = [0]
STAMP = "--stamp" in sys.argv
FORCE_SLOW = "--slow" in sys.argv
SKIP = set(int(x) for x in sys.argv[sys.argv.index("--skip")+1].split(",")) if "--skip" in sys.argv else set()
ST = sys.argv[sys.argv.index("--st")+1].replace("+", " ") if "--st" in sys.argv else "sc1"
LD = "sc1"
SPIN_MAX = 200000
def opt(name, default):
    return type(default)(sys.argv[sys.argv.index(name)+1]) if name in sys.argv else default
PDELAY = opt("--pdelay", 0)
PIPE = "--pipe" in sys.argv
FULLF = "--fullf" in sys.argv
KVLD = sys.argv[sys.argv.index("--kvld")+1].replace("+", " ").replace("none", "") if "--kvld" in sys.argv else "sc1"
A2ST = "sc1" if "--a2sc1" in sys.argv else ""
WB = "--wb" in sys.argv

def f2u(x): return struct.unpack("<I", struct.pack("<f", x))[0]

class Asm:
    def __init__(self): self.L = []
    def __call__(self, s):
        for line in s.strip("\n").split("\n"):
            line = line.strip()
            if line: self.L.append(line if line.endswith(":") and " " not in line else "  " + line)
    def label(self, n): self.L.append(n + ":")
    def text(self): return "\n".join(self.L) + "\n"

def vr(b, n=1): return f"v{b}" if n == 1 else f"v[{b}:{b+n-1}]"
MFMA = "v_mfma_f32_32x32x16_bf16"

kAX, kSR, kSI, kDR, kDI, kBX, kWQ, kWO, kOUT, kDBG, kWS = 64, 66, 68, 70, 72, 74, 76, 78, 80, 82, 84
sTB, sHG, sJ, sW, sNON = 16, 17, 18, 19, 20
sHD, sR = 21, 22
SWS = 32
VST = 167

def srd(a, d, k, size, off=0):
    if off:
        a(f"s_add_u32 s{d}, s{k}, {off}\ns_addc_u32 s{d+1}, s{k+1}, 0")
    else:
        a(f"s_mov_b32 s{d}, s{k}\ns_mov_b32 s{d+1}, s{k+1}")
    a(f"s_mov_b32 s{d+2}, {size}\ns_mov_b32 s{d+3}, 0x20000")

AMP = [int(x) for x in sys.argv[sys.argv.index("--amp")+1].split(",")] if "--amp" in sys.argv else None
def amp_end(a):
    if not AMP: return
    uid[0] += 1
    L = f"amp{uid[0]}"
    a(f"""s_cmp_lg_u32 s2, {AMP[3]}
          s_cbranch_scc1 {L}x
          s_cmp_lg_u32 s{sW}, {AMP[4]}
          s_cbranch_scc1 {L}x
          s_waitcnt vmcnt(0)
          s_memrealtime s[62:63]
          s_sub_u32 s100, s101, s100
          s_min_u32 s100, s100, 10000
          s_mul_i32 s100, s100, {AMP[2]}
          s_waitcnt lgkmcnt(0)
          s_add_u32 s100, s100, s62""")
    a.label(L)
    a(f"""s_memrealtime s[62:63]
          s_waitcnt lgkmcnt(0)
          s_sub_u32 s61, s62, s100
          s_cmp_lt_i32 s61, 0
          s_cbranch_scc1 {L}""")
    a.label(L + "x")
GMAX = None
def stamp(a, idx):
    if AMP and idx in AMP[:2]:
        a(f"""s_memrealtime s[62:63]
              s_waitcnt lgkmcnt(0)
              s_mov_b32 s{100 + AMP[:2].index(idx)}, s62""")
    if not STAMP: return
    if idx in SKIP: return
    a(f"""s_memrealtime s[96:97]
          s_memtime s[98:99]
          s_waitcnt lgkmcnt(0)
          v_writelane_b32 v{VST}, s96, {idx}
          v_writelane_b32 v{VST}, s98, {idx+32}""")
def stamp_flush(a, idx):
    if AMP:
        if idx in AMP[:2]: a("s_waitcnt vmcnt(0)")
        stamp(a, idx)
        amp_end(a)
    if not STAMP: return
    a("s_waitcnt vmcnt(0)")
    stamp(a, idx)
    srd(a, 88, SWS, 0x100000, 16 << 20)
    a(f"""s_mov_b64 exec, -1
          s_lshl_b32 s92, s2, 12
          s_lshl_b32 s93, s{sW}, 8
          s_add_u32 s92, s92, s93
          v_mbcnt_lo_u32_b32 v2, -1, 0
          v_mbcnt_hi_u32_b32 v2, -1, v2
          v_lshlrev_b32 v2, 2, v2
          buffer_store_dword v{VST}, v2, s[88:91], s92 offen""")

def poll(a, vaddr, vtmp, nl_mask, srdreg=SWS):
    uid[0] += 1
    L = f"poll{uid[0]}"
    a(f"""s_mov_b32 s60, 0
          s_mov_b64 exec, {nl_mask}""")
    a.label(L)
    a(f"""buffer_load_dword v{vtmp}, v{vaddr}, s[{srdreg}:{srdreg+3}], 0 offen sc1
          s_add_u32 s60, s60, 1
          s_cmp_gt_u32 s60, {SPIN_MAX}
          s_cbranch_scc1 {L}x
          s_waitcnt vmcnt(0)
          v_cmp_ne_u32 vcc, s{sNON}, v{vtmp}
          s_cbranch_vccnz {L}""")
    a.label(L + "x")
    a("s_mov_b64 exec, -1")

def poll_pipe(a, vaddr, vt, nl_mask, gap=2):
    uid[0] += 1
    L = f"pp{uid[0]}"
    ld = lambda k: f"buffer_load_dword v{vt+k}, v{vaddr}, s[{SWS}:{SWS+3}], 0 offen sc1"
    a(f"""s_mov_b32 s60, 0
          s_mov_b64 exec, {nl_mask}
          {ld(0)}
          s_sleep {gap}
          {ld(1)}""")
    a.label(L)
    for k in range(3):
        a(f"""s_sleep {gap}
              {ld((k+2)%3)}
              s_waitcnt vmcnt(2)
              v_cmp_ne_u32 vcc, s{sNON}, v{vt+k}
              s_cbranch_vccz {L}x""")
    a(f"""s_add_u32 s60, s60, 1
          s_cmp_lt_u32 s60, {SPIN_MAX}
          s_cbranch_scc1 {L}""")
    a.label(L + "x")
    a("s_mov_b64 exec, -1")

def poll2(a, va, vt):
    uid[0] += 1
    L = f"pq{uid[0]}"
    a("s_mov_b32 s60, 0")
    a.label(L)
    a(f"""buffer_load_dwordx2 v[{vt}:{vt+1}], v{va}, s[{SWS}:{SWS+3}], 0 offen sc1
          s_add_u32 s60, s60, 1
          s_cmp_gt_u32 s60, {SPIN_MAX}
          s_cbranch_scc1 {L}x
          s_waitcnt vmcnt(0)
          v_cmp_ne_u32 vcc, s{sNON}, v{vt}
          v_cmp_ne_u32 s[10:11], s{sNON}, v{vt+1}
          s_or_b64 vcc, vcc, s[10:11]
          s_cbranch_vccnz {L}""")
    a.label(L + "x")

def publish(a, soff, vtmp, cnt=0, flav=None):
    if FULLF:
        a(f"""v_mov_b32 v{vtmp}, s{sNON}
              v_mov_b32 v{vtmp+1}, s{sNON}
              s_waitcnt vmcnt({cnt})
              s_mov_b64 exec, 0xffff
              buffer_store_dwordx2 v[{vtmp}:{vtmp+1}], v166, s[{SWS}:{SWS+3}], s{soff} offen {ST if flav is None else flav}
              s_mov_b64 exec, -1""")
        return
    a(f"""s_waitcnt vmcnt({cnt})
          v_mov_b32 v{vtmp}, s{sNON}
          s_mov_b64 exec, 1
          buffer_store_dword v{vtmp}, off, s[{SWS}:{SWS+3}], s{soff} {ST if flav is None else flav}
          s_mov_b64 exec, -1""")

def nonce_wait(a, vtmp, first_loaded):
    uid[0] += 1
    L = f"non{uid[0]}"
    a("s_mov_b32 s60, 0")
    if first_loaded:
        a(f"s_branch {L}c")
    a.label(L)
    a(f"""buffer_load_dword v{vtmp}, off, s[56:59], 0 sc1
          s_waitcnt vmcnt(0)""")
    a.label(L + "c")
    a(f"""v_readfirstlane_b32 s{sNON}, v{vtmp}
          s_add_u32 s60, s60, 1
          s_cmp_gt_u32 s60, {SPIN_MAX}
          s_cbranch_scc1 {L}x
          s_cmp_eq_u32 s{sNON}, 0
          s_cbranch_scc1 {L}""")
    a.label(L + "x")

def diag_mask(r):
    g, i = r // 4, r % 4
    return (0xffffffff << (8*g+i)) & 0xffffffff, (0xffffffff << (8*g+i+4)) & 0xffffffff

MODE = sys.argv[sys.argv.index("--mode")+1] if "--mode" in sys.argv else "auto"
A2F = opt("--a2st", "").replace("+", " ")
OPF = opt("--opst", "").replace("+", " ")
XR, WR, WSL = 0, 65536, 24576
NS = opt('--ns', 3)
QSLOT = [WR + 2*WSL, WR, WR + 3*WSL, WR + WSL] if NS == 3 else [WR + k*WSL for k in range(4)]
UPN = opt('--upn', 1)
PUBU = opt('--pubu', 0)
Q_BASE = 81920
WO_BASE = 98304
HSTR = 20480
UE = '--noue' not in sys.argv
ALIGN = '--noalign' not in sys.argv
OWNF = WR + WSL + 16384 + 4096
MST = WR + 2*WSL
B11E = '--b11e' in sys.argv
NONW = 163840 - 1024
OWNB = opt('--ownb', 1)
KVF = 90112
UF = 64
sX = sR

def gen():
    a = Asm()
    a.L += [f".globl {KN}", ".p2align 8", f".type {KN},@function"]
    a.label(KN)
    a(f"""s_cmp_ge_u32 s2, 256
          s_cbranch_scc1 L_end
          s_load_dwordx16 s[64:79], s[0:1], 0
          s_load_dwordx4 s[80:83], s[0:1], 64
          s_load_dwordx2 s[84:85], s[0:1], 80
          v_lshrrev_b32 v1, 6, v0
          v_and_b32 v0, 63, v0
          s_and_b32 s{sX}, s2, 7
          v_readfirstlane_b32 s{sW}, v1
          s_lshr_b32 s{sJ}, s2, 3
          s_lshl_b32 s3, s{sX}, 2
          s_and_b32 s4, s{sJ}, 3
          s_add_u32 s{sTB}, s3, s4
          s_lshr_b32 s{sHG}, s2, 5
          s_xor_b32 s{sHG}, s{sHG}, {opt("--hgx", 0)}""")
    if FULLF: a("v_lshlrev_b32 v166, 3, v0")
    if STAMP: a(f"v_mov_b32 v{VST}, 0")
    stamp(a, 0)
    a(f"""s_cmp_lt_u32 s{sW}, 8
          s_cbranch_scc1 L_consumer""")
    sQO, sF2, sPTV = 12, 13, 14
    def get_tag(vt):
        a(f"""v_mov_b32 v{vt}, {NONW}
              ds_read_b32 v{vt}, v{vt}
              s_waitcnt lgkmcnt(0)
              v_readfirstlane_b32 s{sNON}, v{vt}
              s_nop 1""")
    def pt_load():
        if MODE == "auto":
            a(f"""v_and_b32 v147, 31, v0
                  s_lshl_b32 s3, s{sX}, 7
                  s_add_u32 s3, s3, {WS_PT}
                  v_lshl_add_u32 v147, v147, 2, s3
                  buffer_load_dword v148, v147, s[{SWS}:{SWS+3}], 0 offen sc1""")
    sLW, sROT, sSOX, sSOW, sMX, sMW, sTY = 23, 15, 28, 29, 30, 31, 27
    SX, SWD, SAX = 36, 40, 48
    SWOD, SOUT = 44, 40
    sC0 = 24
    XO, WO_, XA1 = 8, 10, 14
    sRA, sAX = 21, 25
    a(f"""s_sub_u32 s{sLW}, s{sW}, 8
          s_lshl_b32 s3, s{sTB}, 2
          s_add_u32 s3, s3, s{sLW}
          s_lshl_b32 s3, s3, 14                    ; (64tb + 16lw)*1024
          v_lshrrev_b32 v1, 3, v0
          v_and_b32 v2, 7, v0
          v_lshrrev_b32 v3, 4, v0
          v_xor_b32 v4, v3, v2
          v_xor_b32 v5, 4, v4
          v_lshlrev_b32 v4, 4, v4
          v_lshlrev_b32 v5, 4, v5
          v_lshl_add_u32 v6, v1, 10, s3
          v_add_u32 v{XO}, v6, v4
          v_add3_u32 v{XO+1}, v6, v5, s4
          v_and_b32 v6, 1, v3
          v_lshlrev_b32 v6, 2, v6
          v_xor_b32 v6, v6, v2
          s_lshl_b32 s3, s{sHG}, 7
          v_lshl_add_u32 v6, v6, 4, s3
          s_and_b32 s3, s{sLW}, 1
          s_lshl_b32 s3, s3, 5
          v_add_u32 v7, s3, v1
          s_movk_i32 s3, 3072
          v_mad_u32_u24 v{WO_}, v7, s3, v6""".replace("v_add3_u32 v9, v6, v5, s4", "v_add_u32 v9, v6, v5\n          v_add_u32 v9, 8192, v9"))
    for jw in range(1, 4): a(f"v_add_u32 v{WO_+jw}, {8*3072*jw}, v{WO_}")
    RM = opt('--rmode', 0)
    if RM == 0:
        a(f"""s_and_b32 s3, s{sJ}, 3
          s_lshl_b32 s3, s3, 1
          s_add_u32 s3, s3, s{sHG}
          s_add_u32 s3, s3, s{sX}
          s_and_b32 s{sROT}, s3, {opt('--rmask', 4)}""")
    elif RM == 1: a(f"s_mov_b32 s{sROT}, s{sX}")
    elif RM == 2:
        a(f"""s_and_b32 s3, s{sJ}, 3
          s_lshl_b32 s3, s3, 1
          s_add_u32 s3, s3, s{sHG}
          s_and_b32 s3, s3, 4
          s_add_u32 s3, s3, s{sX}
          s_and_b32 s{sROT}, s3, 7""")
    a(f"""s_nop 0
          s_lshr_b32 s{sTY}, s{sLW}, 1
          s_lshl_b32 s{sTY}, s{sTY}, 10
          s_add_u32 s{sTY}, s{sTY}, 1024
          s_lshl_b32 s{sSOX}, s{sROT}, 7
          s_mul_i32 s{sSOW}, s{sROT}, {64*3072}
          s_add_u32 s{sSOW}, s{sSOW}, s{sTY}
          s_lshl_b32 s{sMX}, s{sLW}, 11
          s_lshl_b32 s{sMW}, s{sLW}, 12
          s_waitcnt lgkmcnt(0)""")
    srd(a, SX, kBX, 0x200000)
    srd(a, SWD, kWQ, 0x180000)
    stamp(a, 1)
    def dma(sm0, m0off, v, S, so):
        a(f"""s_add_u32 m0, s{sm0}, {m0off}
              s_nop 0
              buffer_load_dwordx4 v{v}, s[{S}:{S+3}], s{so} offen lds""")
    def issue(st):
        if st < 8:
            for j in range(2): dma(sMX, XR + st*8192 + j*1024, XO+j, SX, sSOX)
        base = WR + (st % NS)*WSL if st < 8 else QSLOT[st-8]
        for j in range(4): dma(sMW, base + j*1024, WO_+j, SWD, sSOW)
        if st == 0:
            a(f"""; A_x rows: pi = 8*(x>>1) + (j&7) ; p = lw>>1, s1 = 16*(lw&1) + 8j + (i>>3)
          s_lshl_b32 s3, s{sTB}, 1
          s_lshr_b32 s4, s{sLW}, 1
          s_add_u32 s3, s3, s4
          s_lshl_b32 s3, s3, 10
          s_and_b32 s4, s{sLW}, 1
          s_lshl_b32 s4, s4, 20
          s_add_u32 s3, s3, s4
          v_lshl_add_u32 v6, v1, {10 if '--xcont' in sys.argv else 16}, s3
          v_add_u32 v{XA1}, v6, v4
          v_add_u32 v{XA1+1}, v6, v5
          v_add_u32 v{XA1+1}, {8*1024 if '--xcont' in sys.argv else 8*65536}, v{XA1+1}
          s_lshr_b32 s3, s{sJ}, 2
          s_and_b32 s{sRA}, s3, {opt('--amask', 4)}
          s_lshl_b32 s{sAX}, s{sRA}, 7""")
            srd(a, SAX, kAX, 0x200000)
        if st < 8:
            for j in range(2): dma(sMX, base + 16384 + j*1024, XO+j if '--xsame' in sys.argv else XA1+j, SX if '--xsame' in sys.argv else SAX, sSOX if '--xsame' in sys.argv else sAX)
        if st < 7:
            a(f"""s_add_u32 s{sROT}, s{sROT}, 1
                  s_and_b32 s{sROT}, s{sROT}, 7
                  s_lshl_b32 s{sSOX}, s{sROT}, 7
                  s_mul_i32 s{sSOW}, s{sROT}, {64*3072}
                  s_add_u32 s{sSOW}, s{sSOW}, s{sTY}
                  s_add_u32 s{sAX}, s{sAX}, 128
                  s_and_b32 s{sAX}, s{sAX}, 1023""")
        elif st < 11:
            a(f"s_add_u32 s{sROT}, s{sROT}, 2")
            a(f"""s_and_b32 s{sROT}, s{sROT}, 7
                  s_mul_i32 s{sSOW}, s{sROT}, {64*3072}""")
    issue(0)
    srd(a, SWS, kWS, 0x1000000)
    srd(a, 56, kDBG, 256)
    a(f"""          ; wo voffset: (128lw + (i>>3))*1024 + hg*128 + ((i&7) ^ (((i>>4)&1)<<2))*16
          v_and_b32 v6, 1, v3
          v_lshlrev_b32 v6, 2, v6
          v_xor_b32 v6, v6, v2
          s_lshl_b32 s3, s{sLW}, 17
          s_lshl_b32 s4, s{sHG}, 7
          s_add_u32 s3, s3, s4
          v_lshl_add_u32 v6, v6, 4, s3
          v_lshl_add_u32 v19, v1, 10, v6
          v_lshrrev_b32 v4, 1, v0
          v_add_u32 v4, s{sTB}, v4
          v_subrev_u32 v4, 4, v4
          v_and_b32 v5, 3, v4
          v_bfe_u32 v4, v4, 2, 3
          v_lshl_add_u32 v4, v5, 3, v4
          s_lshr_b32 s4, s2, 5
          s_lshl_b32 s4, s4, 12
          s_and_b32 s5, s{sLW}, 2
          s_lshl_b32 s5, s5, 2
          s_add_u32 s4, s4, s5
          v_lshl_add_u32 v4, v4, 7, s4
          v_and_b32 v5, 1, v0
          v_lshl_add_u32 v4, v5, 2, v4
          v_add_u32 v16, {WS_F1}, v4
          v_lshlrev_b32 v1, 4, v0
          s_lshl_b32 s9, s{sHG}, 2
          s_add_u32 s9, s9, s{sLW}
          s_lshl_b32 s5, s{sTB}, 11
          s_lshl_b32 s6, s9, 16
          s_add_u32 s10, s5, s6
          s_add_u32 s5, s10, {WS_O}
          v_lshl_add_u32 v24, v0, 7, s5
          s_lshl_b32 s4, s{sTB}, 6
          s_lshl_b32 s5, s{sLW}, 3
          s_add_u32 s4, s4, s5
          v_bfe_u32 v4, v0, 1, 3
          v_and_b32 v5, 1, v0
          v_lshl_add_u32 v4, v5, 5, v4
          v_add_u32 v4, s4, v4
          v_lshlrev_b32 v4, 2, v4
          v_add_u32 v25, {WS_F2}, v4
          s_lshl_b32 s5, s{sLW}, 19
          s_lshl_b32 s6, s{sTB}, 11
          s_add_u32 s5, s5, s6
          s_add_u32 s13, s5, {WS_O}""")
    MF, A2 = 96, 128
    sPF, sWB, sIH = 52, 54, 55
    a(f"""s_lshl_b32 s4, s2, 1
          s_lshr_b32 s5, s{sLW}, 1
          s_add_u32 s4, s4, s5
          s_mul_i32 s4, s4, 3072
          s_and_b32 s5, s{sLW}, 1
          s_lshl_b32 s5, s5, 9
          s_add_u32 s5, s5, s4
          s_add_u32 s{sPF}, s{kWQ}, s5
          s_addc_u32 s{sPF+1}, s{kWQ+1}, 0
          s_mov_b32 s{sIH}, 0
          s_mov_b32 s{sWB}, {WR + 2*WSL}
          s_add_u32 s11, s{sMX}, {XR + 2*8192}
          s_getreg_b32 s{sPTV}, hwreg(HW_REG_XCC_ID, 0, 16)
          s_lshl_b32 s{sPTV}, s{sPTV}, 8""")
    issue(1)
    def prefetch4():
        if "--nopf" in sys.argv: return
        a(f"""s_sub_u32 s3, s{sIH}, {opt("--pf0", 2)}
              s_cmp_ge_u32 s3, 4
              s_cbranch_scc1 L_hpf""")
        for k in range(4): a(f"s_load_dword s61, s[{sPF}:{sPF+1}], {64*k}")
        a(f"""s_add_u32 s{sPF}, s{sPF}, 256
              s_addc_u32 s{sPF+1}, s{sPF+1}, 0
              s_cmp_lg_u32 s3, 1
              s_cbranch_scc1 L_hpf
              s_lshl_b32 s4, s2, 2
              s_add_u32 s4, s4, s{sLW}
              s_lshl_b32 s5, s4, 9
              s_add_u32 s{sPF}, s{kWO}, s5
              s_addc_u32 s{sPF+1}, s{kWO+1}, 0""")
        a.label("L_hpf")
    stamp(a, 25)
    if ALIGN: a.L.append(".p2align 6")
    a.label("L_hl")
    a("s_waitcnt vmcnt(8)")
    if STAMP and "--lst" in sys.argv:
        a(f"""s_memrealtime s[96:97]
              s_add_u32 s3, s{sIH}, 2
              s_waitcnt lgkmcnt(0)
              v_writelane_b32 v{VST}, s96, s3""".replace("v_writelane_b32 v167, s96, s3", "s_mov_b32 m0, s3\nv_writelane_b32 v167, s96, m0"))
    a(f"""s_barrier
          s_add_u32 s4, s{sMW}, s{sWB}
          s_add_u32 s5, s{sMX}, s{sWB}""")
    for j in range(2): dma(11, j*1024, XO+j, SX, sSOX)
    for j in range(4): dma(4, j*1024, WO_+j, SWD, sSOW)
    for j in range(2): dma(5, 16384 + j*1024, XA1+j, SAX, sAX)
    prefetch4()
    a(f"""s_add_u32 s11, s11, 8192
          s_add_u32 s{sWB}, s{sWB}, {WSL}
          s_cmp_eq_u32 s{sWB}, {WR + 3*WSL}
          s_cselect_b32 s{sWB}, {WR}, s{sWB}
          s_add_u32 s{sROT}, s{sROT}, 1
          s_and_b32 s{sROT}, s{sROT}, 7
          s_lshl_b32 s{sSOX}, s{sROT}, 7
          s_mul_i32 s{sSOW}, s{sROT}, {64*3072}
          s_add_u32 s{sSOW}, s{sSOW}, s{sTY}
          s_add_u32 s{sAX}, s{sAX}, 128
          s_and_b32 s{sAX}, s{sAX}, 1023
          s_add_u32 s{sIH}, s{sIH}, 1
""")
    a(f"""s_cmp_lt_u32 s{sIH}, 6
          s_cbranch_scc1 L_hl
          s_lshr_b32 s3, s{sLW}, 1
          s_add_u32 s{sROT}, s{sROT}, s3
          s_and_b32 s{sROT}, s{sROT}, 7
          s_mul_i32 s{sSOW}, s{sROT}, {64*3072}
          s_cmp_lg_u32 s{sLW}, 0
          s_cbranch_scc1 L_hn0
          buffer_load_dword v18, off, s[56:59], 0 sc1
          s_waitcnt vmcnt(9)
          s_branch L_hn1""")
    a.label("L_hn0")
    a("s_waitcnt vmcnt(8)")
    a.label("L_hn1")
    a("s_barrier")
    issue(8)
    a(f"""s_cmp_lg_u32 s{sLW}, 0
          s_cbranch_scc1 L_hn2
          s_waitcnt vmcnt(5)
          s_branch L_hn3""")
    a.label("L_hn2")
    a("s_waitcnt vmcnt(4)")
    a.label("L_hn3")
    stamp(a, 9)
    a("s_barrier")
    issue(9); issue(10)
    a(f"""s_waitcnt vmcnt(8)
          s_cmp_lg_u32 s{sLW}, 0
          s_cbranch_scc1 L_hp2""")
    nonce_wait(a, 18, True)
    a(f"""v_mov_b32 v6, {NONW}
          v_mov_b32 v7, s{sNON}
          ds_write_b32 v6, v7""")
    if MODE == "auto":
        a(f"""s_xor_b32 s3, s{sPTV}, s{sNON}
              v_mov_b32 v18, s3
              s_lshl_b32 s3, s{sX}, 5
              s_add_u32 s3, s3, s{sJ}
              s_lshl_b32 s3, s3, 2
              s_add_u32 s3, s3, {WS_PT}
              s_mov_b64 exec, 1
              buffer_store_dword v18, off, s[{SWS}:{SWS+3}], s3
              s_mov_b64 exec, -1""")
    a("s_waitcnt lgkmcnt(0)")
    a.label("L_hp2")
    stamp(a, 20)
    a("s_barrier")
    issue(11)
    get_tag(6)
    srd(a, SWOD, kWO, 0x80000)
    srd(a, SOUT, kOUT, 0x400000)
    a(f"""; A2 task: tc = 2x + (j&1), cr16 = j>>1, sigma = w&1, nt = (w>>1)&1
          s_lshl_b32 s6, s{sX}, 1
          s_and_b32 s4, s{sJ}, 1
          s_add_u32 s6, s6, s4                    ; tc
          s_lshr_b32 s7, s{sJ}, 1                 ; cr16
          s_lshl_b32 s{sC0}, s7, 5
          s_lshr_b32 s4, s6, 2
          s_lshl_b32 s4, s4, 3
          s_and_b32 s5, s6, 3
          s_add_u32 s4, s4, s5
          s_and_b32 s5, s{sW}, 1
          s_lshl_b32 s5, s5, 2
          s_add_u32 s5, s4, s5                    ; t1 source
          s_sub_u32 s4, 32, s5
          s_and_b32 s4, s4, 31
          s_cmp_lt_u32 s2, 128
          s_cselect_b32 s11, s5, s4
          s_cselect_b64 vcc, -1, 0
          v_and_b32 v45, 31, v0
          v_lshl_add_u32 v20, v45, 5, s11""")
    a(f"""v_lshrrev_b32 v47, 5, v0
          v_and_b32 v45, 0x13, v0
          v_bfe_u32 v46, v0, 2, 1
          v_lshl_or_b32 v45, v46, 3, v45
          v_bfe_u32 v46, v0, 3, 1
          v_lshl_or_b32 v45, v46, 2, v45
          v_add_u32 v45, s{sC0}, v45                ; c
          v_sub_u32 v46, 512, v45
          v_cndmask_b32 v45, v46, v45, vcc           ; e
          s_mul_i32 s4, s6, {U_ROW}
          s_and_b32 s5, s{sW}, 1
          s_lshl_b32 s5, s5, 3
          s_add_u32 s4, s4, s5
          s_add_u32 s4, s4, {WS_U}
          v_lshl_add_u32 v45, v45, 4, s4
          s_mov_b32 s5, {16*U_GP}
          v_mad_u32_u24 v22, v47, s5, v45           ; U address
          s_sub_u32 s5, 15, s7
          s_cmp_lt_u32 s2, 128
          s_cselect_b32 s4, s7, s5                ; e block b
          s_cselect_b32 s5, 0, 1
          v_mul_u32_u24 v45, s5, v47
          v_add_u32 v45, s4, v45
          v_and_b32 v45, 7, v45
          v_and_b32 v46, 31, v0
          v_lshlrev_b32 v46, 3, v46
          v_lshl_add_u32 v45, v45, 8, v46
          v_add_u32 v21, {WS_F3}, v45""")
    NT = 3 if MODE == "auto" else 1
    a(f"""s_sub_u32 s3, 4, s{sTB}
          s_max_i32 s3, s3, 0
          s_lshl_b32 s4, s3, 1
          s_lshl_b32 s6, 0xff, s4
          s_and_b32 s6, s6, 0xff
          s_mov_b32 s7, 0
          s_mul_i32 s8, s{sLW}, {HSTR}
          s_add_u32 s8, s8, 6144
          s_add_u32 s10, s10, {WS_K - 2048}
          s_lshl_b32 s30, s{sLW}, 14
          v_mov_b32 v2, 0x7ffffff0
          s_waitcnt vmcnt(8) lgkmcnt(0)
          s_barrier""")
    a(f"""s_waitcnt vmcnt(4)
          s_barrier
          s_waitcnt vmcnt(0)""")
    stamp(a, 23)
    a(f"""s_barrier
          s_mov_b64 exec, s[6:7]
          s_cbranch_execz L_kv0
          buffer_load_dword v5, v16, s[{SWS}:{SWS+3}], 0 offen sc1
          s_mov_b64 exec, -1
          s_barrier
          s_mov_b64 exec, s[6:7]
          s_waitcnt vmcnt(0)
          v_cmp_ne_u32 vcc, s{sNON}, v5
          s_mov_b64 exec, -1
          s_cbranch_vccz L_kv1""")
    poll(a, 16, 5, "s[6:7]")
    a("s_branch L_kv1")
    a.label("L_kv0")
    a("s_mov_b64 exec, -1\ns_barrier")
    a.label("L_kv1")
    stamp(a, 10)
    def kv_grp(g):
        a(f"""s_cmp_gt_u32 s{sTB}, {g}
              s_cbranch_scc1 L_kvr{g}
              v_mov_b32 v3, v2
              s_mov_b32 s10, {2048*g}""")
        a.label(f"L_kvr{g}")
        a(f"""s_sub_u32 m0, s8, {2048*g}
              s_sub_u32 s4, s10, {2048*g}
              buffer_load_dwordx4 v3, s[{SWS}:{SWS+3}], s4 offen {KVLD} lds
              buffer_load_dwordx4 v3, s[{SWS}:{SWS+3}], s4 offen offset:1024 {KVLD} lds
              s_add_u32 m0, m0, 10240
              s_add_u32 s4, s4, {WS_V - WS_K}
              buffer_load_dwordx4 v3, s[{SWS}:{SWS+3}], s4 offen {KVLD} lds
              buffer_load_dwordx4 v3, s[{SWS}:{SWS+3}], s4 offen offset:1024 {KVLD} lds""")
    KV1 = opt("--kv1", 3)
    a("v_mov_b32 v3, v1")
    for g in range(KV1): kv_grp(g)
    def wo_grp(g):
        a(f"""s_add_u32 s3, s{sJ}, {g}
              s_and_b32 s3, s3, 3
              s_lshl_b32 s4, s3, 12
              s_add_u32 s4, s4, s30
              s_add_u32 s4, s4, {WO_BASE}
              s_lshl_b32 s5, s3, 15""")
        for jj in range(4):
            a(f"""s_add_u32 m0, s4, {jj*1024}
                  s_add_u32 s6, s5, {jj*8192}
                  buffer_load_dwordx4 v19, s[{SWOD}:{SWOD+3}], s6 offen lds""")
    a(f"""s_lshl_b32 s3, s{sLW}, 2
          s_add_u32 s3, s3, {KVF}
          v_mov_b32 v6, s3
          v_mov_b32 v7, 0
          ds_write_b32 v6, v7""")
    a(f"""s_and_b32 s3, s{sLW}, 1
          s_lshl_b32 s3, s3, 13
          s_add_u32 s3, s3, {MST}
          v_add_u32 v44, s3, v1""")
    for js in range(8): a(f"ds_read_b128 {vr(MF+4*js,4)}, v44 offset:{js*1024}")
    a("v_mov_b32 v7, 1\ns_waitcnt lgkmcnt(0)")
    a(f"s_waitcnt vmcnt({4*KV1-4})")
    stamp(a, 11)
    a("s_barrier")
    stamp(a, 12)
    for g in range(KV1, 4): kv_grp(g)
    a(f"""s_waitcnt vmcnt(8)
          s_barrier
          buffer_load_dwordx2 v[4:5], v21, s[{SWS}:{SWS+3}], 0 offen sc1""")
    if MODE == "auto":
        a(f"""s_mov_b64 exec, 0xffff
              buffer_load_dword v27, v24, s[{SWS}:{SWS+3}], 0 offen
              buffer_load_dword v26, v25, s[{SWS}:{SWS+3}], 0 offen sc1
              s_mov_b64 exec, -1""")
    a(f"""s_waitcnt vmcnt({NT + 4})
          ds_write_b32 v6, v7
          v_mov_b32 v7, 2""")
    wo_grp(0)
    a(f"""s_waitcnt vmcnt({NT + 4})
          ds_write_b32 v6, v7""")
    stamp(a, 21)
    for g in range(1, 4): wo_grp(g)
    a(f"""s_cmp_ge_u32 s{sLW}, 2
          s_cbranch_scc1 L_nou
          s_waitcnt vmcnt(16)
          v_cmp_ne_u32 vcc, s{sNON}, v4
          v_cmp_ne_u32 s[10:11], s{sNON}, v5
          s_or_b64 vcc, vcc, s[10:11]
          s_cbranch_vccz L_uok""")
    poll2(a, 21, 4)
    a.label("L_uok")
    stamp(a, 26)
    for js in range(8):
        for b in range(2):
            a(f"""s_mov_b32 s4, {(2*js + b)*U_GP}
                  buffer_load_dwordx2 {vr(UF+4*js+2*b,2)}, v22, s[{SWS}:{SWS+3}], s4 offen {LD}""")
    a(f"""v_lshrrev_b32 v3, 5, v0
          v_lshlrev_b32 v10, 11, v20
          v_lshl_add_u32 v10, v3, 4, v10
          s_lshl_b32 s4, s{sC0}, 1
          v_add_u32 v10, s4, v10""")
    stamp(a, 27)
    a("s_waitcnt vmcnt(16)\ns_branch L_nou2")
    a.label("L_nou")
    a("s_waitcnt vmcnt(0)")
    a.label("L_nou2")
    def a2_half(k, L):
        a(f"""s_cmp_ge_u32 s{sLW}, 2
              s_cbranch_scc1 {L}""")
        if k:
            a("s_mov_b32 s3, 0x80008000")
            for t in range(16): a(f"v_xor_b32 v{MF+2*t+1}, s3, v{MF+2*t+1}")
            for t in range(8): a(f"v_cvt_pk_bf16_f32 v{44+t}, v{A2+2*t}, v{A2+2*t+1}")
        for js in range(8):
            a(f"{MFMA} {vr(A2+16*k,16)}, {vr(UF+4*js,4)}, {vr(MF+4*js,4)}, {'0' if js == 0 else vr(A2+16*k,16)}")
        a.label(L)
    a("s_barrier")
    stamp(a, 14)
    def o_fetch():
        a(f"""s_lshl_b32 s4, s8, 13
              s_add_u32 s4, s4, s30
              s_lshl_b32 s5, s8, 18
              s_add_u32 s5, s5, s13""")
        for j in range(4):
            a(f"""s_add_u32 m0, s4, {j*2048}
                  s_add_u32 s7, s5, {j*65536}
                  buffer_load_dwordx4 v1, s[{SWS}:{SWS+3}], s7 offen {LD} lds
                  buffer_load_dwordx4 v1, s[{SWS}:{SWS+3}], s7 offen offset:1024 {LD} lds""")
    a(f"""s_mov_b32 s60, 0
          s_mov_b32 s8, 0
          s_mov_b32 s9, 1
          s_mov_b64 exec, 0xffff
          buffer_load_dword v5, v25, s[{SWS}:{SWS+3}], 0 offen sc1
          s_mov_b64 exec, -1
          s_waitcnt vmcnt(1)""")
    a2_half(0, "L_h0")
    a("s_mov_b64 exec, 0xffff\ns_branch L_opw")
    a.label("L_opl")
    a(f"""buffer_load_dword v5, v25, s[{SWS}:{SWS+3}], 0 offen sc1
          s_add_u32 s60, s60, 1
          s_cmp_gt_u32 s60, {SPIN_MAX}
          s_cbranch_scc1 L_opx""")
    a.label("L_opw")
    a(f"""s_waitcnt vmcnt(0)
          v_cmp_ne_u32 vcc, s{sNON}, v5
          s_and_b32 s4, vcc_lo, 0xff
          s_and_b32 s9, vcc_lo, 0xff00
          s_cmp_lg_u32 s4, 0
          s_cbranch_scc1 L_opl""")
    a.label("L_opx")
    a("s_mov_b64 exec, -1")
    o_fetch()
    a(f"""s_mov_b32 s8, 1
          s_cmp_lg_u32 s9, 0
          s_cbranch_scc1 L_op2""")
    o_fetch()
    a2_half(1, "L_h1a")
    a("""s_waitcnt vmcnt(8)
         s_barrier
         s_branch L_op3""")
    a.label("L_op2")
    a(f"""s_lshl_b32 s3, s8, 3
          s_lshl_b32 s10, 0xff, s3
          s_mov_b32 s11, 0""")
    a2_half(1, "L_h1b")
    a("s_waitcnt vmcnt(0)\ns_barrier")
    poll(a, 25, 5, "s[10:11]")
    o_fetch()
    a.label("L_op3")
    stamp(a, 15)
    a("s_waitcnt vmcnt(0)\ns_barrier")
    a(f"""s_cmp_ge_u32 s{sLW}, 2
          s_cbranch_scc1 L_h2
          s_mov_b32 s3, {1024*2048}""")
    for mm in range(2):
        a(f"buffer_store_dwordx4 {vr(44+4*mm,4)}, v10, s[{SOUT}:{SOUT+3}], 0 offen offset:{32*mm} {A2F}")
    a("s_nop 7")
    for t in range(8): a(f"v_cvt_pk_bf16_f32 v{52+t}, v{A2+16+2*t}, v{A2+16+2*t+1}")
    for mm in range(2):
        a(f"buffer_store_dwordx4 {vr(52+4*mm,4)}, v10, s[{SOUT}:{SOUT+3}], s3 offen offset:{32*mm} {A2F}")
    a.label("L_h2")
    stamp(a, 13)
    stamp_flush(a, 18)
    a("s_endpgm")

    a.label("L_consumer")
    if "--nocpf" not in sys.argv:
        a(f"""s_cmp_lg_u32 s{sW}, 7
              s_cbranch_scc1 L_cpf1
              s_getpc_b64 s[4:5]""")
        a.label("L_cpf0")
        a(f"""s_sub_u32 s4, s4, L_cpf0-{KN}
              s_subb_u32 s5, s5, 0
              s_lshl_b32 s3, s{sJ}, 3
              v_add_u32 v1, s3, v0
              v_lshlrev_b32 v1, 7, v1
              v_cmp_gt_u32 vcc, L_last_insn-{KN}, v1
              s_and_b64 exec, vcc, 0xff
              s_cbranch_execz L_cpf2
              v_mov_b32 v3, s5
              v_add_co_u32 v2, vcc, s4, v1
              s_nop 1
              v_addc_co_u32 v3, vcc, 0, v3, vcc
              global_load_dword v165, v[2:3], off""")
        a.label("L_cpf2")
        a("s_mov_b64 exec, -1")
        a.label("L_cpf1")
    sIT, sDEL, sSL = 25, 26, 30
    sMASK = 28
    XA, WA = 8, 12
    ACC = 64
    a(f"""v_and_b32 v1, 31, v0
          v_lshrrev_b32 v2, 5, v0
          v_bfe_u32 v3, v0, 1, 3
          v_xor_b32 v3, v3, v2
          v_lshlrev_b32 v4, 7, v1
          s_or_b32 s3, s2, s{sW}
          s_cmp_lg_u32 s3, 4
          s_waitcnt lgkmcnt(0)""")
    srd(a, 56, kDBG, 256)
    a(f"""s_cbranch_scc1 L_nonpub
          s_cmp_lg_u32 s2, 0
          s_cbranch_scc1 L_nonpub
          s_memrealtime s[4:5]
          s_waitcnt lgkmcnt(0)
          s_or_b32 s4, s4, 1
          v_mov_b32 v5, s4
          s_mov_b64 exec, 1
          buffer_store_dword v5, off, s[56:59], 0 sc0 sc1
          s_mov_b64 exec, -1""")
    a.label("L_nonpub")
    srd(a, SWS, kWS, 0x1000000)
    if MODE == "auto":
        a(f"""s_cmp_lg_u32 s{sW}, 6
              s_cbranch_scc1 L_ptt
              s_lshl_b32 s3, s{sX}, 7
              s_add_u32 s3, s3, {WS_PT}
              buffer_load_dword v165, off, s[{SWS}:{SWS+3}], s3""")
        a.label("L_ptt")
    srd(a, SOUT, kOUT, 0x400000)
    if "--tlb" in sys.argv:
        srd(a, 44, kWO, 0x80000)
        a(f"""s_cmp_lg_u32 s{sW}, 5
              s_cbranch_scc1 L_tlb
              v_lshlrev_b32 v5, 20, v0
              s_lshl_b32 s3, s2, 7
              s_add_u32 s3, s3, 0x80000
              v_add_u32 v5, s3, v5
              s_mov_b64 exec, 0xffc
              buffer_load_dword v165, v5, s[{SWS}:{SWS+3}], 0 offen sc1
              s_mov_b64 exec, 15
              buffer_load_dword v165, v5, s[{SOUT}:{SOUT+3}], 0 offen
              s_mov_b64 exec, 1
              s_lshl_b32 s3, s2, 7
              buffer_load_dword v165, off, s[44:47], s3
              s_mov_b64 exec, -1""")
        a.label("L_tlb")
    for r in range(16):
        lo, hi = diag_mask(r)
        a(f"s_mov_b32 s{64+2*r}, {lo:#x}\ns_mov_b32 s{65+2*r}, {hi:#x}")
    for kk in range(4):
        a(f"""v_xor_b32 v5, {2*kk}, v3
              v_lshl_add_u32 v{XA+kk}, v5, 4, v4""")
    a(f"""s_getreg_b32 s{sPTV}, hwreg(HW_REG_XCC_ID, 0, 16)
          s_lshl_b32 s{sPTV}, s{sPTV}, 8
          v_bfe_u32 v3, v0, 2, 2
          v_lshl_add_u32 v7, v2, 3, v3             ; 8h + r
          v_lshlrev_b32 v4, 7, v7
          v_bfe_u32 v5, v0, 4, 1
          v_lshlrev_b32 v5, 1, v5
          v_bfe_u32 v6, v0, 1, 1
          v_add_u32 v5, v5, v6
          s_and_b32 s3, s{sW}, 2
          s_lshl_b32 s3, s3, 1
          v_add_u32 v5, s3, v5
          v_bfe_u32 v6, v0, 3, 1
          v_lshlrev_b32 v6, 2, v6
          v_xor_b32 v5, v5, v6
          v_lshl_add_u32 v4, v5, 4, v4
          v_and_b32 v6, 1, v0
          v_lshl_add_u32 v4, v6, 3, v4
          s_cmp_lt_u32 s{sW}, 4
          s_cbranch_scc1 L_kv""")
    sEH, sCA = 24, 25
    XF, AA, AB, WG, TM = 20, 36, 52, 100, 68
    XCH = WR + (7 % NS)*WSL + 16384
    DL, PH, SG, UA, NV, EI, XC = 12, 13, 14, 15, 3, 7, 164
    a(f"""s_and_b32 s3, s{sW}, 2
          s_lshl_b32 s3, s3, 11
          s_add_u32 s3, s3, {WR+16384}""")
    for kk in range(4): a(f"v_add_u32 v{XA+kk}, s3, v{XA+kk}")
    a(f"""s_and_b32 s{sEH}, s{sW}, 1
          s_lshr_b32 s3, s{sJ}, 2                  ; eb
          s_and_b32 s{sCA}, s3, {opt('--amask', 4)}
          s_lshl_b32 s3, s3, 1
          s_add_u32 s6, s3, s{sEH}
          s_lshl_b32 s3, s6, 4
          v_and_b32 v5, 15, v0
          v_add_u32 v{EI}, s3, v5                  ; e
          v_bfe_u32 v6, v0, 4, 1
          v_cvt_f32_u32 v{PH}, v6
          v_mul_f32 v{PH}, 0x3e800000, v{PH}
          s_cmp_eq_u32 s6, 0
          s_cselect_b32 s{sMASK}, 0x10000, 0
          s_mov_b32 s{sMASK+1}, s{sMASK}
          v_mov_b32 v6, 256
          v_cndmask_b32 v{EI}, v{EI}, v6, s[{sMASK}:{sMASK+1}]
          v_cndmask_b32 v{PH}, v{PH}, 0, s[{sMASK}:{sMASK+1}]
          v_cvt_f32_u32 v{DL}, v{EI}
          v_mul_f32 v{DL}, 0x3b000000, v{DL}       ; e/512
          v_and_b32 v6, 1, v0
          v_lshlrev_b32 v6, 31, v6
          v_or_b32 v{SG}, 1.0, v6
          s_mov_b32 s3, s{sTB}                     ; pi
          s_lshr_b32 s4, s6, 1
          s_lshl_b32 s4, s4, 5
          s_add_u32 s4, s4, s3
          s_lshl_b32 s4, s4, 1
          s_add_u32 s4, s4, s{sEH}
          s_lshl_b32 s26, s4, 2
          s_mul_i32 s3, s3, {U_GP}
          s_lshl_b32 s4, s6, 8
          s_add_u32 s3, s3, s4
          s_add_u32 s3, s3, {WS_U}
          v_lshl_add_u32 v5, v5, 4, s3
          v_lshrrev_b32 v6, 4, v0
          s_movk_i32 s4, {U_ROW}
          v_mad_u32_u24 v{UA}, v6, s4, v5
          s_lshl_b32 s3, s{sEH}, 11
          s_add_u32 s3, s3, {XCH}
          v_lshl_add_u32 v{XC}, v0, 4, s3""")
    def genw(c):
        o = [f"""s_add_u32 s3, s{sCA}, {c}
              s_and_b32 s3, s3, 7
              s_lshl_b32 s3, s3, 6
              v_lshl_add_u32 v{TM}, v2, 3, s3
              v_cvt_f32_u32 v{TM}, v{TM}
              v_mul_f32 v{TM}, v{TM}, v{DL}
              v_fract_f32 v{TM}, v{TM}
              v_add_f32 v{TM}, v{TM}, v{PH}"""]
        for kk in range(4):
            t = []
            for j in range(1, 8): t.append(f"v_add_f32 v{TM+j}, v{TM+j-1}, v{DL}")
            for j in range(8): t.append(f"v_cos_f32 v{TM+8+j}, v{TM+j}")
            t.append(f"v_fmamk_f32 v{TM}, v{DL}, 0x41100000, v{TM+7}")
            for j in range(4): t.append(f"v_cvt_pk_bf16_f32 v{WG+16*c+4*kk+j}, v{TM+8+2*j}, v{TM+9+2*j}")
            o.append("\n".join(t))
        return o
    CR, CI, NCI = 68+16, 68+24, WG
    NQ = [4, 16]
    def genc(m, T):
        t = []
        for j in range(8):
            cj = 16*m + (j % 4) + 8*(j // 4)
            t.append(f"""v_mad_u32_u24 v{T+j}, v1, {cj}, v{PH}
                  v_and_b32 v{T+j}, 31, v{T+j}
                  v_cvt_f32_u32 v{T+j}, v{T+j}
                  v_mul_f32 v{T+j}, 0x3d000000, v{T+j}""")
        u = [f"v_cos_f32 v{T+8+j}, v{T+j}" for j in range(8)] + [f"v_sin_f32 v{T+j}, v{T+j}" for j in range(8)] + ["s_nop 0"]
        for j in range(4):
            u.append(f"""v_cvt_pk_bf16_f32 v{CR+4*m+j}, v{T+8+2*j}, v{T+9+2*j}
                  v_cvt_pk_bf16_f32 v{CI+4*m+j}, -v{T+2*j}, -v{T+1+2*j}
                  v_cvt_pk_bf16_f32 v{NQ[m]+j}, v{T+2*j}, v{T+1+2*j}""")
        return ["\n".join(t[:4]), "\n".join(t[4:]), "\n".join(u[:17]), "\n".join(u[17:])]
    def genm(js):
        T, d = TM, 84 + 4*js
        return f"""v_add_f32 v{T}, v18, v17
              v_add_f32 v{T+1}, v{T}, v17
              v_add_f32 v{T+2}, v{T+1}, v17
              v_cos_f32 v{T+4}, v18
              v_cos_f32 v{T+5}, v{T}
              v_cos_f32 v{T+6}, v{T+1}
              v_cos_f32 v{T+7}, v{T+2}
              v_sin_f32 v{T+8}, v18
              v_sin_f32 v{T+9}, v{T}
              v_sin_f32 v{T+10}, v{T+1}
              v_sin_f32 v{T+11}, v{T+2}
              v_add_f32 v18, v{T+2}, v17
              v_cvt_pk_bf16_f32 v{d}, v{T+4}, v{T+8}
              v_cvt_pk_bf16_f32 v{d+1}, v{T+5}, v{T+9}
              v_cvt_pk_bf16_f32 v{d+2}, v{T+6}, v{T+10}
              v_cvt_pk_bf16_f32 v{d+3}, v{T+7}, v{T+11}"""
    mpar = f"""; A2 task: tc = 2x + (j&1), cr16 = j>>1, sigma = w&1, nt = (w>>1)&1
          s_lshl_b32 s6, s{sX}, 1
          s_and_b32 s4, s{sJ}, 1
          s_add_u32 s6, s6, s4                    ; tc
          s_lshr_b32 s7, s{sJ}, 1                 ; cr16
          s_lshl_b32 s10, s7, 5
          s_lshr_b32 s4, s6, 2
          s_lshl_b32 s4, s4, 3
          s_and_b32 s5, s6, 3
          s_add_u32 s4, s4, s5
          s_and_b32 s5, s{sW}, 1
          s_lshl_b32 s5, s5, 2
          s_add_u32 s5, s4, s5                    ; t1 source
          s_sub_u32 s4, 32, s5
          s_and_b32 s4, s4, 31
          s_cmp_lt_u32 s2, 128
          s_cselect_b32 s11, s5, s4
          s_cselect_b64 vcc, -1, 0
          v_and_b32 v{TM+1}, 31, v0
          v_lshl_add_u32 v{TM}, v{TM+1}, 5, s11
          v_lshrrev_b32 v{TM+3}, 5, v0                 ; h
          v_sub_u32 v{TM+2}, 2048, v{TM}
          v_cndmask_b32 v{TM+2}, v{TM+2}, v{TM}, vcc
          v_cvt_f32_u32 v{TM+2}, v{TM+2}
          v_mul_f32 v17, 0x3a000000, v{TM+2}
          v_lshlrev_b32 v{TM+2}, 5, v{TM+3}
          v_cvt_f32_u32 v{TM+2}, v{TM+2}
          v_mul_f32 v18, v17, v{TM+2}"""
    def either(p0, p1):
        if not p0 and not p1: return ""
        uid[0] += 1
        L = f"e{uid[0]}"
        return f"s_cmp_ge_u32 s{sW}, 6\ns_cbranch_scc1 {L}a\n{p0}\ns_branch {L}b\n{L}a:\n{p1}\n{L}b:"
    for c in range(2):
        for x in genw(c): a(x)
    a("s_barrier")
    def rda(g): return f"ds_read_b128 {vr(XF+4*(g % 4),4)}, v{XA+g % 4}" if g < 32 else ""
    a(rda(0)); a(rda(1))
    for st in range(8):
        fill = {0: genw(2), 1: genw(3), 2: genc(0, TM), 3: genc(1, TM)}.get(st, [])
        if st in (0, 1): fill = [fill[0] + "\n" + fill[1]] + fill[2:]
        if st == 1: fill[3] += f"\nv_lshlrev_b32 v{PH}, 2, v2\nv_mul_u32_u24 v{PH}, v{PH}, v1"
        if st == 2: fill = [either(fill[0], mpar), either(fill[1], genm(0)), either(fill[2], genm(1)), either(fill[3], "")]
        if st == 3: fill = [either(fill[0], genm(2)), either(fill[1], genm(3)), either(fill[2], ""), either(fill[3], "")]
        acc = AA if st < 4 else AB
        for kk in range(4):
            g = 4*st + kk
            mm_ = f"{MFMA} {vr(acc,16)}, {vr(XF+4*(g % 4),4)}, {vr(WG+16*(st%4)+4*kk,4)}, {'0' if (st % 4 == 0 and kk == 0) else vr(acc,16)}"
            if kk < 3:
                a("s_waitcnt lgkmcnt(1)")
                a(mm_)
                if kk < 2: a(rda(g+2))
                if fill: a(fill[kk])
            if kk == 2:
                if st < 7:
                    d = WSL if (st+1) % NS else -(NS-1)*WSL
                    a(f"s_mov_b32 s3, {d}")
                    for r in range(4): a(f"v_add_u32 v{XA+r}, s3, v{XA+r}")
                    a("s_waitcnt lgkmcnt(0)\ns_barrier")
                    a(rda(g+2))
                else:
                    a("s_waitcnt lgkmcnt(0)")
            if kk == 3:
                a(mm_); a(rda(g+2))
                if fill: a(fill[3])
    stamp(a, 7)
    PK, SV, RE, IM, D1, D2 = XF, WG+24, WG+32, WG+48, AA, AB
    a("s_nop 11")
    for r in range(16): a(f"v_fma_f32 v{AA+r}, v{AB+r}, v{SG}, v{AA+r}")
    for t in range(8): a(f"v_cvt_pk_bf16_f32 v{PK+t}, v{AA+2*t}, v{AA+2*t+1}")
    a(f"""s_barrier
          s_cmp_lt_u32 s{sW}, 6
          s_cbranch_scc1 L_a1e
          ds_write_b128 v{XC}, {vr(PK,4)}
          ds_write_b128 v{XC}, {vr(PK+4,4)} offset:1024
          v_mov_b32 v{TM}, 0
          v_mov_b32 v{TM+1}, 0
          v_mov_b32 v{TM+2}, 0
          v_mov_b32 v{TM+3}, 0
          v_mov_b32 v{TM+4}, {OWNF}
          ds_write_b128 v{TM+4}, {vr(TM,4)}
          s_waitcnt lgkmcnt(0)
          s_barrier""")
    a(f"""s_and_b32 s3, s{sW}, 1
          s_lshl_b32 s3, s3, 13
          s_add_u32 s3, s3, {MST}
          v_lshl_add_u32 v42, v0, 4, s3""")
    for js in range(4): a(f"ds_write_b128 v42, {vr(84+4*js,4)} offset:{js*1024}")
    for js in range(4, 8):
        a(genm(js))
        a(f"ds_write_b128 v42, {vr(84+4*js,4)} offset:{js*1024}")
    a("""s_barrier
         s_waitcnt lgkmcnt(0)
         s_barrier
         s_barrier
         s_branch L_att""")
    a.label("L_a1e")
    a(f"""s_barrier
          ds_read_b128 {vr(PK+8,4)}, v{XC}
          ds_read_b128 {vr(PK+12,4)}, v{XC} offset:1024
          s_waitcnt lgkmcnt(0)""")
    for t in range(8): a(f"v_permlane16_swap_b32 v{PK+t}, v{PK+8+t}")
    a(f"""s_mov_b32 s6, 0x00010001
          s_mov_b32 s7, 0x00010001
          s_cmp_eq_u32 s{sMASK}, 0
          s_cbranch_scc1 L_nosp1""")
    for t in range(8):
        a(f"v_mov_b32 v{SV+t}, v{PK+8+t}")
        a(f"v_cndmask_b32 v{PK+8+t}, v{PK+8+t}, 0, s[6:7]")
    a.label("L_nosp1")
    a("s_nop 1")
    def step1(aa, bb):
        a(f"{MFMA} {vr(RE,16)}, {vr(CR,4)}, {vr(aa,4)}, 0")
        a(f"{MFMA} {vr(IM,16)}, {vr(CI,4)}, {vr(aa,4)}, 0")
        a(f"{MFMA} {vr(RE,16)}, {vr(CR+4,4)}, {vr(aa+4,4)}, {vr(RE,16)}")
        a(f"{MFMA} {vr(IM,16)}, {vr(CI+4,4)}, {vr(aa+4,4)}, {vr(IM,16)}")
        if bb is not None:
            for m in range(2):
                a(f"{MFMA} {vr(RE,16)}, {vr(NQ[m],4)}, {vr(bb+4*m,4)}, {vr(RE,16)}")
                a(f"{MFMA} {vr(IM,16)}, {vr(CR+4*m,4)}, {vr(bb+4*m,4)}, {vr(IM,16)}")
    def upack(D):
        for r in range(16): a(f"v_cvt_pk_bf16_f32 v{D+r}, v{RE+r}, v{IM+r}")
        for g in range(4):
            d = D + 4*g
            a(f"""v_permlane32_swap_b32 v{d}, v{d+2}
                  v_permlane32_swap_b32 v{d+1}, v{d+3}""")
        for g in range(4):
            d = D + 4*g
            a(f"""v_permlane16_swap_b32 v{d}, v{d+1}
                  v_permlane16_swap_b32 v{d+2}, v{d+3}""")
    def ust(D, off):
        for g in range(4):
            a(f"""s_mov_b32 s4, {4*g*U_ROW + off}
                  buffer_store_dwordx4 {vr(D+4*g,4)}, v{UA}, s[{SWS}:{SWS+3}], s4 offen {ST}""")
    step1(PK, PK+8)
    a("s_nop 11" if UE else "s_barrier\ns_nop 10")
    upack(D1)
    a(f"""s_cmp_eq_u32 s{sMASK}, 0
          s_cbranch_scc1 L_nosp2""")
    step1(SV, None)
    a("s_nop 11")
    upack(D2)
    a.label("L_nosp2")
    stamp(a, 8)
    ust(D1, 0)
    a(f"""s_cmp_eq_u32 s{sMASK}, 0
          s_cbranch_scc1 L_nosp3
          s_mov_b64 exec, s[6:7]""")
    ust(D2, 4096)
    a("s_mov_b64 exec, -1")
    a.label("L_nosp3")
    get_tag(NV)
    a(f"""s_barrier
          s_barrier
          {"s_barrier" if UE else ""}
          s_add_u32 s3, s26, {WS_F3}""")
    publish(a, 3, 6)
    a("s_branch L_att")

    a.label("L_kv")
    FR = 32
    FK = 96
    def X(b, i): return FK + 12*b + 4*i
    def W(b): return FK + 12*b + 8
    a(f"""s_and_b32 s3, s{sW}, 1
          s_lshl_b32 s3, s3, 13
          s_add_u32 s3, s3, {WR}
          v_add_u32 v{WA}, s3, v4""")
    for r in range(32): a(f"v_mov_b32 v{ACC+r}, 0")
    a(f"""s_lshl_b32 s3, s2, 5
          s_add_u32 s3, s3, s{sW}
          s_lshl_b32 s3, s3, 2
          s_add_u32 s31, s3, {WS_F1}
          s_lshl_b32 s3, s{sHG}, 2
          s_and_b32 s4, s{sW}, 2
          s_add_u32 s3, s3, s4
          s_lshl_b32 s3, s3, 16
          s_lshl_b32 s4, s{sTB}, 11
          s_add_u32 s3, s3, s4
          s_add_u32 s3, s3, {WS_K}
          v_lshl_add_u32 v14, v0, 4, s3
          s_add_u32 s3, s3, {WS_V - WS_K}
          v_bfe_u32 v5, v0, 4, 1
          v_lshlrev_b32 v5, 16, v5
          v_lshl_add_u32 v5, v2, 8, v5
          v_and_b32 v6, 15, v0
          v_lshl_add_u32 v5, v6, 4, v5
          v_add_u32 v16, s3, v5
          v_mov_b32 v21, v4
          s_and_b32 s4, s{sW}, 2
          s_mul_i32 s3, s4, {HSTR}
          s_add_u32 s3, s3, 8192
          v_lshl_add_u32 v17, v0, 4, s3
          s_add_u32 s3, s3, 10240
          v_bfe_u32 v5, v0, 4, 1
          v_mul_u32_u24 v5, {HSTR}, v5
          v_lshl_add_u32 v5, v2, 8, v5
          v_lshl_add_u32 v5, v6, 4, v5
          v_add_u32 v18, s3, v5
          s_and_b32 s3, s{sW}, 1
          s_lshl_b32 s3, s3, 12
          s_lshl_b32 s4, s4, 10
          s_add_u32 s3, s3, s4
          s_add_u32 s3, s3, {Q_BASE}
          v_lshl_add_u32 v20, v0, 4, s3
          s_mov_b32 s8, {f2u(QSCALE):#x}
          s_mov_b32 s9, s8""")
    def rd(kk, b):
        return [f"ds_read_b128 {vr(X(b,i),4)}, v{XA+kk} offset:{i*4096}" for i in range(2)] + [f"ds_read_b64_tr_b16 {vr(W(b)+2*q,2)}, v{WA} offset:{kk*2048 + q*512}" for q in range(2)]
    def step(b, variant, r):
        m = []
        for i in range(2):
            A_, B_ = (W(b), X(b,i)) if variant == "K" else (X(b,i), W(b))
            m.append(f"{MFMA} {vr(ACC+16*i,16)}, {vr(A_,4)}, {vr(B_,4)}, {vr(ACC+16*i,16)}")
        for x in [m[0]] + r[:2] + [m[1]] + r[2:]: a(x)
    a(f"""s_mov_b32 s{sIT}, 0
          s_mov_b32 s{sSL}, 0
          s_mov_b32 s27, {WSL}""")
    stamp(a, 1)
    a("s_barrier")
    stamp(a, 2)
    for x in rd(0, 0) + rd(1, 1): a(x)
    a(f"""s_bitcmp1_b32 s{sW}, 0
          s_cbranch_scc1 L_loopV""")
    for variant in ("K", "V"):
        if ALIGN: a.L.append(".p2align 6")
        a.label(f"L_loop{variant}")
        for kk in range(3):
            a("s_waitcnt lgkmcnt(4)")
            step(kk, variant, rd(kk+2, kk+2) if kk < 2 else [])
        a(f"""s_add_u32 s{sSL}, s{sSL}, 1
              s_cmp_eq_u32 s{sSL}, {NS}
              s_cselect_b32 s{sDEL}, {-(NS-1)*WSL}, s27
              s_cselect_b32 s{sSL}, 0, s{sSL}
              v_add_u32 v{WA}, s{sDEL}, v{WA}""")
        for r in range(4): a(f"v_add_u32 v{XA+r}, 8192, v{XA+r}")
        a(f"""s_add_u32 s{sIT}, s{sIT}, 1
              s_cmp_eq_u32 s{sIT}, 8
              s_waitcnt lgkmcnt(0)
              s_cbranch_scc1 L_last{variant}
              s_barrier""")
        for x in rd(0, 0): a(x)
        step(3, variant, rd(1, 1))
        a(f"s_branch L_loop{variant}")
        a.label(f"L_last{variant}")
        step(3, variant, [])
        stamp(a, 3)
        a("s_mov_b32 s4, 65536\ns_nop 9")
        for i in range(2):
            for mm in range(2):
                d = FR + 8*i + 4*mm
                for t in range(4): a(f"v_cvt_pk_bf16_f32 v{d+t}, v{ACC+16*i+8*mm+2*t}, v{ACC+16*i+8*mm+2*t+1}")
                if variant == "K":
                    a(f"buffer_store_dwordx4 {vr(d,4)}, v14, s[{SWS}:{SWS+3}], {'s4' if mm else '0'} offen offset:{i*1024} {ST}")
                else:
                    a(f"buffer_store_dwordx4 {vr(d,4)}, v16, s[{SWS}:{SWS+3}], 0 offen offset:{i*1024+mm*512} {ST}")
        if variant == "K": a("s_branch L_kvdone")
    a.label("L_kvdone")
    stamp(a, 4)
    FQ = 96
    a(f"""s_and_b32 s3, s{sW}, 1
          s_lshl_b32 s3, s3, 12
          s_sub_u32 s3, s3, 65536
          v_add_u32 v{WA}, {QSLOT[0]}, v21""")
    for kk in range(4): a(f"v_add_u32 v{XA+kk}, s3, v{XA+kk}")
    a(f"""v_mov_b32 v19, {NONW}
          s_barrier
          ds_read_b32 v19, v19""")
    if PUBU < 0:
        a(f"s_waitcnt lgkmcnt(0)\nv_readfirstlane_b32 s{sNON}, v19\ns_nop 1")
        publish(a, 31, 6)
        stamp(a, 5)
    def rdq(u, k, b):
        c2, kk = k // 4, k % 4
        f = FQ + 8*b
        return [f"ds_read_b128 {vr(f,4)}, v{XA+kk} offset:{(2*u+c2)*8192}"] + [f"ds_read_b64_tr_b16 {vr(f+4+2*q,2)}, v{WA} offset:{c2*8192 + kk*2048 + q*512}" for q in range(2)]
    NBQ = 4
    for k in range(3):
        for x in rdq(0, k, k): a(x)
    for u in range(4):
        for k in range(8):
            g = 8*u + k
            last = k >= 5
            if k == 5 and u < 3:
                d = QSLOT[u+1] - QSLOT[u]
                if u == PUBU:
                    a(f"v_readfirstlane_b32 s{sNON}, v19\ns_nop 1")
                    publish(a, 31, 6)
                    stamp(a, 5)
                a(f"""s_waitcnt lgkmcnt(0)
                      s_barrier
                      v_add_u32 v{WA}, {d}, v{WA}""")
            nxt = rdq(u, k+3, (g+3) % NBQ) if k < 5 else (rdq(u+1, k-5, (g+3) % NBQ) if u < 3 else [])
            if not (k >= 5 and u < 3) or k > 5 or True:
                outst = 6 if (k < 5 or u < 3) else 3*(7-k)
                if not (k == 5 and u < 3) and not (k in (6, 7) and u < 3): a(f"s_waitcnt lgkmcnt({outst})")
            f = FQ + 8*(g % NBQ)
            a(f"{MFMA} {vr(ACC,16)}, {vr(f+4,4)}, {vr(f,4)}, {'0' if g == 0 else vr(ACC,16)}")
            for x in nxt: a(x)
    a("s_barrier")
    stamp(a, 6)
    a(f"""s_bitcmp1_b32 s{sW}, 0
          s_cbranch_scc1 L_cpv""")
    for i in range(2):
        for mm in range(2): a(f"ds_write_b128 v17, {vr(FR+8*i+4*mm,4)} offset:{mm*HSTR + i*1024}")
    a("s_branch L_cpq")
    a.label("L_cpv")
    for i in range(2):
        for mm in range(2): a(f"ds_write_b128 v18, {vr(FR+8*i+4*mm,4)} offset:{i*1024 + mm*512}")
    a.label("L_cpq")
    a("s_nop 5")
    for t in range(8): a(f"v_pk_mul_f32 {vr(ACC+2*t,2)}, {vr(ACC+2*t,2)}, s[8:9]")
    for t in range(8): a(f"v_cvt_pk_bf16_f32 v{FQ+t}, v{ACC+2*t}, v{ACC+2*t+1}")
    a(f"""ds_write_b128 v20, {vr(FQ,4)}
          ds_write_b128 v20, {vr(FQ+4,4)} offset:1024
          s_lshl_b32 s3, s{sW}, 2
          s_add_u32 s3, s3, {OWNF}
          v_mov_b32 v5, s3
          v_mov_b32 v6, 1
          s_waitcnt lgkmcnt(0)
          ds_write_b32 v5, v6""")

    a.label("L_att")
    QF = 4
    KA, VA_, NINF, MX = 2, 3, 8, 9
    KF, VF, PP, S, O, CN, CD, CF = 12, 24, 40, 48, 80, 96, 112, 128
    S3, P2, MK = 112, 128, 136
    sVM, sNF, sI = 8, 10, 11
    get_tag(5)
    a(f"""s_xor_b32 s{sPTV}, s{sPTV}, s{sNON}
          s_and_b32 s3, s{sW}, 3
          s_lshr_b32 s5, s{sW}, 2
          s_lshl_b32 s4, s{sHG}, 2
          s_add_u32 s{sHD}, s4, s3
          s_lshl_b32 s4, s{sTB}, 1
          s_add_u32 s4, s4, s5                     ; qb
          s_lshl_b32 s{sQO}, s4, 10
          s_lshl_b32 s6, s{sHD}, 16
          s_add_u32 s{sQO}, s{sQO}, s6
          s_min_u32 s{sNF}, s4, 7
          s_lshl_b32 s4, s4, 5
          s_add_u32 s4, s4, s{sHD}
          s_lshl_b32 s4, s4, 2
          s_add_u32 s{sF2}, s4, {WS_F2}
          v_lshlrev_b32 v1, 4, v0
          s_lshl_b32 s4, s{sW}, 10
          s_add_u32 s4, s4, {Q_BASE}
          v_add_u32 v4, s4, v1
          s_lshl_b32 s4, s3, 2
          s_add_u32 s4, s4, {KVF}
          v_mov_b32 v149, s4
          s_mul_i32 s4, s3, {HSTR}
          s_lshl_b32 s5, s5, 10
          s_add_u32 s4, s4, s5
          v_add_u32 v{KA}, s4, v1
          v_lshrrev_b32 v10, 5, v0
          v_and_b32 v11, 15, v0
          v_lshlrev_b32 v11, 4, v11
          v_lshl_add_u32 v11, v10, 8, v11
          s_add_u32 s4, s4, 10240
          v_add_u32 v{VA_}, s4, v11
          v_mov_b32 v{NINF}, 0xff800000
          s_mov_b32 s{sVM}, 0x0000ffff
          s_mov_b32 s{sVM+1}, 0x0000ffff
          s_mov_b32 s6, 0x00110000
          s_mov_b32 s7, 0x00110000
          v_mov_b32 v10, 0x3f803f80""")
    for t in range(16): a(f"v_cndmask_b32 v{VF+t}, 0, v10, s[6:7]")
    a("v_mov_b32 v10, 0xffff\nv_mov_b32 v11, 0xffff0000")
    for t in range(8):
        a(f"""v_cndmask_b32 v{MK+t}, 0, v10, s[{64+4*t}:{65+4*t}]
              v_cndmask_b32 v5, 0, v11, s[{66+4*t}:{67+4*t}]
              v_or_b32 v{MK+t}, v{MK+t}, v5""")
    stamp(a, 11)
    a(f"""v_mov_b32 v5, {OWNF}
          s_mov_b32 s60, 0""")
    a.label("L_ownw")
    a(f"""ds_read_b128 v[12:15], v5
          s_add_u32 s60, s60, 1
          s_cmp_gt_u32 s60, {SPIN_MAX*8}
          s_cbranch_scc1 L_ownx
          s_waitcnt lgkmcnt(0)
          v_and_b32 v12, v12, v13
          v_and_b32 v14, v14, v15
          v_and_b32 v12, v12, v14
          v_cmp_eq_u32 vcc, 0, v12
          s_cbranch_vccnz L_ownw""")
    a.label("L_ownx")
    stamp(a, 12)
    a(f"ds_read_b128 {vr(QF,4)}, v4")
    def kv_wait(lvl):
        uid[0] += 1
        L = f"kw{uid[0]}"
        a("s_mov_b32 s60, 0")
        a.label(L)
        a(f"""ds_read_b32 v11, v149
              s_add_u32 s60, s60, 1
              s_cmp_gt_u32 s60, {SPIN_MAX*8}
              s_cbranch_scc1 {L}x
              s_waitcnt lgkmcnt(0)
              v_readfirstlane_b32 s3, v11
              s_cmp_lt_u32 s3, {lvl}
              s_cbranch_scc1 {L}""")
        a.label(L + "x")
    def masks(val):
        return [f"""v_cndmask_b32 v{CD+r}, v{NINF}, {val}, s[{64+2*r}:{65+2*r}]
                  v_cndmask_b32 v{CF+r}, {val}, v{NINF}, s[{64+2*r}:{65+2*r}]""" for r in range(16)]
    def maxblk(S_, first):
        if first: a(f"v_max_f32 v{MX}, v{S_}, v{S_+1}")
        for t in range(2 if first else 0, 16, 2):
            a(f"v_max3_f32 v{MX}, v{S_+t}, v{S_+t+1}, v{MX}")
    def xhalf_max():
        a(f"""v_mov_b32 v10, v{MX}
              s_nop 1
              v_permlane32_swap_b32 v10, v{MX}
              s_nop 1
              v_max_f32 v{MX}, v{MX}, v10""")
    order = [7, 6, 5, 4, 3, 2, 1, 8, 0]
    def rdK(n): return f"ds_read_b128 {vr(KF+4*(n%3),4)}, v{KA} offset:{order[n]*1024}"
    def rdV(n):
        b = VF + 8*(n % 2)
        return f"""s_mov_b64 exec, s[{sVM}:{sVM+1}]
              ds_read_b128 {vr(b,4)}, v{VA_} offset:{order[n]*1024}
              ds_read_b128 {vr(b+4,4)}, v{VA_} offset:{order[n]*1024+512}
              s_mov_b64 exec, -1"""
    def mS(k, Dd): return f"{MFMA} {vr(Dd,16)}, {vr(KF+4*(k%3),4)}, {vr(QF,4)}, {vr(CN,16)}"
    a("s_setprio 3")
    PTN = opt("--ptn", 1)
    if PTN < 0: pt_load()
    if FORCE_SLOW: a("s_branch L_preslow")
    CI_ = 149
    def fast(first):
        def mSv(k, Dd, tag=''):
            if not first or k == 7: a(mS(k, Dd)); return
            inv = f"{MFMA} {vr(Dd,16)}, {vr(KF+4*(k%3),4)}, {vr(QF,4)}, {vr(CI_+1,16)}"
            if k == 8: a(inv); return
            a(f"""s_cmp_gt_u32 s{sNF}, {k}
                  s_cbranch_scc1 L_fv{k}{tag}
                  {inv}
                  s_branch L_fw{k}{tag}""")
            a.label(f"L_fv{k}{tag}")
            a(mS(k, Dd))
            a.label(f"L_fw{k}{tag}")
        F = int(first)
        if first:
            for r in range(16): a(f"v_mov_b32 v{CI_+1+r}, v{NINF}")
        def standin():
            a(f"""v_max3_f32 v{MX}, v{S+16}, v{S+17}, v{S+18}
                  v_max3_f32 v10, v{S+19}, v{S+20}, v{S+21}
                  v_max3_f32 v11, v{S+22}, v{S+23}, v{S+24}
                  v_max3_f32 v{MX}, v{S+25}, v{S+26}, v{MX}
                  v_max3_f32 v10, v{S+27}, v{S+28}, v10
                  v_max3_f32 v11, v{S+29}, v{S+30}, v11
                  v_max3_f32 v{MX}, v{S+31}, v{MX}, v10
                  v_max_f32 v{MX}, v{MX}, v11""")
            xhalf_max()
            a(f"v_sub_f32 v{CN}, 0xc2700000, v{MX}")
            for r in range(1, 16): a(f"v_mov_b32 v{CN+r}, v{CN}")
        a(f"""s_cmp_lt_u32 s{sW}, 4
              s_cbranch_scc1 L_q0{F}""")
        a(rdK(0)); a(rdV(0))
        a(f"""s_waitcnt lgkmcnt(2)
              {MFMA} {vr(S+16,16)}, {vr(KF,4)}, {vr(QF,4)}, 0
              s_nop 11""")
        standin()
        a("s_nop 1"); a(mS(0, S)); a("s_nop 11")
        for r in range(12): a(f"v_exp_f32 v{S+r}, v{S+r}")
        for t in range(4): a(f"v_cvt_pk_bf16_f32 v{PP+t}, v{S+2*t}, v{S+2*t+1}")
        a(f"""v_exp_f32 v{S+12}, v{S+12}
              s_waitcnt lgkmcnt(0)
              {MFMA} {vr(O,16)}, {vr(VF,4)}, {vr(PP,4)}, 0""")
        for r in range(13, 16): a(f"v_exp_f32 v{S+r}, v{S+r}")
        for t in range(4, 8): a(f"v_cvt_pk_bf16_f32 v{PP+t}, v{S+2*t}, v{S+2*t+1}")
        stamp(a, 30)
        a("s_barrier")
        a(rdK(1)); a("s_barrier"); a(rdK(2)); a(rdV(1))
        a("s_waitcnt lgkmcnt(3)")
        mSv(1, S+16, "b")
        a(f"s_nop 10\ns_branch L_n1{F}")
        a.label(f"L_q0{F}")
        a(f"""ds_read_b128 {vr(KF+8,4)}, v{KA} offset:{8*1024}
              s_waitcnt lgkmcnt(0)
              {MFMA} {vr(S+16,16)}, {vr(KF+8,4)}, {vr(QF,4)}, 0
              s_nop 11""")
        for r in range(16): a(f"v_cndmask_b32 v{S+16+r}, v{NINF}, v{S+16+r}, s[{64+2*r}:{65+2*r}]")
        standin()
        stamp(a, 30)
        a("s_barrier")
        a(rdK(0)); a(rdK(1)); a(rdV(0))
        a("s_waitcnt lgkmcnt(3)")
        mSv(0, S)
        prev = None
        for n in range(8):
            Sn = S + 16*(n % 2); Vn = VF + 8*(n % 2)
            P_ = PP if n % 2 == 0 else P2
            ex = lambda r: a(f"v_exp_f32 v{Sn+r}, v{Sn+r}")
            cv = lambda t: a(f"v_cvt_pk_bf16_f32 v{P_+t}, v{Sn+2*t}, v{Sn+2*t+1}")
            if n == 1: a.label(f"L_n1{F}")
            if n == PTN: pt_load()
            PR = dict(zip([int(c) for c in opt("--pr", "357")], (2, 1, 0)))
            if n in PR: a(f"s_setprio {PR[n]}")
            if n in (2, 4):
                a(f"""v_readfirstlane_b32 s3, v11
                      s_cmp_ge_u32 s3, {n//2}
                      s_cbranch_scc1 L_kf{int(first)}{n}""")
                kv_wait(n//2)
                a.label(f"L_kf{int(first)}{n}")
            if n == 0:
                a("s_waitcnt lgkmcnt(2)"); mSv(1, S+16); a("s_barrier"); a(rdK(2)); a(rdV(1)); a("s_nop 3")
            if n == 7:
                a("s_nop 1"); a(prev); a("s_nop 2")
                for r in range(16): a(f"v_cndmask_b32 v{Sn+r}, v{S3+r}, v{Sn+r}, s[{64+2*r}:{65+2*r}]")
            for r in range(4): ex(r)
            if 0 < n < 7: a(prev)
            if n == 7: a(rdV(8))
            for r in range(4, 8): ex(r)
            if 0 < n < 7:
                a("s_waitcnt lgkmcnt(2)"); mSv(n+1, S + 16*((n+1) % 2))
                if n in (1, 3): a("ds_read_b32 v11, v149")
                a(rdK(n+2)); a(rdV(n+1))
            for t in range(4): cv(t)
            for r in range(8, 12): ex(r)
            if n < 7:
                a("s_waitcnt lgkmcnt(3)")
                a(f"{MFMA} {vr(O,16)}, {vr(Vn,4)}, {vr(P_,4)}, {'0' if n == 0 else vr(O,16)}")
            else:
                for t in range(4): a(f"v_and_b32 v{PP+t}, v{MK+t}, v{P_+t}\nv_xor_b32 v{P_+t}, v{PP+t}, v{P_+t}")
                a("s_waitcnt lgkmcnt(2)")
                a(f"{MFMA} {vr(O,16)}, {vr(Vn,4)}, {vr(PP,4)}, {vr(O,16)}")
            ex(12); ex(13)
            if n == 6: a("s_waitcnt lgkmcnt(2)"); mSv(8, S3)
            if n == 7: a("s_waitcnt lgkmcnt(0)"); a(f"{MFMA} {vr(O,16)}, {vr(VF,4)}, {vr(P2,4)}, {vr(O,16)}")
            ex(14); ex(15)
            for t in range(4, 8): cv(t)
            prev = f"{MFMA} {vr(O,16)}, {vr(Vn+4,4)}, {vr(P_+4,4)}, {vr(O,16)}"
        for t in range(4, 8): a(f"v_and_b32 v{PP+t}, v{MK+t}, v{P2+t}\nv_xor_b32 v{P2+t}, v{PP+t}, v{P2+t}")
        a(f"""s_nop 0
          {MFMA} {vr(O,16)}, {vr(VF+12,4)}, {vr(PP+4,4)}, {vr(O,16)}
          {MFMA} {vr(O,16)}, {vr(VF+4,4)}, {vr(P2+4,4)}, {vr(O,16)}
          s_waitcnt vmcnt(0)
          v_cmp_ne_u32 s[6:7], s{sPTV}, v148
          v_mov_b32 v14, 0x7f800000
          s_nop 8
          v_add_f32 v10, |v{O}|, |v{O+1}|
          v_add_f32 v11, |v{O+2}|, |v{O+3}|
          v_add_f32 v12, |v{O+4}|, |v{O+5}|
          v_add_f32 v13, |v{O+6}|, |v{O+7}|
          v_add_f32 v10, v10, v11
          v_add_f32 v12, v12, v13
          v_mul_f32 v11, 0x43800000, v{O+8}
          v_add_f32 v10, v10, v12
          v_add_f32 v11, v10, v11
          v_rcp_f32 v10, v{O+8}
          v_cmp_lt_f32 vcc, v11, v14
          s_cmp_eq_u64 vcc, -1
          s_cbranch_scc1 L_norm
          s_branch L_slow""")
    a(f"""s_cmp_eq_u32 s{sR}, 0
          s_cbranch_scc1 L_first""")
    fast(False)
    a.label("L_first")
    fast(True)
    a.label("L_preslow")
    a("s_barrier\ns_barrier")
    kv_wait(2)
    if PTN >= 0: pt_load()
    a.label("L_slow")
    a(f"""s_setprio 0
          s_sub_u32 s3, 8, s{sNF}
          s_lshl_b32 s3, s3, 10
          s_waitcnt lgkmcnt(0)""")
    for x in masks("0"): a(x)
    a(f"""ds_read_b128 {vr(KF,4)}, v{KA} offset:{8*1024}
          s_waitcnt lgkmcnt(0)
          {MFMA} {vr(S,16)}, {vr(KF,4)}, {vr(QF,4)}, {vr(CD,16)}
          s_nop 11""")
    maxblk(S, True)
    a(f"""s_cmp_eq_u32 s{sR}, 0
          s_cbranch_scc1 L_s1nofar
          ds_read_b128 {vr(KF,4)}, v{KA}
          s_waitcnt lgkmcnt(0)
          {MFMA} {vr(S,16)}, {vr(KF,4)}, {vr(QF,4)}, {vr(CF,16)}
          s_nop 11""")
    maxblk(S, False)
    a.label("L_s1nofar")
    a(f"""s_mov_b32 s{sI}, s{sNF}
          v_add_u32 v10, s3, v{KA}
          s_cmp_eq_u32 s{sI}, 0
          s_cbranch_scc1 L_s1done""")
    a.label("L_s1loop")
    a(f"""ds_read_b128 {vr(KF,4)}, v10
          v_add_u32 v10, 1024, v10
          s_waitcnt lgkmcnt(0)
          {MFMA} {vr(S,16)}, {vr(KF,4)}, {vr(QF,4)}, 0
          s_nop 11""")
    maxblk(S, False)
    a(f"""s_sub_u32 s{sI}, s{sI}, 1
          s_cmp_lg_u32 s{sI}, 0
          s_cbranch_scc1 L_s1loop""")
    a.label("L_s1done")
    xhalf_max()
    a(f"v_sub_f32 v{MX}, 0, v{MX}")
    for x in masks(f"v{MX}"): a(x)
    for r in range(16): a(f"v_mov_b32 v{CN+r}, v{MX}")
    def pvblk(kaddr, vaddr, off, C, first):
        a(f"""ds_read_b128 {vr(KF,4)}, v{kaddr} offset:{off}
              s_mov_b64 exec, s[{sVM}:{sVM+1}]
              ds_read_b128 {vr(VF,4)}, v{vaddr} offset:{off}
              ds_read_b128 {vr(VF+4,4)}, v{vaddr} offset:{off+512}
              s_mov_b64 exec, -1
              s_waitcnt lgkmcnt(0)
              {MFMA} {vr(S,16)}, {vr(KF,4)}, {vr(QF,4)}, {vr(C,16)}
              s_nop 11""")
        for r in range(16): a(f"v_exp_f32 v{S+r}, v{S+r}")
        for t in range(8): a(f"v_cvt_pk_bf16_f32 v{PP+t}, v{S+2*t}, v{S+2*t+1}")
        a("s_nop 1")
        a(f"{MFMA} {vr(O,16)}, {vr(VF,4)}, {vr(PP,4)}, {'0' if first else vr(O,16)}")
        a(f"{MFMA} {vr(O,16)}, {vr(VF+4,4)}, {vr(PP+4,4)}, {vr(O,16)}")
    pvblk(KA, VA_, 8*1024, CD, True)
    a(f"""s_cmp_eq_u32 s{sR}, 0
          s_cbranch_scc1 L_s2nofar""")
    pvblk(KA, VA_, 0, CF, False)
    a.label("L_s2nofar")
    a(f"""s_mov_b32 s{sI}, s{sNF}
          v_add_u32 v10, s3, v{KA}
          v_add_u32 v11, s3, v{VA_}
          s_cmp_eq_u32 s{sI}, 0
          s_cbranch_scc1 L_s2done""")
    a.label("L_s2loop")
    pvblk(10, 11, 0, CN, False)
    a(f"""v_add_u32 v10, 1024, v10
          v_add_u32 v11, 1024, v11
          s_sub_u32 s{sI}, s{sI}, 1
          s_cmp_lg_u32 s{sI}, 0
          s_cbranch_scc1 L_s2loop""")
    a.label("L_s2done")
    a(f"""s_waitcnt vmcnt(0)
          v_cmp_ne_u32 s[6:7], s{sPTV}, v148
          s_nop 12
          v_rcp_f32 v10, v{O+8}
          s_nop 0""")
    a.label("L_norm")
    for t in range(8): a(f"v_mul_f32 v{O+t}, v10, v{O+t}")
    for t in range(4): a(f"v_cvt_pk_bf16_f32 v{PP+t}, v{O+2*t}, v{O+2*t+1}")
    a(f"s_add_u32 s4, s{sQO}, {WS_O}")
    if MODE == "auto":
        a(f"""s_cmp_eq_u64 s[6:7], 0
              s_cbranch_scc0 L_ox
              buffer_store_dwordx4 {vr(PP,4)}, v1, s[{SWS}:{SWS+3}], s4 offen""")
        stamp(a, 13)
        publish(a, sF2, 10, flav="")
        a("s_branch L_od")
        a.label("L_ox")
    a(f"buffer_store_dwordx4 {vr(PP,4)}, v1, s[{SWS}:{SWS+3}], s4 offen {ST}")
    stamp(a, 13 if MODE != "auto" else 19)
    publish(a, sF2, 10)
    a.label("L_od")
    stamp(a, 14)
    a(f"""s_barrier
          s_cmp_ge_u32 s{sW}, 4
          s_cbranch_scc1 L_fin""")
    OA, WA2, ACC2, W2, O2 = 8, 9, 16, 32, 32
    a(f"""s_and_b32 s5, s{sW}, 1
          v_lshrrev_b32 v2, 5, v0
          v_bfe_u32 v3, v0, 2, 2
          v_lshl_add_u32 v4, v2, 2, v3
          v_lshlrev_b32 v4, 7, v4
          v_bfe_u32 v5, v0, 4, 1
          v_lshlrev_b32 v5, 1, v5
          v_and_b32 v6, 1, v0
          v_add_u32 v5, v5, v6
          s_and_b32 s3, s{sW}, 2
          s_lshl_b32 s3, s3, 1
          v_add_u32 v5, s3, v5
          v_bfe_u32 v6, v0, 3, 1
          v_lshlrev_b32 v6, 2, v6
          v_xor_b32 v5, v5, v6
          v_lshl_add_u32 v4, v5, 4, v4
          v_bfe_u32 v6, v0, 1, 1
          v_lshl_add_u32 v4, v6, 3, v4
          v_add_u32 v{WA2}, {WO_BASE}, v4
          s_lshl_b32 s3, s5, 10
          v_add_u32 v{OA}, s3, v1
          v_and_b32 v14, 31, v0
          s_lshl_b32 s3, s{sTB}, 6
          s_lshl_b32 s5, s5, 5
          s_add_u32 s3, s3, s5
          v_add_u32 v14, s3, v14
          v_lshlrev_b32 v14, 11, v14
          v_lshl_add_u32 v14, v2, 4, v14
          s_lshl_b32 s3, s{sHG}, 7
          s_and_b32 s5, s{sW}, 2
          s_lshl_b32 s5, s5, 5
          s_add_u32 s3, s3, s5
          s_add_u32 s3, s3, 1024
          v_add_u32 v14, s3, v14
          v_mov_b32 v15, v{OA}""")
    heads = [8*(k//4 % 4) + 4*(k//16) + k % 4 for k in range(32)]
    OB = [2, 6, 10, 160]
    for k in range(32):
        for q in range(2):
            a(f"ds_read_b64_tr_b16 {vr(W2+4*k+2*q,2)}, v{WA2} offset:{heads[k]*2048 + q*1024}")
    a("s_waitcnt lgkmcnt(0)\ns_barrier")
    stamp(a, 28)
    rdo = lambda k: f"ds_read_b128 {vr(OB[k % 4],4)}, v15 offset:{heads[k]*2048}"
    for k in range(4): a(rdo(k))
    for k in range(32):
        if k == 12:
            a("s_barrier")
            stamp(a, 16)
        a(f"s_waitcnt lgkmcnt({min(3, 31-k)})")
        a(f"{MFMA} {vr(ACC2,16)}, {vr(W2+4*k,4)}, {vr(OB[k % 4],4)}, {'0' if k == 0 else vr(ACC2,16)}")
        if k + 4 < 32: a(rdo(k+4))
    a("s_nop 11")
    for mm in range(2):
        for t in range(4):
            a(f"v_cvt_pk_bf16_f32 v{O2+4*mm+t}, v{ACC2+8*mm+2*t}, v{ACC2+8*mm+2*t+1}")
        a(f"buffer_store_dwordx4 {vr(O2+4*mm,4)}, v14, s[{SOUT}:{SOUT+3}], 0 offen offset:{32*mm} {OPF}")
    stamp(a, 17)
    a.label("L_fin")
    stamp_flush(a, 18)
    a.label("L_end")
    a.label("L_last_insn")
    a("s_endpgm")
    return a

def main():
    a = gen()
    hdr = f"""; {NAME} : one fused kernel (generated by my gen11.py)
; @launch grid=(256,1,1) block=(768,1,1) lds=163840
.amdgcn_target "amdgcn-amd-amdhsa--gfx950"
.text
"""
    kd = f""".section .rodata,"a"
.p2align 6
.amdhsa_kernel {KN}
  .amdhsa_next_free_vgpr 168
  .amdhsa_next_free_sgpr 102
  .amdhsa_accum_offset 168
  .amdhsa_group_segment_fixed_size 0
  .amdhsa_kernarg_size 88
  .amdhsa_user_sgpr_count 2
  .amdhsa_user_sgpr_kernarg_segment_ptr 1
  .amdhsa_system_sgpr_workgroup_id_x 1
.end_amdhsa_kernel
"""
    path = sys.argv[1] if len(sys.argv) > 1 and sys.argv[1].endswith(".s") else f"cdna_kernels/{NAME}.s"
    open(path, "w").write(hdr + a.text() + kd)
main()
```

```python
import sys, struct, math

NAME = "concat_heads__spectral_fnet__sliding_block__prompt"
KN = NAME + "_kernel"
WS_Q, WS_K, WS_V, WS_O, WS_U = 0, 2 << 20, 4 << 20, 6 << 20, 8 << 20
WS_F1, WS_F2, WS_PT, WS_F3 = (11 << 20), (11 << 20) + 0x20000, (11 << 20) + 0x60000, (11 << 20) + 0x70000
U_ROW = 4224
U_GP = 16 * U_ROW
U_SIZE = 32 * U_GP
QSCALE = 0.25 * math.log2(math.e)
uid = [0]
STAMP = "--stamp" in sys.argv
FORCE_SLOW = "--slow" in sys.argv
SKIP = set(int(x) for x in sys.argv[sys.argv.index("--skip")+1].split(",")) if "--skip" in sys.argv else set()
ST = sys.argv[sys.argv.index("--st")+1].replace("+", " ") if "--st" in sys.argv else "sc1"
LD = "sc1"
SPIN_MAX = 200000
def opt(name, default):
    return type(default)(sys.argv[sys.argv.index(name)+1]) if name in sys.argv else default
PDELAY = opt("--pdelay", 0)
PIPE = "--pipe" in sys.argv
FULLF = "--fullf" in sys.argv
KVLD = sys.argv[sys.argv.index("--kvld")+1].replace("+", " ").replace("none", "") if "--kvld" in sys.argv else "sc1"
A2ST = "sc1" if "--a2sc1" in sys.argv else ""
WB = "--wb" in sys.argv

def f2u(x): return struct.unpack("<I", struct.pack("<f", x))[0]

class Asm:
    def __init__(self): self.L = []
    def __call__(self, s):
        for line in s.strip("\n").split("\n"):
            line = line.strip()
            if line: self.L.append(line if line.endswith(":") and " " not in line else "  " + line)
    def label(self, n): self.L.append(n + ":")
    def text(self): return "\n".join(self.L) + "\n"

def vr(b, n=1): return f"v{b}" if n == 1 else f"v[{b}:{b+n-1}]"
MFMA = "v_mfma_f32_32x32x16_bf16"

kAX, kSR, kSI, kDR, kDI, kBX, kWQ, kWO, kOUT, kDBG, kWS = 64, 66, 68, 70, 72, 74, 76, 78, 80, 82, 84
sTB, sHG, sJ, sW, sNON = 16, 17, 18, 19, 20
sHD, sR = 21, 22
SWS = 32
VST = 167

def srd(a, d, k, size, off=0):
    if off:
        a(f"s_add_u32 s{d}, s{k}, {off}\ns_addc_u32 s{d+1}, s{k+1}, 0")
    else:
        a(f"s_mov_b32 s{d}, s{k}\ns_mov_b32 s{d+1}, s{k+1}")
    a(f"s_mov_b32 s{d+2}, {size}\ns_mov_b32 s{d+3}, 0x20000")

AMP = [int(x) for x in sys.argv[sys.argv.index("--amp")+1].split(",")] if "--amp" in sys.argv else None
def amp_end(a):
    if not AMP: return
    uid[0] += 1
    L = f"amp{uid[0]}"
    a(f"""s_cmp_lg_u32 s2, {AMP[3]}
          s_cbranch_scc1 {L}x
          s_cmp_lg_u32 s{sW}, {AMP[4]}
          s_cbranch_scc1 {L}x
          s_waitcnt vmcnt(0)
          s_memrealtime s[62:63]
          s_sub_u32 s100, s101, s100
          s_min_u32 s100, s100, 10000
          s_mul_i32 s100, s100, {AMP[2]}
          s_waitcnt lgkmcnt(0)
          s_add_u32 s100, s100, s62""")
    a.label(L)
    a(f"""s_memrealtime s[62:63]
          s_waitcnt lgkmcnt(0)
          s_sub_u32 s61, s62, s100
          s_cmp_lt_i32 s61, 0
          s_cbranch_scc1 {L}""")
    a.label(L + "x")
GMAX = None
def stamp(a, idx):
    if "--jit" in sys.argv and idx > 0:
        uid[0] += 1
        seed = int(sys.argv[sys.argv.index("--jit")+1])
        a(f"""s_cselect_b32 s96, 1, 0
              s_mul_i32 s97, s2, {(2654435761*(idx+seed*37)+12345) & 0x7fffffff | 1}
              s_mul_i32 s98, s{sW}, {(40503*(idx+3+seed)) | 1}
              s_xor_b32 s97, s97, s98
              s_mul_i32 s97, s97, 0x45d9f3b
              s_bfe_u32 s97, s97, 0x30010
              s_cmp_lg_u32 s97, 0
              s_cbranch_scc1 jt{uid[0]}
              s_sleep {64 + (idx*29 + seed*11) % 60}""")
        a.label(f"jt{uid[0]}")
        a("s_cmp_lg_u32 s96, 0")
    if AMP and idx in AMP[:2]:
        a(f"""s_memrealtime s[62:63]
              s_waitcnt lgkmcnt(0)
              s_mov_b32 s{100 + AMP[:2].index(idx)}, s62""")
    if not STAMP: return
    if idx in SKIP: return
    a(f"""s_memrealtime s[96:97]
          s_memtime s[98:99]
          s_waitcnt lgkmcnt(0)
          v_writelane_b32 v{VST}, s96, {idx}
          v_writelane_b32 v{VST}, s98, {idx+32}""")
def stamp_flush(a, idx):
    if AMP:
        if idx in AMP[:2]: a("s_waitcnt vmcnt(0)")
        stamp(a, idx)
        amp_end(a)
    if not STAMP: return
    a("s_waitcnt vmcnt(0)")
    stamp(a, idx)
    srd(a, 88, SWS, 0x100000, 16 << 20)
    a(f"""s_mov_b64 exec, -1
          s_lshl_b32 s92, s2, 12
          s_lshl_b32 s93, s{sW}, 8
          s_add_u32 s92, s92, s93
          v_mbcnt_lo_u32_b32 v2, -1, 0
          v_mbcnt_hi_u32_b32 v2, -1, v2
          v_lshlrev_b32 v2, 2, v2
          buffer_store_dword v{VST}, v2, s[88:91], s92 offen""")

def poll(a, vaddr, vtmp, nl_mask, srdreg=SWS):
    uid[0] += 1
    L = f"poll{uid[0]}"
    a(f"""s_mov_b32 s60, 0
          s_mov_b64 exec, {nl_mask}""")
    a.label(L)
    a(f"""buffer_load_dword v{vtmp}, v{vaddr}, s[{srdreg}:{srdreg+3}], 0 offen sc1
          s_add_u32 s60, s60, 1
          s_cmp_gt_u32 s60, {SPIN_MAX}
          s_cbranch_scc1 {L}x
          s_waitcnt vmcnt(0)
          v_cmp_ne_u32 vcc, s{sNON}, v{vtmp}
          s_cbranch_vccnz {L}""")
    a.label(L + "x")
    a("s_mov_b64 exec, -1")

def poll_pipe(a, vaddr, vt, nl_mask, gap=2):
    uid[0] += 1
    L = f"pp{uid[0]}"
    ld = lambda k: f"buffer_load_dword v{vt+k}, v{vaddr}, s[{SWS}:{SWS+3}], 0 offen sc1"
    a(f"""s_mov_b32 s60, 0
          s_mov_b64 exec, {nl_mask}
          {ld(0)}
          s_sleep {gap}
          {ld(1)}""")
    a.label(L)
    for k in range(3):
        a(f"""s_sleep {gap}
              {ld((k+2)%3)}
              s_waitcnt vmcnt(2)
              v_cmp_ne_u32 vcc, s{sNON}, v{vt+k}
              s_cbranch_vccz {L}x""")
    a(f"""s_add_u32 s60, s60, 1
          s_cmp_lt_u32 s60, {SPIN_MAX}
          s_cbranch_scc1 {L}""")
    a.label(L + "x")
    a("s_mov_b64 exec, -1")

def poll2(a, va, vt):
    uid[0] += 1
    L = f"pq{uid[0]}"
    a("s_mov_b32 s60, 0")
    a.label(L)
    a(f"""buffer_load_dwordx2 v[{vt}:{vt+1}], v{va}, s[{SWS}:{SWS+3}], 0 offen sc1
          s_add_u32 s60, s60, 1
          s_cmp_gt_u32 s60, {SPIN_MAX}
          s_cbranch_scc1 {L}x
          s_waitcnt vmcnt(0)
          v_cmp_ne_u32 vcc, s{sNON}, v{vt}
          v_cmp_ne_u32 s[10:11], s{sNON}, v{vt+1}
          s_or_b64 vcc, vcc, s[10:11]
          s_cbranch_vccnz {L}""")
    a.label(L + "x")

def publish(a, soff, vtmp, cnt=0, flav=None):
    if FULLF:
        a(f"""v_mov_b32 v{vtmp}, s{sNON}
              v_mov_b32 v{vtmp+1}, s{sNON}
              s_waitcnt vmcnt({cnt})
              s_mov_b64 exec, 0xffff
              buffer_store_dwordx2 v[{vtmp}:{vtmp+1}], v166, s[{SWS}:{SWS+3}], s{soff} offen {ST if flav is None else flav}
              s_mov_b64 exec, -1""")
        return
    a(f"""s_waitcnt vmcnt({cnt})
          v_mov_b32 v{vtmp}, s{sNON}
          s_mov_b64 exec, 1
          buffer_store_dword v{vtmp}, off, s[{SWS}:{SWS+3}], s{soff} {ST if flav is None else flav}
          s_mov_b64 exec, -1""")

def nonce_wait(a, vtmp, first_loaded):
    uid[0] += 1
    L = f"non{uid[0]}"
    a("s_mov_b32 s60, 0")
    if first_loaded:
        a(f"s_branch {L}c")
    a.label(L)
    a(f"""buffer_load_dword v{vtmp}, off, s[56:59], 0 sc1
          s_waitcnt vmcnt(0)""")
    a.label(L + "c")
    a(f"""v_readfirstlane_b32 s{sNON}, v{vtmp}
          s_add_u32 s60, s60, 1
          s_cmp_gt_u32 s60, {SPIN_MAX}
          s_cbranch_scc1 {L}x
          s_cmp_eq_u32 s{sNON}, 0
          s_cbranch_scc1 {L}""")
    a.label(L + "x")

def diag_mask(r):
    g, i = r // 4, r % 4
    return (0xffffffff << (8*g+i)) & 0xffffffff, (0xffffffff << (8*g+i+4)) & 0xffffffff

MODE = sys.argv[sys.argv.index("--mode")+1] if "--mode" in sys.argv else "auto"
A2F = opt("--a2st", "").replace("+", " ")
OPF = opt("--opst", "").replace("+", " ")
XR, WR, WSL = 0, 65536, 24576
NS = opt('--ns', 3)
QSLOT = [WR + 2*WSL, WR, WR + 3*WSL, WR + WSL] if NS == 3 else [WR + k*WSL for k in range(4)]
UPN = opt('--upn', 1)
PUBU = opt('--pubu', 0)
Q_BASE = 81920
WO_BASE = 98304
HSTR = 20480
UE = '--noue' not in sys.argv
ALIGN = '--noalign' not in sys.argv
OWNF = WR + WSL + 16384 + 4096
MST = WR + 2*WSL
B11E = '--b11e' in sys.argv
NONW = 163840 - 1024
OWNB = opt('--ownb', 1)
KVF = 90112
UF = 64
sX = sR

def gen():
    a = Asm()
    a.L += [f".globl {KN}", ".p2align 8", f".type {KN},@function"]
    a.label(KN)
    a(f"""s_cmp_ge_u32 s2, 256
          s_cbranch_scc1 L_end
          s_load_dwordx16 s[64:79], s[0:1], 0
          s_load_dwordx4 s[80:83], s[0:1], 64
          s_load_dwordx2 s[84:85], s[0:1], 80
          v_lshrrev_b32 v1, 6, v0
          v_and_b32 v0, 63, v0
          s_and_b32 s{sX}, s2, 7
          v_readfirstlane_b32 s{sW}, v1
          s_lshr_b32 s{sJ}, s2, 3
          s_lshl_b32 s3, s{sX}, 2
          s_and_b32 s4, s{sJ}, 3
          s_add_u32 s{sTB}, s3, s4
          s_lshr_b32 s{sHG}, s2, 5
          s_xor_b32 s{sHG}, s{sHG}, {opt("--hgx", 0)}""")
    if FULLF: a("v_lshlrev_b32 v166, 3, v0")
    if STAMP: a(f"v_mov_b32 v{VST}, 0")
    stamp(a, 0)
    a(f"""s_cmp_lt_u32 s{sW}, 8
          s_cbranch_scc1 L_consumer""")
    sQO, sF2, sPTV = 12, 13, 14
    def get_tag(vt):
        a(f"""v_mov_b32 v{vt}, {NONW}
              ds_read_b32 v{vt}, v{vt}
              s_waitcnt lgkmcnt(0)
              v_readfirstlane_b32 s{sNON}, v{vt}
              s_nop 1""")
    def pt_load():
        if MODE == "auto":
            a(f"""v_and_b32 v147, 31, v0
                  s_lshl_b32 s3, s{sX}, 7
                  s_add_u32 s3, s3, {WS_PT}
                  v_lshl_add_u32 v147, v147, 2, s3
                  buffer_load_dword v148, v147, s[{SWS}:{SWS+3}], 0 offen sc1""")
    sLW, sROT, sSOX, sSOW, sMX, sMW, sTY = 23, 15, 28, 29, 30, 31, 27
    SX, SWD, SAX = 36, 40, 48
    SWOD, SOUT = 44, 40
    sC0 = 24
    XO, WO_, XA1 = 8, 10, 14
    sRA, sAX = 21, 25
    a(f"""s_sub_u32 s{sLW}, s{sW}, 8
          s_lshl_b32 s3, s{sTB}, 2
          s_add_u32 s3, s3, s{sLW}
          s_lshl_b32 s3, s3, 14                    ; (64tb + 16lw)*1024
          v_lshrrev_b32 v1, 3, v0
          v_and_b32 v2, 7, v0
          v_lshrrev_b32 v3, 4, v0
          v_xor_b32 v4, v3, v2
          v_xor_b32 v5, 4, v4
          v_lshlrev_b32 v4, 4, v4
          v_lshlrev_b32 v5, 4, v5
          v_lshl_add_u32 v6, v1, 10, s3
          v_add_u32 v{XO}, v6, v4
          v_add3_u32 v{XO+1}, v6, v5, s4
          v_and_b32 v6, 1, v3
          v_lshlrev_b32 v6, 2, v6
          v_xor_b32 v6, v6, v2
          s_lshl_b32 s3, s{sHG}, 7
          v_lshl_add_u32 v6, v6, 4, s3
          s_and_b32 s3, s{sLW}, 1
          s_lshl_b32 s3, s3, 5
          v_add_u32 v7, s3, v1
          s_movk_i32 s3, 3072
          v_mad_u32_u24 v{WO_}, v7, s3, v6""".replace("v_add3_u32 v9, v6, v5, s4", "v_add_u32 v9, v6, v5\n          v_add_u32 v9, 8192, v9"))
    for jw in range(1, 4): a(f"v_add_u32 v{WO_+jw}, {8*3072*jw}, v{WO_}")
    RM = opt('--rmode', 2)
    if RM == 0:
        a(f"""s_and_b32 s3, s{sJ}, 3
          s_lshl_b32 s3, s3, 1
          s_add_u32 s3, s3, s{sHG}
          s_add_u32 s3, s3, s{sX}
          s_and_b32 s{sROT}, s3, {opt('--rmask', 4)}""")
    elif RM == 1: a(f"s_mov_b32 s{sROT}, s{sX}")
    elif RM == 2:
        a(f"""s_and_b32 s3, s{sJ}, 3
          s_lshl_b32 s3, s3, 1
          s_add_u32 s3, s3, s{sHG}
          s_and_b32 s3, s3, {opt('--rmask', 4)}
          s_add_u32 s3, s3, s{sX}
          s_and_b32 s{sROT}, s3, 7""")
    a(f"""s_nop 0
          s_lshr_b32 s{sTY}, s{sLW}, 1
          s_lshl_b32 s{sTY}, s{sTY}, 10
          s_add_u32 s{sTY}, s{sTY}, 1024
          s_lshl_b32 s{sSOX}, s{sROT}, 7
          s_mul_i32 s{sSOW}, s{sROT}, {64*3072}
          s_add_u32 s{sSOW}, s{sSOW}, s{sTY}
          s_lshl_b32 s{sMX}, s{sLW}, 11
          s_lshl_b32 s{sMW}, s{sLW}, 12
          s_waitcnt lgkmcnt(0)""")
    srd(a, SX, kBX, 0x200000)
    srd(a, SWD, kWQ, 0x180000)
    stamp(a, 1)
    def dma(sm0, m0off, v, S, so):
        a(f"""s_add_u32 m0, s{sm0}, {m0off}
              s_nop 0
              buffer_load_dwordx4 v{v}, s[{S}:{S+3}], s{so} offen lds""")
    def issue(st):
        if st < 8:
            for j in range(2): dma(sMX, XR + st*8192 + j*1024, XO+j, SX, sSOX)
        base = WR + (st % NS)*WSL if st < 8 else QSLOT[st-8]
        for j in range(4): dma(sMW, base + j*1024, WO_+j, SWD, sSOW)
        if st == 0:
            a(f"""; A_x rows: pi = 8*(x>>1) + (j&7) ; p = lw>>1, s1 = 16*(lw&1) + 8j + (i>>3)
          s_lshl_b32 s3, s{sTB}, 1
          s_lshr_b32 s4, s{sLW}, 1
          s_add_u32 s3, s3, s4
          s_lshl_b32 s3, s3, 10
          s_and_b32 s4, s{sLW}, 1
          s_lshl_b32 s4, s4, 20
          s_add_u32 s3, s3, s4
          v_lshl_add_u32 v6, v1, {10 if '--xcont' in sys.argv else 16}, s3
          v_add_u32 v{XA1}, v6, v4
          v_add_u32 v{XA1+1}, v6, v5
          v_add_u32 v{XA1+1}, {8*1024 if '--xcont' in sys.argv else 8*65536}, v{XA1+1}
          s_lshr_b32 s3, s{sJ}, 2
          s_and_b32 s{sRA}, s3, {opt('--amask', 6)}
          s_lshl_b32 s{sAX}, s{sRA}, 7""")
            srd(a, SAX, kAX, 0x200000)
        if st < 8:
            for j in range(2): dma(sMX, base + 16384 + j*1024, XO+j if '--xsame' in sys.argv else XA1+j, SX if '--xsame' in sys.argv else SAX, sSOX if '--xsame' in sys.argv else sAX)
        if st < 7:
            a(f"""s_add_u32 s{sROT}, s{sROT}, 1
                  s_and_b32 s{sROT}, s{sROT}, 7
                  s_lshl_b32 s{sSOX}, s{sROT}, 7
                  s_mul_i32 s{sSOW}, s{sROT}, {64*3072}
                  s_add_u32 s{sSOW}, s{sSOW}, s{sTY}
                  s_add_u32 s{sAX}, s{sAX}, 128
                  s_and_b32 s{sAX}, s{sAX}, 1023""")
        elif st < 11:
            a(f"s_add_u32 s{sROT}, s{sROT}, 2")
            a(f"""s_and_b32 s{sROT}, s{sROT}, 7
                  s_mul_i32 s{sSOW}, s{sROT}, {64*3072}""")
    issue(0)
    srd(a, SWS, kWS, 0x1000000)
    srd(a, 56, kDBG, 256)
    a(f"""          ; wo voffset: (128lw + (i>>3))*1024 + hg*128 + ((i&7) ^ (((i>>4)&1)<<2))*16
          v_and_b32 v6, 1, v3
          v_lshlrev_b32 v6, 2, v6
          v_xor_b32 v6, v6, v2
          s_lshl_b32 s3, s{sLW}, 17
          s_lshl_b32 s4, s{sHG}, 7
          s_add_u32 s3, s3, s4
          v_lshl_add_u32 v6, v6, 4, s3
          v_lshl_add_u32 v19, v1, 10, v6
          v_lshrrev_b32 v4, 1, v0
          v_add_u32 v4, s{sTB}, v4
          v_subrev_u32 v4, 4, v4
          v_and_b32 v5, 3, v4
          v_bfe_u32 v4, v4, 2, 3
          v_lshl_add_u32 v4, v5, 3, v4
          s_lshr_b32 s4, s2, 5
          s_lshl_b32 s4, s4, 12
          s_and_b32 s5, s{sLW}, 2
          s_lshl_b32 s5, s5, 2
          s_add_u32 s4, s4, s5
          v_lshl_add_u32 v4, v4, 7, s4
          v_and_b32 v5, 1, v0
          v_lshl_add_u32 v4, v5, 2, v4
          v_add_u32 v16, {WS_F1}, v4
          v_lshlrev_b32 v1, 4, v0
          s_lshl_b32 s9, s{sHG}, 2
          s_add_u32 s9, s9, s{sLW}
          s_lshl_b32 s5, s{sTB}, 11
          s_lshl_b32 s6, s9, 16
          s_add_u32 s10, s5, s6
          s_add_u32 s5, s10, {WS_O}
          v_lshl_add_u32 v24, v0, 7, s5
          s_lshl_b32 s4, s{sTB}, 6
          s_lshl_b32 s5, s{sLW}, 3
          s_add_u32 s4, s4, s5
          v_bfe_u32 v4, v0, 1, 3
          v_and_b32 v5, 1, v0
          v_lshl_add_u32 v4, v5, 5, v4
          v_add_u32 v4, s4, v4
          v_lshlrev_b32 v4, 2, v4
          v_add_u32 v25, {WS_F2}, v4
          s_lshl_b32 s5, s{sLW}, 19
          s_lshl_b32 s6, s{sTB}, 11
          s_add_u32 s5, s5, s6
          s_add_u32 s13, s5, {WS_O}""")
    MF, A2 = 96, 128
    sPF, sWB, sIH = 52, 54, 55
    a(f"""s_lshl_b32 s4, s2, 1
          s_lshr_b32 s5, s{sLW}, 1
          s_add_u32 s4, s4, s5
          s_mul_i32 s4, s4, 3072
          s_and_b32 s5, s{sLW}, 1
          s_lshl_b32 s5, s5, 9
          s_add_u32 s5, s5, s4
          s_add_u32 s{sPF}, s{kWQ}, s5
          s_addc_u32 s{sPF+1}, s{kWQ+1}, 0
          s_mov_b32 s{sIH}, 0
          s_mov_b32 s{sWB}, {WR + 2*WSL}
          s_add_u32 s11, s{sMX}, {XR + 2*8192}
          s_getreg_b32 s{sPTV}, hwreg(HW_REG_XCC_ID, 0, 16)
          s_lshl_b32 s{sPTV}, s{sPTV}, 8""")
    issue(1)
    def prefetch4():
        if "--nopf" in sys.argv: return
        a(f"""s_sub_u32 s3, s{sIH}, {opt("--pf0", 2)}
              s_cmp_ge_u32 s3, 4
              s_cbranch_scc1 L_hpf""")
        for k in range(4): a(f"s_load_dword s61, s[{sPF}:{sPF+1}], {64*k}")
        a(f"""s_add_u32 s{sPF}, s{sPF}, 256
              s_addc_u32 s{sPF+1}, s{sPF+1}, 0
              s_cmp_lg_u32 s3, 1
              s_cbranch_scc1 L_hpf
              s_lshl_b32 s4, s2, 2
              s_add_u32 s4, s4, s{sLW}
              s_lshl_b32 s5, s4, 9
              s_add_u32 s{sPF}, s{kWO}, s5
              s_addc_u32 s{sPF+1}, s{kWO+1}, 0""")
        a.label("L_hpf")
    stamp(a, 25)
    if ALIGN: a.L.append(".p2align 6")
    a.label("L_hl")
    a("s_waitcnt vmcnt(8)")
    if STAMP and "--lst" in sys.argv:
        a(f"""s_memrealtime s[96:97]
              s_add_u32 s3, s{sIH}, 2
              s_waitcnt lgkmcnt(0)
              v_writelane_b32 v{VST}, s96, s3""".replace("v_writelane_b32 v167, s96, s3", "s_mov_b32 m0, s3\nv_writelane_b32 v167, s96, m0"))
    a(f"""s_barrier
          s_add_u32 s4, s{sMW}, s{sWB}
          s_add_u32 s5, s{sMX}, s{sWB}""")
    for j in range(2): dma(11, j*1024, XO+j, SX, sSOX)
    for j in range(4): dma(4, j*1024, WO_+j, SWD, sSOW)
    for j in range(2): dma(5, 16384 + j*1024, XA1+j, SAX, sAX)
    prefetch4()
    a(f"""s_add_u32 s11, s11, 8192
          s_add_u32 s{sWB}, s{sWB}, {WSL}
          s_cmp_eq_u32 s{sWB}, {WR + 3*WSL}
          s_cselect_b32 s{sWB}, {WR}, s{sWB}
          s_add_u32 s{sROT}, s{sROT}, 1
          s_and_b32 s{sROT}, s{sROT}, 7
          s_lshl_b32 s{sSOX}, s{sROT}, 7
          s_mul_i32 s{sSOW}, s{sROT}, {64*3072}
          s_add_u32 s{sSOW}, s{sSOW}, s{sTY}
          s_add_u32 s{sAX}, s{sAX}, 128
          s_and_b32 s{sAX}, s{sAX}, 1023
          s_add_u32 s{sIH}, s{sIH}, 1
""")
    a(f"""s_cmp_lt_u32 s{sIH}, 6
          s_cbranch_scc1 L_hl
          s_lshr_b32 s3, s{sLW}, 1
          s_add_u32 s{sROT}, s{sROT}, s3
          s_and_b32 s{sROT}, s{sROT}, 7
          s_mul_i32 s{sSOW}, s{sROT}, {64*3072}
          s_cmp_lg_u32 s{sLW}, 0
          s_cbranch_scc1 L_hn0
          buffer_load_dword v18, off, s[56:59], 0 sc1
          s_waitcnt vmcnt(9)
          s_branch L_hn1""")
    a.label("L_hn0")
    a("s_waitcnt vmcnt(8)")
    a.label("L_hn1")
    a("s_barrier")
    issue(8)
    a(f"""s_cmp_lg_u32 s{sLW}, 0
          s_cbranch_scc1 L_hn2
          s_waitcnt vmcnt(5)
          s_branch L_hn3""")
    a.label("L_hn2")
    a("s_waitcnt vmcnt(4)")
    a.label("L_hn3")
    stamp(a, 9)
    a("s_barrier")
    issue(9); issue(10)
    a(f"""s_waitcnt vmcnt(8)
          s_cmp_lg_u32 s{sLW}, 0
          s_cbranch_scc1 L_hp2""")
    nonce_wait(a, 18, True)
    a(f"""v_mov_b32 v6, {NONW}
          v_mov_b32 v7, s{sNON}
          ds_write_b32 v6, v7""")
    if MODE == "auto":
        a(f"""s_xor_b32 s3, s{sPTV}, s{sNON}
              v_mov_b32 v18, s3
              s_lshl_b32 s3, s{sX}, 5
              s_add_u32 s3, s3, s{sJ}
              s_lshl_b32 s3, s3, 2
              s_add_u32 s3, s3, {WS_PT}
              s_mov_b64 exec, 1
              buffer_store_dword v18, off, s[{SWS}:{SWS+3}], s3
              s_mov_b64 exec, -1""")
    a("s_waitcnt lgkmcnt(0)")
    a.label("L_hp2")
    stamp(a, 20)
    a("s_barrier")
    issue(11)
    get_tag(6)
    srd(a, SWOD, kWO, 0x80000)
    srd(a, SOUT, kOUT, 0x400000)
    a(f"""; A2 task: tc = 2x + (j&1), cr16 = j>>1, sigma = w&1, nt = (w>>1)&1
          s_lshl_b32 s6, s{sX}, 1
          s_and_b32 s4, s{sJ}, 1
          s_add_u32 s6, s6, s4                    ; tc
          s_lshr_b32 s7, s{sJ}, 1                 ; cr16
          s_lshl_b32 s{sC0}, s7, 5
          s_lshr_b32 s4, s6, 2
          s_lshl_b32 s4, s4, 3
          s_and_b32 s5, s6, 3
          s_add_u32 s4, s4, s5
          s_and_b32 s5, s{sW}, 1
          s_lshl_b32 s5, s5, 2
          s_add_u32 s5, s4, s5                    ; t1 source
          s_sub_u32 s4, 32, s5
          s_and_b32 s4, s4, 31
          s_cmp_lt_u32 s2, 128
          s_cselect_b32 s11, s5, s4
          s_cselect_b64 vcc, -1, 0
          v_and_b32 v45, 31, v0
          v_lshl_add_u32 v20, v45, 5, s11""")
    a(f"""v_lshrrev_b32 v47, 5, v0
          v_and_b32 v45, 0x13, v0
          v_bfe_u32 v46, v0, 2, 1
          v_lshl_or_b32 v45, v46, 3, v45
          v_bfe_u32 v46, v0, 3, 1
          v_lshl_or_b32 v45, v46, 2, v45
          v_add_u32 v45, s{sC0}, v45                ; c
          v_sub_u32 v46, 512, v45
          v_cndmask_b32 v45, v46, v45, vcc           ; e
          s_mul_i32 s4, s6, {U_ROW}
          s_and_b32 s5, s{sW}, 1
          s_lshl_b32 s5, s5, 3
          s_add_u32 s4, s4, s5
          s_add_u32 s4, s4, {WS_U}
          v_lshl_add_u32 v45, v45, 4, s4
          s_mov_b32 s5, {16*U_GP}
          v_mad_u32_u24 v22, v47, s5, v45           ; U address
          s_sub_u32 s5, 15, s7
          s_cmp_lt_u32 s2, 128
          s_cselect_b32 s4, s7, s5                ; e block b
          s_cselect_b32 s5, 0, 1
          v_mul_u32_u24 v45, s5, v47
          v_add_u32 v45, s4, v45
          v_and_b32 v45, 7, v45
          v_and_b32 v46, 31, v0
          v_lshlrev_b32 v46, 3, v46
          v_lshl_add_u32 v45, v45, 8, v46
          v_add_u32 v21, {WS_F3}, v45""")
    NT = 3 if MODE == "auto" else 1
    a(f"""s_sub_u32 s3, 4, s{sTB}
          s_max_i32 s3, s3, 0
          s_lshl_b32 s4, s3, 1
          s_lshl_b32 s6, 0xff, s4
          s_and_b32 s6, s6, 0xff
          s_mov_b32 s7, 0
          s_mul_i32 s8, s{sLW}, {HSTR}
          s_add_u32 s8, s8, 6144
          s_add_u32 s10, s10, {WS_K - 2048}
          s_lshl_b32 s30, s{sLW}, 14
          v_mov_b32 v2, 0x7ffffff0
          s_waitcnt vmcnt(8) lgkmcnt(0)
          s_barrier""")
    a(f"""s_waitcnt vmcnt(4)
          s_barrier
          s_waitcnt vmcnt(0)""")
    stamp(a, 23)
    a(f"""s_barrier
          s_mov_b64 exec, s[6:7]
          s_cbranch_execz L_kv0
          buffer_load_dword v5, v16, s[{SWS}:{SWS+3}], 0 offen sc1
          s_mov_b64 exec, -1
          s_barrier
          s_mov_b64 exec, s[6:7]
          s_waitcnt vmcnt(0)
          v_cmp_ne_u32 vcc, s{sNON}, v5
          s_mov_b64 exec, -1
          s_cbranch_vccz L_kv1""")
    poll(a, 16, 5, "s[6:7]")
    a("s_branch L_kv1")
    a.label("L_kv0")
    a("s_mov_b64 exec, -1\ns_barrier")
    a.label("L_kv1")
    stamp(a, 10)
    def kv_grp(g):
        a(f"""s_cmp_gt_u32 s{sTB}, {g}
              s_cbranch_scc1 L_kvr{g}
              v_mov_b32 v3, v2
              s_mov_b32 s10, {2048*g}""")
        a.label(f"L_kvr{g}")
        a(f"""s_sub_u32 m0, s8, {2048*g}
              s_sub_u32 s4, s10, {2048*g}
              buffer_load_dwordx4 v3, s[{SWS}:{SWS+3}], s4 offen {KVLD} lds
              buffer_load_dwordx4 v3, s[{SWS}:{SWS+3}], s4 offen offset:1024 {KVLD} lds
              s_add_u32 m0, m0, 10240
              s_add_u32 s4, s4, {WS_V - WS_K}
              buffer_load_dwordx4 v3, s[{SWS}:{SWS+3}], s4 offen {KVLD} lds
              buffer_load_dwordx4 v3, s[{SWS}:{SWS+3}], s4 offen offset:1024 {KVLD} lds""")
    KV1 = opt("--kv1", 3)
    a("v_mov_b32 v3, v1")
    for g in range(KV1): kv_grp(g)
    def wo_grp(g):
        a(f"""s_add_u32 s3, s{sJ}, {g}
              s_and_b32 s3, s3, 3
              s_lshl_b32 s4, s3, 12
              s_add_u32 s4, s4, s30
              s_add_u32 s4, s4, {WO_BASE}
              s_lshl_b32 s5, s3, 15""")
        for jj in range(4):
            a(f"""s_add_u32 m0, s4, {jj*1024}
                  s_add_u32 s6, s5, {jj*8192}
                  buffer_load_dwordx4 v19, s[{SWOD}:{SWOD+3}], s6 offen lds""")
    a(f"""s_lshl_b32 s3, s{sLW}, 2
          s_add_u32 s3, s3, {KVF}
          v_mov_b32 v6, s3
          v_mov_b32 v7, 0
          ds_write_b32 v6, v7""")
    a(f"""s_and_b32 s3, s{sLW}, 1
          s_lshl_b32 s3, s3, 13
          s_add_u32 s3, s3, {MST}
          v_add_u32 v44, s3, v1""")
    for js in range(8): a(f"ds_read_b128 {vr(MF+4*js,4)}, v44 offset:{js*1024}")
    a("v_mov_b32 v7, 1\ns_waitcnt lgkmcnt(0)")
    a(f"s_waitcnt vmcnt({4*KV1-4})")
    stamp(a, 11)
    a("s_barrier")
    stamp(a, 12)
    for g in range(KV1, 4): kv_grp(g)
    a(f"""s_waitcnt vmcnt(8)
          s_barrier
          buffer_load_dwordx2 v[4:5], v21, s[{SWS}:{SWS+3}], 0 offen sc1""")
    if MODE == "auto":
        a(f"""s_mov_b64 exec, 0xffff
              buffer_load_dword v27, v24, s[{SWS}:{SWS+3}], 0 offen
              buffer_load_dword v26, v25, s[{SWS}:{SWS+3}], 0 offen sc1
              s_mov_b64 exec, -1""")
    a(f"""s_waitcnt vmcnt({NT + 4})
          ds_write_b32 v6, v7
          v_mov_b32 v7, 2""")
    wo_grp(0)
    a(f"""s_waitcnt vmcnt({NT + 4})
          ds_write_b32 v6, v7""")
    stamp(a, 21)
    for g in range(1, 4): wo_grp(g)
    a(f"""s_cmp_ge_u32 s{sLW}, 2
          s_cbranch_scc1 L_nou
          s_waitcnt vmcnt(16)
          v_cmp_ne_u32 vcc, s{sNON}, v4
          v_cmp_ne_u32 s[10:11], s{sNON}, v5
          s_or_b64 vcc, vcc, s[10:11]
          s_cbranch_vccz L_uok""")
    poll2(a, 21, 4)
    a.label("L_uok")
    stamp(a, 26)
    for js in range(8):
        for b in range(2):
            a(f"""s_mov_b32 s4, {(2*js + b)*U_GP}
                  buffer_load_dwordx2 {vr(UF+4*js+2*b,2)}, v22, s[{SWS}:{SWS+3}], s4 offen {LD}""")
    a(f"""v_lshrrev_b32 v3, 5, v0
          v_lshlrev_b32 v10, 11, v20
          v_lshl_add_u32 v10, v3, 4, v10
          s_lshl_b32 s4, s{sC0}, 1
          v_add_u32 v10, s4, v10""")
    stamp(a, 27)
    a("s_waitcnt vmcnt(16)\ns_branch L_nou2")
    a.label("L_nou")
    a("s_waitcnt vmcnt(0)")
    a.label("L_nou2")
    def a2_half(k, L):
        a(f"""s_cmp_ge_u32 s{sLW}, 2
              s_cbranch_scc1 {L}""")
        if k:
            a("s_mov_b32 s3, 0x80008000")
            for t in range(16): a(f"v_xor_b32 v{MF+2*t+1}, s3, v{MF+2*t+1}")
            for t in range(8): a(f"v_cvt_pk_bf16_f32 v{44+t}, v{A2+2*t}, v{A2+2*t+1}")
        for js in range(8):
            a(f"{MFMA} {vr(A2+16*k,16)}, {vr(UF+4*js,4)}, {vr(MF+4*js,4)}, {'0' if js == 0 else vr(A2+16*k,16)}")
        a.label(L)
    a("s_barrier")
    stamp(a, 14)
    def o_fetch():
        a(f"""s_lshl_b32 s4, s8, 13
              s_add_u32 s4, s4, s30
              s_lshl_b32 s5, s8, 18
              s_add_u32 s5, s5, s13""")
        for j in range(4):
            a(f"""s_add_u32 m0, s4, {j*2048}
                  s_add_u32 s7, s5, {j*65536}
                  buffer_load_dwordx4 v1, s[{SWS}:{SWS+3}], s7 offen {LD} lds
                  buffer_load_dwordx4 v1, s[{SWS}:{SWS+3}], s7 offen offset:1024 {LD} lds""")
    a(f"""s_mov_b32 s60, 0
          s_mov_b32 s8, 0
          s_mov_b32 s9, 1
          s_mov_b64 exec, 0xffff
          buffer_load_dword v5, v25, s[{SWS}:{SWS+3}], 0 offen sc1
          s_mov_b64 exec, -1
          s_waitcnt vmcnt(1)""")
    a2_half(0, "L_h0")
    a("s_mov_b64 exec, 0xffff\ns_branch L_opw")
    a.label("L_opl")
    a(f"""buffer_load_dword v5, v25, s[{SWS}:{SWS+3}], 0 offen sc1
          s_add_u32 s60, s60, 1
          s_cmp_gt_u32 s60, {SPIN_MAX}
          s_cbranch_scc1 L_opx""")
    a.label("L_opw")
    a(f"""s_waitcnt vmcnt(0)
          v_cmp_ne_u32 vcc, s{sNON}, v5
          s_and_b32 s4, vcc_lo, 0xff
          s_and_b32 s9, vcc_lo, 0xff00
          s_cmp_lg_u32 s4, 0
          s_cbranch_scc1 L_opl""")
    a.label("L_opx")
    a("s_mov_b64 exec, -1")
    o_fetch()
    a(f"""s_mov_b32 s8, 1
          s_cmp_lg_u32 s9, 0
          s_cbranch_scc1 L_op2""")
    o_fetch()
    a2_half(1, "L_h1a")
    a("""s_waitcnt vmcnt(8)
         s_barrier
         s_branch L_op3""")
    a.label("L_op2")
    a(f"""s_lshl_b32 s3, s8, 3
          s_lshl_b32 s10, 0xff, s3
          s_mov_b32 s11, 0""")
    a2_half(1, "L_h1b")
    a("s_waitcnt vmcnt(0)\ns_barrier")
    poll(a, 25, 5, "s[10:11]")
    o_fetch()
    a.label("L_op3")
    stamp(a, 15)
    a("s_waitcnt vmcnt(0)\ns_barrier")
    a(f"""s_cmp_ge_u32 s{sLW}, 2
          s_cbranch_scc1 L_h2
          s_mov_b32 s3, {1024*2048}""")
    for mm in range(2):
        a(f"buffer_store_dwordx4 {vr(44+4*mm,4)}, v10, s[{SOUT}:{SOUT+3}], 0 offen offset:{32*mm} {A2F}")
    a("s_nop 7")
    for t in range(8): a(f"v_cvt_pk_bf16_f32 v{52+t}, v{A2+16+2*t}, v{A2+16+2*t+1}")
    for mm in range(2):
        a(f"buffer_store_dwordx4 {vr(52+4*mm,4)}, v10, s[{SOUT}:{SOUT+3}], s3 offen offset:{32*mm} {A2F}")
    a.label("L_h2")
    stamp(a, 13)
    stamp_flush(a, 18)
    a("s_endpgm")

    a.label("L_consumer")
    if "--nocpf" not in sys.argv:
        a(f"""s_cmp_lg_u32 s{sW}, 7
              s_cbranch_scc1 L_cpf1
              s_getpc_b64 s[4:5]""")
        a.label("L_cpf0")
        a(f"""s_sub_u32 s4, s4, L_cpf0-{KN}
              s_subb_u32 s5, s5, 0
              s_lshl_b32 s3, s{sJ}, 3
              v_add_u32 v1, s3, v0
              v_lshlrev_b32 v1, 7, v1
              v_cmp_gt_u32 vcc, L_last_insn-{KN}, v1
              s_and_b64 exec, vcc, 0xff
              s_cbranch_execz L_cpf2
              v_mov_b32 v3, s5
              v_add_co_u32 v2, vcc, s4, v1
              s_nop 1
              v_addc_co_u32 v3, vcc, 0, v3, vcc
              global_load_dword v166, v[2:3], off""")
        a.label("L_cpf2")
        a("s_mov_b64 exec, -1")
        a.label("L_cpf1")
    sIT, sDEL, sSL = 25, 26, 30
    sMASK = 28
    XA, WA = 8, 12
    ACC = 64
    a(f"""v_and_b32 v1, 31, v0
          v_lshrrev_b32 v2, 5, v0
          v_bfe_u32 v3, v0, 1, 3
          v_xor_b32 v3, v3, v2
          v_lshlrev_b32 v4, 7, v1
          s_or_b32 s3, s2, s{sW}
          s_cmp_lg_u32 s3, 4
          s_waitcnt lgkmcnt(0)""")
    srd(a, 56, kDBG, 256)
    a(f"""s_cbranch_scc1 L_nonpub
          s_cmp_lg_u32 s2, 0
          s_cbranch_scc1 L_nonpub
          s_memrealtime s[4:5]
          s_waitcnt lgkmcnt(0)
          s_or_b32 s4, s4, 1
          v_mov_b32 v5, s4
          s_mov_b64 exec, 1
          buffer_store_dword v5, off, s[56:59], 0 sc0 sc1
          s_mov_b64 exec, -1""")
    a.label("L_nonpub")
    srd(a, SWS, kWS, 0x1000000)
    if MODE == "auto":
        a(f"""s_cmp_lg_u32 s{sW}, 6
              s_cbranch_scc1 L_ptt
              s_lshl_b32 s3, s{sX}, 7
              s_add_u32 s3, s3, {WS_PT}
              buffer_load_dword v166, off, s[{SWS}:{SWS+3}], s3""")
        a.label("L_ptt")
    srd(a, SOUT, kOUT, 0x400000)
    if "--tlb" in sys.argv:
        srd(a, 44, kWO, 0x80000)
        a(f"""s_cmp_lg_u32 s{sW}, 5
              s_cbranch_scc1 L_tlb
              v_lshlrev_b32 v5, 20, v0
              s_lshl_b32 s3, s2, 7
              s_add_u32 s3, s3, 0x80000
              v_add_u32 v5, s3, v5
              s_mov_b64 exec, 0xffc
              buffer_load_dword v166, v5, s[{SWS}:{SWS+3}], 0 offen sc1
              s_mov_b64 exec, 15
              buffer_load_dword v166, v5, s[{SOUT}:{SOUT+3}], 0 offen
              s_mov_b64 exec, 1
              s_lshl_b32 s3, s2, 7
              buffer_load_dword v166, off, s[44:47], s3
              s_mov_b64 exec, -1""")
        a.label("L_tlb")
    for r in range(16):
        lo, hi = diag_mask(r)
        a(f"s_mov_b32 s{64+2*r}, {lo:#x}\ns_mov_b32 s{65+2*r}, {hi:#x}")
    for kk in range(4):
        a(f"""v_xor_b32 v5, {2*kk}, v3
              v_lshl_add_u32 v{XA+kk}, v5, 4, v4""")
    a(f"""s_getreg_b32 s{sPTV}, hwreg(HW_REG_XCC_ID, 0, 16)
          s_lshl_b32 s{sPTV}, s{sPTV}, 8
          v_bfe_u32 v3, v0, 2, 2
          v_lshl_add_u32 v7, v2, 3, v3             ; 8h + r
          v_lshlrev_b32 v4, 7, v7
          v_bfe_u32 v5, v0, 4, 1
          v_lshlrev_b32 v5, 1, v5
          v_bfe_u32 v6, v0, 1, 1
          v_add_u32 v5, v5, v6
          s_and_b32 s3, s{sW}, 2
          s_lshl_b32 s3, s3, 1
          v_add_u32 v5, s3, v5
          v_bfe_u32 v6, v0, 3, 1
          v_lshlrev_b32 v6, 2, v6
          v_xor_b32 v5, v5, v6
          v_lshl_add_u32 v4, v5, 4, v4
          v_and_b32 v6, 1, v0
          v_lshl_add_u32 v4, v6, 3, v4
          s_cmp_lt_u32 s{sW}, 4
          s_cbranch_scc1 L_kv""")
    sEH, sCA = 24, 25
    XF, AA, AB, WG, TM = 20, 36, 52, 100, 68
    XCH = WR + (7 % NS)*WSL + 16384
    DL, PH, SG, UA, NV, EI, XC = 12, 13, 14, 15, 3, 7, 164
    a(f"""s_and_b32 s3, s{sW}, 2
          s_lshl_b32 s3, s3, 11
          s_add_u32 s3, s3, {WR+16384}""")
    for kk in range(4): a(f"v_add_u32 v{XA+kk}, s3, v{XA+kk}")
    a(f"""s_and_b32 s{sEH}, s{sW}, 1
          s_lshr_b32 s3, s{sJ}, 2                  ; eb
          s_and_b32 s{sCA}, s3, {opt('--amask', 6)}
          s_lshl_b32 s3, s3, 1
          s_add_u32 s6, s3, s{sEH}
          s_lshl_b32 s3, s6, 4
          v_and_b32 v5, 15, v0
          v_add_u32 v{EI}, s3, v5                  ; e
          v_bfe_u32 v6, v0, 4, 1
          v_cvt_f32_u32 v{PH}, v6
          v_mul_f32 v{PH}, 0x3e800000, v{PH}
          s_cmp_eq_u32 s6, 0
          s_cselect_b32 s{sMASK}, 0x10000, 0
          s_mov_b32 s{sMASK+1}, s{sMASK}
          v_mov_b32 v6, 256
          v_cndmask_b32 v{EI}, v{EI}, v6, s[{sMASK}:{sMASK+1}]
          v_cndmask_b32 v{PH}, v{PH}, 0, s[{sMASK}:{sMASK+1}]
          v_cvt_f32_u32 v{DL}, v{EI}
          v_mul_f32 v{DL}, 0x3b000000, v{DL}       ; e/512
          v_and_b32 v6, 1, v0
          v_lshlrev_b32 v6, 31, v6
          v_or_b32 v{SG}, 1.0, v6
          s_mov_b32 s3, s{sTB}                     ; pi
          s_lshr_b32 s4, s6, 1
          s_lshl_b32 s4, s4, 5
          s_add_u32 s4, s4, s3
          s_lshl_b32 s4, s4, 1
          s_add_u32 s4, s4, s{sEH}
          s_lshl_b32 s26, s4, 2
          s_mul_i32 s3, s3, {U_GP}
          s_lshl_b32 s4, s6, 8
          s_add_u32 s3, s3, s4
          s_add_u32 s3, s3, {WS_U}
          v_lshl_add_u32 v5, v5, 4, s3
          v_lshrrev_b32 v6, 4, v0
          s_movk_i32 s4, {U_ROW}
          v_mad_u32_u24 v{UA}, v6, s4, v5
          s_lshl_b32 s3, s{sEH}, 11
          s_add_u32 s3, s3, {XCH}
          v_lshl_add_u32 v{XC}, v0, 4, s3""")
    def genw(c):
        o = [f"""s_add_u32 s3, s{sCA}, {c}
              s_and_b32 s3, s3, 7
              s_lshl_b32 s3, s3, 6
              v_lshl_add_u32 v{TM}, v2, 3, s3
              v_cvt_f32_u32 v{TM}, v{TM}
              v_mul_f32 v{TM}, v{TM}, v{DL}
              v_fract_f32 v{TM}, v{TM}
              v_add_f32 v{TM}, v{TM}, v{PH}"""]
        for kk in range(4):
            t = []
            for j in range(1, 8): t.append(f"v_add_f32 v{TM+j}, v{TM+j-1}, v{DL}")
            for j in range(8): t.append(f"v_cos_f32 v{TM+8+j}, v{TM+j}")
            t.append(f"v_fmamk_f32 v{TM}, v{DL}, 0x41100000, v{TM+7}")
            for j in range(4): t.append(f"v_cvt_pk_bf16_f32 v{WG+16*c+4*kk+j}, v{TM+8+2*j}, v{TM+9+2*j}")
            o.append("\n".join(t))
        return o
    CR, CI, NCI = 68+16, 68+24, WG
    NQ = [4, 16]
    def genc(m, T):
        t = []
        for j in range(8):
            cj = 16*m + (j % 4) + 8*(j // 4)
            t.append(f"""v_mad_u32_u24 v{T+j}, v1, {cj}, v{PH}
                  v_and_b32 v{T+j}, 31, v{T+j}
                  v_cvt_f32_u32 v{T+j}, v{T+j}
                  v_mul_f32 v{T+j}, 0x3d000000, v{T+j}""")
        u = [f"v_cos_f32 v{T+8+j}, v{T+j}" for j in range(8)] + [f"v_sin_f32 v{T+j}, v{T+j}" for j in range(8)] + ["s_nop 0"]
        for j in range(4):
            u.append(f"""v_cvt_pk_bf16_f32 v{CR+4*m+j}, v{T+8+2*j}, v{T+9+2*j}
                  v_cvt_pk_bf16_f32 v{CI+4*m+j}, -v{T+2*j}, -v{T+1+2*j}
                  v_cvt_pk_bf16_f32 v{NQ[m]+j}, v{T+2*j}, v{T+1+2*j}""")
        return ["\n".join(t[:4]), "\n".join(t[4:]), "\n".join(u[:17]), "\n".join(u[17:])]
    def genm(js):
        T, d = TM, 84 + 4*js
        return f"""v_add_f32 v{T}, v18, v17
              v_add_f32 v{T+1}, v{T}, v17
              v_add_f32 v{T+2}, v{T+1}, v17
              v_cos_f32 v{T+4}, v18
              v_cos_f32 v{T+5}, v{T}
              v_cos_f32 v{T+6}, v{T+1}
              v_cos_f32 v{T+7}, v{T+2}
              v_sin_f32 v{T+8}, v18
              v_sin_f32 v{T+9}, v{T}
              v_sin_f32 v{T+10}, v{T+1}
              v_sin_f32 v{T+11}, v{T+2}
              v_add_f32 v18, v{T+2}, v17
              v_cvt_pk_bf16_f32 v{d}, v{T+4}, v{T+8}
              v_cvt_pk_bf16_f32 v{d+1}, v{T+5}, v{T+9}
              v_cvt_pk_bf16_f32 v{d+2}, v{T+6}, v{T+10}
              v_cvt_pk_bf16_f32 v{d+3}, v{T+7}, v{T+11}"""
    mpar = f"""; A2 task: tc = 2x + (j&1), cr16 = j>>1, sigma = w&1, nt = (w>>1)&1
          s_lshl_b32 s6, s{sX}, 1
          s_and_b32 s4, s{sJ}, 1
          s_add_u32 s6, s6, s4                    ; tc
          s_lshr_b32 s7, s{sJ}, 1                 ; cr16
          s_lshl_b32 s10, s7, 5
          s_lshr_b32 s4, s6, 2
          s_lshl_b32 s4, s4, 3
          s_and_b32 s5, s6, 3
          s_add_u32 s4, s4, s5
          s_and_b32 s5, s{sW}, 1
          s_lshl_b32 s5, s5, 2
          s_add_u32 s5, s4, s5                    ; t1 source
          s_sub_u32 s4, 32, s5
          s_and_b32 s4, s4, 31
          s_cmp_lt_u32 s2, 128
          s_cselect_b32 s11, s5, s4
          s_cselect_b64 vcc, -1, 0
          v_and_b32 v{TM+1}, 31, v0
          v_lshl_add_u32 v{TM}, v{TM+1}, 5, s11
          v_lshrrev_b32 v{TM+3}, 5, v0                 ; h
          v_sub_u32 v{TM+2}, 2048, v{TM}
          v_cndmask_b32 v{TM+2}, v{TM+2}, v{TM}, vcc
          v_cvt_f32_u32 v{TM+2}, v{TM+2}
          v_mul_f32 v17, 0x3a000000, v{TM+2}
          v_lshlrev_b32 v{TM+2}, 5, v{TM+3}
          v_cvt_f32_u32 v{TM+2}, v{TM+2}
          v_mul_f32 v18, v17, v{TM+2}"""
    def either(p0, p1):
        if not p0 and not p1: return ""
        uid[0] += 1
        L = f"e{uid[0]}"
        return f"s_cmp_ge_u32 s{sW}, 6\ns_cbranch_scc1 {L}a\n{p0}\ns_branch {L}b\n{L}a:\n{p1}\n{L}b:"
    for c in range(2):
        for x in genw(c): a(x)
    a("s_barrier")
    def rda(g): return f"ds_read_b128 {vr(XF+4*(g % 4),4)}, v{XA+g % 4}" if g < 32 else ""
    a(rda(0)); a(rda(1))
    for st in range(8):
        fill = {0: genw(2), 1: genw(3), 2: genc(0, TM), 3: genc(1, TM)}.get(st, [])
        if st in (0, 1): fill = [fill[0] + "\n" + fill[1]] + fill[2:]
        if st == 1: fill[3] += f"\nv_lshlrev_b32 v{PH}, 2, v2\nv_mul_u32_u24 v{PH}, v{PH}, v1"
        if st == 2: fill = [either(fill[0], mpar), either(fill[1], genm(0)), either(fill[2], genm(1)), either(fill[3], "")]
        if st == 3: fill = [either(fill[0], genm(2)), either(fill[1], genm(3)), either(fill[2], ""), either(fill[3], "")]
        acc = AA if st < 4 else AB
        for kk in range(4):
            g = 4*st + kk
            mm_ = f"{MFMA} {vr(acc,16)}, {vr(XF+4*(g % 4),4)}, {vr(WG+16*(st%4)+4*kk,4)}, {'0' if (st % 4 == 0 and kk == 0) else vr(acc,16)}"
            if kk < 3:
                a("s_waitcnt lgkmcnt(1)")
                a(mm_)
                if kk < 2: a(rda(g+2))
                if fill: a(fill[kk])
            if kk == 2:
                if st < 7:
                    d = WSL if (st+1) % NS else -(NS-1)*WSL
                    a(f"s_mov_b32 s3, {d}")
                    for r in range(4): a(f"v_add_u32 v{XA+r}, s3, v{XA+r}")
                    a("s_waitcnt lgkmcnt(0)\ns_barrier")
                    a(rda(g+2))
                else:
                    a("s_waitcnt lgkmcnt(0)")
            if kk == 3:
                a(mm_); a(rda(g+2))
                if fill: a(fill[3])
    stamp(a, 7)
    PK, SV, RE, IM, D1, D2 = XF, WG+24, WG+32, WG+48, AA, AB
    a("s_nop 11")
    for r in range(16): a(f"v_fma_f32 v{AA+r}, v{AB+r}, v{SG}, v{AA+r}")
    for t in range(8): a(f"v_cvt_pk_bf16_f32 v{PK+t}, v{AA+2*t}, v{AA+2*t+1}")
    a(f"""s_barrier
          s_cmp_lt_u32 s{sW}, 6
          s_cbranch_scc1 L_a1e
          ds_write_b128 v{XC}, {vr(PK,4)}
          ds_write_b128 v{XC}, {vr(PK+4,4)} offset:1024
          v_mov_b32 v{TM}, 0
          v_mov_b32 v{TM+1}, 0
          v_mov_b32 v{TM+2}, 0
          v_mov_b32 v{TM+3}, 0
          v_mov_b32 v{TM+4}, {OWNF}
          ds_write_b128 v{TM+4}, {vr(TM,4)}
          s_waitcnt lgkmcnt(0)
          s_barrier""")
    a(f"""s_and_b32 s3, s{sW}, 1
          s_lshl_b32 s3, s3, 13
          s_add_u32 s3, s3, {MST}
          v_lshl_add_u32 v42, v0, 4, s3""")
    for js in range(4): a(f"ds_write_b128 v42, {vr(84+4*js,4)} offset:{js*1024}")
    for js in range(4, 8):
        a(genm(js))
        a(f"ds_write_b128 v42, {vr(84+4*js,4)} offset:{js*1024}")
    a("""s_barrier
         s_waitcnt lgkmcnt(0)
         s_barrier
         s_barrier
         s_branch L_att""")
    a.label("L_a1e")
    a(f"""s_barrier
          ds_read_b128 {vr(PK+8,4)}, v{XC}
          ds_read_b128 {vr(PK+12,4)}, v{XC} offset:1024
          s_waitcnt lgkmcnt(0)""")
    for t in range(8): a(f"v_permlane16_swap_b32 v{PK+t}, v{PK+8+t}")
    a(f"""s_mov_b32 s6, 0x00010001
          s_mov_b32 s7, 0x00010001
          s_cmp_eq_u32 s{sMASK}, 0
          s_cbranch_scc1 L_nosp1""")
    for t in range(8):
        a(f"v_mov_b32 v{SV+t}, v{PK+8+t}")
        a(f"v_cndmask_b32 v{PK+8+t}, v{PK+8+t}, 0, s[6:7]")
    a.label("L_nosp1")
    a("s_nop 1")
    def step1(aa, bb):
        a(f"{MFMA} {vr(RE,16)}, {vr(CR,4)}, {vr(aa,4)}, 0")
        a(f"{MFMA} {vr(IM,16)}, {vr(CI,4)}, {vr(aa,4)}, 0")
        a(f"{MFMA} {vr(RE,16)}, {vr(CR+4,4)}, {vr(aa+4,4)}, {vr(RE,16)}")
        a(f"{MFMA} {vr(IM,16)}, {vr(CI+4,4)}, {vr(aa+4,4)}, {vr(IM,16)}")
        if bb is not None:
            for m in range(2):
                a(f"{MFMA} {vr(RE,16)}, {vr(NQ[m],4)}, {vr(bb+4*m,4)}, {vr(RE,16)}")
                a(f"{MFMA} {vr(IM,16)}, {vr(CR+4*m,4)}, {vr(bb+4*m,4)}, {vr(IM,16)}")
    def upack(D):
        for r in range(16): a(f"v_cvt_pk_bf16_f32 v{D+r}, v{RE+r}, v{IM+r}")
        for g in range(4):
            d = D + 4*g
            a(f"""v_permlane32_swap_b32 v{d}, v{d+2}
                  v_permlane32_swap_b32 v{d+1}, v{d+3}""")
        for g in range(4):
            d = D + 4*g
            a(f"""v_permlane16_swap_b32 v{d}, v{d+1}
                  v_permlane16_swap_b32 v{d+2}, v{d+3}""")
    def ust(D, off):
        for g in range(4):
            a(f"""s_mov_b32 s4, {4*g*U_ROW + off}
                  buffer_store_dwordx4 {vr(D+4*g,4)}, v{UA}, s[{SWS}:{SWS+3}], s4 offen {ST}""")
    step1(PK, PK+8)
    a("s_nop 11" if UE else "s_barrier\ns_nop 10")
    upack(D1)
    a(f"""s_cmp_eq_u32 s{sMASK}, 0
          s_cbranch_scc1 L_nosp2""")
    step1(SV, None)
    a("s_nop 11")
    upack(D2)
    a.label("L_nosp2")
    stamp(a, 8)
    ust(D1, 0)
    a(f"""s_cmp_eq_u32 s{sMASK}, 0
          s_cbranch_scc1 L_nosp3
          s_mov_b64 exec, s[6:7]""")
    ust(D2, 4096)
    a("s_mov_b64 exec, -1")
    a.label("L_nosp3")
    get_tag(NV)
    a(f"""s_barrier
          s_barrier
          {"s_barrier" if UE else ""}
          s_add_u32 s3, s26, {WS_F3}""")
    publish(a, 3, 6)
    a("s_branch L_att")

    a.label("L_kv")
    FR = 32
    FK = 96
    def X(b, i): return FK + 12*b + 4*i
    def W(b): return FK + 12*b + 8
    a(f"""s_and_b32 s3, s{sW}, 1
          s_lshl_b32 s3, s3, 13
          s_add_u32 s3, s3, {WR}
          v_add_u32 v{WA}, s3, v4""")
    for r in range(32): a(f"v_mov_b32 v{ACC+r}, 0")
    a(f"""s_lshl_b32 s3, s2, 5
          s_add_u32 s3, s3, s{sW}
          s_lshl_b32 s3, s3, 2
          s_add_u32 s31, s3, {WS_F1}
          s_lshl_b32 s3, s{sHG}, 2
          s_and_b32 s4, s{sW}, 2
          s_add_u32 s3, s3, s4
          s_lshl_b32 s3, s3, 16
          s_lshl_b32 s4, s{sTB}, 11
          s_add_u32 s3, s3, s4
          s_add_u32 s3, s3, {WS_K}
          v_lshl_add_u32 v14, v0, 4, s3
          s_add_u32 s3, s3, {WS_V - WS_K}
          v_bfe_u32 v5, v0, 4, 1
          v_lshlrev_b32 v5, 16, v5
          v_lshl_add_u32 v5, v2, 8, v5
          v_and_b32 v6, 15, v0
          v_lshl_add_u32 v5, v6, 4, v5
          v_add_u32 v16, s3, v5
          v_mov_b32 v21, v4
          s_and_b32 s4, s{sW}, 2
          s_mul_i32 s3, s4, {HSTR}
          s_add_u32 s3, s3, 8192
          v_lshl_add_u32 v17, v0, 4, s3
          s_add_u32 s3, s3, 10240
          v_bfe_u32 v5, v0, 4, 1
          v_mul_u32_u24 v5, {HSTR}, v5
          v_lshl_add_u32 v5, v2, 8, v5
          v_lshl_add_u32 v5, v6, 4, v5
          v_add_u32 v18, s3, v5
          s_and_b32 s3, s{sW}, 1
          s_lshl_b32 s3, s3, 12
          s_lshl_b32 s4, s4, 10
          s_add_u32 s3, s3, s4
          s_add_u32 s3, s3, {Q_BASE}
          v_lshl_add_u32 v20, v0, 4, s3
          s_mov_b32 s8, {f2u(QSCALE):#x}
          s_mov_b32 s9, s8""")
    def rd(kk, b):
        return [f"ds_read_b128 {vr(X(b,i),4)}, v{XA+kk} offset:{i*4096}" for i in range(2)] + [f"ds_read_b64_tr_b16 {vr(W(b)+2*q,2)}, v{WA} offset:{kk*2048 + q*512}" for q in range(2)]
    def step(b, variant, r):
        m = []
        for i in range(2):
            A_, B_ = (W(b), X(b,i)) if variant == "K" else (X(b,i), W(b))
            m.append(f"{MFMA} {vr(ACC+16*i,16)}, {vr(A_,4)}, {vr(B_,4)}, {vr(ACC+16*i,16)}")
        for x in [m[0]] + r[:2] + [m[1]] + r[2:]: a(x)
    a(f"""s_mov_b32 s{sIT}, 0
          s_mov_b32 s{sSL}, 0
          s_mov_b32 s27, {WSL}""")
    stamp(a, 1)
    a("s_barrier")
    stamp(a, 2)
    for x in rd(0, 0) + rd(1, 1): a(x)
    a(f"""s_bitcmp1_b32 s{sW}, 0
          s_cbranch_scc1 L_loopV""")
    for variant in ("K", "V"):
        if ALIGN: a.L.append(".p2align 6")
        a.label(f"L_loop{variant}")
        for kk in range(3):
            a("s_waitcnt lgkmcnt(4)")
            step(kk, variant, rd(kk+2, kk+2) if kk < 2 else [])
        a(f"""s_add_u32 s{sSL}, s{sSL}, 1
              s_cmp_eq_u32 s{sSL}, {NS}
              s_cselect_b32 s{sDEL}, {-(NS-1)*WSL}, s27
              s_cselect_b32 s{sSL}, 0, s{sSL}
              v_add_u32 v{WA}, s{sDEL}, v{WA}""")
        for r in range(4): a(f"v_add_u32 v{XA+r}, 8192, v{XA+r}")
        a(f"""s_add_u32 s{sIT}, s{sIT}, 1
              s_cmp_eq_u32 s{sIT}, 8
              s_waitcnt lgkmcnt(0)
              s_cbranch_scc1 L_last{variant}
              s_barrier""")
        for x in rd(0, 0): a(x)
        step(3, variant, rd(1, 1))
        a(f"s_branch L_loop{variant}")
        a.label(f"L_last{variant}")
        step(3, variant, [])
        stamp(a, 3)
        a("s_mov_b32 s4, 65536\ns_nop 9")
        for i in range(2):
            for mm in range(2):
                d = FR + 8*i + 4*mm
                for t in range(4): a(f"v_cvt_pk_bf16_f32 v{d+t}, v{ACC+16*i+8*mm+2*t}, v{ACC+16*i+8*mm+2*t+1}")
                if variant == "K":
                    a(f"buffer_store_dwordx4 {vr(d,4)}, v14, s[{SWS}:{SWS+3}], {'s4' if mm else '0'} offen offset:{i*1024} {ST}")
                else:
                    a(f"buffer_store_dwordx4 {vr(d,4)}, v16, s[{SWS}:{SWS+3}], 0 offen offset:{i*1024+mm*512} {ST}")
        if variant == "K": a("s_branch L_kvdone")
    a.label("L_kvdone")
    stamp(a, 4)
    FQ = 96
    a(f"""s_and_b32 s3, s{sW}, 1
          s_lshl_b32 s3, s3, 12
          s_sub_u32 s3, s3, 65536
          v_add_u32 v{WA}, {QSLOT[0]}, v21""")
    for kk in range(4): a(f"v_add_u32 v{XA+kk}, s3, v{XA+kk}")
    a(f"""v_mov_b32 v19, {NONW}
          s_barrier
          ds_read_b32 v19, v19""")
    if PUBU < 0:
        a(f"s_waitcnt lgkmcnt(0)\nv_readfirstlane_b32 s{sNON}, v19\ns_nop 1")
        publish(a, 31, 6)
        stamp(a, 5)
    def rdq(u, k, b):
        c2, kk = k // 4, k % 4
        f = FQ + 8*b
        return [f"ds_read_b128 {vr(f,4)}, v{XA+kk} offset:{(2*u+c2)*8192}"] + [f"ds_read_b64_tr_b16 {vr(f+4+2*q,2)}, v{WA} offset:{c2*8192 + kk*2048 + q*512}" for q in range(2)]
    NBQ = 4
    for k in range(3):
        for x in rdq(0, k, k): a(x)
    for u in range(4):
        for k in range(8):
            g = 8*u + k
            last = k >= 5
            if k == 5 and u < 3:
                d = QSLOT[u+1] - QSLOT[u]
                if u == PUBU:
                    a(f"v_readfirstlane_b32 s{sNON}, v19\ns_nop 1")
                    publish(a, 31, 6)
                    stamp(a, 5)
                a(f"""s_waitcnt lgkmcnt(0)
                      s_barrier
                      v_add_u32 v{WA}, {d}, v{WA}""")
            nxt = rdq(u, k+3, (g+3) % NBQ) if k < 5 else (rdq(u+1, k-5, (g+3) % NBQ) if u < 3 else [])
            if not (k >= 5 and u < 3) or k > 5 or True:
                outst = 6 if (k < 5 or u < 3) else 3*(7-k)
                if not (k == 5 and u < 3) and not (k in (6, 7) and u < 3): a(f"s_waitcnt lgkmcnt({outst})")
            f = FQ + 8*(g % NBQ)
            a(f"{MFMA} {vr(ACC,16)}, {vr(f+4,4)}, {vr(f,4)}, {'0' if g == 0 else vr(ACC,16)}")
            for x in nxt: a(x)
    a("s_barrier")
    stamp(a, 6)
    a(f"""s_bitcmp1_b32 s{sW}, 0
          s_cbranch_scc1 L_cpv""")
    for i in range(2):
        for mm in range(2): a(f"ds_write_b128 v17, {vr(FR+8*i+4*mm,4)} offset:{mm*HSTR + i*1024}")
    a("s_branch L_cpq")
    a.label("L_cpv")
    for i in range(2):
        for mm in range(2): a(f"ds_write_b128 v18, {vr(FR+8*i+4*mm,4)} offset:{i*1024 + mm*512}")
    a.label("L_cpq")
    a("s_nop 5")
    for t in range(8): a(f"v_pk_mul_f32 {vr(ACC+2*t,2)}, {vr(ACC+2*t,2)}, s[8:9]")
    for t in range(8): a(f"v_cvt_pk_bf16_f32 v{FQ+t}, v{ACC+2*t}, v{ACC+2*t+1}")
    a(f"""ds_write_b128 v20, {vr(FQ,4)}
          ds_write_b128 v20, {vr(FQ+4,4)} offset:1024
          s_lshl_b32 s3, s{sW}, 2
          s_add_u32 s3, s3, {OWNF}
          v_mov_b32 v5, s3
          v_mov_b32 v6, 1
          s_waitcnt lgkmcnt(0)
          ds_write_b32 v5, v6""")

    a.label("L_att")
    QF = 4
    KA, VA_, NINF, MX = 2, 3, 8, 9
    KF, VF, PP, S, O, CN, CD, CF = 12, 24, 40, 48, 80, 96, 112, 128
    S3, P2, MK = 112, 128, 136
    sVM, sNF, sI = 8, 10, 11
    get_tag(5)
    a(f"""s_xor_b32 s{sPTV}, s{sPTV}, s{sNON}
          s_and_b32 s3, s{sW}, 3
          s_lshr_b32 s5, s{sW}, 2
          s_lshl_b32 s4, s{sHG}, 2
          s_add_u32 s{sHD}, s4, s3
          s_lshl_b32 s4, s{sTB}, 1
          s_add_u32 s4, s4, s5                     ; qb
          s_lshl_b32 s{sQO}, s4, 10
          s_lshl_b32 s6, s{sHD}, 16
          s_add_u32 s{sQO}, s{sQO}, s6
          s_min_u32 s{sNF}, s4, 7
          s_lshl_b32 s4, s4, 5
          s_add_u32 s4, s4, s{sHD}
          s_lshl_b32 s4, s4, 2
          s_add_u32 s{sF2}, s4, {WS_F2}
          v_lshlrev_b32 v1, 4, v0
          s_lshl_b32 s4, s{sW}, 10
          s_add_u32 s4, s4, {Q_BASE}
          v_add_u32 v4, s4, v1
          s_lshl_b32 s4, s3, 2
          s_add_u32 s4, s4, {KVF}
          v_mov_b32 v149, s4
          s_mul_i32 s4, s3, {HSTR}
          s_lshl_b32 s5, s5, 10
          s_add_u32 s4, s4, s5
          v_add_u32 v{KA}, s4, v1
          v_lshrrev_b32 v10, 5, v0
          v_and_b32 v11, 15, v0
          v_lshlrev_b32 v11, 4, v11
          v_lshl_add_u32 v11, v10, 8, v11
          s_add_u32 s4, s4, 10240
          v_add_u32 v{VA_}, s4, v11
          v_mov_b32 v{NINF}, 0xff800000
          s_mov_b32 s{sVM}, 0x0000ffff
          s_mov_b32 s{sVM+1}, 0x0000ffff
          s_mov_b32 s6, 0x00110000
          s_mov_b32 s7, 0x00110000
          v_mov_b32 v10, 0x3f803f80""")
    for t in range(16): a(f"v_cndmask_b32 v{VF+t}, 0, v10, s[6:7]")
    a("v_mov_b32 v10, 0xffff\nv_mov_b32 v11, 0xffff0000")
    for t in range(8):
        a(f"""v_cndmask_b32 v{MK+t}, 0, v10, s[{64+4*t}:{65+4*t}]
              v_cndmask_b32 v5, 0, v11, s[{66+4*t}:{67+4*t}]
              v_or_b32 v{MK+t}, v{MK+t}, v5""")
    stamp(a, 11)
    a(f"""v_mov_b32 v5, {OWNF}
          s_mov_b32 s60, 0""")
    a.label("L_ownw")
    a(f"""ds_read_b128 v[12:15], v5
          s_add_u32 s60, s60, 1
          s_cmp_gt_u32 s60, {SPIN_MAX*8}
          s_cbranch_scc1 L_ownx
          s_waitcnt lgkmcnt(0)
          v_and_b32 v12, v12, v13
          v_and_b32 v14, v14, v15
          v_and_b32 v12, v12, v14
          v_cmp_eq_u32 vcc, 0, v12
          s_cbranch_vccnz L_ownw""")
    a.label("L_ownx")
    stamp(a, 12)
    a(f"ds_read_b128 {vr(QF,4)}, v4")
    def kv_wait(lvl):
        uid[0] += 1
        L = f"kw{uid[0]}"
        a("s_mov_b32 s60, 0")
        a.label(L)
        a(f"""ds_read_b32 v11, v149
              s_add_u32 s60, s60, 1
              s_cmp_gt_u32 s60, {SPIN_MAX*8}
              s_cbranch_scc1 {L}x
              s_waitcnt lgkmcnt(0)
              v_readfirstlane_b32 s3, v11
              s_cmp_lt_u32 s3, {lvl}
              s_cbranch_scc1 {L}""")
        a.label(L + "x")
    def masks(val):
        return [f"""v_cndmask_b32 v{CD+r}, v{NINF}, {val}, s[{64+2*r}:{65+2*r}]
                  v_cndmask_b32 v{CF+r}, {val}, v{NINF}, s[{64+2*r}:{65+2*r}]""" for r in range(16)]
    def maxblk(S_, first):
        if first: a(f"v_max_f32 v{MX}, v{S_}, v{S_+1}")
        for t in range(2 if first else 0, 16, 2):
            a(f"v_max3_f32 v{MX}, v{S_+t}, v{S_+t+1}, v{MX}")
    def xhalf_max():
        a(f"""v_mov_b32 v10, v{MX}
              s_nop 1
              v_permlane32_swap_b32 v10, v{MX}
              s_nop 1
              v_max_f32 v{MX}, v{MX}, v10""")
    order = [7, 6, 5, 4, 3, 2, 1, 8, 0]
    def rdK(n): return f"ds_read_b128 {vr(KF+4*(n%3),4)}, v{KA} offset:{order[n]*1024}"
    def rdV(n):
        b = VF + 8*(n % 2)
        return f"""s_mov_b64 exec, s[{sVM}:{sVM+1}]
              ds_read_b128 {vr(b,4)}, v{VA_} offset:{order[n]*1024}
              ds_read_b128 {vr(b+4,4)}, v{VA_} offset:{order[n]*1024+512}
              s_mov_b64 exec, -1"""
    def mS(k, Dd): return f"{MFMA} {vr(Dd,16)}, {vr(KF+4*(k%3),4)}, {vr(QF,4)}, {vr(CN,16)}"
    a(f"s_setprio {opt(chr(45)*2+'p0', 3)}")
    PTN = opt("--ptn", 1)
    if PTN < 0: pt_load()
    if FORCE_SLOW: a("s_branch L_preslow")
    CI_ = 149
    def fast(first):
        def mSv(k, Dd, tag=''):
            if not first or k == 7: a(mS(k, Dd)); return
            inv = f"{MFMA} {vr(Dd,16)}, {vr(KF+4*(k%3),4)}, {vr(QF,4)}, {vr(CI_+1,16)}"
            if k == 8: a(inv); return
            a(f"""s_cmp_gt_u32 s{sNF}, {k}
                  s_cbranch_scc1 L_fv{k}{tag}
                  {inv}
                  s_branch L_fw{k}{tag}""")
            a.label(f"L_fv{k}{tag}")
            a(mS(k, Dd))
            a.label(f"L_fw{k}{tag}")
        F = int(first)
        if first:
            for r in range(16): a(f"v_mov_b32 v{CI_+1+r}, v{NINF}")
        def standin():
            a(f"""v_max3_f32 v{MX}, v{S+16}, v{S+17}, v{S+18}
                  v_max3_f32 v10, v{S+19}, v{S+20}, v{S+21}
                  v_max3_f32 v11, v{S+22}, v{S+23}, v{S+24}
                  v_max3_f32 v{MX}, v{S+25}, v{S+26}, v{MX}
                  v_max3_f32 v10, v{S+27}, v{S+28}, v10
                  v_max3_f32 v11, v{S+29}, v{S+30}, v11
                  v_max3_f32 v{MX}, v{S+31}, v{MX}, v10
                  v_max_f32 v{MX}, v{MX}, v11""")
            xhalf_max()
            a(f"v_sub_f32 v{CN}, 0xc2700000, v{MX}")
            for r in range(1, 16): a(f"v_mov_b32 v{CN+r}, v{CN}")
        a(f"""s_cmp_lt_u32 s{sW}, 4
              s_cbranch_scc1 L_q0{F}""")
        a(rdK(0)); a(rdV(0))
        a(f"""s_waitcnt lgkmcnt(2)
              {MFMA} {vr(S+16,16)}, {vr(KF,4)}, {vr(QF,4)}, 0
              s_nop 11""")
        standin()
        a("s_nop 1"); a(mS(0, S)); a("s_nop 11")
        for r in range(12): a(f"v_exp_f32 v{S+r}, v{S+r}")
        for t in range(4): a(f"v_cvt_pk_bf16_f32 v{PP+t}, v{S+2*t}, v{S+2*t+1}")
        a(f"""v_exp_f32 v{S+12}, v{S+12}
              s_waitcnt lgkmcnt(0)
              {MFMA} {vr(O,16)}, {vr(VF,4)}, {vr(PP,4)}, 0""")
        for r in range(13, 16): a(f"v_exp_f32 v{S+r}, v{S+r}")
        for t in range(4, 8): a(f"v_cvt_pk_bf16_f32 v{PP+t}, v{S+2*t}, v{S+2*t+1}")
        stamp(a, 30)
        a("s_barrier")
        a(rdK(1)); a("s_barrier"); a(rdK(2)); a(rdV(1))
        a("s_waitcnt lgkmcnt(3)")
        mSv(1, S+16, "b")
        a(f"s_nop 10\ns_branch L_n1{F}")
        a.label(f"L_q0{F}")
        a(f"""ds_read_b128 {vr(KF+8,4)}, v{KA} offset:{8*1024}
              s_waitcnt lgkmcnt(0)
              {MFMA} {vr(S+16,16)}, {vr(KF+8,4)}, {vr(QF,4)}, 0
              s_nop 11""")
        for r in range(16): a(f"v_cndmask_b32 v{S+16+r}, v{NINF}, v{S+16+r}, s[{64+2*r}:{65+2*r}]")
        standin()
        stamp(a, 30)
        a("s_barrier")
        a(rdK(0)); a(rdK(1)); a(rdV(0))
        a("s_waitcnt lgkmcnt(3)")
        mSv(0, S)
        prev = None
        for n in range(8):
            Sn = S + 16*(n % 2); Vn = VF + 8*(n % 2)
            P_ = PP if n % 2 == 0 else P2
            ex = lambda r: a(f"v_exp_f32 v{Sn+r}, v{Sn+r}")
            cv = lambda t: a(f"v_cvt_pk_bf16_f32 v{P_+t}, v{Sn+2*t}, v{Sn+2*t+1}")
            if n == 1: a.label(f"L_n1{F}")
            if n == PTN: pt_load()
            PR = dict(zip([int(c) for c in opt("--pr", "357")], (2, 1, 0)))
            if n in PR: a(f"s_setprio {PR[n]}")
            if n in (2, 4):
                a(f"""v_readfirstlane_b32 s3, v11
                      s_cmp_ge_u32 s3, {n//2}
                      s_cbranch_scc1 L_kf{int(first)}{n}""")
                kv_wait(n//2)
                a.label(f"L_kf{int(first)}{n}")
            if n == 0:
                a("s_waitcnt lgkmcnt(2)"); mSv(1, S+16); a("s_barrier"); a(rdK(2)); a(rdV(1)); a("s_nop 3")
            if n == 7:
                a("s_nop 1"); a(prev); a("s_nop 2")
                for r in range(16): a(f"v_cndmask_b32 v{Sn+r}, v{S3+r}, v{Sn+r}, s[{64+2*r}:{65+2*r}]")
            for r in range(4): ex(r)
            if 0 < n < 7: a(prev)
            if n == 7: a(rdV(8))
            for r in range(4, 8): ex(r)
            if 0 < n < 7:
                a("s_waitcnt lgkmcnt(2)"); mSv(n+1, S + 16*((n+1) % 2))
                if n in (1, 3): a("ds_read_b32 v11, v149")
                a(rdK(n+2)); a(rdV(n+1))
            for t in range(4): cv(t)
            for r in range(8, 12): ex(r)
            if n < 7:
                a("s_waitcnt lgkmcnt(3)")
                a(f"{MFMA} {vr(O,16)}, {vr(Vn,4)}, {vr(P_,4)}, {'0' if n == 0 else vr(O,16)}")
            else:
                for t in range(4): a(f"v_and_b32 v{PP+t}, v{MK+t}, v{P_+t}\nv_xor_b32 v{P_+t}, v{PP+t}, v{P_+t}")
                a("s_waitcnt lgkmcnt(2)")
                a(f"{MFMA} {vr(O,16)}, {vr(Vn,4)}, {vr(PP,4)}, {vr(O,16)}")
            ex(12); ex(13)
            if n == 6: a("s_waitcnt lgkmcnt(2)"); mSv(8, S3)
            if n == 7: a("s_waitcnt lgkmcnt(0)"); a(f"{MFMA} {vr(O,16)}, {vr(VF,4)}, {vr(P2,4)}, {vr(O,16)}")
            ex(14); ex(15)
            for t in range(4, 8): cv(t)
            prev = f"{MFMA} {vr(O,16)}, {vr(Vn+4,4)}, {vr(P_+4,4)}, {vr(O,16)}"
        for t in range(4, 8): a(f"v_and_b32 v{PP+t}, v{MK+t}, v{P2+t}\nv_xor_b32 v{P2+t}, v{PP+t}, v{P2+t}")
        a(f"""s_nop 0
          {MFMA} {vr(O,16)}, {vr(VF+12,4)}, {vr(PP+4,4)}, {vr(O,16)}
          {MFMA} {vr(O,16)}, {vr(VF+4,4)}, {vr(P2+4,4)}, {vr(O,16)}
          s_waitcnt vmcnt(0)
          v_cmp_ne_u32 s[6:7], s{sPTV}, v148
          v_mov_b32 v14, 0x7f800000
          s_nop 8
          v_add_f32 v10, |v{O}|, |v{O+1}|
          v_add_f32 v11, |v{O+2}|, |v{O+3}|
          v_add_f32 v12, |v{O+4}|, |v{O+5}|
          v_add_f32 v13, |v{O+6}|, |v{O+7}|
          v_add_f32 v10, v10, v11
          v_add_f32 v12, v12, v13
          v_mul_f32 v11, 0x43800000, v{O+8}
          v_add_f32 v10, v10, v12
          v_add_f32 v11, v10, v11
          v_rcp_f32 v10, v{O+8}
          v_cmp_lt_f32 vcc, v11, v14
          s_cmp_eq_u64 vcc, -1
          s_cbranch_scc1 L_norm
          s_branch L_slow""")
    a(f"""s_cmp_eq_u32 s{sR}, 0
          s_cbranch_scc1 L_first""")
    fast(False)
    a.label("L_first")
    fast(True)
    a.label("L_preslow")
    a("s_barrier\ns_barrier")
    kv_wait(2)
    if PTN >= 0: pt_load()
    a.label("L_slow")
    a(f"""s_setprio 0
          s_sub_u32 s3, 8, s{sNF}
          s_lshl_b32 s3, s3, 10
          s_waitcnt lgkmcnt(0)""")
    for x in masks("0"): a(x)
    a(f"""ds_read_b128 {vr(KF,4)}, v{KA} offset:{8*1024}
          s_waitcnt lgkmcnt(0)
          {MFMA} {vr(S,16)}, {vr(KF,4)}, {vr(QF,4)}, {vr(CD,16)}
          s_nop 11""")
    maxblk(S, True)
    a(f"""s_cmp_eq_u32 s{sR}, 0
          s_cbranch_scc1 L_s1nofar
          ds_read_b128 {vr(KF,4)}, v{KA}
          s_waitcnt lgkmcnt(0)
          {MFMA} {vr(S,16)}, {vr(KF,4)}, {vr(QF,4)}, {vr(CF,16)}
          s_nop 11""")
    maxblk(S, False)
    a.label("L_s1nofar")
    a(f"""s_mov_b32 s{sI}, s{sNF}
          v_add_u32 v10, s3, v{KA}
          s_cmp_eq_u32 s{sI}, 0
          s_cbranch_scc1 L_s1done""")
    a.label("L_s1loop")
    a(f"""ds_read_b128 {vr(KF,4)}, v10
          v_add_u32 v10, 1024, v10
          s_waitcnt lgkmcnt(0)
          {MFMA} {vr(S,16)}, {vr(KF,4)}, {vr(QF,4)}, 0
          s_nop 11""")
    maxblk(S, False)
    a(f"""s_sub_u32 s{sI}, s{sI}, 1
          s_cmp_lg_u32 s{sI}, 0
          s_cbranch_scc1 L_s1loop""")
    a.label("L_s1done")
    xhalf_max()
    a(f"v_sub_f32 v{MX}, 0, v{MX}")
    for x in masks(f"v{MX}"): a(x)
    for r in range(16): a(f"v_mov_b32 v{CN+r}, v{MX}")
    def pvblk(kaddr, vaddr, off, C, first):
        a(f"""ds_read_b128 {vr(KF,4)}, v{kaddr} offset:{off}
              s_mov_b64 exec, s[{sVM}:{sVM+1}]
              ds_read_b128 {vr(VF,4)}, v{vaddr} offset:{off}
              ds_read_b128 {vr(VF+4,4)}, v{vaddr} offset:{off+512}
              s_mov_b64 exec, -1
              s_waitcnt lgkmcnt(0)
              {MFMA} {vr(S,16)}, {vr(KF,4)}, {vr(QF,4)}, {vr(C,16)}
              s_nop 11""")
        for r in range(16): a(f"v_exp_f32 v{S+r}, v{S+r}")
        for t in range(8): a(f"v_cvt_pk_bf16_f32 v{PP+t}, v{S+2*t}, v{S+2*t+1}")
        a("s_nop 1")
        a(f"{MFMA} {vr(O,16)}, {vr(VF,4)}, {vr(PP,4)}, {'0' if first else vr(O,16)}")
        a(f"{MFMA} {vr(O,16)}, {vr(VF+4,4)}, {vr(PP+4,4)}, {vr(O,16)}")
    pvblk(KA, VA_, 8*1024, CD, True)
    a(f"""s_cmp_eq_u32 s{sR}, 0
          s_cbranch_scc1 L_s2nofar""")
    pvblk(KA, VA_, 0, CF, False)
    a.label("L_s2nofar")
    a(f"""s_mov_b32 s{sI}, s{sNF}
          v_add_u32 v10, s3, v{KA}
          v_add_u32 v11, s3, v{VA_}
          s_cmp_eq_u32 s{sI}, 0
          s_cbranch_scc1 L_s2done""")
    a.label("L_s2loop")
    pvblk(10, 11, 0, CN, False)
    a(f"""v_add_u32 v10, 1024, v10
          v_add_u32 v11, 1024, v11
          s_sub_u32 s{sI}, s{sI}, 1
          s_cmp_lg_u32 s{sI}, 0
          s_cbranch_scc1 L_s2loop""")
    a.label("L_s2done")
    a(f"""s_waitcnt vmcnt(0)
          v_cmp_ne_u32 s[6:7], s{sPTV}, v148
          s_nop 12
          v_rcp_f32 v10, v{O+8}
          s_nop 0""")
    a.label("L_norm")
    for t in range(8): a(f"v_mul_f32 v{O+t}, v10, v{O+t}")
    for t in range(4): a(f"v_cvt_pk_bf16_f32 v{PP+t}, v{O+2*t}, v{O+2*t+1}")
    a(f"s_add_u32 s4, s{sQO}, {WS_O}")
    if MODE == "auto":
        a(f"""s_cmp_eq_u64 s[6:7], 0
              s_cbranch_scc0 L_ox
              buffer_store_dwordx4 {vr(PP,4)}, v1, s[{SWS}:{SWS+3}], s4 offen""")
        stamp(a, 13)
        publish(a, sF2, 10, flav="")
        a("s_branch L_od")
        a.label("L_ox")
    a(f"buffer_store_dwordx4 {vr(PP,4)}, v1, s[{SWS}:{SWS+3}], s4 offen {ST}")
    stamp(a, 13 if MODE != "auto" else 19)
    publish(a, sF2, 10)
    a.label("L_od")
    stamp(a, 14)
    a(f"""s_barrier
          s_cmp_ge_u32 s{sW}, 4
          s_cbranch_scc1 L_fin""")
    OA, WA2, ACC2, W2, O2 = 8, 9, 16, 32, 32
    a(f"""s_and_b32 s5, s{sW}, 1
          v_lshrrev_b32 v2, 5, v0
          v_bfe_u32 v3, v0, 2, 2
          v_lshl_add_u32 v4, v2, 2, v3
          v_lshlrev_b32 v4, 7, v4
          v_bfe_u32 v5, v0, 4, 1
          v_lshlrev_b32 v5, 1, v5
          v_and_b32 v6, 1, v0
          v_add_u32 v5, v5, v6
          s_and_b32 s3, s{sW}, 2
          s_lshl_b32 s3, s3, 1
          v_add_u32 v5, s3, v5
          v_bfe_u32 v6, v0, 3, 1
          v_lshlrev_b32 v6, 2, v6
          v_xor_b32 v5, v5, v6
          v_lshl_add_u32 v4, v5, 4, v4
          v_bfe_u32 v6, v0, 1, 1
          v_lshl_add_u32 v4, v6, 3, v4
          v_add_u32 v{WA2}, {WO_BASE}, v4
          s_lshl_b32 s3, s5, 10
          v_add_u32 v{OA}, s3, v1
          v_and_b32 v14, 31, v0
          s_lshl_b32 s3, s{sTB}, 6
          s_lshl_b32 s5, s5, 5
          s_add_u32 s3, s3, s5
          v_add_u32 v14, s3, v14
          v_lshlrev_b32 v14, 11, v14
          v_lshl_add_u32 v14, v2, 4, v14
          s_lshl_b32 s3, s{sHG}, 7
          s_and_b32 s5, s{sW}, 2
          s_lshl_b32 s5, s5, 5
          s_add_u32 s3, s3, s5
          s_add_u32 s3, s3, 1024
          v_add_u32 v14, s3, v14
          v_mov_b32 v15, v{OA}""")
    heads = [8*(k//4 % 4) + 4*(k//16) + k % 4 for k in range(32)]
    OB = [2, 6, 10, 160]
    for k in range(32):
        for q in range(2):
            a(f"ds_read_b64_tr_b16 {vr(W2+4*k+2*q,2)}, v{WA2} offset:{heads[k]*2048 + q*1024}")
    a("s_waitcnt lgkmcnt(0)\ns_barrier")
    stamp(a, 28)
    rdo = lambda k: f"ds_read_b128 {vr(OB[k % 4],4)}, v15 offset:{heads[k]*2048}"
    for k in range(4): a(rdo(k))
    for k in range(32):
        if k == 12:
            a("s_barrier")
            stamp(a, 16)
        a(f"s_waitcnt lgkmcnt({min(3, 31-k)})")
        a(f"{MFMA} {vr(ACC2,16)}, {vr(W2+4*k,4)}, {vr(OB[k % 4],4)}, {'0' if k == 0 else vr(ACC2,16)}")
        if k + 4 < 32: a(rdo(k+4))
    a("s_nop 11")
    for mm in range(2):
        for t in range(4):
            a(f"v_cvt_pk_bf16_f32 v{O2+4*mm+t}, v{ACC2+8*mm+2*t}, v{ACC2+8*mm+2*t+1}")
        a(f"buffer_store_dwordx4 {vr(O2+4*mm,4)}, v14, s[{SOUT}:{SOUT+3}], 0 offen offset:{32*mm} {OPF}")
    stamp(a, 17)
    a.label("L_fin")
    stamp_flush(a, 18)
    a.label("L_end")
    a.label("L_last_insn")
    a("s_endpgm")
    return a

def main():
    a = gen()
    hdr = f"""; {NAME} : one fused kernel (generated by my gen11.py)
; @launch grid=(256,1,1) block=(768,1,1) lds=163840
.amdgcn_target "amdgcn-amd-amdhsa--gfx950"
.text
"""
    kd = f""".section .rodata,"a"
.p2align 6
.amdhsa_kernel {KN}
  .amdhsa_next_free_vgpr 168
  .amdhsa_next_free_sgpr 102
  .amdhsa_accum_offset 168
  .amdhsa_group_segment_fixed_size 0
  .amdhsa_kernarg_size 88
  .amdhsa_user_sgpr_count 2
  .amdhsa_user_sgpr_kernarg_segment_ptr 1
  .amdhsa_system_sgpr_workgroup_id_x 1
.end_amdhsa_kernel
"""
    path = sys.argv[1] if len(sys.argv) > 1 and sys.argv[1].endswith(".s") else f"cdna_kernels/{NAME}.s"
    open(path, "w").write(hdr + a.text() + kd)
main()
```

```python
import sys, struct, math

NAME = "concat_heads__spectral_fnet__sliding_block__prompt"
KN = NAME + "_kernel"
WS_Q, WS_K, WS_V, WS_O, WS_U = 0, 2 << 20, 4 << 20, 6 << 20, 8 << 20
WS_F1, WS_F2, WS_PT, WS_F3 = (11 << 20), (11 << 20) + 0x20000, (11 << 20) + 0x60000, (11 << 20) + 0x70000
U_ROW = 4224
U_GP = 16 * U_ROW
U_SIZE = 32 * U_GP
QSCALE = 0.25 * math.log2(math.e)
uid = [0]
STAMP = "--stamp" in sys.argv
FORCE_SLOW = "--slow" in sys.argv
SKIP = set(int(x) for x in sys.argv[sys.argv.index("--skip")+1].split(",")) if "--skip" in sys.argv else set()
ST = sys.argv[sys.argv.index("--st")+1].replace("+", " ") if "--st" in sys.argv else "sc1"
LD = "sc1"
SPIN_MAX = 200000
def opt(name, default):
    return type(default)(sys.argv[sys.argv.index(name)+1]) if name in sys.argv else default
PDELAY = opt("--pdelay", 0)
PIPE = "--pipe" in sys.argv
FULLF = "--fullf" in sys.argv
KVLD = sys.argv[sys.argv.index("--kvld")+1].replace("+", " ").replace("none", "") if "--kvld" in sys.argv else "sc1"
A2ST = "sc1" if "--a2sc1" in sys.argv else ""
WB = "--wb" in sys.argv

def f2u(x): return struct.unpack("<I", struct.pack("<f", x))[0]

class Asm:
    def __init__(self): self.L = []
    def __call__(self, s):
        for line in s.strip("\n").split("\n"):
            line = line.strip()
            if line: self.L.append(line if line.endswith(":") and " " not in line else "  " + line)
    def label(self, n): self.L.append(n + ":")
    def text(self): return "\n".join(self.L) + "\n"

def vr(b, n=1): return f"v{b}" if n == 1 else f"v[{b}:{b+n-1}]"
MFMA = "v_mfma_f32_32x32x16_bf16"

kAX, kSR, kSI, kDR, kDI, kBX, kWQ, kWO, kOUT, kDBG, kWS = 64, 66, 68, 70, 72, 74, 76, 78, 80, 82, 84
sTB, sHG, sJ, sW, sNON = 16, 17, 18, 19, 20
sHD, sR = 21, 22
SWS = 32
VST = 167

def srd(a, d, k, size, off=0):
    if off:
        a(f"s_add_u32 s{d}, s{k}, {off}\ns_addc_u32 s{d+1}, s{k+1}, 0")
    else:
        a(f"s_mov_b32 s{d}, s{k}\ns_mov_b32 s{d+1}, s{k+1}")
    a(f"s_mov_b32 s{d+2}, {size}\ns_mov_b32 s{d+3}, 0x20000")

AMP = [int(x) for x in sys.argv[sys.argv.index("--amp")+1].split(",")] if "--amp" in sys.argv else None
def amp_end(a):
    if not AMP: return
    uid[0] += 1
    L = f"amp{uid[0]}"
    a(f"""s_cmp_lg_u32 s2, {AMP[3]}
          s_cbranch_scc1 {L}x
          s_cmp_lg_u32 s{sW}, {AMP[4]}
          s_cbranch_scc1 {L}x
          s_waitcnt vmcnt(0)
          s_memrealtime s[62:63]
          s_sub_u32 s100, s101, s100
          s_min_u32 s100, s100, 10000
          s_mul_i32 s100, s100, {AMP[2]}
          s_waitcnt lgkmcnt(0)
          s_add_u32 s100, s100, s62""")
    a.label(L)
    a(f"""s_memrealtime s[62:63]
          s_waitcnt lgkmcnt(0)
          s_sub_u32 s61, s62, s100
          s_cmp_lt_i32 s61, 0
          s_cbranch_scc1 {L}""")
    a.label(L + "x")
GMAX = None
def stamp(a, idx):
    if "--jit" in sys.argv and idx > 0:
        uid[0] += 1
        seed = int(sys.argv[sys.argv.index("--jit")+1])
        a(f"""s_cselect_b32 s96, 1, 0
              s_mul_i32 s97, s2, {(2654435761*(idx+seed*37)+12345) & 0x7fffffff | 1}
              s_mul_i32 s98, s{sW}, {(40503*(idx+3+seed)) | 1}
              s_xor_b32 s97, s97, s98
              s_mul_i32 s97, s97, 0x45d9f3b
              s_bfe_u32 s97, s97, 0x30010
              s_cmp_lg_u32 s97, 0
              s_cbranch_scc1 jt{uid[0]}
              s_sleep {64 + (idx*29 + seed*11) % 60}""")
        a.label(f"jt{uid[0]}")
        a("s_cmp_lg_u32 s96, 0")
    if AMP and idx in AMP[:2]:
        a(f"""s_memrealtime s[62:63]
              s_waitcnt lgkmcnt(0)
              s_mov_b32 s{100 + AMP[:2].index(idx)}, s62""")
    if not STAMP: return
    if idx in SKIP: return
    a(f"""s_memrealtime s[96:97]
          s_memtime s[98:99]
          s_waitcnt lgkmcnt(0)
          v_writelane_b32 v{VST}, s96, {idx}
          v_writelane_b32 v{VST}, s98, {idx+32}""")
def stamp_flush(a, idx):
    if AMP:
        if idx in AMP[:2]: a("s_waitcnt vmcnt(0)")
        stamp(a, idx)
        amp_end(a)
    if not STAMP: return
    a("s_waitcnt vmcnt(0)")
    stamp(a, idx)
    srd(a, 88, SWS, 0x100000, 16 << 20)
    a(f"""s_mov_b64 exec, -1
          s_lshl_b32 s92, s2, 12
          s_lshl_b32 s93, s{sW}, 8
          s_add_u32 s92, s92, s93
          v_mbcnt_lo_u32_b32 v2, -1, 0
          v_mbcnt_hi_u32_b32 v2, -1, v2
          v_lshlrev_b32 v2, 2, v2
          buffer_store_dword v{VST}, v2, s[88:91], s92 offen""")

def poll(a, vaddr, vtmp, nl_mask, srdreg=SWS):
    uid[0] += 1
    L = f"poll{uid[0]}"
    a(f"""s_mov_b32 s60, 0
          s_mov_b64 exec, {nl_mask}""")
    a.label(L)
    a(f"""buffer_load_dword v{vtmp}, v{vaddr}, s[{srdreg}:{srdreg+3}], 0 offen sc1
          s_add_u32 s60, s60, 1
          s_cmp_gt_u32 s60, {SPIN_MAX}
          s_cbranch_scc1 {L}x
          s_waitcnt vmcnt(0)
          v_cmp_ne_u32 vcc, s{sNON}, v{vtmp}
          s_cbranch_vccnz {L}""")
    a.label(L + "x")
    a("s_mov_b64 exec, -1")

def poll_pipe(a, vaddr, vt, nl_mask, gap=2):
    uid[0] += 1
    L = f"pp{uid[0]}"
    ld = lambda k: f"buffer_load_dword v{vt+k}, v{vaddr}, s[{SWS}:{SWS+3}], 0 offen sc1"
    a(f"""s_mov_b32 s60, 0
          s_mov_b64 exec, {nl_mask}
          {ld(0)}
          s_sleep {gap}
          {ld(1)}""")
    a.label(L)
    for k in range(3):
        a(f"""s_sleep {gap}
              {ld((k+2)%3)}
              s_waitcnt vmcnt(2)
              v_cmp_ne_u32 vcc, s{sNON}, v{vt+k}
              s_cbranch_vccz {L}x""")
    a(f"""s_add_u32 s60, s60, 1
          s_cmp_lt_u32 s60, {SPIN_MAX}
          s_cbranch_scc1 {L}""")
    a.label(L + "x")
    a("s_mov_b64 exec, -1")

def poll2(a, va, vt):
    uid[0] += 1
    L = f"pq{uid[0]}"
    a("s_mov_b32 s60, 0")
    a.label(L)
    a(f"""buffer_load_dwordx2 v[{vt}:{vt+1}], v{va}, s[{SWS}:{SWS+3}], 0 offen sc1
          s_add_u32 s60, s60, 1
          s_cmp_gt_u32 s60, {SPIN_MAX}
          s_cbranch_scc1 {L}x
          s_waitcnt vmcnt(0)
          v_cmp_ne_u32 vcc, s{sNON}, v{vt}
          v_cmp_ne_u32 s[10:11], s{sNON}, v{vt+1}
          s_or_b64 vcc, vcc, s[10:11]
          s_cbranch_vccnz {L}""")
    a.label(L + "x")

def publish(a, soff, vtmp, cnt=0, flav=None):
    if FULLF:
        a(f"""v_mov_b32 v{vtmp}, s{sNON}
              v_mov_b32 v{vtmp+1}, s{sNON}
              s_waitcnt vmcnt({cnt})
              s_mov_b64 exec, 0xffff
              buffer_store_dwordx2 v[{vtmp}:{vtmp+1}], v166, s[{SWS}:{SWS+3}], s{soff} offen {ST if flav is None else flav}
              s_mov_b64 exec, -1""")
        return
    a(f"""s_waitcnt vmcnt({cnt})
          v_mov_b32 v{vtmp}, s{sNON}
          s_mov_b64 exec, 1
          buffer_store_dword v{vtmp}, off, s[{SWS}:{SWS+3}], s{soff} {ST if flav is None else flav}
          s_mov_b64 exec, -1""")

def nonce_wait(a, vtmp, first_loaded):
    uid[0] += 1
    L = f"non{uid[0]}"
    a("s_mov_b32 s60, 0")
    if first_loaded:
        a(f"s_branch {L}c")
    a.label(L)
    a(f"""buffer_load_dword v{vtmp}, off, s[56:59], 0 sc1
          s_waitcnt vmcnt(0)""")
    a.label(L + "c")
    a(f"""v_readfirstlane_b32 s{sNON}, v{vtmp}
          s_add_u32 s60, s60, 1
          s_cmp_gt_u32 s60, {SPIN_MAX}
          s_cbranch_scc1 {L}x
          s_cmp_eq_u32 s{sNON}, 0
          s_cbranch_scc1 {L}""")
    a.label(L + "x")

def diag_mask(r):
    g, i = r // 4, r % 4
    return (0xffffffff << (8*g+i)) & 0xffffffff, (0xffffffff << (8*g+i+4)) & 0xffffffff

MODE = sys.argv[sys.argv.index("--mode")+1] if "--mode" in sys.argv else "auto"
A2F = opt("--a2st", "").replace("+", " ")
OPF = opt("--opst", "").replace("+", " ")
XR, WR, WSL = 0, 65536, 24576
NS = opt('--ns', 3)
QSLOT = [WR + 2*WSL, WR, WR + 3*WSL, WR + WSL] if NS == 3 else [WR + k*WSL for k in range(4)]
UPN = opt('--upn', 1)
PUBU = opt('--pubu', 0)
Q_BASE = 81920
WO_BASE = 98304
HSTR = 20480
UE = '--noue' not in sys.argv
ALIGN = '--noalign' not in sys.argv
OWNF = WR + WSL + 16384 + 4096
MST = WR + 2*WSL
B11E = '--b11e' in sys.argv
NONW = 163840 - 1024
OWNB = opt('--ownb', 1)
KVF = 90112
UF = 64
sX = sR

def gen():
    a = Asm()
    a.L += [f".globl {KN}", ".p2align 8", f".type {KN},@function"]
    a.label(KN)
    a(f"""s_cmp_ge_u32 s2, 256
          s_cbranch_scc1 L_end
          s_load_dwordx16 s[64:79], s[0:1], 0
          s_load_dwordx4 s[80:83], s[0:1], 64
          s_load_dwordx2 s[84:85], s[0:1], 80
          v_lshrrev_b32 v1, 6, v0
          v_and_b32 v0, 63, v0
          s_and_b32 s{sX}, s2, 7
          v_readfirstlane_b32 s{sW}, v1
          s_lshr_b32 s{sJ}, s2, 3
          s_lshl_b32 s3, s{sX}, 2
          s_and_b32 s4, s{sJ}, 3
          s_add_u32 s{sTB}, s3, s4
          s_lshr_b32 s{sHG}, s2, 5
          s_xor_b32 s{sHG}, s{sHG}, {opt("--hgx", 0)}""")
    if FULLF: a("v_lshlrev_b32 v166, 3, v0")
    if STAMP: a(f"v_mov_b32 v{VST}, 0")
    stamp(a, 0)
    a(f"""s_cmp_lt_u32 s{sW}, 8
          s_cbranch_scc1 L_consumer""")
    sQO, sF2, sPTV = 12, 13, 14
    def get_tag(vt):
        a(f"""v_mov_b32 v{vt}, {NONW}
              ds_read_b32 v{vt}, v{vt}
              s_waitcnt lgkmcnt(0)
              v_readfirstlane_b32 s{sNON}, v{vt}
              s_nop 1""")
    def pt_load():
        if MODE == "auto":
            a(f"""v_and_b32 v147, 31, v0
                  s_lshl_b32 s3, s{sX}, 7
                  s_add_u32 s3, s3, {WS_PT}
                  v_lshl_add_u32 v147, v147, 2, s3
                  buffer_load_dword v148, v147, s[{SWS}:{SWS+3}], 0 offen sc1""")
    sLW, sROT, sSOX, sSOW, sMX, sMW, sTY = 23, 15, 28, 29, 30, 31, 27
    SX, SWD, SAX = 36, 40, 48
    SWOD, SOUT = 44, 40
    sC0 = 24
    XO, WO_, XA1 = 8, 10, 14
    sRA, sAX = 21, 25
    a(f"""s_sub_u32 s{sLW}, s{sW}, 8
          s_lshl_b32 s3, s{sTB}, 2
          s_add_u32 s3, s3, s{sLW}
          s_lshl_b32 s3, s3, 14                    ; (64tb + 16lw)*1024
          v_lshrrev_b32 v1, 3, v0
          v_and_b32 v2, 7, v0
          v_lshrrev_b32 v3, 4, v0
          v_xor_b32 v4, v3, v2
          v_xor_b32 v5, 4, v4
          v_lshlrev_b32 v4, 4, v4
          v_lshlrev_b32 v5, 4, v5
          v_lshl_add_u32 v6, v1, 10, s3
          v_add_u32 v{XO}, v6, v4
          v_add3_u32 v{XO+1}, v6, v5, s4
          v_and_b32 v6, 1, v3
          v_lshlrev_b32 v6, 2, v6
          v_xor_b32 v6, v6, v2
          s_lshl_b32 s3, s{sHG}, 7
          v_lshl_add_u32 v6, v6, 4, s3
          s_and_b32 s3, s{sLW}, 1
          s_lshl_b32 s3, s3, 5
          v_add_u32 v7, s3, v1
          s_movk_i32 s3, 3072
          v_mad_u32_u24 v{WO_}, v7, s3, v6""".replace("v_add3_u32 v9, v6, v5, s4", "v_add_u32 v9, v6, v5\n          v_add_u32 v9, 8192, v9"))
    for jw in range(1, 4): a(f"v_add_u32 v{WO_+jw}, {8*3072*jw}, v{WO_}")
    RM = opt('--rmode', 2)
    if RM == 0:
        a(f"""s_and_b32 s3, s{sJ}, 3
          s_lshl_b32 s3, s3, 1
          s_add_u32 s3, s3, s{sHG}
          s_add_u32 s3, s3, s{sX}
          s_and_b32 s{sROT}, s3, {opt('--rmask', 4)}""")
    elif RM == 1: a(f"s_mov_b32 s{sROT}, s{sX}")
    elif RM == 2:
        a(f"""s_and_b32 s3, s{sJ}, 3
          s_lshl_b32 s3, s3, 1
          s_add_u32 s3, s3, s{sHG}
          s_and_b32 s3, s3, {opt('--rmask', 4)}
          s_add_u32 s3, s3, s{sX}
          s_and_b32 s{sROT}, s3, 7""")
    a(f"""s_nop 0
          s_lshr_b32 s{sTY}, s{sLW}, 1
          s_lshl_b32 s{sTY}, s{sTY}, 10
          s_add_u32 s{sTY}, s{sTY}, 1024
          s_lshl_b32 s{sSOX}, s{sROT}, 7
          s_mul_i32 s{sSOW}, s{sROT}, {64*3072}
          s_add_u32 s{sSOW}, s{sSOW}, s{sTY}
          s_lshl_b32 s{sMX}, s{sLW}, 11
          s_lshl_b32 s{sMW}, s{sLW}, 12
          s_waitcnt lgkmcnt(0)""")
    srd(a, SX, kBX, 0x200000)
    srd(a, SWD, kWQ, 0x180000)
    stamp(a, 1)
    def dma(sm0, m0off, v, S, so):
        a(f"""s_add_u32 m0, s{sm0}, {m0off}
              s_nop 0
              buffer_load_dwordx4 v{v}, s[{S}:{S+3}], s{so} offen lds""")
    def issue(st):
        if st < 8:
            for j in range(2): dma(sMX, XR + st*8192 + j*1024, XO+j, SX, sSOX)
        base = WR + (st % NS)*WSL if st < 8 else QSLOT[st-8]
        for j in range(4): dma(sMW, base + j*1024, WO_+j, SWD, sSOW)
        if st == 0:
            a(f"""; A_x rows: pi = 8*(x>>1) + (j&7) ; p = lw>>1, s1 = 16*(lw&1) + 8j + (i>>3)
          s_lshl_b32 s3, s{sTB}, 1
          s_lshr_b32 s4, s{sLW}, 1
          s_add_u32 s3, s3, s4
          s_lshl_b32 s3, s3, 10
          s_and_b32 s4, s{sLW}, 1
          s_lshl_b32 s4, s4, 20
          s_add_u32 s3, s3, s4
          v_lshl_add_u32 v6, v1, {10 if '--xcont' in sys.argv else 16}, s3
          v_add_u32 v{XA1}, v6, v4
          v_add_u32 v{XA1+1}, v6, v5
          v_add_u32 v{XA1+1}, {8*1024 if '--xcont' in sys.argv else 8*65536}, v{XA1+1}
          s_lshr_b32 s3, s{sJ}, 2
          s_and_b32 s{sRA}, s3, {opt('--amask', 6)}
          s_lshl_b32 s{sAX}, s{sRA}, 7""")
            srd(a, SAX, kAX, 0x200000)
        if st < 8:
            for j in range(2): dma(sMX, base + 16384 + j*1024, XO+j if '--xsame' in sys.argv else XA1+j, SX if '--xsame' in sys.argv else SAX, sSOX if '--xsame' in sys.argv else sAX)
        if st < 7:
            a(f"""s_add_u32 s{sROT}, s{sROT}, 1
                  s_and_b32 s{sROT}, s{sROT}, 7
                  s_lshl_b32 s{sSOX}, s{sROT}, 7
                  s_mul_i32 s{sSOW}, s{sROT}, {64*3072}
                  s_add_u32 s{sSOW}, s{sSOW}, s{sTY}
                  s_add_u32 s{sAX}, s{sAX}, 128
                  s_and_b32 s{sAX}, s{sAX}, 1023""")
        elif st < 11:
            a(f"s_add_u32 s{sROT}, s{sROT}, 2")
            a(f"""s_and_b32 s{sROT}, s{sROT}, 7
                  s_mul_i32 s{sSOW}, s{sROT}, {64*3072}""")
    issue(0)
    srd(a, SWS, kWS, 0x1000000)
    srd(a, 56, kDBG, 256)
    a(f"""          ; wo voffset: (128lw + (i>>3))*1024 + hg*128 + ((i&7) ^ (((i>>4)&1)<<2))*16
          v_and_b32 v6, 1, v3
          v_lshlrev_b32 v6, 2, v6
          v_xor_b32 v6, v6, v2
          s_lshl_b32 s3, s{sLW}, 17
          s_lshl_b32 s4, s{sHG}, 7
          s_add_u32 s3, s3, s4
          v_lshl_add_u32 v6, v6, 4, s3
          v_lshl_add_u32 v19, v1, 10, v6
          v_lshrrev_b32 v4, 1, v0
          v_add_u32 v4, s{sTB}, v4
          v_subrev_u32 v4, 4, v4
          v_and_b32 v5, 3, v4
          v_bfe_u32 v4, v4, 2, 3
          v_lshl_add_u32 v4, v5, 3, v4
          s_lshr_b32 s4, s2, 5
          s_lshl_b32 s4, s4, 12
          s_and_b32 s5, s{sLW}, 2
          s_lshl_b32 s5, s5, 2
          s_add_u32 s4, s4, s5
          v_lshl_add_u32 v4, v4, 7, s4
          v_and_b32 v5, 1, v0
          v_lshl_add_u32 v4, v5, 2, v4
          v_add_u32 v16, {WS_F1}, v4
          v_lshlrev_b32 v1, 4, v0
          s_lshl_b32 s9, s{sHG}, 2
          s_add_u32 s9, s9, s{sLW}
          s_lshl_b32 s5, s{sTB}, 11
          s_lshl_b32 s6, s9, 16
          s_add_u32 s10, s5, s6
          s_add_u32 s5, s10, {WS_O}
          v_lshl_add_u32 v24, v0, 7, s5
          s_lshl_b32 s4, s{sTB}, 6
          s_lshl_b32 s5, s{sLW}, 3
          s_add_u32 s4, s4, s5
          v_bfe_u32 v4, v0, 1, 3
          v_and_b32 v5, 1, v0
          v_lshl_add_u32 v4, v5, 5, v4
          v_add_u32 v4, s4, v4
          v_lshlrev_b32 v4, 2, v4
          v_add_u32 v25, {WS_F2}, v4
          s_lshl_b32 s5, s{sLW}, 19
          s_lshl_b32 s6, s{sTB}, 11
          s_add_u32 s5, s5, s6
          s_add_u32 s13, s5, {WS_O}""")
    MF, A2 = 96, 128
    sPF, sWB, sIH = 52, 54, 55
    a(f"""s_lshl_b32 s4, s2, 1
          s_lshr_b32 s5, s{sLW}, 1
          s_add_u32 s4, s4, s5
          s_mul_i32 s4, s4, 3072
          s_and_b32 s5, s{sLW}, 1
          s_lshl_b32 s5, s5, 9
          s_add_u32 s5, s5, s4
          s_add_u32 s{sPF}, s{kWQ}, s5
          s_addc_u32 s{sPF+1}, s{kWQ+1}, 0
          s_mov_b32 s{sIH}, 0
          s_mov_b32 s{sWB}, {WR + 2*WSL}
          s_add_u32 s11, s{sMX}, {XR + 2*8192}
          s_getreg_b32 s{sPTV}, hwreg(HW_REG_XCC_ID, 0, 16)
          s_lshl_b32 s{sPTV}, s{sPTV}, 8""")
    issue(1)
    def prefetch4():
        if "--nopf" in sys.argv: return
        a(f"""s_sub_u32 s3, s{sIH}, {opt("--pf0", 2)}
              s_cmp_ge_u32 s3, 4
              s_cbranch_scc1 L_hpf""")
        for k in range(4): a(f"s_load_dword s61, s[{sPF}:{sPF+1}], {64*k}")
        a(f"""s_add_u32 s{sPF}, s{sPF}, 256
              s_addc_u32 s{sPF+1}, s{sPF+1}, 0
              s_cmp_lg_u32 s3, 1
              s_cbranch_scc1 L_hpf
              s_lshl_b32 s4, s2, 2
              s_add_u32 s4, s4, s{sLW}
              s_lshl_b32 s5, s4, 9
              s_add_u32 s{sPF}, s{kWO}, s5
              s_addc_u32 s{sPF+1}, s{kWO+1}, 0""")
        a.label("L_hpf")
    stamp(a, 25)
    if ALIGN: a.L.append(".p2align 6")
    a.label("L_hl")
    a("s_waitcnt vmcnt(8)")
    if STAMP and "--lst" in sys.argv:
        a(f"""s_memrealtime s[96:97]
              s_add_u32 s3, s{sIH}, 2
              s_waitcnt lgkmcnt(0)
              v_writelane_b32 v{VST}, s96, s3""".replace("v_writelane_b32 v167, s96, s3", "s_mov_b32 m0, s3\nv_writelane_b32 v167, s96, m0"))
    a(f"""s_barrier
          s_add_u32 s4, s{sMW}, s{sWB}
          s_add_u32 s5, s{sMX}, s{sWB}""")
    for j in range(2): dma(11, j*1024, XO+j, SX, sSOX)
    for j in range(4): dma(4, j*1024, WO_+j, SWD, sSOW)
    for j in range(2): dma(5, 16384 + j*1024, XA1+j, SAX, sAX)
    prefetch4()
    a(f"""s_add_u32 s11, s11, 8192
          s_add_u32 s{sWB}, s{sWB}, {WSL}
          s_cmp_eq_u32 s{sWB}, {WR + 3*WSL}
          s_cselect_b32 s{sWB}, {WR}, s{sWB}
          s_add_u32 s{sROT}, s{sROT}, 1
          s_and_b32 s{sROT}, s{sROT}, 7
          s_lshl_b32 s{sSOX}, s{sROT}, 7
          s_mul_i32 s{sSOW}, s{sROT}, {64*3072}
          s_add_u32 s{sSOW}, s{sSOW}, s{sTY}
          s_add_u32 s{sAX}, s{sAX}, 128
          s_and_b32 s{sAX}, s{sAX}, 1023
          s_add_u32 s{sIH}, s{sIH}, 1
""")
    a(f"""s_cmp_lt_u32 s{sIH}, 6
          s_cbranch_scc1 L_hl
          s_lshr_b32 s3, s{sLW}, 1
          s_add_u32 s{sROT}, s{sROT}, s3
          s_and_b32 s{sROT}, s{sROT}, 7
          s_mul_i32 s{sSOW}, s{sROT}, {64*3072}
          s_cmp_lg_u32 s{sLW}, 0
          s_cbranch_scc1 L_hn0
          buffer_load_dword v18, off, s[56:59], 0 sc1
          s_waitcnt vmcnt(9)
          s_branch L_hn1""")
    a.label("L_hn0")
    a("s_waitcnt vmcnt(8)")
    a.label("L_hn1")
    a("s_barrier")
    issue(8)
    a(f"""s_cmp_lg_u32 s{sLW}, 0
          s_cbranch_scc1 L_hn2
          s_waitcnt vmcnt(5)
          s_branch L_hn3""")
    a.label("L_hn2")
    a("s_waitcnt vmcnt(4)")
    a.label("L_hn3")
    stamp(a, 9)
    a("s_barrier")
    issue(9); issue(10)
    a(f"""s_waitcnt vmcnt(8)
          s_cmp_lg_u32 s{sLW}, 0
          s_cbranch_scc1 L_hp2""")
    nonce_wait(a, 18, True)
    a(f"""v_mov_b32 v6, {NONW}
          v_mov_b32 v7, s{sNON}
          ds_write_b32 v6, v7""")
    if MODE == "auto":
        a(f"""s_xor_b32 s3, s{sPTV}, s{sNON}
              v_mov_b32 v18, s3
              s_lshl_b32 s3, s{sX}, 5
              s_add_u32 s3, s3, s{sJ}
              s_lshl_b32 s3, s3, 2
              s_add_u32 s3, s3, {WS_PT}
              s_mov_b64 exec, 1
              buffer_store_dword v18, off, s[{SWS}:{SWS+3}], s3
              s_mov_b64 exec, -1""")
    a("s_waitcnt lgkmcnt(0)")
    a.label("L_hp2")
    stamp(a, 20)
    a("s_barrier")
    issue(11)
    ET = '--noet' not in sys.argv and MODE == 'auto'
    E2 = 2 if ET else 0
    if ET:
        a(f"""s_mov_b64 exec, 0xffff
                  buffer_load_dword v27, v24, s[{SWS}:{SWS+3}], 0 offen
                  buffer_load_dword v26, v25, s[{SWS}:{SWS+3}], 0 offen sc1
                  s_mov_b64 exec, -1""")
    get_tag(6)
    srd(a, SWOD, kWO, 0x80000)
    srd(a, SOUT, kOUT, 0x400000)
    a(f"""; A2 task: tc = 2x + (j&1), cr16 = j>>1, sigma = w&1, nt = (w>>1)&1
          s_lshl_b32 s6, s{sX}, 1
          s_and_b32 s4, s{sJ}, 1
          s_add_u32 s6, s6, s4                    ; tc
          s_lshr_b32 s7, s{sJ}, 1                 ; cr16
          s_lshl_b32 s{sC0}, s7, 5
          s_lshr_b32 s4, s6, 2
          s_lshl_b32 s4, s4, 3
          s_and_b32 s5, s6, 3
          s_add_u32 s4, s4, s5
          s_and_b32 s5, s{sW}, 1
          s_lshl_b32 s5, s5, 2
          s_add_u32 s5, s4, s5                    ; t1 source
          s_sub_u32 s4, 32, s5
          s_and_b32 s4, s4, 31
          s_cmp_lt_u32 s2, 128
          s_cselect_b32 s11, s5, s4
          s_cselect_b64 vcc, -1, 0
          v_and_b32 v45, 31, v0
          v_lshl_add_u32 v20, v45, 5, s11""")
    a(f"""v_lshrrev_b32 v47, 5, v0
          v_and_b32 v45, 0x13, v0
          v_bfe_u32 v46, v0, 2, 1
          v_lshl_or_b32 v45, v46, 3, v45
          v_bfe_u32 v46, v0, 3, 1
          v_lshl_or_b32 v45, v46, 2, v45
          v_add_u32 v45, s{sC0}, v45                ; c
          v_sub_u32 v46, 512, v45
          v_cndmask_b32 v45, v46, v45, vcc           ; e
          s_mul_i32 s4, s6, {U_ROW}
          s_and_b32 s5, s{sW}, 1
          s_lshl_b32 s5, s5, 3
          s_add_u32 s4, s4, s5
          s_add_u32 s4, s4, {WS_U}
          v_lshl_add_u32 v45, v45, 4, s4
          s_mov_b32 s5, {16*U_GP}
          v_mad_u32_u24 v22, v47, s5, v45           ; U address
          s_sub_u32 s5, 15, s7
          s_cmp_lt_u32 s2, 128
          s_cselect_b32 s4, s7, s5                ; e block b
          s_cselect_b32 s5, 0, 1
          v_mul_u32_u24 v45, s5, v47
          v_add_u32 v45, s4, v45
          v_and_b32 v45, 7, v45
          v_and_b32 v46, 31, v0
          v_lshlrev_b32 v46, 3, v46
          v_lshl_add_u32 v45, v45, 8, v46
          v_add_u32 v21, {WS_F3}, v45""")
    NT = 3 if (MODE == "auto" and not ET) else 1
    a(f"""s_sub_u32 s3, 4, s{sTB}
          s_max_i32 s3, s3, 0
          s_lshl_b32 s4, s3, 1
          s_lshl_b32 s6, 0xff, s4
          s_and_b32 s6, s6, 0xff
          s_mov_b32 s7, 0
          s_mul_i32 s8, s{sLW}, {HSTR}
          s_add_u32 s8, s8, 6144
          s_add_u32 s10, s10, {WS_K - 2048}
          s_lshl_b32 s30, s{sLW}, 14
          v_mov_b32 v2, 0x7ffffff0
          s_waitcnt vmcnt({8+E2}) lgkmcnt(0)
          s_barrier""")
    a(f"""s_waitcnt vmcnt({4+E2})
          s_barrier
          s_waitcnt vmcnt({E2})""")
    stamp(a, 23)
    a(f"""s_barrier
          s_mov_b64 exec, s[6:7]
          s_cbranch_execz L_kv0
          buffer_load_dword v5, v16, s[{SWS}:{SWS+3}], 0 offen sc1
          s_mov_b64 exec, -1
          s_barrier
          s_mov_b64 exec, s[6:7]
          s_waitcnt vmcnt(0)
          v_cmp_ne_u32 vcc, s{sNON}, v5
          s_mov_b64 exec, -1
          s_cbranch_vccz L_kv1""")
    poll(a, 16, 5, "s[6:7]")
    a("s_branch L_kv1")
    a.label("L_kv0")
    a("s_mov_b64 exec, -1\ns_barrier")
    a.label("L_kv1")
    stamp(a, 10)
    def kv_grp(g):
        a(f"""s_cmp_gt_u32 s{sTB}, {g}
              s_cbranch_scc1 L_kvr{g}
              v_mov_b32 v3, v2
              s_mov_b32 s10, {2048*g}""")
        a.label(f"L_kvr{g}")
        a(f"""s_sub_u32 m0, s8, {2048*g}
              s_sub_u32 s4, s10, {2048*g}
              buffer_load_dwordx4 v3, s[{SWS}:{SWS+3}], s4 offen {KVLD} lds
              buffer_load_dwordx4 v3, s[{SWS}:{SWS+3}], s4 offen offset:1024 {KVLD} lds
              s_add_u32 m0, m0, 10240
              s_add_u32 s4, s4, {WS_V - WS_K}
              buffer_load_dwordx4 v3, s[{SWS}:{SWS+3}], s4 offen {KVLD} lds
              buffer_load_dwordx4 v3, s[{SWS}:{SWS+3}], s4 offen offset:1024 {KVLD} lds""")
    KV1 = opt("--kv1", 3)
    a("v_mov_b32 v3, v1")
    for g in range(KV1): kv_grp(g)
    def wo_grp(g):
        a(f"""s_add_u32 s3, s{sJ}, {g}
              s_and_b32 s3, s3, 3
              s_lshl_b32 s4, s3, 12
              s_add_u32 s4, s4, s30
              s_add_u32 s4, s4, {WO_BASE}
              s_lshl_b32 s5, s3, 15""")
        for jj in range(4):
            a(f"""s_add_u32 m0, s4, {jj*1024}
                  s_add_u32 s6, s5, {jj*8192}
                  buffer_load_dwordx4 v19, s[{SWOD}:{SWOD+3}], s6 offen lds""")
    a(f"""s_lshl_b32 s3, s{sLW}, 2
          s_add_u32 s3, s3, {KVF}
          v_mov_b32 v6, s3
          v_mov_b32 v7, 0
          ds_write_b32 v6, v7""")
    a(f"""s_and_b32 s3, s{sLW}, 1
          s_lshl_b32 s3, s3, 13
          s_add_u32 s3, s3, {MST}
          v_add_u32 v44, s3, v1""")
    for js in range(8): a(f"ds_read_b128 {vr(MF+4*js,4)}, v44 offset:{js*1024}")
    a("v_mov_b32 v7, 1\ns_waitcnt lgkmcnt(0)")
    a(f"s_waitcnt vmcnt({4*KV1-4})")
    stamp(a, 11)
    a("s_barrier")
    stamp(a, 12)
    for g in range(KV1, 4): kv_grp(g)
    a(f"""s_waitcnt vmcnt(8)
          s_barrier
          buffer_load_dwordx2 v[4:5], v21, s[{SWS}:{SWS+3}], 0 offen sc1""")
    if not ET:
        if MODE == "auto":
            a(f"""s_mov_b64 exec, 0xffff
                  buffer_load_dword v27, v24, s[{SWS}:{SWS+3}], 0 offen
                  buffer_load_dword v26, v25, s[{SWS}:{SWS+3}], 0 offen sc1
                  s_mov_b64 exec, -1""")
    a(f"""s_waitcnt vmcnt({NT + 4})
          ds_write_b32 v6, v7
          v_mov_b32 v7, 2""")
    wo_grp(0)
    a(f"""s_waitcnt vmcnt({NT + 4})
          ds_write_b32 v6, v7""")
    stamp(a, 21)
    for g in range(1, 4): wo_grp(g)
    a(f"""s_cmp_ge_u32 s{sLW}, 2
          s_cbranch_scc1 L_nou
          s_waitcnt vmcnt(16)
          v_cmp_ne_u32 vcc, s{sNON}, v4
          v_cmp_ne_u32 s[10:11], s{sNON}, v5
          s_or_b64 vcc, vcc, s[10:11]
          s_cbranch_vccz L_uok""")
    poll2(a, 21, 4)
    a.label("L_uok")
    stamp(a, 26)
    for js in range(8):
        for b in range(2):
            a(f"""s_mov_b32 s4, {(2*js + b)*U_GP}
                  buffer_load_dwordx2 {vr(UF+4*js+2*b,2)}, v22, s[{SWS}:{SWS+3}], s4 offen {LD}""")
    a(f"""v_lshrrev_b32 v3, 5, v0
          v_lshlrev_b32 v10, 11, v20
          v_lshl_add_u32 v10, v3, 4, v10
          s_lshl_b32 s4, s{sC0}, 1
          v_add_u32 v10, s4, v10""")
    stamp(a, 27)
    a("s_waitcnt vmcnt(16)\ns_branch L_nou2")
    a.label("L_nou")
    a("s_waitcnt vmcnt(0)")
    a.label("L_nou2")
    def a2_half(k, L):
        a(f"""s_cmp_ge_u32 s{sLW}, 2
              s_cbranch_scc1 {L}""")
        if k:
            a("s_mov_b32 s3, 0x80008000")
            for t in range(16): a(f"v_xor_b32 v{MF+2*t+1}, s3, v{MF+2*t+1}")
            for t in range(8): a(f"v_cvt_pk_bf16_f32 v{44+t}, v{A2+2*t}, v{A2+2*t+1}")
        for js in range(8):
            a(f"{MFMA} {vr(A2+16*k,16)}, {vr(UF+4*js,4)}, {vr(MF+4*js,4)}, {'0' if js == 0 else vr(A2+16*k,16)}")
        a.label(L)
    a("s_barrier")
    stamp(a, 14)
    def o_fetch():
        a(f"""s_lshl_b32 s4, s8, 13
              s_add_u32 s4, s4, s30
              s_lshl_b32 s5, s8, 18
              s_add_u32 s5, s5, s13""")
        for j in range(4):
            a(f"""s_add_u32 m0, s4, {j*2048}
                  s_add_u32 s7, s5, {j*65536}
                  buffer_load_dwordx4 v1, s[{SWS}:{SWS+3}], s7 offen {LD} lds
                  buffer_load_dwordx4 v1, s[{SWS}:{SWS+3}], s7 offen offset:1024 {LD} lds""")
    a(f"""s_mov_b32 s60, 0
          s_mov_b32 s8, 0
          s_mov_b32 s9, 1
          s_mov_b64 exec, 0xffff
          buffer_load_dword v5, v25, s[{SWS}:{SWS+3}], 0 offen sc1
          s_mov_b64 exec, -1
          s_waitcnt vmcnt(1)""")
    a2_half(0, "L_h0")
    a("s_mov_b64 exec, 0xffff\ns_branch L_opw")
    a.label("L_opl")
    a(f"""buffer_load_dword v5, v25, s[{SWS}:{SWS+3}], 0 offen sc1
          s_add_u32 s60, s60, 1
          s_cmp_gt_u32 s60, {SPIN_MAX}
          s_cbranch_scc1 L_opx""")
    a.label("L_opw")
    a(f"""s_waitcnt vmcnt(0)
          v_cmp_ne_u32 vcc, s{sNON}, v5
          s_and_b32 s4, vcc_lo, 0xff
          s_and_b32 s9, vcc_lo, 0xff00
          s_cmp_lg_u32 s4, 0
          s_cbranch_scc1 L_opl""")
    a.label("L_opx")
    a("s_mov_b64 exec, -1")
    o_fetch()
    a(f"""s_mov_b32 s8, 1
          s_cmp_lg_u32 s9, 0
          s_cbranch_scc1 L_op2""")
    o_fetch()
    a2_half(1, "L_h1a")
    a("""s_waitcnt vmcnt(8)
         s_barrier
         s_branch L_op3""")
    a.label("L_op2")
    a(f"""s_lshl_b32 s3, s8, 3
          s_lshl_b32 s10, 0xff, s3
          s_mov_b32 s11, 0""")
    a2_half(1, "L_h1b")
    a("s_waitcnt vmcnt(0)\ns_barrier")
    poll(a, 25, 5, "s[10:11]")
    o_fetch()
    a.label("L_op3")
    stamp(a, 15)
    a("s_waitcnt vmcnt(0)\ns_barrier")
    a(f"""s_cmp_ge_u32 s{sLW}, 2
          s_cbranch_scc1 L_h2
          s_mov_b32 s3, {1024*2048}""")
    for mm in range(2):
        a(f"buffer_store_dwordx4 {vr(44+4*mm,4)}, v10, s[{SOUT}:{SOUT+3}], 0 offen offset:{32*mm} {A2F}")
    a("s_nop 7")
    for t in range(8): a(f"v_cvt_pk_bf16_f32 v{52+t}, v{A2+16+2*t}, v{A2+16+2*t+1}")
    for mm in range(2):
        a(f"buffer_store_dwordx4 {vr(52+4*mm,4)}, v10, s[{SOUT}:{SOUT+3}], s3 offen offset:{32*mm} {A2F}")
    a.label("L_h2")
    stamp(a, 13)
    stamp_flush(a, 18)
    a("s_endpgm")

    a.label("L_consumer")
    if "--nocpf" not in sys.argv:
        a(f"""s_cmp_lg_u32 s{sW}, 7
              s_cbranch_scc1 L_cpf1
              s_getpc_b64 s[4:5]""")
        a.label("L_cpf0")
        a(f"""s_sub_u32 s4, s4, L_cpf0-{KN}
              s_subb_u32 s5, s5, 0
              s_lshl_b32 s3, s{sJ}, 3
              v_add_u32 v1, s3, v0
              v_lshlrev_b32 v1, 7, v1
              v_cmp_gt_u32 vcc, L_last_insn-{KN}, v1
              s_and_b64 exec, vcc, 0xff
              s_cbranch_execz L_cpf2
              v_mov_b32 v3, s5
              v_add_co_u32 v2, vcc, s4, v1
              s_nop 1
              v_addc_co_u32 v3, vcc, 0, v3, vcc
              global_load_dword v166, v[2:3], off""")
        a.label("L_cpf2")
        a("s_mov_b64 exec, -1")
        a.label("L_cpf1")
    sIT, sDEL, sSL = 25, 26, 30
    sMASK = 28
    XA, WA = 8, 12
    ACC = 64
    a(f"""v_and_b32 v1, 31, v0
          v_lshrrev_b32 v2, 5, v0
          v_bfe_u32 v3, v0, 1, 3
          v_xor_b32 v3, v3, v2
          v_lshlrev_b32 v4, 7, v1
          s_or_b32 s3, s2, s{sW}
          s_cmp_lg_u32 s3, 4
          s_waitcnt lgkmcnt(0)""")
    srd(a, 56, kDBG, 256)
    a(f"""s_cbranch_scc1 L_nonpub
          s_cmp_lg_u32 s2, 0
          s_cbranch_scc1 L_nonpub
          s_memrealtime s[4:5]
          s_waitcnt lgkmcnt(0)
          s_or_b32 s4, s4, 1
          v_mov_b32 v5, s4
          s_mov_b64 exec, 1
          buffer_store_dword v5, off, s[56:59], 0 sc0 sc1
          s_mov_b64 exec, -1""")
    a.label("L_nonpub")
    srd(a, SWS, kWS, 0x1000000)
    if MODE == "auto":
        a(f"""s_cmp_lg_u32 s{sW}, 6
              s_cbranch_scc1 L_ptt
              s_lshl_b32 s3, s{sX}, 7
              s_add_u32 s3, s3, {WS_PT}
              buffer_load_dword v166, off, s[{SWS}:{SWS+3}], s3""")
        a.label("L_ptt")
    srd(a, SOUT, kOUT, 0x400000)
    if "--tlb" in sys.argv:
        srd(a, 44, kWO, 0x80000)
        a(f"""s_cmp_lg_u32 s{sW}, 5
              s_cbranch_scc1 L_tlb
              v_lshlrev_b32 v5, 20, v0
              s_lshl_b32 s3, s2, 7
              s_add_u32 s3, s3, 0x80000
              v_add_u32 v5, s3, v5
              s_mov_b64 exec, 0xffc
              buffer_load_dword v166, v5, s[{SWS}:{SWS+3}], 0 offen sc1
              s_mov_b64 exec, 15
              buffer_load_dword v166, v5, s[{SOUT}:{SOUT+3}], 0 offen
              s_mov_b64 exec, 1
              s_lshl_b32 s3, s2, 7
              buffer_load_dword v166, off, s[44:47], s3
              s_mov_b64 exec, -1""")
        a.label("L_tlb")
    for r in range(16):
        lo, hi = diag_mask(r)
        a(f"s_mov_b32 s{64+2*r}, {lo:#x}\ns_mov_b32 s{65+2*r}, {hi:#x}")
    for kk in range(4):
        a(f"""v_xor_b32 v5, {2*kk}, v3
              v_lshl_add_u32 v{XA+kk}, v5, 4, v4""")
    a(f"""s_getreg_b32 s{sPTV}, hwreg(HW_REG_XCC_ID, 0, 16)
          s_lshl_b32 s{sPTV}, s{sPTV}, 8
          v_bfe_u32 v3, v0, 2, 2
          v_lshl_add_u32 v7, v2, 3, v3             ; 8h + r
          v_lshlrev_b32 v4, 7, v7
          v_bfe_u32 v5, v0, 4, 1
          v_lshlrev_b32 v5, 1, v5
          v_bfe_u32 v6, v0, 1, 1
          v_add_u32 v5, v5, v6
          s_and_b32 s3, s{sW}, 2
          s_lshl_b32 s3, s3, 1
          v_add_u32 v5, s3, v5
          v_bfe_u32 v6, v0, 3, 1
          v_lshlrev_b32 v6, 2, v6
          v_xor_b32 v5, v5, v6
          v_lshl_add_u32 v4, v5, 4, v4
          v_and_b32 v6, 1, v0
          v_lshl_add_u32 v4, v6, 3, v4
          s_cmp_lt_u32 s{sW}, 4
          s_cbranch_scc1 L_kv""")
    sEH, sCA = 24, 25
    XF, AA, AB, WG, TM = 20, 36, 52, 100, 68
    XCH = WR + (7 % NS)*WSL + 16384
    DL, PH, SG, UA, NV, EI, XC = 12, 13, 14, 15, 3, 7, 164
    a(f"""s_and_b32 s3, s{sW}, 2
          s_lshl_b32 s3, s3, 11
          s_add_u32 s3, s3, {WR+16384}""")
    for kk in range(4): a(f"v_add_u32 v{XA+kk}, s3, v{XA+kk}")
    a(f"""s_and_b32 s{sEH}, s{sW}, 1
          s_lshr_b32 s3, s{sJ}, 2                  ; eb
          s_and_b32 s{sCA}, s3, {opt('--amask', 6)}
          s_lshl_b32 s3, s3, 1
          s_add_u32 s6, s3, s{sEH}
          s_lshl_b32 s3, s6, 4
          v_and_b32 v5, 15, v0
          v_add_u32 v{EI}, s3, v5                  ; e
          v_bfe_u32 v6, v0, 4, 1
          v_cvt_f32_u32 v{PH}, v6
          v_mul_f32 v{PH}, 0x3e800000, v{PH}
          s_cmp_eq_u32 s6, 0
          s_cselect_b32 s{sMASK}, 0x10000, 0
          s_mov_b32 s{sMASK+1}, s{sMASK}
          v_mov_b32 v6, 256
          v_cndmask_b32 v{EI}, v{EI}, v6, s[{sMASK}:{sMASK+1}]
          v_cndmask_b32 v{PH}, v{PH}, 0, s[{sMASK}:{sMASK+1}]
          v_cvt_f32_u32 v{DL}, v{EI}
          v_mul_f32 v{DL}, 0x3b000000, v{DL}       ; e/512
          v_and_b32 v6, 1, v0
          v_lshlrev_b32 v6, 31, v6
          v_or_b32 v{SG}, 1.0, v6
          s_mov_b32 s3, s{sTB}                     ; pi
          s_lshr_b32 s4, s6, 1
          s_lshl_b32 s4, s4, 5
          s_add_u32 s4, s4, s3
          s_lshl_b32 s4, s4, 1
          s_add_u32 s4, s4, s{sEH}
          s_lshl_b32 s26, s4, 2
          s_mul_i32 s3, s3, {U_GP}
          s_lshl_b32 s4, s6, 8
          s_add_u32 s3, s3, s4
          s_add_u32 s3, s3, {WS_U}
          v_lshl_add_u32 v5, v5, 4, s3
          v_lshrrev_b32 v6, 4, v0
          s_movk_i32 s4, {U_ROW}
          v_mad_u32_u24 v{UA}, v6, s4, v5
          s_lshl_b32 s3, s{sEH}, 11
          s_add_u32 s3, s3, {XCH}
          v_lshl_add_u32 v{XC}, v0, 4, s3""")
    def genw(c):
        o = [f"""s_add_u32 s3, s{sCA}, {c}
              s_and_b32 s3, s3, 7
              s_lshl_b32 s3, s3, 6
              v_lshl_add_u32 v{TM}, v2, 3, s3
              v_cvt_f32_u32 v{TM}, v{TM}
              v_mul_f32 v{TM}, v{TM}, v{DL}
              v_fract_f32 v{TM}, v{TM}
              v_add_f32 v{TM}, v{TM}, v{PH}"""]
        for kk in range(4):
            t = []
            for j in range(1, 8): t.append(f"v_add_f32 v{TM+j}, v{TM+j-1}, v{DL}")
            for j in range(8): t.append(f"v_cos_f32 v{TM+8+j}, v{TM+j}")
            t.append(f"v_fmamk_f32 v{TM}, v{DL}, 0x41100000, v{TM+7}")
            for j in range(4): t.append(f"v_cvt_pk_bf16_f32 v{WG+16*c+4*kk+j}, v{TM+8+2*j}, v{TM+9+2*j}")
            o.append("\n".join(t))
        return o
    CR, CI, NCI = 68+16, 68+24, WG
    NQ = [4, 16]
    def genc(m, T):
        t = []
        for j in range(8):
            cj = 16*m + (j % 4) + 8*(j // 4)
            t.append(f"""v_mad_u32_u24 v{T+j}, v1, {cj}, v{PH}
                  v_and_b32 v{T+j}, 31, v{T+j}
                  v_cvt_f32_u32 v{T+j}, v{T+j}
                  v_mul_f32 v{T+j}, 0x3d000000, v{T+j}""")
        u = [f"v_cos_f32 v{T+8+j}, v{T+j}" for j in range(8)] + [f"v_sin_f32 v{T+j}, v{T+j}" for j in range(8)] + ["s_nop 0"]
        for j in range(4):
            u.append(f"""v_cvt_pk_bf16_f32 v{CR+4*m+j}, v{T+8+2*j}, v{T+9+2*j}
                  v_cvt_pk_bf16_f32 v{CI+4*m+j}, -v{T+2*j}, -v{T+1+2*j}
                  v_cvt_pk_bf16_f32 v{NQ[m]+j}, v{T+2*j}, v{T+1+2*j}""")
        return ["\n".join(t[:4]), "\n".join(t[4:]), "\n".join(u[:17]), "\n".join(u[17:])]
    def genm(js):
        T, d = TM, 84 + 4*js
        return f"""v_add_f32 v{T}, v18, v17
              v_add_f32 v{T+1}, v{T}, v17
              v_add_f32 v{T+2}, v{T+1}, v17
              v_cos_f32 v{T+4}, v18
              v_cos_f32 v{T+5}, v{T}
              v_cos_f32 v{T+6}, v{T+1}
              v_cos_f32 v{T+7}, v{T+2}
              v_sin_f32 v{T+8}, v18
              v_sin_f32 v{T+9}, v{T}
              v_sin_f32 v{T+10}, v{T+1}
              v_sin_f32 v{T+11}, v{T+2}
              v_add_f32 v18, v{T+2}, v17
              v_cvt_pk_bf16_f32 v{d}, v{T+4}, v{T+8}
              v_cvt_pk_bf16_f32 v{d+1}, v{T+5}, v{T+9}
              v_cvt_pk_bf16_f32 v{d+2}, v{T+6}, v{T+10}
              v_cvt_pk_bf16_f32 v{d+3}, v{T+7}, v{T+11}"""
    mpar = f"""; A2 task: tc = 2x + (j&1), cr16 = j>>1, sigma = w&1, nt = (w>>1)&1
          s_lshl_b32 s6, s{sX}, 1
          s_and_b32 s4, s{sJ}, 1
          s_add_u32 s6, s6, s4                    ; tc
          s_lshr_b32 s7, s{sJ}, 1                 ; cr16
          s_lshl_b32 s10, s7, 5
          s_lshr_b32 s4, s6, 2
          s_lshl_b32 s4, s4, 3
          s_and_b32 s5, s6, 3
          s_add_u32 s4, s4, s5
          s_and_b32 s5, s{sW}, 1
          s_lshl_b32 s5, s5, 2
          s_add_u32 s5, s4, s5                    ; t1 source
          s_sub_u32 s4, 32, s5
          s_and_b32 s4, s4, 31
          s_cmp_lt_u32 s2, 128
          s_cselect_b32 s11, s5, s4
          s_cselect_b64 vcc, -1, 0
          v_and_b32 v{TM+1}, 31, v0
          v_lshl_add_u32 v{TM}, v{TM+1}, 5, s11
          v_lshrrev_b32 v{TM+3}, 5, v0                 ; h
          v_sub_u32 v{TM+2}, 2048, v{TM}
          v_cndmask_b32 v{TM+2}, v{TM+2}, v{TM}, vcc
          v_cvt_f32_u32 v{TM+2}, v{TM+2}
          v_mul_f32 v17, 0x3a000000, v{TM+2}
          v_lshlrev_b32 v{TM+2}, 5, v{TM+3}
          v_cvt_f32_u32 v{TM+2}, v{TM+2}
          v_mul_f32 v18, v17, v{TM+2}"""
    def either(p0, p1):
        if not p0 and not p1: return ""
        uid[0] += 1
        L = f"e{uid[0]}"
        return f"s_cmp_ge_u32 s{sW}, 6\ns_cbranch_scc1 {L}a\n{p0}\ns_branch {L}b\n{L}a:\n{p1}\n{L}b:"
    for c in range(2):
        for x in genw(c): a(x)
    a("s_barrier")
    def rda(g): return f"ds_read_b128 {vr(XF+4*(g % 4),4)}, v{XA+g % 4}" if g < 32 else ""
    a(rda(0)); a(rda(1))
    for st in range(8):
        fill = {0: genw(2), 1: genw(3), 2: genc(0, TM), 3: genc(1, TM)}.get(st, [])
        if st in (0, 1): fill = [fill[0] + "\n" + fill[1]] + fill[2:]
        if st == 1: fill[3] += f"\nv_lshlrev_b32 v{PH}, 2, v2\nv_mul_u32_u24 v{PH}, v{PH}, v1"
        if st == 2: fill = [either(fill[0], mpar), either(fill[1], genm(0)), either(fill[2], genm(1)), either(fill[3], "")]
        if st == 3: fill = [either(fill[0], genm(2)), either(fill[1], genm(3)), either(fill[2], ""), either(fill[3], "")]
        acc = AA if st < 4 else AB
        for kk in range(4):
            g = 4*st + kk
            mm_ = f"{MFMA} {vr(acc,16)}, {vr(XF+4*(g % 4),4)}, {vr(WG+16*(st%4)+4*kk,4)}, {'0' if (st % 4 == 0 and kk == 0) else vr(acc,16)}"
            if kk < 3:
                a("s_waitcnt lgkmcnt(1)")
                a(mm_)
                if kk < 2: a(rda(g+2))
                if fill: a(fill[kk])
            if kk == 2:
                if st < 7:
                    d = WSL if (st+1) % NS else -(NS-1)*WSL
                    a(f"s_mov_b32 s3, {d}")
                    for r in range(4): a(f"v_add_u32 v{XA+r}, s3, v{XA+r}")
                    a("s_waitcnt lgkmcnt(0)\ns_barrier")
                    a(rda(g+2))
                else:
                    a("s_waitcnt lgkmcnt(0)")
            if kk == 3:
                a(mm_); a(rda(g+2))
                if fill: a(fill[3])
    stamp(a, 7)
    PK, SV, RE, IM, D1, D2 = XF, WG+24, WG+32, WG+48, AA, AB
    a("s_nop 11")
    for r in range(16): a(f"v_fma_f32 v{AA+r}, v{AB+r}, v{SG}, v{AA+r}")
    for t in range(8): a(f"v_cvt_pk_bf16_f32 v{PK+t}, v{AA+2*t}, v{AA+2*t+1}")
    a(f"""s_barrier
          s_cmp_lt_u32 s{sW}, 6
          s_cbranch_scc1 L_a1e
          ds_write_b128 v{XC}, {vr(PK,4)}
          ds_write_b128 v{XC}, {vr(PK+4,4)} offset:1024
          v_mov_b32 v{TM}, 0
          v_mov_b32 v{TM+1}, 0
          v_mov_b32 v{TM+2}, 0
          v_mov_b32 v{TM+3}, 0
          v_mov_b32 v{TM+4}, {OWNF}
          ds_write_b128 v{TM+4}, {vr(TM,4)}
          s_waitcnt lgkmcnt(0)
          s_barrier""")
    a(f"""s_and_b32 s3, s{sW}, 1
          s_lshl_b32 s3, s3, 13
          s_add_u32 s3, s3, {MST}
          v_lshl_add_u32 v42, v0, 4, s3""")
    for js in range(4): a(f"ds_write_b128 v42, {vr(84+4*js,4)} offset:{js*1024}")
    for js in range(4, 8):
        a(genm(js))
        a(f"ds_write_b128 v42, {vr(84+4*js,4)} offset:{js*1024}")
    a("""s_barrier
         s_waitcnt lgkmcnt(0)
         s_barrier
         s_barrier
         s_branch L_att""")
    a.label("L_a1e")
    a(f"""s_barrier
          ds_read_b128 {vr(PK+8,4)}, v{XC}
          ds_read_b128 {vr(PK+12,4)}, v{XC} offset:1024
          s_waitcnt lgkmcnt(0)""")
    for t in range(8): a(f"v_permlane16_swap_b32 v{PK+t}, v{PK+8+t}")
    a(f"""s_mov_b32 s6, 0x00010001
          s_mov_b32 s7, 0x00010001
          s_cmp_eq_u32 s{sMASK}, 0
          s_cbranch_scc1 L_nosp1""")
    for t in range(8):
        a(f"v_mov_b32 v{SV+t}, v{PK+8+t}")
        a(f"v_cndmask_b32 v{PK+8+t}, v{PK+8+t}, 0, s[6:7]")
    a.label("L_nosp1")
    a("s_nop 1")
    def step1(aa, bb):
        a(f"{MFMA} {vr(RE,16)}, {vr(CR,4)}, {vr(aa,4)}, 0")
        a(f"{MFMA} {vr(IM,16)}, {vr(CI,4)}, {vr(aa,4)}, 0")
        a(f"{MFMA} {vr(RE,16)}, {vr(CR+4,4)}, {vr(aa+4,4)}, {vr(RE,16)}")
        a(f"{MFMA} {vr(IM,16)}, {vr(CI+4,4)}, {vr(aa+4,4)}, {vr(IM,16)}")
        if bb is not None:
            for m in range(2):
                a(f"{MFMA} {vr(RE,16)}, {vr(NQ[m],4)}, {vr(bb+4*m,4)}, {vr(RE,16)}")
                a(f"{MFMA} {vr(IM,16)}, {vr(CR+4*m,4)}, {vr(bb+4*m,4)}, {vr(IM,16)}")
    def upack(D):
        for r in range(16): a(f"v_cvt_pk_bf16_f32 v{D+r}, v{RE+r}, v{IM+r}")
        for g in range(4):
            d = D + 4*g
            a(f"""v_permlane32_swap_b32 v{d}, v{d+2}
                  v_permlane32_swap_b32 v{d+1}, v{d+3}""")
        for g in range(4):
            d = D + 4*g
            a(f"""v_permlane16_swap_b32 v{d}, v{d+1}
                  v_permlane16_swap_b32 v{d+2}, v{d+3}""")
    def ust(D, off):
        for g in range(4):
            a(f"""s_mov_b32 s4, {4*g*U_ROW + off}
                  buffer_store_dwordx4 {vr(D+4*g,4)}, v{UA}, s[{SWS}:{SWS+3}], s4 offen {ST}""")
    step1(PK, PK+8)
    a("s_nop 11" if UE else "s_barrier\ns_nop 10")
    upack(D1)
    a(f"""s_cmp_eq_u32 s{sMASK}, 0
          s_cbranch_scc1 L_nosp2""")
    step1(SV, None)
    a("s_nop 11")
    upack(D2)
    a.label("L_nosp2")
    stamp(a, 8)
    ust(D1, 0)
    a(f"""s_cmp_eq_u32 s{sMASK}, 0
          s_cbranch_scc1 L_nosp3
          s_mov_b64 exec, s[6:7]""")
    ust(D2, 4096)
    a("s_mov_b64 exec, -1")
    a.label("L_nosp3")
    get_tag(NV)
    a(f"""s_barrier
          s_barrier
          {"s_barrier" if UE else ""}
          s_add_u32 s3, s26, {WS_F3}""")
    publish(a, 3, 6)
    a("s_branch L_att")

    a.label("L_kv")
    FR = 32
    FK = 96
    def X(b, i): return FK + 12*b + 4*i
    def W(b): return FK + 12*b + 8
    a(f"""s_and_b32 s3, s{sW}, 1
          s_lshl_b32 s3, s3, 13
          s_add_u32 s3, s3, {WR}
          v_add_u32 v{WA}, s3, v4""")
    for r in range(32): a(f"v_mov_b32 v{ACC+r}, 0")
    a(f"""s_lshl_b32 s3, s2, 5
          s_add_u32 s3, s3, s{sW}
          s_lshl_b32 s3, s3, 2
          s_add_u32 s31, s3, {WS_F1}
          s_lshl_b32 s3, s{sHG}, 2
          s_and_b32 s4, s{sW}, 2
          s_add_u32 s3, s3, s4
          s_lshl_b32 s3, s3, 16
          s_lshl_b32 s4, s{sTB}, 11
          s_add_u32 s3, s3, s4
          s_add_u32 s3, s3, {WS_K}
          v_lshl_add_u32 v14, v0, 4, s3
          s_add_u32 s3, s3, {WS_V - WS_K}
          v_bfe_u32 v5, v0, 4, 1
          v_lshlrev_b32 v5, 16, v5
          v_lshl_add_u32 v5, v2, 8, v5
          v_and_b32 v6, 15, v0
          v_lshl_add_u32 v5, v6, 4, v5
          v_add_u32 v16, s3, v5
          v_mov_b32 v21, v4
          s_and_b32 s4, s{sW}, 2
          s_mul_i32 s3, s4, {HSTR}
          s_add_u32 s3, s3, 8192
          v_lshl_add_u32 v17, v0, 4, s3
          s_add_u32 s3, s3, 10240
          v_bfe_u32 v5, v0, 4, 1
          v_mul_u32_u24 v5, {HSTR}, v5
          v_lshl_add_u32 v5, v2, 8, v5
          v_lshl_add_u32 v5, v6, 4, v5
          v_add_u32 v18, s3, v5
          s_and_b32 s3, s{sW}, 1
          s_lshl_b32 s3, s3, 12
          s_lshl_b32 s4, s4, 10
          s_add_u32 s3, s3, s4
          s_add_u32 s3, s3, {Q_BASE}
          v_lshl_add_u32 v20, v0, 4, s3
          s_mov_b32 s8, {f2u(QSCALE):#x}
          s_mov_b32 s9, s8""")
    def rd(kk, b):
        return [f"ds_read_b128 {vr(X(b,i),4)}, v{XA+kk} offset:{i*4096}" for i in range(2)] + [f"ds_read_b64_tr_b16 {vr(W(b)+2*q,2)}, v{WA} offset:{kk*2048 + q*512}" for q in range(2)]
    def step(b, variant, r):
        m = []
        for i in range(2):
            A_, B_ = (W(b), X(b,i)) if variant == "K" else (X(b,i), W(b))
            m.append(f"{MFMA} {vr(ACC+16*i,16)}, {vr(A_,4)}, {vr(B_,4)}, {vr(ACC+16*i,16)}")
        for x in [m[0]] + r[:2] + [m[1]] + r[2:]: a(x)
    a(f"""s_mov_b32 s{sIT}, 0
          s_mov_b32 s{sSL}, 0
          s_mov_b32 s27, {WSL}""")
    stamp(a, 1)
    a("s_barrier")
    stamp(a, 2)
    for x in rd(0, 0) + rd(1, 1): a(x)
    a(f"""s_bitcmp1_b32 s{sW}, 0
          s_cbranch_scc1 L_loopV""")
    for variant in ("K", "V"):
        if ALIGN: a.L.append(".p2align 6")
        a.label(f"L_loop{variant}")
        for kk in range(3):
            a("s_waitcnt lgkmcnt(4)")
            step(kk, variant, rd(kk+2, kk+2) if kk < 2 else [])
        a(f"""s_add_u32 s{sSL}, s{sSL}, 1
              s_cmp_eq_u32 s{sSL}, {NS}
              s_cselect_b32 s{sDEL}, {-(NS-1)*WSL}, s27
              s_cselect_b32 s{sSL}, 0, s{sSL}
              v_add_u32 v{WA}, s{sDEL}, v{WA}""")
        for r in range(4): a(f"v_add_u32 v{XA+r}, 8192, v{XA+r}")
        a(f"""s_add_u32 s{sIT}, s{sIT}, 1
              s_cmp_eq_u32 s{sIT}, 8
              s_waitcnt lgkmcnt(0)
              s_cbranch_scc1 L_last{variant}
              s_barrier""")
        for x in rd(0, 0): a(x)
        step(3, variant, rd(1, 1))
        a(f"s_branch L_loop{variant}")
        a.label(f"L_last{variant}")
        step(3, variant, [])
        stamp(a, 3)
        a("s_mov_b32 s4, 65536\ns_nop 9")
        for i in range(2):
            for mm in range(2):
                d = FR + 8*i + 4*mm
                for t in range(4): a(f"v_cvt_pk_bf16_f32 v{d+t}, v{ACC+16*i+8*mm+2*t}, v{ACC+16*i+8*mm+2*t+1}")
                if variant == "K":
                    a(f"buffer_store_dwordx4 {vr(d,4)}, v14, s[{SWS}:{SWS+3}], {'s4' if mm else '0'} offen offset:{i*1024} {ST}")
                else:
                    a(f"buffer_store_dwordx4 {vr(d,4)}, v16, s[{SWS}:{SWS+3}], 0 offen offset:{i*1024+mm*512} {ST}")
        if variant == "K": a("s_branch L_kvdone")
    a.label("L_kvdone")
    stamp(a, 4)
    FQ = 96
    a(f"""s_and_b32 s3, s{sW}, 1
          s_lshl_b32 s3, s3, 12
          s_sub_u32 s3, s3, 65536
          v_add_u32 v{WA}, {QSLOT[0]}, v21""")
    for kk in range(4): a(f"v_add_u32 v{XA+kk}, s3, v{XA+kk}")
    a(f"""v_mov_b32 v19, {NONW}
          s_barrier
          ds_read_b32 v19, v19""")
    if PUBU < 0:
        a(f"s_waitcnt lgkmcnt(0)\nv_readfirstlane_b32 s{sNON}, v19\ns_nop 1")
        publish(a, 31, 6)
        stamp(a, 5)
    def rdq(u, k, b):
        c2, kk = k // 4, k % 4
        f = FQ + 8*b
        return [f"ds_read_b128 {vr(f,4)}, v{XA+kk} offset:{(2*u+c2)*8192}"] + [f"ds_read_b64_tr_b16 {vr(f+4+2*q,2)}, v{WA} offset:{c2*8192 + kk*2048 + q*512}" for q in range(2)]
    NBQ = 4
    for k in range(3):
        for x in rdq(0, k, k): a(x)
    for u in range(4):
        for k in range(8):
            g = 8*u + k
            last = k >= 5
            if k == 5 and u < 3:
                d = QSLOT[u+1] - QSLOT[u]
                if u == PUBU:
                    a(f"v_readfirstlane_b32 s{sNON}, v19\ns_nop 1")
                    publish(a, 31, 6)
                    stamp(a, 5)
                a(f"""s_waitcnt lgkmcnt(0)
                      s_barrier
                      v_add_u32 v{WA}, {d}, v{WA}""")
            nxt = rdq(u, k+3, (g+3) % NBQ) if k < 5 else (rdq(u+1, k-5, (g+3) % NBQ) if u < 3 else [])
            if not (k >= 5 and u < 3) or k > 5 or True:
                outst = 6 if (k < 5 or u < 3) else 3*(7-k)
                if not (k == 5 and u < 3) and not (k in (6, 7) and u < 3): a(f"s_waitcnt lgkmcnt({outst})")
            f = FQ + 8*(g % NBQ)
            a(f"{MFMA} {vr(ACC,16)}, {vr(f+4,4)}, {vr(f,4)}, {'0' if g == 0 else vr(ACC,16)}")
            for x in nxt: a(x)
    a("s_barrier")
    stamp(a, 6)
    a(f"""s_bitcmp1_b32 s{sW}, 0
          s_cbranch_scc1 L_cpv""")
    for i in range(2):
        for mm in range(2): a(f"ds_write_b128 v17, {vr(FR+8*i+4*mm,4)} offset:{mm*HSTR + i*1024}")
    a("s_branch L_cpq")
    a.label("L_cpv")
    for i in range(2):
        for mm in range(2): a(f"ds_write_b128 v18, {vr(FR+8*i+4*mm,4)} offset:{i*1024 + mm*512}")
    a.label("L_cpq")
    a("s_nop 5")
    for t in range(8): a(f"v_pk_mul_f32 {vr(ACC+2*t,2)}, {vr(ACC+2*t,2)}, s[8:9]")
    for t in range(8): a(f"v_cvt_pk_bf16_f32 v{FQ+t}, v{ACC+2*t}, v{ACC+2*t+1}")
    a(f"""ds_write_b128 v20, {vr(FQ,4)}
          ds_write_b128 v20, {vr(FQ+4,4)} offset:1024
          s_lshl_b32 s3, s{sW}, 2
          s_add_u32 s3, s3, {OWNF}
          v_mov_b32 v5, s3
          v_mov_b32 v6, 1
          s_waitcnt lgkmcnt(0)
          ds_write_b32 v5, v6""")

    a.label("L_att")
    QF = 4
    KA, VA_, NINF, MX = 2, 3, 8, 9
    KF, VF, PP, S, O, CN, CD, CF = 12, 24, 40, 48, 80, 96, 112, 128
    S3, P2, MK = 112, 128, 136
    sVM, sNF, sI = 8, 10, 11
    get_tag(5)
    a(f"""s_xor_b32 s{sPTV}, s{sPTV}, s{sNON}
          s_and_b32 s3, s{sW}, 3
          s_lshr_b32 s5, s{sW}, 2
          s_lshl_b32 s4, s{sHG}, 2
          s_add_u32 s{sHD}, s4, s3
          s_lshl_b32 s4, s{sTB}, 1
          s_add_u32 s4, s4, s5                     ; qb
          s_lshl_b32 s{sQO}, s4, 10
          s_lshl_b32 s6, s{sHD}, 16
          s_add_u32 s{sQO}, s{sQO}, s6
          s_min_u32 s{sNF}, s4, 7
          s_lshl_b32 s4, s4, 5
          s_add_u32 s4, s4, s{sHD}
          s_lshl_b32 s4, s4, 2
          s_add_u32 s{sF2}, s4, {WS_F2}
          v_lshlrev_b32 v1, 4, v0
          s_lshl_b32 s4, s{sW}, 10
          s_add_u32 s4, s4, {Q_BASE}
          v_add_u32 v4, s4, v1
          s_lshl_b32 s4, s3, 2
          s_add_u32 s4, s4, {KVF}
          v_mov_b32 v149, s4
          s_mul_i32 s4, s3, {HSTR}
          s_lshl_b32 s5, s5, 10
          s_add_u32 s4, s4, s5
          v_add_u32 v{KA}, s4, v1
          v_lshrrev_b32 v10, 5, v0
          v_and_b32 v11, 15, v0
          v_lshlrev_b32 v11, 4, v11
          v_lshl_add_u32 v11, v10, 8, v11
          s_add_u32 s4, s4, 10240
          v_add_u32 v{VA_}, s4, v11
          v_mov_b32 v{NINF}, 0xff800000
          s_mov_b32 s{sVM}, 0x0000ffff
          s_mov_b32 s{sVM+1}, 0x0000ffff
          s_mov_b32 s6, 0x00110000
          s_mov_b32 s7, 0x00110000
          v_mov_b32 v10, 0x3f803f80""")
    for t in range(16): a(f"v_cndmask_b32 v{VF+t}, 0, v10, s[6:7]")
    a("v_mov_b32 v10, 0xffff\nv_mov_b32 v11, 0xffff0000")
    for t in range(8):
        a(f"""v_cndmask_b32 v{MK+t}, 0, v10, s[{64+4*t}:{65+4*t}]
              v_cndmask_b32 v5, 0, v11, s[{66+4*t}:{67+4*t}]
              v_or_b32 v{MK+t}, v{MK+t}, v5""")
    stamp(a, 11)
    a(f"""v_mov_b32 v5, {OWNF}
          s_mov_b32 s60, 0""")
    a.label("L_ownw")
    a(f"""ds_read_b128 v[12:15], v5
          s_add_u32 s60, s60, 1
          s_cmp_gt_u32 s60, {SPIN_MAX*8}
          s_cbranch_scc1 L_ownx
          s_waitcnt lgkmcnt(0)
          v_and_b32 v12, v12, v13
          v_and_b32 v14, v14, v15
          v_and_b32 v12, v12, v14
          v_cmp_eq_u32 vcc, 0, v12
          s_cbranch_vccnz L_ownw""")
    a.label("L_ownx")
    stamp(a, 12)
    a(f"ds_read_b128 {vr(QF,4)}, v4")
    def kv_wait(lvl):
        uid[0] += 1
        L = f"kw{uid[0]}"
        a("s_mov_b32 s60, 0")
        a.label(L)
        a(f"""ds_read_b32 v11, v149
              s_add_u32 s60, s60, 1
              s_cmp_gt_u32 s60, {SPIN_MAX*8}
              s_cbranch_scc1 {L}x
              s_waitcnt lgkmcnt(0)
              v_readfirstlane_b32 s3, v11
              s_cmp_lt_u32 s3, {lvl}
              s_cbranch_scc1 {L}""")
        a.label(L + "x")
    def masks(val):
        return [f"""v_cndmask_b32 v{CD+r}, v{NINF}, {val}, s[{64+2*r}:{65+2*r}]
                  v_cndmask_b32 v{CF+r}, {val}, v{NINF}, s[{64+2*r}:{65+2*r}]""" for r in range(16)]
    def maxblk(S_, first):
        if first: a(f"v_max_f32 v{MX}, v{S_}, v{S_+1}")
        for t in range(2 if first else 0, 16, 2):
            a(f"v_max3_f32 v{MX}, v{S_+t}, v{S_+t+1}, v{MX}")
    def xhalf_max():
        a(f"""v_mov_b32 v10, v{MX}
              s_nop 1
              v_permlane32_swap_b32 v10, v{MX}
              s_nop 1
              v_max_f32 v{MX}, v{MX}, v10""")
    order = [7, 6, 5, 4, 3, 2, 1, 8, 0]
    def rdK(n): return f"ds_read_b128 {vr(KF+4*(n%3),4)}, v{KA} offset:{order[n]*1024}"
    def rdV(n):
        b = VF + 8*(n % 2)
        return f"""s_mov_b64 exec, s[{sVM}:{sVM+1}]
              ds_read_b128 {vr(b,4)}, v{VA_} offset:{order[n]*1024}
              ds_read_b128 {vr(b+4,4)}, v{VA_} offset:{order[n]*1024+512}
              s_mov_b64 exec, -1"""
    def mS(k, Dd): return f"{MFMA} {vr(Dd,16)}, {vr(KF+4*(k%3),4)}, {vr(QF,4)}, {vr(CN,16)}"
    a(f"s_setprio {opt(chr(45)*2+'p0', 3)}")
    PTN = opt("--ptn", 1)
    if PTN < 0: pt_load()
    if FORCE_SLOW: a("s_branch L_preslow")
    CI_ = 149
    def fast(first):
        def mSv(k, Dd, tag=''):
            if not first or k == 7: a(mS(k, Dd)); return
            inv = f"{MFMA} {vr(Dd,16)}, {vr(KF+4*(k%3),4)}, {vr(QF,4)}, {vr(CI_+1,16)}"
            if k == 8: a(inv); return
            a(f"""s_cmp_gt_u32 s{sNF}, {k}
                  s_cbranch_scc1 L_fv{k}{tag}
                  {inv}
                  s_branch L_fw{k}{tag}""")
            a.label(f"L_fv{k}{tag}")
            a(mS(k, Dd))
            a.label(f"L_fw{k}{tag}")
        F = int(first)
        if first:
            for r in range(16): a(f"v_mov_b32 v{CI_+1+r}, v{NINF}")
        def standin():
            a(f"""v_max3_f32 v{MX}, v{S+16}, v{S+17}, v{S+18}
                  v_max3_f32 v10, v{S+19}, v{S+20}, v{S+21}
                  v_max3_f32 v11, v{S+22}, v{S+23}, v{S+24}
                  v_max3_f32 v{MX}, v{S+25}, v{S+26}, v{MX}
                  v_max3_f32 v10, v{S+27}, v{S+28}, v10
                  v_max3_f32 v11, v{S+29}, v{S+30}, v11
                  v_max3_f32 v{MX}, v{S+31}, v{MX}, v10
                  v_max_f32 v{MX}, v{MX}, v11""")
            xhalf_max()
            a(f"v_sub_f32 v{CN}, 0xc2700000, v{MX}")
            for r in range(1, 16): a(f"v_mov_b32 v{CN+r}, v{CN}")
        a(f"""s_cmp_lt_u32 s{sW}, 4
              s_cbranch_scc1 L_q0{F}""")
        a(rdK(0)); a(rdV(0))
        a(f"""s_waitcnt lgkmcnt(2)
              {MFMA} {vr(S+16,16)}, {vr(KF,4)}, {vr(QF,4)}, 0
              s_nop 11""")
        standin()
        a("s_nop 1"); a(mS(0, S)); a("s_nop 11")
        for r in range(12): a(f"v_exp_f32 v{S+r}, v{S+r}")
        for t in range(4): a(f"v_cvt_pk_bf16_f32 v{PP+t}, v{S+2*t}, v{S+2*t+1}")
        a(f"""v_exp_f32 v{S+12}, v{S+12}
              s_waitcnt lgkmcnt(0)
              {MFMA} {vr(O,16)}, {vr(VF,4)}, {vr(PP,4)}, 0""")
        for r in range(13, 16): a(f"v_exp_f32 v{S+r}, v{S+r}")
        for t in range(4, 8): a(f"v_cvt_pk_bf16_f32 v{PP+t}, v{S+2*t}, v{S+2*t+1}")
        stamp(a, 30)
        a("s_barrier")
        a(rdK(1)); a("s_barrier"); a(rdK(2)); a(rdV(1))
        a("s_waitcnt lgkmcnt(3)")
        mSv(1, S+16, "b")
        a(f"s_nop 10\ns_branch L_n1{F}")
        a.label(f"L_q0{F}")
        a(f"""ds_read_b128 {vr(KF+8,4)}, v{KA} offset:{8*1024}
              s_waitcnt lgkmcnt(0)
              {MFMA} {vr(S+16,16)}, {vr(KF+8,4)}, {vr(QF,4)}, 0
              s_nop 11""")
        for r in range(16): a(f"v_cndmask_b32 v{S+16+r}, v{NINF}, v{S+16+r}, s[{64+2*r}:{65+2*r}]")
        standin()
        stamp(a, 30)
        a("s_barrier")
        a(rdK(0)); a(rdK(1)); a(rdV(0))
        a("s_waitcnt lgkmcnt(3)")
        mSv(0, S)
        prev = None
        for n in range(8):
            Sn = S + 16*(n % 2); Vn = VF + 8*(n % 2)
            P_ = PP if n % 2 == 0 else P2
            ex = lambda r: a(f"v_exp_f32 v{Sn+r}, v{Sn+r}")
            cv = lambda t: a(f"v_cvt_pk_bf16_f32 v{P_+t}, v{Sn+2*t}, v{Sn+2*t+1}")
            if n == 1: a.label(f"L_n1{F}")
            if n == PTN: pt_load()
            PR = dict(zip([int(c) for c in opt("--pr", "357")], (2, 1, 0)))
            if n in PR: a(f"s_setprio {PR[n]}")
            if n in (2, 4):
                a(f"""v_readfirstlane_b32 s3, v11
                      s_cmp_ge_u32 s3, {n//2}
                      s_cbranch_scc1 L_kf{int(first)}{n}""")
                kv_wait(n//2)
                a.label(f"L_kf{int(first)}{n}")
            if n == 0:
                a("s_waitcnt lgkmcnt(2)"); mSv(1, S+16); a("s_barrier"); a(rdK(2)); a(rdV(1)); a("s_nop 3")
            if n == 7:
                a("s_nop 1"); a(prev); a("s_nop 2")
                for r in range(16): a(f"v_cndmask_b32 v{Sn+r}, v{S3+r}, v{Sn+r}, s[{64+2*r}:{65+2*r}]")
            for r in range(4): ex(r)
            if 0 < n < 7: a(prev)
            if n == 7: a(rdV(8))
            for r in range(4, 8): ex(r)
            if 0 < n < 7:
                a("s_waitcnt lgkmcnt(2)"); mSv(n+1, S + 16*((n+1) % 2))
                if n in (1, 3): a("ds_read_b32 v11, v149")
                a(rdK(n+2)); a(rdV(n+1))
            for t in range(4): cv(t)
            for r in range(8, 12): ex(r)
            if n < 7:
                a("s_waitcnt lgkmcnt(3)")
                a(f"{MFMA} {vr(O,16)}, {vr(Vn,4)}, {vr(P_,4)}, {'0' if n == 0 else vr(O,16)}")
            else:
                for t in range(4): a(f"v_and_b32 v{PP+t}, v{MK+t}, v{P_+t}\nv_xor_b32 v{P_+t}, v{PP+t}, v{P_+t}")
                a("s_waitcnt lgkmcnt(2)")
                a(f"{MFMA} {vr(O,16)}, {vr(Vn,4)}, {vr(PP,4)}, {vr(O,16)}")
            ex(12); ex(13)
            if n == 6: a("s_waitcnt lgkmcnt(2)"); mSv(8, S3)
            if n == 7: a("s_waitcnt lgkmcnt(0)"); a(f"{MFMA} {vr(O,16)}, {vr(VF,4)}, {vr(P2,4)}, {vr(O,16)}")
            ex(14); ex(15)
            for t in range(4, 8): cv(t)
            prev = f"{MFMA} {vr(O,16)}, {vr(Vn+4,4)}, {vr(P_+4,4)}, {vr(O,16)}"
        for t in range(4, 8): a(f"v_and_b32 v{PP+t}, v{MK+t}, v{P2+t}\nv_xor_b32 v{P2+t}, v{PP+t}, v{P2+t}")
        a(f"""s_nop 0
          {MFMA} {vr(O,16)}, {vr(VF+12,4)}, {vr(PP+4,4)}, {vr(O,16)}
          {MFMA} {vr(O,16)}, {vr(VF+4,4)}, {vr(P2+4,4)}, {vr(O,16)}
          s_waitcnt vmcnt(0)
          v_cmp_ne_u32 s[6:7], s{sPTV}, v148
          v_mov_b32 v14, 0x7f800000
          s_nop 8
          v_add_f32 v10, |v{O}|, |v{O+1}|
          v_add_f32 v11, |v{O+2}|, |v{O+3}|
          v_add_f32 v12, |v{O+4}|, |v{O+5}|
          v_add_f32 v13, |v{O+6}|, |v{O+7}|
          v_add_f32 v10, v10, v11
          v_add_f32 v12, v12, v13
          v_mul_f32 v11, 0x43800000, v{O+8}
          v_add_f32 v10, v10, v12
          v_add_f32 v11, v10, v11
          v_rcp_f32 v10, v{O+8}
          v_cmp_lt_f32 vcc, v11, v14
          s_cmp_eq_u64 vcc, -1
          s_cbranch_scc1 L_norm
          s_branch L_slow""")
    a(f"""s_cmp_eq_u32 s{sR}, 0
          s_cbranch_scc1 L_first""")
    fast(False)
    a.label("L_first")
    fast(True)
    a.label("L_preslow")
    a("s_barrier\ns_barrier")
    kv_wait(2)
    if PTN >= 0: pt_load()
    a.label("L_slow")
    a(f"""s_setprio 0
          s_sub_u32 s3, 8, s{sNF}
          s_lshl_b32 s3, s3, 10
          s_waitcnt lgkmcnt(0)""")
    for x in masks("0"): a(x)
    a(f"""ds_read_b128 {vr(KF,4)}, v{KA} offset:{8*1024}
          s_waitcnt lgkmcnt(0)
          {MFMA} {vr(S,16)}, {vr(KF,4)}, {vr(QF,4)}, {vr(CD,16)}
          s_nop 11""")
    maxblk(S, True)
    a(f"""s_cmp_eq_u32 s{sR}, 0
          s_cbranch_scc1 L_s1nofar
          ds_read_b128 {vr(KF,4)}, v{KA}
          s_waitcnt lgkmcnt(0)
          {MFMA} {vr(S,16)}, {vr(KF,4)}, {vr(QF,4)}, {vr(CF,16)}
          s_nop 11""")
    maxblk(S, False)
    a.label("L_s1nofar")
    a(f"""s_mov_b32 s{sI}, s{sNF}
          v_add_u32 v10, s3, v{KA}
          s_cmp_eq_u32 s{sI}, 0
          s_cbranch_scc1 L_s1done""")
    a.label("L_s1loop")
    a(f"""ds_read_b128 {vr(KF,4)}, v10
          v_add_u32 v10, 1024, v10
          s_waitcnt lgkmcnt(0)
          {MFMA} {vr(S,16)}, {vr(KF,4)}, {vr(QF,4)}, 0
          s_nop 11""")
    maxblk(S, False)
    a(f"""s_sub_u32 s{sI}, s{sI}, 1
          s_cmp_lg_u32 s{sI}, 0
          s_cbranch_scc1 L_s1loop""")
    a.label("L_s1done")
    xhalf_max()
    a(f"v_sub_f32 v{MX}, 0, v{MX}")
    for x in masks(f"v{MX}"): a(x)
    for r in range(16): a(f"v_mov_b32 v{CN+r}, v{MX}")
    def pvblk(kaddr, vaddr, off, C, first):
        a(f"""ds_read_b128 {vr(KF,4)}, v{kaddr} offset:{off}
              s_mov_b64 exec, s[{sVM}:{sVM+1}]
              ds_read_b128 {vr(VF,4)}, v{vaddr} offset:{off}
              ds_read_b128 {vr(VF+4,4)}, v{vaddr} offset:{off+512}
              s_mov_b64 exec, -1
              s_waitcnt lgkmcnt(0)
              {MFMA} {vr(S,16)}, {vr(KF,4)}, {vr(QF,4)}, {vr(C,16)}
              s_nop 11""")
        for r in range(16): a(f"v_exp_f32 v{S+r}, v{S+r}")
        for t in range(8): a(f"v_cvt_pk_bf16_f32 v{PP+t}, v{S+2*t}, v{S+2*t+1}")
        a("s_nop 1")
        a(f"{MFMA} {vr(O,16)}, {vr(VF,4)}, {vr(PP,4)}, {'0' if first else vr(O,16)}")
        a(f"{MFMA} {vr(O,16)}, {vr(VF+4,4)}, {vr(PP+4,4)}, {vr(O,16)}")
    pvblk(KA, VA_, 8*1024, CD, True)
    a(f"""s_cmp_eq_u32 s{sR}, 0
          s_cbranch_scc1 L_s2nofar""")
    pvblk(KA, VA_, 0, CF, False)
    a.label("L_s2nofar")
    a(f"""s_mov_b32 s{sI}, s{sNF}
          v_add_u32 v10, s3, v{KA}
          v_add_u32 v11, s3, v{VA_}
          s_cmp_eq_u32 s{sI}, 0
          s_cbranch_scc1 L_s2done""")
    a.label("L_s2loop")
    pvblk(10, 11, 0, CN, False)
    a(f"""v_add_u32 v10, 1024, v10
          v_add_u32 v11, 1024, v11
          s_sub_u32 s{sI}, s{sI}, 1
          s_cmp_lg_u32 s{sI}, 0
          s_cbranch_scc1 L_s2loop""")
    a.label("L_s2done")
    a(f"""s_waitcnt vmcnt(0)
          v_cmp_ne_u32 s[6:7], s{sPTV}, v148
          s_nop 12
          v_rcp_f32 v10, v{O+8}
          s_nop 0""")
    a.label("L_norm")
    for t in range(8): a(f"v_mul_f32 v{O+t}, v10, v{O+t}")
    for t in range(4): a(f"v_cvt_pk_bf16_f32 v{PP+t}, v{O+2*t}, v{O+2*t+1}")
    a(f"s_add_u32 s4, s{sQO}, {WS_O}")
    if MODE == "auto":
        a(f"""s_cmp_eq_u64 s[6:7], 0
              s_cbranch_scc0 L_ox
              buffer_store_dwordx4 {vr(PP,4)}, v1, s[{SWS}:{SWS+3}], s4 offen""")
        stamp(a, 13)
        publish(a, sF2, 10, flav="")
        a("s_branch L_od")
        a.label("L_ox")
    a(f"buffer_store_dwordx4 {vr(PP,4)}, v1, s[{SWS}:{SWS+3}], s4 offen {ST}")
    stamp(a, 13 if MODE != "auto" else 19)
    publish(a, sF2, 10)
    a.label("L_od")
    stamp(a, 14)
    a(f"""s_barrier
          s_cmp_ge_u32 s{sW}, 4
          s_cbranch_scc1 L_fin""")
    OA, WA2, ACC2, W2, O2 = 8, 9, 16, 32, 32
    a(f"""s_and_b32 s5, s{sW}, 1
          v_lshrrev_b32 v2, 5, v0
          v_bfe_u32 v3, v0, 2, 2
          v_lshl_add_u32 v4, v2, 2, v3
          v_lshlrev_b32 v4, 7, v4
          v_bfe_u32 v5, v0, 4, 1
          v_lshlrev_b32 v5, 1, v5
          v_and_b32 v6, 1, v0
          v_add_u32 v5, v5, v6
          s_and_b32 s3, s{sW}, 2
          s_lshl_b32 s3, s3, 1
          v_add_u32 v5, s3, v5
          v_bfe_u32 v6, v0, 3, 1
          v_lshlrev_b32 v6, 2, v6
          v_xor_b32 v5, v5, v6
          v_lshl_add_u32 v4, v5, 4, v4
          v_bfe_u32 v6, v0, 1, 1
          v_lshl_add_u32 v4, v6, 3, v4
          v_add_u32 v{WA2}, {WO_BASE}, v4
          s_lshl_b32 s3, s5, 10
          v_add_u32 v{OA}, s3, v1
          v_and_b32 v14, 31, v0
          s_lshl_b32 s3, s{sTB}, 6
          s_lshl_b32 s5, s5, 5
          s_add_u32 s3, s3, s5
          v_add_u32 v14, s3, v14
          v_lshlrev_b32 v14, 11, v14
          v_lshl_add_u32 v14, v2, 4, v14
          s_lshl_b32 s3, s{sHG}, 7
          s_and_b32 s5, s{sW}, 2
          s_lshl_b32 s5, s5, 5
          s_add_u32 s3, s3, s5
          s_add_u32 s3, s3, 1024
          v_add_u32 v14, s3, v14
          v_mov_b32 v15, v{OA}""")
    heads = [8*(k//4 % 4) + 4*(k//16) + k % 4 for k in range(32)]
    OB = [2, 6, 10, 160]
    for k in range(32):
        for q in range(2):
            a(f"ds_read_b64_tr_b16 {vr(W2+4*k+2*q,2)}, v{WA2} offset:{heads[k]*2048 + q*1024}")
    a("s_waitcnt lgkmcnt(0)\ns_barrier")
    stamp(a, 28)
    rdo = lambda k: f"ds_read_b128 {vr(OB[k % 4],4)}, v15 offset:{heads[k]*2048}"
    for k in range(4): a(rdo(k))
    for k in range(32):
        if k == 12:
            a("s_barrier")
            stamp(a, 16)
        a(f"s_waitcnt lgkmcnt({min(3, 31-k)})")
        a(f"{MFMA} {vr(ACC2,16)}, {vr(W2+4*k,4)}, {vr(OB[k % 4],4)}, {'0' if k == 0 else vr(ACC2,16)}")
        if k + 4 < 32: a(rdo(k+4))
    a("s_nop 11")
    for mm in range(2):
        for t in range(4):
            a(f"v_cvt_pk_bf16_f32 v{O2+4*mm+t}, v{ACC2+8*mm+2*t}, v{ACC2+8*mm+2*t+1}")
        a(f"buffer_store_dwordx4 {vr(O2+4*mm,4)}, v14, s[{SOUT}:{SOUT+3}], 0 offen offset:{32*mm} {OPF}")
    stamp(a, 17)
    a.label("L_fin")
    stamp_flush(a, 18)
    a.label("L_end")
    a.label("L_last_insn")
    a("s_endpgm")
    return a

def main():
    a = gen()
    hdr = f"""; {NAME} : one fused kernel (generated by my gen11.py)
; @launch grid=(256,1,1) block=(768,1,1) lds=163840
.amdgcn_target "amdgcn-amd-amdhsa--gfx950"
.text
"""
    kd = f""".section .rodata,"a"
.p2align 6
.amdhsa_kernel {KN}
  .amdhsa_next_free_vgpr 168
  .amdhsa_next_free_sgpr 102
  .amdhsa_accum_offset 168
  .amdhsa_group_segment_fixed_size 0
  .amdhsa_kernarg_size 88
  .amdhsa_user_sgpr_count 2
  .amdhsa_user_sgpr_kernarg_segment_ptr 1
  .amdhsa_system_sgpr_workgroup_id_x 1
.end_amdhsa_kernel
"""
    path = sys.argv[1] if len(sys.argv) > 1 and sys.argv[1].endswith(".s") else f"cdna_kernels/{NAME}.s"
    open(path, "w").write(hdr + a.text() + kd)
main()
```

```python
import sys, struct, math

NAME = "concat_heads__spectral_fnet__sliding_block__prompt"
KN = NAME + "_kernel"
WS_Q, WS_K, WS_V, WS_O, WS_U = 0, 2 << 20, 4 << 20, 6 << 20, 8 << 20
WS_F1, WS_F2, WS_PT, WS_F3 = (11 << 20), (11 << 20) + 0x20000, (11 << 20) + 0x60000, (11 << 20) + 0x70000
U_ROW = 4224
U_GP = 16 * U_ROW
U_SIZE = 32 * U_GP
QSCALE = 0.25 * math.log2(math.e)
uid = [0]
STAMP = "--stamp" in sys.argv
FORCE_SLOW = "--slow" in sys.argv
SKIP = set(int(x) for x in sys.argv[sys.argv.index("--skip")+1].split(",")) if "--skip" in sys.argv else set()
ST = sys.argv[sys.argv.index("--st")+1].replace("+", " ") if "--st" in sys.argv else "sc1"
LD = "sc1"
SPIN_MAX = 200000
def opt(name, default):
    return type(default)(sys.argv[sys.argv.index(name)+1]) if name in sys.argv else default
PDELAY = opt("--pdelay", 0)
PIPE = "--pipe" in sys.argv
FULLF = "--fullf" in sys.argv
KVLD = sys.argv[sys.argv.index("--kvld")+1].replace("+", " ").replace("none", "") if "--kvld" in sys.argv else "sc1"
A2ST = "sc1" if "--a2sc1" in sys.argv else ""
WB = "--wb" in sys.argv

def f2u(x): return struct.unpack("<I", struct.pack("<f", x))[0]

class Asm:
    def __init__(self): self.L = []
    def __call__(self, s):
        for line in s.strip("\n").split("\n"):
            line = line.strip()
            if line: self.L.append(line if line.endswith(":") and " " not in line else "  " + line)
    def label(self, n): self.L.append(n + ":")
    def text(self): return "\n".join(self.L) + "\n"

def vr(b, n=1): return f"v{b}" if n == 1 else f"v[{b}:{b+n-1}]"
MFMA = "v_mfma_f32_32x32x16_bf16"

kAX, kSR, kSI, kDR, kDI, kBX, kWQ, kWO, kOUT, kDBG, kWS = 64, 66, 68, 70, 72, 74, 76, 78, 80, 82, 84
sTB, sHG, sJ, sW, sNON = 16, 17, 18, 19, 20
sHD, sR = 21, 22
SWS = 32
VST = 167

def srd(a, d, k, size, off=0):
    if off:
        a(f"s_add_u32 s{d}, s{k}, {off}\ns_addc_u32 s{d+1}, s{k+1}, 0")
    else:
        a(f"s_mov_b32 s{d}, s{k}\ns_mov_b32 s{d+1}, s{k+1}")
    a(f"s_mov_b32 s{d+2}, {size}\ns_mov_b32 s{d+3}, 0x20000")

AMP = [int(x) for x in sys.argv[sys.argv.index("--amp")+1].split(",")] if "--amp" in sys.argv else None
def amp_end(a):
    if not AMP: return
    uid[0] += 1
    L = f"amp{uid[0]}"
    a(f"""s_cmp_lg_u32 s2, {AMP[3]}
          s_cbranch_scc1 {L}x
          s_cmp_lg_u32 s{sW}, {AMP[4]}
          s_cbranch_scc1 {L}x
          s_waitcnt vmcnt(0)
          s_memrealtime s[62:63]
          s_sub_u32 s100, s101, s100
          s_min_u32 s100, s100, 10000
          s_mul_i32 s100, s100, {AMP[2]}
          s_waitcnt lgkmcnt(0)
          s_add_u32 s100, s100, s62""")
    a.label(L)
    a(f"""s_memrealtime s[62:63]
          s_waitcnt lgkmcnt(0)
          s_sub_u32 s61, s62, s100
          s_cmp_lt_i32 s61, 0
          s_cbranch_scc1 {L}""")
    a.label(L + "x")
GMAX = None
def stamp(a, idx):
    if "--jit" in sys.argv and idx > 0:
        uid[0] += 1
        seed = int(sys.argv[sys.argv.index("--jit")+1])
        a(f"""s_cselect_b32 s96, 1, 0
              s_mul_i32 s97, s2, {(2654435761*(idx+seed*37)+12345) & 0x7fffffff | 1}
              s_mul_i32 s98, s{sW}, {(40503*(idx+3+seed)) | 1}
              s_xor_b32 s97, s97, s98
              s_mul_i32 s97, s97, 0x45d9f3b
              s_bfe_u32 s97, s97, 0x30010
              s_cmp_lg_u32 s97, 0
              s_cbranch_scc1 jt{uid[0]}
              s_sleep {64 + (idx*29 + seed*11) % 60}""")
        a.label(f"jt{uid[0]}")
        a("s_cmp_lg_u32 s96, 0")
    if AMP and idx in AMP[:2]:
        a(f"""s_memrealtime s[62:63]
              s_waitcnt lgkmcnt(0)
              s_mov_b32 s{100 + AMP[:2].index(idx)}, s62""")
    if not STAMP: return
    if idx in SKIP: return
    a(f"""s_memrealtime s[96:97]
          s_memtime s[98:99]
          s_waitcnt lgkmcnt(0)
          v_writelane_b32 v{VST}, s96, {idx}
          v_writelane_b32 v{VST}, s98, {idx+32}""")
def stamp_flush(a, idx):
    if AMP:
        if idx in AMP[:2]: a("s_waitcnt vmcnt(0)")
        stamp(a, idx)
        amp_end(a)
    if not STAMP: return
    a("s_waitcnt vmcnt(0)")
    stamp(a, idx)
    srd(a, 88, SWS, 0x100000, 16 << 20)
    a(f"""s_mov_b64 exec, -1
          s_lshl_b32 s92, s2, 12
          s_lshl_b32 s93, s{sW}, 8
          s_add_u32 s92, s92, s93
          v_mbcnt_lo_u32_b32 v2, -1, 0
          v_mbcnt_hi_u32_b32 v2, -1, v2
          v_lshlrev_b32 v2, 2, v2
          buffer_store_dword v{VST}, v2, s[88:91], s92 offen""")

def poll(a, vaddr, vtmp, nl_mask, srdreg=SWS):
    uid[0] += 1
    L = f"poll{uid[0]}"
    a(f"""s_mov_b32 s60, 0
          s_mov_b64 exec, {nl_mask}""")
    a.label(L)
    a(f"""buffer_load_dword v{vtmp}, v{vaddr}, s[{srdreg}:{srdreg+3}], 0 offen sc1
          s_add_u32 s60, s60, 1
          s_cmp_gt_u32 s60, {SPIN_MAX}
          s_cbranch_scc1 {L}x
          s_waitcnt vmcnt(0)
          v_cmp_ne_u32 vcc, s{sNON}, v{vtmp}
          s_cbranch_vccnz {L}""")
    a.label(L + "x")
    a("s_mov_b64 exec, -1")

def poll_pipe(a, vaddr, vt, nl_mask, gap=2):
    uid[0] += 1
    L = f"pp{uid[0]}"
    ld = lambda k: f"buffer_load_dword v{vt+k}, v{vaddr}, s[{SWS}:{SWS+3}], 0 offen sc1"
    a(f"""s_mov_b32 s60, 0
          s_mov_b64 exec, {nl_mask}
          {ld(0)}
          s_sleep {gap}
          {ld(1)}""")
    a.label(L)
    for k in range(3):
        a(f"""s_sleep {gap}
              {ld((k+2)%3)}
              s_waitcnt vmcnt(2)
              v_cmp_ne_u32 vcc, s{sNON}, v{vt+k}
              s_cbranch_vccz {L}x""")
    a(f"""s_add_u32 s60, s60, 1
          s_cmp_lt_u32 s60, {SPIN_MAX}
          s_cbranch_scc1 {L}""")
    a.label(L + "x")
    a("s_mov_b64 exec, -1")

def poll2(a, va, vt):
    uid[0] += 1
    L = f"pq{uid[0]}"
    a("s_mov_b32 s60, 0")
    a.label(L)
    a(f"""buffer_load_dwordx2 v[{vt}:{vt+1}], v{va}, s[{SWS}:{SWS+3}], 0 offen sc1
          s_add_u32 s60, s60, 1
          s_cmp_gt_u32 s60, {SPIN_MAX}
          s_cbranch_scc1 {L}x
          s_waitcnt vmcnt(0)
          v_cmp_ne_u32 vcc, s{sNON}, v{vt}
          v_cmp_ne_u32 s[10:11], s{sNON}, v{vt+1}
          s_or_b64 vcc, vcc, s[10:11]
          s_cbranch_vccnz {L}""")
    a.label(L + "x")

def publish(a, soff, vtmp, cnt=0, flav=None):
    if FULLF:
        a(f"""v_mov_b32 v{vtmp}, s{sNON}
              v_mov_b32 v{vtmp+1}, s{sNON}
              s_waitcnt vmcnt({cnt})
              s_mov_b64 exec, 0xffff
              buffer_store_dwordx2 v[{vtmp}:{vtmp+1}], v166, s[{SWS}:{SWS+3}], s{soff} offen {ST if flav is None else flav}
              s_mov_b64 exec, -1""")
        return
    a(f"""s_waitcnt vmcnt({cnt})
          v_mov_b32 v{vtmp}, s{sNON}
          s_mov_b64 exec, 1
          buffer_store_dword v{vtmp}, off, s[{SWS}:{SWS+3}], s{soff} {ST if flav is None else flav}
          s_mov_b64 exec, -1""")

def nonce_wait(a, vtmp, first_loaded):
    uid[0] += 1
    L = f"non{uid[0]}"
    a("s_mov_b32 s60, 0")
    if first_loaded:
        a(f"s_branch {L}c")
    a.label(L)
    a(f"""buffer_load_dword v{vtmp}, off, s[56:59], 0 sc1
          s_waitcnt vmcnt(0)""")
    a.label(L + "c")
    a(f"""v_readfirstlane_b32 s{sNON}, v{vtmp}
          s_add_u32 s60, s60, 1
          s_cmp_gt_u32 s60, {SPIN_MAX}
          s_cbranch_scc1 {L}x
          s_cmp_eq_u32 s{sNON}, 0
          s_cbranch_scc1 {L}""")
    a.label(L + "x")

def diag_mask(r):
    g, i = r // 4, r % 4
    return (0xffffffff << (8*g+i)) & 0xffffffff, (0xffffffff << (8*g+i+4)) & 0xffffffff

MODE = sys.argv[sys.argv.index("--mode")+1] if "--mode" in sys.argv else "auto"
A2F = opt("--a2st", "").replace("+", " ")
OPF = opt("--opst", "").replace("+", " ")
XR, WR, WSL = 0, 65536, 24576
NS = opt('--ns', 3)
QSLOT = [WR + 2*WSL, WR, WR + 3*WSL, WR + WSL] if NS == 3 else [WR + k*WSL for k in range(4)]
UPN = opt('--upn', 1)
PUBU = opt('--pubu', 0)
Q_BASE = 81920
WO_BASE = 98304
HSTR = 20480
UE = '--noue' not in sys.argv
ALIGN = '--noalign' not in sys.argv
OWNF = WR + WSL + 16384 + 4096
MST = WR + 2*WSL
B11E = '--b11e' in sys.argv
NONW = 163840 - 1024
OWNB = opt('--ownb', 1)
KVF = 90112
UF = 64
sX = sR

def gen():
    a = Asm()
    a.L += [f".globl {KN}", ".p2align 8", f".type {KN},@function"]
    a.label(KN)
    a(f"""s_cmp_ge_u32 s2, 256
          s_cbranch_scc1 L_end
          s_load_dwordx16 s[64:79], s[0:1], 0
          s_load_dwordx4 s[80:83], s[0:1], 64
          s_load_dwordx2 s[84:85], s[0:1], 80
          v_lshrrev_b32 v1, 6, v0
          v_and_b32 v0, 63, v0
          s_and_b32 s{sX}, s2, 7
          v_readfirstlane_b32 s{sW}, v1
          s_lshr_b32 s{sJ}, s2, 3
          s_lshl_b32 s3, s{sX}, 2
          s_and_b32 s4, s{sJ}, 3
          s_add_u32 s{sTB}, s3, s4
          s_lshr_b32 s{sHG}, s2, 5
          s_xor_b32 s{sHG}, s{sHG}, {opt("--hgx", 0)}""")
    if FULLF: a("v_lshlrev_b32 v166, 3, v0")
    if STAMP: a(f"v_mov_b32 v{VST}, 0")
    stamp(a, 0)
    a(f"""s_cmp_lt_u32 s{sW}, 8
          s_cbranch_scc1 L_consumer""")
    sQO, sF2, sPTV = 12, 13, 14
    def get_tag(vt):
        a(f"""v_mov_b32 v{vt}, {NONW}
              ds_read_b32 v{vt}, v{vt}
              s_waitcnt lgkmcnt(0)
              v_readfirstlane_b32 s{sNON}, v{vt}
              s_nop 1""")
    def pt_load():
        if MODE == "auto":
            a(f"""v_and_b32 v147, 31, v0
                  s_lshl_b32 s3, s{sX}, 7
                  s_add_u32 s3, s3, {WS_PT}
                  v_lshl_add_u32 v147, v147, 2, s3
                  buffer_load_dword v148, v147, s[{SWS}:{SWS+3}], 0 offen sc1""")
    sLW, sROT, sSOX, sSOW, sMX, sMW, sTY = 23, 15, 28, 29, 30, 31, 27
    SX, SWD, SAX = 36, 40, 48
    SWOD, SOUT = 44, 40
    sC0 = 24
    XO, WO_, XA1 = 8, 10, 14
    sRA, sAX = 21, 25
    a(f"""s_sub_u32 s{sLW}, s{sW}, 8
          s_lshl_b32 s3, s{sTB}, 2
          s_add_u32 s3, s3, s{sLW}
          s_lshl_b32 s3, s3, 14                    ; (64tb + 16lw)*1024
          v_lshrrev_b32 v1, 3, v0
          v_and_b32 v2, 7, v0
          v_lshrrev_b32 v3, 4, v0
          v_xor_b32 v4, v3, v2
          v_xor_b32 v5, 4, v4
          v_lshlrev_b32 v4, 4, v4
          v_lshlrev_b32 v5, 4, v5
          v_lshl_add_u32 v6, v1, 10, s3
          v_add_u32 v{XO}, v6, v4
          v_add3_u32 v{XO+1}, v6, v5, s4
          v_and_b32 v6, 1, v3
          v_lshlrev_b32 v6, 2, v6
          v_xor_b32 v6, v6, v2
          s_lshl_b32 s3, s{sHG}, 7
          v_lshl_add_u32 v6, v6, 4, s3
          s_and_b32 s3, s{sLW}, 1
          s_lshl_b32 s3, s3, 5
          v_add_u32 v7, s3, v1
          s_movk_i32 s3, 3072
          v_mad_u32_u24 v{WO_}, v7, s3, v6""".replace("v_add3_u32 v9, v6, v5, s4", "v_add_u32 v9, v6, v5\n          v_add_u32 v9, 8192, v9"))
    for jw in range(1, 4): a(f"v_add_u32 v{WO_+jw}, {8*3072*jw}, v{WO_}")
    RM = opt('--rmode', 2)
    if RM == 0:
        a(f"""s_and_b32 s3, s{sJ}, 3
          s_lshl_b32 s3, s3, 1
          s_add_u32 s3, s3, s{sHG}
          s_add_u32 s3, s3, s{sX}
          s_and_b32 s{sROT}, s3, {opt('--rmask', 4)}""")
    elif RM == 1: a(f"s_mov_b32 s{sROT}, s{sX}")
    elif RM == 2:
        a(f"""s_and_b32 s3, s{sJ}, 3
          s_lshl_b32 s3, s3, 1
          s_add_u32 s3, s3, s{sHG}
          s_and_b32 s3, s3, {opt('--rmask', 4)}
          s_add_u32 s3, s3, s{sX}
          s_and_b32 s{sROT}, s3, 7""")
    a(f"""s_nop 0
          s_lshr_b32 s{sTY}, s{sLW}, 1
          s_lshl_b32 s{sTY}, s{sTY}, 10
          s_add_u32 s{sTY}, s{sTY}, 1024
          s_lshl_b32 s{sSOX}, s{sROT}, 7
          s_mul_i32 s{sSOW}, s{sROT}, {64*3072}
          s_add_u32 s{sSOW}, s{sSOW}, s{sTY}
          s_lshl_b32 s{sMX}, s{sLW}, 11
          s_lshl_b32 s{sMW}, s{sLW}, 12
          s_waitcnt lgkmcnt(0)""")
    srd(a, SX, kBX, 0x200000)
    srd(a, SWD, kWQ, 0x180000)
    stamp(a, 1)
    def dma(sm0, m0off, v, S, so):
        a(f"""s_add_u32 m0, s{sm0}, {m0off}
              s_nop 0
              buffer_load_dwordx4 v{v}, s[{S}:{S+3}], s{so} offen lds""")
    def issue(st):
        if st < 8:
            for j in range(2): dma(sMX, XR + st*8192 + j*1024, XO+j, SX, sSOX)
        base = WR + (st % NS)*WSL if st < 8 else QSLOT[st-8]
        for j in range(4): dma(sMW, base + j*1024, WO_+j, SWD, sSOW)
        if st == 0:
            a(f"""; A_x rows: pi = 8*(x>>1) + (j&7) ; p = lw>>1, s1 = 16*(lw&1) + 8j + (i>>3)
          s_lshl_b32 s3, s{sTB}, 1
          s_lshr_b32 s4, s{sLW}, 1
          s_add_u32 s3, s3, s4
          s_lshl_b32 s3, s3, 10
          s_and_b32 s4, s{sLW}, 1
          s_lshl_b32 s4, s4, 20
          s_add_u32 s3, s3, s4
          v_lshl_add_u32 v6, v1, {10 if '--xcont' in sys.argv else 16}, s3
          v_add_u32 v{XA1}, v6, v4
          v_add_u32 v{XA1+1}, v6, v5
          v_add_u32 v{XA1+1}, {8*1024 if '--xcont' in sys.argv else 8*65536}, v{XA1+1}
          s_lshr_b32 s3, s{sJ}, 2
          s_and_b32 s{sRA}, s3, {opt('--amask', 6)}
          s_lshl_b32 s{sAX}, s{sRA}, 7""")
            srd(a, SAX, kAX, 0x200000)
        if st < 8:
            for j in range(2): dma(sMX, base + 16384 + j*1024, XO+j if '--xsame' in sys.argv else XA1+j, SX if '--xsame' in sys.argv else SAX, sSOX if '--xsame' in sys.argv else sAX)
        if st < 7:
            a(f"""s_add_u32 s{sROT}, s{sROT}, 1
                  s_and_b32 s{sROT}, s{sROT}, 7
                  s_lshl_b32 s{sSOX}, s{sROT}, 7
                  s_mul_i32 s{sSOW}, s{sROT}, {64*3072}
                  s_add_u32 s{sSOW}, s{sSOW}, s{sTY}
                  s_add_u32 s{sAX}, s{sAX}, 128
                  s_and_b32 s{sAX}, s{sAX}, 1023""")
        elif st < 11:
            a(f"s_add_u32 s{sROT}, s{sROT}, 2")
            a(f"""s_and_b32 s{sROT}, s{sROT}, 7
                  s_mul_i32 s{sSOW}, s{sROT}, {64*3072}""")
    issue(0)
    srd(a, SWS, kWS, 0x1000000)
    srd(a, 56, kDBG, 256)
    a(f"""          ; wo voffset: (128lw + (i>>3))*1024 + hg*128 + ((i&7) ^ (((i>>4)&1)<<2))*16
          v_and_b32 v6, 1, v3
          v_lshlrev_b32 v6, 2, v6
          v_xor_b32 v6, v6, v2
          s_lshl_b32 s3, s{sLW}, 17
          s_lshl_b32 s4, s{sHG}, 7
          s_add_u32 s3, s3, s4
          v_lshl_add_u32 v6, v6, 4, s3
          v_lshl_add_u32 v19, v1, 10, v6
          v_lshrrev_b32 v4, 1, v0
          v_add_u32 v4, s{sTB}, v4
          v_subrev_u32 v4, 4, v4
          v_and_b32 v5, 3, v4
          v_bfe_u32 v4, v4, 2, 3
          v_lshl_add_u32 v4, v5, 3, v4
          s_lshr_b32 s4, s2, 5
          s_lshl_b32 s4, s4, 12
          s_and_b32 s5, s{sLW}, 2
          s_lshl_b32 s5, s5, 2
          s_add_u32 s4, s4, s5
          v_lshl_add_u32 v4, v4, 7, s4
          v_and_b32 v5, 1, v0
          v_lshl_add_u32 v4, v5, 2, v4
          v_add_u32 v16, {WS_F1}, v4
          v_lshlrev_b32 v1, 4, v0
          s_lshl_b32 s9, s{sHG}, 2
          s_add_u32 s9, s9, s{sLW}
          s_lshl_b32 s5, s{sTB}, 11
          s_lshl_b32 s6, s9, 16
          s_add_u32 s10, s5, s6
          s_add_u32 s5, s10, {WS_O}
          v_lshl_add_u32 v24, v0, 7, s5
          s_lshl_b32 s4, s{sTB}, 6
          s_lshl_b32 s5, s{sLW}, 3
          s_add_u32 s4, s4, s5
          v_bfe_u32 v4, v0, 1, 3
          v_and_b32 v5, 1, v0
          v_lshl_add_u32 v4, v5, 5, v4
          v_add_u32 v4, s4, v4
          v_lshlrev_b32 v4, 2, v4
          v_add_u32 v25, {WS_F2}, v4
          s_lshl_b32 s5, s{sLW}, 19
          s_lshl_b32 s6, s{sTB}, 11
          s_add_u32 s5, s5, s6
          s_add_u32 s13, s5, {WS_O}""")
    MF, A2 = 96, 128
    sPF, sWB, sIH = 52, 54, 55
    a(f"""s_lshl_b32 s4, s2, 1
          s_lshr_b32 s5, s{sLW}, 1
          s_add_u32 s4, s4, s5
          s_mul_i32 s4, s4, 3072
          s_and_b32 s5, s{sLW}, 1
          s_lshl_b32 s5, s5, 9
          s_add_u32 s5, s5, s4
          s_add_u32 s{sPF}, s{kWQ}, s5
          s_addc_u32 s{sPF+1}, s{kWQ+1}, 0
          s_mov_b32 s{sIH}, 0
          s_mov_b32 s{sWB}, {WR + 2*WSL}
          s_add_u32 s11, s{sMX}, {XR + 2*8192}
          s_getreg_b32 s{sPTV}, hwreg(HW_REG_XCC_ID, 0, 16)
          s_lshl_b32 s{sPTV}, s{sPTV}, 8""")
    if "--fpf" in sys.argv:
        a(f"""s_lshl_b32 s3, s2, 7
              s_add_u32 s3, s3, {WS_F1}
              s_lshr_b32 s4, s{sJ}, 2
              s_lshl_b32 s4, s4, 8
              s_lshr_b32 s5, s{sTB}, 4
              s_lshl_b32 s5, s5, 7
              s_add_u32 s4, s4, s5
              s_add_u32 s4, s4, {WS_F3}
              s_bitcmp1_b32 s{sLW}, 0
              s_cselect_b32 s3, s4, s3
              s_add_u32 s4, s{SWS}, s3
              s_addc_u32 s5, s{SWS+1}, 0
              s_load_dword s61, s[4:5], 0
              s_load_dword s61, s[4:5], 64""")
    issue(1)
    def prefetch4():
        if "--nopf" in sys.argv: return
        a(f"""s_sub_u32 s3, s{sIH}, {opt("--pf0", 2)}
              s_cmp_ge_u32 s3, 4
              s_cbranch_scc1 L_hpf""")
        for k in range(4): a(f"s_load_dword s61, s[{sPF}:{sPF+1}], {64*k}")
        a(f"""s_add_u32 s{sPF}, s{sPF}, 256
              s_addc_u32 s{sPF+1}, s{sPF+1}, 0
              s_cmp_lg_u32 s3, 1
              s_cbranch_scc1 L_hpf
              s_lshl_b32 s4, s2, 2
              s_add_u32 s4, s4, s{sLW}
              s_lshl_b32 s5, s4, 9
              s_add_u32 s{sPF}, s{kWO}, s5
              s_addc_u32 s{sPF+1}, s{kWO+1}, 0""")
        a.label("L_hpf")
    stamp(a, 25)
    if ALIGN: a.L.append(".p2align 6")
    a.label("L_hl")
    a("s_waitcnt vmcnt(8)")
    if STAMP and "--lst" in sys.argv:
        a(f"""s_memrealtime s[96:97]
              s_add_u32 s3, s{sIH}, 2
              s_waitcnt lgkmcnt(0)
              v_writelane_b32 v{VST}, s96, s3""".replace("v_writelane_b32 v167, s96, s3", "s_mov_b32 m0, s3\nv_writelane_b32 v167, s96, m0"))
    a(f"""s_barrier
          s_add_u32 s4, s{sMW}, s{sWB}
          s_add_u32 s5, s{sMX}, s{sWB}""")
    for j in range(2): dma(11, j*1024, XO+j, SX, sSOX)
    for j in range(4): dma(4, j*1024, WO_+j, SWD, sSOW)
    for j in range(2): dma(5, 16384 + j*1024, XA1+j, SAX, sAX)
    prefetch4()
    a(f"""s_add_u32 s11, s11, 8192
          s_add_u32 s{sWB}, s{sWB}, {WSL}
          s_cmp_eq_u32 s{sWB}, {WR + 3*WSL}
          s_cselect_b32 s{sWB}, {WR}, s{sWB}
          s_add_u32 s{sROT}, s{sROT}, 1
          s_and_b32 s{sROT}, s{sROT}, 7
          s_lshl_b32 s{sSOX}, s{sROT}, 7
          s_mul_i32 s{sSOW}, s{sROT}, {64*3072}
          s_add_u32 s{sSOW}, s{sSOW}, s{sTY}
          s_add_u32 s{sAX}, s{sAX}, 128
          s_and_b32 s{sAX}, s{sAX}, 1023
          s_add_u32 s{sIH}, s{sIH}, 1
""")
    a(f"""s_cmp_lt_u32 s{sIH}, 6
          s_cbranch_scc1 L_hl
          s_lshr_b32 s3, s{sLW}, 1
          s_add_u32 s{sROT}, s{sROT}, s3
          s_and_b32 s{sROT}, s{sROT}, 7
          s_mul_i32 s{sSOW}, s{sROT}, {64*3072}
          s_cmp_lg_u32 s{sLW}, 0
          s_cbranch_scc1 L_hn0
          buffer_load_dword v18, off, s[56:59], 0 sc1
          s_waitcnt vmcnt(9)
          s_branch L_hn1""")
    a.label("L_hn0")
    a("s_waitcnt vmcnt(8)")
    a.label("L_hn1")
    a("s_barrier")
    issue(8)
    a(f"""s_cmp_lg_u32 s{sLW}, 0
          s_cbranch_scc1 L_hn2
          s_waitcnt vmcnt(5)
          s_branch L_hn3""")
    a.label("L_hn2")
    a("s_waitcnt vmcnt(4)")
    a.label("L_hn3")
    stamp(a, 9)
    a("s_barrier")
    issue(9); issue(10)
    a(f"""s_waitcnt vmcnt(8)
          s_cmp_lg_u32 s{sLW}, 0
          s_cbranch_scc1 L_hp2""")
    nonce_wait(a, 18, True)
    a(f"""v_mov_b32 v6, {NONW}
          v_mov_b32 v7, s{sNON}
          ds_write_b32 v6, v7""")
    if MODE == "auto":
        a(f"""s_xor_b32 s3, s{sPTV}, s{sNON}
              v_mov_b32 v18, s3
              s_lshl_b32 s3, s{sX}, 5
              s_add_u32 s3, s3, s{sJ}
              s_lshl_b32 s3, s3, 2
              s_add_u32 s3, s3, {WS_PT}
              s_mov_b64 exec, 1
              buffer_store_dword v18, off, s[{SWS}:{SWS+3}], s3
              s_mov_b64 exec, -1""")
    a("s_waitcnt lgkmcnt(0)")
    a.label("L_hp2")
    stamp(a, 20)
    a("s_barrier")
    issue(11)
    ET = '--noet' not in sys.argv and MODE == 'auto'
    E2 = 2 if ET else 0
    if ET:
        a(f"""s_mov_b64 exec, 0xffff
                  buffer_load_dword v27, v24, s[{SWS}:{SWS+3}], 0 offen
                  buffer_load_dword v26, v25, s[{SWS}:{SWS+3}], 0 offen sc1
                  s_mov_b64 exec, -1""")
    get_tag(6)
    srd(a, SWOD, kWO, 0x80000)
    srd(a, SOUT, kOUT, 0x400000)
    a(f"""; A2 task: tc = 2x + (j&1), cr16 = j>>1, sigma = w&1, nt = (w>>1)&1
          s_lshl_b32 s6, s{sX}, 1
          s_and_b32 s4, s{sJ}, 1
          s_add_u32 s6, s6, s4                    ; tc
          s_lshr_b32 s7, s{sJ}, 1                 ; cr16
          s_lshl_b32 s{sC0}, s7, 5
          s_lshr_b32 s4, s6, 2
          s_lshl_b32 s4, s4, 3
          s_and_b32 s5, s6, 3
          s_add_u32 s4, s4, s5
          s_and_b32 s5, s{sW}, 1
          s_lshl_b32 s5, s5, 2
          s_add_u32 s5, s4, s5                    ; t1 source
          s_sub_u32 s4, 32, s5
          s_and_b32 s4, s4, 31
          s_cmp_lt_u32 s2, 128
          s_cselect_b32 s11, s5, s4
          s_cselect_b64 vcc, -1, 0
          v_and_b32 v45, 31, v0
          v_lshl_add_u32 v20, v45, 5, s11""")
    a(f"""v_lshrrev_b32 v47, 5, v0
          v_and_b32 v45, 0x13, v0
          v_bfe_u32 v46, v0, 2, 1
          v_lshl_or_b32 v45, v46, 3, v45
          v_bfe_u32 v46, v0, 3, 1
          v_lshl_or_b32 v45, v46, 2, v45
          v_add_u32 v45, s{sC0}, v45                ; c
          v_sub_u32 v46, 512, v45
          v_cndmask_b32 v45, v46, v45, vcc           ; e
          s_mul_i32 s4, s6, {U_ROW}
          s_and_b32 s5, s{sW}, 1
          s_lshl_b32 s5, s5, 3
          s_add_u32 s4, s4, s5
          s_add_u32 s4, s4, {WS_U}
          v_lshl_add_u32 v45, v45, 4, s4
          s_mov_b32 s5, {16*U_GP}
          v_mad_u32_u24 v22, v47, s5, v45           ; U address
          s_sub_u32 s5, 15, s7
          s_cmp_lt_u32 s2, 128
          s_cselect_b32 s4, s7, s5                ; e block b
          s_cselect_b32 s5, 0, 1
          v_mul_u32_u24 v45, s5, v47
          v_add_u32 v45, s4, v45
          v_and_b32 v45, 7, v45
          v_and_b32 v46, 31, v0
          v_lshlrev_b32 v46, 3, v46
          v_lshl_add_u32 v45, v45, 8, v46
          v_add_u32 v21, {WS_F3}, v45""")
    NT = 3 if (MODE == "auto" and not ET) else 1
    a(f"""s_sub_u32 s3, 4, s{sTB}
          s_max_i32 s3, s3, 0
          s_lshl_b32 s4, s3, 1
          s_lshl_b32 s6, 0xff, s4
          s_and_b32 s6, s6, 0xff
          s_mov_b32 s7, 0
          s_mul_i32 s8, s{sLW}, {HSTR}
          s_add_u32 s8, s8, 6144
          s_add_u32 s10, s10, {WS_K - 2048}
          s_lshl_b32 s30, s{sLW}, 14
          v_mov_b32 v2, 0x7ffffff0
          s_waitcnt vmcnt({8+E2}) lgkmcnt(0)
          s_barrier""")
    a(f"""s_waitcnt vmcnt({4+E2})
          s_barrier
          s_waitcnt vmcnt({E2})""")
    stamp(a, 23)
    a(f"""s_barrier
          s_mov_b64 exec, s[6:7]
          s_cbranch_execz L_kv0
          buffer_load_dword v5, v16, s[{SWS}:{SWS+3}], 0 offen sc1
          s_mov_b64 exec, -1
          s_barrier
          s_mov_b64 exec, s[6:7]
          s_waitcnt vmcnt(0)
          v_cmp_ne_u32 vcc, s{sNON}, v5
          s_mov_b64 exec, -1
          s_cbranch_vccz L_kv1""")
    poll(a, 16, 5, "s[6:7]")
    a("s_branch L_kv1")
    a.label("L_kv0")
    a("s_mov_b64 exec, -1\ns_barrier")
    a.label("L_kv1")
    stamp(a, 10)
    def kv_grp(g):
        a(f"""s_cmp_gt_u32 s{sTB}, {g}
              s_cbranch_scc1 L_kvr{g}
              v_mov_b32 v3, v2
              s_mov_b32 s10, {2048*g}""")
        a.label(f"L_kvr{g}")
        a(f"""s_sub_u32 m0, s8, {2048*g}
              s_sub_u32 s4, s10, {2048*g}
              buffer_load_dwordx4 v3, s[{SWS}:{SWS+3}], s4 offen {KVLD} lds
              buffer_load_dwordx4 v3, s[{SWS}:{SWS+3}], s4 offen offset:1024 {KVLD} lds
              s_add_u32 m0, m0, 10240
              s_add_u32 s4, s4, {WS_V - WS_K}
              buffer_load_dwordx4 v3, s[{SWS}:{SWS+3}], s4 offen {KVLD} lds
              buffer_load_dwordx4 v3, s[{SWS}:{SWS+3}], s4 offen offset:1024 {KVLD} lds""")
    KV1 = opt("--kv1", 3)
    a("v_mov_b32 v3, v1")
    for g in range(KV1): kv_grp(g)
    def wo_grp(g):
        a(f"""s_add_u32 s3, s{sJ}, {g}
              s_and_b32 s3, s3, 3
              s_lshl_b32 s4, s3, 12
              s_add_u32 s4, s4, s30
              s_add_u32 s4, s4, {WO_BASE}
              s_lshl_b32 s5, s3, 15""")
        for jj in range(4):
            a(f"""s_add_u32 m0, s4, {jj*1024}
                  s_add_u32 s6, s5, {jj*8192}
                  buffer_load_dwordx4 v19, s[{SWOD}:{SWOD+3}], s6 offen lds""")
    a(f"""s_lshl_b32 s3, s{sLW}, 2
          s_add_u32 s3, s3, {KVF}
          v_mov_b32 v6, s3
          v_mov_b32 v7, 0
          ds_write_b32 v6, v7""")
    a(f"""s_and_b32 s3, s{sLW}, 1
          s_lshl_b32 s3, s3, 13
          s_add_u32 s3, s3, {MST}
          v_add_u32 v44, s3, v1""")
    for js in range(8): a(f"ds_read_b128 {vr(MF+4*js,4)}, v44 offset:{js*1024}")
    a("v_mov_b32 v7, 1\ns_waitcnt lgkmcnt(0)")
    a(f"s_waitcnt vmcnt({4*KV1-4})")
    stamp(a, 11)
    a("s_barrier")
    stamp(a, 12)
    for g in range(KV1, 4): kv_grp(g)
    a(f"""s_waitcnt vmcnt(8)
          s_barrier
          buffer_load_dwordx2 v[4:5], v21, s[{SWS}:{SWS+3}], 0 offen sc1""")
    if not ET:
        if MODE == "auto":
            a(f"""s_mov_b64 exec, 0xffff
                  buffer_load_dword v27, v24, s[{SWS}:{SWS+3}], 0 offen
                  buffer_load_dword v26, v25, s[{SWS}:{SWS+3}], 0 offen sc1
                  s_mov_b64 exec, -1""")
    a(f"""s_waitcnt vmcnt({NT + 4})
          ds_write_b32 v6, v7
          v_mov_b32 v7, 2""")
    wo_grp(0)
    a(f"""s_waitcnt vmcnt({NT + 4})
          ds_write_b32 v6, v7""")
    stamp(a, 21)
    for g in range(1, 4): wo_grp(g)
    a(f"""s_cmp_ge_u32 s{sLW}, 2
          s_cbranch_scc1 L_nou
          s_waitcnt vmcnt(16)
          v_cmp_ne_u32 vcc, s{sNON}, v4
          v_cmp_ne_u32 s[10:11], s{sNON}, v5
          s_or_b64 vcc, vcc, s[10:11]
          s_cbranch_vccz L_uok""")
    poll2(a, 21, 4)
    a.label("L_uok")
    stamp(a, 26)
    for js in range(8):
        for b in range(2):
            a(f"""s_mov_b32 s4, {(2*js + b)*U_GP}
                  buffer_load_dwordx2 {vr(UF+4*js+2*b,2)}, v22, s[{SWS}:{SWS+3}], s4 offen {LD}""")
    a(f"""v_lshrrev_b32 v3, 5, v0
          v_lshlrev_b32 v10, 11, v20
          v_lshl_add_u32 v10, v3, 4, v10
          s_lshl_b32 s4, s{sC0}, 1
          v_add_u32 v10, s4, v10""")
    stamp(a, 27)
    a("s_waitcnt vmcnt(16)\ns_branch L_nou2")
    a.label("L_nou")
    a("s_waitcnt vmcnt(0)")
    a.label("L_nou2")
    def a2_half(k, L):
        a(f"""s_cmp_ge_u32 s{sLW}, 2
              s_cbranch_scc1 {L}""")
        if k:
            a("s_mov_b32 s3, 0x80008000")
            for t in range(16): a(f"v_xor_b32 v{MF+2*t+1}, s3, v{MF+2*t+1}")
            for t in range(8): a(f"v_cvt_pk_bf16_f32 v{44+t}, v{A2+2*t}, v{A2+2*t+1}")
        for js in range(8):
            a(f"{MFMA} {vr(A2+16*k,16)}, {vr(UF+4*js,4)}, {vr(MF+4*js,4)}, {'0' if js == 0 else vr(A2+16*k,16)}")
        a.label(L)
    a("s_barrier")
    stamp(a, 14)
    def o_fetch():
        a(f"""s_lshl_b32 s4, s8, 13
              s_add_u32 s4, s4, s30
              s_lshl_b32 s5, s8, 18
              s_add_u32 s5, s5, s13""")
        for j in range(4):
            a(f"""s_add_u32 m0, s4, {j*2048}
                  s_add_u32 s7, s5, {j*65536}
                  buffer_load_dwordx4 v1, s[{SWS}:{SWS+3}], s7 offen {LD} lds
                  buffer_load_dwordx4 v1, s[{SWS}:{SWS+3}], s7 offen offset:1024 {LD} lds""")
    a(f"""s_mov_b32 s60, 0
          s_mov_b32 s8, 0
          s_mov_b32 s9, 1
          s_mov_b64 exec, 0xffff
          buffer_load_dword v5, v25, s[{SWS}:{SWS+3}], 0 offen sc1
          s_mov_b64 exec, -1
          s_waitcnt vmcnt(1)""")
    a2_half(0, "L_h0")
    a("s_mov_b64 exec, 0xffff\ns_branch L_opw")
    a.label("L_opl")
    a(f"""buffer_load_dword v5, v25, s[{SWS}:{SWS+3}], 0 offen sc1
          s_add_u32 s60, s60, 1
          s_cmp_gt_u32 s60, {SPIN_MAX}
          s_cbranch_scc1 L_opx""")
    a.label("L_opw")
    a(f"""s_waitcnt vmcnt(0)
          v_cmp_ne_u32 vcc, s{sNON}, v5
          s_and_b32 s4, vcc_lo, 0xff
          s_and_b32 s9, vcc_lo, 0xff00
          s_cmp_lg_u32 s4, 0
          s_cbranch_scc1 L_opl""")
    a.label("L_opx")
    a("s_mov_b64 exec, -1")
    o_fetch()
    a(f"""s_mov_b32 s8, 1
          s_cmp_lg_u32 s9, 0
          s_cbranch_scc1 L_op2""")
    o_fetch()
    a2_half(1, "L_h1a")
    a("""s_waitcnt vmcnt(8)
         s_barrier
         s_branch L_op3""")
    a.label("L_op2")
    a(f"""s_lshl_b32 s3, s8, 3
          s_lshl_b32 s10, 0xff, s3
          s_mov_b32 s11, 0""")
    a2_half(1, "L_h1b")
    a("s_waitcnt vmcnt(0)\ns_barrier")
    poll(a, 25, 5, "s[10:11]")
    o_fetch()
    a.label("L_op3")
    stamp(a, 15)
    a("s_waitcnt vmcnt(0)\ns_barrier")
    a(f"""s_cmp_ge_u32 s{sLW}, 2
          s_cbranch_scc1 L_h2
          s_mov_b32 s3, {1024*2048}""")
    for mm in range(2):
        a(f"buffer_store_dwordx4 {vr(44+4*mm,4)}, v10, s[{SOUT}:{SOUT+3}], 0 offen offset:{32*mm} {A2F}")
    a("s_nop 7")
    for t in range(8): a(f"v_cvt_pk_bf16_f32 v{52+t}, v{A2+16+2*t}, v{A2+16+2*t+1}")
    for mm in range(2):
        a(f"buffer_store_dwordx4 {vr(52+4*mm,4)}, v10, s[{SOUT}:{SOUT+3}], s3 offen offset:{32*mm} {A2F}")
    a.label("L_h2")
    stamp(a, 13)
    stamp_flush(a, 18)
    a("s_endpgm")

    a.label("L_consumer")
    if "--nocpf" not in sys.argv:
        a(f"""s_cmp_lg_u32 s{sW}, 7
              s_cbranch_scc1 L_cpf1
              s_getpc_b64 s[4:5]""")
        a.label("L_cpf0")
        a(f"""s_sub_u32 s4, s4, L_cpf0-{KN}
              s_subb_u32 s5, s5, 0
              s_lshl_b32 s3, s{sJ}, 3
              v_add_u32 v1, s3, v0
              v_lshlrev_b32 v1, 7, v1
              v_cmp_gt_u32 vcc, L_last_insn-{KN}, v1
              s_and_b64 exec, vcc, 0xff
              s_cbranch_execz L_cpf2
              v_mov_b32 v3, s5
              v_add_co_u32 v2, vcc, s4, v1
              s_nop 1
              v_addc_co_u32 v3, vcc, 0, v3, vcc
              global_load_dword v166, v[2:3], off""")
        a.label("L_cpf2")
        a("s_mov_b64 exec, -1")
        a.label("L_cpf1")
    sIT, sDEL, sSL = 25, 26, 30
    sMASK = 28
    XA, WA = 8, 12
    ACC = 64
    a(f"""v_and_b32 v1, 31, v0
          v_lshrrev_b32 v2, 5, v0
          v_bfe_u32 v3, v0, 1, 3
          v_xor_b32 v3, v3, v2
          v_lshlrev_b32 v4, 7, v1
          s_or_b32 s3, s2, s{sW}
          s_cmp_lg_u32 s3, 4
          s_waitcnt lgkmcnt(0)""")
    srd(a, 56, kDBG, 256)
    a(f"""s_cbranch_scc1 L_nonpub
          s_cmp_lg_u32 s2, 0
          s_cbranch_scc1 L_nonpub
          s_memrealtime s[4:5]
          s_waitcnt lgkmcnt(0)
          s_or_b32 s4, s4, 1
          v_mov_b32 v5, s4
          s_mov_b64 exec, 1
          buffer_store_dword v5, off, s[56:59], 0 sc0 sc1
          s_mov_b64 exec, -1""")
    a.label("L_nonpub")
    srd(a, SWS, kWS, 0x1000000)
    if MODE == "auto":
        a(f"""s_cmp_lg_u32 s{sW}, 6
              s_cbranch_scc1 L_ptt
              s_lshl_b32 s3, s{sX}, 7
              s_add_u32 s3, s3, {WS_PT}
              buffer_load_dword v166, off, s[{SWS}:{SWS+3}], s3""")
        a.label("L_ptt")
    srd(a, SOUT, kOUT, 0x400000)
    if "--tlb" in sys.argv:
        srd(a, 44, kWO, 0x80000)
        a(f"""s_cmp_lg_u32 s{sW}, 5
              s_cbranch_scc1 L_tlb
              v_lshlrev_b32 v5, 20, v0
              s_lshl_b32 s3, s2, 7
              s_add_u32 s3, s3, 0x80000
              v_add_u32 v5, s3, v5
              s_mov_b64 exec, 0xffc
              buffer_load_dword v166, v5, s[{SWS}:{SWS+3}], 0 offen sc1
              s_mov_b64 exec, 15
              buffer_load_dword v166, v5, s[{SOUT}:{SOUT+3}], 0 offen
              s_mov_b64 exec, 1
              s_lshl_b32 s3, s2, 7
              buffer_load_dword v166, off, s[44:47], s3
              s_mov_b64 exec, -1""")
        a.label("L_tlb")
    for r in range(16):
        lo, hi = diag_mask(r)
        a(f"s_mov_b32 s{64+2*r}, {lo:#x}\ns_mov_b32 s{65+2*r}, {hi:#x}")
    for kk in range(4):
        a(f"""v_xor_b32 v5, {2*kk}, v3
              v_lshl_add_u32 v{XA+kk}, v5, 4, v4""")
    a(f"""s_getreg_b32 s{sPTV}, hwreg(HW_REG_XCC_ID, 0, 16)
          s_lshl_b32 s{sPTV}, s{sPTV}, 8
          v_bfe_u32 v3, v0, 2, 2
          v_lshl_add_u32 v7, v2, 3, v3             ; 8h + r
          v_lshlrev_b32 v4, 7, v7
          v_bfe_u32 v5, v0, 4, 1
          v_lshlrev_b32 v5, 1, v5
          v_bfe_u32 v6, v0, 1, 1
          v_add_u32 v5, v5, v6
          s_and_b32 s3, s{sW}, 2
          s_lshl_b32 s3, s3, 1
          v_add_u32 v5, s3, v5
          v_bfe_u32 v6, v0, 3, 1
          v_lshlrev_b32 v6, 2, v6
          v_xor_b32 v5, v5, v6
          v_lshl_add_u32 v4, v5, 4, v4
          v_and_b32 v6, 1, v0
          v_lshl_add_u32 v4, v6, 3, v4
          s_cmp_lt_u32 s{sW}, 4
          s_cbranch_scc1 L_kv""")
    sEH, sCA = 24, 25
    XF, AA, AB, WG, TM = 20, 36, 52, 100, 68
    XCH = WR + (7 % NS)*WSL + 16384
    DL, PH, SG, UA, NV, EI, XC = 12, 13, 14, 15, 3, 7, 164
    a(f"""s_and_b32 s3, s{sW}, 2
          s_lshl_b32 s3, s3, 11
          s_add_u32 s3, s3, {WR+16384}""")
    for kk in range(4): a(f"v_add_u32 v{XA+kk}, s3, v{XA+kk}")
    a(f"""s_and_b32 s{sEH}, s{sW}, 1
          s_lshr_b32 s3, s{sJ}, 2                  ; eb
          s_and_b32 s{sCA}, s3, {opt('--amask', 6)}
          s_lshl_b32 s3, s3, 1
          s_add_u32 s6, s3, s{sEH}
          s_lshl_b32 s3, s6, 4
          v_and_b32 v5, 15, v0
          v_add_u32 v{EI}, s3, v5                  ; e
          v_bfe_u32 v6, v0, 4, 1
          v_cvt_f32_u32 v{PH}, v6
          v_mul_f32 v{PH}, 0x3e800000, v{PH}
          s_cmp_eq_u32 s6, 0
          s_cselect_b32 s{sMASK}, 0x10000, 0
          s_mov_b32 s{sMASK+1}, s{sMASK}
          v_mov_b32 v6, 256
          v_cndmask_b32 v{EI}, v{EI}, v6, s[{sMASK}:{sMASK+1}]
          v_cndmask_b32 v{PH}, v{PH}, 0, s[{sMASK}:{sMASK+1}]
          v_cvt_f32_u32 v{DL}, v{EI}
          v_mul_f32 v{DL}, 0x3b000000, v{DL}       ; e/512
          v_and_b32 v6, 1, v0
          v_lshlrev_b32 v6, 31, v6
          v_or_b32 v{SG}, 1.0, v6
          s_mov_b32 s3, s{sTB}                     ; pi
          s_lshr_b32 s4, s6, 1
          s_lshl_b32 s4, s4, 5
          s_add_u32 s4, s4, s3
          s_lshl_b32 s4, s4, 1
          s_add_u32 s4, s4, s{sEH}
          s_lshl_b32 s26, s4, 2
          s_mul_i32 s3, s3, {U_GP}
          s_lshl_b32 s4, s6, 8
          s_add_u32 s3, s3, s4
          s_add_u32 s3, s3, {WS_U}
          v_lshl_add_u32 v5, v5, 4, s3
          v_lshrrev_b32 v6, 4, v0
          s_movk_i32 s4, {U_ROW}
          v_mad_u32_u24 v{UA}, v6, s4, v5
          s_lshl_b32 s3, s{sEH}, 11
          s_add_u32 s3, s3, {XCH}
          v_lshl_add_u32 v{XC}, v0, 4, s3""")
    def genw(c):
        o = [f"""s_add_u32 s3, s{sCA}, {c}
              s_and_b32 s3, s3, 7
              s_lshl_b32 s3, s3, 6
              v_lshl_add_u32 v{TM}, v2, 3, s3
              v_cvt_f32_u32 v{TM}, v{TM}
              v_mul_f32 v{TM}, v{TM}, v{DL}
              v_fract_f32 v{TM}, v{TM}
              v_add_f32 v{TM}, v{TM}, v{PH}"""]
        for kk in range(4):
            t = []
            for j in range(1, 8): t.append(f"v_add_f32 v{TM+j}, v{TM+j-1}, v{DL}")
            for j in range(8): t.append(f"v_cos_f32 v{TM+8+j}, v{TM+j}")
            t.append(f"v_fmamk_f32 v{TM}, v{DL}, 0x41100000, v{TM+7}")
            for j in range(4): t.append(f"v_cvt_pk_bf16_f32 v{WG+16*c+4*kk+j}, v{TM+8+2*j}, v{TM+9+2*j}")
            o.append("\n".join(t))
        return o
    CR, CI, NCI = 68+16, 68+24, WG
    NQ = [4, 16]
    def genc(m, T):
        t = []
        for j in range(8):
            cj = 16*m + (j % 4) + 8*(j // 4)
            t.append(f"""v_mad_u32_u24 v{T+j}, v1, {cj}, v{PH}
                  v_and_b32 v{T+j}, 31, v{T+j}
                  v_cvt_f32_u32 v{T+j}, v{T+j}
                  v_mul_f32 v{T+j}, 0x3d000000, v{T+j}""")
        u = [f"v_cos_f32 v{T+8+j}, v{T+j}" for j in range(8)] + [f"v_sin_f32 v{T+j}, v{T+j}" for j in range(8)] + ["s_nop 0"]
        for j in range(4):
            u.append(f"""v_cvt_pk_bf16_f32 v{CR+4*m+j}, v{T+8+2*j}, v{T+9+2*j}
                  v_cvt_pk_bf16_f32 v{CI+4*m+j}, -v{T+2*j}, -v{T+1+2*j}
                  v_cvt_pk_bf16_f32 v{NQ[m]+j}, v{T+2*j}, v{T+1+2*j}""")
        return ["\n".join(t[:4]), "\n".join(t[4:]), "\n".join(u[:17]), "\n".join(u[17:])]
    def genm(js):
        T, d = TM, 84 + 4*js
        return f"""v_add_f32 v{T}, v18, v17
              v_add_f32 v{T+1}, v{T}, v17
              v_add_f32 v{T+2}, v{T+1}, v17
              v_cos_f32 v{T+4}, v18
              v_cos_f32 v{T+5}, v{T}
              v_cos_f32 v{T+6}, v{T+1}
              v_cos_f32 v{T+7}, v{T+2}
              v_sin_f32 v{T+8}, v18
              v_sin_f32 v{T+9}, v{T}
              v_sin_f32 v{T+10}, v{T+1}
              v_sin_f32 v{T+11}, v{T+2}
              v_add_f32 v18, v{T+2}, v17
              v_cvt_pk_bf16_f32 v{d}, v{T+4}, v{T+8}
              v_cvt_pk_bf16_f32 v{d+1}, v{T+5}, v{T+9}
              v_cvt_pk_bf16_f32 v{d+2}, v{T+6}, v{T+10}
              v_cvt_pk_bf16_f32 v{d+3}, v{T+7}, v{T+11}"""
    mpar = f"""; A2 task: tc = 2x + (j&1), cr16 = j>>1, sigma = w&1, nt = (w>>1)&1
          s_lshl_b32 s6, s{sX}, 1
          s_and_b32 s4, s{sJ}, 1
          s_add_u32 s6, s6, s4                    ; tc
          s_lshr_b32 s7, s{sJ}, 1                 ; cr16
          s_lshl_b32 s10, s7, 5
          s_lshr_b32 s4, s6, 2
          s_lshl_b32 s4, s4, 3
          s_and_b32 s5, s6, 3
          s_add_u32 s4, s4, s5
          s_and_b32 s5, s{sW}, 1
          s_lshl_b32 s5, s5, 2
          s_add_u32 s5, s4, s5                    ; t1 source
          s_sub_u32 s4, 32, s5
          s_and_b32 s4, s4, 31
          s_cmp_lt_u32 s2, 128
          s_cselect_b32 s11, s5, s4
          s_cselect_b64 vcc, -1, 0
          v_and_b32 v{TM+1}, 31, v0
          v_lshl_add_u32 v{TM}, v{TM+1}, 5, s11
          v_lshrrev_b32 v{TM+3}, 5, v0                 ; h
          v_sub_u32 v{TM+2}, 2048, v{TM}
          v_cndmask_b32 v{TM+2}, v{TM+2}, v{TM}, vcc
          v_cvt_f32_u32 v{TM+2}, v{TM+2}
          v_mul_f32 v17, 0x3a000000, v{TM+2}
          v_lshlrev_b32 v{TM+2}, 5, v{TM+3}
          v_cvt_f32_u32 v{TM+2}, v{TM+2}
          v_mul_f32 v18, v17, v{TM+2}"""
    def either(p0, p1):
        if not p0 and not p1: return ""
        uid[0] += 1
        L = f"e{uid[0]}"
        return f"s_cmp_ge_u32 s{sW}, 6\ns_cbranch_scc1 {L}a\n{p0}\ns_branch {L}b\n{L}a:\n{p1}\n{L}b:"
    for c in range(2):
        for x in genw(c): a(x)
    a("s_barrier")
    def rda(g): return f"ds_read_b128 {vr(XF+4*(g % 4),4)}, v{XA+g % 4}" if g < 32 else ""
    a(rda(0)); a(rda(1))
    for st in range(8):
        fill = {0: genw(2), 1: genw(3), 2: genc(0, TM), 3: genc(1, TM)}.get(st, [])
        if st in (0, 1): fill = [fill[0] + "\n" + fill[1]] + fill[2:]
        if st == 1: fill[3] += f"\nv_lshlrev_b32 v{PH}, 2, v2\nv_mul_u32_u24 v{PH}, v{PH}, v1"
        if st == 2: fill = [either(fill[0], mpar), either(fill[1], genm(0)), either(fill[2], genm(1)), either(fill[3], "")]
        if st == 3: fill = [either(fill[0], genm(2)), either(fill[1], genm(3)), either(fill[2], ""), either(fill[3], "")]
        acc = AA if st < 4 else AB
        for kk in range(4):
            g = 4*st + kk
            mm_ = f"{MFMA} {vr(acc,16)}, {vr(XF+4*(g % 4),4)}, {vr(WG+16*(st%4)+4*kk,4)}, {'0' if (st % 4 == 0 and kk == 0) else vr(acc,16)}"
            if kk < 3:
                a("s_waitcnt lgkmcnt(1)")
                a(mm_)
                if kk < 2: a(rda(g+2))
                if fill: a(fill[kk])
            if kk == 2:
                if st < 7:
                    d = WSL if (st+1) % NS else -(NS-1)*WSL
                    a(f"s_mov_b32 s3, {d}")
                    for r in range(4): a(f"v_add_u32 v{XA+r}, s3, v{XA+r}")
                    a("s_waitcnt lgkmcnt(0)\ns_barrier")
                    a(rda(g+2))
                else:
                    a("s_waitcnt lgkmcnt(0)")
            if kk == 3:
                a(mm_); a(rda(g+2))
                if fill: a(fill[3])
    stamp(a, 7)
    PK, SV, RE, IM, D1, D2 = XF, WG+24, WG+32, WG+48, AA, AB
    a("s_nop 11")
    for r in range(16): a(f"v_fma_f32 v{AA+r}, v{AB+r}, v{SG}, v{AA+r}")
    for t in range(8): a(f"v_cvt_pk_bf16_f32 v{PK+t}, v{AA+2*t}, v{AA+2*t+1}")
    a(f"""s_barrier
          s_cmp_lt_u32 s{sW}, 6
          s_cbranch_scc1 L_a1e
          ds_write_b128 v{XC}, {vr(PK,4)}
          ds_write_b128 v{XC}, {vr(PK+4,4)} offset:1024
          v_mov_b32 v{TM}, 0
          v_mov_b32 v{TM+1}, 0
          v_mov_b32 v{TM+2}, 0
          v_mov_b32 v{TM+3}, 0
          v_mov_b32 v{TM+4}, {OWNF}
          ds_write_b128 v{TM+4}, {vr(TM,4)}
          s_waitcnt lgkmcnt(0)
          s_barrier""")
    a(f"""s_and_b32 s3, s{sW}, 1
          s_lshl_b32 s3, s3, 13
          s_add_u32 s3, s3, {MST}
          v_lshl_add_u32 v42, v0, 4, s3""")
    for js in range(4): a(f"ds_write_b128 v42, {vr(84+4*js,4)} offset:{js*1024}")
    for js in range(4, 8):
        a(genm(js))
        a(f"ds_write_b128 v42, {vr(84+4*js,4)} offset:{js*1024}")
    a("""s_barrier
         s_waitcnt lgkmcnt(0)
         s_barrier
         s_barrier
         s_branch L_att""")
    a.label("L_a1e")
    a(f"""s_barrier
          ds_read_b128 {vr(PK+8,4)}, v{XC}
          ds_read_b128 {vr(PK+12,4)}, v{XC} offset:1024
          s_waitcnt lgkmcnt(0)""")
    for t in range(8): a(f"v_permlane16_swap_b32 v{PK+t}, v{PK+8+t}")
    a(f"""s_mov_b32 s6, 0x00010001
          s_mov_b32 s7, 0x00010001
          s_cmp_eq_u32 s{sMASK}, 0
          s_cbranch_scc1 L_nosp1""")
    for t in range(8):
        a(f"v_mov_b32 v{SV+t}, v{PK+8+t}")
        a(f"v_cndmask_b32 v{PK+8+t}, v{PK+8+t}, 0, s[6:7]")
    a.label("L_nosp1")
    a("s_nop 1")
    def step1(aa, bb):
        a(f"{MFMA} {vr(RE,16)}, {vr(CR,4)}, {vr(aa,4)}, 0")
        a(f"{MFMA} {vr(IM,16)}, {vr(CI,4)}, {vr(aa,4)}, 0")
        a(f"{MFMA} {vr(RE,16)}, {vr(CR+4,4)}, {vr(aa+4,4)}, {vr(RE,16)}")
        a(f"{MFMA} {vr(IM,16)}, {vr(CI+4,4)}, {vr(aa+4,4)}, {vr(IM,16)}")
        if bb is not None:
            for m in range(2):
                a(f"{MFMA} {vr(RE,16)}, {vr(NQ[m],4)}, {vr(bb+4*m,4)}, {vr(RE,16)}")
                a(f"{MFMA} {vr(IM,16)}, {vr(CR+4*m,4)}, {vr(bb+4*m,4)}, {vr(IM,16)}")
    def upack(D):
        for r in range(16): a(f"v_cvt_pk_bf16_f32 v{D+r}, v{RE+r}, v{IM+r}")
        for g in range(4):
            d = D + 4*g
            a(f"""v_permlane32_swap_b32 v{d}, v{d+2}
                  v_permlane32_swap_b32 v{d+1}, v{d+3}""")
        for g in range(4):
            d = D + 4*g
            a(f"""v_permlane16_swap_b32 v{d}, v{d+1}
                  v_permlane16_swap_b32 v{d+2}, v{d+3}""")
    def ust(D, off):
        for g in range(4):
            a(f"""s_mov_b32 s4, {4*g*U_ROW + off}
                  buffer_store_dwordx4 {vr(D+4*g,4)}, v{UA}, s[{SWS}:{SWS+3}], s4 offen {ST}""")
    step1(PK, PK+8)
    a("s_nop 11" if UE else "s_barrier\ns_nop 10")
    upack(D1)
    a(f"""s_cmp_eq_u32 s{sMASK}, 0
          s_cbranch_scc1 L_nosp2""")
    step1(SV, None)
    a("s_nop 11")
    upack(D2)
    a.label("L_nosp2")
    stamp(a, 8)
    ust(D1, 0)
    a(f"""s_cmp_eq_u32 s{sMASK}, 0
          s_cbranch_scc1 L_nosp3
          s_mov_b64 exec, s[6:7]""")
    ust(D2, 4096)
    a("s_mov_b64 exec, -1")
    a.label("L_nosp3")
    get_tag(NV)
    a(f"""s_barrier
          s_barrier
          {"s_barrier" if UE else ""}
          s_add_u32 s3, s26, {WS_F3}""")
    publish(a, 3, 6)
    a("s_branch L_att")

    a.label("L_kv")
    FR = 32
    FK = 96
    def X(b, i): return FK + 12*b + 4*i
    def W(b): return FK + 12*b + 8
    a(f"""s_and_b32 s3, s{sW}, 1
          s_lshl_b32 s3, s3, 13
          s_add_u32 s3, s3, {WR}
          v_add_u32 v{WA}, s3, v4""")
    for r in range(32): a(f"v_mov_b32 v{ACC+r}, 0")
    a(f"""s_lshl_b32 s3, s2, 5
          s_add_u32 s3, s3, s{sW}
          s_lshl_b32 s3, s3, 2
          s_add_u32 s31, s3, {WS_F1}
          s_lshl_b32 s3, s{sHG}, 2
          s_and_b32 s4, s{sW}, 2
          s_add_u32 s3, s3, s4
          s_lshl_b32 s3, s3, 16
          s_lshl_b32 s4, s{sTB}, 11
          s_add_u32 s3, s3, s4
          s_add_u32 s3, s3, {WS_K}
          v_lshl_add_u32 v14, v0, 4, s3
          s_add_u32 s3, s3, {WS_V - WS_K}
          v_bfe_u32 v5, v0, 4, 1
          v_lshlrev_b32 v5, 16, v5
          v_lshl_add_u32 v5, v2, 8, v5
          v_and_b32 v6, 15, v0
          v_lshl_add_u32 v5, v6, 4, v5
          v_add_u32 v16, s3, v5
          v_mov_b32 v21, v4
          s_and_b32 s4, s{sW}, 2
          s_mul_i32 s3, s4, {HSTR}
          s_add_u32 s3, s3, 8192
          v_lshl_add_u32 v17, v0, 4, s3
          s_add_u32 s3, s3, 10240
          v_bfe_u32 v5, v0, 4, 1
          v_mul_u32_u24 v5, {HSTR}, v5
          v_lshl_add_u32 v5, v2, 8, v5
          v_lshl_add_u32 v5, v6, 4, v5
          v_add_u32 v18, s3, v5
          s_and_b32 s3, s{sW}, 1
          s_lshl_b32 s3, s3, 12
          s_lshl_b32 s4, s4, 10
          s_add_u32 s3, s3, s4
          s_add_u32 s3, s3, {Q_BASE}
          v_lshl_add_u32 v20, v0, 4, s3
          s_mov_b32 s8, {f2u(QSCALE):#x}
          s_mov_b32 s9, s8""")
    def rd(kk, b):
        return [f"ds_read_b128 {vr(X(b,i),4)}, v{XA+kk} offset:{i*4096}" for i in range(2)] + [f"ds_read_b64_tr_b16 {vr(W(b)+2*q,2)}, v{WA} offset:{kk*2048 + q*512}" for q in range(2)]
    def step(b, variant, r):
        m = []
        for i in range(2):
            A_, B_ = (W(b), X(b,i)) if variant == "K" else (X(b,i), W(b))
            m.append(f"{MFMA} {vr(ACC+16*i,16)}, {vr(A_,4)}, {vr(B_,4)}, {vr(ACC+16*i,16)}")
        for x in [m[0]] + r[:2] + [m[1]] + r[2:]: a(x)
    a(f"""s_mov_b32 s{sIT}, 0
          s_mov_b32 s{sSL}, 0
          s_mov_b32 s27, {WSL}""")
    stamp(a, 1)
    a("s_barrier")
    stamp(a, 2)
    for x in rd(0, 0) + rd(1, 1): a(x)
    a(f"""s_bitcmp1_b32 s{sW}, 0
          s_cbranch_scc1 L_loopV""")
    for variant in ("K", "V"):
        if ALIGN: a.L.append(".p2align 6")
        a.label(f"L_loop{variant}")
        for kk in range(3):
            a("s_waitcnt lgkmcnt(4)")
            step(kk, variant, rd(kk+2, kk+2) if kk < 2 else [])
        a(f"""s_add_u32 s{sSL}, s{sSL}, 1
              s_cmp_eq_u32 s{sSL}, {NS}
              s_cselect_b32 s{sDEL}, {-(NS-1)*WSL}, s27
              s_cselect_b32 s{sSL}, 0, s{sSL}
              v_add_u32 v{WA}, s{sDEL}, v{WA}""")
        for r in range(4): a(f"v_add_u32 v{XA+r}, 8192, v{XA+r}")
        a(f"""s_add_u32 s{sIT}, s{sIT}, 1
              s_cmp_eq_u32 s{sIT}, 8
              s_waitcnt lgkmcnt(0)
              s_cbranch_scc1 L_last{variant}
              s_barrier""")
        for x in rd(0, 0): a(x)
        step(3, variant, rd(1, 1))
        a(f"s_branch L_loop{variant}")
        a.label(f"L_last{variant}")
        step(3, variant, [])
        stamp(a, 3)
        a("s_mov_b32 s4, 65536\ns_nop 9")
        for i in range(2):
            for mm in range(2):
                d = FR + 8*i + 4*mm
                for t in range(4): a(f"v_cvt_pk_bf16_f32 v{d+t}, v{ACC+16*i+8*mm+2*t}, v{ACC+16*i+8*mm+2*t+1}")
                if variant == "K":
                    a(f"buffer_store_dwordx4 {vr(d,4)}, v14, s[{SWS}:{SWS+3}], {'s4' if mm else '0'} offen offset:{i*1024} {ST}")
                else:
                    a(f"buffer_store_dwordx4 {vr(d,4)}, v16, s[{SWS}:{SWS+3}], 0 offen offset:{i*1024+mm*512} {ST}")
        if variant == "K": a("s_branch L_kvdone")
    a.label("L_kvdone")
    stamp(a, 4)
    FQ = 96
    a(f"""s_and_b32 s3, s{sW}, 1
          s_lshl_b32 s3, s3, 12
          s_sub_u32 s3, s3, 65536
          v_add_u32 v{WA}, {QSLOT[0]}, v21""")
    for kk in range(4): a(f"v_add_u32 v{XA+kk}, s3, v{XA+kk}")
    a(f"""v_mov_b32 v19, {NONW}
          s_barrier
          ds_read_b32 v19, v19""")
    if PUBU < 0:
        a(f"s_waitcnt lgkmcnt(0)\nv_readfirstlane_b32 s{sNON}, v19\ns_nop 1")
        publish(a, 31, 6)
        stamp(a, 5)
    def rdq(u, k, b):
        c2, kk = k // 4, k % 4
        f = FQ + 8*b
        return [f"ds_read_b128 {vr(f,4)}, v{XA+kk} offset:{(2*u+c2)*8192}"] + [f"ds_read_b64_tr_b16 {vr(f+4+2*q,2)}, v{WA} offset:{c2*8192 + kk*2048 + q*512}" for q in range(2)]
    NBQ = 4
    for k in range(3):
        for x in rdq(0, k, k): a(x)
    for u in range(4):
        for k in range(8):
            g = 8*u + k
            last = k >= 5
            if k == 5 and u < 3:
                d = QSLOT[u+1] - QSLOT[u]
                if u == PUBU:
                    a(f"v_readfirstlane_b32 s{sNON}, v19\ns_nop 1")
                    publish(a, 31, 6)
                    stamp(a, 5)
                a(f"""s_waitcnt lgkmcnt(0)
                      s_barrier
                      v_add_u32 v{WA}, {d}, v{WA}""")
            nxt = rdq(u, k+3, (g+3) % NBQ) if k < 5 else (rdq(u+1, k-5, (g+3) % NBQ) if u < 3 else [])
            if not (k >= 5 and u < 3) or k > 5 or True:
                outst = 6 if (k < 5 or u < 3) else 3*(7-k)
                if not (k == 5 and u < 3) and not (k in (6, 7) and u < 3): a(f"s_waitcnt lgkmcnt({outst})")
            f = FQ + 8*(g % NBQ)
            a(f"{MFMA} {vr(ACC,16)}, {vr(f+4,4)}, {vr(f,4)}, {'0' if g == 0 else vr(ACC,16)}")
            for x in nxt: a(x)
    a("s_barrier")
    stamp(a, 6)
    a(f"""s_bitcmp1_b32 s{sW}, 0
          s_cbranch_scc1 L_cpv""")
    for i in range(2):
        for mm in range(2): a(f"ds_write_b128 v17, {vr(FR+8*i+4*mm,4)} offset:{mm*HSTR + i*1024}")
    a("s_branch L_cpq")
    a.label("L_cpv")
    for i in range(2):
        for mm in range(2): a(f"ds_write_b128 v18, {vr(FR+8*i+4*mm,4)} offset:{i*1024 + mm*512}")
    a.label("L_cpq")
    a("s_nop 5")
    for t in range(8): a(f"v_pk_mul_f32 {vr(ACC+2*t,2)}, {vr(ACC+2*t,2)}, s[8:9]")
    for t in range(8): a(f"v_cvt_pk_bf16_f32 v{FQ+t}, v{ACC+2*t}, v{ACC+2*t+1}")
    a(f"""ds_write_b128 v20, {vr(FQ,4)}
          ds_write_b128 v20, {vr(FQ+4,4)} offset:1024
          s_lshl_b32 s3, s{sW}, 2
          s_add_u32 s3, s3, {OWNF}
          v_mov_b32 v5, s3
          v_mov_b32 v6, 1
          s_waitcnt lgkmcnt(0)
          ds_write_b32 v5, v6""")

    a.label("L_att")
    QF = 4
    KA, VA_, NINF, MX = 2, 3, 8, 9
    KF, VF, PP, S, O, CN, CD, CF = 12, 24, 40, 48, 80, 96, 112, 128
    S3, P2, MK = 112, 128, 136
    sVM, sNF, sI = 8, 10, 11
    get_tag(5)
    a(f"""s_xor_b32 s{sPTV}, s{sPTV}, s{sNON}
          s_and_b32 s3, s{sW}, 3
          s_lshr_b32 s5, s{sW}, 2
          s_lshl_b32 s4, s{sHG}, 2
          s_add_u32 s{sHD}, s4, s3
          s_lshl_b32 s4, s{sTB}, 1
          s_add_u32 s4, s4, s5                     ; qb
          s_lshl_b32 s{sQO}, s4, 10
          s_lshl_b32 s6, s{sHD}, 16
          s_add_u32 s{sQO}, s{sQO}, s6
          s_min_u32 s{sNF}, s4, 7
          s_lshl_b32 s4, s4, 5
          s_add_u32 s4, s4, s{sHD}
          s_lshl_b32 s4, s4, 2
          s_add_u32 s{sF2}, s4, {WS_F2}
          v_lshlrev_b32 v1, 4, v0
          s_lshl_b32 s4, s{sW}, 10
          s_add_u32 s4, s4, {Q_BASE}
          v_add_u32 v4, s4, v1
          s_lshl_b32 s4, s3, 2
          s_add_u32 s4, s4, {KVF}
          v_mov_b32 v149, s4
          s_mul_i32 s4, s3, {HSTR}
          s_lshl_b32 s5, s5, 10
          s_add_u32 s4, s4, s5
          v_add_u32 v{KA}, s4, v1
          v_lshrrev_b32 v10, 5, v0
          v_and_b32 v11, 15, v0
          v_lshlrev_b32 v11, 4, v11
          v_lshl_add_u32 v11, v10, 8, v11
          s_add_u32 s4, s4, 10240
          v_add_u32 v{VA_}, s4, v11
          v_mov_b32 v{NINF}, 0xff800000
          s_mov_b32 s{sVM}, 0x0000ffff
          s_mov_b32 s{sVM+1}, 0x0000ffff
          s_mov_b32 s6, 0x00110000
          s_mov_b32 s7, 0x00110000
          v_mov_b32 v10, 0x3f803f80""")
    for t in range(16): a(f"v_cndmask_b32 v{VF+t}, 0, v10, s[6:7]")
    a("v_mov_b32 v10, 0xffff\nv_mov_b32 v11, 0xffff0000")
    for t in range(8):
        a(f"""v_cndmask_b32 v{MK+t}, 0, v10, s[{64+4*t}:{65+4*t}]
              v_cndmask_b32 v5, 0, v11, s[{66+4*t}:{67+4*t}]
              v_or_b32 v{MK+t}, v{MK+t}, v5""")
    stamp(a, 11)
    a(f"""v_mov_b32 v5, {OWNF}
          s_mov_b32 s60, 0""")
    a.label("L_ownw")
    a(f"""ds_read_b128 v[12:15], v5
          s_add_u32 s60, s60, 1
          s_cmp_gt_u32 s60, {SPIN_MAX*8}
          s_cbranch_scc1 L_ownx
          s_waitcnt lgkmcnt(0)
          v_and_b32 v12, v12, v13
          v_and_b32 v14, v14, v15
          v_and_b32 v12, v12, v14
          v_cmp_eq_u32 vcc, 0, v12
          s_cbranch_vccnz L_ownw""")
    a.label("L_ownx")
    stamp(a, 12)
    a(f"ds_read_b128 {vr(QF,4)}, v4")
    def kv_wait(lvl):
        uid[0] += 1
        L = f"kw{uid[0]}"
        a("s_mov_b32 s60, 0")
        a.label(L)
        a(f"""ds_read_b32 v11, v149
              s_add_u32 s60, s60, 1
              s_cmp_gt_u32 s60, {SPIN_MAX*8}
              s_cbranch_scc1 {L}x
              s_waitcnt lgkmcnt(0)
              v_readfirstlane_b32 s3, v11
              s_cmp_lt_u32 s3, {lvl}
              s_cbranch_scc1 {L}""")
        a.label(L + "x")
    def masks(val):
        return [f"""v_cndmask_b32 v{CD+r}, v{NINF}, {val}, s[{64+2*r}:{65+2*r}]
                  v_cndmask_b32 v{CF+r}, {val}, v{NINF}, s[{64+2*r}:{65+2*r}]""" for r in range(16)]
    def maxblk(S_, first):
        if first: a(f"v_max_f32 v{MX}, v{S_}, v{S_+1}")
        for t in range(2 if first else 0, 16, 2):
            a(f"v_max3_f32 v{MX}, v{S_+t}, v{S_+t+1}, v{MX}")
    def xhalf_max():
        a(f"""v_mov_b32 v10, v{MX}
              s_nop 1
              v_permlane32_swap_b32 v10, v{MX}
              s_nop 1
              v_max_f32 v{MX}, v{MX}, v10""")
    order = [7, 6, 5, 4, 3, 2, 1, 8, 0]
    def rdK(n): return f"ds_read_b128 {vr(KF+4*(n%3),4)}, v{KA} offset:{order[n]*1024}"
    def rdV(n):
        b = VF + 8*(n % 2)
        return f"""s_mov_b64 exec, s[{sVM}:{sVM+1}]
              ds_read_b128 {vr(b,4)}, v{VA_} offset:{order[n]*1024}
              ds_read_b128 {vr(b+4,4)}, v{VA_} offset:{order[n]*1024+512}
              s_mov_b64 exec, -1"""
    def mS(k, Dd): return f"{MFMA} {vr(Dd,16)}, {vr(KF+4*(k%3),4)}, {vr(QF,4)}, {vr(CN,16)}"
    a(f"s_setprio {opt(chr(45)*2+'p0', 3)}")
    PTN = opt("--ptn", 1)
    if PTN < 0: pt_load()
    if FORCE_SLOW: a("s_branch L_preslow")
    CI_ = 149
    def fast(first):
        def mSv(k, Dd, tag=''):
            if not first or k == 7: a(mS(k, Dd)); return
            inv = f"{MFMA} {vr(Dd,16)}, {vr(KF+4*(k%3),4)}, {vr(QF,4)}, {vr(CI_+1,16)}"
            if k == 8: a(inv); return
            a(f"""s_cmp_gt_u32 s{sNF}, {k}
                  s_cbranch_scc1 L_fv{k}{tag}
                  {inv}
                  s_branch L_fw{k}{tag}""")
            a.label(f"L_fv{k}{tag}")
            a(mS(k, Dd))
            a.label(f"L_fw{k}{tag}")
        F = int(first)
        if first:
            for r in range(16): a(f"v_mov_b32 v{CI_+1+r}, v{NINF}")
        def standin():
            a(f"""v_max3_f32 v{MX}, v{S+16}, v{S+17}, v{S+18}
                  v_max3_f32 v10, v{S+19}, v{S+20}, v{S+21}
                  v_max3_f32 v11, v{S+22}, v{S+23}, v{S+24}
                  v_max3_f32 v{MX}, v{S+25}, v{S+26}, v{MX}
                  v_max3_f32 v10, v{S+27}, v{S+28}, v10
                  v_max3_f32 v11, v{S+29}, v{S+30}, v11
                  v_max3_f32 v{MX}, v{S+31}, v{MX}, v10
                  v_max_f32 v{MX}, v{MX}, v11""")
            xhalf_max()
            a(f"v_sub_f32 v{CN}, 0xc2700000, v{MX}")
            for r in range(1, 16): a(f"v_mov_b32 v{CN+r}, v{CN}")
        a(f"""s_cmp_lt_u32 s{sW}, 4
              s_cbranch_scc1 L_q0{F}""")
        a(rdK(0)); a(rdV(0))
        a(f"""s_waitcnt lgkmcnt(2)
              {MFMA} {vr(S+16,16)}, {vr(KF,4)}, {vr(QF,4)}, 0
              s_nop 11""")
        standin()
        a("s_nop 1"); a(mS(0, S)); a("s_nop 11")
        for r in range(12): a(f"v_exp_f32 v{S+r}, v{S+r}")
        for t in range(4): a(f"v_cvt_pk_bf16_f32 v{PP+t}, v{S+2*t}, v{S+2*t+1}")
        a(f"""v_exp_f32 v{S+12}, v{S+12}
              s_waitcnt lgkmcnt(0)
              {MFMA} {vr(O,16)}, {vr(VF,4)}, {vr(PP,4)}, 0""")
        for r in range(13, 16): a(f"v_exp_f32 v{S+r}, v{S+r}")
        for t in range(4, 8): a(f"v_cvt_pk_bf16_f32 v{PP+t}, v{S+2*t}, v{S+2*t+1}")
        stamp(a, 30)
        a("s_barrier")
        a(rdK(1)); a("s_barrier"); a(rdK(2)); a(rdV(1))
        a("s_waitcnt lgkmcnt(3)")
        mSv(1, S+16, "b")
        a(f"s_nop 10\ns_branch L_n1{F}")
        a.label(f"L_q0{F}")
        a(f"""ds_read_b128 {vr(KF+8,4)}, v{KA} offset:{8*1024}
              s_waitcnt lgkmcnt(0)
              {MFMA} {vr(S+16,16)}, {vr(KF+8,4)}, {vr(QF,4)}, 0
              s_nop 11""")
        for r in range(16): a(f"v_cndmask_b32 v{S+16+r}, v{NINF}, v{S+16+r}, s[{64+2*r}:{65+2*r}]")
        standin()
        stamp(a, 30)
        a("s_barrier")
        a(rdK(0)); a(rdK(1)); a(rdV(0))
        a("s_waitcnt lgkmcnt(3)")
        mSv(0, S)
        prev = None
        for n in range(8):
            Sn = S + 16*(n % 2); Vn = VF + 8*(n % 2)
            P_ = PP if n % 2 == 0 else P2
            ex = lambda r: a(f"v_exp_f32 v{Sn+r}, v{Sn+r}")
            cv = lambda t: a(f"v_cvt_pk_bf16_f32 v{P_+t}, v{Sn+2*t}, v{Sn+2*t+1}")
            if n == 1: a.label(f"L_n1{F}")
            if n == PTN: pt_load()
            PR = dict(zip([int(c) for c in opt("--pr", "357")], (2, 1, 0)))
            if n in PR: a(f"s_setprio {PR[n]}")
            if n in (2, 4):
                a(f"""v_readfirstlane_b32 s3, v11
                      s_cmp_ge_u32 s3, {n//2}
                      s_cbranch_scc1 L_kf{int(first)}{n}""")
                kv_wait(n//2)
                a.label(f"L_kf{int(first)}{n}")
            if n == 0:
                a("s_waitcnt lgkmcnt(2)"); mSv(1, S+16); a("s_barrier"); a(rdK(2)); a(rdV(1)); a("s_nop 3")
            if n == 7:
                a("s_nop 1"); a(prev); a("s_nop 2")
                for r in range(16): a(f"v_cndmask_b32 v{Sn+r}, v{S3+r}, v{Sn+r}, s[{64+2*r}:{65+2*r}]")
            for r in range(4): ex(r)
            if 0 < n < 7: a(prev)
            if n == 7: a(rdV(8))
            for r in range(4, 8): ex(r)
            if 0 < n < 7:
                a("s_waitcnt lgkmcnt(2)"); mSv(n+1, S + 16*((n+1) % 2))
                if n in (1, 3): a("ds_read_b32 v11, v149")
                a(rdK(n+2)); a(rdV(n+1))
            for t in range(4): cv(t)
            for r in range(8, 12): ex(r)
            if n < 7:
                a("s_waitcnt lgkmcnt(3)")
                a(f"{MFMA} {vr(O,16)}, {vr(Vn,4)}, {vr(P_,4)}, {'0' if n == 0 else vr(O,16)}")
            else:
                for t in range(4): a(f"v_and_b32 v{PP+t}, v{MK+t}, v{P_+t}\nv_xor_b32 v{P_+t}, v{PP+t}, v{P_+t}")
                a("s_waitcnt lgkmcnt(2)")
                a(f"{MFMA} {vr(O,16)}, {vr(Vn,4)}, {vr(PP,4)}, {vr(O,16)}")
            ex(12); ex(13)
            if n == 6: a("s_waitcnt lgkmcnt(2)"); mSv(8, S3)
            if n == 7: a("s_waitcnt lgkmcnt(0)"); a(f"{MFMA} {vr(O,16)}, {vr(VF,4)}, {vr(P2,4)}, {vr(O,16)}")
            ex(14); ex(15)
            for t in range(4, 8): cv(t)
            prev = f"{MFMA} {vr(O,16)}, {vr(Vn+4,4)}, {vr(P_+4,4)}, {vr(O,16)}"
        for t in range(4, 8): a(f"v_and_b32 v{PP+t}, v{MK+t}, v{P2+t}\nv_xor_b32 v{P2+t}, v{PP+t}, v{P2+t}")
        a(f"""s_nop 0
          {MFMA} {vr(O,16)}, {vr(VF+12,4)}, {vr(PP+4,4)}, {vr(O,16)}
          {MFMA} {vr(O,16)}, {vr(VF+4,4)}, {vr(P2+4,4)}, {vr(O,16)}
          s_waitcnt vmcnt(0)
          v_cmp_ne_u32 s[6:7], s{sPTV}, v148
          v_mov_b32 v14, 0x7f800000
          s_nop 8
          v_add_f32 v10, |v{O}|, |v{O+1}|
          v_add_f32 v11, |v{O+2}|, |v{O+3}|
          v_add_f32 v12, |v{O+4}|, |v{O+5}|
          v_add_f32 v13, |v{O+6}|, |v{O+7}|
          v_add_f32 v10, v10, v11
          v_add_f32 v12, v12, v13
          v_mul_f32 v11, 0x43800000, v{O+8}
          v_add_f32 v10, v10, v12
          v_add_f32 v11, v10, v11
          v_rcp_f32 v10, v{O+8}
          v_cmp_lt_f32 vcc, v11, v14
          s_cmp_eq_u64 vcc, -1
          s_cbranch_scc1 L_norm
          s_branch L_slow""")
    a(f"""s_cmp_eq_u32 s{sR}, 0
          s_cbranch_scc1 L_first""")
    fast(False)
    a.label("L_first")
    fast(True)
    a.label("L_preslow")
    a("s_barrier\ns_barrier")
    kv_wait(2)
    if PTN >= 0: pt_load()
    a.label("L_slow")
    a(f"""s_setprio 0
          s_sub_u32 s3, 8, s{sNF}
          s_lshl_b32 s3, s3, 10
          s_waitcnt lgkmcnt(0)""")
    for x in masks("0"): a(x)
    a(f"""ds_read_b128 {vr(KF,4)}, v{KA} offset:{8*1024}
          s_waitcnt lgkmcnt(0)
          {MFMA} {vr(S,16)}, {vr(KF,4)}, {vr(QF,4)}, {vr(CD,16)}
          s_nop 11""")
    maxblk(S, True)
    a(f"""s_cmp_eq_u32 s{sR}, 0
          s_cbranch_scc1 L_s1nofar
          ds_read_b128 {vr(KF,4)}, v{KA}
          s_waitcnt lgkmcnt(0)
          {MFMA} {vr(S,16)}, {vr(KF,4)}, {vr(QF,4)}, {vr(CF,16)}
          s_nop 11""")
    maxblk(S, False)
    a.label("L_s1nofar")
    a(f"""s_mov_b32 s{sI}, s{sNF}
          v_add_u32 v10, s3, v{KA}
          s_cmp_eq_u32 s{sI}, 0
          s_cbranch_scc1 L_s1done""")
    a.label("L_s1loop")
    a(f"""ds_read_b128 {vr(KF,4)}, v10
          v_add_u32 v10, 1024, v10
          s_waitcnt lgkmcnt(0)
          {MFMA} {vr(S,16)}, {vr(KF,4)}, {vr(QF,4)}, 0
          s_nop 11""")
    maxblk(S, False)
    a(f"""s_sub_u32 s{sI}, s{sI}, 1
          s_cmp_lg_u32 s{sI}, 0
          s_cbranch_scc1 L_s1loop""")
    a.label("L_s1done")
    xhalf_max()
    a(f"v_sub_f32 v{MX}, 0, v{MX}")
    for x in masks(f"v{MX}"): a(x)
    for r in range(16): a(f"v_mov_b32 v{CN+r}, v{MX}")
    def pvblk(kaddr, vaddr, off, C, first):
        a(f"""ds_read_b128 {vr(KF,4)}, v{kaddr} offset:{off}
              s_mov_b64 exec, s[{sVM}:{sVM+1}]
              ds_read_b128 {vr(VF,4)}, v{vaddr} offset:{off}
              ds_read_b128 {vr(VF+4,4)}, v{vaddr} offset:{off+512}
              s_mov_b64 exec, -1
              s_waitcnt lgkmcnt(0)
              {MFMA} {vr(S,16)}, {vr(KF,4)}, {vr(QF,4)}, {vr(C,16)}
              s_nop 11""")
        for r in range(16): a(f"v_exp_f32 v{S+r}, v{S+r}")
        for t in range(8): a(f"v_cvt_pk_bf16_f32 v{PP+t}, v{S+2*t}, v{S+2*t+1}")
        a("s_nop 1")
        a(f"{MFMA} {vr(O,16)}, {vr(VF,4)}, {vr(PP,4)}, {'0' if first else vr(O,16)}")
        a(f"{MFMA} {vr(O,16)}, {vr(VF+4,4)}, {vr(PP+4,4)}, {vr(O,16)}")
    pvblk(KA, VA_, 8*1024, CD, True)
    a(f"""s_cmp_eq_u32 s{sR}, 0
          s_cbranch_scc1 L_s2nofar""")
    pvblk(KA, VA_, 0, CF, False)
    a.label("L_s2nofar")
    a(f"""s_mov_b32 s{sI}, s{sNF}
          v_add_u32 v10, s3, v{KA}
          v_add_u32 v11, s3, v{VA_}
          s_cmp_eq_u32 s{sI}, 0
          s_cbranch_scc1 L_s2done""")
    a.label("L_s2loop")
    pvblk(10, 11, 0, CN, False)
    a(f"""v_add_u32 v10, 1024, v10
          v_add_u32 v11, 1024, v11
          s_sub_u32 s{sI}, s{sI}, 1
          s_cmp_lg_u32 s{sI}, 0
          s_cbranch_scc1 L_s2loop""")
    a.label("L_s2done")
    a(f"""s_waitcnt vmcnt(0)
          v_cmp_ne_u32 s[6:7], s{sPTV}, v148
          s_nop 12
          v_rcp_f32 v10, v{O+8}
          s_nop 0""")
    a.label("L_norm")
    for t in range(8): a(f"v_mul_f32 v{O+t}, v10, v{O+t}")
    for t in range(4): a(f"v_cvt_pk_bf16_f32 v{PP+t}, v{O+2*t}, v{O+2*t+1}")
    a(f"s_add_u32 s4, s{sQO}, {WS_O}")
    if MODE == "auto":
        a(f"""s_cmp_eq_u64 s[6:7], 0
              s_cbranch_scc0 L_ox
              buffer_store_dwordx4 {vr(PP,4)}, v1, s[{SWS}:{SWS+3}], s4 offen""")
        stamp(a, 13)
        publish(a, sF2, 10, flav="")
        a("s_branch L_od")
        a.label("L_ox")
    a(f"buffer_store_dwordx4 {vr(PP,4)}, v1, s[{SWS}:{SWS+3}], s4 offen {ST}")
    stamp(a, 13 if MODE != "auto" else 19)
    publish(a, sF2, 10)
    a.label("L_od")
    stamp(a, 14)
    a(f"""s_barrier
          s_cmp_ge_u32 s{sW}, 4
          s_cbranch_scc1 L_fin""")
    OA, WA2, ACC2, W2, O2 = 8, 9, 16, 32, 32
    a(f"""s_and_b32 s5, s{sW}, 1
          v_lshrrev_b32 v2, 5, v0
          v_bfe_u32 v3, v0, 2, 2
          v_lshl_add_u32 v4, v2, 2, v3
          v_lshlrev_b32 v4, 7, v4
          v_bfe_u32 v5, v0, 4, 1
          v_lshlrev_b32 v5, 1, v5
          v_and_b32 v6, 1, v0
          v_add_u32 v5, v5, v6
          s_and_b32 s3, s{sW}, 2
          s_lshl_b32 s3, s3, 1
          v_add_u32 v5, s3, v5
          v_bfe_u32 v6, v0, 3, 1
          v_lshlrev_b32 v6, 2, v6
          v_xor_b32 v5, v5, v6
          v_lshl_add_u32 v4, v5, 4, v4
          v_bfe_u32 v6, v0, 1, 1
          v_lshl_add_u32 v4, v6, 3, v4
          v_add_u32 v{WA2}, {WO_BASE}, v4
          s_lshl_b32 s3, s5, 10
          v_add_u32 v{OA}, s3, v1
          v_and_b32 v14, 31, v0
          s_lshl_b32 s3, s{sTB}, 6
          s_lshl_b32 s5, s5, 5
          s_add_u32 s3, s3, s5
          v_add_u32 v14, s3, v14
          v_lshlrev_b32 v14, 11, v14
          v_lshl_add_u32 v14, v2, 4, v14
          s_lshl_b32 s3, s{sHG}, 7
          s_and_b32 s5, s{sW}, 2
          s_lshl_b32 s5, s5, 5
          s_add_u32 s3, s3, s5
          s_add_u32 s3, s3, 1024
          v_add_u32 v14, s3, v14
          v_mov_b32 v15, v{OA}""")
    heads = [8*(k//4 % 4) + 4*(k//16) + k % 4 for k in range(32)]
    OB = [2, 6, 10, 160]
    for k in range(32):
        for q in range(2):
            a(f"ds_read_b64_tr_b16 {vr(W2+4*k+2*q,2)}, v{WA2} offset:{heads[k]*2048 + q*1024}")
    a("s_waitcnt lgkmcnt(0)\ns_barrier")
    stamp(a, 28)
    rdo = lambda k: f"ds_read_b128 {vr(OB[k % 4],4)}, v15 offset:{heads[k]*2048}"
    for k in range(4): a(rdo(k))
    for k in range(32):
        if k == 12:
            a("s_barrier")
            stamp(a, 16)
        a(f"s_waitcnt lgkmcnt({min(3, 31-k)})")
        a(f"{MFMA} {vr(ACC2,16)}, {vr(W2+4*k,4)}, {vr(OB[k % 4],4)}, {'0' if k == 0 else vr(ACC2,16)}")
        if k + 4 < 32: a(rdo(k+4))
    a("s_nop 11")
    for mm in range(2):
        for t in range(4):
            a(f"v_cvt_pk_bf16_f32 v{O2+4*mm+t}, v{ACC2+8*mm+2*t}, v{ACC2+8*mm+2*t+1}")
        a(f"buffer_store_dwordx4 {vr(O2+4*mm,4)}, v14, s[{SOUT}:{SOUT+3}], 0 offen offset:{32*mm} {OPF}")
    stamp(a, 17)
    a.label("L_fin")
    stamp_flush(a, 18)
    a.label("L_end")
    a.label("L_last_insn")
    a("s_endpgm")
    return a

def main():
    a = gen()
    hdr = f"""; {NAME} : one fused kernel (generated by my gen11.py)
; @launch grid=(256,1,1) block=(768,1,1) lds=163840
.amdgcn_target "amdgcn-amd-amdhsa--gfx950"
.text
"""
    kd = f""".section .rodata,"a"
.p2align 6
.amdhsa_kernel {KN}
  .amdhsa_next_free_vgpr 168
  .amdhsa_next_free_sgpr 102
  .amdhsa_accum_offset 168
  .amdhsa_group_segment_fixed_size 0
  .amdhsa_kernarg_size 88
  .amdhsa_user_sgpr_count 2
  .amdhsa_user_sgpr_kernarg_segment_ptr 1
  .amdhsa_system_sgpr_workgroup_id_x 1
.end_amdhsa_kernel
"""
    path = sys.argv[1] if len(sys.argv) > 1 and sys.argv[1].endswith(".s") else f"cdna_kernels/{NAME}.s"
    open(path, "w").write(hdr + a.text() + kd)
main()
```

```python
import sys, struct, math

NAME = "concat_heads__spectral_fnet__sliding_block__prompt"
KN = NAME + "_kernel"
WS_Q, WS_K, WS_V, WS_O, WS_U = 0, 2 << 20, 4 << 20, 6 << 20, 8 << 20
WS_F1, WS_F2, WS_PT, WS_F3 = (11 << 20), (11 << 20) + 0x20000, (11 << 20) + 0x60000, (11 << 20) + 0x70000
U_ROW = 4224
U_GP = 16 * U_ROW
U_SIZE = 32 * U_GP
QSCALE = 0.25 * math.log2(math.e)
uid = [0]
STAMP = "--stamp" in sys.argv
FORCE_SLOW = "--slow" in sys.argv
SKIP = set(int(x) for x in sys.argv[sys.argv.index("--skip")+1].split(",")) if "--skip" in sys.argv else set()
ST = sys.argv[sys.argv.index("--st")+1].replace("+", " ") if "--st" in sys.argv else "sc1"
LD = "sc1"
SPIN_MAX = 200000
def opt(name, default):
    return type(default)(sys.argv[sys.argv.index(name)+1]) if name in sys.argv else default
PDELAY = opt("--pdelay", 0)
PIPE = "--pipe" in sys.argv
FULLF = "--fullf" in sys.argv
KVLD = sys.argv[sys.argv.index("--kvld")+1].replace("+", " ").replace("none", "") if "--kvld" in sys.argv else "sc1"
A2ST = "sc1" if "--a2sc1" in sys.argv else ""
WB = "--wb" in sys.argv

def f2u(x): return struct.unpack("<I", struct.pack("<f", x))[0]

class Asm:
    def __init__(self): self.L = []
    def __call__(self, s):
        for line in s.strip("\n").split("\n"):
            line = line.strip()
            if line: self.L.append(line if line.endswith(":") and " " not in line else "  " + line)
    def label(self, n): self.L.append(n + ":")
    def text(self): return "\n".join(self.L) + "\n"

def vr(b, n=1): return f"v{b}" if n == 1 else f"v[{b}:{b+n-1}]"
MFMA = "v_mfma_f32_32x32x16_bf16"

kAX, kSR, kSI, kDR, kDI, kBX, kWQ, kWO, kOUT, kDBG, kWS = 64, 66, 68, 70, 72, 74, 76, 78, 80, 82, 84
sTB, sHG, sJ, sW, sNON = 16, 17, 18, 19, 20
sHD, sR = 21, 22
SWS = 32
VST = 167

def srd(a, d, k, size, off=0):
    if off:
        a(f"s_add_u32 s{d}, s{k}, {off}\ns_addc_u32 s{d+1}, s{k+1}, 0")
    else:
        a(f"s_mov_b32 s{d}, s{k}\ns_mov_b32 s{d+1}, s{k+1}")
    a(f"s_mov_b32 s{d+2}, {size}\ns_mov_b32 s{d+3}, 0x20000")

AMP = [int(x) for x in sys.argv[sys.argv.index("--amp")+1].split(",")] if "--amp" in sys.argv else None
def amp_end(a):
    if not AMP: return
    uid[0] += 1
    L = f"amp{uid[0]}"
    a(f"""s_cmp_lg_u32 s2, {AMP[3]}
          s_cbranch_scc1 {L}x
          s_cmp_lg_u32 s{sW}, {AMP[4]}
          s_cbranch_scc1 {L}x
          s_waitcnt vmcnt(0)
          s_memrealtime s[62:63]
          s_sub_u32 s100, s101, s100
          s_min_u32 s100, s100, 10000
          s_mul_i32 s100, s100, {AMP[2]}
          s_waitcnt lgkmcnt(0)
          s_add_u32 s100, s100, s62""")
    a.label(L)
    a(f"""s_memrealtime s[62:63]
          s_waitcnt lgkmcnt(0)
          s_sub_u32 s61, s62, s100
          s_cmp_lt_i32 s61, 0
          s_cbranch_scc1 {L}""")
    a.label(L + "x")
GMAX = None
def stamp(a, idx):
    if "--jit" in sys.argv and idx > 0:
        uid[0] += 1
        seed = int(sys.argv[sys.argv.index("--jit")+1])
        a(f"""s_cselect_b32 s96, 1, 0
              s_mul_i32 s97, s2, {(2654435761*(idx+seed*37)+12345) & 0x7fffffff | 1}
              s_mul_i32 s98, s{sW}, {(40503*(idx+3+seed)) | 1}
              s_xor_b32 s97, s97, s98
              s_mul_i32 s97, s97, 0x45d9f3b
              s_bfe_u32 s97, s97, 0x30010
              s_cmp_lg_u32 s97, 0
              s_cbranch_scc1 jt{uid[0]}
              s_sleep {64 + (idx*29 + seed*11) % 60}""")
        a.label(f"jt{uid[0]}")
        a("s_cmp_lg_u32 s96, 0")
    if AMP and idx in AMP[:2]:
        a(f"""s_memrealtime s[62:63]
              s_waitcnt lgkmcnt(0)
              s_mov_b32 s{100 + AMP[:2].index(idx)}, s62""")
    if not STAMP: return
    if idx in SKIP: return
    a(f"""s_memrealtime s[96:97]
          s_memtime s[98:99]
          s_waitcnt lgkmcnt(0)
          v_writelane_b32 v{VST}, s96, {idx}
          v_writelane_b32 v{VST}, s98, {idx+32}""")
def stamp_flush(a, idx):
    if AMP:
        if idx in AMP[:2]: a("s_waitcnt vmcnt(0)")
        stamp(a, idx)
        amp_end(a)
    if not STAMP: return
    a("s_waitcnt vmcnt(0)")
    stamp(a, idx)
    srd(a, 88, SWS, 0x100000, 16 << 20)
    a(f"""s_mov_b64 exec, -1
          s_lshl_b32 s92, s2, 12
          s_lshl_b32 s93, s{sW}, 8
          s_add_u32 s92, s92, s93
          v_mbcnt_lo_u32_b32 v2, -1, 0
          v_mbcnt_hi_u32_b32 v2, -1, v2
          v_lshlrev_b32 v2, 2, v2
          buffer_store_dword v{VST}, v2, s[88:91], s92 offen""")

def poll(a, vaddr, vtmp, nl_mask, srdreg=SWS):
    uid[0] += 1
    L = f"poll{uid[0]}"
    a(f"""s_mov_b32 s60, 0
          s_mov_b64 exec, {nl_mask}""")
    a.label(L)
    a(f"""buffer_load_dword v{vtmp}, v{vaddr}, s[{srdreg}:{srdreg+3}], 0 offen sc1
          s_add_u32 s60, s60, 1
          s_cmp_gt_u32 s60, {SPIN_MAX}
          s_cbranch_scc1 {L}x
          s_waitcnt vmcnt(0)
          v_cmp_ne_u32 vcc, s{sNON}, v{vtmp}
          s_cbranch_vccnz {L}""")
    a.label(L + "x")
    a("s_mov_b64 exec, -1")

def poll_pipe(a, vaddr, vt, nl_mask, gap=2):
    uid[0] += 1
    L = f"pp{uid[0]}"
    ld = lambda k: f"buffer_load_dword v{vt+k}, v{vaddr}, s[{SWS}:{SWS+3}], 0 offen sc1"
    a(f"""s_mov_b32 s60, 0
          s_mov_b64 exec, {nl_mask}
          {ld(0)}
          s_sleep {gap}
          {ld(1)}""")
    a.label(L)
    for k in range(3):
        a(f"""s_sleep {gap}
              {ld((k+2)%3)}
              s_waitcnt vmcnt(2)
              v_cmp_ne_u32 vcc, s{sNON}, v{vt+k}
              s_cbranch_vccz {L}x""")
    a(f"""s_add_u32 s60, s60, 1
          s_cmp_lt_u32 s60, {SPIN_MAX}
          s_cbranch_scc1 {L}""")
    a.label(L + "x")
    a("s_mov_b64 exec, -1")

def poll2(a, va, vt):
    uid[0] += 1
    L = f"pq{uid[0]}"
    a("s_mov_b32 s60, 0")
    a.label(L)
    a(f"""buffer_load_dwordx2 v[{vt}:{vt+1}], v{va}, s[{SWS}:{SWS+3}], 0 offen sc1
          s_add_u32 s60, s60, 1
          s_cmp_gt_u32 s60, {SPIN_MAX}
          s_cbranch_scc1 {L}x
          s_waitcnt vmcnt(0)
          v_cmp_ne_u32 vcc, s{sNON}, v{vt}
          v_cmp_ne_u32 s[10:11], s{sNON}, v{vt+1}
          s_or_b64 vcc, vcc, s[10:11]
          s_cbranch_vccnz {L}""")
    a.label(L + "x")

def publish(a, soff, vtmp, cnt=0, flav=None):
    if FULLF:
        a(f"""v_mov_b32 v{vtmp}, s{sNON}
              v_mov_b32 v{vtmp+1}, s{sNON}
              s_waitcnt vmcnt({cnt})
              s_mov_b64 exec, 0xffff
              buffer_store_dwordx2 v[{vtmp}:{vtmp+1}], v166, s[{SWS}:{SWS+3}], s{soff} offen {ST if flav is None else flav}
              s_mov_b64 exec, -1""")
        return
    a(f"""s_waitcnt vmcnt({cnt})
          v_mov_b32 v{vtmp}, s{sNON}
          s_mov_b64 exec, 1
          buffer_store_dword v{vtmp}, off, s[{SWS}:{SWS+3}], s{soff} {ST if flav is None else flav}
          s_mov_b64 exec, -1""")

def nonce_wait(a, vtmp, first_loaded):
    uid[0] += 1
    L = f"non{uid[0]}"
    a("s_mov_b32 s60, 0")
    if first_loaded:
        a(f"s_branch {L}c")
    a.label(L)
    a(f"""buffer_load_dword v{vtmp}, off, s[56:59], 0 sc1
          s_waitcnt vmcnt(0)""")
    a.label(L + "c")
    a(f"""v_readfirstlane_b32 s{sNON}, v{vtmp}
          s_add_u32 s60, s60, 1
          s_cmp_gt_u32 s60, {SPIN_MAX}
          s_cbranch_scc1 {L}x
          s_cmp_eq_u32 s{sNON}, 0
          s_cbranch_scc1 {L}""")
    a.label(L + "x")

def diag_mask(r):
    g, i = r // 4, r % 4
    return (0xffffffff << (8*g+i)) & 0xffffffff, (0xffffffff << (8*g+i+4)) & 0xffffffff

MODE = sys.argv[sys.argv.index("--mode")+1] if "--mode" in sys.argv else "auto"
A2F = opt("--a2st", "").replace("+", " ")
OPF = opt("--opst", "").replace("+", " ")
XR, WR, WSL = 0, 65536, 24576
NS = opt('--ns', 3)
QSLOT = [WR + 2*WSL, WR, WR + 3*WSL, WR + WSL] if NS == 3 else [WR + k*WSL for k in range(4)]
UPN = opt('--upn', 1)
PUBU = opt('--pubu', 0)
Q_BASE = 81920
WO_BASE = 98304
HSTR = 20480
XF_ = 163840 - 1024 + 16
UE = '--noue' not in sys.argv
ALIGN = '--noalign' not in sys.argv
OWNF = WR + WSL + 16384 + 4096
MST = WR + 2*WSL
B11E = '--b11e' in sys.argv
NONW = 163840 - 1024
OWNB = opt('--ownb', 1)
KVF = 90112
UF = 64
sX = sR

def gen():
    a = Asm()
    a.L += [f".globl {KN}", ".p2align 8", f".type {KN},@function"]
    a.label(KN)
    a(f"""s_cmp_ge_u32 s2, 256
          s_cbranch_scc1 L_end
          s_load_dwordx16 s[64:79], s[0:1], 0
          s_load_dwordx4 s[80:83], s[0:1], 64
          s_load_dwordx2 s[84:85], s[0:1], 80
          v_lshrrev_b32 v1, 6, v0
          v_and_b32 v0, 63, v0
          s_and_b32 s{sX}, s2, 7
          v_readfirstlane_b32 s{sW}, v1
          s_lshr_b32 s{sJ}, s2, 3
          s_lshl_b32 s3, s{sX}, 2
          s_and_b32 s4, s{sJ}, 3
          s_add_u32 s{sTB}, s3, s4
          s_lshr_b32 s{sHG}, s2, 5
          s_xor_b32 s{sHG}, s{sHG}, {opt("--hgx", 0)}""")
    if FULLF: a("v_lshlrev_b32 v166, 3, v0")
    if STAMP: a(f"v_mov_b32 v{VST}, 0")
    stamp(a, 0)
    a(f"""s_cmp_lt_u32 s{sW}, 8
          s_cbranch_scc1 L_consumer""")
    sQO, sF2, sPTV = 12, 13, 14
    def get_tag(vt):
        a(f"""v_mov_b32 v{vt}, {NONW}
              ds_read_b32 v{vt}, v{vt}
              s_waitcnt lgkmcnt(0)
              v_readfirstlane_b32 s{sNON}, v{vt}
              s_nop 1""")
    def pt_load():
        if MODE == "auto":
            a(f"""v_and_b32 v147, 31, v0
                  s_lshl_b32 s3, s{sX}, 7
                  s_add_u32 s3, s3, {WS_PT}
                  v_lshl_add_u32 v147, v147, 2, s3
                  buffer_load_dword v148, v147, s[{SWS}:{SWS+3}], 0 offen sc1""")
    sLW, sROT, sSOX, sSOW, sMX, sMW, sTY = 23, 15, 28, 29, 30, 31, 27
    SX, SWD, SAX = 36, 40, 48
    SWOD, SOUT = 44, 40
    sC0 = 24
    XO, WO_, XA1 = 8, 10, 14
    sRA, sAX = 21, 25
    a(f"""s_sub_u32 s{sLW}, s{sW}, 8
          s_lshl_b32 s3, s{sTB}, 2
          s_add_u32 s3, s3, s{sLW}
          s_lshl_b32 s3, s3, 14                    ; (64tb + 16lw)*1024
          v_lshrrev_b32 v1, 3, v0
          v_and_b32 v2, 7, v0
          v_lshrrev_b32 v3, 4, v0
          v_xor_b32 v4, v3, v2
          v_xor_b32 v5, 4, v4
          v_lshlrev_b32 v4, 4, v4
          v_lshlrev_b32 v5, 4, v5
          v_lshl_add_u32 v6, v1, 10, s3
          v_add_u32 v{XO}, v6, v4
          v_add3_u32 v{XO+1}, v6, v5, s4
          v_and_b32 v6, 1, v3
          v_lshlrev_b32 v6, 2, v6
          v_xor_b32 v6, v6, v2
          s_lshl_b32 s3, s{sHG}, 7
          v_lshl_add_u32 v6, v6, 4, s3
          s_and_b32 s3, s{sLW}, 1
          s_lshl_b32 s3, s3, 5
          v_add_u32 v7, s3, v1
          s_movk_i32 s3, 3072
          v_mad_u32_u24 v{WO_}, v7, s3, v6""".replace("v_add3_u32 v9, v6, v5, s4", "v_add_u32 v9, v6, v5\n          v_add_u32 v9, 8192, v9"))
    for jw in range(1, 4): a(f"v_add_u32 v{WO_+jw}, {8*3072*jw}, v{WO_}")
    RM = opt('--rmode', 2)
    if RM == 0:
        a(f"""s_and_b32 s3, s{sJ}, 3
          s_lshl_b32 s3, s3, 1
          s_add_u32 s3, s3, s{sHG}
          s_add_u32 s3, s3, s{sX}
          s_and_b32 s{sROT}, s3, {opt('--rmask', 4)}""")
    elif RM == 1: a(f"s_mov_b32 s{sROT}, s{sX}")
    elif RM == 2:
        a(f"""s_and_b32 s3, s{sJ}, 3
          s_lshl_b32 s3, s3, 1
          s_add_u32 s3, s3, s{sHG}
          s_and_b32 s3, s3, {opt('--rmask', 4)}
          s_add_u32 s3, s3, s{sX}
          s_and_b32 s{sROT}, s3, 7""")
    a(f"""s_nop 0
          s_lshr_b32 s{sTY}, s{sLW}, 1
          s_lshl_b32 s{sTY}, s{sTY}, 10
          s_add_u32 s{sTY}, s{sTY}, 1024
          s_lshl_b32 s{sSOX}, s{sROT}, 7
          s_mul_i32 s{sSOW}, s{sROT}, {64*3072}
          s_add_u32 s{sSOW}, s{sSOW}, s{sTY}
          s_lshl_b32 s{sMX}, s{sLW}, 11
          s_lshl_b32 s{sMW}, s{sLW}, 12
          s_waitcnt lgkmcnt(0)""")
    srd(a, SX, kBX, 0x200000)
    srd(a, SWD, kWQ, 0x180000)
    stamp(a, 1)
    def dma(sm0, m0off, v, S, so):
        a(f"""s_add_u32 m0, s{sm0}, {m0off}
              s_nop 0
              buffer_load_dwordx4 v{v}, s[{S}:{S+3}], s{so} offen lds""")
    def issue(st):
        if st < 8:
            for j in range(2): dma(sMX, XR + st*8192 + j*1024, XO+j, SX, sSOX)
        base = WR + (st % NS)*WSL if st < 8 else QSLOT[st-8]
        for j in range(4): dma(sMW, base + j*1024, WO_+j, SWD, sSOW)
        if st == 0:
            a(f"""; A_x rows: pi = 8*(x>>1) + (j&7) ; p = lw>>1, s1 = 16*(lw&1) + 8j + (i>>3)
          s_lshl_b32 s3, s{sTB}, 1
          s_lshr_b32 s4, s{sLW}, 1
          s_add_u32 s3, s3, s4
          s_lshl_b32 s3, s3, 10
          s_and_b32 s4, s{sLW}, 1
          s_lshl_b32 s4, s4, 20
          s_add_u32 s3, s3, s4
          v_lshl_add_u32 v6, v1, {10 if '--xcont' in sys.argv else 16}, s3
          v_add_u32 v{XA1}, v6, v4
          v_add_u32 v{XA1+1}, v6, v5
          v_add_u32 v{XA1+1}, {8*1024 if '--xcont' in sys.argv else 8*65536}, v{XA1+1}
          s_lshr_b32 s3, s{sJ}, 2
          s_and_b32 s{sRA}, s3, {opt('--amask', 6)}
          s_lshl_b32 s{sAX}, s{sRA}, 7""")
            srd(a, SAX, kAX, 0x200000)
        if st < 8:
            for j in range(2): dma(sMX, base + 16384 + j*1024, XO+j if '--xsame' in sys.argv else XA1+j, SX if '--xsame' in sys.argv else SAX, sSOX if '--xsame' in sys.argv else sAX)
        if st < 7:
            a(f"""s_add_u32 s{sROT}, s{sROT}, 1
                  s_and_b32 s{sROT}, s{sROT}, 7
                  s_lshl_b32 s{sSOX}, s{sROT}, 7
                  s_mul_i32 s{sSOW}, s{sROT}, {64*3072}
                  s_add_u32 s{sSOW}, s{sSOW}, s{sTY}
                  s_add_u32 s{sAX}, s{sAX}, 128
                  s_and_b32 s{sAX}, s{sAX}, 1023""")
        elif st < 11:
            a(f"s_add_u32 s{sROT}, s{sROT}, 2")
            a(f"""s_and_b32 s{sROT}, s{sROT}, 7
                  s_mul_i32 s{sSOW}, s{sROT}, {64*3072}""")
    issue(0)
    srd(a, SWS, kWS, 0x1000000)
    srd(a, 56, kDBG, 256)
    a(f"""          ; wo voffset: (128lw + (i>>3))*1024 + hg*128 + ((i&7) ^ (((i>>4)&1)<<2))*16
          v_and_b32 v6, 1, v3
          v_lshlrev_b32 v6, 2, v6
          v_xor_b32 v6, v6, v2
          s_lshl_b32 s3, s{sLW}, 17
          s_lshl_b32 s4, s{sHG}, 7
          s_add_u32 s3, s3, s4
          v_lshl_add_u32 v6, v6, 4, s3
          v_lshl_add_u32 v19, v1, 10, v6
          v_lshrrev_b32 v4, 1, v0
          v_add_u32 v4, s{sTB}, v4
          v_subrev_u32 v4, 4, v4
          v_and_b32 v5, 3, v4
          v_bfe_u32 v4, v4, 2, 3
          v_lshl_add_u32 v4, v5, 3, v4
          s_lshr_b32 s4, s2, 5
          s_lshl_b32 s4, s4, 12
          s_and_b32 s5, s{sLW}, 2
          s_lshl_b32 s5, s5, 2
          s_add_u32 s4, s4, s5
          v_lshl_add_u32 v4, v4, 7, s4
          v_and_b32 v5, 1, v0
          v_lshl_add_u32 v4, v5, 2, v4
          v_add_u32 v16, {WS_F1}, v4
          v_lshlrev_b32 v1, 4, v0
          s_lshl_b32 s9, s{sHG}, 2
          s_add_u32 s9, s9, s{sLW}
          s_lshl_b32 s5, s{sTB}, 11
          s_lshl_b32 s6, s9, 16
          s_add_u32 s10, s5, s6
          s_add_u32 s5, s10, {WS_O}
          v_lshl_add_u32 v24, v0, 7, s5
          s_lshl_b32 s4, s{sTB}, 6
          s_lshl_b32 s5, s{sLW}, 3
          s_add_u32 s4, s4, s5
          v_bfe_u32 v4, v0, 1, 3
          v_and_b32 v5, 1, v0
          v_lshl_add_u32 v4, v5, 5, v4
          v_add_u32 v4, s4, v4
          v_lshlrev_b32 v4, 2, v4
          v_add_u32 v25, {WS_F2}, v4
          s_lshl_b32 s5, s{sLW}, 19
          s_lshl_b32 s6, s{sTB}, 11
          s_add_u32 s5, s5, s6
          s_add_u32 s13, s5, {WS_O}""")
    MF, A2 = 96, 128
    sPF, sWB, sIH = 52, 54, 55
    a(f"""s_lshl_b32 s4, s2, 1
          s_lshr_b32 s5, s{sLW}, 1
          s_add_u32 s4, s4, s5
          s_mul_i32 s4, s4, 3072
          s_and_b32 s5, s{sLW}, 1
          s_lshl_b32 s5, s5, 9
          s_add_u32 s5, s5, s4
          s_add_u32 s{sPF}, s{kWQ}, s5
          s_addc_u32 s{sPF+1}, s{kWQ+1}, 0
          s_mov_b32 s{sIH}, 0
          s_mov_b32 s{sWB}, {WR + 2*WSL}
          s_add_u32 s11, s{sMX}, {XR + 2*8192}
          s_getreg_b32 s{sPTV}, hwreg(HW_REG_XCC_ID, 0, 16)
          s_lshl_b32 s{sPTV}, s{sPTV}, 8""")
    if "--nofpf" not in sys.argv:
        a(f"""s_lshl_b32 s3, s2, 7
              s_add_u32 s3, s3, {WS_F1}
              s_lshr_b32 s4, s{sJ}, 2
              s_lshl_b32 s4, s4, 8
              s_lshr_b32 s5, s{sTB}, 4
              s_lshl_b32 s5, s5, 7
              s_add_u32 s4, s4, s5
              s_add_u32 s4, s4, {WS_F3}
              s_bitcmp1_b32 s{sLW}, 0
              s_cselect_b32 s3, s4, s3
              s_add_u32 s4, s{SWS}, s3
              s_addc_u32 s5, s{SWS+1}, 0
              s_load_dword s61, s[4:5], 0
              s_load_dword s61, s[4:5], 64""")
    issue(1)
    def prefetch4():
        if "--nopf" in sys.argv: return
        a(f"""s_sub_u32 s3, s{sIH}, {opt("--pf0", 2)}
              s_cmp_ge_u32 s3, 4
              s_cbranch_scc1 L_hpf""")
        for k in range(4): a(f"s_load_dword s61, s[{sPF}:{sPF+1}], {64*k}")
        a(f"""s_add_u32 s{sPF}, s{sPF}, 256
              s_addc_u32 s{sPF+1}, s{sPF+1}, 0
              s_cmp_lg_u32 s3, 1
              s_cbranch_scc1 L_hpf
              s_lshl_b32 s4, s2, 2
              s_add_u32 s4, s4, s{sLW}
              s_lshl_b32 s5, s4, 9
              s_add_u32 s{sPF}, s{kWO}, s5
              s_addc_u32 s{sPF+1}, s{kWO+1}, 0""")
        a.label("L_hpf")
    stamp(a, 25)
    if ALIGN: a.L.append(".p2align 6")
    a.label("L_hl")
    a("s_waitcnt vmcnt(8)")
    if STAMP and "--lst" in sys.argv:
        a(f"""s_memrealtime s[96:97]
              s_add_u32 s3, s{sIH}, 2
              s_waitcnt lgkmcnt(0)
              v_writelane_b32 v{VST}, s96, s3""".replace("v_writelane_b32 v167, s96, s3", "s_mov_b32 m0, s3\nv_writelane_b32 v167, s96, m0"))
    a(f"""s_barrier
          s_add_u32 s4, s{sMW}, s{sWB}
          s_add_u32 s5, s{sMX}, s{sWB}""")
    for j in range(2): dma(11, j*1024, XO+j, SX, sSOX)
    for j in range(4): dma(4, j*1024, WO_+j, SWD, sSOW)
    for j in range(2): dma(5, 16384 + j*1024, XA1+j, SAX, sAX)
    prefetch4()
    a(f"""s_add_u32 s11, s11, 8192
          s_add_u32 s{sWB}, s{sWB}, {WSL}
          s_cmp_eq_u32 s{sWB}, {WR + 3*WSL}
          s_cselect_b32 s{sWB}, {WR}, s{sWB}
          s_add_u32 s{sROT}, s{sROT}, 1
          s_and_b32 s{sROT}, s{sROT}, 7
          s_lshl_b32 s{sSOX}, s{sROT}, 7
          s_mul_i32 s{sSOW}, s{sROT}, {64*3072}
          s_add_u32 s{sSOW}, s{sSOW}, s{sTY}
          s_add_u32 s{sAX}, s{sAX}, 128
          s_and_b32 s{sAX}, s{sAX}, 1023
          s_add_u32 s{sIH}, s{sIH}, 1
""")
    a(f"""s_cmp_lt_u32 s{sIH}, 6
          s_cbranch_scc1 L_hl
          s_lshr_b32 s3, s{sLW}, 1
          s_add_u32 s{sROT}, s{sROT}, s3
          s_and_b32 s{sROT}, s{sROT}, 7
          s_mul_i32 s{sSOW}, s{sROT}, {64*3072}
          s_cmp_lg_u32 s{sLW}, 0
          s_cbranch_scc1 L_hn0
          buffer_load_dword v18, off, s[56:59], 0 sc1
          s_waitcnt vmcnt(9)
          s_branch L_hn1""")
    a.label("L_hn0")
    a("s_waitcnt vmcnt(8)")
    a.label("L_hn1")
    a("s_barrier")
    issue(8)
    a(f"""s_cmp_lg_u32 s{sLW}, 0
          s_cbranch_scc1 L_hn2
          s_waitcnt vmcnt(5)
          s_branch L_hn3""")
    a.label("L_hn2")
    a("s_waitcnt vmcnt(4)")
    a.label("L_hn3")
    stamp(a, 9)
    a("s_barrier")
    issue(9); issue(10)
    a(f"""s_waitcnt vmcnt(8)
          s_cmp_lg_u32 s{sLW}, 0
          s_cbranch_scc1 L_hp2""")
    nonce_wait(a, 18, True)
    a(f"""v_mov_b32 v6, {NONW}
          v_mov_b32 v7, s{sNON}
          ds_write_b32 v6, v7
          v_mov_b32 v44, 0
          v_mov_b32 v45, 0
          ds_write_b64 v6, v[44:45] offset:16""")
    if MODE == "auto":
        a(f"""s_xor_b32 s3, s{sPTV}, s{sNON}
              v_mov_b32 v18, s3
              s_lshl_b32 s3, s{sX}, 5
              s_add_u32 s3, s3, s{sJ}
              s_lshl_b32 s3, s3, 2
              s_add_u32 s3, s3, {WS_PT}
              s_mov_b64 exec, 1
              buffer_store_dword v18, off, s[{SWS}:{SWS+3}], s3
              s_mov_b64 exec, -1""")
    a("s_waitcnt lgkmcnt(0)")
    a.label("L_hp2")
    stamp(a, 20)
    a("s_barrier")
    issue(11)
    ET = '--noet' not in sys.argv and MODE == 'auto'
    E2 = 2 if ET else 0
    if ET:
        a(f"""s_mov_b64 exec, 0xffff
                  buffer_load_dword v27, v24, s[{SWS}:{SWS+3}], 0 offen
                  buffer_load_dword v26, v25, s[{SWS}:{SWS+3}], 0 offen sc1
                  s_mov_b64 exec, -1""")
    get_tag(6)
    srd(a, SWOD, kWO, 0x80000)
    srd(a, SOUT, kOUT, 0x400000)
    a(f"""; A2 task: tc = 2x + (j&1), cr16 = j>>1, sigma = w&1, nt = (w>>1)&1
          s_lshl_b32 s6, s{sX}, 1
          s_and_b32 s4, s{sJ}, 1
          s_add_u32 s6, s6, s4                    ; tc
          s_lshr_b32 s7, s{sJ}, 1                 ; cr16
          s_lshl_b32 s{sC0}, s7, 5
          s_lshr_b32 s4, s6, 2
          s_lshl_b32 s4, s4, 3
          s_and_b32 s5, s6, 3
          s_add_u32 s4, s4, s5
          s_and_b32 s5, s{sW}, 1
          s_lshl_b32 s5, s5, 2
          s_add_u32 s5, s4, s5                    ; t1 source
          s_sub_u32 s4, 32, s5
          s_and_b32 s4, s4, 31
          s_cmp_lt_u32 s2, 128
          s_cselect_b32 s11, s5, s4
          s_cselect_b64 vcc, -1, 0
          v_and_b32 v45, 31, v0
          v_lshl_add_u32 v20, v45, 5, s11""")
    a(f"""v_lshrrev_b32 v47, 5, v0
          v_and_b32 v45, 0x13, v0
          v_bfe_u32 v46, v0, 2, 1
          v_lshl_or_b32 v45, v46, 3, v45
          v_bfe_u32 v46, v0, 3, 1
          v_lshl_or_b32 v45, v46, 2, v45
          v_add_u32 v45, s{sC0}, v45                ; c
          v_sub_u32 v46, 512, v45
          v_cndmask_b32 v45, v46, v45, vcc           ; e
          s_mul_i32 s4, s6, {U_ROW}
          s_and_b32 s5, s{sW}, 1
          s_lshl_b32 s5, s5, 3
          s_add_u32 s4, s4, s5
          s_add_u32 s4, s4, {WS_U}
          v_lshl_add_u32 v45, v45, 4, s4
          s_mov_b32 s5, {16*U_GP}
          v_mad_u32_u24 v22, v47, s5, v45           ; U address
          s_sub_u32 s5, 15, s7
          s_cmp_lt_u32 s2, 128
          s_cselect_b32 s4, s7, s5                ; e block b
          s_cselect_b32 s5, 0, 1
          v_mul_u32_u24 v45, s5, v47
          v_add_u32 v45, s4, v45
          v_and_b32 v45, 7, v45
          v_and_b32 v46, 31, v0
          v_lshlrev_b32 v46, 3, v46
          v_lshl_add_u32 v45, v45, 8, v46
          v_add_u32 v21, {WS_F3}, v45""")
    PLATE = '--plate' in sys.argv
    PL = f"buffer_load_dword v5, v16, s[{SWS}:{SWS+3}], 0 offen sc1"
    NT = 3 if (MODE == "auto" and not ET) else 1
    a(f"""s_sub_u32 s3, 4, s{sTB}
          s_max_i32 s3, s3, 0
          s_lshl_b32 s4, s3, 1
          s_lshl_b32 s6, 0xff, s4
          s_and_b32 s6, s6, 0xff
          s_mov_b32 s7, 0
          s_mul_i32 s8, s{sLW}, {HSTR}
          s_add_u32 s8, s8, 6144
          s_add_u32 s10, s10, {WS_K - 2048}
          s_lshl_b32 s30, s{sLW}, 14
          v_mov_b32 v2, 0x7ffffff0
          s_waitcnt vmcnt({8+E2}) lgkmcnt(0)
          s_barrier""")
    a(f"""s_waitcnt vmcnt({4+E2})
          s_barrier
          s_waitcnt vmcnt({E2})""")
    stamp(a, 23)
    a(f"""s_barrier
          s_mov_b64 exec, s[6:7]
          s_cbranch_execz L_kv0
          {PL if not PLATE else ""}
          s_mov_b64 exec, -1
          s_barrier
          s_mov_b64 exec, s[6:7]
          {PL if PLATE else ""}
          s_waitcnt vmcnt(0)
          v_cmp_ne_u32 vcc, s{sNON}, v5
          s_mov_b64 exec, -1
          s_cbranch_vccz L_kv1""")
    poll(a, 16, 5, "s[6:7]")
    a("s_branch L_kv1")
    a.label("L_kv0")
    a("s_mov_b64 exec, -1\ns_barrier")
    a.label("L_kv1")
    stamp(a, 10)
    def kv_grp(g):
        a(f"""s_cmp_gt_u32 s{sTB}, {g}
              s_cbranch_scc1 L_kvr{g}
              v_mov_b32 v3, v2
              s_mov_b32 s10, {2048*g}""")
        a.label(f"L_kvr{g}")
        a(f"""s_sub_u32 m0, s8, {2048*g}
              s_sub_u32 s4, s10, {2048*g}
              buffer_load_dwordx4 v3, s[{SWS}:{SWS+3}], s4 offen {KVLD} lds
              buffer_load_dwordx4 v3, s[{SWS}:{SWS+3}], s4 offen offset:1024 {KVLD} lds
              s_add_u32 m0, m0, 10240
              s_add_u32 s4, s4, {WS_V - WS_K}
              buffer_load_dwordx4 v3, s[{SWS}:{SWS+3}], s4 offen {KVLD} lds
              buffer_load_dwordx4 v3, s[{SWS}:{SWS+3}], s4 offen offset:1024 {KVLD} lds""")
    KV1 = opt("--kv1", 2)
    a("v_mov_b32 v3, v1")
    for g in range(KV1): kv_grp(g)
    def wo_grp(g):
        a(f"""s_add_u32 s3, s{sJ}, {g}
              s_and_b32 s3, s3, 3
              s_lshl_b32 s4, s3, 12
              s_add_u32 s4, s4, s30
              s_add_u32 s4, s4, {WO_BASE}
              s_lshl_b32 s5, s3, 15""")
        for jj in range(4):
            a(f"""s_add_u32 m0, s4, {jj*1024}
                  s_add_u32 s6, s5, {jj*8192}
                  buffer_load_dwordx4 v19, s[{SWOD}:{SWOD+3}], s6 offen lds""")
    a(f"""s_lshl_b32 s3, s{sLW}, 2
          s_add_u32 s3, s3, {KVF}
          v_mov_b32 v6, s3
          v_mov_b32 v7, 0
          ds_write_b32 v6, v7""")
    a(f"""s_and_b32 s3, s{sLW}, 1
          s_lshl_b32 s3, s3, 13
          s_add_u32 s3, s3, {MST}
          v_add_u32 v44, s3, v1""")
    for js in range(8): a(f"ds_read_b128 {vr(MF+4*js,4)}, v44 offset:{js*1024}")
    a("v_mov_b32 v7, 1\ns_waitcnt lgkmcnt(0)")
    a(f"s_waitcnt vmcnt({4*KV1-4})")
    stamp(a, 11)
    a("s_barrier")
    stamp(a, 12)
    for g in range(KV1, 4): kv_grp(g)
    a(f"""s_waitcnt vmcnt(8)
          s_barrier
          buffer_load_dwordx2 v[4:5], v21, s[{SWS}:{SWS+3}], 0 offen sc1""")
    if not ET:
        if MODE == "auto":
            a(f"""s_mov_b64 exec, 0xffff
                  buffer_load_dword v27, v24, s[{SWS}:{SWS+3}], 0 offen
                  buffer_load_dword v26, v25, s[{SWS}:{SWS+3}], 0 offen sc1
                  s_mov_b64 exec, -1""")
    a(f"""s_waitcnt vmcnt({NT + 4})
          ds_write_b32 v6, v7
          v_mov_b32 v7, 2""")
    wo_grp(0)
    a(f"""s_waitcnt vmcnt({NT + 4})
          ds_write_b32 v6, v7""")
    stamp(a, 21)
    for g in range(1, 4): wo_grp(g)
    a(f"""s_cmp_ge_u32 s{sLW}, 2
          s_cbranch_scc1 L_nou
          s_waitcnt vmcnt(16)
          v_cmp_ne_u32 vcc, s{sNON}, v4
          v_cmp_ne_u32 s[10:11], s{sNON}, v5
          s_or_b64 vcc, vcc, s[10:11]
          s_cbranch_vccz L_uok""")
    poll2(a, 21, 4)
    a.label("L_uok")
    stamp(a, 26)
    for js in range(8):
        for b in range(2):
            a(f"""s_mov_b32 s4, {(2*js + b)*U_GP}
                  buffer_load_dwordx2 {vr(UF+4*js+2*b,2)}, v22, s[{SWS}:{SWS+3}], s4 offen {LD}""")
    a(f"""v_lshrrev_b32 v3, 5, v0
          v_lshlrev_b32 v10, 11, v20
          v_lshl_add_u32 v10, v3, 4, v10
          s_lshl_b32 s4, s{sC0}, 1
          v_add_u32 v10, s4, v10""")
    stamp(a, 27)
    a("s_waitcnt vmcnt(16)\ns_branch L_nou2")
    a.label("L_nou")
    a("s_waitcnt vmcnt(0)")
    a.label("L_nou2")
    def a2_half(k, L):
        a(f"""s_cmp_ge_u32 s{sLW}, 2
              s_cbranch_scc1 {L}""")
        if k:
            a("s_mov_b32 s3, 0x80008000")
            for t in range(16): a(f"v_xor_b32 v{MF+2*t+1}, s3, v{MF+2*t+1}")
            for t in range(8): a(f"v_cvt_pk_bf16_f32 v{44+t}, v{A2+2*t}, v{A2+2*t+1}")
        for js in range(8):
            a(f"{MFMA} {vr(A2+16*k,16)}, {vr(UF+4*js,4)}, {vr(MF+4*js,4)}, {'0' if js == 0 else vr(A2+16*k,16)}")
        a.label(L)
    a("s_barrier")
    stamp(a, 14)
    def o_fetch():
        a(f"""s_lshl_b32 s4, s8, 13
              s_add_u32 s4, s4, s30
              s_lshl_b32 s5, s8, 18
              s_add_u32 s5, s5, s13""")
        for j in range(4):
            a(f"""s_add_u32 m0, s4, {j*2048}
                  s_add_u32 s7, s5, {j*65536}
                  buffer_load_dwordx4 v1, s[{SWS}:{SWS+3}], s7 offen {LD} lds
                  buffer_load_dwordx4 v1, s[{SWS}:{SWS+3}], s7 offen offset:1024 {LD} lds""")
    a(f"""s_mov_b32 s60, 0
          s_mov_b32 s8, 0
          s_mov_b32 s9, 1
          s_mov_b64 exec, 0xffff
          buffer_load_dword v5, v25, s[{SWS}:{SWS+3}], 0 offen sc1
          s_mov_b64 exec, -1
          s_waitcnt vmcnt(1)""")
    a2_half(0, "L_h0")
    a("s_mov_b64 exec, 0xffff\ns_branch L_opw")
    a.label("L_opl")
    a(f"""buffer_load_dword v5, v25, s[{SWS}:{SWS+3}], 0 offen sc1
          s_add_u32 s60, s60, 1
          s_cmp_gt_u32 s60, {SPIN_MAX}
          s_cbranch_scc1 L_opx""")
    a.label("L_opw")
    a(f"""s_waitcnt vmcnt(0)
          v_cmp_ne_u32 vcc, s{sNON}, v5
          s_and_b32 s4, vcc_lo, 0xff
          s_and_b32 s9, vcc_lo, 0xff00
          s_cmp_lg_u32 s4, 0
          s_cbranch_scc1 L_opl""")
    a.label("L_opx")
    a("s_mov_b64 exec, -1")
    o_fetch()
    a(f"""s_mov_b32 s8, 1
          s_cmp_lg_u32 s9, 0
          s_cbranch_scc1 L_op2""")
    o_fetch()
    a2_half(1, "L_h1a")
    a("""s_waitcnt vmcnt(8)
         s_barrier
         s_branch L_op3""")
    a.label("L_op2")
    a(f"""s_lshl_b32 s3, s8, 3
          s_lshl_b32 s10, 0xff, s3
          s_mov_b32 s11, 0""")
    a2_half(1, "L_h1b")
    a("s_waitcnt vmcnt(0)\ns_barrier")
    poll(a, 25, 5, "s[10:11]")
    o_fetch()
    a.label("L_op3")
    stamp(a, 15)
    a("s_waitcnt vmcnt(0)\ns_barrier")
    a(f"""s_cmp_ge_u32 s{sLW}, 2
          s_cbranch_scc1 L_h2
          s_mov_b32 s3, {1024*2048}""")
    for mm in range(2):
        a(f"buffer_store_dwordx4 {vr(44+4*mm,4)}, v10, s[{SOUT}:{SOUT+3}], 0 offen offset:{32*mm} {A2F}")
    a("s_nop 7")
    for t in range(8): a(f"v_cvt_pk_bf16_f32 v{52+t}, v{A2+16+2*t}, v{A2+16+2*t+1}")
    for mm in range(2):
        a(f"buffer_store_dwordx4 {vr(52+4*mm,4)}, v10, s[{SOUT}:{SOUT+3}], s3 offen offset:{32*mm} {A2F}")
    a.label("L_h2")
    stamp(a, 13)
    stamp_flush(a, 18)
    a("s_endpgm")

    a.label("L_consumer")
    if "--nocpf" not in sys.argv:
        a(f"""s_cmp_lg_u32 s{sW}, 7
              s_cbranch_scc1 L_cpf1
              s_getpc_b64 s[4:5]""")
        a.label("L_cpf0")
        a(f"""s_sub_u32 s4, s4, L_cpf0-{KN}
              s_subb_u32 s5, s5, 0
              s_lshl_b32 s3, s{sJ}, 3
              v_add_u32 v1, s3, v0
              v_lshlrev_b32 v1, 7, v1
              v_cmp_gt_u32 vcc, L_last_insn-{KN}, v1
              s_and_b64 exec, vcc, 0xff
              s_cbranch_execz L_cpf2
              v_mov_b32 v3, s5
              v_add_co_u32 v2, vcc, s4, v1
              s_nop 1
              v_addc_co_u32 v3, vcc, 0, v3, vcc
              global_load_dword v166, v[2:3], off""")
        a.label("L_cpf2")
        a("s_mov_b64 exec, -1")
        a.label("L_cpf1")
    sIT, sDEL, sSL = 25, 26, 30
    sMASK = 28
    XA, WA = 8, 12
    ACC = 64
    a(f"""v_and_b32 v1, 31, v0
          v_lshrrev_b32 v2, 5, v0
          v_bfe_u32 v3, v0, 1, 3
          v_xor_b32 v3, v3, v2
          v_lshlrev_b32 v4, 7, v1
          s_or_b32 s3, s2, s{sW}
          s_cmp_lg_u32 s3, 4
          s_waitcnt lgkmcnt(0)""")
    srd(a, 56, kDBG, 256)
    a(f"""s_cbranch_scc1 L_nonpub
          s_cmp_lg_u32 s2, 0
          s_cbranch_scc1 L_nonpub
          s_memrealtime s[4:5]
          s_waitcnt lgkmcnt(0)
          s_or_b32 s4, s4, 1
          v_mov_b32 v5, s4
          s_mov_b64 exec, 1
          buffer_store_dword v5, off, s[56:59], 0 sc0 sc1
          s_mov_b64 exec, -1""")
    a.label("L_nonpub")
    srd(a, SWS, kWS, 0x1000000)
    if MODE == "auto":
        a(f"""s_cmp_lg_u32 s{sW}, 6
              s_cbranch_scc1 L_ptt
              s_lshl_b32 s3, s{sX}, 7
              s_add_u32 s3, s3, {WS_PT}
              buffer_load_dword v166, off, s[{SWS}:{SWS+3}], s3""")
        a.label("L_ptt")
    srd(a, SOUT, kOUT, 0x400000)
    if "--kpf" in sys.argv:
        a(f"""s_and_b32 s3, s{sW}, 1
              s_lshl_b32 s3, s3, 21
              s_lshr_b32 s4, s{sW}, 1
              s_lshl_b32 s5, s{sHG}, 2
              s_add_u32 s4, s4, s5
              s_lshl_b32 s4, s4, 16
              s_add_u32 s3, s3, s4
              s_lshl_b32 s4, s{sTB}, 11
              s_add_u32 s3, s3, s4
              s_add_u32 s3, s3, {WS_K}
              s_add_u32 s4, s{SWS}, s3
              s_addc_u32 s5, s{SWS+1}, 0""")
        for k in range(16*opt("--kpf", 1)): a(f"s_load_dword s61, s[4:5], {128*k//opt('--kpf', 1)}")
    if "--tlb" in sys.argv:
        srd(a, 44, kWO, 0x80000)
        a(f"""s_cmp_lg_u32 s{sW}, 5
              s_cbranch_scc1 L_tlb
              v_lshlrev_b32 v5, 20, v0
              s_lshl_b32 s3, s2, 7
              s_add_u32 s3, s3, 0x80000
              v_add_u32 v5, s3, v5
              s_mov_b64 exec, 0xffc
              buffer_load_dword v166, v5, s[{SWS}:{SWS+3}], 0 offen sc1
              s_mov_b64 exec, 15
              buffer_load_dword v166, v5, s[{SOUT}:{SOUT+3}], 0 offen
              s_mov_b64 exec, 1
              s_lshl_b32 s3, s2, 7
              buffer_load_dword v166, off, s[44:47], s3
              s_mov_b64 exec, -1""")
        a.label("L_tlb")
    for r in range(16):
        lo, hi = diag_mask(r)
        a(f"s_mov_b32 s{64+2*r}, {lo:#x}\ns_mov_b32 s{65+2*r}, {hi:#x}")
    for kk in range(4):
        a(f"""v_xor_b32 v5, {2*kk}, v3
              v_lshl_add_u32 v{XA+kk}, v5, 4, v4""")
    a(f"""s_getreg_b32 s{sPTV}, hwreg(HW_REG_XCC_ID, 0, 16)
          s_lshl_b32 s{sPTV}, s{sPTV}, 8
          v_bfe_u32 v3, v0, 2, 2
          v_lshl_add_u32 v7, v2, 3, v3             ; 8h + r
          v_lshlrev_b32 v4, 7, v7
          v_bfe_u32 v5, v0, 4, 1
          v_lshlrev_b32 v5, 1, v5
          v_bfe_u32 v6, v0, 1, 1
          v_add_u32 v5, v5, v6
          s_and_b32 s3, s{sW}, 2
          s_lshl_b32 s3, s3, 1
          v_add_u32 v5, s3, v5
          v_bfe_u32 v6, v0, 3, 1
          v_lshlrev_b32 v6, 2, v6
          v_xor_b32 v5, v5, v6
          v_lshl_add_u32 v4, v5, 4, v4
          v_and_b32 v6, 1, v0
          v_lshl_add_u32 v4, v6, 3, v4
          s_cmp_lt_u32 s{sW}, 4
          s_cbranch_scc1 L_kv""")
    sEH, sCA = 24, 25
    XF, AA, AB, WG, TM = 20, 36, 52, 100, 68
    XCH = WR + (7 % NS)*WSL + 16384
    DL, PH, SG, UA, NV, EI, XC = 12, 13, 14, 15, 3, 7, 164
    a(f"""s_and_b32 s3, s{sW}, 2
          s_lshl_b32 s3, s3, 11
          s_add_u32 s3, s3, {WR+16384}""")
    for kk in range(4): a(f"v_add_u32 v{XA+kk}, s3, v{XA+kk}")
    a(f"""s_and_b32 s{sEH}, s{sW}, 1
          s_lshr_b32 s3, s{sJ}, 2                  ; eb
          s_and_b32 s{sCA}, s3, {opt('--amask', 6)}
          s_lshl_b32 s3, s3, 1
          s_add_u32 s6, s3, s{sEH}
          s_lshl_b32 s3, s6, 4
          v_and_b32 v5, 15, v0
          v_add_u32 v{EI}, s3, v5                  ; e
          v_bfe_u32 v6, v0, 4, 1
          v_cvt_f32_u32 v{PH}, v6
          v_mul_f32 v{PH}, 0x3e800000, v{PH}
          s_cmp_eq_u32 s6, 0
          s_cselect_b32 s{sMASK}, 0x10000, 0
          s_mov_b32 s{sMASK+1}, s{sMASK}
          v_mov_b32 v6, 256
          v_cndmask_b32 v{EI}, v{EI}, v6, s[{sMASK}:{sMASK+1}]
          v_cndmask_b32 v{PH}, v{PH}, 0, s[{sMASK}:{sMASK+1}]
          v_cvt_f32_u32 v{DL}, v{EI}
          v_mul_f32 v{DL}, 0x3b000000, v{DL}       ; e/512
          v_and_b32 v6, 1, v0
          v_lshlrev_b32 v6, 31, v6
          v_or_b32 v{SG}, 1.0, v6
          s_mov_b32 s3, s{sTB}                     ; pi
          s_lshr_b32 s4, s6, 1
          s_lshl_b32 s4, s4, 5
          s_add_u32 s4, s4, s3
          s_lshl_b32 s4, s4, 1
          s_add_u32 s4, s4, s{sEH}
          s_lshl_b32 s26, s4, 2
          s_mul_i32 s3, s3, {U_GP}
          s_lshl_b32 s4, s6, 8
          s_add_u32 s3, s3, s4
          s_add_u32 s3, s3, {WS_U}
          v_lshl_add_u32 v5, v5, 4, s3
          v_lshrrev_b32 v6, 4, v0
          s_movk_i32 s4, {U_ROW}
          v_mad_u32_u24 v{UA}, v6, s4, v5
          s_lshl_b32 s3, s{sEH}, 11
          s_add_u32 s3, s3, {XCH}
          v_lshl_add_u32 v{XC}, v0, 4, s3""")
    def genw(c):
        o = [f"""s_add_u32 s3, s{sCA}, {c}
              s_and_b32 s3, s3, 7
              s_lshl_b32 s3, s3, 6
              v_lshl_add_u32 v{TM}, v2, 3, s3
              v_cvt_f32_u32 v{TM}, v{TM}
              v_mul_f32 v{TM}, v{TM}, v{DL}
              v_fract_f32 v{TM}, v{TM}
              v_add_f32 v{TM}, v{TM}, v{PH}"""]
        for kk in range(4):
            t = []
            for j in range(1, 8): t.append(f"v_add_f32 v{TM+j}, v{TM+j-1}, v{DL}")
            for j in range(8): t.append(f"v_cos_f32 v{TM+8+j}, v{TM+j}")
            t.append(f"v_fmamk_f32 v{TM}, v{DL}, 0x41100000, v{TM+7}")
            for j in range(4): t.append(f"v_cvt_pk_bf16_f32 v{WG+16*c+4*kk+j}, v{TM+8+2*j}, v{TM+9+2*j}")
            o.append("\n".join(t))
        return o
    CR, CI, NCI = 68+16, 68+24, WG
    NQ = [4, 16]
    def genc(m, T):
        t = []
        for j in range(8):
            cj = 16*m + (j % 4) + 8*(j // 4)
            t.append(f"""v_mad_u32_u24 v{T+j}, v1, {cj}, v{PH}
                  v_and_b32 v{T+j}, 31, v{T+j}
                  v_cvt_f32_u32 v{T+j}, v{T+j}
                  v_mul_f32 v{T+j}, 0x3d000000, v{T+j}""")
        u = [f"v_cos_f32 v{T+8+j}, v{T+j}" for j in range(8)] + [f"v_sin_f32 v{T+j}, v{T+j}" for j in range(8)] + ["s_nop 0"]
        for j in range(4):
            u.append(f"""v_cvt_pk_bf16_f32 v{CR+4*m+j}, v{T+8+2*j}, v{T+9+2*j}
                  v_cvt_pk_bf16_f32 v{CI+4*m+j}, -v{T+2*j}, -v{T+1+2*j}
                  v_cvt_pk_bf16_f32 v{NQ[m]+j}, v{T+2*j}, v{T+1+2*j}""")
        return ["\n".join(t[:4]), "\n".join(t[4:]), "\n".join(u[:17]), "\n".join(u[17:])]
    def genm(js):
        T, d = TM, 84 + 4*js
        return f"""v_add_f32 v{T}, v18, v17
              v_add_f32 v{T+1}, v{T}, v17
              v_add_f32 v{T+2}, v{T+1}, v17
              v_cos_f32 v{T+4}, v18
              v_cos_f32 v{T+5}, v{T}
              v_cos_f32 v{T+6}, v{T+1}
              v_cos_f32 v{T+7}, v{T+2}
              v_sin_f32 v{T+8}, v18
              v_sin_f32 v{T+9}, v{T}
              v_sin_f32 v{T+10}, v{T+1}
              v_sin_f32 v{T+11}, v{T+2}
              v_add_f32 v18, v{T+2}, v17
              v_cvt_pk_bf16_f32 v{d}, v{T+4}, v{T+8}
              v_cvt_pk_bf16_f32 v{d+1}, v{T+5}, v{T+9}
              v_cvt_pk_bf16_f32 v{d+2}, v{T+6}, v{T+10}
              v_cvt_pk_bf16_f32 v{d+3}, v{T+7}, v{T+11}"""
    mpar = f"""; A2 task: tc = 2x + (j&1), cr16 = j>>1, sigma = w&1, nt = (w>>1)&1
          s_lshl_b32 s6, s{sX}, 1
          s_and_b32 s4, s{sJ}, 1
          s_add_u32 s6, s6, s4                    ; tc
          s_lshr_b32 s7, s{sJ}, 1                 ; cr16
          s_lshl_b32 s10, s7, 5
          s_lshr_b32 s4, s6, 2
          s_lshl_b32 s4, s4, 3
          s_and_b32 s5, s6, 3
          s_add_u32 s4, s4, s5
          s_and_b32 s5, s{sW}, 1
          s_lshl_b32 s5, s5, 2
          s_add_u32 s5, s4, s5                    ; t1 source
          s_sub_u32 s4, 32, s5
          s_and_b32 s4, s4, 31
          s_cmp_lt_u32 s2, 128
          s_cselect_b32 s11, s5, s4
          s_cselect_b64 vcc, -1, 0
          v_and_b32 v{TM+1}, 31, v0
          v_lshl_add_u32 v{TM}, v{TM+1}, 5, s11
          v_lshrrev_b32 v{TM+3}, 5, v0                 ; h
          v_sub_u32 v{TM+2}, 2048, v{TM}
          v_cndmask_b32 v{TM+2}, v{TM+2}, v{TM}, vcc
          v_cvt_f32_u32 v{TM+2}, v{TM+2}
          v_mul_f32 v17, 0x3a000000, v{TM+2}
          v_lshlrev_b32 v{TM+2}, 5, v{TM+3}
          v_cvt_f32_u32 v{TM+2}, v{TM+2}
          v_mul_f32 v18, v17, v{TM+2}"""
    def either(p0, p1):
        if not p0 and not p1: return ""
        uid[0] += 1
        L = f"e{uid[0]}"
        return f"s_cmp_ge_u32 s{sW}, 6\ns_cbranch_scc1 {L}a\n{p0}\ns_branch {L}b\n{L}a:\n{p1}\n{L}b:"
    for c in range(2):
        for x in genw(c): a(x)
    a("s_waitcnt lgkmcnt(0)\ns_barrier")
    def rda(g): return f"ds_read_b128 {vr(XF+4*(g % 4),4)}, v{XA+g % 4}" if g < 32 else ""
    a(rda(0)); a(rda(1))
    for st in range(8):
        fill = {0: genw(2), 1: genw(3), 2: genc(0, TM), 3: genc(1, TM)}.get(st, [])
        if st in (0, 1): fill = [fill[0] + "\n" + fill[1]] + fill[2:]
        if st == 1: fill[3] += f"\nv_lshlrev_b32 v{PH}, 2, v2\nv_mul_u32_u24 v{PH}, v{PH}, v1"
        if st == 2: fill = [either(fill[0], mpar), either(fill[1], genm(0)), either(fill[2], genm(1)), either(fill[3], "")]
        if st == 3: fill = [either(fill[0], genm(2)), either(fill[1], genm(3)), either(fill[2], ""), either(fill[3], "")]
        acc = AA if st < 4 else AB
        for kk in range(4):
            g = 4*st + kk
            mm_ = f"{MFMA} {vr(acc,16)}, {vr(XF+4*(g % 4),4)}, {vr(WG+16*(st%4)+4*kk,4)}, {'0' if (st % 4 == 0 and kk == 0) else vr(acc,16)}"
            if kk < 3:
                a("s_waitcnt lgkmcnt(1)")
                a(mm_)
                if kk < 2: a(rda(g+2))
                if fill: a(fill[kk])
            if kk == 2:
                if st < 7:
                    d = WSL if (st+1) % NS else -(NS-1)*WSL
                    a(f"s_mov_b32 s3, {d}")
                    for r in range(4): a(f"v_add_u32 v{XA+r}, s3, v{XA+r}")
                    a("s_waitcnt lgkmcnt(0)\ns_barrier")
                    a(rda(g+2))
                else:
                    a("s_waitcnt lgkmcnt(0)")
            if kk == 3:
                a(mm_); a(rda(g+2))
                if fill: a(fill[3])
    stamp(a, 7)
    PK, SV, RE, IM, D1, D2 = XF, WG+24, WG+32, WG+48, AA, AB
    a("s_nop 11")
    for r in range(16): a(f"v_fma_f32 v{AA+r}, v{AB+r}, v{SG}, v{AA+r}")
    for t in range(8): a(f"v_cvt_pk_bf16_f32 v{PK+t}, v{AA+2*t}, v{AA+2*t+1}")
    a(f"""s_barrier
          s_cmp_lt_u32 s{sW}, 6
          s_cbranch_scc1 L_a1e
          ds_write_b128 v{XC}, {vr(PK,4)}
          ds_write_b128 v{XC}, {vr(PK+4,4)} offset:1024
          v_mov_b32 v{TM}, 0
          v_mov_b32 v{TM+1}, 0
          v_mov_b32 v{TM+2}, 0
          v_mov_b32 v{TM+3}, 0
          v_mov_b32 v{TM+4}, {OWNF}
          ds_write_b128 v{TM+4}, {vr(TM,4)}
          s_lshl_b32 s3, s{sEH}, 2
          s_add_u32 s3, s3, {XF_}
          v_mov_b32 v{TM+6}, s3
          v_mov_b32 v{TM+7}, 1
          s_waitcnt lgkmcnt(0)
          ds_write_b32 v{TM+6}, v{TM+7}""")
    for js in range(4, 8): a(genm(js))
    a("s_barrier")
    a(f"""s_and_b32 s3, s{sW}, 1
          s_lshl_b32 s3, s3, 13
          s_add_u32 s3, s3, {MST}
          v_lshl_add_u32 v42, v0, 4, s3""")
    for js in range(8): a(f"ds_write_b128 v42, {vr(84+4*js,4)} offset:{js*1024}")
    a("""s_barrier
         s_waitcnt lgkmcnt(0)
         s_barrier
         s_barrier
         s_branch L_att""")
    a.label("L_a1e")
    a(f"""s_lshl_b32 s3, s{sEH}, 2
          s_add_u32 s3, s3, {XF_}
          v_mov_b32 v{TM}, s3
          s_mov_b32 s60, 0""")
    a.label("L_xw")
    a(f"""ds_read_b32 v{TM+1}, v{TM}
          s_add_u32 s60, s60, 1
          s_cmp_gt_u32 s60, {SPIN_MAX*8}
          s_cbranch_scc1 L_xwx
          s_waitcnt lgkmcnt(0)
          v_cmp_eq_u32 vcc, 0, v{TM+1}
          s_cbranch_vccnz L_xw""")
    a.label("L_xwx")
    a(f"""ds_read_b128 {vr(PK+8,4)}, v{XC}
          ds_read_b128 {vr(PK+12,4)}, v{XC} offset:1024
          s_waitcnt lgkmcnt(0)""")
    for t in range(8): a(f"v_permlane16_swap_b32 v{PK+t}, v{PK+8+t}")
    a(f"""s_mov_b32 s6, 0x00010001
          s_mov_b32 s7, 0x00010001
          s_cmp_eq_u32 s{sMASK}, 0
          s_cbranch_scc1 L_nosp1""")
    for t in range(8):
        a(f"v_mov_b32 v{SV+t}, v{PK+8+t}")
        a(f"v_cndmask_b32 v{PK+8+t}, v{PK+8+t}, 0, s[6:7]")
    a.label("L_nosp1")
    a("s_nop 1")
    def step1(aa, bb):
        a(f"{MFMA} {vr(RE,16)}, {vr(CR,4)}, {vr(aa,4)}, 0")
        a(f"{MFMA} {vr(IM,16)}, {vr(CI,4)}, {vr(aa,4)}, 0")
        a(f"{MFMA} {vr(RE,16)}, {vr(CR+4,4)}, {vr(aa+4,4)}, {vr(RE,16)}")
        a(f"{MFMA} {vr(IM,16)}, {vr(CI+4,4)}, {vr(aa+4,4)}, {vr(IM,16)}")
        if bb is not None:
            for m in range(2):
                a(f"{MFMA} {vr(RE,16)}, {vr(NQ[m],4)}, {vr(bb+4*m,4)}, {vr(RE,16)}")
                a(f"{MFMA} {vr(IM,16)}, {vr(CR+4*m,4)}, {vr(bb+4*m,4)}, {vr(IM,16)}")
    def upack(D):
        for r in range(16): a(f"v_cvt_pk_bf16_f32 v{D+r}, v{RE+r}, v{IM+r}")
        for g in range(4):
            d = D + 4*g
            a(f"""v_permlane32_swap_b32 v{d}, v{d+2}
                  v_permlane32_swap_b32 v{d+1}, v{d+3}""")
        for g in range(4):
            d = D + 4*g
            a(f"""v_permlane16_swap_b32 v{d}, v{d+1}
                  v_permlane16_swap_b32 v{d+2}, v{d+3}""")
    def ust(D, off):
        for g in range(4):
            a(f"""s_mov_b32 s4, {4*g*U_ROW + off}
                  buffer_store_dwordx4 {vr(D+4*g,4)}, v{UA}, s[{SWS}:{SWS+3}], s4 offen {ST}""")
    step1(PK, PK+8)
    a("s_nop 11")
    upack(D1)
    a(f"""s_cmp_eq_u32 s{sMASK}, 0
          s_cbranch_scc1 L_nosp2""")
    step1(SV, None)
    a("s_nop 11")
    upack(D2)
    a.label("L_nosp2")
    stamp(a, 8)
    UB = opt("--ub", 0)
    for _ in range(UB): a("s_barrier")
    ust(D1, 0)
    a(f"""s_cmp_eq_u32 s{sMASK}, 0
          s_cbranch_scc1 L_nosp3
          s_mov_b64 exec, s[6:7]""")
    ust(D2, 4096)
    a("s_mov_b64 exec, -1")
    a.label("L_nosp3")
    get_tag(NV)
    for _ in range(4 - UB): a("s_barrier")
    a(f"s_add_u32 s3, s26, {WS_F3}")
    publish(a, 3, 6)
    a("s_branch L_att")

    a.label("L_kv")
    FR = 32
    FK = 96
    def X(b, i): return FK + 12*b + 4*i
    def W(b): return FK + 12*b + 8
    a(f"""s_and_b32 s3, s{sW}, 1
          s_lshl_b32 s3, s3, 13
          s_add_u32 s3, s3, {WR}
          v_add_u32 v{WA}, s3, v4""")
    for r in range(32): a(f"v_mov_b32 v{ACC+r}, 0")
    a(f"""s_lshl_b32 s3, s2, 5
          s_add_u32 s3, s3, s{sW}
          s_lshl_b32 s3, s3, 2
          s_add_u32 s31, s3, {WS_F1}
          s_lshl_b32 s3, s{sHG}, 2
          s_and_b32 s4, s{sW}, 2
          s_add_u32 s3, s3, s4
          s_lshl_b32 s3, s3, 16
          s_lshl_b32 s4, s{sTB}, 11
          s_add_u32 s3, s3, s4
          s_add_u32 s3, s3, {WS_K}
          v_lshl_add_u32 v14, v0, 4, s3
          s_add_u32 s3, s3, {WS_V - WS_K}
          v_bfe_u32 v5, v0, 4, 1
          v_lshlrev_b32 v5, 16, v5
          v_lshl_add_u32 v5, v2, 8, v5
          v_and_b32 v6, 15, v0
          v_lshl_add_u32 v5, v6, 4, v5
          v_add_u32 v16, s3, v5
          v_mov_b32 v21, v4
          s_and_b32 s4, s{sW}, 2
          s_mul_i32 s3, s4, {HSTR}
          s_add_u32 s3, s3, 8192
          v_lshl_add_u32 v17, v0, 4, s3
          s_add_u32 s3, s3, 10240
          v_bfe_u32 v5, v0, 4, 1
          v_mul_u32_u24 v5, {HSTR}, v5
          v_lshl_add_u32 v5, v2, 8, v5
          v_lshl_add_u32 v5, v6, 4, v5
          v_add_u32 v18, s3, v5
          s_and_b32 s3, s{sW}, 1
          s_lshl_b32 s3, s3, 12
          s_lshl_b32 s4, s4, 10
          s_add_u32 s3, s3, s4
          s_add_u32 s3, s3, {Q_BASE}
          v_lshl_add_u32 v20, v0, 4, s3
          s_mov_b32 s8, {f2u(QSCALE):#x}
          s_mov_b32 s9, s8""")
    def rd(kk, b):
        return [f"ds_read_b128 {vr(X(b,i),4)}, v{XA+kk} offset:{i*4096}" for i in range(2)] + [f"ds_read_b64_tr_b16 {vr(W(b)+2*q,2)}, v{WA} offset:{kk*2048 + q*512}" for q in range(2)]
    def step(b, variant, r):
        m = []
        for i in range(2):
            A_, B_ = (W(b), X(b,i)) if variant == "K" else (X(b,i), W(b))
            m.append(f"{MFMA} {vr(ACC+16*i,16)}, {vr(A_,4)}, {vr(B_,4)}, {vr(ACC+16*i,16)}")
        for x in [m[0]] + r[:2] + [m[1]] + r[2:]: a(x)
    a(f"""s_mov_b32 s{sIT}, 0
          s_mov_b32 s{sSL}, 0
          s_mov_b32 s27, {WSL}""")
    a("s_waitcnt lgkmcnt(0)")
    stamp(a, 1)
    a("s_barrier")
    stamp(a, 2)
    for x in rd(0, 0) + rd(1, 1): a(x)
    a(f"""s_bitcmp1_b32 s{sW}, 0
          s_cbranch_scc1 L_loopV""")
    for variant in ("K", "V"):
        if ALIGN: a.L.append(".p2align 6")
        a.label(f"L_loop{variant}")
        for kk in range(3):
            a("s_waitcnt lgkmcnt(4)")
            step(kk, variant, rd(kk+2, kk+2) if kk < 2 else [])
        a(f"""s_add_u32 s{sSL}, s{sSL}, 1
              s_cmp_eq_u32 s{sSL}, {NS}
              s_cselect_b32 s{sDEL}, {-(NS-1)*WSL}, s27
              s_cselect_b32 s{sSL}, 0, s{sSL}
              v_add_u32 v{WA}, s{sDEL}, v{WA}""")
        for r in range(4): a(f"v_add_u32 v{XA+r}, 8192, v{XA+r}")
        a(f"""s_add_u32 s{sIT}, s{sIT}, 1
              s_cmp_eq_u32 s{sIT}, 8
              s_waitcnt lgkmcnt(0)
              s_cbranch_scc1 L_last{variant}
              s_barrier""")
        for x in rd(0, 0): a(x)
        step(3, variant, rd(1, 1))
        a(f"s_branch L_loop{variant}")
        a.label(f"L_last{variant}")
        step(3, variant, [])
        stamp(a, 3)
        a("s_mov_b32 s4, 65536\ns_nop 9")
        for i in range(2):
            for mm in range(2):
                d = FR + 8*i + 4*mm
                for t in range(4): a(f"v_cvt_pk_bf16_f32 v{d+t}, v{ACC+16*i+8*mm+2*t}, v{ACC+16*i+8*mm+2*t+1}")
                if variant == "K":
                    a(f"buffer_store_dwordx4 {vr(d,4)}, v14, s[{SWS}:{SWS+3}], {'s4' if mm else '0'} offen offset:{i*1024} {ST}")
                else:
                    a(f"buffer_store_dwordx4 {vr(d,4)}, v16, s[{SWS}:{SWS+3}], 0 offen offset:{i*1024+mm*512} {ST}")
        if variant == "K": a("s_branch L_kvdone")
    a.label("L_kvdone")
    stamp(a, 4)
    FQ = 96
    a(f"""s_and_b32 s3, s{sW}, 1
          s_lshl_b32 s3, s3, 12
          s_sub_u32 s3, s3, 65536
          v_add_u32 v{WA}, {QSLOT[0]}, v21""")
    for kk in range(4): a(f"v_add_u32 v{XA+kk}, s3, v{XA+kk}")
    a(f"""v_mov_b32 v19, {NONW}
          s_barrier
          ds_read_b32 v19, v19""")
    if PUBU < 0:
        a(f"s_waitcnt lgkmcnt(0)\nv_readfirstlane_b32 s{sNON}, v19\ns_nop 1")
        publish(a, 31, 6)
        stamp(a, 5)
    def rdq(u, k, b):
        c2, kk = k // 4, k % 4
        f = FQ + 8*b
        return [f"ds_read_b128 {vr(f,4)}, v{XA+kk} offset:{(2*u+c2)*8192}"] + [f"ds_read_b64_tr_b16 {vr(f+4+2*q,2)}, v{WA} offset:{c2*8192 + kk*2048 + q*512}" for q in range(2)]
    NBQ = 4
    for k in range(3):
        for x in rdq(0, k, k): a(x)
    for u in range(4):
        for k in range(8):
            g = 8*u + k
            last = k >= 5
            if k == 5 and u < 3:
                d = QSLOT[u+1] - QSLOT[u]
                if u == PUBU:
                    a(f"v_readfirstlane_b32 s{sNON}, v19\ns_nop 1")
                    publish(a, 31, 6)
                    stamp(a, 5)
                a(f"""s_waitcnt lgkmcnt(0)
                      s_barrier
                      v_add_u32 v{WA}, {d}, v{WA}""")
            nxt = rdq(u, k+3, (g+3) % NBQ) if k < 5 else (rdq(u+1, k-5, (g+3) % NBQ) if u < 3 else [])
            if not (k >= 5 and u < 3) or k > 5 or True:
                outst = 6 if (k < 5 or u < 3) else 3*(7-k)
                if not (k == 5 and u < 3) and not (k in (6, 7) and u < 3): a(f"s_waitcnt lgkmcnt({outst})")
            f = FQ + 8*(g % NBQ)
            a(f"{MFMA} {vr(ACC,16)}, {vr(f+4,4)}, {vr(f,4)}, {'0' if g == 0 else vr(ACC,16)}")
            for x in nxt: a(x)
    a("s_barrier")
    stamp(a, 6)
    a(f"""s_bitcmp1_b32 s{sW}, 0
          s_cbranch_scc1 L_cpv""")
    for i in range(2):
        for mm in range(2): a(f"ds_write_b128 v17, {vr(FR+8*i+4*mm,4)} offset:{mm*HSTR + i*1024}")
    a("s_branch L_cpq")
    a.label("L_cpv")
    for i in range(2):
        for mm in range(2): a(f"ds_write_b128 v18, {vr(FR+8*i+4*mm,4)} offset:{i*1024 + mm*512}")
    a.label("L_cpq")
    a("s_nop 5")
    for t in range(8): a(f"v_pk_mul_f32 {vr(ACC+2*t,2)}, {vr(ACC+2*t,2)}, s[8:9]")
    for t in range(8): a(f"v_cvt_pk_bf16_f32 v{FQ+t}, v{ACC+2*t}, v{ACC+2*t+1}")
    a(f"""ds_write_b128 v20, {vr(FQ,4)}
          ds_write_b128 v20, {vr(FQ+4,4)} offset:1024
          s_lshl_b32 s3, s{sW}, 2
          s_add_u32 s3, s3, {OWNF}
          v_mov_b32 v5, s3
          v_mov_b32 v6, 1
          s_waitcnt lgkmcnt(0)
          ds_write_b32 v5, v6""")

    a.label("L_att")
    QF = 4
    KA, VA_, NINF, MX = 2, 3, 8, 9
    KF, VF, PP, S, O, CN, CD, CF = 12, 24, 40, 48, 80, 96, 112, 128
    S3, P2, MK = 112, 128, 136
    sVM, sNF, sI = 8, 10, 11
    get_tag(5)
    a(f"""s_xor_b32 s{sPTV}, s{sPTV}, s{sNON}
          s_and_b32 s3, s{sW}, 3
          s_lshr_b32 s5, s{sW}, 2
          s_lshl_b32 s4, s{sHG}, 2
          s_add_u32 s{sHD}, s4, s3
          s_lshl_b32 s4, s{sTB}, 1
          s_add_u32 s4, s4, s5                     ; qb
          s_lshl_b32 s{sQO}, s4, 10
          s_lshl_b32 s6, s{sHD}, 16
          s_add_u32 s{sQO}, s{sQO}, s6
          s_min_u32 s{sNF}, s4, 7
          s_lshl_b32 s4, s4, 5
          s_add_u32 s4, s4, s{sHD}
          s_lshl_b32 s4, s4, 2
          s_add_u32 s{sF2}, s4, {WS_F2}
          v_lshlrev_b32 v1, 4, v0
          s_lshl_b32 s4, s{sW}, 10
          s_add_u32 s4, s4, {Q_BASE}
          v_add_u32 v4, s4, v1
          s_lshl_b32 s4, s3, 2
          s_add_u32 s4, s4, {KVF}
          v_mov_b32 v149, s4
          s_mul_i32 s4, s3, {HSTR}
          s_lshl_b32 s5, s5, 10
          s_add_u32 s4, s4, s5
          v_add_u32 v{KA}, s4, v1
          v_lshrrev_b32 v10, 5, v0
          v_and_b32 v11, 15, v0
          v_lshlrev_b32 v11, 4, v11
          v_lshl_add_u32 v11, v10, 8, v11
          s_add_u32 s4, s4, 10240
          v_add_u32 v{VA_}, s4, v11
          v_mov_b32 v{NINF}, 0xff800000
          s_mov_b32 s{sVM}, 0x0000ffff
          s_mov_b32 s{sVM+1}, 0x0000ffff
          s_mov_b32 s6, 0x00110000
          s_mov_b32 s7, 0x00110000
          v_mov_b32 v10, 0x3f803f80""")
    for t in range(16): a(f"v_cndmask_b32 v{VF+t}, 0, v10, s[6:7]")
    a("v_mov_b32 v10, 0xffff\nv_mov_b32 v11, 0xffff0000")
    for t in range(8):
        a(f"""v_cndmask_b32 v{MK+t}, 0, v10, s[{64+4*t}:{65+4*t}]
              v_cndmask_b32 v5, 0, v11, s[{66+4*t}:{67+4*t}]
              v_or_b32 v{MK+t}, v{MK+t}, v5""")
    stamp(a, 11)
    a(f"""v_mov_b32 v5, {OWNF}
          s_mov_b32 s60, 0""")
    a.label("L_ownw")
    a(f"""ds_read_b128 v[12:15], v5
          s_add_u32 s60, s60, 1
          s_cmp_gt_u32 s60, {SPIN_MAX*8}
          s_cbranch_scc1 L_ownx
          s_waitcnt lgkmcnt(0)
          v_and_b32 v12, v12, v13
          v_and_b32 v14, v14, v15
          v_and_b32 v12, v12, v14
          v_cmp_eq_u32 vcc, 0, v12
          s_cbranch_vccnz L_ownw""")
    a.label("L_ownx")
    stamp(a, 12)
    a(f"ds_read_b128 {vr(QF,4)}, v4")
    def kv_wait(lvl):
        uid[0] += 1
        L = f"kw{uid[0]}"
        a("s_mov_b32 s60, 0")
        a.label(L)
        a(f"""ds_read_b32 v11, v149
              s_add_u32 s60, s60, 1
              s_cmp_gt_u32 s60, {SPIN_MAX*8}
              s_cbranch_scc1 {L}x
              s_waitcnt lgkmcnt(0)
              v_readfirstlane_b32 s3, v11
              s_cmp_lt_u32 s3, {lvl}
              s_cbranch_scc1 {L}""")
        a.label(L + "x")
    def masks(val):
        return [f"""v_cndmask_b32 v{CD+r}, v{NINF}, {val}, s[{64+2*r}:{65+2*r}]
                  v_cndmask_b32 v{CF+r}, {val}, v{NINF}, s[{64+2*r}:{65+2*r}]""" for r in range(16)]
    def maxblk(S_, first):
        if first: a(f"v_max_f32 v{MX}, v{S_}, v{S_+1}")
        for t in range(2 if first else 0, 16, 2):
            a(f"v_max3_f32 v{MX}, v{S_+t}, v{S_+t+1}, v{MX}")
    def xhalf_max():
        a(f"""v_mov_b32 v10, v{MX}
              s_nop 1
              v_permlane32_swap_b32 v10, v{MX}
              s_nop 1
              v_max_f32 v{MX}, v{MX}, v10""")
    order = [7, 6, 5, 4, 3, 2, 1, 8, 0]
    def rdK(n): return f"ds_read_b128 {vr(KF+4*(n%3),4)}, v{KA} offset:{order[n]*1024}"
    def rdV(n):
        b = VF + 8*(n % 2)
        return f"""s_mov_b64 exec, s[{sVM}:{sVM+1}]
              ds_read_b128 {vr(b,4)}, v{VA_} offset:{order[n]*1024}
              ds_read_b128 {vr(b+4,4)}, v{VA_} offset:{order[n]*1024+512}
              s_mov_b64 exec, -1"""
    def mS(k, Dd): return f"{MFMA} {vr(Dd,16)}, {vr(KF+4*(k%3),4)}, {vr(QF,4)}, {vr(CN,16)}"
    a(f"s_setprio {opt(chr(45)*2+'p0', 3)}")
    PTN = opt("--ptn", 1)
    if PTN < 0: pt_load()
    if FORCE_SLOW: a("s_branch L_preslow")
    CI_ = 149
    def fast(first):
        def mSv(k, Dd, tag=''):
            if not first or k == 7: a(mS(k, Dd)); return
            inv = f"{MFMA} {vr(Dd,16)}, {vr(KF+4*(k%3),4)}, {vr(QF,4)}, {vr(CI_+1,16)}"
            if k == 8: a(inv); return
            a(f"""s_cmp_gt_u32 s{sNF}, {k}
                  s_cbranch_scc1 L_fv{k}{tag}
                  {inv}
                  s_branch L_fw{k}{tag}""")
            a.label(f"L_fv{k}{tag}")
            a(mS(k, Dd))
            a.label(f"L_fw{k}{tag}")
        F = int(first)
        if first:
            for r in range(16): a(f"v_mov_b32 v{CI_+1+r}, v{NINF}")
        def standin():
            a(f"""v_max3_f32 v{MX}, v{S+16}, v{S+17}, v{S+18}
                  v_max3_f32 v10, v{S+19}, v{S+20}, v{S+21}
                  v_max3_f32 v11, v{S+22}, v{S+23}, v{S+24}
                  v_max3_f32 v{MX}, v{S+25}, v{S+26}, v{MX}
                  v_max3_f32 v10, v{S+27}, v{S+28}, v10
                  v_max3_f32 v11, v{S+29}, v{S+30}, v11
                  v_max3_f32 v{MX}, v{S+31}, v{MX}, v10
                  v_max_f32 v{MX}, v{MX}, v11""")
            xhalf_max()
            a(f"v_sub_f32 v{CN}, 0xc2700000, v{MX}")
            for r in range(1, 16): a(f"v_mov_b32 v{CN+r}, v{CN}")
        a(f"""s_cmp_lt_u32 s{sW}, 4
              s_cbranch_scc1 L_q0{F}""")
        a(rdK(0)); a(rdV(0))
        a(f"""s_waitcnt lgkmcnt(2)
              {MFMA} {vr(S+16,16)}, {vr(KF,4)}, {vr(QF,4)}, 0
              s_nop 11""")
        standin()
        a("s_nop 1"); a(mS(0, S)); a("s_nop 11")
        for r in range(12): a(f"v_exp_f32 v{S+r}, v{S+r}")
        for t in range(4): a(f"v_cvt_pk_bf16_f32 v{PP+t}, v{S+2*t}, v{S+2*t+1}")
        a(f"""v_exp_f32 v{S+12}, v{S+12}
              s_waitcnt lgkmcnt(0)
              {MFMA} {vr(O,16)}, {vr(VF,4)}, {vr(PP,4)}, 0""")
        for r in range(13, 16): a(f"v_exp_f32 v{S+r}, v{S+r}")
        for t in range(4, 8): a(f"v_cvt_pk_bf16_f32 v{PP+t}, v{S+2*t}, v{S+2*t+1}")
        stamp(a, 30)
        a("s_barrier")
        a(rdK(1)); a("s_barrier"); a(rdK(2)); a(rdV(1))
        a("s_waitcnt lgkmcnt(3)")
        mSv(1, S+16, "b")
        a(f"s_nop 10\ns_branch L_n1{F}")
        a.label(f"L_q0{F}")
        a(f"""ds_read_b128 {vr(KF+8,4)}, v{KA} offset:{8*1024}
              s_waitcnt lgkmcnt(0)
              {MFMA} {vr(S+16,16)}, {vr(KF+8,4)}, {vr(QF,4)}, 0
              s_nop 11""")
        for r in range(16): a(f"v_cndmask_b32 v{S+16+r}, v{NINF}, v{S+16+r}, s[{64+2*r}:{65+2*r}]")
        standin()
        stamp(a, 30)
        a("s_barrier")
        a(rdK(0)); a(rdK(1)); a(rdV(0))
        a("s_waitcnt lgkmcnt(3)")
        mSv(0, S)
        prev = None
        for n in range(8):
            Sn = S + 16*(n % 2); Vn = VF + 8*(n % 2)
            P_ = PP if n % 2 == 0 else P2
            ex = lambda r: a(f"v_exp_f32 v{Sn+r}, v{Sn+r}")
            cv = lambda t: a(f"v_cvt_pk_bf16_f32 v{P_+t}, v{Sn+2*t}, v{Sn+2*t+1}")
            if n == 1: a.label(f"L_n1{F}")
            if n == PTN: pt_load()
            PR = dict(zip([int(c) for c in opt("--pr", "357")], (2, 1, 0)))
            if n in PR: a(f"s_setprio {PR[n]}")
            if n in (2, 4):
                a(f"""v_readfirstlane_b32 s3, v11
                      s_cmp_ge_u32 s3, {n//2}
                      s_cbranch_scc1 L_kf{int(first)}{n}""")
                kv_wait(n//2)
                a.label(f"L_kf{int(first)}{n}")
            if n == 0:
                a("s_waitcnt lgkmcnt(2)"); mSv(1, S+16); a("s_barrier"); a(rdK(2)); a(rdV(1)); a("s_nop 3")
            if n == 7:
                a("s_nop 1"); a(prev); a("s_nop 2")
                for r in range(16): a(f"v_cndmask_b32 v{Sn+r}, v{S3+r}, v{Sn+r}, s[{64+2*r}:{65+2*r}]")
            for r in range(4): ex(r)
            if 0 < n < 7: a(prev)
            if n == 7: a(rdV(8))
            for r in range(4, 8): ex(r)
            if 0 < n < 7:
                a("s_waitcnt lgkmcnt(2)"); mSv(n+1, S + 16*((n+1) % 2))
                if n in (1, 3): a("ds_read_b32 v11, v149")
                a(rdK(n+2)); a(rdV(n+1))
            for t in range(4): cv(t)
            for r in range(8, 12): ex(r)
            if n < 7:
                a("s_waitcnt lgkmcnt(3)")
                a(f"{MFMA} {vr(O,16)}, {vr(Vn,4)}, {vr(P_,4)}, {'0' if n == 0 else vr(O,16)}")
            else:
                for t in range(4): a(f"v_and_b32 v{PP+t}, v{MK+t}, v{P_+t}\nv_xor_b32 v{P_+t}, v{PP+t}, v{P_+t}")
                a("s_waitcnt lgkmcnt(2)")
                a(f"{MFMA} {vr(O,16)}, {vr(Vn,4)}, {vr(PP,4)}, {vr(O,16)}")
            ex(12); ex(13)
            if n == 6: a("s_waitcnt lgkmcnt(2)"); mSv(8, S3)
            if n == 7: a("s_waitcnt lgkmcnt(0)"); a(f"{MFMA} {vr(O,16)}, {vr(VF,4)}, {vr(P2,4)}, {vr(O,16)}")
            ex(14); ex(15)
            for t in range(4, 8): cv(t)
            prev = f"{MFMA} {vr(O,16)}, {vr(Vn+4,4)}, {vr(P_+4,4)}, {vr(O,16)}"
        for t in range(4, 8): a(f"v_and_b32 v{PP+t}, v{MK+t}, v{P2+t}\nv_xor_b32 v{P2+t}, v{PP+t}, v{P2+t}")
        a(f"""s_nop 0
          {MFMA} {vr(O,16)}, {vr(VF+12,4)}, {vr(PP+4,4)}, {vr(O,16)}
          {MFMA} {vr(O,16)}, {vr(VF+4,4)}, {vr(P2+4,4)}, {vr(O,16)}
          s_waitcnt vmcnt(0)
          v_cmp_ne_u32 s[6:7], s{sPTV}, v148
          v_mov_b32 v14, 0x7f800000
          s_nop 8
          v_add_f32 v10, |v{O}|, |v{O+1}|
          v_add_f32 v11, |v{O+2}|, |v{O+3}|
          v_add_f32 v12, |v{O+4}|, |v{O+5}|
          v_add_f32 v13, |v{O+6}|, |v{O+7}|
          v_add_f32 v10, v10, v11
          v_add_f32 v12, v12, v13
          v_mul_f32 v11, 0x43800000, v{O+8}
          v_add_f32 v10, v10, v12
          v_add_f32 v11, v10, v11
          v_rcp_f32 v10, v{O+8}
          v_cmp_lt_f32 vcc, v11, v14
          s_cmp_eq_u64 vcc, -1
          s_cbranch_scc1 L_norm
          s_branch L_slow""")
    a(f"""s_cmp_eq_u32 s{sR}, 0
          s_cbranch_scc1 L_first""")
    fast(False)
    a.label("L_first")
    fast(True)
    a.label("L_preslow")
    a("s_barrier\ns_barrier")
    kv_wait(2)
    if PTN >= 0: pt_load()
    a.label("L_slow")
    a(f"""s_setprio 0
          s_sub_u32 s3, 8, s{sNF}
          s_lshl_b32 s3, s3, 10
          s_waitcnt lgkmcnt(0)""")
    for x in masks("0"): a(x)
    a(f"""ds_read_b128 {vr(KF,4)}, v{KA} offset:{8*1024}
          s_waitcnt lgkmcnt(0)
          {MFMA} {vr(S,16)}, {vr(KF,4)}, {vr(QF,4)}, {vr(CD,16)}
          s_nop 11""")
    maxblk(S, True)
    a(f"""s_cmp_eq_u32 s{sR}, 0
          s_cbranch_scc1 L_s1nofar
          ds_read_b128 {vr(KF,4)}, v{KA}
          s_waitcnt lgkmcnt(0)
          {MFMA} {vr(S,16)}, {vr(KF,4)}, {vr(QF,4)}, {vr(CF,16)}
          s_nop 11""")
    maxblk(S, False)
    a.label("L_s1nofar")
    a(f"""s_mov_b32 s{sI}, s{sNF}
          v_add_u32 v10, s3, v{KA}
          s_cmp_eq_u32 s{sI}, 0
          s_cbranch_scc1 L_s1done""")
    a.label("L_s1loop")
    a(f"""ds_read_b128 {vr(KF,4)}, v10
          v_add_u32 v10, 1024, v10
          s_waitcnt lgkmcnt(0)
          {MFMA} {vr(S,16)}, {vr(KF,4)}, {vr(QF,4)}, 0
          s_nop 11""")
    maxblk(S, False)
    a(f"""s_sub_u32 s{sI}, s{sI}, 1
          s_cmp_lg_u32 s{sI}, 0
          s_cbranch_scc1 L_s1loop""")
    a.label("L_s1done")
    xhalf_max()
    a(f"v_sub_f32 v{MX}, 0, v{MX}")
    for x in masks(f"v{MX}"): a(x)
    for r in range(16): a(f"v_mov_b32 v{CN+r}, v{MX}")
    def pvblk(kaddr, vaddr, off, C, first):
        a(f"""ds_read_b128 {vr(KF,4)}, v{kaddr} offset:{off}
              s_mov_b64 exec, s[{sVM}:{sVM+1}]
              ds_read_b128 {vr(VF,4)}, v{vaddr} offset:{off}
              ds_read_b128 {vr(VF+4,4)}, v{vaddr} offset:{off+512}
              s_mov_b64 exec, -1
              s_waitcnt lgkmcnt(0)
              {MFMA} {vr(S,16)}, {vr(KF,4)}, {vr(QF,4)}, {vr(C,16)}
              s_nop 11""")
        for r in range(16): a(f"v_exp_f32 v{S+r}, v{S+r}")
        for t in range(8): a(f"v_cvt_pk_bf16_f32 v{PP+t}, v{S+2*t}, v{S+2*t+1}")
        a("s_nop 1")
        a(f"{MFMA} {vr(O,16)}, {vr(VF,4)}, {vr(PP,4)}, {'0' if first else vr(O,16)}")
        a(f"{MFMA} {vr(O,16)}, {vr(VF+4,4)}, {vr(PP+4,4)}, {vr(O,16)}")
    pvblk(KA, VA_, 8*1024, CD, True)
    a(f"""s_cmp_eq_u32 s{sR}, 0
          s_cbranch_scc1 L_s2nofar""")
    pvblk(KA, VA_, 0, CF, False)
    a.label("L_s2nofar")
    a(f"""s_mov_b32 s{sI}, s{sNF}
          v_add_u32 v10, s3, v{KA}
          v_add_u32 v11, s3, v{VA_}
          s_cmp_eq_u32 s{sI}, 0
          s_cbranch_scc1 L_s2done""")
    a.label("L_s2loop")
    pvblk(10, 11, 0, CN, False)
    a(f"""v_add_u32 v10, 1024, v10
          v_add_u32 v11, 1024, v11
          s_sub_u32 s{sI}, s{sI}, 1
          s_cmp_lg_u32 s{sI}, 0
          s_cbranch_scc1 L_s2loop""")
    a.label("L_s2done")
    a(f"""s_waitcnt vmcnt(0)
          v_cmp_ne_u32 s[6:7], s{sPTV}, v148
          s_nop 12
          v_rcp_f32 v10, v{O+8}
          s_nop 0""")
    a.label("L_norm")
    for t in range(8): a(f"v_mul_f32 v{O+t}, v10, v{O+t}")
    for t in range(4): a(f"v_cvt_pk_bf16_f32 v{PP+t}, v{O+2*t}, v{O+2*t+1}")
    a(f"s_add_u32 s4, s{sQO}, {WS_O}")
    if MODE == "auto":
        a(f"""s_cmp_eq_u64 s[6:7], 0
              s_cbranch_scc0 L_ox
              buffer_store_dwordx4 {vr(PP,4)}, v1, s[{SWS}:{SWS+3}], s4 offen""")
        stamp(a, 13)
        publish(a, sF2, 10, flav="")
        a("s_branch L_od")
        a.label("L_ox")
    a(f"buffer_store_dwordx4 {vr(PP,4)}, v1, s[{SWS}:{SWS+3}], s4 offen {ST}")
    stamp(a, 13 if MODE != "auto" else 19)
    publish(a, sF2, 10)
    a.label("L_od")
    stamp(a, 14)
    a(f"""s_barrier
          s_cmp_ge_u32 s{sW}, 4
          s_cbranch_scc1 L_fin""")
    OA, WA2, ACC2, W2, O2 = 8, 9, 16, 32, 32
    a(f"""s_and_b32 s5, s{sW}, 1
          v_lshrrev_b32 v2, 5, v0
          v_bfe_u32 v3, v0, 2, 2
          v_lshl_add_u32 v4, v2, 2, v3
          v_lshlrev_b32 v4, 7, v4
          v_bfe_u32 v5, v0, 4, 1
          v_lshlrev_b32 v5, 1, v5
          v_and_b32 v6, 1, v0
          v_add_u32 v5, v5, v6
          s_and_b32 s3, s{sW}, 2
          s_lshl_b32 s3, s3, 1
          v_add_u32 v5, s3, v5
          v_bfe_u32 v6, v0, 3, 1
          v_lshlrev_b32 v6, 2, v6
          v_xor_b32 v5, v5, v6
          v_lshl_add_u32 v4, v5, 4, v4
          v_bfe_u32 v6, v0, 1, 1
          v_lshl_add_u32 v4, v6, 3, v4
          v_add_u32 v{WA2}, {WO_BASE}, v4
          s_lshl_b32 s3, s5, 10
          v_add_u32 v{OA}, s3, v1
          v_and_b32 v14, 31, v0
          s_lshl_b32 s3, s{sTB}, 6
          s_lshl_b32 s5, s5, 5
          s_add_u32 s3, s3, s5
          v_add_u32 v14, s3, v14
          v_lshlrev_b32 v14, 11, v14
          v_lshl_add_u32 v14, v2, 4, v14
          s_lshl_b32 s3, s{sHG}, 7
          s_and_b32 s5, s{sW}, 2
          s_lshl_b32 s5, s5, 5
          s_add_u32 s3, s3, s5
          s_add_u32 s3, s3, 1024
          v_add_u32 v14, s3, v14
          v_mov_b32 v15, v{OA}""")
    heads = [8*(k//4 % 4) + 4*(k//16) + k % 4 for k in range(32)]
    OB = [2, 6, 10, 160]
    for k in range(32):
        for q in range(2):
            a(f"ds_read_b64_tr_b16 {vr(W2+4*k+2*q,2)}, v{WA2} offset:{heads[k]*2048 + q*1024}")
    a("s_waitcnt lgkmcnt(0)\ns_barrier")
    stamp(a, 28)
    rdo = lambda k: f"ds_read_b128 {vr(OB[k % 4],4)}, v15 offset:{heads[k]*2048}"
    for k in range(4): a(rdo(k))
    for k in range(32):
        if k == 12:
            a("s_barrier")
            stamp(a, 16)
        a(f"s_waitcnt lgkmcnt({min(3, 31-k)})")
        a(f"{MFMA} {vr(ACC2,16)}, {vr(W2+4*k,4)}, {vr(OB[k % 4],4)}, {'0' if k == 0 else vr(ACC2,16)}")
        if k + 4 < 32: a(rdo(k+4))
    a("s_nop 11")
    for mm in range(2):
        for t in range(4):
            a(f"v_cvt_pk_bf16_f32 v{O2+4*mm+t}, v{ACC2+8*mm+2*t}, v{ACC2+8*mm+2*t+1}")
        a(f"buffer_store_dwordx4 {vr(O2+4*mm,4)}, v14, s[{SOUT}:{SOUT+3}], 0 offen offset:{32*mm} {OPF}")
    stamp(a, 17)
    a.label("L_fin")
    stamp_flush(a, 18)
    a.label("L_end")
    a.label("L_last_insn")
    a("s_endpgm")
    return a

def main():
    a = gen()
    hdr = f"""; {NAME} : one fused kernel (generated by my gen11.py)
; @launch grid=(256,1,1) block=(768,1,1) lds=163840
.amdgcn_target "amdgcn-amd-amdhsa--gfx950"
.text
"""
    kd = f""".section .rodata,"a"
.p2align 6
.amdhsa_kernel {KN}
  .amdhsa_next_free_vgpr 168
  .amdhsa_next_free_sgpr 102
  .amdhsa_accum_offset 168
  .amdhsa_group_segment_fixed_size 0
  .amdhsa_kernarg_size 88
  .amdhsa_user_sgpr_count 2
  .amdhsa_user_sgpr_kernarg_segment_ptr 1
  .amdhsa_system_sgpr_workgroup_id_x 1
.end_amdhsa_kernel
"""
    path = sys.argv[1] if len(sys.argv) > 1 and sys.argv[1].endswith(".s") else f"cdna_kernels/{NAME}.s"
    open(path, "w").write(hdr + a.text() + kd)
main()
```
